```python
import torch

def _softmax(x, axis=-1):
    return torch.softmax(x, dim=axis)
def _gelu(x):
    return torch.nn.functional.gelu(x, approximate="tanh")
def _silu(x):
    return torch.nn.functional.silu(x)
def _sigmoid(x):
    return torch.sigmoid(x)
def _layernorm(x, axis=-1, eps=1e-5):
    m = x.mean(dim=axis, keepdim=True)
    v = x.var(dim=axis, keepdim=True, unbiased=False)
    return (x - m) / torch.sqrt(v + eps)
def _scatter_add(tgt, idx, src, axis=0):
    return tgt.clone().index_add_(axis, idx, src)
def _segment_sum(src, seg, n):
    out = torch.zeros((n,) + src.shape[1:], dtype=src.dtype)
    return out.index_add_(0, seg, src)
def _pad(x, pw):
    flat = tuple(v for pair in reversed(pw) for v in pair)
    return torch.nn.functional.pad(x, flat)

kernel_name = 'standalone__hybrid_graph_tf_graphgps__graph'

def setup_inputs():

    _w = (lambda a: (lambda t: t.to(torch.bfloat16) if t.is_floating_point() else t)(torch.as_tensor(a)))
    N, deg, D = 10000, 32, 128
    E = N * deg
    src = (lambda lo, hi, *s: torch.randint(lo, hi, s))(0, N, E).to(torch.int64)
    dst = (lambda lo, hi, *s: torch.randint(lo, hi, s))(0, N, E).to(torch.int64)
    deg_cnt = torch.bincount(dst, minlength=N).to(float) + 1.0
    sc = 1.0 / float(D) ** 0.5
    return {
        "x": _w((lambda *s: torch.randn(*s, dtype=torch.bfloat16) * 0.05)(N, D)),
        "src": _w(src),
        "dst": _w(dst),
        "deg_inv": _w((1.0 / deg_cnt).to(float)),
        "w_msg": _w((lambda *s: torch.randn(*s, dtype=torch.bfloat16) * 0.2)(D, D) * sc),
        "wq": _w((lambda *s: torch.randn(*s, dtype=torch.bfloat16) * 1.6)(D, D) * sc),
        "wk": _w((lambda *s: torch.randn(*s, dtype=torch.bfloat16) * 1.6)(D, D) * sc),
        "wv": _w((lambda *s: torch.randn(*s, dtype=torch.bfloat16) * 0.2)(D, D) * sc),
        "w_out": _w((lambda *s: torch.randn(*s, dtype=torch.bfloat16) * 0.2)(D, D) * sc),
    }

def reference(x, src, dst, deg_inv, w_msg, wq, wk, wv, w_out):
    N, D = x.shape[0], x.shape[1]
    h = _layernorm(x, axis=-1)
    m_e = torch.einsum('nd,de->ne', h, w_msg)
    h_local = _segment_sum(m_e[src], dst, N) * deg_inv[:, None]
    q = torch.einsum('nd,de->ne', h, wq)
    k = torch.einsum('nd,de->ne', h, wk)
    v = torch.einsum('nd,de->ne', h, wv)
    logits = torch.einsum('id,jd->ij', q, k) / (float(D) ** 0.5)
    attn = _softmax(logits, axis=-1)
    h_global = torch.einsum('ij,jd->id', attn, v)
    y = torch.einsum('nd,de->ne', h_local + h_global, w_out)
    return x + y
```

```python
import re

TRANS = ("v_exp_f32", "v_log_f32", "v_rcp_f32", "v_rsq_f32", "v_sqrt_f32", "v_sin_f32", "v_cos_f32")


def _regs(tok):
    tok = tok.strip()
    tok = tok.replace("abs(", "").replace(")", "").replace("|", "")
    if tok.startswith("-"):
        tok = tok[1:]
    m = re.fullmatch(r"([vas])(\d+)", tok)
    if m:
        return [(m.group(1), int(m.group(2)))]
    m = re.fullmatch(r"([vas])\[(\d+):(\d+)\]", tok)
    if m:
        return [(m.group(1), i) for i in range(int(m.group(2)), int(m.group(3)) + 1)]
    if tok in ("vcc", "vcc_lo", "vcc_hi"):
        return [("s", "vcc")]
    if tok in ("exec", "exec_lo", "exec_hi"):
        return [("s", "exec")]
    if tok == "m0":
        return [("s", "m0")]
    return []


class Ins:
    __slots__ = ("text", "op", "ops", "mods", "kind", "wr", "rd", "mf", "passes", "states", "dpp", "lds", "cread")

    def __init__(self, text):
        self.text = text
        t = text.split(";")[0].strip()
        parts = t.split(None, 1)
        self.op = parts[0]
        rest = parts[1] if len(parts) > 1 else ""
        toks = [x.strip() for x in rest.split(",")] if rest else []
        mods = []
        rest2 = re.sub(r"\b(op_sel|op_sel_hi|neg_lo|neg_hi):\[[^\]]*\]", lambda m: (mods.append(m.group(0)), "")[1], rest)
        toks = [x.strip() for x in rest2.split(",")] if rest2.strip() else []
        if toks:
            last = toks[-1].split()
            toks[-1] = last[0] if last else ""
            mods += last[1:]
        self.ops = toks
        self.mods = mods
        op = self.op
        base = re.sub(r"_(e32|e64|dpp|sdwa)$", "", op)
        self.dpp = op.endswith("_dpp") or any(m.startswith(("row_", "quad_perm", "wave_")) for m in mods)
        self.lds = "lds" in mods
        self.mf = None
        self.passes = 0
        self.states = 1
        self.cread = []
        wr, rd = [], []
        if base.startswith("v_mfma"):
            self.kind = "mfma"
            wr = _regs(toks[0])
            a, b, c = _regs(toks[1]), _regs(toks[2]), _regs(toks[3])
            self.mf = (wr, a, b, c)
            rd = a + b + c
            self.cread = c
            self.passes = 8 if "32x32" in base else 4
        elif base.startswith("v_cmp"):
            self.kind = "valu"
            wr = _regs(toks[0])
            if base.startswith("v_cmpx"):
                wr += [("s", "exec")]
            for x in toks[1:]:
                rd += _regs(x)
        elif base in ("v_readfirstlane_b32", "v_readlane_b32"):
            self.kind = "valu"
            wr = _regs(toks[0])
            for x in toks[1:]:
                rd += _regs(x)
        elif base.startswith("v_permlane"):
            self.kind = "valu"
            wr = _regs(toks[0]) + _regs(toks[1])
            rd = list(wr)
        elif base in ("v_add_co_u32", "v_sub_co_u32", "v_addc_co_u32", "v_subb_co_u32"):
            self.kind = "valu"
            wr = _regs(toks[0]) + _regs(toks[1])
            for x in toks[2:]:
                rd += _regs(x)
        elif base == "v_nop":
            self.kind = "valu"
        elif base.startswith("v_"):
            self.kind = "valu"
            wr = _regs(toks[0])
            for x in toks[1:]:
                rd += _regs(x)
            if base in ("v_fmac_f32", "v_dot2c_f32_bf16", "v_pk_fmac_f16") or self.dpp:
                rd += wr
            if base == "v_cndmask_b32" and len(toks) == 3:
                rd += [("s", "vcc")]
        elif base.startswith("ds_"):
            self.kind = "ds"
            if base.startswith(("ds_read", "ds_bpermute", "ds_permute", "ds_swizzle")) or "_rtn" in base:
                wr = _regs(toks[0])
                for x in toks[1:]:
                    rd += _regs(x)
            else:
                for x in toks:
                    rd += _regs(x)
        elif base.startswith(("buffer_", "global_")):
            self.kind = "vmem"
            if base in ("buffer_wbl2", "buffer_inv"):
                pass
            elif "load" in base and not self.lds:
                wr = _regs(toks[0])
                for x in toks[1:]:
                    rd += _regs(x)
            elif "atomic" in base and "sc0" in mods:
                wr = _regs(toks[0])
                for x in toks:
                    rd += _regs(x)
            else:
                for x in toks:
                    rd += _regs(x)
            if self.lds:
                rd += [("s", "m0")]
        elif base == "s_nop":
            self.kind = "salu"
            self.states = int(toks[0], 0) + 1
        elif base.startswith("s_"):
            self.kind = "salu"
            if base.startswith(("s_cmp", "s_cbranch", "s_branch", "s_waitcnt", "s_barrier", "s_endpgm", "s_setprio", "s_sleep", "s_bitcmp")):
                for x in toks:
                    rd += _regs(x)
            else:
                wr = _regs(toks[0]) if toks else []
                for x in toks[1:]:
                    rd += _regs(x)
                if "saveexec" in base:
                    wr += [("s", "exec")]
        else:
            raise ValueError("unknown instruction: " + text)
        self.wr, self.rd = wr, rd
        self.op = base

    @property
    def trans(self):
        return self.op in TRANS


def check_hazards(seq, name=""):
    probs = []
    n = len(seq)
    tm = []
    mft = []
    t = 0
    for c in seq:
        if c.kind == "mfma":
            if len(mft) >= 2:
                t = max(t, mft[-2][0] + mft[-2][1])
            mft.append((t, c.passes))
        tm.append(t)
        t += c.states
    for i, c in enumerate(seq):
        for j in range(i - 1, -1, -1):
            p = seq[j]
            dist = tm[i] - tm[j] - p.states if p.kind == "mfma" else sum(x.states for x in seq[j + 1:i][:24])
            need = 0
            why = ""
            pw = set(p.wr)
            crd, cwr = set(c.rd), set(c.wr)
            vpw = {r for r in pw if r[0] in "va"}
            spw = {r for r in pw if r[0] == "s"}
            if p.kind == "valu":
                if c.kind == "mfma" and vpw & crd:
                    need, why = 2, "VALU->MFMA operand"
                if c.kind == "valu" and p.trans and not c.trans and vpw & crd:
                    need, why = max(need, 1), "trans->VALU"
                if c.kind == "valu" and (c.op.startswith("v_permlane") or c.dpp) and vpw & crd:
                    need, why = max(need, 2), "VALU->permlane/dpp"
                if c.op in ("v_readfirstlane_b32", "v_readlane_b32") and vpw & crd:
                    need, why = max(need, 1), "VALU->readlane"
                if spw:
                    if c.kind == "valu" and (spw - {("s", "exec")}) & crd:
                        need, why = max(need, 2), "VALU sgpr->VALU const"
                        if c.op in ("v_readlane_b32", "v_writelane_b32"):
                            need = max(need, 4)
                    if c.kind == "vmem" and spw & crd:
                        need, why = max(need, 5), "VALU sgpr->VMEM"
                    if ("s", "exec") in spw:
                        if c.kind == "mfma":
                            need, why = max(need, 4), "exec->mfma"
                        if c.dpp:
                            need, why = max(need, 5), "exec->dpp"
                        if c.op.startswith(("v_permlane", "v_read")):
                            need, why = max(need, 4), "exec->permlane"
            if p.kind == "mfma":
                big = p.passes == 8
                D = set(p.mf[0])
                if c.kind in ("valu",) and (D & crd or D & cwr):
                    need, why = max(need, 12 if big else 8), "MFMA D->VALU"
                if c.kind in ("vmem", "ds") and (D & crd or D & cwr):
                    need, why = max(need, 12 if big else 8), "MFMA D->mem"
                if c.kind == "mfma":
                    if D & (set(c.mf[1]) | set(c.mf[2])):
                        need, why = max(need, 12 if big else 8), "MFMA D->MFMA A/B"
                    cc = set(c.mf[3])
                    if D & cc and not (p.mf[0] == c.mf[3] and p.passes == c.passes):
                        need, why = max(need, 10 if big else 6), "MFMA D->MFMA C partial"
                    if D & set(c.mf[0]) and not (p.mf[0] == c.mf[3]):
                        need, why = max(need, 10 if big else 6), "MFMA D WAW"
                if c.kind == "valu" and set(p.cread) & cwr:
                    need, why = max(need, 7 if big else 3), "MFMA C WAR"
            if p.kind == "salu" and ("s", "m0") in pw and c.kind == "vmem" and c.lds:
                need, why = max(need, 1), "m0->lds dma"
            if p.kind == "vmem" and "store" in p.op and ("x3" in p.op or "x4" in p.op):
                data = set(_regs(p.ops[0])) if p.op.startswith("buffer") else set(_regs(p.ops[1]))
                if data & cwr:
                    need, why = max(need, 2 if c.kind == "valu" else 1), "wide store data WAR"
            if need > dist:
                probs.append(f"{name}: [{j}] {p.text.strip()}  ->  [{i}] {c.text.strip()} : {why} needs {need}, has {dist}")
            if i - j > 24:
                break
    return probs


class Asm:
    def __init__(self):
        self.lines = []
        self.segs = {}
        self.cur = None

    def seg(self, name):
        self.cur = self.segs.setdefault(name, [])

    def raw(self, text):
        self.lines.append(text)

    def label(self, name):
        self.lines.append(name + ":")

    def __call__(self, text):
        for t in text.strip().split("\n"):
            t = t.strip()
            if not t or t.startswith(";"):
                if t:
                    self.lines.append("    " + t)
                continue
            if t.endswith(":") or t.startswith("."):
                self.lines.append(t)
                continue
            self.lines.append("    " + t)
            if self.cur is not None:
                self.cur.append(Ins(t))

    def check(self, chains):
        bad = []
        for ch in chains:
            seq = []
            for s in ch:
                seq += self.segs[s]
            bad += check_hazards(seq, "+".join(ch))
        seen = set()
        out = []
        for b in bad:
            k = b.split(":", 1)[1]
            k = re.sub(r"\[\d+\]", "", k)
            if k not in seen:
                seen.add(k)
                out.append(b)
        return out

    def text(self):
        return "\n".join(self.lines) + "\n"
```

```python
from layout import *
import struct

MF = "v_mfma_f32_32x32x16_bf16"


def f2u(x):
    return struct.unpack("<I", struct.pack("<f", x))[0]


def vr(b, n):
    return f"v[{b}:{b + n - 1}]"


def emit_k1(a, cfg):
    name = "k1_proj_kernel"
    NT = 80
    NWG = 4 * NT
    a.raw(".text")
    a.raw(f".globl {name}\n.p2align 8\n.type {name},@function")
    a.label(name)
    a.seg("k1_a")
    SX, SW1, SWO, SWS = 4, 8, 12, 16
    S_JOB, S_BLK, S_W, S_T0, S_T1, S_SC = 20, 21, 22, 23, 24, 26
    S_O1, S_O2 = 28, 29
    XR = 64
    XF = 96
    H = 32
    D = 160
    VA = 8
    a(f"""
    s_cmp_ge_u32 s2, {NWG}
    s_cbranch_scc1 L_k1_end
    s_and_b32 s{S_JOB}, s2, 3
    s_add_u32 s{S_T0}, s{S_JOB}, 1
    s_and_b32 s{S_T0}, s{S_T0}, 3
    s_lshl_b32 s{S_T0}, s{S_T0}, 3
    s_add_u32 s{S_T0}, s{S_T0}, 32
    s_load_dwordx2 s[{SX}:{SX + 1}], s[0:1], 0
    s_load_dwordx2 s[{SW1}:{SW1 + 1}], s[0:1], s{S_T0}
    s_load_dwordx2 s[{SWO}:{SWO + 1}], s[0:1], 64
    s_load_dwordx2 s[{SWS}:{SWS + 1}], s[0:1], 88
    v_lshrrev_b32 v1, 6, v0
    v_and_b32 v2, 63, v0                      ; lane
    v_readfirstlane_b32 s{S_W}, v1
    s_mov_b32 s{SX + 2}, {N * 256}
    s_mov_b32 s{SX + 3}, 0x00020000
    s_mov_b32 s{SW1 + 2}, 32768
    s_mov_b32 s{SW1 + 3}, 0x00020000
    s_mov_b32 s{SWO + 2}, 32768
    s_mov_b32 s{SWO + 3}, 0x00020000
    s_mov_b32 s{SWS + 2}, 0x10000000
    s_mov_b32 s{SWS + 3}, 0x00020000
    s_lshr_b32 s{S_BLK}, s2, 2
    s_lshl_b32 s{S_BLK}, s{S_BLK}, 2
    s_add_u32 s{S_BLK}, s{S_BLK}, s{S_W}
    s_lshl_b32 s{S_BLK}, s{S_BLK}, 13          ; *8192 bytes
    ; x address: n*256 + h*16
    v_and_b32 v3, 31, v2
    v_lshrrev_b32 v4, 5, v2                    ; h
    v_lshlrev_b32 v5, 8, v3
    v_lshl_add_u32 v5, v4, 4, v5               ; v5 = n*256 + h*16
    v_lshrrev_b32 v6, 4, v2                    ; g
    v_and_b32 v7, 15, v2                       ; t
    v_lshlrev_b32 v16, 2, v6
    v_xor_b32 v16, v16, v7
    v_lshlrev_b32 v16, 4, v16
    v_lshl_add_u32 v16, v6, 8, v16
    s_lshl_b32 s{S_T0}, s{S_W}, 13             ; w*8192
    s_add_u32 s{S_T1}, s{S_T0}, 4096
    s_mov_b32 m0, s{S_T0}
    s_waitcnt lgkmcnt(0)
    s_and_b32 s{SX + 1}, s{SX + 1}, 0xffff
    s_and_b32 s{SW1 + 1}, s{SW1 + 1}, 0xffff
    s_and_b32 s{SWO + 1}, s{SWO + 1}, 0xffff
    s_and_b32 s{SWS + 1}, s{SWS + 1}, 0xffff
    """)
    for s in range(8):
        a(f"buffer_load_dwordx4 {vr(XR + 4 * s, 4)}, v5, s[{SX}:{SX + 3}], s{S_BLK} offen offset:{32 * s}")
    for k in range(4):
        a(f"buffer_load_dwordx4 v16, s[{SW1}:{SW1 + 3}], s{S_T0} offen offset:{1024 * k} lds")
    a(f"s_mov_b32 m0, s{S_T1}")
    a("s_nop 0")
    for k in range(4):
        a(f"buffer_load_dwordx4 v16, s[{SW1}:{SW1 + 3}], s{S_T1} offen offset:{1024 * k} lds")
    a(f"s_cmp_lt_u32 s{S_JOB}, 2")
    a("s_cbranch_scc1 L_k1_nowo")
    a(f"s_add_u32 m0, s{S_T0}, 0x8000")
    a("s_nop 0")
    for k in range(4):
        a(f"buffer_load_dwordx4 v16, s[{SWO}:{SWO + 3}], s{S_T0} offen offset:{1024 * k} lds")
    a(f"s_add_u32 m0, s{S_T1}, 0x8000")
    a("s_nop 0")
    for k in range(4):
        a(f"buffer_load_dwordx4 v16, s[{SWO}:{SWO + 3}], s{S_T1} offen offset:{1024 * k} lds")
    a("s_waitcnt vmcnt(16)")
    a("s_branch L_k1_ln")
    a.label("L_k1_nowo")
    a("s_waitcnt vmcnt(8)")
    a.label("L_k1_ln")
    a.seg("k1_b")
    a(f"""
    v_mov_b32 v17, 0
    v_lshlrev_b32 v18, 6, v0
    s_lshl_b32 s{S_T0}, s2, 11
    s_add_u32 s{S_T0}, s{S_T0}, {CNT}
    v_cmp_gt_u32 vcc, 32, v0
    s_and_saveexec_b64 s[30:31], vcc
    s_cbranch_execz L_k1_nz
    buffer_store_dword v17, v18, s[{SWS}:{SWS + 3}], s{S_T0} offen
    """)
    a.label("L_k1_nz")
    a("s_mov_b64 exec, s[30:31]")
    a(f"""
    v_lshrrev_b32 v17, 2, v7                   ; r = t>>2
    v_lshrrev_b32 v18, 1, v6                   ; hh = g>>1
    v_and_b32 v19, 1, v6                       ; g&1
    v_lshlrev_b32 v20, 6, v17                  ; r*64
    v_lshl_add_u32 v20, v19, 5, v20            ; + (g&1)*32
    v_and_b32 v21, 3, v7
    v_lshl_add_u32 v20, v21, 3, v20            ; + (t&3)*8
    v_lshl_add_u32 v20, v17, 8, v20            ; + r*256
    v_lshl_add_u32 v{VA}, v18, 11, v20
    v_lshl_add_u32 v{VA + 4}, v18, 10, v20
    """)
    for i in range(1, 4):
        a(f"v_xor_b32 v{VA + i}, {i << 6}, v{VA}")
        a(f"v_xor_b32 v{VA + 4 + i}, {i << 6}, v{VA + 4}")
    for i in range(32):
        a(f"v_lshlrev_b32 v{XF + 2 * i}, 16, v{XR + i}")
        a(f"v_and_b32 v{XF + 2 * i + 1}, 0xffff0000, v{XR + i}")
    AC = 22
    a(f"v_pk_add_f32 {vr(AC, 2)}, {vr(XF, 2)}, {vr(XF + 2, 2)}")
    a(f"v_pk_add_f32 {vr(AC + 2, 2)}, {vr(XF + 4, 2)}, {vr(XF + 6, 2)}")
    for i in range(4, 32):
        t = AC + 2 * (i & 1)
        a(f"v_pk_add_f32 {vr(t, 2)}, {vr(t, 2)}, {vr(XF + 2 * i, 2)}")
    a(f"v_pk_add_f32 {vr(AC, 2)}, {vr(AC, 2)}, {vr(AC + 2, 2)}")
    a(f"v_add_f32 v{AC}, v{AC}, v{AC + 1}")

    def xhalf_sum(r, t):
        a(f"v_mov_b32 v{t}, v{r}")
        a("s_nop 1")
        a(f"v_permlane32_swap_b32 v{r}, v{t}")
        a("s_nop 1")
        a(f"v_add_f32 v{r}, v{r}, v{t}")

    xhalf_sum(AC, AC + 1)
    a(f"v_mul_f32 v26, {hex(f2u(-1.0 / 128))}, v{AC}")
    a("v_mov_b32 v27, v26")
    for i in range(32):
        a(f"v_pk_add_f32 {vr(XF + 2 * i, 2)}, {vr(XF + 2 * i, 2)}, v[26:27]")
    a(f"v_pk_mul_f32 {vr(AC, 2)}, {vr(XF, 2)}, {vr(XF, 2)}")
    a(f"v_pk_mul_f32 {vr(AC + 2, 2)}, {vr(XF + 2, 2)}, {vr(XF + 2, 2)}")
    for i in range(2, 32):
        t = AC + 2 * (i & 1)
        a(f"v_pk_fma_f32 {vr(t, 2)}, {vr(XF + 2 * i, 2)}, {vr(XF + 2 * i, 2)}, {vr(t, 2)}")
    a(f"v_pk_add_f32 {vr(AC, 2)}, {vr(AC, 2)}, {vr(AC + 2, 2)}")
    a(f"v_add_f32 v{AC}, v{AC}, v{AC + 1}")
    xhalf_sum(AC, AC + 1)

    def rnd(r):
        a(f"v_cvt_pk_bf16_f32 v{r}, v{r}, v{r}")
        a(f"v_lshlrev_b32 v{r}, 16, v{r}")

    a(f"v_mul_f32 v{AC}, {hex(f2u(1.0 / 128))}, v{AC}")
    rnd(AC)
    a(f"v_add_f32 v{AC}, {hex(f2u(1e-5))}, v{AC}")
    rnd(AC)
    a(f"v_sqrt_f32 v{AC}, v{AC}")
    a(f"v_cvt_pk_bf16_f32 v24, v26, v26")
    rnd(AC)
    a(f"v_rcp_f32 v28, v{AC}")
    a(f"v_lshlrev_b32 v24, 16, v24")
    a(f"v_sub_f32 v24, v24, v26")
    a(f"v_mov_b32 v29, v28")
    a(f"v_mul_f32 v24, v24, v28")
    a(f"v_mov_b32 v25, v24")
    for i in range(32):
        a(f"v_pk_fma_f32 {vr(XF + 2 * i, 2)}, {vr(XF + 2 * i, 2)}, v[28:29], v[24:25]")
    for i in range(32):
        a(f"v_cvt_pk_bf16_f32 v{H + i}, v{XF + 2 * i}, v{XF + 2 * i + 1}")
    c = 1.4426950408889634 / 128 ** 0.5
    a(f"s_mov_b32 s{S_SC}, {hex(f2u(c))}")
    a(f"s_cmp_eq_u32 s{S_JOB}, 0")
    a(f"s_cselect_b32 s{S_SC}, s{S_SC}, 1.0")
    a(f"s_mov_b32 s{S_SC + 1}, s{S_SC}")
    a("s_waitcnt vmcnt(0)")
    a("s_barrier")

    WB = [XF, XF + 32]

    def reads(i, buf, addr, base, second):
        for s in range(8):
            a(f"ds_read_b64_tr_b16 {vr(buf + 4 * s, 2)}, v{addr + i} offset:{base + 4096 * s}")
            a(f"ds_read_b64_tr_b16 {vr(buf + 4 * s + 2, 2)}, v{addr + i} offset:{base + 4096 * s + second}")

    def gemm(addr, base, second, other, w_is_a):
        reads(0, WB[0], addr, base, second)
        for i in range(4):
            a("s_waitcnt lgkmcnt(0)")
            if i < 3:
                reads(i + 1, WB[(i + 1) & 1], addr, base, second)
            for s in range(8):
                w = vr(WB[i & 1] + 4 * s, 4)
                o = vr(other + 4 * s, 4)
                A, B = (w, o) if w_is_a else (o, w)
                d = vr(D + 16 * i, 16)
                a(f"{MF} {d}, {A}, {B}, {'0' if s == 0 else d}")

    gemm(VA, 0, 1024, H, True)
    a("s_nop 7")
    a("s_nop 3")
    G1 = XR
    for i in range(32):
        a(f"v_pk_mul_f32 {vr(D + 2 * i, 2)}, {vr(D + 2 * i, 2)}, s[{S_SC}:{S_SC + 1}]")
    for i in range(32):
        a(f"v_cvt_pk_bf16_f32 v{G1 + i}, v{D + 2 * i}, v{D + 2 * i + 1}")
    a(f"s_cmp_ge_u32 s{S_JOB}, 2")
    a("s_cbranch_scc1 L_k1_second")
    a.seg("k1_qk")
    a(f"""
    v_lshrrev_b32 v17, 4, v3
    v_lshlrev_b32 v17, 12, v17
    v_and_b32 v18, 15, v3
    v_lshl_add_u32 v17, v18, 4, v17
    v_lshl_add_u32 v17, v4, 8, v17
    s_mul_i32 s{S_O1}, s{S_JOB}, {KF - QF}
    s_add_u32 s{S_O1}, s{S_O1}, s{S_BLK}
    s_add_u32 s{S_O1}, s{S_O1}, {QF}
    """)
    for c_ in range(8):
        i, k = c_ >> 1, c_ & 1
        a(f"buffer_store_dwordx4 {vr(G1 + 4 * c_, 4)}, v17, s[{SWS}:{SWS + 3}], s{S_O1} offen offset:{1024 * i + 512 * k}")
    a("s_branch L_k1_end")
    a.label("L_k1_second")
    a.seg("k1_c")
    a(f"s_cmp_eq_u32 s{S_JOB}, 3")
    a("s_cbranch_scc1 L_k1_m")

    def pack_store(addr, soffs):
        a("s_nop 7")
        a("s_nop 3")
        n = 0
        for i in range(4):
            for kk in range(2):
                t = H + 4 * n
                n += 1
                b = D + 16 * i + 4 * kk
                a(f"v_cvt_pk_bf16_f32 v{t}, v{b}, v{b + 1}")
                a(f"v_cvt_pk_bf16_f32 v{t + 1}, v{b + 2}, v{b + 3}")
                a(f"v_cvt_pk_bf16_f32 v{t + 2}, v{b + 8}, v{b + 9}")
                a(f"v_cvt_pk_bf16_f32 v{t + 3}, v{b + 10}, v{b + 11}")
                so, imm = soffs(i, kk)
                a(f"buffer_store_dwordx4 {vr(t, 4)}, v{addr}, s[{SWS}:{SWS + 3}], s{so} offen offset:{imm}")

    a.seg("k1_v")
    a(f"""
    v_lshrrev_b32 v17, 4, v3
    v_lshlrev_b32 v17, 10, v17
    v_and_b32 v18, 15, v3
    v_lshl_add_u32 v17, v18, 4, v17
    v_lshl_add_u32 v17, v4, 8, v17
    s_add_u32 s{S_O1}, s{S_BLK}, {VF}
    s_add_u32 s{S_O2}, s{S_O1}, 4096
    """)
    gemm(VA + 4, 32768, 2048, G1, False)
    pack_store(17, lambda i, kk: (S_O1 if i < 2 else S_O2, (i & 1) * 2048 + kk * 512))
    a("s_branch L_k1_end")
    a.label("L_k1_m")
    a.seg("k1_m")
    a(f"s_add_u32 s{S_O1}, s{S_BLK}, {MP}")
    gemm(VA + 4, 32768, 2048, G1, True)
    pack_store(5, lambda i, kk: (S_O1, i * 64 + kk * 32))
    a.label("L_k1_end")
    a("s_endpgm")
    return dict(name=name, vgpr=224, accum=224, sgpr=40, grid=NWG, block=256, lds=65536,
                chains=[["k1_a", "k1_b", "k1_qk"], ["k1_b", "k1_c", "k1_v"], ["k1_b", "k1_c", "k1_m"]])
```

```python
from layout import *

OA, OB = 128, 192
SA, SB = 64, 80
NA, NB = 96, 112
PA, PB = 48, 56
E0 = 32
TA, TB, LA, LB = 16, 17, 18, 19
VLDS, VL16, VTMP, VTMP2, VTMP3 = 20, 21, 22, 23, 24
AQ = {"A": 0, "B": 32}
AK, AV = 64, 96
S_SRD = 4
S_W, S_SRC, S_M0, S_CNT, S_THR, S_SPLIT, S_QT, S_T0, S_T1, S_SLOT = 8, 9, 10, 11, 12, 13, 14, 15, 16, 17
S_Q0 = 20
S_PO, S_PL = 24, 25

REG = {"A": dict(O=OA, S=SA, N=NA, P=PA, T=TA, L=LA), "B": dict(O=OB, S=SB, N=NB, P=PB, T=TB, L=LB)}


def vr(b, n):
    return f"v[{b}:{b + n - 1}]"


def ar(b, n):
    return f"a[{b}:{b + n - 1}]"


def mfma_qk(X, s, czero=False):
    r = REG[X]
    c = ("0" if czero else vr(r["N"], 16)) if s == 0 else vr(r["S"], 16)
    return f"v_mfma_f32_32x32x16_bf16 {vr(r['S'], 16)}, {ar(AK + 4 * s, 4)}, {ar(AQ[X] + 4 * s, 4)}, {c}"


def mfma_pv(X, j):
    r = REG[X]
    ks, i = j >> 2, j & 3
    o = vr(r["O"] + 16 * i, 16)
    return f"v_mfma_f32_32x32x16_bf16 {o}, {ar(AV + 4 * j, 4)}, {vr(r['P'] + 4 * ks, 4)}, {o}"


def sm_ops(X, npairs, tag, e64):
    ops = sm_ops0(X, npairs, tag, e64)
    if CFG.get("noadd"):
        ops = [o for o in ops if not o[0].startswith("v_add_f32")]
    if CFG.get("noexp"):
        ops = [o for o in ops if not o[0].startswith(("v_exp", "v_cvt", "v_add"))]
    if CFG.get("nocvt"):
        ops = [o for o in ops if not o[0].startswith(("v_cvt"))]
    return ops


CFG = {}


def sm_ops0(X, npairs, tag, e64):
    r = REG[X]
    S, P, T, L = r["S"], r["P"], r["T"], r["L"]
    sfx = "_e64" if e64 else ""
    ops = []

    def ex(i):
        return (f"v_exp_f32{sfx} v{E0 + (i % 8)}, v{S + i}", 8)

    def add(i):
        if i == 1:
            return (f"v_add_f32{sfx} v{T}, v{E0}, v{E0 + 1}", 4)
        return (f"v_add_f32{sfx} v{T}, v{T}, v{E0 + (i % 8)}", 4)

    def cvt(k):
        return (f"v_cvt_pk_bf16_f32 v{P + k}, v{E0 + (2 * k % 8)}, v{E0 + ((2 * k + 1) % 8)}", 4)

    ops += [ex(0), ex(1)]
    for k in range(1, npairs):
        ops.append(ex(2 * k))
        if k > 1:
            ops.append(add(2 * k - 2))
        ops.append(ex(2 * k + 1))
        ops.append(add(2 * k - 1))
        ops.append(cvt(k - 1))
    k = npairs
    ops.append(add(2 * k - 2))
    ops.append(add(2 * k - 1))
    ops.append((f"v_cmp_lt_f32{sfx} vcc, s{S_THR}, v{T}", 4))
    ops.append(cvt(k - 1))
    ops.append((f"s_cbranch_vccnz L_slow_{tag}", 4))
    ops.append((f"L_back_{tag}:", 0))
    ops.append((f"v_add_f32{sfx} v{L}, v{L}, v{T}", 4))
    return ops


def emit_rowmax(a, X, nvalid, dst):
    S = REG[X]["S"]
    a(f"v_max3_f32 v{dst}, v{S}, v{S + 1}, v{S + 2}")
    i = 3
    while i + 1 < nvalid:
        a(f"v_max3_f32 v{dst}, v{dst}, v{S + i}, v{S + i + 1}")
        i += 2
    if i < nvalid:
        a(f"v_max_f32 v{dst}, v{dst}, v{S + i}")
    a(f"v_mov_b32 v{VTMP3}, v{dst}")
    a("s_nop 1")
    a(f"v_permlane32_swap_b32 v{dst}, v{VTMP3}")
    a("s_nop 1")
    a(f"v_max_f32 v{dst}, v{dst}, v{VTMP3}")


def emit_slow(a, X, npairs, tag):
    r = REG[X]
    S, P, T, L, O, N = r["S"], r["P"], r["T"], r["L"], r["O"], r["N"]
    nv = 2 * npairs
    a.seg("slow_" + tag)
    a.label(f"L_slow_{tag}")
    a("s_nop 15")
    emit_rowmax(a, X, nv, VTMP)
    a(f"v_max_f32 v{VTMP}, 0, v{VTMP}")
    a(f"v_exp_f32 v{VTMP2}, -v{VTMP}")
    a("s_nop 0")
    a(f"v_mul_f32 v{L}, v{L}, v{VTMP2}")
    for i in range(64):
        a(f"v_mul_f32 v{O + i}, v{O + i}, v{VTMP2}")
    for i in range(16):
        a(f"v_sub_f32 v{N + i}, v{N + i}, v{VTMP}")
    for i in range(nv):
        a(f"v_sub_f32 v{S + i}, v{S + i}, v{VTMP}")
    for k in range(npairs):
        a(f"v_exp_f32 v{E0}, v{S + 2 * k}")
        a(f"v_exp_f32 v{E0 + 1}, v{S + 2 * k + 1}")
        a("s_nop 0")
        if k == 0:
            a(f"v_add_f32 v{T}, v{E0}, v{E0 + 1}")
        else:
            a(f"v_add_f32 v{T}, v{T}, v{E0}")
            a(f"v_add_f32 v{T}, v{T}, v{E0 + 1}")
        a(f"v_cvt_pk_bf16_f32 v{P + k}, v{E0}, v{E0 + 1}")
    a("s_nop 7")
    a(f"s_branch L_back_{tag}")


def distribute(gaps, fixed_cost, ops, g0, g1):
    n = g1 - g0 + 1
    tot = sum(c for _, c in ops) + sum(fixed_cost[g] for g in range(g0, g1 + 1))
    per = tot / n
    acc = 0.0
    k = 0
    for idx, g in enumerate(range(g0, g1 + 1)):
        acc += fixed_cost[g]
        target = per * (idx + 1)
        while k < len(ops) and (g == g1 or acc + ops[k][1] / 2 <= target or ops[k][1] == 0):
            gaps[g].append(ops[k][0])
            acc += ops[k][1]
            k += 1


def emit_body(a, cfg, tag, last=False, npairs=8):
    PF = cfg["PF"]
    e64 = cfg.get("e64", False)
    mf = []
    for j in range(8):
        mf.append(mfma_pv("B", j))
    for s in range(8):
        mf.append(mfma_qk("B", s))
    npv = 8 if npairs == 8 else 4
    for j in range(npv):
        mf.append(mfma_pv("A", j))
    if not last:
        for s in range(8):
            mf.append(mfma_qk("A", s))
    nm = len(mf)
    pre = {g: [] for g in range(nm + 1)}
    post = {g: [] for g in range(nm + 1)}
    cost = {g: 0 for g in range(nm + 1)}

    def put(d, g, text, c=4):
        if cfg.get("nods") and text.startswith("ds_read") and not last:
            return
        d[g].append(text)
        cost[g] += c

    for j in range(npv):
        put(pre, j, f"ds_read_b128 {ar(AV + 4 * j, 4)}, v{VLDS} offset:{8192 + 1024 * j}")
    if not last:
        kg = cfg.get("kgaps", list(range(8, 16)))
        for s in range(8):
            put(pre, kg[s], f"ds_read_b128 {ar(AK + 4 * s, 4)}, v{VLDS} offset:{1024 * s}")
        nk_before16 = sum(1 for g in kg if g < 16)
        put(post, 15, f"s_waitcnt lgkmcnt({nk_before16})")
        put(post, 23, "s_waitcnt lgkmcnt(0)")
        put(pre, 0, f"s_add_u32 s{S_M0}, s{S_M0}, 0x4000")
        put(pre, 0, f"s_and_b32 m0, s{S_M0}, 0x1ffff")
        put(pre, 1, f"s_add_u32 s{S_SRC}, s{S_SRC}, 0x2000")
        put(pre, 1, f"s_sub_u32 s{S_CNT}, s{S_CNT}, 1")
        if not cfg.get("nodma"):
            for k, g in enumerate(cfg.get("dgaps", [16, 17, 20, 24])):
                put(pre, g, f"buffer_load_dwordx4 v{VL16}, s[{S_SRD}:{S_SRD + 3}], s{S_SRC} offen offset:{1024 * k} lds",
                    cfg.get("dmacost", 8))
        ag = cfg.get("agap", 31)
        put(pre, ag, f"v_add_u32 v{VLDS}, 0x4000, v{VLDS}")
        put(pre, ag, f"v_and_b32 v{VLDS}, 0x1ffff, v{VLDS}")
        put(post, 31, f"s_cmp_lg_u32 s{S_CNT}, 0")
        put(post, 31, f"s_cbranch_scc1 L_body_{tag}")
    else:
        put(post, 15, "s_waitcnt lgkmcnt(0)")
    mid = {g: [] for g in range(nm + 1)}
    if not cfg.get("nosm"):
        a0, a1 = cfg.get("smA", (2, 15))
        distribute(mid, cost, sm_ops("A", npairs, tag + "A", e64), a0, a1)
        if not last:
            b0, b1 = cfg.get("smB", (18, 30))
            distribute(mid, cost, sm_ops("B", npairs, tag + "B", e64), b0, b1)
        else:
            b0 = 18 if npairs == 8 else 18
            distribute(mid, cost, sm_ops("B", npairs, tag + "B", e64), b0, nm - 1)
    a.seg("body_" + tag)
    a.label(f"L_body_{tag}")
    if cfg.get("trace") and not last:
        a("s_memtime s[50:51]")
        a("s_memrealtime s[52:53]")
        a("s_waitcnt lgkmcnt(0)")
        a("v_mov_b32 v26, s50")
        a("v_mov_b32 v27, s52")
        a("s_add_u32 s54, s54, 8")
        a(f"buffer_store_dwordx2 v[26:27], v28, s[{S_SRD}:{S_SRD + 3}], s54 offen")
        a(f"s_waitcnt vmcnt({5 * (PF - 1) + 1})")
    else:
        a(f"s_waitcnt vmcnt({4 * (PF - 1)})")
    if not cfg.get("nobar"):
        a("s_barrier")
    for g in range(nm):
        a(mf[g])
        for t in pre[g] + mid[g] + post[g]:
            a(t)
    if last:
        a("s_nop 1")
        for j in range(npv):
            a(mfma_pv("B", j))


def emit_k2(a, cfg):
    PF = cfg["PF"]
    CFG.update(cfg)
    NWG = 240
    LIM = cfg.get('lim', NWG)
    name = "k2_attn_kernel"
    a.raw(".text")
    a.raw(f".globl {name}\n.p2align 8\n.type {name},@function")
    a.label(name)
    a.seg("k2_pro")
    a(f"""
    s_cmp_ge_u32 s2, {LIM}
    s_cbranch_scc1 L_k2_end
    s_load_dwordx2 s[{S_SRD}:{S_SRD + 1}], s[0:1], 88
    v_lshrrev_b32 v1, 6, v0
    v_and_b32 v2, 63, v0
    v_readfirstlane_b32 s{S_W}, v1
    v_lshlrev_b32 v{VL16}, 4, v2
    s_and_b32 s{S_T0}, s2, 7
    s_mul_i32 s{S_T0}, s{S_T0}, {NWG // 8}
    s_lshr_b32 s{S_T1}, s2, 3
    s_add_u32 s{S_T0}, s{S_T0}, s{S_T1}          ; g
    s_mul_i32 s{S_SPLIT}, s{S_T0}, 1639
    s_lshr_b32 s{S_SPLIT}, s{S_SPLIT}, 16        ; split = g / 40
    s_mul_i32 s{S_T1}, s{S_SPLIT}, 40
    s_sub_u32 s{S_QT}, s{S_T0}, s{S_T1}          ; q tile
    s_mov_b32 s{S_SRD + 2}, 0x10000000
    s_mov_b32 s{S_SRD + 3}, 0x00020000
    s_mov_b32 s{S_THR}, 0x4b800000               ; 2^24
    s_lshl_b32 s{S_M0}, s{S_W}, 12
    s_mul_i32 s{S_SRC}, s{S_SPLIT}, {52 * 8192}
    s_add_u32 s{S_SRC}, s{S_SRC}, s{S_M0}
    s_mov_b32 s{S_T1}, {KF}
    s_cmp_lt_u32 s{S_W}, 2
    s_cselect_b32 s{S_T1}, s{S_T1}, {VF - 8192 - 8192}
    s_add_u32 s{S_SRC}, s{S_SRC}, s{S_T1}
    ; q offsets
    s_lshl_b32 s{S_Q0}, s{S_QT}, 16
    s_lshl_b32 s{S_T1}, s{S_W}, 14
    s_add_u32 s{S_Q0}, s{S_Q0}, s{S_T1}
    s_add_u32 s{S_Q0}, s{S_Q0}, {QF}
    s_add_u32 s{S_Q0 + 1}, s{S_Q0}, 0x1000
    s_add_u32 s{S_Q0 + 2}, s{S_Q0}, 0x2000
    s_add_u32 s{S_Q0 + 3}, s{S_Q0}, 0x3000
    s_mul_i32 s{S_T1}, s{S_QT}, 6
    s_add_u32 s{S_T1}, s{S_T1}, s{S_SPLIT}
    s_lshl_b32 s{S_PO}, s{S_T1}, 16
    s_lshl_b32 s{S_T0}, s{S_W}, 14
    s_add_u32 s{S_PO}, s{S_PO}, s{S_T0}
    s_add_u32 s{S_PO}, s{S_PO}, {PO}
    s_lshl_b32 s{S_PL}, s{S_T1}, 12
    s_lshl_b32 s{S_T0}, s{S_W}, 10
    s_add_u32 s{S_PL}, s{S_PL}, s{S_T0}
    s_add_u32 s{S_PL}, s{S_PL}, {PL}
    s_mov_b32 s{S_CNT}, 51
    s_cmp_eq_u32 s{S_SPLIT}, 5
    s_cselect_b32 s{S_CNT}, 52, s{S_CNT}
    s_mov_b32 m0, s{S_M0}
    s_waitcnt lgkmcnt(0)
    s_and_b32 s{S_SRD + 1}, s{S_SRD + 1}, 0xffff
    """)
    srd = f"s[{S_SRD}:{S_SRD + 3}]"

    def dma_stage():
        for k in range(4):
            a(f"buffer_load_dwordx4 v{VL16}, {srd}, s{S_SRC} offen offset:{1024 * k} lds")

    def dma_adv():
        a(f"s_add_u32 s{S_M0}, s{S_M0}, 0x4000")
        a(f"s_and_b32 m0, s{S_M0}, 0x1ffff")
        a(f"s_add_u32 s{S_SRC}, s{S_SRC}, 0x2000")

    dma_stage()
    for i in range(16):
        a(f"buffer_load_dwordx4 {ar(4 * i, 4)}, v{VL16}, {srd}, s{S_Q0 + (i >> 2)} offen offset:{1024 * (i & 3)}")
    for st in range(PF):
        dma_adv()
        dma_stage()
    for i in range(128):
        a(f"v_mov_b32 v{OA + i}, 0")
    for i in range(32):
        a(f"v_accvgpr_write_b32 a{AV + i}, 0")
    for i in range(8):
        a(f"v_mov_b32 v{PB + i}, 0")
    a(f"v_mov_b32 v{LA}, 0")
    a(f"v_mov_b32 v{LB}, 0")
    a(f"s_waitcnt vmcnt({4 * PF})")
    a("s_barrier")
    for s in range(8):
        a(f"ds_read_b128 {ar(AK + 4 * s, 4)}, v{VL16} offset:{1024 * s}")
    a(f"v_add_u32 v{VLDS}, 0x4000, v{VL16}")
    a("s_waitcnt lgkmcnt(0)")
    for s in range(8):
        a(mfma_qk("A", s, czero=True))
    for s in range(8):
        a(mfma_qk("B", s, czero=True))
    a("s_nop 3")
    emit_rowmax(a, "A", 16, VTMP)
    for i in range(16):
        a(f"v_sub_f32 v{NA + i}, 0, v{VTMP}")
    for i in range(16):
        a(f"v_sub_f32 v{SA + i}, v{SA + i}, v{VTMP}")
    emit_rowmax(a, "B", 16, VTMP2)
    for i in range(16):
        a(f"v_sub_f32 v{NB + i}, 0, v{VTMP2}")
    if cfg.get("noexp") or cfg.get("nocvt") or cfg.get("noadd"):
        for k in range(8):
            a(f"v_exp_f32 v{E0}, v{SA + 2 * k}")
            a(f"v_exp_f32 v{E0 + 1}, v{SA + 2 * k + 1}")
            a("s_nop 0")
            a(f"v_cvt_pk_bf16_f32 v{PA + k}, v{E0}, v{E0 + 1}")
            a(f"v_cvt_pk_bf16_f32 v{PB + 7 - k}, v{E0 + 1}, v{E0}")
        a(f"v_mov_b32 v{TA}, 1.0")
        a(f"v_mov_b32 v{TB}, 1.0")
    if cfg.get("nods"):
        a("s_waitcnt vmcnt(0)")
        a("s_barrier")
        for j in range(8):
            a(f"ds_read_b128 {ar(AV + 4 * j, 4)}, v{VLDS} offset:{8192 + 1024 * j}")
        a("s_waitcnt lgkmcnt(0)")
    if cfg.get("stamp"):
        a("s_memtime s[30:31]")
        a("s_memrealtime s[32:33]")
        a("s_waitcnt lgkmcnt(0)")
    if cfg.get("trace"):
        a(f"s_lshl_b32 s54, s2, 11")
        a(f"s_lshl_b32 s55, s{S_W}, 9")
        a(f"s_add_u32 s54, s54, s55")
        a(f"s_add_u32 s54, s54, {OVF + 0x400000}")
        a("v_mov_b32 v28, 0")
    a.raw(".p2align 6")
    emit_body(a, cfg, "m")
    a.seg("k2_mid")
    if cfg.get("stamp"):
        a("s_memtime s[34:35]")
        a("s_memrealtime s[36:37]")
        a(f"s_load_dwordx2 s[40:41], s[0:1], 80")
        a("s_waitcnt lgkmcnt(0)")
        a("s_sub_u32 s34, s34, s30")
        a("s_sub_u32 s36, s36, s32")
        a("v_mov_b32 v2, s34")
        a("v_mov_b32 v3, s36")
        a("s_and_b32 s41, s41, 0xffff")
        a("s_mov_b32 s42, 256")
        a("s_mov_b32 s43, 0x00020000")
        a("s_lshr_b32 s44, s2, 3")
        a("s_lshl_b32 s44, s44, 3")
        a("v_mov_b32 v4, s44")
        a("s_and_b32 s45, s2, 7")
        a(f"s_or_b32 s45, s45, s{S_W}")
        a("s_cmp_lg_u32 s45, 0")
        a("s_cbranch_scc1 L_nostamp")
        a("buffer_store_dwordx2 v[2:3], v4, s[40:43], 0 offen")
        a.label("L_nostamp")
    a(f"s_cmp_eq_u32 s{S_SPLIT}, 5")
    a("s_cbranch_scc1 L_body_lm")
    emit_body(a, cfg, "lf", last=True, npairs=8)
    a("s_branch L_k2_epi")
    emit_body(a, cfg, "lm", last=True, npairs=4)
    a.label("L_k2_epi")
    a.seg("k2_epi")
    a(f"""
    v_and_b32 v2, 31, v0
    v_lshlrev_b32 v2, 8, v2
    v_bfe_u32 v3, v0, 5, 1
    v_lshl_add_u32 v2, v3, 4, v2
    v_lshrrev_b32 v3, 1, v{VL16}
    s_add_u32 s{S_T0}, s{S_PO}, 0x2000
    s_nop 7
    """)
    n = 0
    for X, so in (("A", S_PO), ("B", S_T0)):
        r = REG[X]
        for i in range(4):
            for k in range(2):
                t = 32 + 4 * (n % 4)
                n += 1
                for d in range(4):
                    src = r["O"] + 16 * i + 8 * k + 2 * d
                    a(f"v_cvt_pk_bf16_f32 v{t + d}, v{src}, v{src + 1}")
                a(f"buffer_store_dwordx4 {vr(t, 4)}, v2, {srd}, s{so} offen offset:{64 * i + 32 * k}")
    a(f"v_sub_f32 v4, 0, v{NA}")
    a(f"v_mov_b32 v5, v{LA}")
    a(f"v_sub_f32 v6, 0, v{NB}")
    a(f"v_mov_b32 v7, v{LB}")
    a(f"buffer_store_dwordx2 v[4:5], v3, {srd}, s{S_PL} offen")
    a(f"buffer_store_dwordx2 v[6:7], v3, {srd}, s{S_PL} offen offset:512")
    a("s_waitcnt vmcnt(0)")
    a.label("L_k2_end")
    a("s_endpgm")
    if not cfg.get("nosm"):
        for tag, npairs in (("m", 8), ("lf", 8), ("lm", 4)):
            for X in "AB":
                emit_slow(a, X, npairs, tag + X)
    return dict(name=name, vgpr=384, accum=256, sgpr=64, grid=NWG, block=256, lds=131072,
                chains=[["k2_pro", "body_m", "body_m", "k2_mid", "body_lf", "k2_epi"],
                        ["body_m", "k2_mid", "body_lm", "k2_epi"]] +
                       ([] if cfg.get("nosm") else [["slow_" + t + X] for t in ("m", "lf", "lm") for X in "AB"]))
```

```python
from layout import *

CFG = {}
MF = "v_mfma_f32_16x16x32_bf16"


class R:
    pass


def setup(G):
    R.G = G
    NQ = 2 * G
    R.NQ = NQ
    R.O = 256 - NQ * 32
    if G == 2:
        R.S = 64
        R.N = 96
        R.P = 112
        R.E = 32
        R.T = 40
        R.L = 48
    R.VLDS, R.VL16, R.VT, R.VT2, R.VT3 = 20, 21, 22, 23, 24
    R.AQ = 0
    R.AK = NQ * 16
    R.AV = R.AK + 32


S_SRD = 4
S_W, S_SRC, S_M0, S_CNT, S_THR, S_SPLIT, S_QT, S_T0, S_T1 = 8, 9, 10, 11, 12, 13, 14, 15, 16
S_Q0 = 20
S_PO, S_PL = 28, 29


def vr(b, n):
    return f"v[{b}:{b + n - 1}]"


def ar(b, n):
    return f"a[{b}:{b + n - 1}]"


def qbs(X):
    return list(range(R.G)) if X == "A" else list(range(R.G, 2 * R.G))


def St(qb, kb):
    return R.S + (qb * 2 + kb) * 4


def mfma_qk(qb, kb, s, czero=False):
    d = vr(St(qb, kb), 4)
    c = ("0" if czero else vr(R.N + 4 * qb, 4)) if s == 0 else d
    return f"{MF} {d}, {ar(R.AK + (kb * 4 + s) * 4, 4)}, {ar(R.AQ + (qb * 4 + s) * 4, 4)}, {c}"


def mfma_pv(qb, db):
    o = vr(R.O + (qb * 8 + db) * 4, 4)
    return f"{MF} {o}, {ar(R.AV + 4 * db, 4)}, {vr(R.P + 4 * qb, 4)}, {o}"


def qk_order(X, nkb=2):
    mode = CFG.get("qkord", "chain")
    out = []
    if mode == "chain":
        for qb in qbs(X):
            for kb in range(nkb):
                for s in range(4):
                    out.append((qb, kb, s))
    elif mode == "chaink":
        for kb in range(nkb):
            for qb in qbs(X):
                for s in range(4):
                    out.append((qb, kb, s))
    elif mode == "shareA":
        for s in range(4):
            for kb in range(nkb):
                for qb in qbs(X):
                    out.append((qb, kb, s))
    elif mode == "shareB":
        for s in range(4):
            for qb in qbs(X):
                for kb in range(nkb):
                    out.append((qb, kb, s))
    return out


def pv_order(X):
    mode = CFG.get("pvord", "shareA")
    out = []
    if mode == "shareA":
        for db in range(8):
            for qb in qbs(X):
                out.append((qb, db))
    else:
        for qb in qbs(X):
            for db in range(8):
                out.append((qb, db))
    return out


def sm_ops(X, nkb, tag):
    ops = []
    E = R.E
    pend = []
    n = 0
    seq = []
    for qb in qbs(X):
        for kb in range(nkb):
            for pr in range(2):
                seq.append((qb, kb, pr))
    first = {qb: True for qb in qbs(X)}
    for idx, (qb, kb, pr) in enumerate(seq):
        e0, e1 = E + (2 * idx) % 8, E + (2 * idx + 1) % 8
        s0 = St(qb, kb) + 2 * pr
        T = R.T + qb
        x0 = (f"v_exp_f32 v{e0}, v{s0}", 8)
        x1 = (f"v_exp_f32 v{e1}, v{s0 + 1}", 8)
        ops.append(x0)
        if len(pend) == 3:
            ops.append(pend.pop(0))
        ops.append(x1)
        ops += pend
        pend = []
        if first[qb]:
            pend.append((f"v_add_f32 v{T}, v{e0}, v{e1}", 4))
            first[qb] = False
        else:
            pend.append((f"v_add_f32 v{T}, v{T}, v{e0}", 4))
            pend.append((f"v_add_f32 v{T}, v{T}, v{e1}", 4))
        pend.append((f"v_cvt_pk_bf16_f32 v{R.P + 4 * qb + 2 * kb + pr}, v{e0}, v{e1}", 4))
    if nkb == 1:
        for qb in qbs(X):
            ops.append((f"v_mov_b32 v{R.P + 4 * qb + 2}, 0", 4))
            ops.append((f"v_mov_b32 v{R.P + 4 * qb + 3}, 0", 4))
    ops += pend[:-1]
    q = qbs(X)
    if R.G == 2:
        ops.append((f"v_max_f32 v{R.VT}, v{R.T + q[0]}, v{R.T + q[1]}", 4))
    else:
        ops.append((f"v_max3_f32 v{R.VT}, v{R.T + q[0]}, v{R.T + q[1]}, v{R.T + q[2]}", 4))
    ops.append((f"v_cmp_lt_f32 vcc, s{S_THR}, v{R.VT}", 4))
    ops.append(pend[-1])
    ops.append((f"s_cbranch_vccnz L_slow_{tag}", 4))
    ops.append((f"L_back_{tag}:", 0))
    for qb in q:
        ops.append((f"v_add_f32 v{R.L + qb}, v{R.L + qb}, v{R.T + qb}", 4))
    if CFG.get("noexp"):
        ops = [o for o in ops if not o[0].startswith(("v_exp", "v_cvt", "v_add"))]
    return ops


def emit_rowmax(a, qb, nkb, dst):
    s = St(qb, 0)
    a(f"v_max3_f32 v{dst}, v{s}, v{s + 1}, v{s + 2}")
    if nkb == 2:
        a(f"v_max3_f32 v{dst}, v{dst}, v{s + 3}, v{s + 4}")
        a(f"v_max3_f32 v{dst}, v{dst}, v{s + 5}, v{s + 6}")
        a(f"v_max_f32 v{dst}, v{dst}, v{s + 7}")
    else:
        a(f"v_max_f32 v{dst}, v{dst}, v{s + 3}")
    for sw in ("v_permlane32_swap_b32", "v_permlane16_swap_b32"):
        a(f"v_mov_b32 v{R.VT3}, v{dst}")
        a("s_nop 1")
        a(f"{sw} v{dst}, v{R.VT3}")
        a("s_nop 1")
        a(f"v_max_f32 v{dst}, v{dst}, v{R.VT3}")


def emit_slow(a, X, nkb, tag):
    a.seg("slow_" + tag)
    a.label(f"L_slow_{tag}")
    a("s_nop 15")
    E = R.E
    for qb in qbs(X):
        emit_rowmax(a, qb, nkb, R.VT)
        a(f"v_max_f32 v{R.VT}, 0, v{R.VT}")
        a(f"v_exp_f32 v{R.VT2}, -v{R.VT}")
        a("s_nop 0")
        a(f"v_mul_f32 v{R.L + qb}, v{R.L + qb}, v{R.VT2}")
        for i in range(32):
            o = R.O + qb * 32 + i
            a(f"v_mul_f32 v{o}, v{o}, v{R.VT2}")
        for i in range(4):
            a(f"v_sub_f32 v{R.N + 4 * qb + i}, v{R.N + 4 * qb + i}, v{R.VT}")
        for k in range(2 * nkb):
            s = St(qb, 0) + 2 * k
            a(f"v_sub_f32 v{s}, v{s}, v{R.VT}")
            a(f"v_sub_f32 v{s + 1}, v{s + 1}, v{R.VT}")
            a(f"v_exp_f32 v{E}, v{s}")
            a(f"v_exp_f32 v{E + 1}, v{s + 1}")
            a("s_nop 0")
            T = R.T + qb
            if k == 0:
                a(f"v_add_f32 v{T}, v{E}, v{E + 1}")
            else:
                a(f"v_add_f32 v{T}, v{T}, v{E}")
                a(f"v_add_f32 v{T}, v{T}, v{E + 1}")
            a(f"v_cvt_pk_bf16_f32 v{R.P + 4 * qb + k}, v{E}, v{E + 1}")
    a("s_nop 7")
    a(f"s_branch L_back_{tag}")


def distribute(gaps, fixed_cost, ops, g0, g1):
    n = g1 - g0 + 1
    tot = sum(c for _, c in ops) + sum(fixed_cost[g] for g in range(g0, g1 + 1))
    per = tot / n
    acc = 0.0
    k = 0
    for idx, g in enumerate(range(g0, g1 + 1)):
        acc += fixed_cost[g]
        target = per * (idx + 1)
        while k < len(ops) and (g == g1 or acc + ops[k][1] / 2 <= target or ops[k][1] == 0):
            gaps[g].append(ops[k][0])
            acc += ops[k][1]
            k += 1


def emit_body(a, cfg, tag, last=False, nkb=2):
    PF = cfg["PF"]
    G = R.G
    PH = 8 * G
    mf = []
    pvB = pv_order("B")
    qkB = qk_order("B", nkb)
    pvA = pv_order("A")
    qkA = qk_order("A")
    mf += [mfma_pv(*x) for x in pvB]
    mf += [mfma_qk(*x) for x in qkB]
    pA0 = len(mf)
    mf += [mfma_pv(*x) for x in pvA]
    qA0 = len(mf)
    if not last:
        mf += [mfma_qk(*x) for x in qkA]
    nm = len(mf)
    pre = {g: [] for g in range(nm + 1)}
    post = {g: [] for g in range(nm + 1)}
    cost = {g: 0 for g in range(nm + 1)}

    def put(d, g, text, c=4):
        if cfg.get("nods") and text.startswith("ds_read") and not last:
            return
        d[g].append(text)
        cost[g] += c

    for db in range(8):
        g = max(i for i, x in enumerate(pvB) if x[1] == db)
        put(pre, g, f"ds_read_b128 {ar(R.AV + 4 * db, 4)}, v{R.VLDS} offset:{8192 + 1024 * db}")
    if not last:
        kg = []
        for kb in range(2):
            for s in range(4):
                g = PH + max(i for i, x in enumerate(qkB) if x[1] == kb and x[2] == s)
                kg.append((g, kb * 4 + s))
        kg.sort()
        lastg = -1
        nk_before = 0
        for g, f in kg:
            g = max(g, lastg + cfg.get("kstep", 2))
            lastg = g
            if g < pA0:
                nk_before += 1
            put(pre, g, f"ds_read_b128 {ar(R.AK + 4 * f, 4)}, v{R.VLDS} offset:{1024 * f}")
        assert lastg < qA0 - 4, lastg
        put(post, pA0 - 1, f"s_waitcnt lgkmcnt({nk_before})")
        put(post, qA0 - 1, "s_waitcnt lgkmcnt(0)")
        put(pre, 0, f"s_add_u32 s{S_M0}, s{S_M0}, 0x4000")
        put(pre, 2, f"s_and_b32 m0, s{S_M0}, 0x1ffff")
        put(pre, 4, f"s_add_u32 s{S_SRC}, s{S_SRC}, 0x2000")
        put(pre, 6, f"s_sub_u32 s{S_CNT}, s{S_CNT}, 1")
        if not cfg.get("nodma"):
            for k, g in enumerate(cfg.get("dgaps", [qA0 - 6, qA0 - 2, qA0 + 2, qA0 + 6])):
                put(pre, g, f"buffer_load_dwordx4 v{R.VL16}, s[{S_SRD}:{S_SRD + 3}], s{S_SRC} offen offset:{1024 * k} lds", 4)
        put(pre, nm - 2, f"v_add_u32 v{R.VLDS}, 0x4000, v{R.VLDS}")
        put(pre, nm - 1, f"v_and_b32 v{R.VLDS}, 0x1ffff, v{R.VLDS}")
        put(post, nm - 2, f"s_cmp_lg_u32 s{S_CNT}, 0")
        put(post, nm - 1, f"s_cbranch_scc1 L_body_{tag}")
    else:
        put(post, pA0 - 1, "s_waitcnt lgkmcnt(0)")
    mid = {g: [] for g in range(nm + 1)}
    lead = cfg.get("lead", 1)
    distribute(mid, cost, sm_ops("A", nkb, tag + "A"), lead, pA0 - 1)
    distribute(mid, cost, sm_ops("B", nkb, tag + "B"), pA0 + lead, nm - 1 - (0 if last else cfg.get("tail", 2)))
    a.seg("body_" + tag)
    a.label(f"L_body_{tag}")
    a(f"s_waitcnt vmcnt({4 * (PF - 1)})")
    a("s_barrier")
    for g in range(nm):
        a(mf[g])
        for t in pre[g] + mid[g] + post[g]:
            a(t)
    if last:
        a("s_nop 1")
        for x in pvB:
            a(mfma_pv(*x))


def emit_k2(a, cfg):
    PF = cfg["PF"]
    CFG.clear()
    CFG.update(cfg)
    setup(2)
    NQ = R.NQ
    NWG = 240
    LIM = cfg.get("lim", NWG)
    name = "k2_attn_kernel"
    a.raw(".text")
    a.raw(f".globl {name}\n.p2align 8\n.type {name},@function")
    a.label(name)
    a.seg("k2_pro")
    a(f"""
    s_cmp_ge_u32 s2, {LIM}
    s_cbranch_scc1 L_k2_end
    s_memrealtime s[56:57]
    s_load_dwordx2 s[{S_SRD}:{S_SRD + 1}], s[0:1], 88
    v_lshrrev_b32 v1, 6, v0
    v_and_b32 v2, 63, v0
    v_readfirstlane_b32 s{S_W}, v1
    v_lshlrev_b32 v{R.VL16}, 4, v2
    s_and_b32 s{S_T0}, s2, 7
    s_mul_i32 s{S_T0}, s{S_T0}, {NWG // 8}
    s_lshr_b32 s{S_T1}, s2, 3
    s_add_u32 s{S_T0}, s{S_T0}, s{S_T1}          ; g
    s_mul_i32 s{S_SPLIT}, s{S_T0}, 1639
    s_lshr_b32 s{S_SPLIT}, s{S_SPLIT}, 16        ; split = g / 40
    s_mul_i32 s{S_T1}, s{S_SPLIT}, 40
    s_sub_u32 s{S_QT}, s{S_T0}, s{S_T1}          ; q tile
    s_mov_b32 s{S_SRD + 2}, 0x10000000
    s_mov_b32 s{S_SRD + 3}, 0x00020000
    s_mov_b32 s{S_THR}, 0x4b800000               ; 2^24
    s_lshl_b32 s{S_M0}, s{S_W}, 12
    s_mul_i32 s{S_SRC}, s{S_SPLIT}, {52 * 8192}
    s_add_u32 s{S_SRC}, s{S_SRC}, s{S_M0}
    s_mov_b32 s{S_T1}, {KF}
    s_cmp_lt_u32 s{S_W}, 2
    s_cselect_b32 s{S_T1}, s{S_T1}, {VF - 8192 - 8192}
    s_add_u32 s{S_SRC}, s{S_SRC}, s{S_T1}
    s_lshl_b32 s{S_Q0}, s{S_QT}, 16
    s_lshl_b32 s{S_T1}, s{S_W}, 14
    s_add_u32 s{S_Q0}, s{S_Q0}, s{S_T1}
    s_add_u32 s{S_Q0}, s{S_Q0}, {QF}
    s_add_u32 s{S_Q0 + 1}, s{S_Q0}, 0x1000
    s_add_u32 s{S_Q0 + 2}, s{S_Q0}, 0x2000
    s_add_u32 s{S_Q0 + 3}, s{S_Q0}, 0x3000
    s_mul_i32 s{S_T1}, s{S_QT}, 6
    s_add_u32 s{S_T1}, s{S_T1}, s{S_SPLIT}
    s_lshl_b32 s{S_PO}, s{S_T1}, 16
    s_lshl_b32 s{S_T0}, s{S_W}, 14
    s_add_u32 s{S_PO}, s{S_PO}, s{S_T0}
    s_add_u32 s{S_PO}, s{S_PO}, {PO}
    s_lshl_b32 s{S_PL}, s{S_T1}, 13
    s_lshl_b32 s{S_T0}, s{S_W}, 11
    s_add_u32 s{S_PL}, s{S_PL}, s{S_T0}
    s_add_u32 s{S_PL}, s{S_PL}, {PL}
    s_mov_b32 s{S_CNT}, 51
    s_cmp_eq_u32 s{S_SPLIT}, 5
    s_cselect_b32 s{S_CNT}, 52, s{S_CNT}
    s_mov_b32 m0, s{S_M0}
    s_waitcnt lgkmcnt(0)
    s_and_b32 s{S_SRD + 1}, s{S_SRD + 1}, 0xffff
    """)
    srd = f"s[{S_SRD}:{S_SRD + 3}]"

    def dma_stage():
        for k in range(4):
            a(f"buffer_load_dwordx4 v{R.VL16}, {srd}, s{S_SRC} offen offset:{1024 * k} lds")

    def dma_adv():
        a(f"s_add_u32 s{S_M0}, s{S_M0}, 0x4000")
        a(f"s_and_b32 m0, s{S_M0}, 0x1ffff")
        a(f"s_add_u32 s{S_SRC}, s{S_SRC}, 0x2000")

    dma_stage()
    for i in range(4 * NQ):
        a(f"buffer_load_dwordx4 {ar(4 * i, 4)}, v{R.VL16}, {srd}, s{S_Q0 + (i >> 2)} offen offset:{1024 * (i & 3)}")
    for st in range(PF):
        dma_adv()
        dma_stage()
    for i in range(32 * NQ):
        a(f"v_mov_b32 v{R.O + i}, 0")
    for i in range(32):
        a(f"v_accvgpr_write_b32 a{R.AV + i}, 0")
    for qb in qbs("B"):
        for i in range(4):
            a(f"v_mov_b32 v{R.P + 4 * qb + i}, 0")
    for qb in range(NQ):
        a(f"v_mov_b32 v{R.L + qb}, 0")
    a(f"s_waitcnt vmcnt({4 * PF})")
    a("s_barrier")
    for s in range(8):
        a(f"ds_read_b128 {ar(R.AK + 4 * s, 4)}, v{R.VL16} offset:{1024 * s}")
    a(f"v_add_u32 v{R.VLDS}, 0x4000, v{R.VL16}")
    a("s_waitcnt lgkmcnt(0)")
    for qb in range(NQ):
        for kb in range(2):
            for s in range(4):
                a(mfma_qk(qb, kb, s, czero=True))
    a("s_nop 7")
    for qb in range(NQ):
        emit_rowmax(a, qb, 2, R.VT)
        for i in range(4):
            a(f"v_sub_f32 v{R.N + 4 * qb + i}, 0, v{R.VT}")
        if qb in qbs("A"):
            for i in range(8):
                a(f"v_sub_f32 v{St(qb, 0) + i}, v{St(qb, 0) + i}, v{R.VT}")
    if cfg.get("noexp"):
        for k in range(8):
            a(f"v_exp_f32 v{R.E}, v{R.S + 2 * k}")
            a(f"v_exp_f32 v{R.E + 1}, v{R.S + 2 * k + 1}")
            a("s_nop 0")
            a(f"v_cvt_pk_bf16_f32 v{R.P + k}, v{R.E}, v{R.E + 1}")
            a(f"v_cvt_pk_bf16_f32 v{R.P + 15 - k}, v{R.E + 1}, v{R.E}")
        for qb in range(NQ):
            a(f"v_mov_b32 v{R.T + qb}, 1.0")
    if cfg.get("nods"):
        a("s_waitcnt vmcnt(0)")
        a("s_barrier")
        for j in range(8):
            a(f"ds_read_b128 {ar(R.AV + 4 * j, 4)}, v{R.VLDS} offset:{8192 + 1024 * j}")
        a("s_waitcnt lgkmcnt(0)")
    if cfg.get("stamp"):
        a("s_memtime s[30:31]")
        a("s_memrealtime s[32:33]")
        a("s_waitcnt lgkmcnt(0)")
    a.raw(".p2align 6")
    emit_body(a, cfg, "m")
    a.seg("k2_mid")
    if cfg.get("stamp"):
        a("s_memtime s[34:35]")
        a("s_memrealtime s[36:37]")
        a(f"s_load_dwordx2 s[40:41], s[0:1], 80")
        a("s_waitcnt lgkmcnt(0)")
        a("s_sub_u32 s34, s34, s30")
        a("s_sub_u32 s36, s36, s32")
        a("v_mov_b32 v2, s34")
        a("v_mov_b32 v3, s36")
        a("s_and_b32 s41, s41, 0xffff")
        a("s_mov_b32 s42, 256")
        a("s_mov_b32 s43, 0x00020000")
        a("s_lshr_b32 s44, s2, 3")
        a("s_lshl_b32 s44, s44, 3")
        a("v_mov_b32 v4, s44")
        a("s_and_b32 s45, s2, 7")
        a(f"s_or_b32 s45, s45, s{S_W}")
        a("s_cmp_lg_u32 s45, 0")
        a("s_cbranch_scc1 L_nostamp")
        a("buffer_store_dwordx2 v[2:3], v4, s[40:43], 0 offen")
        a.label("L_nostamp")
    a(f"s_cmp_eq_u32 s{S_SPLIT}, 5")
    a("s_cbranch_scc1 L_body_lm")
    emit_body(a, cfg, "lf", last=True, nkb=2)
    a("s_branch L_k2_epi")
    emit_body(a, cfg, "lm", last=True, nkb=1)
    a.label("L_k2_epi")
    a.seg("k2_epi")
    a(f"""
    v_and_b32 v2, 15, v0
    v_lshlrev_b32 v2, 8, v2
    v_bfe_u32 v3, v0, 4, 2
    v_lshl_add_u32 v2, v3, 4, v2
    v_lshrrev_b32 v3, 1, v{R.VL16}
    s_nop 7
    """)
    n = 0
    for qb in range(NQ):
        a(f"s_add_u32 s{S_T0}, s{S_PO}, {qb * 4096}")
        for p in range(4):
            t = 32 + 4 * (n % 4)
            n += 1
            for d in range(4):
                src = R.O + (qb * 8 + 2 * p) * 4 + 2 * d
                a(f"v_cvt_pk_bf16_f32 v{t + d}, v{src}, v{src + 1}")
            a(f"buffer_store_dwordx4 {vr(t, 4)}, v2, {srd}, s{S_T0} offen offset:{64 * p}")
    for qb in range(NQ):
        a(f"v_sub_f32 v{4 + 2 * qb}, 0, v{R.N + 4 * qb}")
        a(f"v_mov_b32 v{5 + 2 * qb}, v{R.L + qb}")
        a(f"buffer_store_dwordx2 v[{4 + 2 * qb}:{5 + 2 * qb}], v3, {srd}, s{S_PL} offen offset:{512 * qb}")
    a("s_waitcnt vmcnt(0)")
    if cfg.get("stamp"):
        a("s_memrealtime s[58:59]")
        a("s_waitcnt lgkmcnt(0)")
        a("v_mov_b32 v4, s56")
        a("v_mov_b32 v5, s32")
        a("s_add_u32 s36, s36, s32")
        a("v_mov_b32 v6, s36")
        a("v_mov_b32 v7, s58")
        a("s_lshl_b32 s60, s2, 6")
        a(f"s_lshl_b32 s61, s{S_W}, 4")
        a("s_add_u32 s60, s60, s61")
        a(f"s_add_u32 s60, s60, {OVF + 0x400000}")
        a("v_mov_b32 v8, 0")
        a(f"buffer_store_dwordx4 v[4:7], v8, {srd}, s60 offen")
        a("s_waitcnt vmcnt(0)")
    a.label("L_k2_end")
    a("s_endpgm")
    for tag, nkb in (("m", 2), ("lf", 2), ("lm", 1)):
        for X in "AB":
            emit_slow(a, X, nkb, tag + X)
    return dict(name=name, vgpr=384, accum=256, sgpr=64, grid=NWG, block=256, lds=131072,
                chains=[["k2_pro", "body_m", "body_m", "k2_mid", "body_lf", "k2_epi"],
                        ["body_m", "k2_mid", "body_lm", "k2_epi"]] +
                       [["slow_" + t + X] for t in ("m", "lf", "lm") for X in "AB"])
```

```python
from layout import *

OVFCNT = CNT + 10239 * 64
CAP = 64


def vr(b, n):
    return f"v[{b}:{b + n - 1}]"


def emit_kb(a, cfg):
    name = "kb_fill_kernel"
    NWG = E // 256
    a.raw(".text")
    a.raw(f".globl {name}\n.p2align 8\n.type {name},@function")
    a.label(name)
    a.seg("kb")
    a(f"""
    s_cmp_ge_u32 s2, {NWG}
    s_cbranch_scc1 L_kb_end
    s_load_dwordx4 s[20:23], s[0:1], 8
    s_load_dwordx2 s[12:13], s[0:1], 88
    s_mov_b32 s6, {E * 4}
    s_mov_b32 s7, 0x00020000
    s_mov_b32 s10, {E * 4}
    s_mov_b32 s11, 0x00020000
    s_mov_b32 s14, 0x10000000
    s_mov_b32 s15, 0x00020000
    s_lshl_b32 s16, s2, 10
    v_lshlrev_b32 v1, 2, v0
    s_waitcnt lgkmcnt(0)
    s_mov_b32 s4, s20
    s_and_b32 s5, s21, 0xffff
    s_mov_b32 s8, s22
    s_and_b32 s9, s23, 0xffff
    s_and_b32 s13, s13, 0xffff
    buffer_load_dword v2, v1, s[4:7], s16 offen
    buffer_load_dword v3, v1, s[8:11], s16 offen
    s_mov_b32 s17, {CNT}
    s_mov_b32 s18, {LST}
    v_mov_b32 v5, 1
    s_waitcnt vmcnt(0)
    v_lshlrev_b32 v4, 6, v3
    buffer_atomic_add v5, v4, s[12:15], s17 offen sc0
    v_lshlrev_b32 v2, 8, v2
    v_lshlrev_b32 v6, 8, v3
    s_waitcnt vmcnt(0)
    v_lshl_add_u32 v6, v5, 2, v6
    v_cmp_gt_u32 vcc, {CAP}, v5
    s_and_saveexec_b64 s[24:25], vcc
    s_cbranch_execz L_kb_ovf
    buffer_store_dword v2, v6, s[12:15], s18 offen
    """)
    a.label("L_kb_ovf")
    a(f"""
    s_andn2_b64 exec, s[24:25], exec
    s_cbranch_execz L_kb_end
    v_mov_b32 v5, 1
    v_mov_b32 v4, 0
    s_mov_b32 s17, {OVFCNT}
    s_mov_b32 s18, {OVF}
    buffer_atomic_add v5, v4, s[12:15], s17 offen sc0
    v_mov_b32 v8, v3
    v_mov_b32 v9, v2
    s_waitcnt vmcnt(0)
    v_lshlrev_b32 v5, 3, v5
    buffer_store_dwordx2 v[8:9], v5, s[12:15], s18 offen
    """)
    a.label("L_kb_end")
    a("s_endpgm")
    return dict(name=name, vgpr=16, accum=16, sgpr=32, grid=NWG, block=256, lds=0, chains=[["kb"]])


def emit_k3(a, cfg):
    name = "k3_out_kernel"
    NWG = N // 16
    NS = 6
    a.raw(".text")
    a.raw(f".globl {name}\n.p2align 8\n.type {name},@function")
    a.label(name)
    a.seg("k3_a")
    SX, SD, SO, SWS, SM = 4, 8, 12, 16, 20
    LSTR = 8
    CNTV = 12
    XV = 14
    DI = 13
    PLV = 20
    POV = 32
    ACC = 144
    AGG = 64
    B0, B1 = 72, 104
    AD = 136
    a(f"""
    s_cmp_ge_u32 s2, {NWG}
    s_cbranch_scc1 L_k3_end
    s_load_dwordx2 s[{SX}:{SX + 1}], s[0:1], 0
    s_load_dwordx2 s[{SD}:{SD + 1}], s[0:1], 24
    s_load_dwordx2 s[{SO}:{SO + 1}], s[0:1], 72
    s_load_dwordx2 s[{SWS}:{SWS + 1}], s[0:1], 88
    s_mov_b32 s{SX + 2}, {N * 256}
    s_mov_b32 s{SX + 3}, 0x00020000
    s_mov_b32 s{SD + 2}, {N * 2}
    s_mov_b32 s{SD + 3}, 0x00020000
    s_mov_b32 s{SO + 2}, {N * 256}
    s_mov_b32 s{SO + 3}, 0x00020000
    s_mov_b32 s{SWS + 2}, 0x10000000
    s_mov_b32 s{SWS + 3}, 0x00020000
    s_mov_b32 s{SM + 2}, {N * 256}
    s_mov_b32 s{SM + 3}, 0x00020000
    s_lshl_b32 s24, s2, 4
    v_lshrrev_b32 v1, 4, v0
    v_add_u32 v1, s24, v1                     ; node
    v_and_b32 v2, 15, v0                      ; c
    v_lshlrev_b32 v3, 4, v2                   ; c*16
    v_lshl_add_u32 v4, v1, 8, v3              ; node*256 + c*16
    v_lshlrev_b32 v5, 6, v1                   ; node*64
    v_lshrrev_b32 v6, 2, v2
    v_lshlrev_b32 v6, 6, v6
    v_and_b32 v7, 3, v2
    v_lshl_add_u32 v6, v7, 3, v6
    v_lshl_add_u32 v6, v1, 8, v6
    v_lshlrev_b32 v18, 1, v1                  ; node*2
    s_lshr_b32 s25, s2, 4                     ; q tile
    s_mul_i32 s26, s25, {NS * 65536}
    s_add_u32 s26, s26, {PO}
    s_mul_i32 s27, s25, {NS * 8192}
    s_add_u32 s27, s27, {PL}
    v_and_b32 v19, 0xffff, v4                 ; (node&255)*256 + c*16
    s_and_b32 s28, s2, 15                     ; wave*4+qb
    s_lshl_b32 s28, s28, 9
    s_add_u32 s27, s27, s28
    v_lshrrev_b32 v56, 4, v0
    v_lshl_add_u32 v56, v7, 4, v56
    v_lshlrev_b32 v56, 3, v56                 ; (g*16+q)*8
    s_mov_b32 s29, {CNT}
    s_mov_b32 s30, {LST}
    s_waitcnt lgkmcnt(0)
    s_and_b32 s{SX + 1}, s{SX + 1}, 0xffff
    s_and_b32 s{SD + 1}, s{SD + 1}, 0xffff
    s_and_b32 s{SO + 1}, s{SO + 1}, 0xffff
    s_and_b32 s{SWS + 1}, s{SWS + 1}, 0xffff
    s_add_u32 s{SM}, s{SWS}, {MP}
    s_addc_u32 s{SM + 1}, s{SWS + 1}, 0
    s_add_u32 s34, s{SWS}, {OVFCNT}
    s_addc_u32 s35, s{SWS + 1}, 0
    buffer_load_dword v{CNTV}, v5, s[{SWS}:{SWS + 3}], s29 offen
    buffer_load_dwordx4 {vr(LSTR, 4)}, v4, s[{SWS}:{SWS + 3}], s30 offen
    s_load_dword s36, s[34:35], 0
    """)
    for s in range(NS):
        a(f"buffer_load_dwordx2 {vr(PLV + 2 * s, 2)}, v56, s[{SWS}:{SWS + 3}], s27 offen")
        if s < NS - 1:
            a(f"s_add_u32 s27, s27, 8192")
    for s in range(NS):
        a(f"buffer_load_dwordx4 {vr(POV + 4 * s, 4)}, v19, s[{SWS}:{SWS + 3}], s26 offen")
        if s < NS - 1:
            a(f"s_add_u32 s26, s26, 65536")
    a(f"buffer_load_dwordx2 {vr(XV, 2)}, v6, s[{SX}:{SX + 3}], 0 offen")
    a(f"buffer_load_dwordx2 {vr(XV + 2, 2)}, v6, s[{SX}:{SX + 3}], 0 offen offset:32")
    a(f"buffer_load_ushort v{DI}, v18, s[{SD}:{SD + 3}], 0 offen")
    later = 2 * NS + 3
    for j in range(8):
        a(f"v_mov_b32 v{AGG + j}, 0")
    a(f"v_lshlrev_b32 v57, 2, v2")
    a(f"s_mov_b32 s31, 0x7fffff00")
    a(f"v_mov_b32 v58, s31")
    a(f"s_waitcnt vmcnt({later})")
    a(f"v_min_u32 v{CNTV}, {CAP}, v{CNTV}")
    for j in range(4):
        a(f"v_add_u32 v59, {j}, v57")
        a(f"v_cmp_lt_u32 vcc, v59, v{CNTV}")
        a("s_nop 1")
        a(f"v_cndmask_b32 v{LSTR + j}, v58, v{LSTR + j}, vcc")
    a(f"v_readlane_b32 s32, v{CNTV}, 0")
    a(f"v_readlane_b32 s33, v{CNTV}, 16")
    a(f"v_readlane_b32 s37, v{CNTV}, 32")
    a(f"v_readlane_b32 s38, v{CNTV}, 48")
    a("s_nop 0")
    a("s_max_u32 s32, s32, s33")
    a("s_max_u32 s37, s37, s38")
    a("s_max_u32 s32, s32, s37")

    def issue(k, buf):
        for j in range(8):
            e = 8 * k + j
            a(f"v_add_u32_dpp v{AD + j}, v{LSTR + (e & 3)}, v3 row_newbcast:{e >> 2} row_mask:0xf bank_mask:0xf")
            a(f"buffer_load_dwordx4 {vr(buf + 4 * j, 4)}, v{AD + j}, s[{SM}:{SM + 3}], 0 offen")

    def accum(buf, n, base_wait):
        for j in range(n):
            a(f"s_waitcnt vmcnt({base_wait + n - 1 - j})")
            for d in range(4):
                r = buf + 4 * j + d
                a(f"v_lshlrev_b32 v60, 16, v{r}")
                a(f"v_and_b32 v61, 0xffff0000, v{r}")
                a(f"v_pk_add_f32 {vr(AGG + 2 * d, 2)}, {vr(AGG + 2 * d, 2)}, v[60:61]")

    issue(0, B0)
    a.seg("k3_b")
    a("s_waitcnt vmcnt(8)")
    a(f"v_max3_f32 v60, v{PLV}, v{PLV + 2}, v{PLV + 4}")
    a(f"v_max3_f32 v60, v60, v{PLV + 6}, v{PLV + 8}")
    a(f"v_max_f32 v60, v60, v{PLV + 10}")
    for s in range(NS):
        a(f"v_sub_f32 v{PLV + 2 * s}, v{PLV + 2 * s}, v60")
    for s in range(NS):
        a(f"v_exp_f32 v{PLV + 2 * s}, v{PLV + 2 * s}")
    a("s_nop 0")
    a(f"v_mul_f32 v61, v{PLV}, v{PLV + 1}")
    for s in range(1, NS):
        a(f"v_fmac_f32 v61, v{PLV + 2 * s}, v{PLV + 2 * s + 1}")
    a("s_nop 1")
    a("v_add_f32_dpp v61, v61, v61 quad_perm:[1,0,3,2] row_mask:0xf bank_mask:0xf")
    a("s_nop 1")
    a("v_add_f32_dpp v61, v61, v61 quad_perm:[2,3,0,1] row_mask:0xf bank_mask:0xf")
    a("v_rcp_f32 v61, v61")
    a("s_nop 0")
    for s in range(NS):
        a(f"v_mul_f32 v{PLV + 2 * s}, v{PLV + 2 * s}, v61")
    for s in range(NS):
        for d in range(4):
            r = POV + 4 * s + d
            a(f"v_lshlrev_b32 v62, 16, v{r}")
            a(f"v_and_b32 v63, 0xffff0000, v{r}")
            if s == 0:
                a(f"v_mul_f32 v{ACC + 2 * d}, v62, v{PLV}")
                a(f"v_mul_f32 v{ACC + 2 * d + 1}, v63, v{PLV}")
            else:
                a(f"v_fmac_f32 v{ACC + 2 * d}, v62, v{PLV + 2 * s}")
                a(f"v_fmac_f32 v{ACC + 2 * d + 1}, v63, v{PLV + 2 * s}")
    bufs = [B0, B1]
    for k in range(8):
        a.seg(f"k3_g{k}")
        if k < 7:
            a(f"s_cmp_le_u32 s32, {8 * (k + 1)}")
            a(f"s_cbranch_scc1 L_k3_fin{k & 1}")
            issue(k + 1, bufs[(k + 1) & 1])
            accum(bufs[k & 1], 8, 8)
    a.label("L_k3_fin1")
    a.seg("k3_f1")
    accum(B1, 8, 0)
    a("s_branch L_k3_ovf")
    a.label("L_k3_fin0")
    a.seg("k3_f0")
    accum(B0, 8, 0)
    a.label("L_k3_ovf")
    a.seg("k3_o")
    a(f"""
    s_waitcnt lgkmcnt(0)
    s_cmp_eq_u32 s36, 0
    s_cbranch_scc1 L_k3_out
    s_add_u32 s34, s{SWS}, {OVF}
    s_addc_u32 s35, s{SWS + 1}, 0
    s_mov_b32 s37, 0
    """)
    a.label("L_k3_oloop")
    a(f"""
    s_lshl_b32 s38, s37, 3
    s_load_dwordx2 s[40:41], s[34:35], s38
    s_waitcnt lgkmcnt(0)
    s_lshr_b32 s39, s40, 4
    s_cmp_lg_u32 s39, s2
    s_cbranch_scc1 L_k3_onext
    v_add_u32 v{AD}, s41, v3
    v_cmp_eq_u32 vcc, s40, v1
    s_nop 1
    v_cndmask_b32 v{AD}, v58, v{AD}, vcc
    buffer_load_dwordx4 {vr(B0, 4)}, v{AD}, s[{SM}:{SM + 3}], 0 offen
    """)
    accum(B0, 1, 0)
    a.label("L_k3_onext")
    a(f"""
    s_add_u32 s37, s37, 1
    s_cmp_lt_u32 s37, s36
    s_cbranch_scc1 L_k3_oloop
    """)
    a.label("L_k3_out")
    a.seg("k3_out")
    a(f"v_lshlrev_b32 v{DI}, 16, v{DI}")
    for j in range(8):
        a(f"v_fmac_f32 v{ACC + j}, v{AGG + j}, v{DI}")
    for d in range(4):
        a(f"v_cvt_pk_bf16_f32 v60, v{ACC + 2 * d}, v{ACC + 2 * d + 1}")
        a(f"v_lshlrev_b32 v62, 16, v{XV + d}")
        a(f"v_and_b32 v63, 0xffff0000, v{XV + d}")
        a(f"v_and_b32 v61, 0xffff0000, v60")
        a(f"v_lshlrev_b32 v60, 16, v60")
        a(f"v_pk_add_f32 v[60:61], v[60:61], v[62:63]")
        a(f"v_cvt_pk_bf16_f32 v{B0 + d}, v60, v61")
    a(f"buffer_store_dwordx2 {vr(B0, 2)}, v6, s[{SO}:{SO + 3}], 0 offen")
    a(f"buffer_store_dwordx2 {vr(B0 + 2, 2)}, v6, s[{SO}:{SO + 3}], 0 offen offset:32")
    a.label("L_k3_end")
    a("s_endpgm")
    ch = ["k3_a", "k3_b"] + [f"k3_g{k}" for k in range(8)] + ["k3_f1"]
    return dict(name=name, vgpr=152, accum=152, sgpr=48, grid=NWG, block=256, lds=0,
                chains=[ch, ["k3_b", "k3_f0", "k3_o", "k3_out"]])
```

```python
import sys, json, os
sys.path.insert(0, os.path.dirname(__file__))
from asmlib import Asm
import k2, k2b

HEADER = open(os.path.join(os.path.dirname(__file__), "..", "cdna_kernels",
              "standalone__hybrid_graph_tf_graphgps__graph.s.ref")).read().split("; Override launch")[0]

def build(cfg, kernels):
    a = Asm()
    infos = []
    for k in kernels:
        infos.append(k(a, cfg))
    probs = []
    for inf in infos:
        probs += a.check(inf["chains"])
    out = [HEADER.rstrip("\n")]
    for inf in infos:
        out.append(f"; @launch kernel={inf['name']} grid=({inf['grid']},1,1) block=({inf['block']},1,1) lds={inf['lds']}")
    out.append('.amdgcn_target "amdgcn-amd-amdhsa--gfx950"')
    out.append(a.text())
    out.append('.section .rodata,"a"')
    for inf in infos:
        out.append(f""".p2align 6
.amdhsa_kernel {inf['name']}
  .amdhsa_next_free_vgpr {inf['vgpr']}
  .amdhsa_next_free_sgpr {inf['sgpr']}
  .amdhsa_accum_offset {inf['accum']}
  .amdhsa_group_segment_fixed_size 0
  .amdhsa_kernarg_size 96
  .amdhsa_user_sgpr_count 2
  .amdhsa_user_sgpr_kernarg_segment_ptr 1
  .amdhsa_system_sgpr_workgroup_id_x 1
.end_amdhsa_kernel""")
    return "\n".join(out) + "\n", probs

if __name__ == "__main__":
    outp = sys.argv[1]
    cfg = dict(PF=4)
    for kv in sys.argv[2:]:
        k, v = kv.split("=", 1)
        try:
            v = json.loads(v)
        except Exception:
            pass
        cfg[k] = v
    ks = cfg.get("kernels", "2")
    table = {"2": k2.emit_k2, "c": k2b.emit_k2}
    try:
        import k1, k3
        table.update({"1": k1.emit_k1, "3": k3.emit_k3, "b": k3.emit_kb})
    except ImportError:
        pass
    text, probs = build(cfg, [table[c] for c in str(ks)])
    for p in probs:
        print("HAZARD", p)
    open(outp, "w").write(text)
    print("wrote", outp, len(text), "bytes;", len(probs), "hazard problems")
```

```python
def emit_nop(a, cfg):
    name = "nop_kernel"
    a.raw(".text")
    a.raw(f".globl {name}\n.p2align 8\n.type {name},@function")
    a.label(name)
    a.seg("nop")
    a("s_endpgm")
    return dict(name=name, vgpr=8, accum=8, sgpr=16, grid=1, block=64, lds=0, chains=[["nop"]])
```

```python
import sys, json, os
sys.path.insert(0, os.path.dirname(__file__))
from asmlib import Asm
import k2, k2b, k2c, k2d, k2e

HEADER = open(os.path.join(os.path.dirname(__file__), "..", "cdna_kernels",
              "standalone__hybrid_graph_tf_graphgps__graph.s.ref")).read().split("; Override launch")[0]

def build(cfg, kernels):
    a = Asm()
    infos = []
    order = []
    done = {}
    for k in kernels:
        if k not in done:
            done[k] = k(a, cfg)
            infos.append(done[k])
        order.append(done[k])
    probs = []
    for inf in infos:
        probs += a.check(inf["chains"])
    out = [HEADER.rstrip("\n")]
    for inf in order:
        out.append(f"; @launch kernel={inf['name']} grid=({inf['grid']},1,1) block=({inf['block']},1,1) lds={inf['lds']}")
    out.append('.amdgcn_target "amdgcn-amd-amdhsa--gfx950"')
    out.append(a.text())
    out.append('.section .rodata,"a"')
    for inf in infos:
        out.append(f""".p2align 6
.amdhsa_kernel {inf['name']}
  .amdhsa_next_free_vgpr {inf['vgpr']}
  .amdhsa_next_free_sgpr {inf['sgpr']}
  .amdhsa_accum_offset {inf['accum']}
  .amdhsa_group_segment_fixed_size 0
  .amdhsa_kernarg_size 96
  .amdhsa_user_sgpr_count 2
  .amdhsa_user_sgpr_kernarg_segment_ptr 1
  .amdhsa_system_sgpr_workgroup_id_x 1
.end_amdhsa_kernel""")
    return "\n".join(out) + "\n", probs

if __name__ == "__main__":
    outp = sys.argv[1]
    cfg = dict(PF=4, ds1=1, memfirst=1, explast=1, dgaps=[1, 3, 34, 36], lead=3)
    for kv in sys.argv[2:]:
        k, v = kv.split("=", 1)
        try:
            v = json.loads(v)
        except Exception:
            pass
        cfg[k] = v
    ks = cfg.get("kernels", "2")
    import nop
    table = {"2": k2.emit_k2, "c": k2b.emit_k2, "n": nop.emit_nop, "d": k2c.emit_k2, "e": k2d.emit_k2, "f": k2e.emit_k2}
    try:
        import k1, k3
        table.update({"1": k1.emit_k1, "3": k3.emit_k3, "b": k3.emit_kb})
    except ImportError:
        pass
    text, probs = build(cfg, [table[c] for c in str(ks)])
    for p in probs:
        print("HAZARD", p)
    open(outp, "w").write(text)
    print("wrote", outp, len(text), "bytes;", len(probs), "hazard problems")
```

```python
import re

TRANS = ("v_exp_f32", "v_log_f32", "v_rcp_f32", "v_rsq_f32", "v_sqrt_f32", "v_sin_f32", "v_cos_f32")


def _regs(tok):
    tok = tok.strip()
    tok = tok.replace("abs(", "").replace(")", "").replace("|", "")
    if tok.startswith("-"):
        tok = tok[1:]
    m = re.fullmatch(r"([vas])(\d+)", tok)
    if m:
        return [(m.group(1), int(m.group(2)))]
    m = re.fullmatch(r"([vas])\[(\d+):(\d+)\]", tok)
    if m:
        return [(m.group(1), i) for i in range(int(m.group(2)), int(m.group(3)) + 1)]
    if tok in ("vcc", "vcc_lo", "vcc_hi"):
        return [("s", "vcc")]
    if tok in ("exec", "exec_lo", "exec_hi"):
        return [("s", "exec")]
    if tok == "m0":
        return [("s", "m0")]
    return []


class Ins:
    __slots__ = ("text", "op", "ops", "mods", "kind", "wr", "rd", "mf", "passes", "states", "dpp", "lds", "cread")

    def __init__(self, text):
        self.text = text
        t = text.split(";")[0].strip()
        parts = t.split(None, 1)
        self.op = parts[0]
        rest = parts[1] if len(parts) > 1 else ""
        toks = [x.strip() for x in rest.split(",")] if rest else []
        mods = []
        rest2 = re.sub(r"\b(op_sel|op_sel_hi|neg_lo|neg_hi):\[[^\]]*\]", lambda m: (mods.append(m.group(0)), "")[1], rest)
        toks = [x.strip() for x in rest2.split(",")] if rest2.strip() else []
        if toks:
            last = toks[-1].split()
            toks[-1] = last[0] if last else ""
            mods += last[1:]
        self.ops = toks
        self.mods = mods
        op = self.op
        base = re.sub(r"_(e32|e64|dpp|sdwa)$", "", op)
        self.dpp = op.endswith("_dpp") or any(m.startswith(("row_", "quad_perm", "wave_")) for m in mods)
        self.lds = "lds" in mods
        self.mf = None
        self.passes = 0
        self.states = 1
        self.cread = []
        wr, rd = [], []
        if base.startswith("v_mfma"):
            self.kind = "mfma"
            wr = _regs(toks[0])
            a, b, c = _regs(toks[1]), _regs(toks[2]), _regs(toks[3])
            self.mf = (wr, a, b, c)
            rd = a + b + c
            self.cread = c
            self.passes = 8 if "32x32" in base else 4
        elif base.startswith("v_cmp"):
            self.kind = "valu"
            wr = _regs(toks[0])
            if base.startswith("v_cmpx"):
                wr += [("s", "exec")]
            for x in toks[1:]:
                rd += _regs(x)
        elif base in ("v_readfirstlane_b32", "v_readlane_b32"):
            self.kind = "valu"
            wr = _regs(toks[0])
            for x in toks[1:]:
                rd += _regs(x)
        elif base.startswith("v_permlane"):
            self.kind = "valu"
            wr = _regs(toks[0]) + _regs(toks[1])
            rd = list(wr)
        elif base in ("v_add_co_u32", "v_sub_co_u32", "v_addc_co_u32", "v_subb_co_u32"):
            self.kind = "valu"
            wr = _regs(toks[0]) + _regs(toks[1])
            for x in toks[2:]:
                rd += _regs(x)
        elif base == "v_nop":
            self.kind = "valu"
        elif base.startswith("v_"):
            self.kind = "valu"
            wr = _regs(toks[0])
            for x in toks[1:]:
                rd += _regs(x)
            if base in ("v_fmac_f32", "v_dot2c_f32_bf16", "v_pk_fmac_f16") or self.dpp:
                rd += wr
            if base == "v_cndmask_b32" and len(toks) == 3:
                rd += [("s", "vcc")]
        elif base.startswith("ds_"):
            self.kind = "ds"
            if base.startswith(("ds_read", "ds_bpermute", "ds_permute", "ds_swizzle")) or "_rtn" in base:
                wr = _regs(toks[0])
                for x in toks[1:]:
                    rd += _regs(x)
            else:
                for x in toks:
                    rd += _regs(x)
        elif base.startswith(("buffer_", "global_")):
            self.kind = "vmem"
            if base in ("buffer_wbl2", "buffer_inv"):
                pass
            elif "load" in base and not self.lds:
                wr = _regs(toks[0])
                for x in toks[1:]:
                    rd += _regs(x)
            elif "atomic" in base and "sc0" in mods:
                wr = _regs(toks[0])
                for x in toks:
                    rd += _regs(x)
            else:
                for x in toks:
                    rd += _regs(x)
            if self.lds:
                rd += [("s", "m0")]
        elif base == "s_nop":
            self.kind = "salu"
            self.states = int(toks[0], 0) + 1
        elif base.startswith("s_"):
            self.kind = "salu"
            if base.startswith(("s_cmp", "s_cbranch", "s_branch", "s_waitcnt", "s_barrier", "s_endpgm", "s_setprio", "s_sleep", "s_bitcmp")):
                for x in toks:
                    rd += _regs(x)
            else:
                wr = _regs(toks[0]) if toks else []
                for x in toks[1:]:
                    rd += _regs(x)
                if "saveexec" in base:
                    wr += [("s", "exec")]
        else:
            raise ValueError("unknown instruction: " + text)
        self.wr, self.rd = wr, rd
        self.op = base

    @property
    def trans(self):
        return self.op in TRANS


def check_hazards(seq, name=""):
    probs = []
    n = len(seq)
    tm = []
    mft = []
    t = 0
    for c in seq:
        if c.kind == "mfma":
            if len(mft) >= 2:
                t = max(t, mft[-2][0] + mft[-2][1])
            mft.append((t, c.passes))
        tm.append(t)
        t += c.states
    for i, c in enumerate(seq):
        for j in range(i - 1, -1, -1):
            p = seq[j]
            dist = tm[i] - tm[j] - p.states if p.kind == "mfma" else sum(x.states for x in seq[j + 1:i][:24])
            need = 0
            why = ""
            pw = set(p.wr)
            crd, cwr = set(c.rd), set(c.wr)
            vpw = {r for r in pw if r[0] in "va"}
            spw = {r for r in pw if r[0] == "s"}
            if p.kind == "valu":
                if c.kind == "mfma" and vpw & crd:
                    need, why = 2, "VALU->MFMA operand"
                if c.kind == "valu" and p.trans and not c.trans and vpw & crd:
                    need, why = max(need, 1), "trans->VALU"
                if c.kind == "valu" and (c.op.startswith("v_permlane") or c.dpp) and vpw & crd:
                    need, why = max(need, 2), "VALU->permlane/dpp"
                if c.op in ("v_readfirstlane_b32", "v_readlane_b32") and vpw & crd:
                    need, why = max(need, 1), "VALU->readlane"
                if spw:
                    if c.kind == "valu" and (spw - {("s", "exec")}) & crd:
                        need, why = max(need, 2), "VALU sgpr->VALU const"
                        if c.op in ("v_readlane_b32", "v_writelane_b32"):
                            need = max(need, 4)
                    if c.kind == "vmem" and spw & crd:
                        need, why = max(need, 5), "VALU sgpr->VMEM"
                    if ("s", "exec") in spw:
                        if c.kind == "mfma":
                            need, why = max(need, 4), "exec->mfma"
                        if c.dpp:
                            need, why = max(need, 5), "exec->dpp"
                        if c.op.startswith(("v_permlane", "v_read")):
                            need, why = max(need, 4), "exec->permlane"
            if p.kind == "mfma":
                big = p.passes == 8
                D = set(p.mf[0])
                if c.kind in ("valu",) and (D & crd or D & cwr):
                    need, why = max(need, 12 if big else 8), "MFMA D->VALU"
                if c.kind in ("vmem", "ds") and (D & crd or D & cwr):
                    need, why = max(need, 12 if big else 8), "MFMA D->mem"
                if c.kind == "mfma":
                    if D & (set(c.mf[1]) | set(c.mf[2])):
                        need, why = max(need, 12 if big else 8), "MFMA D->MFMA A/B"
                    cc = set(c.mf[3])
                    if D & cc and not (p.mf[0] == c.mf[3] and p.passes == c.passes):
                        need, why = max(need, 10 if big else 6), "MFMA D->MFMA C partial"
                    if D & set(c.mf[0]) and not (p.mf[0] == c.mf[3]):
                        need, why = max(need, 10 if big else 6), "MFMA D WAW"
                if c.kind == "valu" and set(p.cread) & cwr:
                    need, why = max(need, 7 if big else 3), "MFMA C WAR"
            if p.kind == "salu" and ("s", "m0") in pw and c.kind == "vmem" and c.lds:
                need, why = max(need, 1), "m0->lds dma"
            if p.kind == "vmem" and "store" in p.op and ("x3" in p.op or "x4" in p.op):
                data = set(_regs(p.ops[0])) if p.op.startswith("buffer") else set(_regs(p.ops[1]))
                if data & cwr:
                    need, why = max(need, 2 if c.kind == "valu" else 1), "wide store data WAR"
            if need > dist:
                probs.append(f"{name}: [{j}] {p.text.strip()}  ->  [{i}] {c.text.strip()} : {why} needs {need}, has {dist}")
            if i - j > 24:
                break
    return probs


class Asm:
    def __init__(self):
        self.lines = []
        self.segs = {}
        self.cur = None

    def seg(self, name):
        self.cur = self.segs.setdefault(name, [])

    def raw(self, text):
        self.lines.append(text)

    def label(self, name):
        self.lines.append(name + ":")

    def __call__(self, text):
        for t in text.strip().split("\n"):
            t = t.strip()
            if not t or t.startswith(";"):
                if t:
                    self.lines.append("    " + t)
                continue
            if t.endswith(":") or t.startswith("."):
                self.lines.append(t)
                continue
            self.lines.append("    " + t)
            if self.cur is not None:
                self.cur.append(Ins(t))

    def check(self, chains):
        bad = []
        for ch in chains:
            seq = []
            for s in ch:
                seq += self.segs[s]
            bad += check_hazards(seq, "+".join(ch))
        seen = set()
        out = []
        for b in bad:
            k = b.split(":", 1)[1]
            k = re.sub(r"\[\d+\]", "", k)
            if k not in seen:
                seen.add(k)
                out.append(b)
        return out

    def text(self):
        return "\n".join(self.lines) + "\n"


def stamp_entry(a, cfg, s):
    if cfg.get("tl"):
        a(f"s_memrealtime s[{s}:{s + 1}]")


def stamp_exit(a, cfg, s, kidx, srd, TR):
    if cfg.get("tl"):
        a("s_waitcnt vmcnt(0) lgkmcnt(0)")
        a(f"s_memrealtime s[{s + 2}:{s + 3}]")
        a("s_mov_b64 exec, 1")
        a("v_lshrrev_b32 v1, 6, v0")
        a("v_lshlrev_b32 v1, 3, v1")
        a(f"s_lshl_b32 s{s + 4}, s2, 5")
        a(f"s_add_u32 s{s + 4}, s{s + 4}, {TR + kidx * 0x40000}")
        a("s_waitcnt lgkmcnt(0)")
        a(f"v_mov_b32 v2, s{s}")
        a(f"v_mov_b32 v3, s{s + 2}")
        a(f"buffer_store_dwordx2 v[2:3], v1, {srd}, s{s + 4} offen")
```

```python
from layout import *
from asmlib import stamp_entry, stamp_exit
import struct

MF = "v_mfma_f32_32x32x16_bf16"


def f2u(x):
    return struct.unpack("<I", struct.pack("<f", x))[0]


def vr(b, n):
    return f"v[{b}:{b + n - 1}]"


def emit_k1(a, cfg):
    name = "k1_proj_kernel"
    NT = 80
    NWG = 4 * NT
    NBK = GB if cfg.get('pathA') else 0
    a.raw(".text")
    a.raw(f".globl {name}\n.p2align 8\n.type {name},@function")
    a.label(name)
    a.seg("k1_a")
    SX, SW1, SWO, SWS = 4, 8, 12, 16
    S_JOB, S_BLK, S_W, S_T0, S_T1, S_SC = 20, 21, 22, 23, 24, 26
    S_O1, S_O2 = 28, 29
    XR = 64
    XF = 96
    H = 32
    D = 160
    VA = 8
    a(f"""
    s_cmp_ge_u32 s2, {NWG + NBK}
    s_cbranch_scc1 L_k1_exit
    """)
    stamp_entry(a, cfg, 32)
    if NBK:
        a(f"s_cmp_lt_u32 s2, {NBK}")
        a("s_cbranch_scc1 L_k1_bucket")
    a(f"""
    s_sub_u32 s3, s2, {NBK}
    s_and_b32 s{S_JOB}, s3, 3
    s_add_u32 s{S_T0}, s{S_JOB}, 1
    s_and_b32 s{S_T0}, s{S_T0}, 3
    s_lshl_b32 s{S_T0}, s{S_T0}, 3
    s_add_u32 s{S_T0}, s{S_T0}, 32
    s_load_dwordx2 s[{SX}:{SX + 1}], s[0:1], 0
    s_load_dwordx2 s[{SW1}:{SW1 + 1}], s[0:1], s{S_T0}
    s_load_dwordx2 s[{SWO}:{SWO + 1}], s[0:1], 64
    s_load_dwordx2 s[{SWS}:{SWS + 1}], s[0:1], 88
    v_lshrrev_b32 v1, 6, v0
    v_and_b32 v2, 63, v0                      ; lane
    v_readfirstlane_b32 s{S_W}, v1
    s_mov_b32 s{SX + 2}, {N * 256}
    s_mov_b32 s{SX + 3}, 0x00020000
    s_mov_b32 s{SW1 + 2}, 32768
    s_mov_b32 s{SW1 + 3}, 0x00020000
    s_mov_b32 s{SWO + 2}, 32768
    s_mov_b32 s{SWO + 3}, 0x00020000
    s_mov_b32 s{SWS + 2}, 0x10000000
    s_mov_b32 s{SWS + 3}, 0x00020000
    s_lshr_b32 s{S_BLK}, s3, 2
    s_lshl_b32 s{S_BLK}, s{S_BLK}, 2
    s_add_u32 s{S_BLK}, s{S_BLK}, s{S_W}
    s_lshl_b32 s{S_BLK}, s{S_BLK}, 13          ; *8192 bytes
    ; x address: n*256 + h*16
    v_and_b32 v3, 31, v2
    v_lshrrev_b32 v4, 5, v2                    ; h
    v_lshlrev_b32 v5, 8, v3
    v_lshl_add_u32 v5, v4, 4, v5               ; v5 = n*256 + h*16
    v_lshrrev_b32 v6, 4, v2                    ; g
    v_and_b32 v7, 15, v2                       ; t
    v_lshlrev_b32 v16, 2, v6
    v_xor_b32 v16, v16, v7
    v_lshlrev_b32 v16, 4, v16
    v_lshl_add_u32 v16, v6, 8, v16
    s_lshl_b32 s{S_T0}, s{S_W}, 13             ; w*8192
    s_add_u32 s{S_T1}, s{S_T0}, 4096
    s_mov_b32 m0, s{S_T0}
    s_waitcnt lgkmcnt(0)
    s_and_b32 s{SX + 1}, s{SX + 1}, 0xffff
    s_and_b32 s{SW1 + 1}, s{SW1 + 1}, 0xffff
    s_and_b32 s{SWO + 1}, s{SWO + 1}, 0xffff
    s_and_b32 s{SWS + 1}, s{SWS + 1}, 0xffff
    """)
    for s in range(8):
        a(f"buffer_load_dwordx4 {vr(XR + 4 * s, 4)}, v5, s[{SX}:{SX + 3}], s{S_BLK} offen offset:{32 * s}")
    for k in range(4):
        a(f"buffer_load_dwordx4 v16, s[{SW1}:{SW1 + 3}], s{S_T0} offen offset:{1024 * k} lds")
    a(f"s_mov_b32 m0, s{S_T1}")
    a("s_nop 0")
    for k in range(4):
        a(f"buffer_load_dwordx4 v16, s[{SW1}:{SW1 + 3}], s{S_T1} offen offset:{1024 * k} lds")
    a(f"s_cmp_lt_u32 s{S_JOB}, 2")
    a("s_cbranch_scc1 L_k1_nowo")
    a(f"s_add_u32 m0, s{S_T0}, 0x8000")
    a("s_nop 0")
    for k in range(4):
        a(f"buffer_load_dwordx4 v16, s[{SWO}:{SWO + 3}], s{S_T0} offen offset:{1024 * k} lds")
    a(f"s_add_u32 m0, s{S_T1}, 0x8000")
    a("s_nop 0")
    for k in range(4):
        a(f"buffer_load_dwordx4 v16, s[{SWO}:{SWO + 3}], s{S_T1} offen offset:{1024 * k} lds")
    a("s_waitcnt vmcnt(16)")
    a("s_branch L_k1_ln")
    a.label("L_k1_nowo")
    a("s_waitcnt vmcnt(8)")
    a.label("L_k1_ln")
    a.seg("k1_b")
    if NBK:
        a(f"""
        v_mov_b32 v17, 0
        v_lshlrev_b32 v18, 2, v0
        s_lshl_b32 s{S_T0}, s3, 7
        s_add_u32 s{S_T0}, s{S_T0}, {FLG}
        v_cmp_gt_u32 vcc, 32, v0
        s_and_saveexec_b64 s[30:31], vcc
        s_cbranch_execz L_k1_nz
        buffer_store_dword v17, v18, s[{SWS}:{SWS + 3}], s{S_T0} offen
        """)
    else:
        a(f"""
        v_mov_b32 v17, 0
        v_lshlrev_b32 v18, 6, v0
        s_lshl_b32 s{S_T0}, s3, 11
        s_add_u32 s{S_T0}, s{S_T0}, {CNT}
        v_cmp_gt_u32 vcc, 32, v0
        s_and_saveexec_b64 s[30:31], vcc
        s_cbranch_execz L_k1_nz
        buffer_store_dword v17, v18, s[{SWS}:{SWS + 3}], s{S_T0} offen
        """)
    a.label("L_k1_nz")
    a("s_mov_b64 exec, s[30:31]")
    a(f"""
    v_lshrrev_b32 v17, 2, v7                   ; r = t>>2
    v_lshrrev_b32 v18, 1, v6                   ; hh = g>>1
    v_and_b32 v19, 1, v6                       ; g&1
    v_lshlrev_b32 v20, 6, v17                  ; r*64
    v_lshl_add_u32 v20, v19, 5, v20            ; + (g&1)*32
    v_and_b32 v21, 3, v7
    v_lshl_add_u32 v20, v21, 3, v20            ; + (t&3)*8
    v_lshl_add_u32 v20, v17, 8, v20            ; + r*256
    v_lshl_add_u32 v{VA}, v18, 11, v20
    v_lshl_add_u32 v{VA + 4}, v18, 10, v20
    """)
    for i in range(1, 4):
        a(f"v_xor_b32 v{VA + i}, {i << 6}, v{VA}")
        a(f"v_xor_b32 v{VA + 4 + i}, {i << 6}, v{VA + 4}")
    for i in range(32):
        a(f"v_lshlrev_b32 v{XF + 2 * i}, 16, v{XR + i}")
        a(f"v_and_b32 v{XF + 2 * i + 1}, 0xffff0000, v{XR + i}")
    AC = 22
    a(f"v_pk_add_f32 {vr(AC, 2)}, {vr(XF, 2)}, {vr(XF + 2, 2)}")
    a(f"v_pk_add_f32 {vr(AC + 2, 2)}, {vr(XF + 4, 2)}, {vr(XF + 6, 2)}")
    for i in range(4, 32):
        t = AC + 2 * (i & 1)
        a(f"v_pk_add_f32 {vr(t, 2)}, {vr(t, 2)}, {vr(XF + 2 * i, 2)}")
    a(f"v_pk_add_f32 {vr(AC, 2)}, {vr(AC, 2)}, {vr(AC + 2, 2)}")
    a(f"v_add_f32 v{AC}, v{AC}, v{AC + 1}")

    def xhalf_sum(r, t):
        a(f"v_mov_b32 v{t}, v{r}")
        a("s_nop 1")
        a(f"v_permlane32_swap_b32 v{r}, v{t}")
        a("s_nop 1")
        a(f"v_add_f32 v{r}, v{r}, v{t}")

    xhalf_sum(AC, AC + 1)
    a(f"v_mul_f32 v26, {hex(f2u(-1.0 / 128))}, v{AC}")
    a("v_mov_b32 v27, v26")
    for i in range(32):
        a(f"v_pk_add_f32 {vr(XF + 2 * i, 2)}, {vr(XF + 2 * i, 2)}, v[26:27]")
    a(f"v_pk_mul_f32 {vr(AC, 2)}, {vr(XF, 2)}, {vr(XF, 2)}")
    a(f"v_pk_mul_f32 {vr(AC + 2, 2)}, {vr(XF + 2, 2)}, {vr(XF + 2, 2)}")
    for i in range(2, 32):
        t = AC + 2 * (i & 1)
        a(f"v_pk_fma_f32 {vr(t, 2)}, {vr(XF + 2 * i, 2)}, {vr(XF + 2 * i, 2)}, {vr(t, 2)}")
    a(f"v_pk_add_f32 {vr(AC, 2)}, {vr(AC, 2)}, {vr(AC + 2, 2)}")
    a(f"v_add_f32 v{AC}, v{AC}, v{AC + 1}")
    xhalf_sum(AC, AC + 1)

    def rnd(r):
        a(f"v_cvt_pk_bf16_f32 v{r}, v{r}, v{r}")
        a(f"v_lshlrev_b32 v{r}, 16, v{r}")

    a(f"v_mul_f32 v{AC}, {hex(f2u(1.0 / 128))}, v{AC}")
    rnd(AC)
    a(f"v_add_f32 v{AC}, {hex(f2u(1e-5))}, v{AC}")
    rnd(AC)
    a(f"v_sqrt_f32 v{AC}, v{AC}")
    a(f"v_cvt_pk_bf16_f32 v24, v26, v26")
    rnd(AC)
    a(f"v_rcp_f32 v28, v{AC}")
    a(f"v_lshlrev_b32 v24, 16, v24")
    a(f"v_sub_f32 v24, v24, v26")
    a(f"v_mov_b32 v29, v28")
    a(f"v_mul_f32 v24, v24, v28")
    a(f"v_mov_b32 v25, v24")
    for i in range(32):
        a(f"v_pk_fma_f32 {vr(XF + 2 * i, 2)}, {vr(XF + 2 * i, 2)}, v[28:29], v[24:25]")
    for i in range(32):
        a(f"v_cvt_pk_bf16_f32 v{H + i}, v{XF + 2 * i}, v{XF + 2 * i + 1}")
    c = 1.4426950408889634 / 128 ** 0.5
    a(f"s_mov_b32 s{S_SC}, {hex(f2u(c))}")
    a(f"s_cmp_eq_u32 s{S_JOB}, 0")
    a(f"s_cselect_b32 s{S_SC}, s{S_SC}, 1.0")
    a(f"s_mov_b32 s{S_SC + 1}, s{S_SC}")
    a("s_waitcnt vmcnt(0)")
    a("s_barrier")

    WB = [XF, XF + 32]

    def reads(i, buf, addr, base, second):
        for s in range(8):
            a(f"ds_read_b64_tr_b16 {vr(buf + 4 * s, 2)}, v{addr + i} offset:{base + 4096 * s}")
            a(f"ds_read_b64_tr_b16 {vr(buf + 4 * s + 2, 2)}, v{addr + i} offset:{base + 4096 * s + second}")

    def gemm(addr, base, second, other, w_is_a):
        reads(0, WB[0], addr, base, second)
        for i in range(4):
            a("s_waitcnt lgkmcnt(0)")
            if i < 3:
                reads(i + 1, WB[(i + 1) & 1], addr, base, second)
            for s in range(8):
                w = vr(WB[i & 1] + 4 * s, 4)
                o = vr(other + 4 * s, 4)
                A, B = (w, o) if w_is_a else (o, w)
                d = vr(D + 16 * i, 16)
                a(f"{MF} {d}, {A}, {B}, {'0' if s == 0 else d}")

    gemm(VA, 0, 1024, H, True)
    a("s_nop 7")
    a("s_nop 3")
    G1 = XR
    for i in range(32):
        a(f"v_pk_mul_f32 {vr(D + 2 * i, 2)}, {vr(D + 2 * i, 2)}, s[{S_SC}:{S_SC + 1}]")
    for i in range(32):
        a(f"v_cvt_pk_bf16_f32 v{G1 + i}, v{D + 2 * i}, v{D + 2 * i + 1}")
    a(f"s_cmp_ge_u32 s{S_JOB}, 2")
    a("s_cbranch_scc1 L_k1_second")
    a.seg("k1_qk")
    a(f"""
    v_lshrrev_b32 v17, 4, v3
    v_lshlrev_b32 v17, 12, v17
    v_and_b32 v18, 15, v3
    v_lshl_add_u32 v17, v18, 4, v17
    v_lshl_add_u32 v17, v4, 8, v17
    s_mul_i32 s{S_O1}, s{S_JOB}, {KF - QF}
    s_add_u32 s{S_O1}, s{S_O1}, s{S_BLK}
    s_add_u32 s{S_O1}, s{S_O1}, {QF}
    """)
    for c_ in range(8):
        i, k = c_ >> 1, c_ & 1
        a(f"buffer_store_dwordx4 {vr(G1 + 4 * c_, 4)}, v17, s[{SWS}:{SWS + 3}], s{S_O1} offen offset:{1024 * i + 512 * k}")
    a("s_branch L_k1_end")
    a.label("L_k1_second")
    a.seg("k1_c")
    a(f"s_cmp_eq_u32 s{S_JOB}, 3")
    a("s_cbranch_scc1 L_k1_m")

    def pack_store(addr, soffs, nat=False):
        a("s_nop 7")
        a("s_nop 3")
        n = 0
        for i in range(4):
            for kk in range(2):
                t = H + 4 * n
                n += 1
                if nat:
                    b = D + 16 * i + 8 * kk
                    src = [b, b + 2, b + 4, b + 6]
                else:
                    b = D + 16 * i + 4 * kk
                    src = [b, b + 2, b + 8, b + 10]
                for d in range(4):
                    a(f"v_cvt_pk_bf16_f32 v{t + d}, v{src[d]}, v{src[d] + 1}")
                so, imm = soffs(i, kk)
                a(f"buffer_store_dwordx4 {vr(t, 4)}, v{addr}, s[{SWS}:{SWS + 3}], s{so} offen offset:{imm}")

    a.seg("k1_v")
    a(f"""
    v_lshrrev_b32 v17, 4, v3
    v_lshlrev_b32 v17, 10, v17
    v_and_b32 v18, 15, v3
    v_lshl_add_u32 v17, v18, 4, v17
    v_lshl_add_u32 v17, v4, 8, v17
    s_add_u32 s{S_O1}, s{S_BLK}, {VF}
    s_add_u32 s{S_O2}, s{S_O1}, 4096
    """)
    gemm(VA + 4, 32768, 2048, G1, False)
    pack_store(17, lambda i, kk: (S_O1 if i < 2 else S_O2, (i & 1) * 2048 + kk * 512))
    a("s_branch L_k1_end")
    a.label("L_k1_m")
    a.seg("k1_m")
    a(f"s_add_u32 s{S_O1}, s{S_BLK}, {MP}")
    gemm(VA + 4, 32768, 2048, G1, True)
    pack_store(5, lambda i, kk: (S_O1, i * 64 + kk * 32), nat=False)
    if NBK:
        a("s_branch L_k1_end")
        emit_bucket(a, cfg, SWS)
    a.label("L_k1_end")
    stamp_exit(a, cfg, 32, 0, f"s[{SWS}:{SWS + 3}]", TR)
    a.label("L_k1_exit")
    a("s_endpgm")
    return dict(name=name, vgpr=224, accum=224, sgpr=48, grid=NWG + NBK, block=256, lds=65536,
                chains=[["k1_a", "k1_b", "k1_qk"], ["k1_b", "k1_c", "k1_v"], ["k1_b", "k1_c", "k1_m"]] + ([["k1_bk"]] if NBK else []))


def emit_bucket(a, cfg, SWS):
    a.label("L_k1_bucket")
    a.seg("k1_bk")
    DS, SR, RK, AD = 32, 52, 72, 92
    HIST, BASE, WT, STG = 0, 4096, 8192, 16384
    ws = f"s[{SWS}:{SWS + 3}]"
    a(f"""
    s_load_dwordx4 s[20:23], s[0:1], 8
    s_load_dwordx2 s[{SWS}:{SWS + 1}], s[0:1], 88
    s_mov_b32 s6, {E * 4}
    s_mov_b32 s7, 0x00020000
    s_mov_b32 s10, {E * 4}
    s_mov_b32 s11, 0x00020000
    s_mov_b32 s{SWS + 2}, 0x10000000
    s_mov_b32 s{SWS + 3}, 0x00020000
    s_mul_i32 s24, s2, {EPW * 4}
    s_add_u32 s25, s24, 4096
    s_add_u32 s26, s24, 8192
    s_add_u32 s27, s24, 12288
    s_add_u32 s28, s24, 16384
    v_lshlrev_b32 v1, 4, v0                   ; t*16
    v_mov_b32 v4, 0
    v_mov_b32 v5, 0
    v_mov_b32 v6, 0
    v_mov_b32 v7, 0
    ds_write_b128 v1, v[4:7] offset:{HIST}
    v_mov_b32 v8, 1
    s_waitcnt lgkmcnt(0)
    s_mov_b32 s4, s20
    s_and_b32 s5, s21, 0xffff
    s_mov_b32 s8, s22
    s_and_b32 s9, s23, 0xffff
    s_and_b32 s{SWS + 1}, s{SWS + 1}, 0xffff
    """)
    for k in range(5):
        a(f"buffer_load_dwordx4 {vr(DS + 4 * k, 4)}, v1, s[8:11], s{24 + k} offen")
    for k in range(5):
        a(f"buffer_load_dwordx4 {vr(SR + 4 * k, 4)}, v1, s[4:7], s{24 + k} offen")
    a("s_barrier")
    a(f"v_cmp_gt_u32 vcc, {(EPW - 4096) // 4}, v0")
    a("v_mov_b32 v9, 10239")
    a("s_waitcnt vmcnt(5)")
    for j in range(4):
        a(f"v_cndmask_b32 v{DS + 16 + j}, v9, v{DS + 16 + j}, vcc")
    for i in range(20):
        a(f"v_lshrrev_b32 v{AD + i}, 4, v{DS + i}")
        a(f"v_lshlrev_b32 v{AD + i}, 2, v{AD + i}")
        a(f"ds_add_rtn_u32 v{RK + i}, v{AD + i}, v8 offset:{HIST}")
    a("s_waitcnt vmcnt(0)")
    for i in range(20):
        if cfg.get("nperm"):
            a(f"v_bfe_u32 v4, v{DS + i}, 2, 2")
            a(f"v_lshl_or_b32 v{SR + i}, v{SR + i}, 8, v4")
            a(f"v_and_b32 v{DS + i}, 3, v{DS + i}")
            a(f"v_lshl_or_b32 v{SR + i}, v{DS + i}, 2, v{SR + i}")
        else:
            a(f"v_and_b32 v{DS + i}, 15, v{DS + i}")
            a(f"v_lshl_or_b32 v{SR + i}, v{SR + i}, 8, v{DS + i}")
    a("s_waitcnt lgkmcnt(0)")
    a("s_barrier")
    a(f"""
    ds_read_b128 v[4:7], v1 offset:{HIST}
    v_lshrrev_b32 v2, 6, v0
    v_lshlrev_b32 v2, 2, v2                   ; wave*4
    s_waitcnt lgkmcnt(0)
    v_add_u32 v10, v4, v5
    v_add_u32 v11, v10, v6
    v_add_u32 v12, v11, v7
    v_mov_b32 v13, v12
    s_nop 1
    v_add_u32_dpp v13, v13, v13 row_shr:1 row_mask:0xf bank_mask:0xf
    s_nop 1
    v_add_u32_dpp v13, v13, v13 row_shr:2 row_mask:0xf bank_mask:0xf
    s_nop 1
    v_add_u32_dpp v13, v13, v13 row_shr:4 row_mask:0xf bank_mask:0xf
    s_nop 1
    v_add_u32_dpp v13, v13, v13 row_shr:8 row_mask:0xf bank_mask:0xf
    s_nop 1
    v_add_u32_dpp v13, v13, v13 row_bcast:15 row_mask:0xa bank_mask:0xf
    s_nop 1
    v_add_u32_dpp v13, v13, v13 row_bcast:31 row_mask:0xc bank_mask:0xf
    s_nop 1
    v_readlane_b32 s29, v13, 63
    s_nop 3
    v_mov_b32 v14, s29
    ds_write_b32 v2, v14 offset:{WT}
    v_mov_b32 v3, 0
    s_waitcnt lgkmcnt(0)
    s_barrier
    ds_read_b128 v[16:19], v3 offset:{WT}
    v_sub_u32 v13, v13, v12
    s_waitcnt lgkmcnt(0)
    v_readfirstlane_b32 s40, v16
    v_readfirstlane_b32 s41, v17
    v_readfirstlane_b32 s42, v18
    v_readfirstlane_b32 s43, v2
    s_nop 3
    s_cmp_gt_u32 s43, 0
    s_cselect_b32 s40, s40, 0
    s_cmp_gt_u32 s43, 4
    s_cselect_b32 s41, s41, 0
    s_cmp_gt_u32 s43, 8
    s_cselect_b32 s42, s42, 0
    s_add_u32 s40, s40, s41
    s_add_u32 s40, s40, s42
    v_add_u32 v20, s40, v13
    v_add_u32 v21, v20, v4
    v_add_u32 v22, v20, v10
    v_add_u32 v23, v20, v11
    ds_write_b128 v1, v[20:23] offset:{BASE}
    v_lshl_or_b32 v24, v4, 16, v20
    v_lshl_or_b32 v25, v5, 16, v21
    v_lshl_or_b32 v26, v6, 16, v22
    v_lshl_or_b32 v27, v7, 16, v23
    v_lshlrev_b32 v28, 10, v0                 ; 4t*256
    s_lshl_b32 s29, s2, 2
    s_add_u32 s29, s29, {TAB}
    v_cmp_gt_u32 vcc, 160, v0
    s_and_saveexec_b64 s[30:31], vcc
    s_cbranch_execz L_k1_bk2
    buffer_store_dword v24, v28, {ws}, s29 offen
    buffer_store_dword v25, v28, {ws}, s29 offen offset:256
    buffer_store_dword v26, v28, {ws}, s29 offen offset:512
    buffer_store_dword v27, v28, {ws}, s29 offen offset:768
    """)
    a.label("L_k1_bk2")
    a("s_mov_b64 exec, s[30:31]")
    a("s_waitcnt lgkmcnt(0)")
    a("s_barrier")
    for i in range(20):
        a(f"ds_read_b32 v{AD + i}, v{AD + i} offset:{BASE}")
    for i in range(20):
        if i == 0:
            a("s_waitcnt lgkmcnt(0)")
        a(f"v_add_lshl_u32 v{AD + i}, v{AD + i}, v{RK + i}, 2")
        a(f"ds_write_b32 v{AD + i}, v{SR + i} offset:{STG}")
    a("s_waitcnt lgkmcnt(0)")
    a("s_barrier")
    for k in range(5):
        a(f"ds_read_b128 {vr(DS + 4 * k, 4)}, v1 offset:{STG + 4096 * k}")
    a(f"s_mul_i32 s24, s2, {RECS}")
    a(f"s_add_u32 s24, s24, {REC}")
    for k in range(5):
        a(f"s_waitcnt lgkmcnt({4 - k})")
        a(f"buffer_store_dwordx4 {vr(DS + 4 * k, 4)}, v1, {ws}, s24 offen")
        a(f"s_add_u32 s24, s24, 4096")
```

```python
from layout import *
from asmlib import stamp_entry, stamp_exit

CFG = {}
MF = "v_mfma_f32_16x16x32_bf16"


class R:
    pass


def setup(G):
    R.G = G
    NQ = 2 * G
    R.NQ = NQ
    R.O = 256 - NQ * 32
    if G == 2:
        R.S = 64
        R.N = 96
        R.P = 112
        R.E = 32
        R.T = 48
        R.L = 52
    R.VLDS, R.VL16, R.VT, R.VT2, R.VT3 = 20, 21, 22, 23, 24
    R.AQ = 0
    R.AK = NQ * 16
    R.AV = R.AK + 32


S_SRD = 4
S_W, S_SRC, S_M0, S_CNT, S_THR, S_SPLIT, S_QT, S_T0, S_T1 = 8, 9, 10, 11, 12, 13, 14, 15, 16
S_Q0 = 20
S_PO, S_PL = 28, 29


def vr(b, n):
    return f"v[{b}:{b + n - 1}]"


def ar(b, n):
    return f"a[{b}:{b + n - 1}]"


def qbs(X):
    return list(range(R.G)) if X == "A" else list(range(R.G, 2 * R.G))


def St(qb, kb):
    return R.S + (qb * 2 + kb) * 4


def mfma_qk(qb, kb, s, czero=False):
    d = vr(St(qb, kb), 4)
    c = ("0" if czero else vr(R.N + 4 * qb, 4)) if s == 0 else d
    return f"{MF} {d}, {ar(R.AK + (kb * 4 + s) * 4, 4)}, {ar(R.AQ + (qb * 4 + s) * 4, 4)}, {c}"


def mfma_pv(qb, db):
    o = vr(R.O + (qb * 8 + db) * 4, 4)
    return f"{MF} {o}, {ar(R.AV + 4 * db, 4)}, {vr(R.P + 4 * qb, 4)}, {o}"


def qk_order(X, nkb=2):
    mode = CFG.get("qkord", "chain")
    out = []
    if mode == "chain":
        for qb in qbs(X):
            for kb in range(nkb):
                for s in range(4):
                    out.append((qb, kb, s))
    elif mode == "chaink":
        for kb in range(nkb):
            for qb in qbs(X):
                for s in range(4):
                    out.append((qb, kb, s))
    elif mode == "shareA":
        for s in range(4):
            for kb in range(nkb):
                for qb in qbs(X):
                    out.append((qb, kb, s))
    elif mode == "shareB":
        for s in range(4):
            for qb in qbs(X):
                for kb in range(nkb):
                    out.append((qb, kb, s))
    return out


def pv_order(X):
    mode = CFG.get("pvord", "shareA")
    out = []
    if mode == "shareA":
        for db in range(8):
            for qb in qbs(X):
                out.append((qb, db))
    else:
        for qb in qbs(X):
            for db in range(8):
                out.append((qb, db))
    return out


def sm_ops(X, nkb, tag):
    ops = []
    E = R.E
    pend = []
    n = 0
    seq = []
    for qb in qbs(X):
        for kb in range(nkb):
            for pr in range(2):
                seq.append((qb, kb, pr))
    first = {qb: True for qb in qbs(X)}
    for idx, (qb, kb, pr) in enumerate(seq):
        e0, e1 = E + (2 * idx) % 8, E + (2 * idx + 1) % 8
        s0 = St(qb, kb) + 2 * pr
        T = R.T + qb
        x0 = (f"v_exp_f32 v{e0}, v{s0}", 8)
        x1 = (f"v_exp_f32 v{e1}, v{s0 + 1}", 8)
        ops.append(x0)
        if len(pend) == 3:
            ops.append(pend.pop(0))
        ops.append(x1)
        ops += pend
        pend = []
        if first[qb]:
            pend.append((f"v_add_f32 v{T}, v{e0}, v{e1}", 4))
            first[qb] = False
        else:
            pend.append((f"v_add_f32 v{T}, v{T}, v{e0}", 4))
            pend.append((f"v_add_f32 v{T}, v{T}, v{e1}", 4))
        pend.append((f"v_cvt_pk_bf16_f32 v{R.P + 4 * qb + 2 * kb + pr}, v{e0}, v{e1}", 4))
    if nkb == 1:
        for qb in qbs(X):
            ops.append((f"v_mov_b32 v{R.P + 4 * qb + 2}, 0", 4))
            ops.append((f"v_mov_b32 v{R.P + 4 * qb + 3}, 0", 4))
    ops += pend[:-1]
    q = qbs(X)
    if R.G == 2:
        ops.append((f"v_max_f32 v{R.VT}, v{R.T + q[0]}, v{R.T + q[1]}", 4))
    else:
        ops.append((f"v_max3_f32 v{R.VT}, v{R.T + q[0]}, v{R.T + q[1]}, v{R.T + q[2]}", 4))
    ops.append((f"v_cmp_lt_f32 vcc, s{S_THR}, v{R.VT}", 4))
    ops.append(pend[-1])
    ops.append((f"s_cbranch_vccnz L_slow_{tag}", 4))
    ops.append((f"L_back_{tag}:", 0))
    for qb in q:
        ops.append((f"v_add_f32 v{R.L + qb}, v{R.L + qb}, v{R.T + qb}", 4))
    if CFG.get("noexp"):
        ops = [o for o in ops if not o[0].startswith(("v_exp", "v_cvt", "v_add"))]
    return ops


def sm_streams(X, nkb, tag, order):
    chk = not CFG.get("nocheck")
    E = R.E
    exps, smalls = [], []
    first = {qb: True for qb in qbs(X)}
    idx = 0
    for (qb, kb) in order:
        if kb >= nkb:
            continue
        for pr in range(2):
            s0 = St(qb, kb) + 2 * pr
            if chk:
                e0, e1 = E + (2 * idx) % 16, E + (2 * idx + 1) % 16
            else:
                e0, e1 = s0, s0 + 1
            exps.append(f"v_exp_f32 v{e0}, v{s0}")
            exps.append(f"v_exp_f32 v{e1}, v{s0 + 1}")
            T = (R.T if chk else R.L) + qb
            if first[qb] and chk:
                smalls.append((f"v_add_f32 v{T}, v{e0}, v{e1}", 2 * idx + 1))
                first[qb] = False
            else:
                smalls.append((f"v_add_f32 v{T}, v{T}, v{e0}", 2 * idx))
                smalls.append((f"v_add_f32 v{T}, v{T}, v{e1}", 2 * idx + 1))
            smalls.append((f"v_cvt_pk_bf16_f32 v{R.P + 4 * qb + 2 * kb + pr}, v{e0}, v{e1}", 2 * idx + 1))
            idx += 1
    last = 2 * idx - 1
    if nkb == 1:
        for qb in qbs(X):
            smalls.insert(0, (f"v_mov_b32 v{R.P + 4 * qb + 2}, 0", -1))
            smalls.insert(0, (f"v_mov_b32 v{R.P + 4 * qb + 3}, 0", -1))
    if chk:
        q = qbs(X)
        c = smalls.pop()
        smalls.append((f"v_max_f32 v{R.VT}, v{R.T + q[0]}, v{R.T + q[1]}", last))
        smalls.append((f"v_cmp_lt_f32 vcc, s{S_THR}, v{R.VT}", last))
        smalls.append(c)
        smalls.append((f"s_cbranch_vccnz L_slow_{tag}\nL_back_{tag}:", last))
        for qb in q:
            smalls.append((f"v_add_f32 v{R.L + qb}, v{R.L + qb}, v{R.T + qb}", last))
    if CFG.get("noexp"):
        exps = []
        smalls = [(t, -1) for t, _ in smalls if not t.startswith(("v_cvt", "v_add"))]
    return exps, smalls


def schedule(gaps, fixed, exps, smalls, g0, g1, exp_ready, base=8):
    n = g1 - g0 + 1
    for nextra in range(0, 4 * n):
        cap = {}
        for i, g in enumerate(range(g0, g1 + 1)):
            k = (i + 1) * nextra // n - i * nextra // n
            cap[g] = base + 4 * k
        out = {g: [] for g in range(g0, g1 + 1)}
        ei = si = 0
        issued = {}
        pos = 0
        for i, g in enumerate(range(g0, g1 + 1)):
            pos += 1
            pos += 1 if fixed[g] else 0
            rem = cap[g] - fixed[g]
            while rem > 0:
                def small_ready(j):
                    if j >= len(smalls):
                        return False
                    d = smalls[j][1]
                    return d < 0 or (d in issued and pos - issued[d] >= 2)
                e_ok = ei < len(exps) and exp_ready[ei] <= g
                nready = 0
                j = si
                while small_ready(j) and nready < 2:
                    nready += 1
                    j += 1
                behind = ei / max(len(exps), 1) <= (i + 0.5) / n * 1.12
                if e_ok and rem >= 8 and (nready * 4 < min(rem, 8) or behind):
                    out[g].append(exps[ei]); issued[ei] = pos; ei += 1; pos += 1; rem -= 8
                elif nready:
                    out[g].append(smalls[si][0]); si += 1; pos += 1; rem -= 4
                else:
                    break
        if ei == len(exps) and si == len(smalls):
            for g in out:
                gaps[g] += out[g]
            return nextra
    raise RuntimeError("cannot schedule")


def emit_rowmax(a, qb, nkb, dst):
    s = St(qb, 0)
    a(f"v_max3_f32 v{dst}, v{s}, v{s + 1}, v{s + 2}")
    if nkb == 2:
        a(f"v_max3_f32 v{dst}, v{dst}, v{s + 3}, v{s + 4}")
        a(f"v_max3_f32 v{dst}, v{dst}, v{s + 5}, v{s + 6}")
        a(f"v_max_f32 v{dst}, v{dst}, v{s + 7}")
    else:
        a(f"v_max_f32 v{dst}, v{dst}, v{s + 3}")
    for sw in ("v_permlane32_swap_b32", "v_permlane16_swap_b32"):
        a(f"v_mov_b32 v{R.VT3}, v{dst}")
        a("s_nop 1")
        a(f"{sw} v{dst}, v{R.VT3}")
        a("s_nop 1")
        a(f"v_max_f32 v{dst}, v{dst}, v{R.VT3}")


def emit_slow(a, X, nkb, tag):
    a.seg("slow_" + tag)
    a.label(f"L_slow_{tag}")
    a("s_nop 15")
    E = R.E
    for qb in qbs(X):
        emit_rowmax(a, qb, nkb, R.VT)
        a(f"v_max_f32 v{R.VT}, 0, v{R.VT}")
        a(f"v_exp_f32 v{R.VT2}, -v{R.VT}")
        a("s_nop 0")
        a(f"v_mul_f32 v{R.L + qb}, v{R.L + qb}, v{R.VT2}")
        for i in range(32):
            o = R.O + qb * 32 + i
            a(f"v_mul_f32 v{o}, v{o}, v{R.VT2}")
        for i in range(4):
            a(f"v_sub_f32 v{R.N + 4 * qb + i}, v{R.N + 4 * qb + i}, v{R.VT}")
        for k in range(2 * nkb):
            s = St(qb, 0) + 2 * k
            a(f"v_sub_f32 v{s}, v{s}, v{R.VT}")
            a(f"v_sub_f32 v{s + 1}, v{s + 1}, v{R.VT}")
            a(f"v_exp_f32 v{E}, v{s}")
            a(f"v_exp_f32 v{E + 1}, v{s + 1}")
            a("s_nop 0")
            T = R.T + qb
            if k == 0:
                a(f"v_add_f32 v{T}, v{E}, v{E + 1}")
            else:
                a(f"v_add_f32 v{T}, v{T}, v{E}")
                a(f"v_add_f32 v{T}, v{T}, v{E + 1}")
            a(f"v_cvt_pk_bf16_f32 v{R.P + 4 * qb + k}, v{E}, v{E + 1}")
    a("s_nop 7")
    a(f"s_branch L_back_{tag}")


def distribute(gaps, fixed_cost, ops, g0, g1):
    n = g1 - g0 + 1
    tot = sum(c for _, c in ops) + sum(fixed_cost[g] for g in range(g0, g1 + 1))
    per = tot / n
    acc = 0.0
    k = 0
    for idx, g in enumerate(range(g0, g1 + 1)):
        acc += fixed_cost[g]
        target = per * (idx + 1)
        while k < len(ops) and (g == g1 or acc + ops[k][1] / 2 <= target or ops[k][1] == 0):
            gaps[g].append(ops[k][0])
            acc += ops[k][1]
            k += 1


def emit_body(a, cfg, tag, last=False, nkb=2):
    PF = cfg["PF"]
    G = R.G
    PH = 8 * G
    mf = []
    pvB = pv_order("B")
    qkB = qk_order("B", nkb)
    pvA = pv_order("A")
    qkA = qk_order("A")
    mf += [mfma_pv(*x) for x in pvB]
    mf += [mfma_qk(*x) for x in qkB]
    pA0 = len(mf)
    mf += [mfma_pv(*x) for x in pvA]
    qA0 = len(mf)
    if not last:
        mf += [mfma_qk(*x) for x in qkA]
    nm = len(mf)
    pre = {g: [] for g in range(nm + 1)}
    post = {g: [] for g in range(nm + 1)}
    cost = {g: 0 for g in range(nm + 1)}

    def put(d, g, text, c=4):
        if cfg.get("nods") and text.startswith("ds_read") and not last:
            return
        d[g].append(text)
        cost[g] += c

    for db in range(8):
        g = max(i for i, x in enumerate(pvB) if x[1] == db)
        put(pre, g, f"ds_read_b128 {ar(R.AV + 4 * db, 4)}, v{R.VLDS} offset:{8192 + 1024 * db}")
    if not last:
        kg = []
        for kb in range(2):
            for s in range(4):
                g = PH + max(i for i, x in enumerate(qkB) if x[1] == kb and x[2] == s)
                kg.append((g, kb * 4 + s))
        kg.sort()
        lastg = -1
        nk_before = 0
        for g, f in kg:
            g = max(g, lastg + cfg.get("kstep", 2))
            lastg = g
            if g < pA0:
                nk_before += 1
            put(pre, g, f"ds_read_b128 {ar(R.AK + 4 * f, 4)}, v{R.VLDS} offset:{1024 * f}")
        assert lastg < qA0 - 4, lastg
        put(post, pA0 - 1, f"s_waitcnt lgkmcnt({nk_before})")
        put(post, qA0 - 1, "s_waitcnt lgkmcnt(0)")
        put(pre, 0, f"s_add_u32 s{S_M0}, s{S_M0}, 0x4000")
        put(pre, 2, f"s_and_b32 m0, s{S_M0}, 0x1ffff")
        put(pre, 4, f"s_add_u32 s{S_SRC}, s{S_SRC}, 0x2000")
        put(pre, 6, f"s_sub_u32 s{S_CNT}, s{S_CNT}, 1")
        if not cfg.get("nodma"):
            for k, g in enumerate(cfg.get("dgaps", [qA0 - 6, qA0 - 2, qA0 + 2, qA0 + 6])):
                put(pre, g, f"buffer_load_dwordx4 v{R.VL16}, s[{S_SRD}:{S_SRD + 3}], s{S_SRC} offen offset:{1024 * k} lds", 4)
        put(pre, nm - 2, f"v_add_u32 v{R.VLDS}, 0x4000, v{R.VLDS}")
        put(pre, nm - 1, f"v_and_b32 v{R.VLDS}, 0x1ffff, v{R.VLDS}")
        put(post, nm - 2, f"s_cmp_lg_u32 s{S_CNT}, 0")
        put(post, nm - 1, f"s_cbranch_scc1 L_body_{tag}")
    else:
        put(post, pA0 - 1, "s_waitcnt lgkmcnt(0)")
    mid = {g: [] for g in range(nm + 1)}
    lead = cfg.get("lead", 3)

    def tile_order(qk, off):
        fin = {}
        for i, (qb, kb, s_) in enumerate(qk):
            fin[(qb, kb)] = i
        order = sorted(fin, key=lambda t: fin[t])
        return order, fin

    oA, finA = tile_order(qkA, 0)
    oA = [t for t in oA if t[1] < nkb]
    exA, smA = sm_streams("A", nkb, tag + "A", oA)
    rdyA = [max(0, finA[t] - len(qkA) + 1 + lead) for t in oA for _ in range(4)]
    xa = schedule(mid, cost, exA, smA, 0, pA0 - 1, rdyA)
    oB, finB = tile_order(qkB, 0)
    exB, smB = sm_streams("B", nkb, tag + "B", oB)
    rdyB = [max(pA0, PH + finB[t] + 1 + lead) for t in oB for _ in range(4)]
    xb = schedule(mid, cost, exB, smB, pA0, nm - 1 - (0 if last else cfg.get("tail", 0)), rdyB)
    if tag == "m":
        tot = sum(max(16, 8 + cost[g] + sum(8 if t.startswith("v_exp") else 4 for t in mid[g])) for g in range(nm))
        print("body extra slots", xa, xb, "model cycles", tot)
    a.seg("body_" + tag)
    a.label(f"L_body_{tag}")
    a(f"s_waitcnt vmcnt({4 * (PF - 1)})")
    a("s_barrier")
    for g in range(nm):
        a(mf[g])
        for t in pre[g] + mid[g] + post[g]:
            a(t)
    if last:
        a("s_nop 1")
        for x in pvB:
            a(mfma_pv(*x))


def emit_k2(a, cfg):
    PF = cfg["PF"]
    CFG.clear()
    CFG.update(cfg)
    setup(2)
    NQ = R.NQ
    NWG = 240
    LIM = cfg.get("lim", NWG)
    name = "k2_attn_kernel"
    a.raw(".text")
    a.raw(f".globl {name}\n.p2align 8\n.type {name},@function")
    a.label(name)
    a.seg("k2_pro")
    a(f"""
    s_cmp_ge_u32 s2, {LIM}
    s_cbranch_scc1 L_k2_end
    s_memrealtime s[56:57]
    s_load_dwordx2 s[{S_SRD}:{S_SRD + 1}], s[0:1], 88
    v_lshrrev_b32 v1, 6, v0
    v_and_b32 v2, 63, v0
    v_readfirstlane_b32 s{S_W}, v1
    v_lshlrev_b32 v{R.VL16}, 4, v2
    s_and_b32 s{S_T0}, s2, 7
    s_mul_i32 s{S_T0}, s{S_T0}, {NWG // 8}
    s_lshr_b32 s{S_T1}, s2, 3
    s_add_u32 s{S_T0}, s{S_T0}, s{S_T1}          ; g
    s_mul_i32 s{S_SPLIT}, s{S_T0}, 1639
    s_lshr_b32 s{S_SPLIT}, s{S_SPLIT}, 16        ; split = g / 40
    s_mul_i32 s{S_T1}, s{S_SPLIT}, 40
    s_sub_u32 s{S_QT}, s{S_T0}, s{S_T1}          ; q tile
    s_mov_b32 s{S_SRD + 2}, 0x10000000
    s_mov_b32 s{S_SRD + 3}, 0x00020000
    s_mov_b32 s{S_THR}, 0x4b800000               ; 2^24
    s_lshl_b32 s{S_M0}, s{S_W}, 12
    s_mul_i32 s{S_SRC}, s{S_SPLIT}, {52 * 8192}
    s_add_u32 s{S_SRC}, s{S_SRC}, s{S_M0}
    s_mov_b32 s{S_T1}, {KF}
    s_cmp_lt_u32 s{S_W}, 2
    s_cselect_b32 s{S_T1}, s{S_T1}, {VF - 8192 - 8192}
    s_add_u32 s{S_SRC}, s{S_SRC}, s{S_T1}
    s_lshl_b32 s{S_Q0}, s{S_QT}, 16
    s_lshl_b32 s{S_T1}, s{S_W}, 14
    s_add_u32 s{S_Q0}, s{S_Q0}, s{S_T1}
    s_add_u32 s{S_Q0}, s{S_Q0}, {QF}
    s_add_u32 s{S_Q0 + 1}, s{S_Q0}, 0x1000
    s_add_u32 s{S_Q0 + 2}, s{S_Q0}, 0x2000
    s_add_u32 s{S_Q0 + 3}, s{S_Q0}, 0x3000
    s_mul_i32 s{S_T1}, s{S_QT}, 6
    s_add_u32 s{S_T1}, s{S_T1}, s{S_SPLIT}
    s_lshl_b32 s{S_PO}, s{S_T1}, 16
    s_lshl_b32 s{S_T0}, s{S_W}, 14
    s_add_u32 s{S_PO}, s{S_PO}, s{S_T0}
    s_add_u32 s{S_PO}, s{S_PO}, {PO}
    s_lshl_b32 s{S_PL}, s{S_T1}, 13
    s_lshl_b32 s{S_T0}, s{S_W}, 11
    s_add_u32 s{S_PL}, s{S_PL}, s{S_T0}
    s_add_u32 s{S_PL}, s{S_PL}, {PL}
    s_mov_b32 s{S_CNT}, 51
    s_cmp_eq_u32 s{S_SPLIT}, 5
    s_cselect_b32 s{S_CNT}, 52, s{S_CNT}
    s_mov_b32 m0, s{S_M0}
    s_waitcnt lgkmcnt(0)
    s_and_b32 s{S_SRD + 1}, s{S_SRD + 1}, 0xffff
    """)
    srd = f"s[{S_SRD}:{S_SRD + 3}]"

    def dma_stage():
        for k in range(4):
            a(f"buffer_load_dwordx4 v{R.VL16}, {srd}, s{S_SRC} offen offset:{1024 * k} lds")

    def dma_adv():
        a(f"s_add_u32 s{S_M0}, s{S_M0}, 0x4000")
        a(f"s_and_b32 m0, s{S_M0}, 0x1ffff")
        a(f"s_add_u32 s{S_SRC}, s{S_SRC}, 0x2000")

    dma_stage()
    for i in range(4 * NQ):
        a(f"buffer_load_dwordx4 {ar(4 * i, 4)}, v{R.VL16}, {srd}, s{S_Q0 + (i >> 2)} offen offset:{1024 * (i & 3)}")
    for st in range(PF):
        dma_adv()
        dma_stage()
    for i in range(32 * NQ):
        a(f"v_mov_b32 v{R.O + i}, 0")
    for i in range(32):
        a(f"v_accvgpr_write_b32 a{R.AV + i}, 0")
    for qb in qbs("B"):
        for i in range(4):
            a(f"v_mov_b32 v{R.P + 4 * qb + i}, 0")
    for qb in range(NQ):
        a(f"v_mov_b32 v{R.L + qb}, 0")
    a(f"s_waitcnt vmcnt({4 * PF})")
    a("s_barrier")
    for s in range(8):
        a(f"ds_read_b128 {ar(R.AK + 4 * s, 4)}, v{R.VL16} offset:{1024 * s}")
    a(f"v_add_u32 v{R.VLDS}, 0x4000, v{R.VL16}")
    a("s_waitcnt lgkmcnt(0)")
    for qb in range(NQ):
        for kb in range(2):
            for s in range(4):
                a(mfma_qk(qb, kb, s, czero=True))
    a("s_nop 7")
    for qb in range(NQ):
        emit_rowmax(a, qb, 2, R.VT)
        for i in range(4):
            a(f"v_sub_f32 v{R.N + 4 * qb + i}, 0, v{R.VT}")
        if qb in qbs("A"):
            for i in range(8):
                a(f"v_sub_f32 v{St(qb, 0) + i}, v{St(qb, 0) + i}, v{R.VT}")
    if cfg.get("noexp"):
        for k in range(8):
            a(f"v_exp_f32 v{R.E}, v{R.S + 2 * k}")
            a(f"v_exp_f32 v{R.E + 1}, v{R.S + 2 * k + 1}")
            a("s_nop 0")
            a(f"v_cvt_pk_bf16_f32 v{R.P + k}, v{R.E}, v{R.E + 1}")
            a(f"v_cvt_pk_bf16_f32 v{R.P + 15 - k}, v{R.E + 1}, v{R.E}")
        for qb in range(NQ):
            a(f"v_mov_b32 v{R.T + qb}, 1.0")
    if cfg.get("nods"):
        a("s_waitcnt vmcnt(0)")
        a("s_barrier")
        for j in range(8):
            a(f"ds_read_b128 {ar(R.AV + 4 * j, 4)}, v{R.VLDS} offset:{8192 + 1024 * j}")
        a("s_waitcnt lgkmcnt(0)")
    if cfg.get("stamp"):
        a("s_memtime s[30:31]")
        a("s_memrealtime s[32:33]")
        a("s_waitcnt lgkmcnt(0)")
    a.raw(".p2align 6")
    emit_body(a, cfg, "m")
    a.seg("k2_mid")
    if cfg.get("stamp"):
        a("s_memtime s[34:35]")
        a("s_memrealtime s[36:37]")
        a(f"s_load_dwordx2 s[40:41], s[0:1], 80")
        a("s_waitcnt lgkmcnt(0)")
        a("s_sub_u32 s34, s34, s30")
        a("s_sub_u32 s36, s36, s32")
        a("v_mov_b32 v2, s34")
        a("v_mov_b32 v3, s36")
        a("s_and_b32 s41, s41, 0xffff")
        a("s_mov_b32 s42, 256")
        a("s_mov_b32 s43, 0x00020000")
        a("s_lshr_b32 s44, s2, 3")
        a("s_lshl_b32 s44, s44, 3")
        a("v_mov_b32 v4, s44")
        a("s_and_b32 s45, s2, 7")
        a(f"s_or_b32 s45, s45, s{S_W}")
        a("s_cmp_lg_u32 s45, 0")
        a("s_cbranch_scc1 L_nostamp")
        a("buffer_store_dwordx2 v[2:3], v4, s[40:43], 0 offen")
        a.label("L_nostamp")
    a(f"s_cmp_eq_u32 s{S_SPLIT}, 5")
    a("s_cbranch_scc1 L_body_lm")
    emit_body(a, cfg, "lf", last=True, nkb=2)
    a("s_branch L_k2_epi")
    emit_body(a, cfg, "lm", last=True, nkb=1)
    a.label("L_k2_epi")
    a.seg("k2_epi")
    a(f"""
    v_and_b32 v2, 15, v0
    v_lshlrev_b32 v2, 8, v2
    v_bfe_u32 v3, v0, 4, 2
    v_lshl_add_u32 v2, v3, 4, v2
    v_lshrrev_b32 v3, 1, v{R.VL16}
    s_nop 7
    """)
    n = 0
    for qb in range(NQ):
        a(f"s_add_u32 s{S_T0}, s{S_PO}, {qb * 4096}")
        for p in range(4):
            t = 32 + 4 * (n % 4)
            n += 1
            for d in range(4):
                src = R.O + (qb * 8 + 2 * p) * 4 + 2 * d
                a(f"v_cvt_pk_bf16_f32 v{t + d}, v{src}, v{src + 1}")
            a(f"buffer_store_dwordx4 {vr(t, 4)}, v2, {srd}, s{S_T0} offen offset:{64 * p}")
    for qb in range(NQ):
        a(f"v_sub_f32 v{4 + 2 * qb}, 0, v{R.N + 4 * qb}")
        a(f"v_mov_b32 v{5 + 2 * qb}, v{R.L + qb}")
        a(f"buffer_store_dwordx2 v[{4 + 2 * qb}:{5 + 2 * qb}], v3, {srd}, s{S_PL} offen offset:{512 * qb}")
    a("s_waitcnt vmcnt(0)")
    if cfg.get("stamp"):
        a("s_memrealtime s[58:59]")
        a("s_waitcnt lgkmcnt(0)")
        a("v_mov_b32 v4, s56")
        a("v_mov_b32 v5, s32")
        a("s_add_u32 s36, s36, s32")
        a("v_mov_b32 v6, s36")
        a("v_mov_b32 v7, s58")
        a("s_lshl_b32 s60, s2, 6")
        a(f"s_lshl_b32 s61, s{S_W}, 4")
        a("s_add_u32 s60, s60, s61")
        a(f"s_add_u32 s60, s60, {OVF + 0x400000}")
        a("v_mov_b32 v8, 0")
        a(f"buffer_store_dwordx4 v[4:7], v8, {srd}, s60 offen")
        a("s_waitcnt vmcnt(0)")
    stamp_exit(a, cfg, 56, 2, srd, TR)
    a.label("L_k2_end")
    a("s_endpgm")
    if not cfg.get("nocheck"):
        for tag, nkb in (("m", 2), ("lf", 2), ("lm", 1)):
            for X in "AB":
                emit_slow(a, X, nkb, tag + X)
    return dict(name=name, vgpr=384, accum=256, sgpr=64, grid=NWG, block=256, lds=131072,
                chains=[["k2_pro", "body_m", "body_m", "k2_mid", "body_lf", "k2_epi"],
                        ["body_m", "k2_mid", "body_lm", "k2_epi"]] +
                       ([] if cfg.get("nocheck") else [["slow_" + t + X] for t in ("m", "lf", "lm") for X in "AB"]))
```

```python
from layout import *
from asmlib import stamp_entry, stamp_exit

CFG = {}
MF = "v_mfma_f32_16x16x32_bf16"
NWG = 240
NQ = 4
CAP = 64
OVFCNT = CNT + 10239 * 64

O, S, NM, P, E_, T, L = 128, 64, 96, 112, 32, 48, 52
VLDS, VL16, VT, VT2, VT3, VOOB = 20, 21, 22, 23, 24, 25
ED, ES, ER = 32, 38, 44
AQ, AK, AV = 0, 64, 96
S_SRD = 4
S_W, S_SRC, S_M0, S_CNT, S_THR, S_SPLIT, S_QT, S_T0, S_T1 = 8, 9, 10, 11, 12, 13, 14, 15, 16
S_LEFT, S_EV, S_NB, S_MODE = 17, 18, 19, 30
S_Q0 = 20
S_PO, S_PL, S_SRC0, S_U = 24, 25, 26, 27
S_CNTB, S_LSTB = 28, 29
SRD = f"s[{S_SRD}:{S_SRD + 3}]"
LDS_FLAG = 131072


def vr(b, n):
    return f"v[{b}:{b + n - 1}]"


def ar(b, n):
    return f"a[{b}:{b + n - 1}]"


def qbs(X):
    return [0, 1] if X == "A" else [2, 3]


def St(qb, kb):
    return S + (qb * 2 + kb) * 4


def mfma_qk(qb, kb, s, czero=False):
    d = vr(St(qb, kb), 4)
    c = ("0" if czero else vr(NM + 4 * qb, 4)) if s == 0 else d
    return f"{MF} {d}, {ar(AK + (kb * 4 + s) * 4, 4)}, {ar(AQ + (qb * 4 + s) * 4, 4)}, {c}"


def mfma_pv(qb, db):
    o = vr(O + (qb * 8 + db) * 4, 4)
    return f"{MF} {o}, {ar(AV + 4 * db, 4)}, {vr(P + 4 * qb, 4)}, {o}"


def qk_order(X, nkb=2):
    return [(qb, kb, s) for s in range(4) for kb in range(nkb) for qb in qbs(X)]


def pv_order(X):
    return [(qb, db) for qb in qbs(X) for db in range(8)]


class Op:
    def __init__(self, text, cost, est=0, lst=10 ** 6, deps=(), stream=None):
        self.text, self.cost, self.est, self.lst, self.deps, self.stream = text, cost, est, lst, list(deps), stream
        self.pos = None


def sm_group(X, nkb, tag, chk, rdy, dl):
    ops = []
    idx = 0
    q = qbs(X)
    lastadd = {}
    prev_small = None
    for qb in q:
        d = dl[qb] if not chk else min(dl.values())
        if nkb == 1:
            for k in (2, 3):
                ops.append(Op(f"v_mov_b32 v{P + 4 * qb + k}, 0", 4, rdy["p", qb], d - 1, stream="s" + X))
        for kb in range(nkb):
            for pr in range(2):
                s0 = St(qb, kb) + 2 * pr
                e0, e1 = (E_ + (2 * idx) % 16, E_ + (2 * idx + 1) % 16) if chk else (s0, s0 + 1)
                x0 = Op(f"v_exp_f32 v{e0}, v{s0}", 8, rdy[qb, kb], d - 2, stream="x" + X)
                x1 = Op(f"v_exp_f32 v{e1}, v{s0 + 1}", 8, rdy[qb, kb], d - 2, stream="x" + X)
                ops += [x0, x1]
                acc = (T if chk else L) + qb
                dadd = d - 1 if chk else dl["end"]
                c = Op(f"v_cvt_pk_bf16_f32 v{P + 4 * qb + 2 * kb + pr}, v{e0}, v{e1}", 4, rdy["p", qb], d - 1, [x0, x1], stream="c" + X)
                if chk and qb not in lastadd:
                    a1 = Op(f"v_add_f32 v{acc}, v{e0}, v{e1}", 4, 0, dadd, [x0, x1], stream="a" + X)
                    ops += [a1, c]
                else:
                    a0 = Op(f"v_add_f32 v{acc}, v{acc}, v{e0}", 4, 0, dadd, [x0], stream="a" + X)
                    a1 = Op(f"v_add_f32 v{acc}, v{acc}, v{e1}", 4, 0, dadd, [x1], stream="a" + X)
                    ops += [a0, a1, c]
                lastadd[qb] = a1
                lastc = c
                idx += 1
    if chk:
        d = min(dl.values())
        m = Op(f"v_max_f32 v{VT}, v{T + q[0]}, v{T + q[1]}", 4, 0, d, list(lastadd.values()), stream="a" + X)
        c = Op(f"v_cmp_lt_f32 vcc, s{S_THR}, v{VT}", 4, 0, d, [m], stream="a" + X)
        b = Op(f"s_cbranch_vccnz L_slow_{tag}\nL_back_{tag}:", 0, 0, d, [c, lastc], stream="a" + X)
        ops += [m, c, b]
        for qb in q:
            ops.append(Op(f"v_add_f32 v{L + qb}, v{L + qb}, v{T + qb}", 4, 0, dl["end"], [b], stream="a" + X))
    return ops


def schedule(ops, nm, base=8):
    streams = {}
    for o in ops:
        streams.setdefault(o.stream, []).append(o)
    best = None
    for nextra in range(0, 3 * nm):
        for o in ops:
            o.pos = None
        cap = [base + 4 * ((g + 1) * nextra // nm - g * nextra // nm) for g in range(nm)]
        head = {s: 0 for s in streams}
        out = [[] for _ in range(nm)]
        pos = 0
        ok = True
        for g in range(nm):
            pos += 1
            rem = cap[g]
            while True:
                cand = []
                for s, lst in streams.items():
                    if head[s] >= len(lst):
                        continue
                    o = lst[head[s]]
                    if o.est > g:
                        continue
                    if CFG.get("ds1") and s == "l" and any(t.startswith(("ds_", "buffer")) for t in out[g]) and o.lst > g:
                        continue
                    if any(d.pos is None or pos - d.pos < (CFG.get('xd', 2) if d.cost == 8 else 1) for d in o.deps):
                        continue
                    urg = 10 ** 9
                    acc = 0
                    for o2 in lst[head[s]:]:
                        acc += o2.cost
                        urg = min(urg, (o2.lst - g + 1) * base * o2_share(s) - acc)
                    cand.append((urg, s, o))
                if not cand:
                    break
                cand.sort(key=lambda c: c[0])
                pick = None
                for urg, s, o in cand:
                    if o.cost <= rem or o.lst <= g:
                        pick = (s, o)
                        break
                if pick is None:
                    break
                s, o = pick
                out[g].append(o.text)
                o.pos = pos
                pos += 1
                head[s] += 1
                rem -= o.cost
                if rem <= 0 and not any(streams[t][head[t]].lst <= g or streams[t][head[t]].cost == 0
                                        for t in streams if head[t] < len(streams[t])):
                    break
            if any(head[s] < len(l) and l[head[s]].lst <= g for s, l in streams.items()):
                ok = False
                break
        if ok and all(head[s] == len(l) for s, l in streams.items()):
            cost = {o.text: o.cost for o in ops}
            tot = sum(max(16, 8 + sum(cost[t] for t in out[g])) for g in range(nm))
            if best is None or tot < best[0]:
                best = (tot, out, nextra)
            if nextra > best[2] + 6:
                break
    if best is None:
        raise RuntimeError("cannot schedule")
    return best


def o2_share(s):
    return {"x": 0.5, "a": 0.3, "c": 0.3, "s": 0.3}.get(s[0], 0.3)


def emit_rowmax(a, qb, nkb, dst):
    s = St(qb, 0)
    a(f"v_max3_f32 v{dst}, v{s}, v{s + 1}, v{s + 2}")
    if nkb == 2:
        a(f"v_max3_f32 v{dst}, v{dst}, v{s + 3}, v{s + 4}")
        a(f"v_max3_f32 v{dst}, v{dst}, v{s + 5}, v{s + 6}")
        a(f"v_max_f32 v{dst}, v{dst}, v{s + 7}")
    else:
        a(f"v_max_f32 v{dst}, v{dst}, v{s + 3}")
    for sw in ("v_permlane32_swap_b32", "v_permlane16_swap_b32"):
        a(f"v_mov_b32 v{VT3}, v{dst}")
        a("s_nop 1")
        a(f"{sw} v{dst}, v{VT3}")
        a("s_nop 1")
        a(f"v_max_f32 v{dst}, v{dst}, v{VT3}")


def emit_slow(a, X, nkb, tag):
    a.seg("slow_" + tag)
    a.label(f"L_slow_{tag}")
    a("s_nop 15")
    for qb in qbs(X):
        emit_rowmax(a, qb, nkb, VT)
        a(f"v_max_f32 v{VT}, 0, v{VT}")
        a(f"v_exp_f32 v{VT2}, -v{VT}")
        a("s_nop 0")
        a(f"v_mul_f32 v{L + qb}, v{L + qb}, v{VT2}")
        for i in range(32):
            o = O + qb * 32 + i
            a(f"v_mul_f32 v{o}, v{o}, v{VT2}")
        for i in range(4):
            a(f"v_sub_f32 v{NM + 4 * qb + i}, v{NM + 4 * qb + i}, v{VT}")
        for k in range(2 * nkb):
            s = St(qb, 0) + 2 * k
            a(f"v_sub_f32 v{s}, v{s}, v{VT}")
            a(f"v_sub_f32 v{s + 1}, v{s + 1}, v{VT}")
            a(f"v_exp_f32 v{E_}, v{s}")
            a(f"v_exp_f32 v{E_ + 1}, v{s + 1}")
            a("s_nop 0")
            if k == 0:
                a(f"v_add_f32 v{T + qb}, v{E_}, v{E_ + 1}")
            else:
                a(f"v_add_f32 v{T + qb}, v{T + qb}, v{E_}")
                a(f"v_add_f32 v{T + qb}, v{T + qb}, v{E_ + 1}")
            a(f"v_cvt_pk_bf16_f32 v{P + 4 * qb + k}, v{E_}, v{E_ + 1}")
    a("s_nop 7")
    a(f"s_branch L_back_{tag}")


def emit_body(a, cfg, tag, chk, last=False, nkb=2):
    PF = cfg["PF"]
    lead = cfg.get("lead", 3)
    mg = cfg.get("mg", 0)
    pvB, qkB, pvA, qkA = pv_order("B"), qk_order("B", nkb), pv_order("A"), qk_order("A")
    mf = [mfma_pv(*x) for x in pvB] + [mfma_qk(*x) for x in qkB]
    pA0 = len(mf)
    mf += [mfma_pv(*x) for x in pvA]
    qA0 = len(mf)
    if not last:
        mf += [mfma_qk(*x) for x in qkA]
    nm = len(mf)
    ops = []
    lds = []
    for db in range(8):
        lds.append(Op(f"ds_read_b128 {ar(AV + 4 * db, 4)}, v{VLDS} offset:{8192 + 1024 * db}", 4, 8 + db, pA0 - 6, stream="l"))
    if not last:
        kf = sorted(range(8), key=lambda f: max(i for i, x in enumerate(qkB) if x[1] * 4 + x[2] == f))
        for n, f in enumerate(kf):
            g = 16 + max(i for i, x in enumerate(qkB) if x[1] * 4 + x[2] == f)
            lds.append(Op(f"ds_read_b128 {ar(AK + 4 * f, 4)}, v{VLDS} offset:{1024 * f}", 4, g, qA0 - 6, stream="l"))
        adv = Op(f"v_add_u32 v{VLDS}, 0x4000, v{VLDS}", 4, 0, nm - 1, [lds[-1]], stream="z")
        ops += [adv, Op(f"v_and_b32 v{VLDS}, 0x1ffff, v{VLDS}", 4, 0, nm - 1, [adv], stream="z")]
        dg = cfg.get("dgaps", [0, 1, 33, 34])
        for k in range(4):
            ops.append(Op(f"buffer_load_dwordx4 v{VL16}, {SRD}, s{S_SRC} offen offset:{1024 * k} lds", cfg.get("dmacost", 8),
                          dg[k], dg[k], stream="d"))
    ops += lds
    finA = {}
    for i, (qb, kb, s_) in enumerate(qkA):
        finA[qb, kb] = i
    rdy = {t: max(0, finA[t] - len(qkA) + 1 + lead) for t in finA}
    rdy["p", 0] = rdy["p", 1] = 0
    ops += sm_group("A", nkb, tag + "A", chk, rdy, {0: pA0 - 1 - mg, 1: pA0 + 7 - mg, "end": qA0 - 2})
    finB = {}
    for i, (qb, kb, s_) in enumerate(qkB):
        finB[qb, kb] = i
    rdy = {t: 16 + finB[t] + 1 + lead for t in finB}
    rdy["p", 2], rdy["p", 3] = 8, 16
    ops += sm_group("B", nkb, tag + "B", chk, rdy, {2: nm - 1 - mg, 3: nm - 1, "end": nm - 1})
    tot, gaps, nx = schedule(ops, nm)
    if cfg.get("verbose"):
        print("body", tag, "model cycles", tot, "extra", nx)
    if cfg.get("memfirst"):
        for g in range(nm):
            gaps[g].sort(key=lambda t: 0 if t.startswith(("ds_", "buffer")) else 1)
    if cfg.get("explast"):
        for g in range(nm):
            if not any("L_back" in t for t in gaps[g]):
                gaps[g].sort(key=lambda t: 1 if t.startswith("v_exp") else 0)
    order = [t for g in range(nm) for t in gaps[g]]

    def nlds_after(g_end, first_k):
        n = 0
        for g in range(g_end):
            n += sum(1 for t in gaps[g] if t.startswith("ds_read") and f"offset:{0}" is not None and "a[" in t and int(t.split("a[")[1].split(":")[0]) < AV)
        return n

    gaps[pA0 - 1].append(f"s_waitcnt lgkmcnt({nlds_after(pA0, 0)})")
    if not last:
        gaps[qA0 - 1].append("s_waitcnt lgkmcnt(0)")
        lastd = max(dg)
        gaps[lastd + 2].insert(0, f"s_add_u32 s{S_M0}, s{S_M0}, 0x4000")
        gaps[lastd + 3].insert(0, f"s_and_b32 m0, s{S_M0}, 0x1ffff")
        gaps[lastd + 4].insert(0, f"s_add_u32 s{S_SRC}, s{S_SRC}, 0x2000")
        gaps[lastd + 5].insert(0, f"s_sub_u32 s{S_CNT}, s{S_CNT}, 1")
        gaps[nm - 2].insert(0, f"s_cmp_lg_u32 s{S_CNT}, 0")
        gaps[nm - 1].append(f"s_cbranch_scc1 L_body_{tag}")
    a.seg("body_" + tag)
    a.label(f"L_body_{tag}")
    a(f"s_waitcnt vmcnt({4 * (PF - 1)})")
    a("s_barrier")
    for g in range(nm):
        a(mf[g])
        for t in gaps[g]:
            a(t)
    if last:
        a("s_nop 1")
        for x in pvB:
            a(mfma_pv(*x))


def emit_k2(a, cfg):
    PF = cfg["PF"]
    NB = cfg.get("NB", 4)
    CFG.clear()
    CFG.update(cfg)
    LIM = cfg.get("lim", NWG)
    name = "k2_attn_kernel"
    a.raw(".text")
    a.raw(f".globl {name}\n.p2align 8\n.type {name},@function")
    a.label(name)
    a.seg("k2_pro0")
    a(f"""
    s_cmp_ge_u32 s2, {LIM}
    s_cbranch_scc1 L_k2_end
    """)
    if cfg.get("tl") or cfg.get("stamp"):
        a("s_memrealtime s[56:57]")
    a(f"""
    s_load_dwordx2 s[{S_SRD}:{S_SRD + 1}], s[0:1], 88
    s_load_dwordx4 s[40:43], s[0:1], 8
    v_lshrrev_b32 v1, 6, v0
    v_and_b32 v2, 63, v0
    v_readfirstlane_b32 s{S_W}, v1
    v_lshlrev_b32 v{VL16}, 4, v2
    v_lshlrev_b32 v3, 2, v2
    s_and_b32 s{S_T0}, s2, 7
    s_mul_i32 s{S_T0}, s{S_T0}, {NWG // 8}
    s_lshr_b32 s{S_T1}, s2, 3
    s_add_u32 s{S_T0}, s{S_T0}, s{S_T1}          ; g
    s_mul_i32 s{S_SPLIT}, s{S_T0}, 1639
    s_lshr_b32 s{S_SPLIT}, s{S_SPLIT}, 16        ; split = g / 40
    s_mul_i32 s{S_T1}, s{S_SPLIT}, 40
    s_sub_u32 s{S_QT}, s{S_T0}, s{S_T1}          ; q tile
    s_mov_b32 s{S_SRD + 2}, 0x10000000
    s_mov_b32 s{S_SRD + 3}, 0x00020000
    s_mov_b32 s{S_THR}, 0x4b800000               ; 2^24
    s_lshl_b32 s{S_T0}, s{S_W}, 12
    s_mul_i32 s{S_SRC0}, s{S_SPLIT}, {52 * 8192}
    s_add_u32 s{S_SRC0}, s{S_SRC0}, s{S_T0}
    s_mov_b32 s{S_T1}, {KF}
    s_cmp_lt_u32 s{S_W}, 2
    s_cselect_b32 s{S_T1}, s{S_T1}, {VF - 8192 - 8192}
    s_add_u32 s{S_SRC0}, s{S_SRC0}, s{S_T1}
    s_lshl_b32 s{S_Q0}, s{S_QT}, 16
    s_lshl_b32 s{S_T1}, s{S_W}, 14
    s_add_u32 s{S_Q0}, s{S_Q0}, s{S_T1}
    s_add_u32 s{S_Q0}, s{S_Q0}, {QF}
    s_add_u32 s{S_Q0 + 1}, s{S_Q0}, 0x1000
    s_add_u32 s{S_Q0 + 2}, s{S_Q0}, 0x2000
    s_add_u32 s{S_Q0 + 3}, s{S_Q0}, 0x3000
    s_mul_i32 s{S_T1}, s{S_QT}, 6
    s_add_u32 s{S_T1}, s{S_T1}, s{S_SPLIT}
    s_lshl_b32 s{S_PO}, s{S_T1}, 16
    s_lshl_b32 s{S_T0}, s{S_W}, 14
    s_add_u32 s{S_PO}, s{S_PO}, s{S_T0}
    s_add_u32 s{S_PO}, s{S_PO}, {PO}
    s_lshl_b32 s{S_PL}, s{S_T1}, 11
    s_lshl_b32 s{S_T0}, s{S_W}, 9
    s_add_u32 s{S_PL}, s{S_PL}, s{S_T0}
    s_add_u32 s{S_PL}, s{S_PL}, {PL}
    s_mov_b32 s{S_U}, 51
    s_cmp_eq_u32 s{S_SPLIT}, 5
    s_cselect_b32 s{S_U}, 52, s{S_U}
    s_mov_b32 s{S_MODE}, 0
    s_mov_b32 s{S_EV}, 0
    s_mov_b32 s{S_CNTB}, {CNT}
    s_mov_b32 s{S_LSTB}, {LST}
    s_lshl_b32 s44, s2, 2
    s_add_u32 s44, s44, s{S_W}
    s_cmp_lt_u32 s44, {E // 64 - 5 * 4 * NWG}
    s_cselect_b32 s{S_NB}, 6, 5
    s_lshl_b32 s44, s44, 8
    s_mov_b32 s34, {E * 4}
    s_mov_b32 s35, 0x00020000
    s_mov_b32 s38, {E * 4}
    s_mov_b32 s39, 0x00020000
    s_mov_b32 s45, 0x7fffffff
    v_mov_b32 v{VOOB}, s45
    v_mov_b32 v4, 0
    v_mov_b32 v5, {LDS_FLAG}
    ds_write_b32 v5, v4
    s_waitcnt lgkmcnt(0)
    s_and_b32 s{S_SRD + 1}, s{S_SRD + 1}, 0xffff
    s_mov_b32 s32, s40
    s_and_b32 s33, s41, 0xffff
    s_mov_b32 s36, s42
    s_and_b32 s37, s43, 0xffff
    """)
    a.label("L_k2_restart")
    a.seg("k2_pro")
    a(f"s_mov_b32 s{S_SRC}, s{S_SRC0}")
    a(f"s_lshl_b32 s{S_M0}, s{S_W}, 12")
    a(f"s_mov_b32 m0, s{S_M0}")
    a(f"s_mov_b32 s{S_LEFT}, s{S_U}")

    def dma_stage():
        for k in range(4):
            a(f"buffer_load_dwordx4 v{VL16}, {SRD}, s{S_SRC} offen offset:{1024 * k} lds")

    def dma_adv():
        a(f"s_add_u32 s{S_M0}, s{S_M0}, 0x4000")
        a(f"s_and_b32 m0, s{S_M0}, 0x1ffff")
        a(f"s_add_u32 s{S_SRC}, s{S_SRC}, 0x2000")

    dma_stage()
    for i in range(4 * NQ):
        a(f"buffer_load_dwordx4 {ar(4 * i, 4)}, v{VL16}, {SRD}, s{S_Q0 + (i >> 2)} offen offset:{1024 * (i & 3)}")
    dma_adv()
    dma_stage()
    for b in range(6):
        a(f"buffer_load_dword v{ED + b}, v3, s[36:39], s44 offen")
        a(f"buffer_load_dword v{ES + b}, v3, s[32:35], s44 offen")
        a(f"s_add_u32 s44, s44, {4 * NWG * 256}")
    for st in range(PF - 1):
        dma_adv()
        dma_stage()
    dma_adv()
    for i in range(32 * NQ):
        a(f"v_mov_b32 v{O + i}, 0")
    for i in range(32):
        a(f"v_accvgpr_write_b32 a{AV + i}, 0")
    for i in range(8):
        a(f"v_mov_b32 v{P + 8 + i}, 0")
    for qb in range(NQ):
        a(f"v_mov_b32 v{L + qb}, 0")
    a(f"s_waitcnt vmcnt({4 * PF + 12})")
    a("s_barrier")
    for s in range(8):
        a(f"ds_read_b128 {ar(AK + 4 * s, 4)}, v{VL16} offset:{1024 * s}")
    a(f"v_add_u32 v{VLDS}, 0x4000, v{VL16}")
    a("s_waitcnt lgkmcnt(0)")
    for qb in (2, 3, 0, 1):
        for kb in range(2):
            for s in range(4):
                a(mfma_qk(qb, kb, s, czero=True))
    for qb in (2, 3, 0, 1):
        emit_rowmax(a, qb, 2, VT)
        for i in range(4):
            a(f"v_sub_f32 v{NM + 4 * qb + i}, 0, v{VT}")
        if qb < 2:
            for i in range(8):
                a(f"v_sub_f32 v{St(qb, 0) + i}, v{St(qb, 0) + i}, v{VT}")
    if cfg.get("stamp"):
        a("s_memtime s[60:61]")
        a("s_memrealtime s[62:63]")
        a("s_waitcnt lgkmcnt(0)")
    a(f"s_cmp_lg_u32 s{S_MODE}, 0")
    a("s_cbranch_scc1 L_safe")
    a.label("L_event")
    a.seg("k2_ev")
    a(f"""
    s_mov_b32 s{S_CNT}, s{S_LEFT}
    s_cmp_gt_u32 s{S_EV}, s{S_NB}
    {"s_branch" if cfg.get("noev") else "s_cbranch_scc1"} L_ev_go
    s_cmp_eq_u32 s{S_EV}, 0
    s_cbranch_scc1 L_ev_first
    s_waitcnt vmcnt({4 * NB})
    v_lshrrev_b32 v45, 4, v{ED}
    v_and_b32 v46, 15, v{ED}
    v_lshlrev_b32 v45, 12, v45
    v_cmp_le_u32 vcc, {CAP}, v{ER}
    v_lshl_add_u32 v45, v46, 2, v45
    v_lshl_add_u32 v45, v{ER}, 6, v45
    v_cndmask_b32 v45, v45, v{VOOB}, vcc
    buffer_store_dword v{ES}, v45, {SRD}, s{S_LSTB} offen {'' if cfg.get('plainst') else 'sc1'}
    s_cbranch_vccnz L_ev_ovf
    """)
    a.label("L_ev_back")
    for b in range(5):
        a(f"v_mov_b32 v{ED + b}, v{ED + b + 1}")
        a(f"v_mov_b32 v{ES + b}, v{ES + b + 1}")
    a(f"s_cmp_eq_u32 s{S_EV}, s{S_NB}")
    a("s_cbranch_scc1 L_ev_next")
    a("s_branch L_ev_issue")
    a.label("L_ev_first")
    a(f"s_waitcnt vmcnt({4 * (PF - 1)})")
    a.label("L_ev_issue")
    a(f"""
    v_lshlrev_b32 v46, 6, v{ED}
    v_mov_b32 v{ER}, 1
    buffer_atomic_add v{ER}, v46, {SRD}, s{S_CNTB} offen sc0
    """)
    a.label("L_ev_next")
    a(f"s_add_u32 s{S_EV}, s{S_EV}, 1")
    a(f"s_mov_b32 s{S_CNT}, {NB}")
    a.label("L_ev_go")
    a(f"s_sub_u32 s{S_LEFT}, s{S_LEFT}, s{S_CNT}")
    a.raw(".p2align 6")
    emit_body(a, cfg, "m", False)
    a.seg("k2_mid")
    a(f"s_cmp_lg_u32 s{S_LEFT}, 0")
    a("s_cbranch_scc1 L_event")
    if cfg.get("stamp"):
        a("s_memtime s[64:65]")
        a("s_memrealtime s[66:67]")
        a(f"s_load_dwordx2 s[68:69], s[0:1], 80")
        a("s_waitcnt lgkmcnt(0)")
        a("s_sub_u32 s64, s64, s60")
        a("s_sub_u32 s66, s66, s62")
        a("v_mov_b32 v2, s64")
        a("v_mov_b32 v3, s66")
        a("s_and_b32 s69, s69, 0xffff")
        a("s_mov_b32 s70, 256")
        a("s_mov_b32 s71, 0x00020000")
        a("s_lshr_b32 s72, s2, 3")
        a("s_lshl_b32 s72, s72, 3")
        a("v_mov_b32 v4, s72")
        a("s_and_b32 s73, s2, 7")
        a(f"s_or_b32 s73, s73, s{S_W}")
        a("s_cmp_lg_u32 s73, 0")
        a("s_cbranch_scc1 L_nostamp")
        a("buffer_store_dwordx2 v[2:3], v4, s[68:71], 0 offen")
        a.label("L_nostamp")
    a(f"s_cmp_eq_u32 s{S_SPLIT}, 5")
    a("s_cbranch_scc1 L_body_lm")
    emit_body(a, cfg, "lf", False, last=True, nkb=2)
    a("s_branch L_k2_chk")
    emit_body(a, cfg, "lm", False, last=True, nkb=1)
    a.label("L_k2_chk")
    a.seg("k2_chk")
    a(f"""
    v_max3_f32 v4, v{L}, v{L + 1}, v{L + 2}
    v_max_f32 v4, v4, v{L + 3}
    v_add_f32 v6, v{L}, v{L + 1}
    v_add_f32 v7, v{L + 2}, v{L + 3}
    v_add_f32 v6, v6, v7
    s_mov_b32 s{S_T0}, 0x53800000
    v_cmp_ngt_f32 vcc, s{S_T0}, v4
    v_cmp_u_f32 s[46:47], v6, v6
    v_mov_b32 v5, {LDS_FLAG}
    v_mov_b32 v4, 1
    s_or_b64 vcc, vcc, s[46:47]
    s_cbranch_vccz L_k2_chk2
    ds_write_b32 v5, v4
    """)
    a.label("L_k2_chk2")
    a("""
    s_waitcnt lgkmcnt(0)
    s_barrier
    ds_read_b32 v4, v5
    s_waitcnt lgkmcnt(0)
    v_readfirstlane_b32 s46, v4
    s_nop 3
    s_cmp_eq_u32 s46, 0
    s_cbranch_scc1 L_k2_epi
    s_waitcnt vmcnt(0)
    s_barrier
    """)
    a(f"s_mov_b32 s{S_MODE}, 1")
    a("s_branch L_k2_restart")
    a.label("L_safe")
    a.seg("k2_safe0")
    a(f"s_mov_b32 s{S_CNT}, s{S_LEFT}")
    emit_body(a, cfg, "s", True)
    a.seg("k2_smid")
    a(f"s_cmp_eq_u32 s{S_SPLIT}, 5")
    a("s_cbranch_scc1 L_body_sm")
    emit_body(a, cfg, "sf", True, last=True, nkb=2)
    a("s_branch L_k2_epi0")
    emit_body(a, cfg, "sm", True, last=True, nkb=1)
    a.label("L_k2_epi0")
    a.seg("k2_epi0")
    a("s_nop 7")
    a.label("L_k2_epi")
    a.seg("k2_epi")
    a(f"""
    v_and_b32 v2, 15, v0
    v_lshlrev_b32 v3, 3, v2
    v_lshlrev_b32 v2, 8, v2
    v_bfe_u32 v4, v0, 4, 2
    v_lshl_add_u32 v2, v4, 4, v2
    """)
    for sw in ("v_permlane32_swap_b32", "v_permlane16_swap_b32"):
        for qb in range(NQ):
            a(f"v_mov_b32 v{T + qb}, v{L + qb}")
        a("s_nop 0")
        for qb in range(NQ):
            a(f"{sw} v{L + qb}, v{T + qb}")
        a("s_nop 0")
        for qb in range(NQ):
            a(f"v_add_f32 v{L + qb}, v{L + qb}, v{T + qb}")
    n = 0
    for qb in range(NQ):
        a(f"s_add_u32 s{S_T0}, s{S_PO}, {qb * 4096}")
        for p in range(4):
            t = 32 + 4 * (n % 4)
            n += 1
            for d in range(4):
                src = O + (qb * 8 + 2 * p) * 4 + 2 * d
                a(f"v_cvt_pk_bf16_f32 v{t + d}, v{src}, v{src + 1}")
            a(f"buffer_store_dwordx4 {vr(t, 4)}, v2, {SRD}, s{S_T0} offen offset:{64 * p}")
    for qb in range(NQ):
        a(f"v_sub_f32 v{6 + 2 * qb}, 0, v{NM + 4 * qb}")
        a(f"v_mov_b32 v{7 + 2 * qb}, v{L + qb}")
    a("s_mov_b64 exec, 0xffff")
    for qb in range(NQ):
        a(f"buffer_store_dwordx2 v[{6 + 2 * qb}:{7 + 2 * qb}], v3, {SRD}, s{S_PL} offen offset:{128 * qb}")
    a("s_waitcnt vmcnt(0)")
    stamp_exit(a, cfg, 56, 2, SRD, TR)
    a.label("L_k2_end")
    a("s_endpgm")
    a.label("L_ev_ovf")
    a.seg("k2_ovf")
    a(f"""
    s_and_saveexec_b64 s[46:47], vcc
    v_mov_b32 v45, 1
    v_mov_b32 v46, 0
    s_mov_b32 s48, {OVFCNT}
    s_mov_b32 s49, {OVF}
    buffer_atomic_add v45, v46, {SRD}, s48 offen sc0
    v_mov_b32 v46, v{ED}
    v_mov_b32 v47, v{ES}
    s_waitcnt vmcnt(0)
    v_lshlrev_b32 v45, 3, v45
    buffer_store_dwordx2 v[46:47], v45, {SRD}, s49 offen sc1
    s_mov_b64 exec, s[46:47]
    s_branch L_ev_back
    """)
    for tag, nkb in (("s", 2), ("sf", 2), ("sm", 1)):
        for X in "AB":
            emit_slow(a, X, nkb, tag + X)
    return dict(name=name, vgpr=384, accum=256, sgpr=80, grid=NWG, block=256, lds=131072 + 256,
                chains=[["k2_pro0", "k2_pro", "k2_ev", "body_m", "body_m", "k2_mid", "body_lf", "k2_chk", "k2_epi"],
                        ["body_m", "k2_mid", "k2_ev", "body_m"],
                        ["body_m", "k2_mid", "body_lm", "k2_chk", "k2_pro"],
                        ["k2_pro", "k2_safe0", "body_s", "body_s", "k2_smid", "body_sf", "k2_epi0", "k2_epi"],
                        ["body_s", "k2_smid", "body_sm", "k2_epi0", "k2_epi"], ["k2_ovf"]] +
                       [["slow_" + t + X] for t in ("s", "sf", "sm") for X in "AB"])
```

```python
from layout import *
from asmlib import stamp_entry, stamp_exit

CFG = {}
MF = "v_mfma_f32_16x16x32_bf16"
NWG = 240
NQ = 4
CH = 12
CAP = 72
NSLOT = 24

O, S, NM, P, E_, T, L = 128, 64, 96, 112, 26, 42, 52
VLDS, VL16, VT, VT2, VT3, VOOB = 20, 21, 22, 23, 24, 25
RC, VREM, VSEG, BT = 26, 50, 51, 56
AQ, AK, AV = 0, 64, 96
S_SRD = 4
S_W, S_SRC, S_M0, S_CNT, S_THR, S_SPLIT, S_QT, S_T0, S_T1 = 8, 9, 10, 11, 12, 13, 14, 15, 16
S_LEFT, S_EV, S_NB, S_MODE = 17, 18, 19, 30
S_Q0 = 20
S_PO, S_PL, S_SRC0, S_U = 24, 25, 26, 27
S_CNTB, S_LSTB = 28, 29
SRD = f"s[{S_SRD}:{S_SRD + 3}]"
SKV = 80
KVS = "s[80:83]"
LDS_FLAG = 131072
RB = 131072 + 256
RSZ = 256 + CAP * 64
SENT = 0x7fffff00


def vr(b, n):
    return f"v[{b}:{b + n - 1}]"


def ar(b, n):
    return f"a[{b}:{b + n - 1}]"


def qbs(X):
    return [0, 1] if X == "A" else [2, 3]


def St(qb, kb):
    return S + (qb * 2 + kb) * 4


def mfma_qk(qb, kb, s, czero=False):
    d = vr(St(qb, kb), 4)
    c = ("0" if czero else vr(NM + 4 * qb, 4)) if s == 0 else d
    return f"{MF} {d}, {ar(AK + (kb * 4 + s) * 4, 4)}, {ar(AQ + (qb * 4 + s) * 4, 4)}, {c}"


def mfma_pv(qb, db):
    o = vr(O + (qb * 8 + db) * 4, 4)
    return f"{MF} {o}, {ar(AV + 4 * db, 4)}, {vr(P + 4 * qb, 4)}, {o}"


def qk_order(X, nkb=2):
    return [(qb, kb, s) for s in range(4) for kb in range(nkb) for qb in qbs(X)]


def pv_order(X):
    return [(qb, db) for qb in qbs(X) for db in range(8)]


class Op:
    def __init__(self, text, cost, est=0, lst=10 ** 6, deps=(), stream=None):
        self.text, self.cost, self.est, self.lst, self.deps, self.stream = text, cost, est, lst, list(deps), stream
        self.pos = None


def sm_group(X, nkb, tag, chk, rdy, dl):
    ops = []
    idx = 0
    q = qbs(X)
    lastadd = {}
    prev_small = None
    for qb in q:
        d = dl[qb] if not chk else min(dl.values())
        if nkb == 1:
            for k in (2, 3):
                ops.append(Op(f"v_mov_b32 v{P + 4 * qb + k}, 0", 4, rdy["p", qb], d - 1, stream="s" + X))
        for kb in range(nkb):
            for pr in range(2):
                s0 = St(qb, kb) + 2 * pr
                e0, e1 = (E_ + (2 * idx) % 16, E_ + (2 * idx + 1) % 16) if chk else (s0, s0 + 1)
                x0 = Op(f"v_exp_f32 v{e0}, v{s0}", 8, rdy[qb, kb], d - 2, stream="x" + X)
                x1 = Op(f"v_exp_f32 v{e1}, v{s0 + 1}", 8, rdy[qb, kb], d - 2, stream="x" + X)
                ops += [x0, x1]
                acc = (T if chk else L) + qb
                dadd = d - 1 if chk else dl["end"]
                c = Op(f"v_cvt_pk_bf16_f32 v{P + 4 * qb + 2 * kb + pr}, v{e0}, v{e1}", 4, rdy["p", qb], d - 1, [x0, x1], stream="c" + X)
                if chk and qb not in lastadd:
                    a1 = Op(f"v_add_f32 v{acc}, v{e0}, v{e1}", 4, 0, dadd, [x0, x1], stream="a" + X)
                    ops += [a1, c]
                else:
                    a0 = Op(f"v_add_f32 v{acc}, v{acc}, v{e0}", 4, 0, dadd, [x0], stream="a" + X)
                    a1 = Op(f"v_add_f32 v{acc}, v{acc}, v{e1}", 4, 0, dadd, [x1], stream="a" + X)
                    ops += [a0, a1, c]
                lastadd[qb] = a1
                lastc = c
                idx += 1
    if chk:
        d = min(dl.values())
        m = Op(f"v_max_f32 v{VT}, v{T + q[0]}, v{T + q[1]}", 4, 0, d, list(lastadd.values()), stream="a" + X)
        c = Op(f"v_cmp_lt_f32 vcc, s{S_THR}, v{VT}", 4, 0, d, [m], stream="a" + X)
        b = Op(f"s_cbranch_vccnz L_slow_{tag}\nL_back_{tag}:", 0, 0, d, [c, lastc], stream="a" + X)
        ops += [m, c, b]
        for qb in q:
            ops.append(Op(f"v_add_f32 v{L + qb}, v{L + qb}, v{T + qb}", 4, 0, dl["end"], [b], stream="a" + X))
    return ops


def schedule(ops, nm, base=8):
    streams = {}
    for o in ops:
        streams.setdefault(o.stream, []).append(o)
    best = None
    for nextra in range(0, 3 * nm):
        for o in ops:
            o.pos = None
        cap = [base + 4 * ((g + 1) * nextra // nm - g * nextra // nm) for g in range(nm)]
        head = {s: 0 for s in streams}
        out = [[] for _ in range(nm)]
        pos = 0
        ok = True
        for g in range(nm):
            pos += 1
            rem = cap[g]
            while True:
                cand = []
                for s, lst in streams.items():
                    if head[s] >= len(lst):
                        continue
                    o = lst[head[s]]
                    if o.est > g:
                        continue
                    if CFG.get("ds1") and s == "l" and any(t.startswith(("ds_", "buffer")) for t in out[g]) and o.lst > g:
                        continue
                    if any(d.pos is None or pos - d.pos < (CFG.get('xd', 2) if d.cost == 8 else 1) for d in o.deps):
                        continue
                    urg = 10 ** 9
                    acc = 0
                    for o2 in lst[head[s]:]:
                        acc += o2.cost
                        urg = min(urg, (o2.lst - g + 1) * base * o2_share(s) - acc)
                    cand.append((urg, s, o))
                if not cand:
                    break
                cand.sort(key=lambda c: c[0])
                pick = None
                for urg, s, o in cand:
                    if o.cost <= rem or o.lst <= g:
                        pick = (s, o)
                        break
                if pick is None:
                    break
                s, o = pick
                out[g].append(o.text)
                o.pos = pos
                pos += 1
                head[s] += 1
                rem -= o.cost
                if rem <= 0 and not any(streams[t][head[t]].lst <= g or streams[t][head[t]].cost == 0
                                        for t in streams if head[t] < len(streams[t])):
                    break
            if any(head[s] < len(l) and l[head[s]].lst <= g for s, l in streams.items()):
                ok = False
                break
        if ok and all(head[s] == len(l) for s, l in streams.items()):
            cost = {o.text: o.cost for o in ops}
            tot = sum(max(16, 8 + sum(cost[t] for t in out[g])) for g in range(nm))
            if best is None or tot < best[0]:
                best = (tot, out, nextra)
            if nextra > best[2] + 6:
                break
    if best is None:
        raise RuntimeError("cannot schedule")
    return best


def o2_share(s):
    return {"x": 0.5, "a": 0.3, "c": 0.3, "s": 0.3}.get(s[0], 0.3)


def emit_rowmax(a, qb, nkb, dst):
    s = St(qb, 0)
    a(f"v_max3_f32 v{dst}, v{s}, v{s + 1}, v{s + 2}")
    if nkb == 2:
        a(f"v_max3_f32 v{dst}, v{dst}, v{s + 3}, v{s + 4}")
        a(f"v_max3_f32 v{dst}, v{dst}, v{s + 5}, v{s + 6}")
        a(f"v_max_f32 v{dst}, v{dst}, v{s + 7}")
    else:
        a(f"v_max_f32 v{dst}, v{dst}, v{s + 3}")
    for sw in ("v_permlane32_swap_b32", "v_permlane16_swap_b32"):
        a(f"v_mov_b32 v{VT3}, v{dst}")
        a("s_nop 1")
        a(f"{sw} v{dst}, v{VT3}")
        a("s_nop 1")
        a(f"v_max_f32 v{dst}, v{dst}, v{VT3}")


def emit_slow(a, X, nkb, tag):
    a.seg("slow_" + tag)
    a.label(f"L_slow_{tag}")
    a("s_nop 15")
    for qb in qbs(X):
        emit_rowmax(a, qb, nkb, VT)
        a(f"v_max_f32 v{VT}, 0, v{VT}")
        a(f"v_exp_f32 v{VT2}, -v{VT}")
        a("s_nop 0")
        a(f"v_mul_f32 v{L + qb}, v{L + qb}, v{VT2}")
        for i in range(32):
            o = O + qb * 32 + i
            a(f"v_mul_f32 v{o}, v{o}, v{VT2}")
        for i in range(4):
            a(f"v_sub_f32 v{NM + 4 * qb + i}, v{NM + 4 * qb + i}, v{VT}")
        for k in range(2 * nkb):
            s = St(qb, 0) + 2 * k
            a(f"v_sub_f32 v{s}, v{s}, v{VT}")
            a(f"v_sub_f32 v{s + 1}, v{s + 1}, v{VT}")
            a(f"v_exp_f32 v{E_}, v{s}")
            a(f"v_exp_f32 v{E_ + 1}, v{s + 1}")
            a("s_nop 0")
            if k == 0:
                a(f"v_add_f32 v{T + qb}, v{E_}, v{E_ + 1}")
            else:
                a(f"v_add_f32 v{T + qb}, v{T + qb}, v{E_}")
                a(f"v_add_f32 v{T + qb}, v{T + qb}, v{E_ + 1}")
            a(f"v_cvt_pk_bf16_f32 v{P + 4 * qb + k}, v{E_}, v{E_ + 1}")
    a("s_nop 7")
    a(f"s_branch L_back_{tag}")


def emit_body(a, cfg, tag, chk, last=False, nkb=2):
    PF = cfg["PF"]
    lead = cfg.get("lead", 3)
    mg = cfg.get("mg", 0)
    pvB, qkB, pvA, qkA = pv_order("B"), qk_order("B", nkb), pv_order("A"), qk_order("A")
    mf = [mfma_pv(*x) for x in pvB] + [mfma_qk(*x) for x in qkB]
    pA0 = len(mf)
    mf += [mfma_pv(*x) for x in pvA]
    qA0 = len(mf)
    if not last:
        mf += [mfma_qk(*x) for x in qkA]
    nm = len(mf)
    ops = []
    lds = []
    for db in range(8):
        lds.append(Op(f"ds_read_b128 {ar(AV + 4 * db, 4)}, v{VLDS} offset:{8192 + 1024 * db}", 4, 8 + db, pA0 - 6, stream="l"))
    if not last:
        kf = sorted(range(8), key=lambda f: max(i for i, x in enumerate(qkB) if x[1] * 4 + x[2] == f))
        for n, f in enumerate(kf):
            g = 16 + max(i for i, x in enumerate(qkB) if x[1] * 4 + x[2] == f)
            lds.append(Op(f"ds_read_b128 {ar(AK + 4 * f, 4)}, v{VLDS} offset:{1024 * f}", 4, g, qA0 - 6, stream="l"))
        adv = Op(f"v_add_u32 v{VLDS}, 0x4000, v{VLDS}", 4, 0, nm - 1, [lds[-1]], stream="z")
        ops += [adv, Op(f"v_and_b32 v{VLDS}, 0x1ffff, v{VLDS}", 4, 0, nm - 1, [adv], stream="z")]
        dg = cfg.get("dgaps", [0, 1, 33, 34])
        for k in range(4):
            ops.append(Op(f"buffer_load_dwordx4 v{VL16}, {KVS}, s{S_SRC} offen offset:{1024 * k} lds", cfg.get("dmacost", 8),
                          dg[k], dg[k], stream="d"))
    ops += lds
    finA = {}
    for i, (qb, kb, s_) in enumerate(qkA):
        finA[qb, kb] = i
    rdy = {t: max(0, finA[t] - len(qkA) + 1 + lead) for t in finA}
    rdy["p", 0] = rdy["p", 1] = 0
    ops += sm_group("A", nkb, tag + "A", chk, rdy, {0: pA0 - 1 - mg, 1: pA0 + 7 - mg, "end": qA0 - 2})
    finB = {}
    for i, (qb, kb, s_) in enumerate(qkB):
        finB[qb, kb] = i
    rdy = {t: 16 + finB[t] + 1 + lead for t in finB}
    rdy["p", 2], rdy["p", 3] = 8, 16
    ops += sm_group("B", nkb, tag + "B", chk, rdy, {2: nm - 1 - mg, 3: nm - 1, "end": nm - 1})
    tot, gaps, nx = schedule(ops, nm)
    if cfg.get("verbose"):
        print("body", tag, "model cycles", tot, "extra", nx)
    if cfg.get("memfirst"):
        for g in range(nm):
            gaps[g].sort(key=lambda t: 0 if t.startswith(("ds_", "buffer")) else 1)
    if cfg.get("explast"):
        for g in range(nm):
            if not any("L_back" in t for t in gaps[g]):
                gaps[g].sort(key=lambda t: 1 if t.startswith("v_exp") else 0)
    order = [t for g in range(nm) for t in gaps[g]]

    def nlds_after(g_end, first_k):
        n = 0
        for g in range(g_end):
            n += sum(1 for t in gaps[g] if t.startswith("ds_read") and f"offset:{0}" is not None and "a[" in t and int(t.split("a[")[1].split(":")[0]) < AV)
        return n

    gaps[pA0 - 1].append(f"s_waitcnt lgkmcnt({nlds_after(pA0, 0)})")
    if not last:
        gaps[qA0 - 1].append("s_waitcnt lgkmcnt(0)")
        lastd = max(dg)
        gaps[lastd + 2].insert(0, f"s_add_u32 s{S_M0}, s{S_M0}, 0x4000")
        gaps[lastd + 3].insert(0, f"s_and_b32 m0, s{S_M0}, 0x1ffff")
        gaps[lastd + 4].insert(0, f"s_add_u32 s{S_SRC}, s{S_SRC}, 0x2000")
        gaps[lastd + 5].insert(0, f"s_sub_u32 s{S_CNT}, s{S_CNT}, 1")
        gaps[nm - 2].insert(0, f"s_cmp_lg_u32 s{S_CNT}, 0")
        gaps[nm - 1].append(f"s_cbranch_scc1 L_body_{tag}")
    a.seg("body_" + tag)
    a.label(f"L_body_{tag}")
    a(f"s_waitcnt vmcnt({4 * (PF - 1)})")
    a("s_barrier")
    for g in range(nm):
        a(mf[g])
        for t in gaps[g]:
            a(t)
    if last:
        a("s_nop 1")
        for x in pvB:
            a(mfma_pv(*x))


SX, SDG, SOUT, SMP = 32, 36, 40, 44
S_REC, S_CAP, S_MAXC, S_N, S_I, S_MASK, S_FLG, S_NOWN = 48, 49, 50, 51, 52, 53, 54, 55
SMK = 64
VX = 46
VRB, VDUM, VDREC = 17, 18, 19
AG, AH, IX = 64, 34, 88


def emit_region_reset(a):
    a(f"""
    v_and_b32 v2, 63, v0
    v_lshl_add_u32 v3, v2, 2, v{VRB}
    v_cmp_eq_u32 vcc, 16, v2
    v_mov_b32 v4, 0x40000000
    v_lshl_add_u32 v5, v2, 4, v{VRB}
    v_cndmask_b32 v4, 0, v4, vcc
    ds_write_b32 v3, v4
    v_mov_b32 v6, {SENT}
    v_mov_b32 v7, {SENT}
    v_mov_b32 v8, {SENT}
    v_mov_b32 v9, {SENT}
    v_lshl_add_u32 v3, v2, 3, v{VRB}
    """)
    for k in range(4):
        a(f"ds_write_b128 v5, v[6:9] offset:{256 + 1024 * k}")
    a(f"ds_write_b64 v3, v[6:7] offset:{256 + 4096}")


def emit_careful(a, tag, ret):
    a.seg("careful_" + tag)
    a.label(f"L_car_{tag}")
    a("s_nop 7")
    emit_region_reset(a)
    a(f"""
    v_mov_b32 v10, 1
    v_mov_b32 v11, v{VSEG}
    v_mov_b32 v12, 0
    s_mov_b32 s{S_I}, 0
    s_waitcnt lgkmcnt(0)
    """)
    a.label(f"L_car_loop_{tag}")
    a(f"""
    s_lshl_b32 s{S_T0}, s{S_I}, 2
    v_add_u32 v13, s{S_T0}, v{VSEG}
    buffer_load_dwordx4 {vr(RC, 4)}, v13, {SRD}, s{S_REC} offen sc1
    s_waitcnt vmcnt(0)
    """)
    for k in range(4):
        r = RC + k
        a(f"""
        v_cmp_lt_u32 s[{SMK}:{SMK + 1}], s{S_I}, v{VREM}
        s_add_u32 s{S_I}, s{S_I}, 1
        s_nop 0
        v_cndmask_b32 v{r}, v{VDREC}, v{r}, s[{SMK}:{SMK + 1}]
        v_and_b32 v13, 31, v{r}
        v_lshl_add_u32 v13, v13, 2, v{VRB}
        ds_add_rtn_u32 v14, v13, v10
        s_waitcnt lgkmcnt(0)
        v_lshl_add_u32 v13, v14, 6, v13
        v_cmp_gt_u32 vcc, s{S_CAP}, v14
        s_nop 1
        v_cndmask_b32 v13, v{VDUM}, v13, vcc
        ds_write_b32 v13, v{r} offset:256
        s_andn2_b64 vcc, s[{SMK}:{SMK + 1}], vcc
        s_nop 0
        v_cndmask_b32 v13, v{VOOB}, v11, vcc
        v_cndmask_b32 v14, 0, v10, vcc
        buffer_store_dword v{r}, v13, {SRD}, s{S_REC} offen sc1
        v_add_u32 v12, v12, v14
        v_lshl_add_u32 v11, v14, 2, v11
        """)
    a(f"""
    v_cmp_lt_u32 vcc, s{S_I}, v{VREM}
    s_cbranch_vccnz L_car_loop_{tag}
    v_mov_b32 v{VREM}, v12
    s_waitcnt vmcnt(0) lgkmcnt(0)
    s_branch {ret}
    """)


def emit_k2(a, cfg):
    PF = cfg["PF"]
    NB0 = cfg.get("NB0", 3)
    CFG.clear()
    CFG.update(cfg)
    LIM = cfg.get("lim", NWG)
    name = "k2_attn_kernel"
    a.raw(".text")
    a.raw(f".globl {name}\n.p2align 8\n.type {name},@function")
    a.label(name)
    a.seg("k2_pro0")
    a(f"""
    s_cmp_ge_u32 s2, {LIM}
    s_cbranch_scc1 L_k2_end
    """)
    if cfg.get("tl") or cfg.get("stamp"):
        a("s_memrealtime s[84:85]")
    a(f"""
    s_load_dwordx2 s[{S_SRD}:{S_SRD + 1}], s[0:1], 88
    s_load_dwordx2 s[{SX}:{SX + 1}], s[0:1], 0
    s_load_dwordx2 s[{SDG}:{SDG + 1}], s[0:1], 24
    s_load_dwordx2 s[{SOUT}:{SOUT + 1}], s[0:1], 72
    v_lshrrev_b32 v1, 6, v0
    v_and_b32 v2, 63, v0
    v_readfirstlane_b32 s{S_W}, v1
    v_lshlrev_b32 v{VL16}, 4, v2
    v_lshlrev_b32 v16, 2, v2
    s_and_b32 s{S_T0}, s2, 7
    s_mul_i32 s{S_T0}, s{S_T0}, {NWG // 8}
    s_lshr_b32 s{S_T1}, s2, 3
    s_add_u32 s{S_T0}, s{S_T0}, s{S_T1}          ; g
    s_mul_i32 s{S_SPLIT}, s{S_T0}, 1639
    s_lshr_b32 s{S_SPLIT}, s{S_SPLIT}, 16        ; split = g / 40
    s_mul_i32 s{S_T1}, s{S_SPLIT}, 40
    s_sub_u32 s{S_QT}, s{S_T0}, s{S_T1}          ; q tile
    s_mov_b32 s{S_SRD + 2}, 0x10000000
    s_mov_b32 s{S_SRD + 3}, 0x00020000
    s_mov_b32 s{SX + 2}, {N * 256}
    s_mov_b32 s{SX + 3}, 0x00020000
    s_mov_b32 s{SDG + 2}, {N * 2}
    s_mov_b32 s{SDG + 3}, 0x00020000
    s_mov_b32 s{SOUT + 2}, {N * 256}
    s_mov_b32 s{SOUT + 3}, 0x00020000
    s_mov_b32 s{SMP + 2}, {N * 256}
    s_mov_b32 s{SMP + 3}, 0x00020000
    s_mov_b32 s{S_THR}, 0x4b800000               ; 2^24
    s_lshl_b32 s{S_T0}, s{S_W}, 12
    s_mul_i32 s{S_SRC0}, s{S_SPLIT}, {52 * 8192}
    s_add_u32 s{S_SRC0}, s{S_SRC0}, s{S_T0}
    s_mov_b32 s{S_T1}, {KF}
    s_cmp_lt_u32 s{S_W}, 2
    s_cselect_b32 s{S_T1}, s{S_T1}, {VF - 8192 - 8192}
    s_add_u32 s{S_SRC0}, s{S_SRC0}, s{S_T1}
    s_lshl_b32 s{S_Q0}, s{S_QT}, 16
    s_lshl_b32 s{S_T1}, s{S_W}, 14
    s_add_u32 s{S_Q0}, s{S_Q0}, s{S_T1}
    s_add_u32 s{S_Q0}, s{S_Q0}, {QF}
    s_add_u32 s{S_Q0 + 1}, s{S_Q0}, 0x1000
    s_add_u32 s{S_Q0 + 2}, s{S_Q0}, 0x2000
    s_add_u32 s{S_Q0 + 3}, s{S_Q0}, 0x3000
    s_mul_i32 s{S_T1}, s{S_QT}, 6
    s_add_u32 s{S_T1}, s{S_T1}, s{S_SPLIT}
    s_lshl_b32 s{S_PO}, s{S_T1}, 16
    s_lshl_b32 s{S_T0}, s{S_W}, 14
    s_add_u32 s{S_PO}, s{S_PO}, s{S_T0}
    s_add_u32 s{S_PO}, s{S_PO}, {PO}
    s_lshl_b32 s{S_PL}, s{S_T1}, 11
    s_lshl_b32 s{S_T0}, s{S_W}, 9
    s_add_u32 s{S_PL}, s{S_PL}, s{S_T0}
    s_add_u32 s{S_PL}, s{S_PL}, {PL}
    s_mov_b32 s{S_U}, 51
    s_cmp_eq_u32 s{S_SPLIT}, 5
    s_cselect_b32 s{S_U}, 52, s{S_U}
    s_mov_b32 s{S_MODE}, 0
    s_add_u32 s{S_T0}, s{S_U}, 1
    s_cmp_lt_u32 s{S_W}, 2
    s_cselect_b32 s{S_T1}, 0, 1
    s_add_u32 s{S_T0}, s{S_T0}, s{S_T1}
    s_lshl_b32 s{S_T0}, s{S_T0}, 13
    s_add_u32 s{SKV + 2}, s{S_SRC0}, s{S_T0}
    s_sub_u32 s{SKV + 2}, s{SKV + 2}, 4096
    s_mov_b32 s{SKV + 3}, 0x00020000
    s_mov_b32 s{S_REC}, {REC}
    s_mov_b32 s{S_CAP}, {CAP}
    s_lshl_b32 s{S_FLG}, s{S_QT}, 7
    s_add_u32 s{S_FLG}, s{S_FLG}, {FLG}
    s_mul_i32 s{S_T0}, s{S_W}, 6
    s_add_u32 s{S_T0}, s{S_T0}, s{S_SPLIT}
    s_lshl_b32 s{S_T1}, s{S_QT}, 4
    s_add_u32 s{S_T1}, s{S_T1}, s{S_T0}
    s_cmp_lt_u32 s{S_T0}, 16
    s_cselect_b32 s{S_MASK}, -1, 0
    s_cmp_lt_u32 s{S_T1}, {N // 16}
    s_cselect_b32 s{S_MASK}, s{S_MASK}, 0
    s_lshl_b32 s{S_I}, s{S_T1}, 8
    s_add_u32 s{S_I}, s{S_I}, {TAB}
    s_mul_i32 s{S_T0}, s{S_W}, {RSZ}
    s_add_u32 s{S_T0}, s{S_T0}, {RB}
    v_mov_b32 v{VRB}, s{S_T0}
    s_sub_u32 s{S_T0}, s{S_T0}, 128
    v_mov_b32 v{VDUM}, s{S_T0}
    v_mov_b32 v{VDREC}, 16
    v_mov_b32 v{VOOB}, 0x7fffffff
    v_mov_b32 v4, 0
    v_mov_b32 v5, {LDS_FLAG}
    ds_write_b32 v5, v4
    """)
    emit_region_reset(a)
    a(f"""
    s_waitcnt lgkmcnt(0)
    s_and_b32 s{S_SRD + 1}, s{S_SRD + 1}, 0xffff
    s_and_b32 s{SX + 1}, s{SX + 1}, 0xffff
    s_and_b32 s{SDG + 1}, s{SDG + 1}, 0xffff
    s_and_b32 s{SOUT + 1}, s{SOUT + 1}, 0xffff
    s_mov_b32 s{SKV}, s{S_SRD}
    s_mov_b32 s{SKV + 1}, s{S_SRD + 1}
    s_add_u32 s{SMP}, s{S_SRD}, {MP}
    s_addc_u32 s{SMP + 1}, s{S_SRD + 1}, 0
    buffer_load_dword v{VREM}, v16, {SRD}, s{S_I} offen
    """)
    a.label("L_k2_restart")
    a.seg("k2_pro")
    a(f"s_mov_b32 s{S_SRC}, s{S_SRC0}")
    a(f"s_lshl_b32 s{S_M0}, s{S_W}, 12")
    a(f"s_mov_b32 m0, s{S_M0}")
    a(f"s_mov_b32 s{S_LEFT}, s{S_U}")

    def dma_stage():
        for k in range(4):
            a(f"buffer_load_dwordx4 v{VL16}, {KVS}, s{S_SRC} offen offset:{1024 * k} lds")

    def dma_adv():
        a(f"s_add_u32 s{S_M0}, s{S_M0}, 0x4000")
        a(f"s_and_b32 m0, s{S_M0}, 0x1ffff")
        a(f"s_add_u32 s{S_SRC}, s{S_SRC}, 0x2000")

    dma_stage()
    for i in (8, 9, 10, 11, 12, 13, 14, 15, 0, 1, 2, 3, 4, 5, 6, 7):
        a(f"buffer_load_dwordx4 {ar(4 * i, 4)}, v{VL16}, {SRD}, s{S_Q0 + (i >> 2)} offen offset:{1024 * (i & 3)}")
    for st in range(PF):
        dma_adv()
        dma_stage()
    dma_adv()
    for i in range(32 * NQ):
        a(f"v_mov_b32 v{O + i}, 0")
    for i in range(32):
        a(f"v_accvgpr_write_b32 a{AV + i}, 0")
    for i in range(8):
        a(f"v_mov_b32 v{P + 8 + i}, 0")
    for qb in range(NQ):
        a(f"v_mov_b32 v{L + qb}, 0")
    a(f"s_waitcnt vmcnt({4 * PF})")
    a("s_barrier")
    for s in range(8):
        a(f"ds_read_b128 {ar(AK + 4 * s, 4)}, v{VL16} offset:{1024 * s}")
    a(f"v_add_u32 v{VLDS}, 0x4000, v{VL16}")
    a(f"s_cmp_lg_u32 s{S_MODE}, 0")
    a("s_cbranch_scc1 L_k2_norec")
    a(f"""
    v_and_b32 v{VREM}, s{S_MASK}, v{VREM}
    v_and_b32 v2, 63, v0
    v_mul_u32_u24 v2, {RECS}, v2
    v_and_b32 v3, 0xffff, v{VREM}
    v_lshl_add_u32 v{VSEG}, v3, 2, v2
    v_lshrrev_b32 v{VREM}, 16, v{VREM}
    """)
    for k in range(NSLOT // 4):
        a(f"buffer_load_dwordx4 {vr(RC + 4 * k, 4)}, v{VSEG}, {SRD}, s{S_REC} offen offset:{16 * k}")
    a.label("L_k2_norec")
    a("s_waitcnt lgkmcnt(0)")
    for qb in (2, 3, 0, 1):
        for kb in range(2):
            for s in range(4):
                a(mfma_qk(qb, kb, s, czero=True))
    for qb in (2, 3, 0, 1):
        emit_rowmax(a, qb, 2, VT)
        for i in range(4):
            a(f"v_sub_f32 v{NM + 4 * qb + i}, 0, v{VT}")
        if qb < 2:
            for i in range(8):
                a(f"v_sub_f32 v{St(qb, 0) + i}, v{St(qb, 0) + i}, v{VT}")
    if cfg.get("stamp"):
        a("s_memtime s[90:91]")
        a("s_memrealtime s[92:93]")
        a("s_waitcnt lgkmcnt(0)")
    a(f"s_cmp_lg_u32 s{S_MODE}, 0")
    a("s_cbranch_scc1 L_safe")
    a(f"s_mov_b32 s{S_CNT}, {NB0}")
    a(f"s_mov_b32 s{S_EV}, 0")
    a.raw(".p2align 6")
    emit_body(a, cfg, "m", False)
    a.seg("k2_mid")
    a(f"s_add_u32 s{S_EV}, s{S_EV}, 1")
    a(f"s_cmp_eq_u32 s{S_EV}, 4")
    a("s_cbranch_scc1 L_loop_done")
    a(f"s_cmp_gt_u32 s{S_EV}, 1")
    a("s_cbranch_scc1 L_ev_pf")
    a.seg("k2_ev")
    a(f"s_waitcnt vmcnt({4 * NB0})")
    a("v_mov_b32 v12, 1")
    RK = 4
    for grp in range(NSLOT // 8):
        for k in range(8):
            a(f"v_cmp_lt_u32 s[{SMK + 2 * k}:{SMK + 2 * k + 1}], {8 * grp + k}, v{VREM}")
        for k in range(8):
            r = RC + 8 * grp + k
            a(f"v_and_b32 v{BT + k}, 15, v{r}")
            a(f"v_lshl_add_u32 v{BT + k}, v{BT + k}, 2, v{VRB}")
        if grp:
            a(f"s_cmp_eq_u64 s[{SMK}:{SMK + 1}], 0")
            a("s_cbranch_scc1 L_ev_built")
        for k in range(8):
            a(f"s_mov_b64 exec, s[{SMK + 2 * k}:{SMK + 2 * k + 1}]")
            a(f"ds_add_rtn_u32 v{RK + k}, v{BT + k}, v12")
        for k in range(8):
            r = RC + 8 * grp + k
            a(f"s_mov_b64 exec, s[{SMK + 2 * k}:{SMK + 2 * k + 1}]")
            a(f"s_waitcnt lgkmcnt(7)")
            a(f"v_cmp_gt_u32 vcc, s{S_CAP}, v{RK + k}")
            a(f"v_lshl_add_u32 v{BT + k}, v{RK + k}, 6, v{BT + k}")
            a("s_nop 0")
            a("s_mov_b64 exec, vcc")
            a(f"ds_write_b32 v{BT + k}, v{r} offset:256")
        a("s_mov_b64 exec, -1")
    a.label("L_ev_built")
    a(f"""
    v_and_b32 v2, 15, v0
    v_lshl_add_u32 v2, v2, 2, v{VRB}
    ds_read_b32 v3, v2
    v_cmp_lt_u32 s[{SMK}:{SMK + 1}], {NSLOT}, v{VREM}
    s_waitcnt lgkmcnt(0)
    v_cmp_lt_u32 vcc, s{S_CAP}, v3
    s_nop 3
    s_or_b64 vcc, vcc, s[{SMK}:{SMK + 1}]
    s_cbranch_vccnz L_car_e
    v_mov_b32 v{VREM}, 0
    """)
    a.label("L_ev_ret")
    PFA, PFB = cfg.get("pfa", 3), cfg.get("pfb", 7)
    AXV, ADI = 240, 252
    a(f"""
    v_bfe_u32 v2, v0, 2, 4
    v_and_b32 v3, 3, v0
    s_lshl_b32 s{S_T0}, s{S_W}, 6
    s_lshl_b32 s{S_T1}, s{S_QT}, 4
    s_add_u32 s{S_T1}, s{S_T1}, s{S_SPLIT}
    s_lshl_b32 s{S_I}, s{S_T1}, 12
    s_add_u32 s{S_I}, s{S_I}, s{S_T0}
    v_lshlrev_b32 v{VX}, 8, v2
    v_lshl_add_u32 v{VX}, v3, 3, v{VX}
    v_add_u32 v{VX}, s{S_I}, v{VX}
    v_add_u32 v{VX + 1}, {6 * 4096}, v{VX}
    v_add_u32 v{VX + 2}, {12 * 4096}, v{VX}
    s_lshl_b32 s{S_I}, s{S_T1}, 5
    v_lshlrev_b32 v4, 1, v2
    v_add_u32 v4, s{S_I}, v4
    """)
    for b in range(3):
        a(f"buffer_load_dwordx2 {ar(AXV + 4 * b, 2)}, v{VX + b}, s[{SX}:{SX + 3}], 0 offen")
        a(f"buffer_load_dwordx2 {ar(AXV + 4 * b + 2, 2)}, v{VX + b}, s[{SX}:{SX + 3}], 0 offen offset:32")
        a(f"buffer_load_ushort a{ADI + b}, v4, s[{SDG}:{SDG + 3}], 0 offen offset:{192 * b}")
    a(f"""
    s_lshr_b32 s{S_I}, s2, 3
    s_mul_i32 s{S_I}, s{S_I}, {4 * 22 * 1024}
    s_mul_i32 s{S_T0}, s{S_W}, {22 * 1024}
    s_add_u32 s{S_I}, s{S_I}, s{S_T0}
    s_sub_u32 s{S_CNT}, s{S_LEFT}, {NB0 + PFA + PFB}
    s_branch L_body_m
    """)
    a.label("L_ev_pf")
    a.seg("k2_pf")
    a(f"v_add_u32 v2, s{S_I}, v{VL16}")
    for k in range(11):
        if k % 4 == 0 and k:
            a("v_add_u32 v2, 0x1000, v2")
        if not cfg.get("nopf"):
            a(f"buffer_load_dwordx4 {ar(128 + 4 * k, 4)}, v2, s[{SMP}:{SMP + 3}], 0 offen offset:{1024 * (k % 4)}")
    a(f"s_add_u32 s{S_I}, s{S_I}, {11 * 1024}")
    a(f"s_cmp_eq_u32 s{S_EV}, 2")
    a(f"s_cselect_b32 s{S_CNT}, {PFA}, {PFB}")
    a("s_branch L_body_m")
    a.label("L_loop_done")
    a.seg("k2_mid2")
    if cfg.get("stamp"):
        a("s_memtime s[94:95]")
        a("s_memrealtime s[96:97]")
        a(f"s_load_dwordx2 s[64:65], s[0:1], 80")
        a("s_waitcnt lgkmcnt(0)")
        a("s_sub_u32 s94, s94, s90")
        a("s_sub_u32 s96, s96, s92")
        a("v_mov_b32 v2, s94")
        a("v_mov_b32 v3, s96")
        a("s_and_b32 s65, s65, 0xffff")
        a("s_mov_b32 s66, 256")
        a("s_mov_b32 s67, 0x00020000")
        a("s_lshr_b32 s72, s2, 3")
        a("s_lshl_b32 s72, s72, 3")
        a("v_mov_b32 v4, s72")
        a("s_and_b32 s73, s2, 7")
        a(f"s_or_b32 s73, s73, s{S_W}")
        a("s_cmp_lg_u32 s73, 0")
        a("s_cbranch_scc1 L_nostamp")
        a("buffer_store_dwordx2 v[2:3], v4, s[64:67], 0 offen")
        a.label("L_nostamp")
    a(f"s_cmp_eq_u32 s{S_SPLIT}, 5")
    a("s_cbranch_scc1 L_body_lm")
    emit_body(a, cfg, "lf", False, last=True, nkb=2)
    a("s_branch L_k2_chk")
    emit_body(a, cfg, "lm", False, last=True, nkb=1)
    a.label("L_k2_chk")
    a.seg("k2_chk")
    a(f"""
    v_max3_f32 v4, v{L}, v{L + 1}, v{L + 2}
    v_max_f32 v4, v4, v{L + 3}
    v_add_f32 v6, v{L}, v{L + 1}
    v_add_f32 v7, v{L + 2}, v{L + 3}
    v_add_f32 v6, v6, v7
    s_mov_b32 s{S_T0}, 0x53800000
    v_cmp_ngt_f32 vcc, s{S_T0}, v4
    v_cmp_u_f32 s[{SMK}:{SMK + 1}], v6, v6
    v_mov_b32 v5, {LDS_FLAG}
    v_mov_b32 v4, 1
    s_or_b64 vcc, vcc, s[{SMK}:{SMK + 1}]
    s_cbranch_vccz L_k2_chk2
    ds_write_b32 v5, v4
    """)
    a.label("L_k2_chk2")
    a(f"""
    s_waitcnt lgkmcnt(0)
    s_barrier
    ds_read_b32 v4, v5
    s_waitcnt lgkmcnt(0)
    v_readfirstlane_b32 s{S_T0}, v4
    s_nop 3
    s_cmp_eq_u32 s{S_T0}, 0
    s_cbranch_scc1 L_k2_epi
    s_waitcnt vmcnt(0)
    s_barrier
    """)
    a(f"s_mov_b32 s{S_MODE}, 1")
    a("s_branch L_k2_restart")
    a.label("L_safe")
    a.seg("k2_safe0")
    a(f"s_mov_b32 s{S_CNT}, s{S_LEFT}")
    emit_body(a, cfg, "s", True)
    a.seg("k2_smid")
    a(f"s_cmp_eq_u32 s{S_SPLIT}, 5")
    a("s_cbranch_scc1 L_body_sm")
    emit_body(a, cfg, "sf", True, last=True, nkb=2)
    a("s_branch L_k2_epi0")
    emit_body(a, cfg, "sm", True, last=True, nkb=1)
    a.label("L_k2_epi0")
    a.seg("k2_epi0")
    a("s_nop 7")
    a.label("L_k2_epi")
    a.seg("k2_epi")
    if cfg.get("tl"):
        a("s_memrealtime s[98:99]")
    VN, VG, VOFF, VLA, VCA, VR, VPLA, VQ = 2, 3, 4, 5, 6, 7, 8, 16
    smp = f"s[{SMP}:{SMP + 3}]"
    def lane_setup():
        a(f"""
        v_and_b32 v{VN}, 15, v0
        v_bfe_u32 v{VG}, v0, 4, 2
        v_bfe_u32 v{VR}, v0, 2, 4
        v_and_b32 v{VQ}, 3, v0
        s_lshl_b32 s{S_T0}, s{S_W}, 6
        v_lshlrev_b32 v{VOFF}, 4, v{VQ}
        v_add_u32 v{VOFF}, s{S_T0}, v{VOFF}
        v_sub_u32 v{VOFF}, v{VOFF}, v{VR}
        v_lshlrev_b32 v{VLA}, 2, v{VR}
        v_add_u32 v{VLA}, {RB}, v{VLA}
        v_mul_u32_u24 v{VCA}, {RSZ}, v{VG}
        v_lshl_add_u32 v{VCA}, v{VN}, 2, v{VCA}
        v_add_u32 v{VCA}, {RB}, v{VCA}
        ds_read_b32 v9, v{VCA}
        v_lshlrev_b32 v{VPLA}, 3, v{VN}
        """)

    def idx_reads():
        for k in range(CH):
            for b in range(3):
                a(f"ds_read_b32 v{IX + 3 * k + b}, v{VLA} offset:{b * RSZ + 256 + 64 * k}")
        a(f"v_add_u32 v{VLA}, {CH * 64}, v{VLA}")

    def issue(n):
        a(f"v_add_u32 v{IX + n}, v{IX + n}, v{VOFF}")
        a(f"buffer_load_dwordx4 {ar(4 * n, 4)}, v{IX + n}, {smp}, 0 offen")

    def consume(n):
        b = n % 3
        for h in range(2):
            d = vr(AG + 8 * b + 4 * h, 4)
            a(f"{MF} {d}, {vr(AH + 4 * h, 4)}, {ar(4 * n, 4)}, {d}")

    def maxc():
        a("s_nop 1")
        for sh in ("row_shr:1", "row_shr:2", "row_shr:4", "row_shr:8"):
            a(f"v_max_u32_dpp v9, v9, v9 {sh} row_mask:0xf bank_mask:0xf")
            a("s_nop 1")
        a("v_max_u32_dpp v9, v9, v9 row_bcast:15 row_mask:0xa bank_mask:0xf")
        a("s_nop 1")
        a("v_max_u32_dpp v9, v9, v9 row_bcast:31 row_mask:0xc bank_mask:0xf")
        a("s_nop 1")
        a(f"v_readlane_b32 s{S_MAXC}, v9, 63")
        a("s_nop 3")
        a(f"s_min_u32 s{S_N}, s{S_MAXC}, {CAP}")
        a(f"s_add_u32 s{S_N}, s{S_N}, {CH - 1}")
        a(f"s_mul_i32 s{S_N}, s{S_N}, 5462")
        a(f"s_lshr_b32 s{S_N}, s{S_N}, 16")
        a(f"s_max_u32 s{S_N}, s{S_N}, 2")

    def publish():
        for sw in ("v_permlane32_swap_b32", "v_permlane16_swap_b32"):
            for qb in range(NQ):
                a(f"v_mov_b32 v{T + qb}, v{L + qb}")
            a("s_nop 0")
            for qb in range(NQ):
                a(f"{sw} v{L + qb}, v{T + qb}")
            a("s_nop 0")
            for qb in range(NQ):
                a(f"v_add_f32 v{L + qb}, v{L + qb}, v{T + qb}")
        for qb in range(NQ):
            a(f"v_mov_b32 v{57 + 2 * qb}, v{L + qb}")
        n = 0
        for qb in range(NQ):
            a(f"s_add_u32 s{S_T0}, s{S_PO}, {qb * 4096}")
            for p in range(4):
                t = 26 + 4 * (n % 2)
                n += 1
                for d in range(4):
                    src = O + (qb * 8 + 2 * p) * 4 + 2 * d
                    a(f"v_cvt_pk_bf16_f32 v{t + d}, v{src}, v{src + 1}")
                a(f"buffer_store_dwordx4 {vr(t, 4)}, v{VL16}, {SRD}, s{S_T0} offen offset:{1024 * p} sc1")
        a("s_mov_b64 exec, 0xffff")
        for qb in range(NQ):
            a(f"buffer_store_dwordx2 v[{56 + 2 * qb}:{57 + 2 * qb}], v{VPLA}, {SRD}, s{S_PL} offen offset:{128 * qb} sc1")
        a("s_mov_b64 exec, -1")


    SF = cfg.get('storefirst', 0)
    lane_setup()
    for qb in range(NQ):
        a(f"v_sub_f32 v{56 + 2 * qb}, 0, v{NM + 4 * qb}")
    if SF:
        publish()
    idx_reads()
    a(f"""
    v_and_b32 v15, 1, v{VN}
    v_lshlrev_b32 v15, 4, v15
    v_mov_b32 v14, 0x3f80
    v_lshlrev_b32 v15, v15, v14                  ; value
    v_bfe_u32 v14, v{VN}, 1, 1
    v_lshrrev_b32 v1, 2, v{VN}
    v_xor_b32 v1, v1, v{VG}
    v_lshl_add_u32 v14, v1, 1, v14               ; 0/1 when g == i>>2
    """)
    for k in range(2):
        a(f"v_cmp_eq_u32 s[{SMK + 2 * k}:{SMK + 2 * k + 1}], {k}, v14")
    for k in (2, 3, 4, 5):
        a(f"v_mov_b32 v{AH + k}, 0")
    for k in range(2):
        a(f"v_cndmask_b32 v{AH + k}, 0, v15, s[{SMK + 2 * k}:{SMK + 2 * k + 1}]")
        a(f"v_cndmask_b32 v{AH + 6 + k}, 0, v15, s[{SMK + 2 * k}:{SMK + 2 * k + 1}]")
    for i in range(24):
        a(f"v_mov_b32 v{AG + i}, 0")
    a("s_waitcnt lgkmcnt(0)")
    NG = 3 * CH
    for n in range(NG):
        issue(n)
    maxc()
    if not SF:
        publish()
    if cfg.get("tl"):
        a("s_memrealtime s[62:63]")
    if not SF:
        idx_reads()
        a("s_waitcnt lgkmcnt(0)")
        for n in range(NG):
            a(f"s_waitcnt vmcnt({NG - 1 + 20})")
            consume(n)
            issue(n)
    if cfg.get("tl"):
        a("s_memrealtime s[60:61]")
    a(f"s_waitcnt vmcnt({NG})")
    if cfg.get("tl"):
        a("s_memrealtime s[56:57]")
    a("s_barrier")
    a(f"""
    s_cmp_lg_u32 s{S_W}, 0
    s_cbranch_scc1 L_nosig
    s_lshl_b32 s{S_T0}, s{S_SPLIT}, 2
    v_mov_b32 v14, s{S_T0}
    v_mov_b32 v15, 1
    s_mov_b64 exec, 1
    buffer_store_dword v15, v14, {SRD}, s{S_FLG} offen sc1
    s_mov_b64 exec, -1
    """)
    a.label("L_nosig")
    a(f"s_sub_u32 s{S_N}, s{S_N}, {1 if SF else 2}")
    a.label("L_g_loop")
    a.seg("k2_g")
    a(f"s_cmp_eq_u32 s{S_N}, 0")
    a("s_cbranch_scc1 L_g_drain")
    idx_reads()
    a(f"s_sub_u32 s{S_N}, s{S_N}, 1")
    a("s_waitcnt lgkmcnt(0)")
    for n in range(NG):
        a(f"s_waitcnt vmcnt({NG - 1})")
        consume(n)
        issue(n)
    a("s_branch L_g_loop")
    a.label("L_g_drain")
    a.seg("k2_gd")
    for n in range(NG):
        a(f"s_waitcnt vmcnt({NG - 1 - n})")
        consume(n)
    a(f"s_cmp_gt_u32 s{S_MAXC}, {CAP}")
    a("s_cbranch_scc1 L_more")
    a.seg("k2_fin")
    if cfg.get("tl"):
        a("s_memrealtime s[58:59]")
    a(f"""
    v_and_b32 v14, 63, v0
    v_min_u32 v14, 5, v14
    v_lshlrev_b32 v14, 2, v14
    """)
    a.label("L_poll")
    a(f"""
    buffer_load_dword v15, v14, {SRD}, s{S_FLG} offen sc1
    s_waitcnt vmcnt(0)
    v_cmp_ne_u32 vcc, 1, v15
    s_cbranch_vccz L_poll_done
    s_sleep 4
    s_branch L_poll
    """)
    a.label("L_poll_done")
    if cfg.get("tl"):
        a("s_memrealtime s[100:101]")
        a("s_waitcnt lgkmcnt(0)")
    POV, PLV = 128, 200
    a(f"""
    s_mul_i32 s{S_T0}, s{S_QT}, {6 * 65536}
    s_lshl_b32 s{S_T1}, s{S_SPLIT}, 12
    s_add_u32 s{S_T0}, s{S_T0}, s{S_T1}
    s_lshl_b32 s{S_T1}, s{S_W}, 10
    s_add_u32 s{S_T0}, s{S_T0}, s{S_T1}
    s_add_u32 s{S_PO}, s{S_T0}, {PO}
    s_mul_i32 s{S_T0}, s{S_QT}, {6 * 2048}
    s_lshl_b32 s{S_T1}, s{S_SPLIT}, 7
    s_add_u32 s{S_T0}, s{S_T0}, s{S_T1}
    s_add_u32 s{S_PL}, s{S_T0}, {PL}
    """)
    for b in range(3):
        for s in range(6):
            a(f"s_add_u32 s{S_T1}, s{S_PL}, {s * 2048}")
            a(f"buffer_load_dwordx2 {vr(PLV + 12 * b + 2 * s, 2)}, v{VPLA}, {SRD}, s{S_T1} offen offset:{768 * b} sc1")
        for s in range(6):
            a(f"s_add_u32 s{S_T0}, s{S_PO}, {s * 65536 + b * 6 * 4096}")
            a(f"buffer_load_dwordx4 {vr(POV + 24 * b + 4 * s, 4)}, v{VL16}, {SRD}, s{S_T0} offen sc1")
    ACC = 26
    a(f"v_lshl_add_u32 v14, v{VQ}, 4, v{VR}")
    a("v_lshlrev_b32 v14, 2, v14")
    for b in range(3):
        pl, po = PLV + 12 * b, POV + 24 * b
        if b == 2:
            a(f"s_cmp_gt_u32 s{S_SPLIT}, 3")
            a("s_cbranch_scc1 L_k2_done")
        a(f"v_accvgpr_read_b32 v40, a{ADI + b}")
        for d in range(4):
            a(f"v_accvgpr_read_b32 v{36 + d}, a{AXV + 4 * b + d}")
        a(f"s_waitcnt vmcnt({6 + 12 * (2 - b) + (2 * b)})" if b == 0 else f"s_waitcnt vmcnt({6 + 12 * (2 - b) + 2 * b})")
        a(f"v_max3_f32 v34, v{pl}, v{pl + 2}, v{pl + 4}")
        a(f"v_max3_f32 v34, v34, v{pl + 6}, v{pl + 8}")
        a(f"v_max_f32 v34, v34, v{pl + 10}")
        for s in range(6):
            a(f"v_sub_f32 v{pl + 2 * s}, v{pl + 2 * s}, v34")
        for s in range(6):
            a(f"v_exp_f32 v{pl + 2 * s}, v{pl + 2 * s}")
        a(f"v_lshlrev_b32 v40, 16, v40")
        a(f"v_mul_f32 v35, v{pl}, v{pl + 1}")
        for s in range(1, 6):
            a(f"v_fmac_f32 v35, v{pl + 2 * s}, v{pl + 2 * s + 1}")
        a("v_rcp_f32 v35, v35")
        a("s_nop 0")
        for s in range(6):
            a(f"v_mul_f32 v{pl + 2 * s}, v{pl + 2 * s}, v35")
        for s in range(6):
            a(f"s_waitcnt vmcnt({5 - s + 12 * (2 - b) + 2 * b})")
            for d in range(4):
                r = po + 4 * s + d
                a(f"v_lshlrev_b32 v42, 16, v{r}")
                a(f"v_and_b32 v43, 0xffff0000, v{r}")
                op = "v_mul_f32" if s == 0 else "v_fmac_f32"
                a(f"{op} v{ACC + 2 * d}, v42, v{pl + 2 * s}")
                a(f"{op} v{ACC + 2 * d + 1}, v43, v{pl + 2 * s}")
        for j in range(8):
            a(f"ds_bpermute_b32 v{ACC + j}, v14, v{ACC + j}")
        for j in range(8):
            a(f"s_waitcnt lgkmcnt({7 - j})")
            a(f"v_fmac_f32 v{ACC + j}, v{AG + 8 * b + j}, v40")
        ob = 56 + 4 * (b & 1)
        for d in range(4):
            a(f"v_cvt_pk_bf16_f32 v42, v{ACC + 2 * d}, v{ACC + 2 * d + 1}")
            a(f"v_lshlrev_b32 v34, 16, v{36 + d}")
            a(f"v_and_b32 v35, 0xffff0000, v{36 + d}")
            a(f"v_and_b32 v43, 0xffff0000, v42")
            a(f"v_lshlrev_b32 v42, 16, v42")
            a(f"v_pk_add_f32 v[42:43], v[42:43], v[34:35]")
            a(f"v_cvt_pk_bf16_f32 v{ob + d}, v42, v43")
        a(f"buffer_store_dwordx2 {vr(ob, 2)}, v{VX + b}, s[{SOUT}:{SOUT + 3}], 0 offen")
        a(f"buffer_store_dwordx2 {vr(ob + 2, 2)}, v{VX + b}, s[{SOUT}:{SOUT + 3}], 0 offen offset:32")
    a.label("L_k2_done")
    a("s_waitcnt vmcnt(0)")
    if cfg.get("tl"):
        a("s_waitcnt lgkmcnt(0)")
        a("s_mov_b64 exec, 1")
        a("v_lshrrev_b32 v1, 6, v0")
        a("v_lshlrev_b32 v1, 5, v1")
        a(f"s_lshl_b32 s88, s2, 7")
        a(f"s_add_u32 s88, s88, {TR + 3 * 0x40000}")
        for i, sr in enumerate((98, 62, 60, 56, 58, 100)):
            a(f"v_mov_b32 v{2 + i}, s{sr}")
        a(f"buffer_store_dwordx4 v[2:5], v1, {SRD}, s88 offen")
        a(f"buffer_store_dwordx2 v[6:7], v1, {SRD}, s88 offen offset:16")
    stamp_exit(a, cfg, 84, 2, SRD, TR)
    a.label("L_k2_end")
    a("s_endpgm")
    a.label("L_more")
    a.seg("k2_more")
    a("s_barrier")
    a("s_branch L_car_t")
    a.label("L_more2")
    a.seg("k2_more2")
    a(f"""
    s_barrier
    """)
    lane_setup()
    idx_reads()
    a("s_waitcnt lgkmcnt(0)")
    for n in range(NG):
        issue(n)
    maxc()
    a(f"s_sub_u32 s{S_N}, s{S_N}, 1")
    a("s_branch L_g_loop")
    emit_careful(a, "e", "L_ev_ret")
    emit_careful(a, "t", "L_more2")
    for tag, nkb in (("s", 2), ("sf", 2), ("sm", 1)):
        for X in "AB":
            emit_slow(a, X, nkb, tag + X)
    return dict(name=name, vgpr=512, accum=256, sgpr=102, grid=NWG, block=256, lds=RB + 4 * RSZ,
                chains=[["k2_pro0", "k2_pro", "body_m", "body_m", "k2_mid", "k2_mid2", "body_lf", "k2_chk", "k2_epi", "k2_g", "k2_g", "k2_gd", "k2_fin"],
                        ["body_m", "k2_mid", "k2_ev", "body_m"], ["body_m", "k2_mid", "k2_pf", "body_m"], ["k2_ev", "careful_e", "body_m"],
                        ["body_m", "k2_mid", "k2_mid2", "body_lm", "k2_chk", "k2_pro"],
                        ["k2_pro", "k2_safe0", "body_s", "body_s", "k2_smid", "body_sf", "k2_epi0", "k2_epi"],
                        ["body_s", "k2_smid", "body_sm", "k2_epi0", "k2_epi"],
                        ["k2_gd", "k2_more", "careful_t", "k2_more2", "k2_g", "k2_gd"]] +
                       [["slow_" + t + X] for t in ("s", "sf", "sm") for X in "AB"])
```

```python
from layout import *
from asmlib import stamp_entry, stamp_exit

CFG = {}
MF = "v_mfma_f32_16x16x32_bf16"
NWG = 240
NQ = 4
CAP = 72
NGMAX = 15
NSLOT = 24

O, S, NM, P, E_, T, L = 128, 64, 96, 112, 26, 42, 52
VLDS, VL16, VT, VT2, VT3, VOOB = 20, 21, 22, 23, 24, 25
RC, VREM, VSEG, BT = 26, 50, 51, 56
AQ, AK, AV = 0, 64, 96
S_SRD = 4
S_W, S_SRC, S_M0, S_CNT, S_THR, S_SPLIT, S_QT, S_T0, S_T1 = 8, 9, 10, 11, 12, 13, 14, 15, 16
S_LEFT, S_EV, S_NB, S_MODE = 17, 18, 19, 30
S_Q0 = 20
S_PO, S_PL, S_SRC0, S_U = 24, 25, 26, 27
S_CNTB, S_LSTB = 28, 29
SRD = f"s[{S_SRD}:{S_SRD + 3}]"
SKV = 80
KVS = "s[80:83]"
LDS_FLAG = 131072
ABUF, AAG, AAH, AXV, ADI = 128, 176, 200, 208, 220
GI, GOFF, GLA = 26, 30, 31
SMP = 44
RB = 131072 + 256
RSZ = 256 + CAP * 64
SENT = 0x7fffff00


def vr(b, n):
    return f"v[{b}:{b + n - 1}]"


def ar(b, n):
    return f"a[{b}:{b + n - 1}]"


def qbs(X):
    return [0, 1] if X == "A" else [2, 3]


def St(qb, kb):
    return S + (qb * 2 + kb) * 4


def mfma_qk(qb, kb, s, czero=False):
    d = vr(St(qb, kb), 4)
    c = ("0" if czero else vr(NM + 4 * qb, 4)) if s == 0 else d
    return f"{MF} {d}, {ar(AK + (kb * 4 + s) * 4, 4)}, {ar(AQ + (qb * 4 + s) * 4, 4)}, {c}"


def mfma_pv(qb, db):
    o = vr(O + (qb * 8 + db) * 4, 4)
    return f"{MF} {o}, {ar(AV + 4 * db, 4)}, {vr(P + 4 * qb, 4)}, {o}"


def qk_order(X, nkb=2):
    return [(qb, kb, s) for s in range(4) for kb in range(nkb) for qb in qbs(X)]


def pv_order(X):
    return [(qb, db) for qb in qbs(X) for db in range(8)]


class Op:
    def __init__(self, text, cost, est=0, lst=10 ** 6, deps=(), stream=None):
        self.text, self.cost, self.est, self.lst, self.deps, self.stream = text, cost, est, lst, list(deps), stream
        self.pos = None


def sm_group(X, nkb, tag, chk, rdy, dl):
    ops = []
    idx = 0
    q = qbs(X)
    lastadd = {}
    prev_small = None
    for qb in q:
        d = dl[qb] if not chk else min(dl.values())
        if nkb == 1:
            for k in (2, 3):
                ops.append(Op(f"v_mov_b32 v{P + 4 * qb + k}, 0", 4, rdy["p", qb], d - 1, stream="s" + X))
        for kb in range(nkb):
            for pr in range(2):
                s0 = St(qb, kb) + 2 * pr
                e0, e1 = (E_ + (2 * idx) % 16, E_ + (2 * idx + 1) % 16) if chk else (s0, s0 + 1)
                x0 = Op(f"v_exp_f32 v{e0}, v{s0}", 8, rdy[qb, kb], d - 2, stream="x" + X)
                x1 = Op(f"v_exp_f32 v{e1}, v{s0 + 1}", 8, rdy[qb, kb], d - 2, stream="x" + X)
                ops += [x0, x1]
                acc = (T if chk else L) + qb
                dadd = d - 1 if chk else dl["end"]
                c = Op(f"v_cvt_pk_bf16_f32 v{P + 4 * qb + 2 * kb + pr}, v{e0}, v{e1}", 4, rdy["p", qb], d - 1, [x0, x1], stream="c" + X)
                if chk and qb not in lastadd:
                    a1 = Op(f"v_add_f32 v{acc}, v{e0}, v{e1}", 4, 0, dadd, [x0, x1], stream="a" + X)
                    ops += [a1, c]
                else:
                    a0 = Op(f"v_add_f32 v{acc}, v{acc}, v{e0}", 4, 0, dadd, [x0], stream="a" + X)
                    a1 = Op(f"v_add_f32 v{acc}, v{acc}, v{e1}", 4, 0, dadd, [x1], stream="a" + X)
                    ops += [a0, a1, c]
                lastadd[qb] = a1
                lastc = c
                idx += 1
    if chk:
        d = min(dl.values())
        m = Op(f"v_max_f32 v{VT}, v{T + q[0]}, v{T + q[1]}", 4, 0, d, list(lastadd.values()), stream="a" + X)
        c = Op(f"v_cmp_lt_f32 vcc, s{S_THR}, v{VT}", 4, 0, d, [m], stream="a" + X)
        b = Op(f"s_cbranch_vccnz L_slow_{tag}\nL_back_{tag}:", 0, 0, d, [c, lastc], stream="a" + X)
        ops += [m, c, b]
        for qb in q:
            ops.append(Op(f"v_add_f32 v{L + qb}, v{L + qb}, v{T + qb}", 4, 0, dl["end"], [b], stream="a" + X))
    return ops


def schedule(ops, nm, base=8):
    streams = {}
    for o in ops:
        streams.setdefault(o.stream, []).append(o)
    best = None
    for nextra in range(0, 3 * nm):
        for o in ops:
            o.pos = None
        cap = [base + 4 * ((g + 1) * nextra // nm - g * nextra // nm) for g in range(nm)]
        head = {s: 0 for s in streams}
        out = [[] for _ in range(nm)]
        pos = 0
        ok = True
        for g in range(nm):
            pos += 1
            rem = cap[g]
            while True:
                cand = []
                for s, lst in streams.items():
                    if head[s] >= len(lst):
                        continue
                    o = lst[head[s]]
                    if o.est > g:
                        continue
                    if CFG.get("ds1") and s == "l" and any(t.startswith(("ds_", "buffer")) for t in out[g]) and o.lst > g:
                        continue
                    if any(d.pos is None or pos - d.pos < (CFG.get('xd', 2) if d.cost == 8 else 1) for d in o.deps):
                        continue
                    urg = 10 ** 9
                    acc = 0
                    for o2 in lst[head[s]:]:
                        acc += o2.cost
                        urg = min(urg, (o2.lst - g + 1) * base * o2_share(s) - acc)
                    cand.append((urg, s, o))
                if not cand:
                    break
                cand.sort(key=lambda c: c[0])
                pick = None
                for urg, s, o in cand:
                    if o.cost <= rem or o.lst <= g:
                        pick = (s, o)
                        break
                if pick is None:
                    break
                s, o = pick
                out[g].append(o.text)
                o.pos = pos
                pos += 1
                head[s] += 1
                rem -= o.cost
                if rem <= 0 and not any(streams[t][head[t]].lst <= g or streams[t][head[t]].cost == 0
                                        for t in streams if head[t] < len(streams[t])):
                    break
            if any(head[s] < len(l) and l[head[s]].lst <= g for s, l in streams.items()):
                ok = False
                break
        if ok and all(head[s] == len(l) for s, l in streams.items()):
            cost = {o.text: o.cost for o in ops}
            tot = sum(max(16, 8 + sum(cost[t] for t in out[g])) for g in range(nm))
            if best is None or tot < best[0]:
                best = (tot, out, nextra)
            if nextra > best[2] + 6:
                break
    if best is None:
        raise RuntimeError("cannot schedule")
    return best


def o2_share(s):
    return {"x": 0.5, "a": 0.3, "c": 0.3, "s": 0.3}.get(s[0], 0.3)


def emit_rowmax(a, qb, nkb, dst):
    s = St(qb, 0)
    a(f"v_max3_f32 v{dst}, v{s}, v{s + 1}, v{s + 2}")
    if nkb == 2:
        a(f"v_max3_f32 v{dst}, v{dst}, v{s + 3}, v{s + 4}")
        a(f"v_max3_f32 v{dst}, v{dst}, v{s + 5}, v{s + 6}")
        a(f"v_max_f32 v{dst}, v{dst}, v{s + 7}")
    else:
        a(f"v_max_f32 v{dst}, v{dst}, v{s + 3}")
    for sw in ("v_permlane32_swap_b32", "v_permlane16_swap_b32"):
        a(f"v_mov_b32 v{VT3}, v{dst}")
        a("s_nop 1")
        a(f"{sw} v{dst}, v{VT3}")
        a("s_nop 1")
        a(f"v_max_f32 v{dst}, v{dst}, v{VT3}")


def emit_slow(a, X, nkb, tag):
    a.seg("slow_" + tag)
    a.label(f"L_slow_{tag}")
    a("s_nop 15")
    for qb in qbs(X):
        emit_rowmax(a, qb, nkb, VT)
        a(f"v_max_f32 v{VT}, 0, v{VT}")
        a(f"v_exp_f32 v{VT2}, -v{VT}")
        a("s_nop 0")
        a(f"v_mul_f32 v{L + qb}, v{L + qb}, v{VT2}")
        for i in range(32):
            o = O + qb * 32 + i
            a(f"v_mul_f32 v{o}, v{o}, v{VT2}")
        for i in range(4):
            a(f"v_sub_f32 v{NM + 4 * qb + i}, v{NM + 4 * qb + i}, v{VT}")
        for k in range(2 * nkb):
            s = St(qb, 0) + 2 * k
            a(f"v_sub_f32 v{s}, v{s}, v{VT}")
            a(f"v_sub_f32 v{s + 1}, v{s + 1}, v{VT}")
            a(f"v_exp_f32 v{E_}, v{s}")
            a(f"v_exp_f32 v{E_ + 1}, v{s + 1}")
            a("s_nop 0")
            if k == 0:
                a(f"v_add_f32 v{T + qb}, v{E_}, v{E_ + 1}")
            else:
                a(f"v_add_f32 v{T + qb}, v{T + qb}, v{E_}")
                a(f"v_add_f32 v{T + qb}, v{T + qb}, v{E_ + 1}")
            a(f"v_cvt_pk_bf16_f32 v{P + 4 * qb + k}, v{E_}, v{E_ + 1}")
    a("s_nop 7")
    a(f"s_branch L_back_{tag}")


def emit_body(a, cfg, tag, chk, last=False, nkb=2, gb=None, loop=None):
    PF = cfg["PF"]
    lead = cfg.get("lead", 3)
    mg = cfg.get("mg", 0)
    pvB, qkB, pvA, qkA = pv_order("B"), qk_order("B", nkb), pv_order("A"), qk_order("A")
    mf = [mfma_pv(*x) for x in pvB] + [mfma_qk(*x) for x in qkB]
    pA0 = len(mf)
    mf += [mfma_pv(*x) for x in pvA]
    qA0 = len(mf)
    if not last:
        mf += [mfma_qk(*x) for x in qkA]
    gpos = []
    if gb is not None:
        for k, at in enumerate(cfg.get("gslots", [40, 47, 54, 61])):
            d = ar(AAG + 8 * gb + 4 * (k >> 1), 4)
            mf.insert(at, f"{MF} {d}, {ar(AAH + 4 * (k & 1), 4)}, {ar(ABUF + 16 * gb + 4 * k, 4)}, {d}")
            gpos.append(at)
            if at <= qA0:
                qA0 += 1
    nm = len(mf)
    ops = []
    lds = []
    if gb is not None:
        lds.append(Op(f"ds_read_b128 {vr(GI, 4)}, v{GLA} offset:{gb * RSZ + 256}", 4, 2, 7, stream="l"))
        for k, at in enumerate(gpos):
            ad = Op(f"v_add_u32 v{GI + k}, v{GI + k}, v{GOFF}", 4, pA0, at - 1, stream="g")
            ops += [ad, Op(f"buffer_load_dwordx4 {ar(ABUF + 16 * gb + 4 * k, 4)}, v{GI + k}, s[{SMP}:{SMP + 3}], 0 offen offset:{3 - k}",
                           cfg.get("dmacost", 8), at, at, [ad], stream="g")]
        if gb == 2:
            ops.append(Op(f"v_add_u32 v{GLA}, 256, v{GLA}", 4, 10, nm - 1, stream="y"))
    for db in range(8):
        lds.append(Op(f"ds_read_b128 {ar(AV + 4 * db, 4)}, v{VLDS} offset:{8192 + 1024 * db}", 4, 8 + db, pA0 - 6, stream="l"))
    if not last:
        kf = sorted(range(8), key=lambda f: max(i for i, x in enumerate(qkB) if x[1] * 4 + x[2] == f))
        for n, f in enumerate(kf):
            g = 16 + max(i for i, x in enumerate(qkB) if x[1] * 4 + x[2] == f)
            lds.append(Op(f"ds_read_b128 {ar(AK + 4 * f, 4)}, v{VLDS} offset:{1024 * f}", 4, g, qA0 - 6, stream="l"))
        adv = Op(f"v_add_u32 v{VLDS}, 0x4000, v{VLDS}", 4, 0, nm - 1, [lds[-1]], stream="z")
        ops += [adv, Op(f"v_and_b32 v{VLDS}, 0x1ffff, v{VLDS}", 4, 0, nm - 1, [adv], stream="z")]
        dg = cfg.get("dgaps", [0, 1, 33, 34])
        for k in range(4):
            ops.append(Op(f"buffer_load_dwordx4 v{VL16}, {KVS}, s{S_SRC} offen offset:{1024 * k} lds", cfg.get("dmacost", 8),
                          dg[k], dg[k], stream="d"))
    ops += lds
    finA = {}
    for i, (qb, kb, s_) in enumerate(qkA):
        finA[qb, kb] = i
    rdy = {t: max(0, finA[t] - len(qkA) + 1 + lead) for t in finA}
    rdy["p", 0] = rdy["p", 1] = 0
    ops += sm_group("A", nkb, tag + "A", chk, rdy, {0: pA0 - 1 - mg, 1: pA0 + 7 - mg, "end": qA0 - 2})
    finB = {}
    for i, (qb, kb, s_) in enumerate(qkB):
        finB[qb, kb] = i
    rdy = {t: 16 + finB[t] + 1 + lead for t in finB}
    rdy["p", 2], rdy["p", 3] = 8, 16
    ops += sm_group("B", nkb, tag + "B", chk, rdy, {2: nm - 1 - mg, 3: nm - 1, "end": nm - 1})
    tot, gaps, nx = schedule(ops, nm)
    if cfg.get("verbose"):
        print("body", tag, "model cycles", tot, "extra", nx)
    if cfg.get("memfirst"):
        for g in range(nm):
            gaps[g].sort(key=lambda t: 0 if t.startswith(("ds_", "buffer")) else 1)
    if cfg.get("explast"):
        for g in range(nm):
            if not any("L_back" in t for t in gaps[g]):
                gaps[g].sort(key=lambda t: 1 if t.startswith("v_exp") else 0)
    order = [t for g in range(nm) for t in gaps[g]]

    def nlds_after(g_end, first_k):
        n = 0
        for g in range(g_end):
            n += sum(1 for t in gaps[g] if t.startswith("ds_read") and f"offset:{0}" is not None and "a[" in t and int(t.split("a[")[1].split(":")[0]) < AV)
        return n

    gaps[pA0 - 1].append(f"s_waitcnt lgkmcnt({nlds_after(pA0, 0)})")
    if not last:
        gaps[qA0 - 1].append("s_waitcnt lgkmcnt(0)")
        lastd = max(dg)
        gaps[lastd + 2].insert(0, f"s_add_u32 s{S_M0}, s{S_M0}, 0x4000")
        gaps[lastd + 3].insert(0, f"s_and_b32 m0, s{S_M0}, 0x1ffff")
        gaps[lastd + 4].insert(0, f"s_add_u32 s{S_SRC}, s{S_SRC}, 0x2000")
        if gb is None or gb == 2:
            gaps[lastd + 5].insert(0, f"s_sub_u32 s{S_CNT}, s{S_CNT}, 1")
            gaps[nm - 2].insert(0, f"s_cmp_lg_u32 s{S_CNT}, 0")
            gaps[nm - 1].append(f"s_cbranch_scc1 L_body_{loop or tag}")
        for at in gpos:
            gaps[at - 1].append("s_waitcnt vmcnt(23)")
    a.seg("body_" + tag)
    a.label(f"L_body_{tag}")
    a(f"s_waitcnt vmcnt({4 * (PF - 1) if gb is None else 24})")
    a("s_barrier")
    for g in range(nm):
        a(mf[g])
        for t in gaps[g]:
            a(t)
    if last:
        a("s_nop 1")
        for x in pvB:
            a(mfma_pv(*x))


SX, SDG, SOUT = 32, 36, 40
S_REC, S_CAP, S_MAXC, S_N, S_I, S_MASK, S_FLG, S_NOWN = 48, 49, 50, 51, 52, 53, 54, 55
SMK = 64
VX = 46
VRB, VDUM, VDREC = 17, 18, 19


def emit_region_reset(a):
    a(f"""
    v_and_b32 v2, 63, v0
    v_lshl_add_u32 v3, v2, 2, v{VRB}
    v_cmp_eq_u32 vcc, 16, v2
    v_mov_b32 v4, 0x40000000
    v_lshl_add_u32 v5, v2, 4, v{VRB}
    v_cndmask_b32 v4, 0, v4, vcc
    ds_write_b32 v3, v4
    v_mov_b32 v6, {SENT}
    v_mov_b32 v7, {SENT}
    v_mov_b32 v8, {SENT}
    v_mov_b32 v9, {SENT}
    v_lshl_add_u32 v3, v2, 3, v{VRB}
    """)
    for k in range(4):
        a(f"ds_write_b128 v5, v[6:9] offset:{256 + 1024 * k}")
    a(f"ds_write_b64 v3, v[6:7] offset:{256 + 4096}")


def emit_careful(a, tag, ret):
    a.seg("careful_" + tag)
    a.label(f"L_car_{tag}")
    a("s_nop 7")
    emit_region_reset(a)
    a(f"""
    v_mov_b32 v10, 1
    v_mov_b32 v11, v{VSEG}
    v_mov_b32 v12, 0
    s_mov_b32 s{S_I}, 0
    s_waitcnt lgkmcnt(0)
    """)
    a.label(f"L_car_loop_{tag}")
    a(f"""
    s_lshl_b32 s{S_T0}, s{S_I}, 2
    v_add_u32 v13, s{S_T0}, v{VSEG}
    buffer_load_dwordx4 {vr(RC, 4)}, v13, {SRD}, s{S_REC} offen sc1
    s_waitcnt vmcnt(0)
    """)
    for k in range(4):
        r = RC + k
        a(f"""
        v_cmp_lt_u32 s[{SMK}:{SMK + 1}], s{S_I}, v{VREM}
        s_add_u32 s{S_I}, s{S_I}, 1
        s_nop 0
        v_cndmask_b32 v{r}, v{VDREC}, v{r}, s[{SMK}:{SMK + 1}]
        v_and_b32 v13, 31, v{r}
        v_lshl_add_u32 v13, v13, 2, v{VRB}
        ds_add_rtn_u32 v14, v13, v10
        s_waitcnt lgkmcnt(0)
        v_lshl_add_u32 v13, v14, 6, v13
        v_cmp_gt_u32 vcc, s{S_CAP}, v14
        s_nop 1
        v_cndmask_b32 v13, v{VDUM}, v13, vcc
        ds_write_b32 v13, v{r} offset:256
        s_andn2_b64 vcc, s[{SMK}:{SMK + 1}], vcc
        s_nop 0
        v_cndmask_b32 v13, v{VOOB}, v11, vcc
        v_cndmask_b32 v14, 0, v10, vcc
        buffer_store_dword v{r}, v13, {SRD}, s{S_REC} offen sc1
        v_add_u32 v12, v12, v14
        v_lshl_add_u32 v11, v14, 2, v11
        """)
    a(f"""
    v_cmp_lt_u32 vcc, s{S_I}, v{VREM}
    s_cbranch_vccnz L_car_loop_{tag}
    v_mov_b32 v{VREM}, v12
    s_waitcnt vmcnt(0) lgkmcnt(0)
    s_branch {ret}
    """)


def emit_k2(a, cfg):
    PF = cfg["PF"]
    NB0 = cfg.get("NB0", 3)
    CFG.clear()
    CFG.update(cfg)
    LIM = cfg.get("lim", NWG)
    name = "k2_attn_kernel"
    a.raw(".text")
    a.raw(f".globl {name}\n.p2align 8\n.type {name},@function")
    a.label(name)
    a.seg("k2_pro0")
    a(f"""
    s_cmp_ge_u32 s2, {LIM}
    s_cbranch_scc1 L_k2_end
    """)
    if cfg.get("tl") or cfg.get("stamp"):
        a("s_memrealtime s[84:85]")
    a(f"""
    s_load_dwordx2 s[{S_SRD}:{S_SRD + 1}], s[0:1], 88
    s_load_dwordx2 s[{SX}:{SX + 1}], s[0:1], 0
    s_load_dwordx2 s[{SDG}:{SDG + 1}], s[0:1], 24
    s_load_dwordx2 s[{SOUT}:{SOUT + 1}], s[0:1], 72
    v_lshrrev_b32 v1, 6, v0
    v_and_b32 v2, 63, v0
    v_readfirstlane_b32 s{S_W}, v1
    v_lshlrev_b32 v{VL16}, 4, v2
    v_lshlrev_b32 v16, 2, v2
    s_and_b32 s{S_T0}, s2, 7
    s_mul_i32 s{S_T0}, s{S_T0}, {NWG // 8}
    s_lshr_b32 s{S_T1}, s2, 3
    s_add_u32 s{S_T0}, s{S_T0}, s{S_T1}          ; g
    s_mul_i32 s{S_SPLIT}, s{S_T0}, 1639
    s_lshr_b32 s{S_SPLIT}, s{S_SPLIT}, 16        ; split = g / 40
    s_mul_i32 s{S_T1}, s{S_SPLIT}, 40
    s_sub_u32 s{S_QT}, s{S_T0}, s{S_T1}          ; q tile
    s_mov_b32 s{S_SRD + 2}, 0x10000000
    s_mov_b32 s{S_SRD + 3}, 0x00020000
    s_mov_b32 s{SX + 2}, {N * 256}
    s_mov_b32 s{SX + 3}, 0x00020000
    s_mov_b32 s{SDG + 2}, {N * 2}
    s_mov_b32 s{SDG + 3}, 0x00020000
    s_mov_b32 s{SOUT + 2}, {N * 256}
    s_mov_b32 s{SOUT + 3}, 0x00020000
    s_mov_b32 s{SMP + 2}, {N * 256}
    s_mov_b32 s{SMP + 3}, 0x00020000
    s_mov_b32 s{S_THR}, 0x4b800000               ; 2^24
    s_lshl_b32 s{S_T0}, s{S_W}, 12
    s_mul_i32 s{S_SRC0}, s{S_SPLIT}, {52 * 8192}
    s_add_u32 s{S_SRC0}, s{S_SRC0}, s{S_T0}
    s_mov_b32 s{S_T1}, {KF}
    s_cmp_lt_u32 s{S_W}, 2
    s_cselect_b32 s{S_T1}, s{S_T1}, {VF - 8192 - 8192}
    s_add_u32 s{S_SRC0}, s{S_SRC0}, s{S_T1}
    s_lshl_b32 s{S_Q0}, s{S_QT}, 16
    s_lshl_b32 s{S_T1}, s{S_W}, 14
    s_add_u32 s{S_Q0}, s{S_Q0}, s{S_T1}
    s_add_u32 s{S_Q0}, s{S_Q0}, {QF}
    s_add_u32 s{S_Q0 + 1}, s{S_Q0}, 0x1000
    s_add_u32 s{S_Q0 + 2}, s{S_Q0}, 0x2000
    s_add_u32 s{S_Q0 + 3}, s{S_Q0}, 0x3000
    s_mul_i32 s{S_T1}, s{S_QT}, 6
    s_add_u32 s{S_T1}, s{S_T1}, s{S_SPLIT}
    s_lshl_b32 s{S_PO}, s{S_T1}, 16
    s_lshl_b32 s{S_T0}, s{S_W}, 14
    s_add_u32 s{S_PO}, s{S_PO}, s{S_T0}
    s_add_u32 s{S_PO}, s{S_PO}, {PO}
    s_lshl_b32 s{S_PL}, s{S_T1}, 11
    s_lshl_b32 s{S_T0}, s{S_W}, 9
    s_add_u32 s{S_PL}, s{S_PL}, s{S_T0}
    s_add_u32 s{S_PL}, s{S_PL}, {PL}
    s_mov_b32 s{S_U}, 51
    s_cmp_eq_u32 s{S_SPLIT}, 5
    s_cselect_b32 s{S_U}, 52, s{S_U}
    s_mov_b32 s{S_MODE}, 0
    s_add_u32 s{S_T0}, s{S_U}, 1
    s_cmp_lt_u32 s{S_W}, 2
    s_cselect_b32 s{S_T1}, 0, 1
    s_add_u32 s{S_T0}, s{S_T0}, s{S_T1}
    s_lshl_b32 s{S_T0}, s{S_T0}, 13
    s_add_u32 s{SKV + 2}, s{S_SRC0}, s{S_T0}
    s_sub_u32 s{SKV + 2}, s{SKV + 2}, 4096
    s_mov_b32 s{SKV + 3}, 0x00020000
    s_mov_b32 s{S_REC}, {REC}
    s_mov_b32 s{S_CAP}, {CAP}
    s_lshl_b32 s{S_FLG}, s{S_QT}, 7
    s_add_u32 s{S_FLG}, s{S_FLG}, {FLG}
    s_mul_i32 s{S_T0}, s{S_W}, 6
    s_add_u32 s{S_T0}, s{S_T0}, s{S_SPLIT}
    s_lshl_b32 s{S_T1}, s{S_QT}, 4
    s_add_u32 s{S_T1}, s{S_T1}, s{S_T0}
    s_cmp_lt_u32 s{S_T0}, 16
    s_cselect_b32 s{S_MASK}, -1, 0
    s_cmp_lt_u32 s{S_T1}, {N // 16}
    s_cselect_b32 s{S_MASK}, s{S_MASK}, 0
    s_lshl_b32 s{S_I}, s{S_T1}, 8
    s_add_u32 s{S_I}, s{S_I}, {TAB}
    s_mul_i32 s{S_T0}, s{S_W}, {RSZ}
    s_add_u32 s{S_T0}, s{S_T0}, {RB}
    v_mov_b32 v{VRB}, s{S_T0}
    s_sub_u32 s{S_T0}, s{S_T0}, 128
    v_mov_b32 v{VDUM}, s{S_T0}
    v_mov_b32 v{VDREC}, 16
    v_mov_b32 v{VOOB}, 0x7fffffff
    v_mov_b32 v4, 0
    v_mov_b32 v5, {LDS_FLAG}
    ds_write_b32 v5, v4
    """)
    emit_region_reset(a)
    a(f"""
    s_waitcnt lgkmcnt(0)
    s_and_b32 s{S_SRD + 1}, s{S_SRD + 1}, 0xffff
    s_and_b32 s{SX + 1}, s{SX + 1}, 0xffff
    s_and_b32 s{SDG + 1}, s{SDG + 1}, 0xffff
    s_and_b32 s{SOUT + 1}, s{SOUT + 1}, 0xffff
    s_mov_b32 s{SKV}, s{S_SRD}
    s_mov_b32 s{SKV + 1}, s{S_SRD + 1}
    s_add_u32 s{SMP}, s{S_SRD}, {MP}
    s_addc_u32 s{SMP + 1}, s{S_SRD + 1}, 0
    buffer_load_dword v{VREM}, v16, {SRD}, s{S_I} offen
    """)
    a.label("L_k2_restart")
    a.seg("k2_pro")
    a(f"s_mov_b32 s{S_SRC}, s{S_SRC0}")
    a(f"s_lshl_b32 s{S_M0}, s{S_W}, 12")
    a(f"s_mov_b32 m0, s{S_M0}")
    a(f"s_mov_b32 s{S_LEFT}, s{S_U}")

    def dma_stage():
        for k in range(4):
            a(f"buffer_load_dwordx4 v{VL16}, {KVS}, s{S_SRC} offen offset:{1024 * k} lds")

    def dma_adv():
        a(f"s_add_u32 s{S_M0}, s{S_M0}, 0x4000")
        a(f"s_and_b32 m0, s{S_M0}, 0x1ffff")
        a(f"s_add_u32 s{S_SRC}, s{S_SRC}, 0x2000")

    dma_stage()
    for i in (8, 9, 10, 11, 12, 13, 14, 15, 0, 1, 2, 3, 4, 5, 6, 7):
        a(f"buffer_load_dwordx4 {ar(4 * i, 4)}, v{VL16}, {SRD}, s{S_Q0 + (i >> 2)} offen offset:{1024 * (i & 3)}")
    for st in range(PF):
        dma_adv()
        dma_stage()
    dma_adv()
    for i in range(32 * NQ):
        a(f"v_mov_b32 v{O + i}, 0")
    for i in range(32):
        a(f"v_accvgpr_write_b32 a{AV + i}, 0")
    for i in range(8):
        a(f"v_mov_b32 v{P + 8 + i}, 0")
    for qb in range(NQ):
        a(f"v_mov_b32 v{L + qb}, 0")
    a(f"s_waitcnt vmcnt({4 * PF})")
    a("s_barrier")
    for s in range(8):
        a(f"ds_read_b128 {ar(AK + 4 * s, 4)}, v{VL16} offset:{1024 * s}")
    a(f"v_add_u32 v{VLDS}, 0x4000, v{VL16}")
    a(f"s_cmp_lg_u32 s{S_MODE}, 0")
    a("s_cbranch_scc1 L_k2_norec")
    a(f"""
    v_and_b32 v{VREM}, s{S_MASK}, v{VREM}
    v_and_b32 v2, 63, v0
    v_mul_u32_u24 v2, {RECS}, v2
    v_and_b32 v3, 0xffff, v{VREM}
    v_lshl_add_u32 v{VSEG}, v3, 2, v2
    v_lshrrev_b32 v{VREM}, 16, v{VREM}
    """)
    for k in range(NSLOT // 4):
        a(f"buffer_load_dwordx4 {vr(RC + 4 * k, 4)}, v{VSEG}, {SRD}, s{S_REC} offen offset:{16 * k}")
    a.label("L_k2_norec")
    a("s_waitcnt lgkmcnt(0)")
    for qb in (2, 3, 0, 1):
        for kb in range(2):
            for s in range(4):
                a(mfma_qk(qb, kb, s, czero=True))
    for qb in (2, 3, 0, 1):
        emit_rowmax(a, qb, 2, VT)
        for i in range(4):
            a(f"v_sub_f32 v{NM + 4 * qb + i}, 0, v{VT}")
        if qb < 2:
            for i in range(8):
                a(f"v_sub_f32 v{St(qb, 0) + i}, v{St(qb, 0) + i}, v{VT}")
    if cfg.get("stamp"):
        a("s_memtime s[90:91]")
        a("s_memrealtime s[92:93]")
        a("s_waitcnt lgkmcnt(0)")
    a(f"s_cmp_lg_u32 s{S_MODE}, 0")
    a("s_cbranch_scc1 L_safe")
    a(f"s_mov_b32 s{S_CNT}, {NB0}")
    a(f"s_mov_b32 s{S_EV}, 0")
    a.raw(".p2align 6")
    emit_body(a, cfg, "m", False)
    a.seg("k2_mid")
    a(f"s_add_u32 s{S_EV}, s{S_EV}, 1")
    a(f"s_cmp_eq_u32 s{S_EV}, 3")
    a("s_cbranch_scc1 L_loop_done")
    a(f"s_cmp_eq_u32 s{S_EV}, 2")
    a("s_cbranch_scc1 L_ev_g")
    a.seg("k2_ev")
    a(f"s_waitcnt vmcnt({4 * NB0})")
    a("v_mov_b32 v12, 1")
    RK = 4
    for grp in range(NSLOT // 8):
        for k in range(8):
            a(f"v_cmp_lt_u32 s[{SMK + 2 * k}:{SMK + 2 * k + 1}], {8 * grp + k}, v{VREM}")
        for k in range(8):
            r = RC + 8 * grp + k
            a(f"v_and_b32 v{BT + k}, 15, v{r}")
            a(f"v_lshl_add_u32 v{BT + k}, v{BT + k}, 2, v{VRB}")
        if grp:
            a(f"s_cmp_eq_u64 s[{SMK}:{SMK + 1}], 0")
            a("s_cbranch_scc1 L_ev_built")
        for k in range(8):
            a(f"s_mov_b64 exec, s[{SMK + 2 * k}:{SMK + 2 * k + 1}]")
            a(f"ds_add_rtn_u32 v{RK + k}, v{BT + k}, v12")
        for k in range(8):
            r = RC + 8 * grp + k
            a(f"s_mov_b64 exec, s[{SMK + 2 * k}:{SMK + 2 * k + 1}]")
            a(f"s_waitcnt lgkmcnt(7)")
            a(f"v_cmp_gt_u32 vcc, s{S_CAP}, v{RK + k}")
            a(f"v_lshl_add_u32 v{BT + k}, v{RK + k}, 6, v{BT + k}")
            a("s_nop 0")
            a("s_mov_b64 exec, vcc")
            a(f"ds_write_b32 v{BT + k}, v{r} offset:256")
        a("s_mov_b64 exec, -1")
    a.label("L_ev_built")
    a(f"""
    v_and_b32 v2, 15, v0
    v_lshl_add_u32 v2, v2, 2, v{VRB}
    ds_read_b32 v3, v2
    v_cmp_lt_u32 s[{SMK}:{SMK + 1}], {NSLOT}, v{VREM}
    s_waitcnt lgkmcnt(0)
    v_cmp_lt_u32 vcc, s{S_CAP}, v3
    s_nop 3
    s_or_b64 vcc, vcc, s[{SMK}:{SMK + 1}]
    s_cbranch_vccnz L_car_e
    v_mov_b32 v{VREM}, 0
    """)
    a.label("L_ev_ret")

    def lane_setup():
        a(f"""
        v_bfe_u32 v2, v0, 2, 2
        v_and_b32 v3, 3, v0
        v_bfe_u32 v4, v0, 4, 2
        s_lshl_b32 s{S_T0}, s{S_W}, 6
        s_sub_u32 s{S_T1}, s{S_T0}, 3
        v_lshlrev_b32 v{GOFF}, 4, v3
        v_add_u32 v{GOFF}, s{S_T1}, v{GOFF}
        v_lshlrev_b32 v5, 2, v2
        v_sub_u32 v{GOFF}, v{GOFF}, v5               ; 64w + 16q - 4n' - 3
        v_lshlrev_b32 v{GLA}, 4, v2
        v_lshl_add_u32 v{GLA}, v4, 6, v{GLA}
        v_add_u32 v{GLA}, {RB}, v{GLA}
        """)

    def maxc():
        a(f"""
        v_and_b32 v6, 15, v0
        v_bfe_u32 v7, v0, 4, 2
        v_mul_u32_u24 v7, {RSZ}, v7
        v_lshl_add_u32 v7, v6, 2, v7
        v_add_u32 v7, {RB}, v7
        ds_read_b32 v9, v7
        s_waitcnt lgkmcnt(0)
        """)
        for sh in ("row_shr:1", "row_shr:2", "row_shr:4", "row_shr:8"):
            a(f"v_max_u32_dpp v9, v9, v9 {sh} row_mask:0xf bank_mask:0xf")
            a("s_nop 1")
        a("v_max_u32_dpp v9, v9, v9 row_bcast:15 row_mask:0xa bank_mask:0xf")
        a("s_nop 1")
        a("v_max_u32_dpp v9, v9, v9 row_bcast:31 row_mask:0xc bank_mask:0xf")
        a("s_nop 1")
        a(f"v_readlane_b32 s{S_MAXC}, v9, 63")
        a("s_nop 3")
        a(f"s_min_u32 s{S_N}, s{S_MAXC}, {CAP}")
        a(f"s_add_u32 s{S_N}, s{S_N}, 3")
        a(f"s_lshr_b32 s{S_N}, s{S_N}, 2")

    lane_setup()
    a(f"""
    s_lshl_b32 s{S_T1}, s{S_QT}, 4
    s_add_u32 s{S_T1}, s{S_T1}, s{S_SPLIT}
    s_lshl_b32 s{S_I}, s{S_T1}, 12
    s_add_u32 s{S_I}, s{S_I}, s{S_T0}
    v_lshrrev_b32 v5, 1, v4
    v_lshl_add_u32 v5, v5, 2, v2
    v_and_b32 v6, 1, v4
    v_lshlrev_b32 v{VX}, 8, v5
    v_lshl_add_u32 v{VX}, v6, 5, v{VX}
    v_lshl_add_u32 v{VX}, v3, 3, v{VX}
    v_add_u32 v{VX}, s{S_I}, v{VX}
    v_add_u32 v{VX + 1}, {6 * 4096}, v{VX}
    v_add_u32 v{VX + 2}, {12 * 4096}, v{VX}
    s_lshl_b32 s{S_I}, s{S_T1}, 5
    v_lshlrev_b32 v5, 1, v5
    v_add_u32 v5, s{S_I}, v5
    """)
    for b in range(3):
        for m in range(2):
            a(f"buffer_load_dwordx2 {ar(AXV + 4 * b + 2 * m, 2)}, v{VX + b}, s[{SX}:{SX + 3}], 0 offen offset:{2048 * m}")
            a(f"buffer_load_ushort a{ADI + 2 * b + m}, v5, s[{SDG}:{SDG + 3}], 0 offen offset:{192 * b + 16 * m}")
    a(f"""
    v_and_b32 v6, 15, v0
    v_and_b32 v7, 1, v6
    v_lshlrev_b32 v7, 4, v7
    v_mov_b32 v8, 0x3f80
    v_lshlrev_b32 v7, v7, v8                     ; value
    v_lshrrev_b32 v6, 1, v6                      ; 0..7 = (h, dword)
    """)
    for k in range(8):
        a(f"v_cmp_eq_u32 s[{SMK + 2 * k}:{SMK + 2 * k + 1}], {k}, v6")
    for k in range(8):
        a(f"v_cndmask_b32 v{BT + k}, 0, v7, s[{SMK + 2 * k}:{SMK + 2 * k + 1}]")
    for k in range(8):
        a(f"v_accvgpr_write_b32 a{AAH + k}, v{BT + k}")
    for i in range(72):
        a(f"v_accvgpr_write_b32 a{ABUF + i}, 0")
    a(f"s_mov_b32 s{S_CNT}, 1")
    a("s_branch L_body_m")
    a.label("L_ev_g")
    a.seg("k2_evg")
    maxc()
    a(f"""
    s_min_u32 s{S_CNT}, s{S_N}, {NGMAX}
    s_max_u32 s{S_CNT}, s{S_CNT}, 1
    s_sub_u32 s{S_N}, s{S_N}, s{S_CNT}
    s_mul_i32 s{S_T0}, s{S_CNT}, 3
    s_sub_u32 s{S_LEFT}, s{S_LEFT}, s{S_T0}
    s_sub_u32 s{S_LEFT}, s{S_LEFT}, {NB0 + 1}
    s_waitcnt vmcnt(0)
    """)
    a.raw(".p2align 6")
    for gb in range(3):
        emit_body(a, cfg, f"g{gb}", False, gb=gb, loop="g0")
    a.seg("k2_gx")
    a(f"s_mov_b32 s{S_CNT}, s{S_LEFT}")
    a("s_branch L_body_m")
    a.label("L_loop_done")
    a.seg("k2_mid2")
    if cfg.get("stamp"):
        a("s_memtime s[94:95]")
        a("s_memrealtime s[96:97]")
        a(f"s_load_dwordx2 s[64:65], s[0:1], 80")
        a("s_waitcnt lgkmcnt(0)")
        a("s_sub_u32 s94, s94, s90")
        a("s_sub_u32 s96, s96, s92")
        a("v_mov_b32 v2, s94")
        a("v_mov_b32 v3, s96")
        a("s_and_b32 s65, s65, 0xffff")
        a("s_mov_b32 s66, 256")
        a("s_mov_b32 s67, 0x00020000")
        a("s_lshr_b32 s72, s2, 3")
        a("s_lshl_b32 s72, s72, 3")
        a("v_mov_b32 v4, s72")
        a("s_and_b32 s73, s2, 7")
        a(f"s_or_b32 s73, s73, s{S_W}")
        a("s_cmp_lg_u32 s73, 0")
        a("s_cbranch_scc1 L_nostamp")
        a("buffer_store_dwordx2 v[2:3], v4, s[64:67], 0 offen")
        a.label("L_nostamp")
    a(f"s_cmp_eq_u32 s{S_SPLIT}, 5")
    a("s_cbranch_scc1 L_body_lm")
    emit_body(a, cfg, "lf", False, last=True, nkb=2)
    a("s_branch L_k2_chk")
    emit_body(a, cfg, "lm", False, last=True, nkb=1)
    a.label("L_k2_chk")
    a.seg("k2_chk")
    a(f"""
    v_max3_f32 v4, v{L}, v{L + 1}, v{L + 2}
    v_max_f32 v4, v4, v{L + 3}
    v_add_f32 v6, v{L}, v{L + 1}
    v_add_f32 v7, v{L + 2}, v{L + 3}
    v_add_f32 v6, v6, v7
    s_mov_b32 s{S_T0}, 0x53800000
    v_cmp_ngt_f32 vcc, s{S_T0}, v4
    v_cmp_u_f32 s[{SMK}:{SMK + 1}], v6, v6
    v_mov_b32 v5, {LDS_FLAG}
    v_mov_b32 v4, 1
    s_or_b64 vcc, vcc, s[{SMK}:{SMK + 1}]
    s_cbranch_vccz L_k2_chk2
    ds_write_b32 v5, v4
    """)
    a.label("L_k2_chk2")
    a(f"""
    s_waitcnt lgkmcnt(0)
    s_barrier
    ds_read_b32 v4, v5
    s_waitcnt lgkmcnt(0)
    v_readfirstlane_b32 s{S_T0}, v4
    s_nop 3
    s_cmp_eq_u32 s{S_T0}, 0
    s_cbranch_scc1 L_k2_epi
    s_waitcnt vmcnt(0)
    s_barrier
    """)
    a(f"s_mov_b32 s{S_MODE}, 1")
    a("s_branch L_k2_restart")
    a.label("L_safe")
    a.seg("k2_safe0")
    a(f"s_mov_b32 s{S_CNT}, s{S_LEFT}")
    emit_body(a, cfg, "s", True)
    a.seg("k2_smid")
    a(f"s_cmp_eq_u32 s{S_SPLIT}, 5")
    a("s_cbranch_scc1 L_body_sm")
    emit_body(a, cfg, "sf", True, last=True, nkb=2)
    a("s_branch L_k2_epi0")
    emit_body(a, cfg, "sm", True, last=True, nkb=1)
    a.label("L_k2_epi0")
    a.seg("k2_epi0")
    a("s_nop 7")
    a.label("L_k2_epi")
    a.seg("k2_epi")
    if cfg.get("tl"):
        a("s_memrealtime s[98:99]")
    VPLA = 8
    smp = f"s[{SMP}:{SMP + 3}]"

    def consume_all():
        for b in range(3):
            for k in range(4):
                d = ar(AAG + 8 * b + 4 * (k >> 1), 4)
                a(f"{MF} {d}, {ar(AAH + 4 * (k & 1), 4)}, {ar(ABUF + 16 * b + 4 * k, 4)}, {d}")

    def publish():
        for sw in ("v_permlane32_swap_b32", "v_permlane16_swap_b32"):
            for qb in range(NQ):
                a(f"v_mov_b32 v{T + qb}, v{L + qb}")
            a("s_nop 0")
            for qb in range(NQ):
                a(f"{sw} v{L + qb}, v{T + qb}")
            a("s_nop 0")
            for qb in range(NQ):
                a(f"v_add_f32 v{L + qb}, v{L + qb}, v{T + qb}")
        for qb in range(NQ):
            a(f"v_mov_b32 v{57 + 2 * qb}, v{L + qb}")
        n = 0
        for qb in range(NQ):
            a(f"s_add_u32 s{S_T0}, s{S_PO}, {qb * 4096}")
            for p in range(4):
                t = 26 + 4 * (n % 2)
                n += 1
                for d in range(4):
                    src = O + (qb * 8 + 2 * p) * 4 + 2 * d
                    a(f"v_cvt_pk_bf16_f32 v{t + d}, v{src}, v{src + 1}")
                a(f"buffer_store_dwordx4 {vr(t, 4)}, v{VL16}, {SRD}, s{S_T0} offen offset:{1024 * p} sc1")
        a("s_mov_b64 exec, 0xffff")
        for qb in range(NQ):
            a(f"buffer_store_dwordx2 v[{56 + 2 * qb}:{57 + 2 * qb}], v{VPLA}, {SRD}, s{S_PL} offen offset:{128 * qb} sc1")
        a("s_mov_b64 exec, -1")


    a(f"v_and_b32 v{VPLA}, 15, v0")
    a(f"v_lshlrev_b32 v{VPLA}, 3, v{VPLA}")
    for qb in range(NQ):
        a(f"v_sub_f32 v{56 + 2 * qb}, 0, v{NM + 4 * qb}")
    publish()
    if cfg.get("tl"):
        a("s_memrealtime s[62:63]")
        a("s_memrealtime s[60:61]")
    a("s_waitcnt vmcnt(20)")
    consume_all()
    a("s_waitcnt vmcnt(0)")
    if cfg.get("tl"):
        a("s_memrealtime s[56:57]")
    a("s_barrier")
    a(f"""
    s_cmp_lg_u32 s{S_W}, 0
    s_cbranch_scc1 L_nosig
    s_lshl_b32 s{S_T0}, s{S_SPLIT}, 2
    v_mov_b32 v14, s{S_T0}
    v_mov_b32 v15, 1
    s_mov_b64 exec, 1
    buffer_store_dword v15, v14, {SRD}, s{S_FLG} offen sc1
    s_mov_b64 exec, -1
    """)
    a.label("L_nosig")
    a(f"s_cmp_gt_i32 s{S_N}, 0")
    a("s_cbranch_scc1 L_left")
    a.label("L_gdone")
    a.seg("k2_fin")
    if cfg.get("tl"):
        a("s_memrealtime s[58:59]")
    a(f"""
    v_and_b32 v{VPLA}, 15, v0
    v_lshlrev_b32 v{VPLA}, 3, v{VPLA}
    v_and_b32 v14, 63, v0
    v_min_u32 v14, 5, v14
    v_lshlrev_b32 v14, 2, v14
    """)
    a.label("L_poll")
    a(f"""
    buffer_load_dword v15, v14, {SRD}, s{S_FLG} offen sc1
    s_waitcnt vmcnt(0)
    v_cmp_ne_u32 vcc, 1, v15
    s_cbranch_vccz L_poll_done
    s_sleep 4
    s_branch L_poll
    """)
    a.label("L_poll_done")
    if cfg.get("tl"):
        a("s_memrealtime s[100:101]")
        a("s_waitcnt lgkmcnt(0)")
    POV, PLV = 128, 200
    a(f"""
    s_mul_i32 s{S_T0}, s{S_QT}, {6 * 65536}
    s_lshl_b32 s{S_T1}, s{S_SPLIT}, 12
    s_add_u32 s{S_T0}, s{S_T0}, s{S_T1}
    s_lshl_b32 s{S_T1}, s{S_W}, 10
    s_add_u32 s{S_T0}, s{S_T0}, s{S_T1}
    s_add_u32 s{S_PO}, s{S_T0}, {PO}
    s_mul_i32 s{S_T0}, s{S_QT}, {6 * 2048}
    s_lshl_b32 s{S_T1}, s{S_SPLIT}, 7
    s_add_u32 s{S_T0}, s{S_T0}, s{S_T1}
    s_add_u32 s{S_PL}, s{S_T0}, {PL}
    """)
    for b in range(3):
        for s in range(6):
            a(f"s_add_u32 s{S_T1}, s{S_PL}, {s * 2048}")
            a(f"buffer_load_dwordx2 {vr(PLV + 12 * b + 2 * s, 2)}, v{VPLA}, {SRD}, s{S_T1} offen offset:{768 * b} sc1")
        for s in range(6):
            a(f"s_add_u32 s{S_T0}, s{S_PO}, {s * 65536 + b * 6 * 4096}")
            a(f"buffer_load_dwordx4 {vr(POV + 24 * b + 4 * s, 4)}, v{VL16}, {SRD}, s{S_T0} offen sc1")
    ACC, BP = 26, 64
    a(f"""
    v_bfe_u32 v2, v0, 2, 2
    v_and_b32 v3, 3, v0
    v_bfe_u32 v4, v0, 5, 1
    v_lshl_add_u32 v2, v4, 2, v2
    v_lshl_add_u32 v2, v3, 4, v2
    v_lshlrev_b32 v14, 2, v2
    v_add_u32 v15, 32, v14                       ; m = 1
    v_and_b32 v4, 16, v0
    v_cmp_ne_u32 s[{SMK}:{SMK + 1}], 0, v4
    """)
    for b in range(3):
        pl, po = PLV + 12 * b, POV + 24 * b
        if b == 2:
            a(f"s_cmp_gt_u32 s{S_SPLIT}, 3")
            a("s_cbranch_scc1 L_k2_done")
        for j in range(8):
            a(f"v_accvgpr_read_b32 v{80 + j}, a{AAG + 8 * b + j}")
        for m in range(2):
            a(f"v_accvgpr_read_b32 v{40 + m}, a{ADI + 2 * b + m}")
        for d in range(4):
            a(f"v_accvgpr_read_b32 v{36 + d}, a{AXV + 4 * b + d}")
        a(f"s_waitcnt vmcnt({6 + 12 * (2 - b) + 2 * b})")
        a(f"v_max3_f32 v34, v{pl}, v{pl + 2}, v{pl + 4}")
        a(f"v_max3_f32 v34, v34, v{pl + 6}, v{pl + 8}")
        a(f"v_max_f32 v34, v34, v{pl + 10}")
        for s in range(6):
            a(f"v_sub_f32 v{pl + 2 * s}, v{pl + 2 * s}, v34")
        for s in range(6):
            a(f"v_exp_f32 v{pl + 2 * s}, v{pl + 2 * s}")
        a(f"v_lshlrev_b32 v40, 16, v40")
        a(f"v_mul_f32 v35, v{pl}, v{pl + 1}")
        for s in range(1, 6):
            a(f"v_fmac_f32 v35, v{pl + 2 * s}, v{pl + 2 * s + 1}")
        a("v_rcp_f32 v35, v35")
        a(f"v_lshlrev_b32 v41, 16, v41")
        for s in range(6):
            a(f"v_mul_f32 v{pl + 2 * s}, v{pl + 2 * s}, v35")
        for s in range(6):
            a(f"s_waitcnt vmcnt({5 - s + 12 * (2 - b) + 2 * b})")
            for d in range(4):
                r = po + 4 * s + d
                a(f"v_lshlrev_b32 v42, 16, v{r}")
                a(f"v_and_b32 v43, 0xffff0000, v{r}")
                op = "v_mul_f32" if s == 0 else "v_fmac_f32"
                a(f"{op} v{ACC + 2 * d}, v42, v{pl + 2 * s}")
                a(f"{op} v{ACC + 2 * d + 1}, v43, v{pl + 2 * s}")
        for m in range(2):
            for j in range(8):
                a(f"ds_bpermute_b32 v{BP + 8 * m + j}, v{14 + m}, v{ACC + j}")
        ob = 56 + 4 * (b & 1)
        for m in range(2):
            a(f"s_waitcnt lgkmcnt({8 - 8 * m})")
            for r in range(4):
                a(f"v_cndmask_b32 v{BP + 8 * m + r}, v{BP + 8 * m + r}, v{BP + 8 * m + 4 + r}, s[{SMK}:{SMK + 1}]")
                a(f"v_fmac_f32 v{BP + 8 * m + r}, v{80 + 4 * m + r}, v{40 + m}")
            for d in range(2):
                x = 36 + 2 * m + d
                a(f"v_cvt_pk_bf16_f32 v42, v{BP + 8 * m + 2 * d}, v{BP + 8 * m + 2 * d + 1}")
                a(f"v_lshlrev_b32 v34, 16, v{x}")
                a(f"v_and_b32 v35, 0xffff0000, v{x}")
                a(f"v_and_b32 v43, 0xffff0000, v42")
                a(f"v_lshlrev_b32 v42, 16, v42")
                a(f"v_pk_add_f32 v[42:43], v[42:43], v[34:35]")
                a(f"v_cvt_pk_bf16_f32 v{ob + 2 * m + d}, v42, v43")
            a(f"buffer_store_dwordx2 {vr(ob + 2 * m, 2)}, v{VX + b}, s[{SOUT}:{SOUT + 3}], 0 offen offset:{2048 * m}")
    a.label("L_k2_done")
    a("s_waitcnt vmcnt(0)")
    if cfg.get("tl"):
        a("s_waitcnt lgkmcnt(0)")
        a("s_mov_b64 exec, 1")
        a("v_lshrrev_b32 v1, 6, v0")
        a("v_lshlrev_b32 v1, 5, v1")
        a(f"s_lshl_b32 s88, s2, 7")
        a(f"s_add_u32 s88, s88, {TR + 3 * 0x40000}")
        for i, sr in enumerate((98, 62, 60, 56, 58, 100)):
            a(f"v_mov_b32 v{2 + i}, s{sr}")
        a(f"buffer_store_dwordx4 v[2:5], v1, {SRD}, s88 offen")
        a(f"buffer_store_dwordx2 v[6:7], v1, {SRD}, s88 offen offset:16")
    stamp_exit(a, cfg, 84, 2, SRD, TR)
    a.label("L_k2_end")
    a("s_endpgm")
    a.label("L_left")
    a.seg("k2_left0")
    lane_setup()
    a(f"v_add_u32 v{GLA}, {NGMAX * 256}, v{GLA}")
    a.label("L_left_loop")
    a.seg("k2_left")
    for b in range(3):
        a(f"ds_read_b128 {vr(64 + 4 * b, 4)}, v{GLA} offset:{b * RSZ + 256}")
    a(f"v_add_u32 v{GLA}, 256, v{GLA}")
    a("s_waitcnt lgkmcnt(0)")
    for b in range(3):
        for k in range(4):
            a(f"v_add_u32 v{64 + 4 * b + k}, v{64 + 4 * b + k}, v{GOFF}")
            a(f"buffer_load_dwordx4 {ar(ABUF + 16 * b + 4 * k, 4)}, v{64 + 4 * b + k}, {smp}, 0 offen offset:{3 - k}")
    a("s_waitcnt vmcnt(0)")
    consume_all()
    a(f"""
    s_sub_u32 s{S_N}, s{S_N}, 1
    s_cmp_gt_i32 s{S_N}, 0
    s_cbranch_scc1 L_left_loop
    s_nop 7
    s_cmp_le_u32 s{S_MAXC}, {CAP}
    s_cbranch_scc1 L_gdone
    s_barrier
    s_branch L_car_t
    """)
    a.label("L_more2")
    a.seg("k2_more2")
    a("s_barrier")
    maxc()
    lane_setup()
    a("s_branch L_left_loop")
    emit_careful(a, "e", "L_ev_ret")
    emit_careful(a, "t", "L_more2")
    for tag, nkb in (("s", 2), ("sf", 2), ("sm", 1)):
        for X in "AB":
            emit_slow(a, X, nkb, tag + X)
    return dict(name=name, vgpr=512, accum=256, sgpr=102, grid=NWG, block=256, lds=RB + 4 * RSZ,
                chains=[["k2_pro0", "k2_pro", "body_m", "body_m", "k2_mid", "k2_mid2", "body_lf", "k2_chk", "k2_epi", "k2_fin"],
                        ["body_m", "k2_mid", "k2_ev", "body_m"], ["k2_ev", "careful_e", "body_m"],
                        ["body_m", "k2_mid", "k2_evg", "body_g0", "body_g1", "body_g2", "body_g0", "body_g1", "body_g2", "k2_gx", "body_m"],
                        ["body_m", "k2_mid", "k2_mid2", "body_lm", "k2_chk", "k2_pro"],
                        ["k2_pro", "k2_safe0", "body_s", "body_s", "k2_smid", "body_sf", "k2_epi0", "k2_epi"],
                        ["body_s", "k2_smid", "body_sm", "k2_epi0", "k2_epi"],
                        ["k2_epi", "k2_left0", "k2_left", "k2_left", "k2_fin"], ["k2_left", "careful_t", "k2_more2", "k2_left"]] +
                       [["slow_" + t + X] for t in ("s", "sf", "sm") for X in "AB"])
```

```python
from layout import *
from asmlib import stamp_entry, stamp_exit

OVFCNT = CNT + 10239 * 64
CAP = 64


def vr(b, n):
    return f"v[{b}:{b + n - 1}]"


def emit_kb(a, cfg):
    name = "kb_fill_kernel"
    NWG = E // 256
    a.raw(".text")
    a.raw(f".globl {name}\n.p2align 8\n.type {name},@function")
    a.label(name)
    a.seg("kb")
    a(f"""
    s_cmp_ge_u32 s2, {NWG}
    s_cbranch_scc1 L_kb_exit
    """)
    stamp_entry(a, cfg, 26)
    a(f"""
    s_load_dwordx4 s[20:23], s[0:1], 8
    s_load_dwordx2 s[12:13], s[0:1], 88
    s_mov_b32 s6, {E * 4}
    s_mov_b32 s7, 0x00020000
    s_mov_b32 s10, {E * 4}
    s_mov_b32 s11, 0x00020000
    s_mov_b32 s14, 0x10000000
    s_mov_b32 s15, 0x00020000
    s_lshl_b32 s16, s2, 10
    v_lshlrev_b32 v1, 2, v0
    s_waitcnt lgkmcnt(0)
    s_mov_b32 s4, s20
    s_and_b32 s5, s21, 0xffff
    s_mov_b32 s8, s22
    s_and_b32 s9, s23, 0xffff
    s_and_b32 s13, s13, 0xffff
    buffer_load_dword v2, v1, s[4:7], s16 offen
    buffer_load_dword v3, v1, s[8:11], s16 offen
    s_mov_b32 s17, {CNT}
    s_mov_b32 s18, {LST}
    v_mov_b32 v5, 1
    s_waitcnt vmcnt(0)
    v_lshlrev_b32 v4, 6, v3
    buffer_atomic_add v5, v4, s[12:15], s17 offen sc0
    v_lshlrev_b32 v2, 8, v2
    v_lshlrev_b32 v6, 8, v3
    s_waitcnt vmcnt(0)
    v_lshl_add_u32 v6, v5, 2, v6
    v_cmp_gt_u32 vcc, {CAP}, v5
    s_and_saveexec_b64 s[24:25], vcc
    s_cbranch_execz L_kb_ovf
    buffer_store_dword v2, v6, s[12:15], s18 offen
    """)
    a.label("L_kb_ovf")
    a(f"""
    s_andn2_b64 exec, s[24:25], exec
    s_cbranch_execz L_kb_end
    v_mov_b32 v5, 1
    v_mov_b32 v4, 0
    s_mov_b32 s17, {OVFCNT}
    s_mov_b32 s18, {OVF}
    buffer_atomic_add v5, v4, s[12:15], s17 offen sc0
    v_mov_b32 v8, v3
    v_mov_b32 v9, v2
    s_waitcnt vmcnt(0)
    v_lshlrev_b32 v5, 3, v5
    buffer_store_dwordx2 v[8:9], v5, s[12:15], s18 offen
    """)
    a.label("L_kb_end")
    stamp_exit(a, cfg, 26, 1, "s[12:15]", TR)
    a.label("L_kb_exit")
    a("s_endpgm")
    return dict(name=name, vgpr=16, accum=16, sgpr=32, grid=NWG, block=256, lds=0, chains=[["kb"]])


def emit_k3(a, cfg):
    name = "k3_out_kernel"
    NWG = N // 16
    NS = 6
    a.raw(".text")
    a.raw(f".globl {name}\n.p2align 8\n.type {name},@function")
    a.label(name)
    a.seg("k3_a")
    SX, SD, SO, SWS, SM = 4, 8, 12, 16, 20
    LSTR = 8
    CNTV = 12
    XV = 14
    DI = 13
    PLV = 20
    POV = 32
    ACC = 144
    AGG = 64
    B0, B1 = 72, 104
    AD = 136
    a(f"""
    s_cmp_ge_u32 s2, {NWG}
    s_cbranch_scc1 L_k3_exit
    """)
    stamp_entry(a, cfg, 42)
    a(f"""
    s_load_dwordx2 s[{SX}:{SX + 1}], s[0:1], 0
    s_load_dwordx2 s[{SD}:{SD + 1}], s[0:1], 24
    s_load_dwordx2 s[{SO}:{SO + 1}], s[0:1], 72
    s_load_dwordx2 s[{SWS}:{SWS + 1}], s[0:1], 88
    s_mov_b32 s{SX + 2}, {N * 256}
    s_mov_b32 s{SX + 3}, 0x00020000
    s_mov_b32 s{SD + 2}, {N * 2}
    s_mov_b32 s{SD + 3}, 0x00020000
    s_mov_b32 s{SO + 2}, {N * 256}
    s_mov_b32 s{SO + 3}, 0x00020000
    s_mov_b32 s{SWS + 2}, 0x10000000
    s_mov_b32 s{SWS + 3}, 0x00020000
    s_mov_b32 s{SM + 2}, {N * 256}
    s_mov_b32 s{SM + 3}, 0x00020000
    s_lshl_b32 s24, s2, 4
    v_lshrrev_b32 v1, 4, v0
    v_add_u32 v1, s24, v1                     ; node
    v_and_b32 v2, 15, v0                      ; c
    v_lshlrev_b32 v3, 4, v2                   ; c*16
    v_lshl_add_u32 v4, v1, 8, v3              ; node*256 + c*16
    v_lshlrev_b32 v5, 6, v1                   ; node*64
    v_lshrrev_b32 v6, 2, v2
    v_lshlrev_b32 v6, 6, v6
    v_and_b32 v7, 3, v2
    v_lshl_add_u32 v6, v7, 3, v6
    v_lshl_add_u32 v6, v1, 8, v6
    v_lshlrev_b32 v18, 1, v1                  ; node*2
    s_lshr_b32 s25, s2, 4                     ; q tile
    s_mul_i32 s26, s25, {NS * 65536}
    s_add_u32 s26, s26, {PO}
    s_mul_i32 s27, s25, {NS * 2048}
    s_add_u32 s27, s27, {PL}
    v_and_b32 v19, 0xffff, v4                 ; (node&255)*256 + c*16
    v_and_b32 v56, 255, v1
    v_lshlrev_b32 v56, 3, v56                 ; (node&255)*8
    v_lshrrev_b32 v57, 4, v0
    v_lshlrev_b32 v57, 2, v57
    v_lshl_add_u32 v57, v2, 8, v57            ; c*256 + n*4
    s_lshl_b32 s28, s2, 12
    s_mov_b32 s29, {CNT}
    s_add_u32 s30, s28, {LST}
    s_waitcnt lgkmcnt(0)
    s_and_b32 s{SX + 1}, s{SX + 1}, 0xffff
    s_and_b32 s{SD + 1}, s{SD + 1}, 0xffff
    s_and_b32 s{SO + 1}, s{SO + 1}, 0xffff
    s_and_b32 s{SWS + 1}, s{SWS + 1}, 0xffff
    s_add_u32 s{SM}, s{SWS}, {MP}
    s_addc_u32 s{SM + 1}, s{SWS + 1}, 0
    s_add_u32 s34, s{SWS}, {OVFCNT}
    s_addc_u32 s35, s{SWS + 1}, 0
    buffer_load_dword v{CNTV}, v5, s[{SWS}:{SWS + 3}], s29 offen
    buffer_load_dword v{LSTR + 0}, v57, s[{SWS}:{SWS + 3}], s30 offen offset:0
    buffer_load_dword v{LSTR + 1}, v57, s[{SWS}:{SWS + 3}], s30 offen offset:64
    buffer_load_dword v{LSTR + 2}, v57, s[{SWS}:{SWS + 3}], s30 offen offset:128
    buffer_load_dword v{LSTR + 3}, v57, s[{SWS}:{SWS + 3}], s30 offen offset:192
    s_load_dword s36, s[34:35], 0
    """)
    for s in range(NS):
        a(f"buffer_load_dwordx2 {vr(PLV + 2 * s, 2)}, v56, s[{SWS}:{SWS + 3}], s27 offen")
        if s < NS - 1:
            a(f"s_add_u32 s27, s27, 2048")
    for s in range(NS):
        a(f"buffer_load_dwordx4 {vr(POV + 4 * s, 4)}, v19, s[{SWS}:{SWS + 3}], s26 offen")
        if s < NS - 1:
            a(f"s_add_u32 s26, s26, 65536")
    a(f"buffer_load_dwordx2 {vr(XV, 2)}, v6, s[{SX}:{SX + 3}], 0 offen")
    a(f"buffer_load_dwordx2 {vr(XV + 2, 2)}, v6, s[{SX}:{SX + 3}], 0 offen offset:32")
    a(f"buffer_load_ushort v{DI}, v18, s[{SD}:{SD + 3}], 0 offen")
    later = 2 * NS + 3
    for j in range(8):
        a(f"v_mov_b32 v{AGG + j}, 0")
    a(f"v_lshlrev_b32 v57, 2, v2")
    a(f"s_mov_b32 s31, 0x7fffff00")
    a(f"v_mov_b32 v58, s31")
    a(f"s_waitcnt vmcnt({later})")
    a(f"v_min_u32 v{CNTV}, {CAP}, v{CNTV}")
    for j in range(4):
        a(f"v_add_u32 v59, {j}, v57")
        a(f"v_cmp_lt_u32 vcc, v59, v{CNTV}")
        a(f"v_lshlrev_b32 v{LSTR + j}, 8, v{LSTR + j}")
        a("s_nop 0")
        a(f"v_cndmask_b32 v{LSTR + j}, v58, v{LSTR + j}, vcc")
    a(f"v_readlane_b32 s32, v{CNTV}, 0")
    a(f"v_readlane_b32 s33, v{CNTV}, 16")
    a(f"v_readlane_b32 s37, v{CNTV}, 32")
    a(f"v_readlane_b32 s38, v{CNTV}, 48")
    a("s_nop 0")
    a("s_max_u32 s32, s32, s33")
    a("s_max_u32 s37, s37, s38")
    a("s_max_u32 s32, s32, s37")

    def issue(k, buf):
        for j in range(8):
            e = 8 * k + j
            a(f"v_add_u32_dpp v{AD + j}, v{LSTR + (e & 3)}, v3 row_newbcast:{e >> 2} row_mask:0xf bank_mask:0xf")
            a(f"buffer_load_dwordx4 {vr(buf + 4 * j, 4)}, v{AD + j}, s[{SM}:{SM + 3}], 0 offen")

    def accum(buf, n, base_wait):
        for j in range(n):
            a(f"s_waitcnt vmcnt({base_wait + n - 1 - j})")
            for d in range(4):
                r = buf + 4 * j + d
                a(f"v_lshlrev_b32 v60, 16, v{r}")
                a(f"v_and_b32 v61, 0xffff0000, v{r}")
                a(f"v_pk_add_f32 {vr(AGG + 2 * d, 2)}, {vr(AGG + 2 * d, 2)}, v[60:61]")

    issue(0, B0)
    a.seg("k3_b")
    a("s_waitcnt vmcnt(8)")
    a(f"v_max3_f32 v60, v{PLV}, v{PLV + 2}, v{PLV + 4}")
    a(f"v_max3_f32 v60, v60, v{PLV + 6}, v{PLV + 8}")
    a(f"v_max_f32 v60, v60, v{PLV + 10}")
    for s in range(NS):
        a(f"v_sub_f32 v{PLV + 2 * s}, v{PLV + 2 * s}, v60")
    for s in range(NS):
        a(f"v_exp_f32 v{PLV + 2 * s}, v{PLV + 2 * s}")
    a("s_nop 0")
    a(f"v_mul_f32 v61, v{PLV}, v{PLV + 1}")
    for s in range(1, NS):
        a(f"v_fmac_f32 v61, v{PLV + 2 * s}, v{PLV + 2 * s + 1}")
    a("v_rcp_f32 v61, v61")
    a("s_nop 0")
    for s in range(NS):
        a(f"v_mul_f32 v{PLV + 2 * s}, v{PLV + 2 * s}, v61")
    for s in range(NS):
        for d in range(4):
            r = POV + 4 * s + d
            a(f"v_lshlrev_b32 v62, 16, v{r}")
            a(f"v_and_b32 v63, 0xffff0000, v{r}")
            if s == 0:
                a(f"v_mul_f32 v{ACC + 2 * d}, v62, v{PLV}")
                a(f"v_mul_f32 v{ACC + 2 * d + 1}, v63, v{PLV}")
            else:
                a(f"v_fmac_f32 v{ACC + 2 * d}, v62, v{PLV + 2 * s}")
                a(f"v_fmac_f32 v{ACC + 2 * d + 1}, v63, v{PLV + 2 * s}")
    bufs = [B0, B1]
    for k in range(8):
        a.seg(f"k3_g{k}")
        if k < 7:
            a(f"s_cmp_le_u32 s32, {8 * (k + 1)}")
            a(f"s_cbranch_scc1 L_k3_fin{k & 1}")
            issue(k + 1, bufs[(k + 1) & 1])
            accum(bufs[k & 1], 8, 8)
    a.label("L_k3_fin1")
    a.seg("k3_f1")
    accum(B1, 8, 0)
    a("s_branch L_k3_ovf")
    a.label("L_k3_fin0")
    a.seg("k3_f0")
    accum(B0, 8, 0)
    a.label("L_k3_ovf")
    a.seg("k3_o")
    a(f"""
    s_waitcnt lgkmcnt(0)
    s_cmp_eq_u32 s36, 0
    s_cbranch_scc1 L_k3_out
    s_add_u32 s34, s{SWS}, {OVF}
    s_addc_u32 s35, s{SWS + 1}, 0
    s_mov_b32 s37, 0
    """)
    a.label("L_k3_oloop")
    a(f"""
    s_lshl_b32 s38, s37, 3
    s_load_dwordx2 s[40:41], s[34:35], s38
    s_waitcnt lgkmcnt(0)
    s_lshr_b32 s39, s40, 4
    s_cmp_lg_u32 s39, s2
    s_cbranch_scc1 L_k3_onext
    s_lshl_b32 s41, s41, 8
    v_add_u32 v{AD}, s41, v3
    v_cmp_eq_u32 vcc, s40, v1
    s_nop 1
    v_cndmask_b32 v{AD}, v58, v{AD}, vcc
    buffer_load_dwordx4 {vr(B0, 4)}, v{AD}, s[{SM}:{SM + 3}], 0 offen
    """)
    accum(B0, 1, 0)
    a.label("L_k3_onext")
    a(f"""
    s_add_u32 s37, s37, 1
    s_cmp_lt_u32 s37, s36
    s_cbranch_scc1 L_k3_oloop
    """)
    a.label("L_k3_out")
    a.seg("k3_out")
    a(f"v_lshlrev_b32 v{DI}, 16, v{DI}")
    for j in range(8):
        a(f"v_fmac_f32 v{ACC + j}, v{AGG + j}, v{DI}")
    for d in range(4):
        a(f"v_cvt_pk_bf16_f32 v60, v{ACC + 2 * d}, v{ACC + 2 * d + 1}")
        a(f"v_lshlrev_b32 v62, 16, v{XV + d}")
        a(f"v_and_b32 v63, 0xffff0000, v{XV + d}")
        a(f"v_and_b32 v61, 0xffff0000, v60")
        a(f"v_lshlrev_b32 v60, 16, v60")
        a(f"v_pk_add_f32 v[60:61], v[60:61], v[62:63]")
        a(f"v_cvt_pk_bf16_f32 v{B0 + d}, v60, v61")
    a(f"buffer_store_dwordx2 {vr(B0, 2)}, v6, s[{SO}:{SO + 3}], 0 offen")
    a(f"buffer_store_dwordx2 {vr(B0 + 2, 2)}, v6, s[{SO}:{SO + 3}], 0 offen offset:32")
    a.label("L_k3_end")
    stamp_exit(a, cfg, 42, 3, f"s[{SWS}:{SWS + 3}]", TR)
    a.label("L_k3_exit")
    a("s_endpgm")
    ch = ["k3_a", "k3_b"] + [f"k3_g{k}" for k in range(8)] + ["k3_f1"]
    return dict(name=name, vgpr=152, accum=152, sgpr=48, grid=NWG, block=256, lds=0,
                chains=[ch, ["k3_b", "k3_f0", "k3_o", "k3_out"]])
```

```python
N = 10000
D = 128
E = 320000
QF = 0x0000000
KF = 0x0400000
VF = 0x0800000
MP = 0x0C00000
PO = 0x1000000
PL = 0x2800000
CNT = 0x3000000
LST = 0x3400000
OVF = 0x3800000
FLG = 0x3000000
TAB = 0x3100000
REC = 0x3200000
TR = 0x4000000
GB = 64
EPW = E // GB
RECS = 5120 * 4
```

```python
from layout import *
from asmlib import stamp_entry, stamp_exit
import struct

MF = "v_mfma_f32_32x32x16_bf16"


def f2u(x):
    return struct.unpack("<I", struct.pack("<f", x))[0]


def vr(b, n):
    return f"v[{b}:{b + n - 1}]"


def emit_k1(a, cfg):
    name = "k1_proj_kernel"
    NT = 80
    NWG = 4 * NT
    NBK = GB if cfg.get('pathA') else 0
    a.raw(".text")
    a.raw(f".globl {name}\n.p2align 8\n.type {name},@function")
    a.label(name)
    a.seg("k1_a")
    SX, SW1, SWO, SWS = 4, 8, 12, 16
    S_JOB, S_BLK, S_W, S_T0, S_T1, S_SC = 20, 21, 22, 23, 24, 26
    S_O1, S_O2 = 28, 29
    XR = 64
    XF = 96
    H = 32
    D = 160
    VA = 8
    a(f"""
    s_cmp_ge_u32 s2, {NWG + NBK}
    s_cbranch_scc1 L_k1_exit
    """)
    stamp_entry(a, cfg, 32)
    if NBK:
        a(f"s_cmp_lt_u32 s2, {NBK}")
        a("s_cbranch_scc1 L_k1_bucket")
    a(f"""
    s_sub_u32 s3, s2, {NBK}
    s_and_b32 s{S_JOB}, s3, 3
    s_add_u32 s{S_T0}, s{S_JOB}, 1
    s_and_b32 s{S_T0}, s{S_T0}, 3
    s_lshl_b32 s{S_T0}, s{S_T0}, 3
    s_add_u32 s{S_T0}, s{S_T0}, 32
    s_load_dwordx2 s[{SX}:{SX + 1}], s[0:1], 0
    s_load_dwordx2 s[{SW1}:{SW1 + 1}], s[0:1], s{S_T0}
    s_load_dwordx2 s[{SWO}:{SWO + 1}], s[0:1], 64
    s_load_dwordx2 s[{SWS}:{SWS + 1}], s[0:1], 88
    v_lshrrev_b32 v1, 6, v0
    v_and_b32 v2, 63, v0                      ; lane
    v_readfirstlane_b32 s{S_W}, v1
    s_mov_b32 s{SX + 2}, {N * 256}
    s_mov_b32 s{SX + 3}, 0x00020000
    s_mov_b32 s{SW1 + 2}, 32768
    s_mov_b32 s{SW1 + 3}, 0x00020000
    s_mov_b32 s{SWO + 2}, 32768
    s_mov_b32 s{SWO + 3}, 0x00020000
    s_mov_b32 s{SWS + 2}, 0x10000000
    s_mov_b32 s{SWS + 3}, 0x00020000
    s_lshr_b32 s{S_BLK}, s3, 2
    s_lshl_b32 s{S_BLK}, s{S_BLK}, 2
    s_add_u32 s{S_BLK}, s{S_BLK}, s{S_W}
    s_lshl_b32 s{S_BLK}, s{S_BLK}, 13          ; *8192 bytes
    ; x address: n*256 + h*16
    v_and_b32 v3, 31, v2
    v_lshrrev_b32 v4, 5, v2                    ; h
    v_lshlrev_b32 v5, 8, v3
    v_lshl_add_u32 v5, v4, 4, v5               ; v5 = n*256 + h*16
    v_lshrrev_b32 v6, 4, v2                    ; g
    v_and_b32 v7, 15, v2                       ; t
    v_lshlrev_b32 v16, 2, v6
    v_xor_b32 v16, v16, v7
    v_lshlrev_b32 v16, 4, v16
    v_lshl_add_u32 v16, v6, 8, v16
    s_lshl_b32 s{S_T0}, s{S_W}, 13             ; w*8192
    s_add_u32 s{S_T1}, s{S_T0}, 4096
    s_mov_b32 m0, s{S_T0}
    s_waitcnt lgkmcnt(0)
    s_and_b32 s{SX + 1}, s{SX + 1}, 0xffff
    s_and_b32 s{SW1 + 1}, s{SW1 + 1}, 0xffff
    s_and_b32 s{SWO + 1}, s{SWO + 1}, 0xffff
    s_and_b32 s{SWS + 1}, s{SWS + 1}, 0xffff
    """)
    if cfg.get("k1tl"):
        a("s_memrealtime s[48:49]")
    for s in range(8):
        a(f"buffer_load_dwordx4 {vr(XR + 4 * s, 4)}, v5, s[{SX}:{SX + 3}], s{S_BLK} offen offset:{32 * s}")
    for k in range(4):
        a(f"buffer_load_dwordx4 v16, s[{SW1}:{SW1 + 3}], s{S_T0} offen offset:{1024 * k} lds")
    a(f"s_mov_b32 m0, s{S_T1}")
    a("s_nop 0")
    for k in range(4):
        a(f"buffer_load_dwordx4 v16, s[{SW1}:{SW1 + 3}], s{S_T1} offen offset:{1024 * k} lds")
    a(f"s_cmp_lt_u32 s{S_JOB}, 2")
    a("s_cbranch_scc1 L_k1_nowo")
    a(f"s_add_u32 m0, s{S_T0}, 0x8000")
    a("s_nop 0")
    for k in range(4):
        a(f"buffer_load_dwordx4 v16, s[{SWO}:{SWO + 3}], s{S_T0} offen offset:{1024 * k} lds")
    a(f"s_add_u32 m0, s{S_T1}, 0x8000")
    a("s_nop 0")
    for k in range(4):
        a(f"buffer_load_dwordx4 v16, s[{SWO}:{SWO + 3}], s{S_T1} offen offset:{1024 * k} lds")
    a("s_waitcnt vmcnt(16)")
    a("s_branch L_k1_ln")
    a.label("L_k1_nowo")
    a("s_waitcnt vmcnt(8)")
    a.label("L_k1_ln")
    a.seg("k1_b")
    if cfg.get("k1tl"):
        a("s_memrealtime s[50:51]")
    if NBK:
        a(f"""
        v_mov_b32 v17, 0
        v_lshlrev_b32 v18, 2, v0
        s_lshl_b32 s{S_T0}, s3, 7
        s_add_u32 s{S_T0}, s{S_T0}, {FLG}
        v_cmp_gt_u32 vcc, 32, v0
        s_and_saveexec_b64 s[30:31], vcc
        s_cbranch_execz L_k1_nz
        buffer_store_dword v17, v18, s[{SWS}:{SWS + 3}], s{S_T0} offen
        """)
    else:
        a(f"""
        v_mov_b32 v17, 0
        v_lshlrev_b32 v18, 6, v0
        s_lshl_b32 s{S_T0}, s3, 11
        s_add_u32 s{S_T0}, s{S_T0}, {CNT}
        v_cmp_gt_u32 vcc, 32, v0
        s_and_saveexec_b64 s[30:31], vcc
        s_cbranch_execz L_k1_nz
        buffer_store_dword v17, v18, s[{SWS}:{SWS + 3}], s{S_T0} offen
        """)
    a.label("L_k1_nz")
    a("s_mov_b64 exec, s[30:31]")
    a(f"""
    v_lshrrev_b32 v17, 2, v7                   ; r = t>>2
    v_lshrrev_b32 v18, 1, v6                   ; hh = g>>1
    v_and_b32 v19, 1, v6                       ; g&1
    v_lshlrev_b32 v20, 6, v17                  ; r*64
    v_lshl_add_u32 v20, v19, 5, v20            ; + (g&1)*32
    v_and_b32 v21, 3, v7
    v_lshl_add_u32 v20, v21, 3, v20            ; + (t&3)*8
    v_lshl_add_u32 v20, v17, 8, v20            ; + r*256
    v_lshl_add_u32 v{VA}, v18, 11, v20
    v_lshl_add_u32 v{VA + 4}, v18, 10, v20
    """)
    for i in range(1, 4):
        a(f"v_xor_b32 v{VA + i}, {i << 6}, v{VA}")
        a(f"v_xor_b32 v{VA + 4 + i}, {i << 6}, v{VA + 4}")
    for i in range(32):
        a(f"v_lshlrev_b32 v{XF + 2 * i}, 16, v{XR + i}")
        a(f"v_and_b32 v{XF + 2 * i + 1}, 0xffff0000, v{XR + i}")
    AC = 22
    a(f"v_pk_add_f32 {vr(AC, 2)}, {vr(XF, 2)}, {vr(XF + 2, 2)}")
    a(f"v_pk_add_f32 {vr(AC + 2, 2)}, {vr(XF + 4, 2)}, {vr(XF + 6, 2)}")
    for i in range(4, 32):
        t = AC + 2 * (i & 1)
        a(f"v_pk_add_f32 {vr(t, 2)}, {vr(t, 2)}, {vr(XF + 2 * i, 2)}")
    a(f"v_pk_add_f32 {vr(AC, 2)}, {vr(AC, 2)}, {vr(AC + 2, 2)}")
    a(f"v_add_f32 v{AC}, v{AC}, v{AC + 1}")

    def xhalf_sum(r, t):
        a(f"v_mov_b32 v{t}, v{r}")
        a("s_nop 1")
        a(f"v_permlane32_swap_b32 v{r}, v{t}")
        a("s_nop 1")
        a(f"v_add_f32 v{r}, v{r}, v{t}")

    xhalf_sum(AC, AC + 1)
    a(f"v_mul_f32 v26, {hex(f2u(-1.0 / 128))}, v{AC}")
    a("v_mov_b32 v27, v26")
    for i in range(32):
        a(f"v_pk_add_f32 {vr(XF + 2 * i, 2)}, {vr(XF + 2 * i, 2)}, v[26:27]")
    a(f"v_pk_mul_f32 {vr(AC, 2)}, {vr(XF, 2)}, {vr(XF, 2)}")
    a(f"v_pk_mul_f32 {vr(AC + 2, 2)}, {vr(XF + 2, 2)}, {vr(XF + 2, 2)}")
    for i in range(2, 32):
        t = AC + 2 * (i & 1)
        a(f"v_pk_fma_f32 {vr(t, 2)}, {vr(XF + 2 * i, 2)}, {vr(XF + 2 * i, 2)}, {vr(t, 2)}")
    a(f"v_pk_add_f32 {vr(AC, 2)}, {vr(AC, 2)}, {vr(AC + 2, 2)}")
    a(f"v_add_f32 v{AC}, v{AC}, v{AC + 1}")
    xhalf_sum(AC, AC + 1)

    def rnd(r):
        a(f"v_cvt_pk_bf16_f32 v{r}, v{r}, v{r}")
        a(f"v_lshlrev_b32 v{r}, 16, v{r}")

    a(f"v_mul_f32 v{AC}, {hex(f2u(1.0 / 128))}, v{AC}")
    rnd(AC)
    a(f"v_add_f32 v{AC}, {hex(f2u(1e-5))}, v{AC}")
    rnd(AC)
    a(f"v_sqrt_f32 v{AC}, v{AC}")
    a(f"v_cvt_pk_bf16_f32 v24, v26, v26")
    rnd(AC)
    a(f"v_rcp_f32 v28, v{AC}")
    a(f"v_lshlrev_b32 v24, 16, v24")
    a(f"v_sub_f32 v24, v24, v26")
    a(f"v_mov_b32 v29, v28")
    a(f"v_mul_f32 v24, v24, v28")
    a(f"v_mov_b32 v25, v24")
    for i in range(32):
        a(f"v_pk_fma_f32 {vr(XF + 2 * i, 2)}, {vr(XF + 2 * i, 2)}, v[28:29], v[24:25]")
    for i in range(32):
        a(f"v_cvt_pk_bf16_f32 v{H + i}, v{XF + 2 * i}, v{XF + 2 * i + 1}")
    c = 1.4426950408889634 / 128 ** 0.5
    a(f"s_mov_b32 s{S_SC}, {hex(f2u(c))}")
    a(f"s_cmp_eq_u32 s{S_JOB}, 0")
    a(f"s_cselect_b32 s{S_SC}, s{S_SC}, 1.0")
    a(f"s_mov_b32 s{S_SC + 1}, s{S_SC}")
    if cfg.get("k1tl"):
        a("s_memrealtime s[52:53]")
    a("s_waitcnt vmcnt(0)")
    a("s_barrier")
    if cfg.get("k1tl"):
        a("s_memrealtime s[54:55]")

    WB = [XF, XF + 32]

    def reads(i, buf, addr, base, second):
        for s in range(8):
            a(f"ds_read_b64_tr_b16 {vr(buf + 4 * s, 2)}, v{addr + i} offset:{base + 4096 * s}")
            a(f"ds_read_b64_tr_b16 {vr(buf + 4 * s + 2, 2)}, v{addr + i} offset:{base + 4096 * s + second}")

    def gemm(addr, base, second, other, w_is_a):
        reads(0, WB[0], addr, base, second)
        for i in range(4):
            a("s_waitcnt lgkmcnt(0)")
            if i < 3:
                reads(i + 1, WB[(i + 1) & 1], addr, base, second)
            for s in range(8):
                w = vr(WB[i & 1] + 4 * s, 4)
                o = vr(other + 4 * s, 4)
                A, B = (w, o) if w_is_a else (o, w)
                d = vr(D + 16 * i, 16)
                a(f"{MF} {d}, {A}, {B}, {'0' if s == 0 else d}")

    gemm(VA, 0, 1024, H, True)
    a("s_nop 7")
    a("s_nop 3")
    if cfg.get("k1tl"):
        a("s_memrealtime s[56:57]")
    G1 = XR
    for i in range(32):
        a(f"v_pk_mul_f32 {vr(D + 2 * i, 2)}, {vr(D + 2 * i, 2)}, s[{S_SC}:{S_SC + 1}]")
    for i in range(32):
        a(f"v_cvt_pk_bf16_f32 v{G1 + i}, v{D + 2 * i}, v{D + 2 * i + 1}")
    a(f"s_cmp_ge_u32 s{S_JOB}, 2")
    a("s_cbranch_scc1 L_k1_second")
    a.seg("k1_qk")
    a(f"""
    v_lshrrev_b32 v17, 4, v3
    v_lshlrev_b32 v17, 12, v17
    v_and_b32 v18, 15, v3
    v_lshl_add_u32 v17, v18, 4, v17
    v_lshl_add_u32 v17, v4, 8, v17
    s_mul_i32 s{S_O1}, s{S_JOB}, {KF - QF}
    s_add_u32 s{S_O1}, s{S_O1}, s{S_BLK}
    s_add_u32 s{S_O1}, s{S_O1}, {QF}
    """)
    for c_ in range(8):
        i, k = c_ >> 1, c_ & 1
        a(f"buffer_store_dwordx4 {vr(G1 + 4 * c_, 4)}, v17, s[{SWS}:{SWS + 3}], s{S_O1} offen offset:{1024 * i + 512 * k}")
    a("s_branch L_k1_end")
    a.label("L_k1_second")
    a.seg("k1_c")
    a(f"s_cmp_eq_u32 s{S_JOB}, 3")
    a("s_cbranch_scc1 L_k1_m")

    def pack_store(addr, soffs, nat=False):
        a("s_nop 7")
        if cfg.get("k1tl"):
            a("s_memrealtime s[58:59]")
        a("s_nop 3")
        n = 0
        for i in range(4):
            for kk in range(2):
                t = H + 4 * n
                n += 1
                if nat:
                    b = D + 16 * i + 8 * kk
                    src = [b, b + 2, b + 4, b + 6]
                else:
                    b = D + 16 * i + 4 * kk
                    src = [b, b + 2, b + 8, b + 10]
                for d in range(4):
                    a(f"v_cvt_pk_bf16_f32 v{t + d}, v{src[d]}, v{src[d] + 1}")
                so, imm = soffs(i, kk)
                a(f"buffer_store_dwordx4 {vr(t, 4)}, v{addr}, s[{SWS}:{SWS + 3}], s{so} offen offset:{imm}")

    a.seg("k1_v")
    a(f"""
    v_lshrrev_b32 v17, 4, v3
    v_lshlrev_b32 v17, 10, v17
    v_and_b32 v18, 15, v3
    v_lshl_add_u32 v17, v18, 4, v17
    v_lshl_add_u32 v17, v4, 8, v17
    s_add_u32 s{S_O1}, s{S_BLK}, {VF}
    s_add_u32 s{S_O2}, s{S_O1}, 4096
    """)
    gemm(VA + 4, 32768, 2048, G1, False)
    pack_store(17, lambda i, kk: (S_O1 if i < 2 else S_O2, (i & 1) * 2048 + kk * 512))
    a("s_branch L_k1_end")
    a.label("L_k1_m")
    a.seg("k1_m")
    a(f"s_add_u32 s{S_O1}, s{S_BLK}, {MP}")
    gemm(VA + 4, 32768, 2048, G1, True)
    pack_store(5, lambda i, kk: (S_O1, i * 64 + kk * 32), nat=False)
    if NBK:
        a("s_branch L_k1_end")
        emit_bucket(a, cfg, SWS)
    a.label("L_k1_end")
    if cfg.get("k1tl"):
        a("s_memrealtime s[60:61]")
        a("s_waitcnt lgkmcnt(0)")
        a("v_lshrrev_b32 v1, 6, v0")
        a("v_lshlrev_b32 v1, 5, v1")
        a(f"s_lshl_b32 s40, s2, 7")
        a(f"s_add_u32 s40, s40, {TR + 0x40000}")
        for i in range(7):
            a(f"v_mov_b32 v{2 + i}, s{48 + 2 * i}")
        a(f"buffer_store_dwordx4 v[2:5], v1, s[{SWS}:{SWS + 3}], s40 offen")
        a(f"buffer_store_dwordx4 v[6:9], v1, s[{SWS}:{SWS + 3}], s40 offen offset:16")
    stamp_exit(a, cfg, 32, 0, f"s[{SWS}:{SWS + 3}]", TR)
    a.label("L_k1_exit")
    a("s_endpgm")
    return dict(name=name, vgpr=224, accum=224, sgpr=64, grid=NWG + NBK, block=256, lds=65536,
                chains=[["k1_a", "k1_b", "k1_qk"], ["k1_b", "k1_c", "k1_v"], ["k1_b", "k1_c", "k1_m"]] + ([["k1_bk"]] if NBK else []))


def emit_bucket(a, cfg, SWS):
    a.label("L_k1_bucket")
    a.seg("k1_bk")
    DS, SR, RK, AD = 32, 52, 72, 92
    HIST, BASE, WT, STG = 0, 4096, 8192, 16384
    ws = f"s[{SWS}:{SWS + 3}]"
    a(f"""
    s_load_dwordx4 s[20:23], s[0:1], 8
    s_load_dwordx2 s[{SWS}:{SWS + 1}], s[0:1], 88
    s_mov_b32 s6, {E * 4}
    s_mov_b32 s7, 0x00020000
    s_mov_b32 s10, {E * 4}
    s_mov_b32 s11, 0x00020000
    s_mov_b32 s{SWS + 2}, 0x10000000
    s_mov_b32 s{SWS + 3}, 0x00020000
    s_mul_i32 s24, s2, {EPW * 4}
    s_add_u32 s25, s24, 4096
    s_add_u32 s26, s24, 8192
    s_add_u32 s27, s24, 12288
    s_add_u32 s28, s24, 16384
    v_lshlrev_b32 v1, 4, v0                   ; t*16
    v_mov_b32 v4, 0
    v_mov_b32 v5, 0
    v_mov_b32 v6, 0
    v_mov_b32 v7, 0
    ds_write_b128 v1, v[4:7] offset:{HIST}
    v_mov_b32 v8, 1
    s_waitcnt lgkmcnt(0)
    s_mov_b32 s4, s20
    s_and_b32 s5, s21, 0xffff
    s_mov_b32 s8, s22
    s_and_b32 s9, s23, 0xffff
    s_and_b32 s{SWS + 1}, s{SWS + 1}, 0xffff
    """)
    for k in range(5):
        a(f"buffer_load_dwordx4 {vr(DS + 4 * k, 4)}, v1, s[8:11], s{24 + k} offen")
    for k in range(5):
        a(f"buffer_load_dwordx4 {vr(SR + 4 * k, 4)}, v1, s[4:7], s{24 + k} offen")
    a("s_barrier")
    a(f"v_cmp_gt_u32 vcc, {(EPW - 4096) // 4}, v0")
    a("v_mov_b32 v9, 10239")
    a("s_waitcnt vmcnt(5)")
    for j in range(4):
        a(f"v_cndmask_b32 v{DS + 16 + j}, v9, v{DS + 16 + j}, vcc")
    for i in range(20):
        a(f"v_lshrrev_b32 v{AD + i}, 4, v{DS + i}")
        a(f"v_lshlrev_b32 v{AD + i}, 2, v{AD + i}")
        a(f"ds_add_rtn_u32 v{RK + i}, v{AD + i}, v8 offset:{HIST}")
    a("s_waitcnt vmcnt(0)")
    for i in range(20):
        if cfg.get("nperm"):
            if cfg["nperm"] == 2:
                a(f"v_and_b32 v4, 12, v{DS + i}")
                a(f"v_lshl_or_b32 v{SR + i}, v{SR + i}, 8, v4")
                a(f"v_and_b32 v{DS + i}, 3, v{DS + i}")
                a(f"v_lshl_or_b32 v{SR + i}, v{DS + i}, 4, v{SR + i}")
                continue
            a(f"v_bfe_u32 v4, v{DS + i}, 2, 2")
            a(f"v_lshl_or_b32 v{SR + i}, v{SR + i}, 8, v4")
            a(f"v_and_b32 v{DS + i}, 3, v{DS + i}")
            a(f"v_lshl_or_b32 v{SR + i}, v{DS + i}, 2, v{SR + i}")
        else:
            a(f"v_and_b32 v{DS + i}, 15, v{DS + i}")
            a(f"v_lshl_or_b32 v{SR + i}, v{SR + i}, 8, v{DS + i}")
    a("s_waitcnt lgkmcnt(0)")
    a("s_barrier")
    a(f"""
    ds_read_b128 v[4:7], v1 offset:{HIST}
    v_lshrrev_b32 v2, 6, v0
    v_lshlrev_b32 v2, 2, v2                   ; wave*4
    s_waitcnt lgkmcnt(0)
    v_add_u32 v10, v4, v5
    v_add_u32 v11, v10, v6
    v_add_u32 v12, v11, v7
    v_mov_b32 v13, v12
    s_nop 1
    v_add_u32_dpp v13, v13, v13 row_shr:1 row_mask:0xf bank_mask:0xf
    s_nop 1
    v_add_u32_dpp v13, v13, v13 row_shr:2 row_mask:0xf bank_mask:0xf
    s_nop 1
    v_add_u32_dpp v13, v13, v13 row_shr:4 row_mask:0xf bank_mask:0xf
    s_nop 1
    v_add_u32_dpp v13, v13, v13 row_shr:8 row_mask:0xf bank_mask:0xf
    s_nop 1
    v_add_u32_dpp v13, v13, v13 row_bcast:15 row_mask:0xa bank_mask:0xf
    s_nop 1
    v_add_u32_dpp v13, v13, v13 row_bcast:31 row_mask:0xc bank_mask:0xf
    s_nop 1
    v_readlane_b32 s29, v13, 63
    s_nop 3
    v_mov_b32 v14, s29
    ds_write_b32 v2, v14 offset:{WT}
    v_mov_b32 v3, 0
    s_waitcnt lgkmcnt(0)
    s_barrier
    ds_read_b128 v[16:19], v3 offset:{WT}
    v_sub_u32 v13, v13, v12
    s_waitcnt lgkmcnt(0)
    v_readfirstlane_b32 s40, v16
    v_readfirstlane_b32 s41, v17
    v_readfirstlane_b32 s42, v18
    v_readfirstlane_b32 s43, v2
    s_nop 3
    s_cmp_gt_u32 s43, 0
    s_cselect_b32 s40, s40, 0
    s_cmp_gt_u32 s43, 4
    s_cselect_b32 s41, s41, 0
    s_cmp_gt_u32 s43, 8
    s_cselect_b32 s42, s42, 0
    s_add_u32 s40, s40, s41
    s_add_u32 s40, s40, s42
    v_add_u32 v20, s40, v13
    v_add_u32 v21, v20, v4
    v_add_u32 v22, v20, v10
    v_add_u32 v23, v20, v11
    ds_write_b128 v1, v[20:23] offset:{BASE}
    v_lshl_or_b32 v24, v4, 16, v20
    v_lshl_or_b32 v25, v5, 16, v21
    v_lshl_or_b32 v26, v6, 16, v22
    v_lshl_or_b32 v27, v7, 16, v23
    v_lshlrev_b32 v28, 10, v0                 ; 4t*256
    s_lshl_b32 s29, s2, 2
    s_add_u32 s29, s29, {TAB}
    v_cmp_gt_u32 vcc, 160, v0
    s_and_saveexec_b64 s[30:31], vcc
    s_cbranch_execz L_k1_bk2
    buffer_store_dword v24, v28, {ws}, s29 offen
    buffer_store_dword v25, v28, {ws}, s29 offen offset:256
    buffer_store_dword v26, v28, {ws}, s29 offen offset:512
    buffer_store_dword v27, v28, {ws}, s29 offen offset:768
    """)
    a.label("L_k1_bk2")
    a("s_mov_b64 exec, s[30:31]")
    a("s_waitcnt lgkmcnt(0)")
    a("s_barrier")
    for i in range(20):
        a(f"ds_read_b32 v{AD + i}, v{AD + i} offset:{BASE}")
    for i in range(20):
        if i == 0:
            a("s_waitcnt lgkmcnt(0)")
        a(f"v_add_lshl_u32 v{AD + i}, v{AD + i}, v{RK + i}, 2")
        a(f"ds_write_b32 v{AD + i}, v{SR + i} offset:{STG}")
    a("s_waitcnt lgkmcnt(0)")
    a("s_barrier")
    for k in range(5):
        a(f"ds_read_b128 {vr(DS + 4 * k, 4)}, v1 offset:{STG + 4096 * k}")
    a(f"s_mul_i32 s24, s2, {RECS}")
    a(f"s_add_u32 s24, s24, {REC}")
    for k in range(5):
        a(f"s_waitcnt lgkmcnt({4 - k})")
        a(f"buffer_store_dwordx4 {vr(DS + 4 * k, 4)}, v1, {ws}, s24 offen")
        a(f"s_add_u32 s24, s24, 4096")
```

```python
from layout import *
from asmlib import stamp_entry, stamp_exit
from k1 import emit_bucket, f2u, vr

MF = "v_mfma_f32_32x32x16_bf16"


def emit_k1(a, cfg):
    name = "k1_proj_kernel"
    NT = 80
    NWG = 3 * NT
    NBK = GB
    SC1 = {0: '', 1: ' sc1', 2: ' nt', 3: ' sc0 sc1'}[cfg.get('k1sc', 0)]
    a.raw(".text")
    a.raw(f".globl {name}\n.p2align 8\n.type {name},@function")
    a.label(name)
    a.seg("k1_a")
    SX, SW1, SW2, SWS = 4, 8, 12, 16
    S_JOB, S_BLK, S_W, S_T0, S_T1, S_SC = 20, 21, 22, 23, 24, 26
    S_O1, S_O2 = 28, 29
    XR = 64
    XF = 96
    H = 32
    D = 160
    VA = 8
    ws = f"s[{SWS}:{SWS + 3}]"

    def st(k):
        if cfg.get("k1tl"):
            a(f"s_memrealtime s[{48 + 2 * k}:{49 + 2 * k}]")

    a(f"""
    s_cmp_ge_u32 s2, {NWG + NBK}
    s_cbranch_scc1 L_k1_exit
    """)
    stamp_entry(a, cfg, 32)
    a(f"s_cmp_lt_u32 s2, {NBK}")
    a("s_cbranch_scc1 L_k1_bucket")
    if cfg.get("prio"):
        a("s_setprio 3")
    a(f"""
    s_sub_u32 s25, s2, {NBK}
    s_mul_i32 s{S_T0}, s25, 820
    s_lshr_b32 s{S_T0}, s{S_T0}, 16            ; wg / 80
    s_mul_i32 s3, s{S_T0}, 80
    s_sub_u32 s3, s25, s3                      ; tile
    s_add_u32 s{S_JOB}, s{S_T0}, 2
    s_cmp_gt_u32 s{S_JOB}, 2
    s_cselect_b32 s{S_T1}, 3, 0
    s_sub_u32 s{S_JOB}, s{S_JOB}, s{S_T1}      ; 2, 0, 1
    s_mov_b32 s{S_T0}, 40
    s_cmp_eq_u32 s{S_JOB}, 1
    s_cselect_b32 s{S_T0}, 56, s{S_T0}
    s_cmp_eq_u32 s{S_JOB}, 2
    s_cselect_b32 s{S_T0}, 32, s{S_T0}
    s_cmp_eq_u32 s{S_JOB}, 0
    s_cselect_b32 s{S_T1}, 48, 64
    s_load_dwordx2 s[{SX}:{SX + 1}], s[0:1], 0
    s_load_dwordx2 s[{SW1}:{SW1 + 1}], s[0:1], s{S_T0}
    s_load_dwordx2 s[{SW2}:{SW2 + 1}], s[0:1], s{S_T1}
    s_load_dwordx2 s[{SWS}:{SWS + 1}], s[0:1], 88
    v_lshrrev_b32 v1, 6, v0
    v_and_b32 v2, 63, v0                      ; lane
    v_readfirstlane_b32 s{S_W}, v1
    s_mov_b32 s{SX + 2}, {N * 256}
    s_mov_b32 s{SX + 3}, 0x00020000
    s_mov_b32 s{SW1 + 2}, 32768
    s_mov_b32 s{SW1 + 3}, 0x00020000
    s_mov_b32 s{SW2 + 2}, 32768
    s_mov_b32 s{SW2 + 3}, 0x00020000
    s_mov_b32 s{SWS + 2}, 0x10000000
    s_mov_b32 s{SWS + 3}, 0x00020000
    s_lshl_b32 s{S_BLK}, s3, 2
    s_add_u32 s{S_BLK}, s{S_BLK}, s{S_W}
    s_lshl_b32 s{S_BLK}, s{S_BLK}, 13          ; *8192 bytes
    s_add_u32 s{S_O2}, s{S_BLK}, 4096
    v_and_b32 v3, 31, v2                       ; n
    v_lshrrev_b32 v4, 5, v2                    ; h
    v_lshrrev_b32 v6, 4, v2                    ; g
    v_and_b32 v7, 15, v2                       ; t
    v_lshlrev_b32 v16, 2, v6
    v_xor_b32 v16, v16, v7
    v_lshlrev_b32 v16, 4, v16
    v_lshl_add_u32 v16, v6, 8, v16
    v_xor_b32 v17, v6, v7
    v_lshlrev_b32 v17, 4, v17
    v_lshl_add_u32 v17, v6, 8, v17
    v_xor_b32 v18, 64, v17
    v_xor_b32 v19, 128, v17
    v_xor_b32 v20, 192, v17
    s_lshl_b32 s{S_T0}, s{S_W}, 13             ; w*8192
    s_add_u32 s{S_T1}, s{S_T0}, 4096
    s_add_u32 m0, s{S_T0}, 0x8000
    s_waitcnt lgkmcnt(0)
    s_and_b32 s{SX + 1}, s{SX + 1}, 0xffff
    s_and_b32 s{SW1 + 1}, s{SW1 + 1}, 0xffff
    s_and_b32 s{SW2 + 1}, s{SW2 + 1}, 0xffff
    s_and_b32 s{SWS + 1}, s{SWS + 1}, 0xffff
    """)
    st(0)
    for k in range(4):
        a(f"buffer_load_dwordx4 v{17 + k}, s[{SX}:{SX + 3}], s{S_BLK} offen offset:{1024 * k} lds")
    a(f"s_add_u32 m0, s{S_T1}, 0x8000")
    a("s_nop 0")
    for k in range(4):
        a(f"buffer_load_dwordx4 v{17 + k}, s[{SX}:{SX + 3}], s{S_O2} offen offset:{1024 * k} lds")

    def wdma(srd, base):
        for half, so in ((0, S_T0), (1, S_T1)):
            a(f"s_add_u32 m0, s{so}, {base}")
            a("s_nop 0")
            for k in range(4):
                a(f"buffer_load_dwordx4 v16, s[{srd}:{srd + 3}], s{so} offen offset:{1024 * k} lds")

    wdma(SW1, 0)
    a(f"""
    v_mov_b32 v21, 0
    v_lshlrev_b32 v22, 2, v0
    s_lshl_b32 s{S_O1}, s25, 7
    s_add_u32 s{S_O1}, s{S_O1}, {FLG}
    v_cmp_gt_u32 vcc, 32, v0
    s_and_saveexec_b64 s[30:31], vcc
    s_cbranch_execz L_k1_nz
    buffer_store_dword v21, v22, {ws}, s{S_O1} offen
    """)
    a.label("L_k1_nz")
    a(f"""
    s_mov_b64 exec, s[30:31]
    v_and_b32 v21, 15, v3
    v_xor_b32 v21, v21, v4
    v_lshlrev_b32 v21, 4, v21
    v_lshl_add_u32 v21, v3, 8, v21
    v_add_u32 v21, s{S_T0}, v21
    v_lshrrev_b32 v17, 2, v7                   ; r = t>>2
    v_lshrrev_b32 v18, 1, v6                   ; hh = g>>1
    v_and_b32 v19, 1, v6                       ; g&1
    v_lshlrev_b32 v20, 6, v17                  ; r*64
    v_lshl_add_u32 v20, v19, 5, v20            ; + (g&1)*32
    v_and_b32 v22, 3, v7
    v_lshl_add_u32 v20, v22, 3, v20            ; + (t&3)*8
    v_lshl_add_u32 v20, v17, 8, v20            ; + r*256
    v_lshl_add_u32 v{VA}, v18, 11, v20
    v_lshl_add_u32 v{VA + 4}, v18, 10, v20
    """)
    for i in range(1, 4):
        a(f"v_xor_b32 v{VA + i}, {i << 6}, v{VA}")
        a(f"v_xor_b32 v{VA + 4 + i}, {i << 6}, v{VA + 4}")
    for s in range(1, 8):
        a(f"v_xor_b32 v{224 + s}, {s << 5}, v21")
    a("s_waitcnt vmcnt(8)")
    st(1)
    for s in range(8):
        a(f"ds_read_b128 {vr(XR + 4 * s, 4)}, v{21 if s == 0 else 224 + s} offset:32768")
    a("s_waitcnt lgkmcnt(0)")
    wdma(SW2, 0x8000)
    a.seg("k1_b")
    for i in range(32):
        a(f"v_lshlrev_b32 v{XF + 2 * i}, 16, v{XR + i}")
        a(f"v_and_b32 v{XF + 2 * i + 1}, 0xffff0000, v{XR + i}")
    AC = 22
    a(f"v_pk_add_f32 {vr(AC, 2)}, {vr(XF, 2)}, {vr(XF + 2, 2)}")
    a(f"v_pk_add_f32 {vr(AC + 2, 2)}, {vr(XF + 4, 2)}, {vr(XF + 6, 2)}")
    for i in range(4, 32):
        t = AC + 2 * (i & 1)
        a(f"v_pk_add_f32 {vr(t, 2)}, {vr(t, 2)}, {vr(XF + 2 * i, 2)}")
    a(f"v_pk_add_f32 {vr(AC, 2)}, {vr(AC, 2)}, {vr(AC + 2, 2)}")
    a(f"v_add_f32 v{AC}, v{AC}, v{AC + 1}")

    def xhalf_sum(r, t):
        a(f"v_mov_b32 v{t}, v{r}")
        a("s_nop 1")
        a(f"v_permlane32_swap_b32 v{r}, v{t}")
        a("s_nop 1")
        a(f"v_add_f32 v{r}, v{r}, v{t}")

    xhalf_sum(AC, AC + 1)
    a(f"v_mul_f32 v26, {hex(f2u(-1.0 / 128))}, v{AC}")
    a("v_mov_b32 v27, v26")
    for i in range(32):
        a(f"v_pk_add_f32 {vr(XF + 2 * i, 2)}, {vr(XF + 2 * i, 2)}, v[26:27]")
    a(f"v_pk_mul_f32 {vr(AC, 2)}, {vr(XF, 2)}, {vr(XF, 2)}")
    a(f"v_pk_mul_f32 {vr(AC + 2, 2)}, {vr(XF + 2, 2)}, {vr(XF + 2, 2)}")
    for i in range(2, 32):
        t = AC + 2 * (i & 1)
        a(f"v_pk_fma_f32 {vr(t, 2)}, {vr(XF + 2 * i, 2)}, {vr(XF + 2 * i, 2)}, {vr(t, 2)}")
    a(f"v_pk_add_f32 {vr(AC, 2)}, {vr(AC, 2)}, {vr(AC + 2, 2)}")
    a(f"v_add_f32 v{AC}, v{AC}, v{AC + 1}")
    xhalf_sum(AC, AC + 1)

    def rnd(r):
        a(f"v_cvt_pk_bf16_f32 v{r}, v{r}, v{r}")
        a(f"v_lshlrev_b32 v{r}, 16, v{r}")

    a(f"v_mul_f32 v{AC}, {hex(f2u(1.0 / 128))}, v{AC}")
    rnd(AC)
    a(f"v_add_f32 v{AC}, {hex(f2u(1e-5))}, v{AC}")
    rnd(AC)
    a(f"v_sqrt_f32 v{AC}, v{AC}")
    a(f"v_cvt_pk_bf16_f32 v24, v26, v26")
    rnd(AC)
    a(f"v_rcp_f32 v28, v{AC}")
    a(f"v_lshlrev_b32 v24, 16, v24")
    a(f"v_sub_f32 v24, v24, v26")
    a(f"v_mov_b32 v29, v28")
    a(f"v_mul_f32 v24, v24, v28")
    a(f"v_mov_b32 v25, v24")
    for i in range(32):
        a(f"v_pk_fma_f32 {vr(XF + 2 * i, 2)}, {vr(XF + 2 * i, 2)}, v[28:29], v[24:25]")
    for i in range(32):
        a(f"v_cvt_pk_bf16_f32 v{H + i}, v{XF + 2 * i}, v{XF + 2 * i + 1}")
    c = 1.4426950408889634 / 128 ** 0.5
    a(f"s_mov_b32 s{S_SC}, {hex(f2u(c))}")
    a(f"s_cmp_eq_u32 s{S_JOB}, 0")
    a(f"s_cselect_b32 s{S_SC}, s{S_SC}, 1.0")
    st(2)
    a("s_waitcnt vmcnt(8)")
    a("s_barrier")
    st(3)
    WB = [XF, XF + 32]

    def reads(i, buf, addr, base, second):
        for s in range(8):
            a(f"ds_read_b64_tr_b16 {vr(buf + 4 * s, 2)}, v{addr + i} offset:{base + 4096 * s}")
            a(f"ds_read_b64_tr_b16 {vr(buf + 4 * s + 2, 2)}, v{addr + i} offset:{base + 4096 * s + second}")

    def rd(i, s, buf, addr, base, second):
        return [f"ds_read_b64_tr_b16 {vr(buf + 4 * s, 2)}, v{addr + i} offset:{base + 4096 * s}",
                f"ds_read_b64_tr_b16 {vr(buf + 4 * s + 2, 2)}, v{addr + i} offset:{base + 4096 * s + second}"]

    def gemm(addr, base, second, other, w_is_a, first_issued=False, fill=None):
        if not first_issued:
            reads(0, WB[0], addr, base, second)
        for i in range(4):
            fl = list(fill[i]) if fill else []
            per = -(-len(fl) // 6)
            fl = [None] * (2 * per) + fl
            for s in range(8):
                young = 2 * (7 - s) + (2 * s if i < 3 else 0)
                a(f"s_waitcnt lgkmcnt({min(young, 15)})")
                w = vr(WB[i & 1] + 4 * s, 4)
                o = vr(other + 4 * s, 4)
                A, B = (w, o) if w_is_a else (o, w)
                d = vr(D + 16 * i, 16)
                a(f"{MF} {d}, {A}, {B}, {'0' if s == 0 else d}")
                if i < 3:
                    for t in rd(i + 1, s, WB[(i + 1) & 1], addr, base, second):
                        a(t)
                for t in fl[per * s:per * (s + 1)]:
                    if t:
                        a(t)

    G1 = XR

    def pack1(i, scale):
        out = []
        for k in range(8):
            b = D + 16 * i + 2 * k
            if scale:
                out.append(f"v_mul_f32 v{b}, s{S_SC}, v{b}")
                out.append(f"v_mul_f32 v{b + 1}, s{S_SC}, v{b + 1}")
            out.append(f"v_cvt_pk_bf16_f32 v{G1 + 8 * i + k}, v{b}, v{b + 1}")
        return out

    gemm(VA, 0, 1024, H, True, fill=[[]] + [pack1(i, True) for i in range(3)])
    st(4)
    a("s_waitcnt vmcnt(0)")
    a("s_barrier")
    a(f"s_cmp_lg_u32 s{S_JOB}, 0")
    a("s_cbranch_scc1 L_k1_second")
    a.seg("k1_qk")
    a(f"""
    v_lshrrev_b32 v17, 4, v3
    v_lshlrev_b32 v17, 12, v17
    v_and_b32 v18, 15, v3
    v_lshl_add_u32 v17, v18, 4, v17
    v_lshl_add_u32 v17, v4, 8, v17
    s_add_u32 s{S_O1}, s{S_BLK}, {QF}
    s_add_u32 s{S_O2}, s{S_BLK}, {KF}
    """)
    reads(0, WB[0], VA, 32768, 1024)

    def qkst(i, so):
        return [f"buffer_store_dwordx4 {vr(G1 + 8 * i + 4 * k, 4)}, v17, {ws}, s{so} offen offset:{1024 * i + 512 * k}{SC1}" for k in range(2)]

    for i in range(3):
        for t in qkst(i, S_O1):
            a(t)
    for t in pack1(3, True) + qkst(3, S_O1):
        a(t)
    gemm(VA, 32768, 1024, H, True, first_issued=True, fill=[[]] + [pack1(i, False) + qkst(i, S_O2) for i in range(3)])
    a("s_nop 7")
    a("s_nop 3")
    st(5)
    for t in pack1(3, False) + qkst(3, S_O2):
        a(t)
    a("s_branch L_k1_end")
    a.label("L_k1_second")
    a.seg("k1_c")
    reads(0, WB[0], VA + 4, 32768, 2048)
    for t in pack1(3, False):
        a(t)
    a(f"s_cmp_eq_u32 s{S_JOB}, 2")
    a("s_cbranch_scc1 L_k1_m")

    def pack2(i, st_):
        out = []
        for kk in range(2):
            t = H + 4 * (2 * i + kk)
            b = D + 16 * i + 4 * kk
            for d, src in enumerate([b, b + 2, b + 8, b + 10]):
                out.append(f"v_cvt_pk_bf16_f32 v{t + d}, v{src}, v{src + 1}")
            out.append(st_(i, kk, t))
        return out

    a.seg("k1_v")
    a(f"""
    v_lshrrev_b32 v17, 4, v3
    v_lshlrev_b32 v17, 10, v17
    v_and_b32 v18, 15, v3
    v_lshl_add_u32 v17, v18, 4, v17
    v_lshl_add_u32 v17, v4, 8, v17
    s_add_u32 s{S_O1}, s{S_BLK}, {VF}
    s_add_u32 s{S_O2}, s{S_O1}, 4096
    """)
    vst = lambda i, kk, t: f"buffer_store_dwordx4 {vr(t, 4)}, v17, {ws}, s{S_O1 if i < 2 else S_O2} offen offset:{(i & 1) * 2048 + kk * 512}{SC1}"
    gemm(VA + 4, 32768, 2048, G1, False, first_issued=True, fill=[[]] + [pack2(i, vst) for i in range(3)])
    a("s_nop 7")
    a("s_nop 3")
    st(5)
    for t in pack2(3, vst):
        a(t)
    a("s_branch L_k1_end")
    a.label("L_k1_m")
    a.seg("k1_m")
    a(f"""
    s_add_u32 s{S_O1}, s{S_BLK}, {MP}
    s_add_u32 s{S_O2}, s{S_O1}, 4096
    v_xor_b32 v17, v6, v7
    v_lshlrev_b32 v17, 4, v17
    v_lshl_add_u32 v17, v6, 8, v17
    v_add_u32 v17, s{S_T0}, v17
    v_xor_b32 v18, 64, v17
    v_xor_b32 v19, 128, v17
    v_xor_b32 v20, 192, v17
    v_lshlrev_b32 v16, 4, v2
    """)
    nost = lambda i, kk, t: "s_nop 0"
    gemm(VA + 4, 32768, 2048, G1, True, first_issued=True, fill=[[]] + [pack2(i, nost) for i in range(3)])
    for s in range(6):
        a(f"ds_write_b128 v{21 if s == 0 else 224 + s}, {vr(H + 4 * s, 4)}")
    a("s_nop 5")
    st(5)
    for t in pack2(3, lambda i, kk, t: f"ds_write_b128 v{224 + 2 * i + kk}, {vr(t, 4)}"):
        a(t)
    a("s_waitcnt lgkmcnt(0)")
    for k in range(8):
        a(f"ds_read_b128 {vr(XF + 4 * k, 4)}, v{17 + (k & 3)} offset:{1024 * k}")
    for k in range(8):
        a(f"s_waitcnt lgkmcnt({7 - k})")
        a(f"buffer_store_dwordx4 {vr(XF + 4 * k, 4)}, v16, {ws}, s{S_O1 if k < 4 else S_O2} offen offset:{1024 * (k & 3)}{SC1}")
    a("s_branch L_k1_end")
    emit_bucket(a, cfg, SWS)
    a.label("L_k1_end")
    if cfg.get("k1tl"):
        a("s_memrealtime s[60:61]")
        a("s_waitcnt lgkmcnt(0)")
        a("v_lshrrev_b32 v1, 6, v0")
        a("v_lshlrev_b32 v1, 5, v1")
        a(f"s_lshl_b32 s40, s2, 7")
        a(f"s_add_u32 s40, s40, {TR + 0x40000}")
        for i in range(7):
            a(f"v_mov_b32 v{2 + i}, s{48 + 2 * i}")
        a(f"buffer_store_dwordx4 v[2:5], v1, {ws}, s40 offen")
        a(f"buffer_store_dwordx4 v[6:9], v1, {ws}, s40 offen offset:16")
    stamp_exit(a, cfg, 32, 0, ws, TR)
    a.label("L_k1_exit")
    a("s_endpgm")
    return dict(name=name, vgpr=232, accum=232, sgpr=64, grid=NWG + NBK, block=256, lds=65536,
                chains=[["k1_a", "k1_b", "k1_qk"], ["k1_b", "k1_c", "k1_v"], ["k1_b", "k1_c", "k1_m"], ["k1_bk"]])
```

```python
from layout import *
from asmlib import stamp_entry, stamp_exit

CFG = {}
MF = "v_mfma_f32_16x16x32_bf16"


class R:
    pass


def setup(G):
    R.G = G
    NQ = 2 * G
    R.NQ = NQ
    R.O = 256 - NQ * 32
    if G == 2:
        R.S = 64
        R.N = 96
        R.P = 112
        R.E = 32
        R.T = 48
        R.L = 52
    R.VLDS, R.VL16, R.VT, R.VT2, R.VT3 = 20, 21, 22, 23, 24
    R.AQ = 0
    R.AK = NQ * 16
    R.AV = R.AK + 32


S_SRD = 4
S_W, S_SRC, S_M0, S_CNT, S_THR, S_SPLIT, S_QT, S_T0, S_T1 = 8, 9, 10, 11, 12, 13, 14, 15, 16
S_Q0 = 20
S_PO, S_PL = 28, 29


def vr(b, n):
    return f"v[{b}:{b + n - 1}]"


def ar(b, n):
    return f"a[{b}:{b + n - 1}]"


def qbs(X):
    return list(range(R.G)) if X == "A" else list(range(R.G, 2 * R.G))


def St(qb, kb):
    return R.S + (qb * 2 + kb) * 4


def mfma_qk(qb, kb, s, czero=False):
    d = vr(St(qb, kb), 4)
    c = ("0" if czero else vr(R.N + 4 * qb, 4)) if s == 0 else d
    return f"{MF} {d}, {ar(R.AK + (kb * 4 + s) * 4, 4)}, {ar(R.AQ + (qb * 4 + s) * 4, 4)}, {c}"


def mfma_pv(qb, db):
    o = vr(R.O + (qb * 8 + db) * 4, 4)
    return f"{MF} {o}, {ar(R.AV + 4 * db, 4)}, {vr(R.P + 4 * qb, 4)}, {o}"


def qk_order(X, nkb=2):
    mode = CFG.get("qkord", "chain")
    out = []
    if mode == "chain":
        for qb in qbs(X):
            for kb in range(nkb):
                for s in range(4):
                    out.append((qb, kb, s))
    elif mode == "chaink":
        for kb in range(nkb):
            for qb in qbs(X):
                for s in range(4):
                    out.append((qb, kb, s))
    elif mode == "shareA":
        for s in range(4):
            for kb in range(nkb):
                for qb in qbs(X):
                    out.append((qb, kb, s))
    elif mode == "shareB":
        for s in range(4):
            for qb in qbs(X):
                for kb in range(nkb):
                    out.append((qb, kb, s))
    return out


def pv_order(X):
    mode = CFG.get("pvord", "shareA")
    out = []
    if mode == "shareA":
        for db in range(8):
            for qb in qbs(X):
                out.append((qb, db))
    else:
        for qb in qbs(X):
            for db in range(8):
                out.append((qb, db))
    return out


def sm_ops(X, nkb, tag):
    ops = []
    E = R.E
    pend = []
    n = 0
    seq = []
    for qb in qbs(X):
        for kb in range(nkb):
            for pr in range(2):
                seq.append((qb, kb, pr))
    first = {qb: True for qb in qbs(X)}
    for idx, (qb, kb, pr) in enumerate(seq):
        e0, e1 = E + (2 * idx) % 8, E + (2 * idx + 1) % 8
        s0 = St(qb, kb) + 2 * pr
        T = R.T + qb
        x0 = (f"v_exp_f32 v{e0}, v{s0}", 8)
        x1 = (f"v_exp_f32 v{e1}, v{s0 + 1}", 8)
        ops.append(x0)
        if len(pend) == 3:
            ops.append(pend.pop(0))
        ops.append(x1)
        ops += pend
        pend = []
        if first[qb]:
            pend.append((f"v_add_f32 v{T}, v{e0}, v{e1}", 4))
            first[qb] = False
        else:
            pend.append((f"v_add_f32 v{T}, v{T}, v{e0}", 4))
            pend.append((f"v_add_f32 v{T}, v{T}, v{e1}", 4))
        pend.append((f"v_cvt_pk_bf16_f32 v{R.P + 4 * qb + 2 * kb + pr}, v{e0}, v{e1}", 4))
    if nkb == 1:
        for qb in qbs(X):
            ops.append((f"v_mov_b32 v{R.P + 4 * qb + 2}, 0", 4))
            ops.append((f"v_mov_b32 v{R.P + 4 * qb + 3}, 0", 4))
    ops += pend[:-1]
    q = qbs(X)
    if R.G == 2:
        ops.append((f"v_max_f32 v{R.VT}, v{R.T + q[0]}, v{R.T + q[1]}", 4))
    else:
        ops.append((f"v_max3_f32 v{R.VT}, v{R.T + q[0]}, v{R.T + q[1]}, v{R.T + q[2]}", 4))
    ops.append((f"v_cmp_lt_f32 vcc, s{S_THR}, v{R.VT}", 4))
    ops.append(pend[-1])
    ops.append((f"s_cbranch_vccnz L_slow_{tag}", 4))
    ops.append((f"L_back_{tag}:", 0))
    for qb in q:
        ops.append((f"v_add_f32 v{R.L + qb}, v{R.L + qb}, v{R.T + qb}", 4))
    if CFG.get("noexp"):
        ops = [o for o in ops if not o[0].startswith(("v_exp", "v_cvt", "v_add"))]
    return ops


def sm_streams(X, nkb, tag, order):
    chk = not CFG.get("nocheck")
    E = R.E
    exps, smalls = [], []
    first = {qb: True for qb in qbs(X)}
    idx = 0
    for (qb, kb) in order:
        if kb >= nkb:
            continue
        for pr in range(2):
            s0 = St(qb, kb) + 2 * pr
            if chk:
                e0, e1 = E + (2 * idx) % 16, E + (2 * idx + 1) % 16
            else:
                e0, e1 = s0, s0 + 1
            exps.append(f"v_exp_f32 v{e0}, v{s0}")
            exps.append(f"v_exp_f32 v{e1}, v{s0 + 1}")
            T = (R.T if chk else R.L) + qb
            if first[qb] and chk:
                smalls.append((f"v_add_f32 v{T}, v{e0}, v{e1}", 2 * idx + 1))
                first[qb] = False
            else:
                smalls.append((f"v_add_f32 v{T}, v{T}, v{e0}", 2 * idx))
                smalls.append((f"v_add_f32 v{T}, v{T}, v{e1}", 2 * idx + 1))
            smalls.append((f"v_cvt_pk_bf16_f32 v{R.P + 4 * qb + 2 * kb + pr}, v{e0}, v{e1}", 2 * idx + 1))
            idx += 1
    last = 2 * idx - 1
    if nkb == 1:
        for qb in qbs(X):
            smalls.insert(0, (f"v_mov_b32 v{R.P + 4 * qb + 2}, 0", -1))
            smalls.insert(0, (f"v_mov_b32 v{R.P + 4 * qb + 3}, 0", -1))
    if chk:
        q = qbs(X)
        c = smalls.pop()
        smalls.append((f"v_max_f32 v{R.VT}, v{R.T + q[0]}, v{R.T + q[1]}", last))
        smalls.append((f"v_cmp_lt_f32 vcc, s{S_THR}, v{R.VT}", last))
        smalls.append(c)
        smalls.append((f"s_cbranch_vccnz L_slow_{tag}\nL_back_{tag}:", last))
        for qb in q:
            smalls.append((f"v_add_f32 v{R.L + qb}, v{R.L + qb}, v{R.T + qb}", last))
    if CFG.get("noexp"):
        exps = []
        smalls = [(t, -1) for t, _ in smalls if not t.startswith(("v_cvt", "v_add"))]
    return exps, smalls


def schedule(gaps, fixed, exps, smalls, g0, g1, exp_ready, base=8):
    n = g1 - g0 + 1
    for nextra in range(0, 4 * n):
        cap = {}
        for i, g in enumerate(range(g0, g1 + 1)):
            k = (i + 1) * nextra // n - i * nextra // n
            cap[g] = base + 4 * k
        out = {g: [] for g in range(g0, g1 + 1)}
        ei = si = 0
        issued = {}
        pos = 0
        for i, g in enumerate(range(g0, g1 + 1)):
            pos += 1
            pos += 1 if fixed[g] else 0
            rem = cap[g] - fixed[g]
            while rem > 0:
                def small_ready(j):
                    if j >= len(smalls):
                        return False
                    d = smalls[j][1]
                    return d < 0 or (d in issued and pos - issued[d] >= 2)
                e_ok = ei < len(exps) and exp_ready[ei] <= g
                nready = 0
                j = si
                while small_ready(j) and nready < 2:
                    nready += 1
                    j += 1
                behind = ei / max(len(exps), 1) <= (i + 0.5) / n * 1.12
                if e_ok and rem >= 8 and (nready * 4 < min(rem, 8) or behind):
                    out[g].append(exps[ei]); issued[ei] = pos; ei += 1; pos += 1; rem -= 8
                elif nready:
                    out[g].append(smalls[si][0]); si += 1; pos += 1; rem -= 4
                else:
                    break
        if ei == len(exps) and si == len(smalls):
            for g in out:
                gaps[g] += out[g]
            return nextra
    raise RuntimeError("cannot schedule")


def emit_rowmax(a, qb, nkb, dst):
    s = St(qb, 0)
    a(f"v_max3_f32 v{dst}, v{s}, v{s + 1}, v{s + 2}")
    if nkb == 2:
        a(f"v_max3_f32 v{dst}, v{dst}, v{s + 3}, v{s + 4}")
        a(f"v_max3_f32 v{dst}, v{dst}, v{s + 5}, v{s + 6}")
        a(f"v_max_f32 v{dst}, v{dst}, v{s + 7}")
    else:
        a(f"v_max_f32 v{dst}, v{dst}, v{s + 3}")
    for sw in ("v_permlane32_swap_b32", "v_permlane16_swap_b32"):
        a(f"v_mov_b32 v{R.VT3}, v{dst}")
        a("s_nop 1")
        a(f"{sw} v{dst}, v{R.VT3}")
        a("s_nop 1")
        a(f"v_max_f32 v{dst}, v{dst}, v{R.VT3}")


def emit_slow(a, X, nkb, tag):
    a.seg("slow_" + tag)
    a.label(f"L_slow_{tag}")
    a("s_nop 15")
    E = R.E
    for qb in qbs(X):
        emit_rowmax(a, qb, nkb, R.VT)
        a(f"v_max_f32 v{R.VT}, 0, v{R.VT}")
        a(f"v_exp_f32 v{R.VT2}, -v{R.VT}")
        a("s_nop 0")
        a(f"v_mul_f32 v{R.L + qb}, v{R.L + qb}, v{R.VT2}")
        for i in range(32):
            o = R.O + qb * 32 + i
            a(f"v_mul_f32 v{o}, v{o}, v{R.VT2}")
        for i in range(4):
            a(f"v_sub_f32 v{R.N + 4 * qb + i}, v{R.N + 4 * qb + i}, v{R.VT}")
        for k in range(2 * nkb):
            s = St(qb, 0) + 2 * k
            a(f"v_sub_f32 v{s}, v{s}, v{R.VT}")
            a(f"v_sub_f32 v{s + 1}, v{s + 1}, v{R.VT}")
            a(f"v_exp_f32 v{E}, v{s}")
            a(f"v_exp_f32 v{E + 1}, v{s + 1}")
            a("s_nop 0")
            T = R.T + qb
            if k == 0:
                a(f"v_add_f32 v{T}, v{E}, v{E + 1}")
            else:
                a(f"v_add_f32 v{T}, v{T}, v{E}")
                a(f"v_add_f32 v{T}, v{T}, v{E + 1}")
            a(f"v_cvt_pk_bf16_f32 v{R.P + 4 * qb + k}, v{E}, v{E + 1}")
    a("s_nop 7")
    a(f"s_branch L_back_{tag}")


def distribute(gaps, fixed_cost, ops, g0, g1):
    n = g1 - g0 + 1
    tot = sum(c for _, c in ops) + sum(fixed_cost[g] for g in range(g0, g1 + 1))
    per = tot / n
    acc = 0.0
    k = 0
    for idx, g in enumerate(range(g0, g1 + 1)):
        acc += fixed_cost[g]
        target = per * (idx + 1)
        while k < len(ops) and (g == g1 or acc + ops[k][1] / 2 <= target or ops[k][1] == 0):
            gaps[g].append(ops[k][0])
            acc += ops[k][1]
            k += 1


def emit_body(a, cfg, tag, last=False, nkb=2):
    PF = cfg["PF"]
    G = R.G
    PH = 8 * G
    mf = []
    pvB = pv_order("B")
    qkB = qk_order("B", nkb)
    pvA = pv_order("A")
    qkA = qk_order("A")
    mf += [mfma_pv(*x) for x in pvB]
    mf += [mfma_qk(*x) for x in qkB]
    pA0 = len(mf)
    mf += [mfma_pv(*x) for x in pvA]
    qA0 = len(mf)
    if not last:
        mf += [mfma_qk(*x) for x in qkA]
    exp = cfg.get("xord")
    if exp and not last:
        qk4 = [mfma_qk(qb, kb, s_) for s_ in range(4) for kb in range(2) for qb in range(4)]
        qkB4 = [mfma_qk(qb, kb, s_) for s_ in range(4) for qb in range(4) for kb in range(2)]
        pvq = [mfma_pv(qb, db) for qb in range(4) for db in range(8)]
        pvd = [mfma_pv(qb, db) for db in range(8) for qb in range(4)]
        alt = [x for p in zip(qk4, pvq) for x in p]
        mf = {"b": qk4 + pvq, "c": qk4 + pvd, "d": qkB4 + pvq, "e": alt}[exp]
    if cfg.get("oagpr"):
        import re as _re
        def sub(m):
            lo, hi = int(m.group(1)), int(m.group(2))
            return f"a[{lo}:{hi}]" if lo >= 128 else m.group(0)
        mf = [_re.sub(r"v\[(\d+):(\d+)\]", sub, x) for x in mf]
    nm = len(mf)
    pre = {g: [] for g in range(nm + 1)}
    post = {g: [] for g in range(nm + 1)}
    cost = {g: 0 for g in range(nm + 1)}

    def put(d, g, text, c=4):
        if cfg.get("nods") and text.startswith("ds_read") and not last:
            return
        d[g].append(text)
        cost[g] += c

    for db in range(8):
        g = max(i for i, x in enumerate(pvB) if x[1] == db)
        put(pre, g, f"ds_read_b128 {ar(R.AV + 4 * db, 4)}, v{R.VLDS} offset:{8192 + 1024 * db}")
    if not last:
        kg = []
        for kb in range(2):
            for s in range(4):
                g = PH + max(i for i, x in enumerate(qkB) if x[1] == kb and x[2] == s)
                kg.append((g, kb * 4 + s))
        kg.sort()
        lastg = -1
        nk_before = 0
        for g, f in kg:
            g = max(g, lastg + cfg.get("kstep", 2))
            lastg = g
            if g < pA0:
                nk_before += 1
            put(pre, g, f"ds_read_b128 {ar(R.AK + 4 * f, 4)}, v{R.VLDS} offset:{1024 * f}")
        assert lastg < qA0 - 4, lastg
        put(post, pA0 - 1, f"s_waitcnt lgkmcnt({nk_before})")
        put(post, qA0 - 1, "s_waitcnt lgkmcnt(0)")
        put(pre, 0, f"s_add_u32 s{S_M0}, s{S_M0}, 0x4000")
        put(pre, 2, f"s_and_b32 m0, s{S_M0}, 0x1ffff")
        put(pre, 4, f"s_add_u32 s{S_SRC}, s{S_SRC}, 0x2000")
        put(pre, 6, f"s_sub_u32 s{S_CNT}, s{S_CNT}, 1")
        if not cfg.get("nodma"):
            for k, g in enumerate(cfg.get("dgaps", [qA0 - 6, qA0 - 2, qA0 + 2, qA0 + 6])):
                put(pre, g, f"buffer_load_dwordx4 v{R.VL16}, s[{S_SRD}:{S_SRD + 3}], s{S_SRC} offen offset:{1024 * k} lds", 4)
        put(pre, nm - 2, f"v_add_u32 v{R.VLDS}, 0x4000, v{R.VLDS}")
        put(pre, nm - 1, f"v_and_b32 v{R.VLDS}, 0x1ffff, v{R.VLDS}")
        put(post, nm - 2, f"s_cmp_lg_u32 s{S_CNT}, 0")
        put(post, nm - 1, f"s_cbranch_scc1 L_body_{tag}")
    else:
        put(post, pA0 - 1, "s_waitcnt lgkmcnt(0)")
    mid = {g: [] for g in range(nm + 1)}
    lead = cfg.get("lead", 3)

    def tile_order(qk, off):
        fin = {}
        for i, (qb, kb, s_) in enumerate(qk):
            fin[(qb, kb)] = i
        order = sorted(fin, key=lambda t: fin[t])
        return order, fin

    oA, finA = tile_order(qkA, 0)
    oA = [t for t in oA if t[1] < nkb]
    exA, smA = sm_streams("A", nkb, tag + "A", oA)
    rdyA = [max(0, finA[t] - len(qkA) + 1 + lead) for t in oA for _ in range(4)]
    xa = schedule(mid, cost, exA, smA, 0, pA0 - 1, rdyA)
    oB, finB = tile_order(qkB, 0)
    exB, smB = sm_streams("B", nkb, tag + "B", oB)
    rdyB = [max(pA0, PH + finB[t] + 1 + lead) for t in oB for _ in range(4)]
    xb = schedule(mid, cost, exB, smB, pA0, nm - 1 - (0 if last else cfg.get("tail", 0)), rdyB)
    if tag == "m":
        tot = sum(max(16, 8 + cost[g] + sum(8 if t.startswith("v_exp") else 4 for t in mid[g])) for g in range(nm))
        print("body extra slots", xa, xb, "model cycles", tot)
    a.seg("body_" + tag)
    a.label(f"L_body_{tag}")
    a(f"s_waitcnt vmcnt({4 * (PF - 1)})")
    a("s_barrier")
    for g in range(nm):
        a(mf[g])
        for t in pre[g] + mid[g] + post[g]:
            a(t)
    if last:
        a("s_nop 1")
        for x in pvB:
            a(mfma_pv(*x))


def emit_k2(a, cfg):
    PF = cfg["PF"]
    CFG.clear()
    CFG.update(cfg)
    setup(2)
    NQ = R.NQ
    NWG = 240
    LIM = cfg.get("lim", NWG)
    name = "k2_attn_kernel"
    a.raw(".text")
    a.raw(f".globl {name}\n.p2align 8\n.type {name},@function")
    a.label(name)
    a.seg("k2_pro")
    a(f"""
    s_cmp_ge_u32 s2, {LIM}
    s_cbranch_scc1 L_k2_end
    s_memrealtime s[56:57]
    s_load_dwordx2 s[{S_SRD}:{S_SRD + 1}], s[0:1], 88
    v_lshrrev_b32 v1, 6, v0
    v_and_b32 v2, 63, v0
    v_readfirstlane_b32 s{S_W}, v1
    v_lshlrev_b32 v{R.VL16}, 4, v2
    s_and_b32 s{S_T0}, s2, 7
    s_mul_i32 s{S_T0}, s{S_T0}, {NWG // 8}
    s_lshr_b32 s{S_T1}, s2, 3
    s_add_u32 s{S_T0}, s{S_T0}, s{S_T1}          ; g
    s_mul_i32 s{S_SPLIT}, s{S_T0}, 1639
    s_lshr_b32 s{S_SPLIT}, s{S_SPLIT}, 16        ; split = g / 40
    s_mul_i32 s{S_T1}, s{S_SPLIT}, 40
    s_sub_u32 s{S_QT}, s{S_T0}, s{S_T1}          ; q tile
    s_mov_b32 s{S_SRD + 2}, 0x10000000
    s_mov_b32 s{S_SRD + 3}, 0x00020000
    s_mov_b32 s{S_THR}, 0x4b800000               ; 2^24
    s_lshl_b32 s{S_M0}, s{S_W}, 12
    s_mul_i32 s{S_SRC}, s{S_SPLIT}, {52 * 8192}
    s_add_u32 s{S_SRC}, s{S_SRC}, s{S_M0}
    s_mov_b32 s{S_T1}, {KF}
    s_cmp_lt_u32 s{S_W}, 2
    s_cselect_b32 s{S_T1}, s{S_T1}, {VF - 8192 - 8192}
    s_add_u32 s{S_SRC}, s{S_SRC}, s{S_T1}
    s_lshl_b32 s{S_Q0}, s{S_QT}, 16
    s_lshl_b32 s{S_T1}, s{S_W}, 14
    s_add_u32 s{S_Q0}, s{S_Q0}, s{S_T1}
    s_add_u32 s{S_Q0}, s{S_Q0}, {QF}
    s_add_u32 s{S_Q0 + 1}, s{S_Q0}, 0x1000
    s_add_u32 s{S_Q0 + 2}, s{S_Q0}, 0x2000
    s_add_u32 s{S_Q0 + 3}, s{S_Q0}, 0x3000
    s_mul_i32 s{S_T1}, s{S_QT}, 6
    s_add_u32 s{S_T1}, s{S_T1}, s{S_SPLIT}
    s_lshl_b32 s{S_PO}, s{S_T1}, 16
    s_lshl_b32 s{S_T0}, s{S_W}, 14
    s_add_u32 s{S_PO}, s{S_PO}, s{S_T0}
    s_add_u32 s{S_PO}, s{S_PO}, {PO}
    s_lshl_b32 s{S_PL}, s{S_T1}, 13
    s_lshl_b32 s{S_T0}, s{S_W}, 11
    s_add_u32 s{S_PL}, s{S_PL}, s{S_T0}
    s_add_u32 s{S_PL}, s{S_PL}, {PL}
    s_mov_b32 s{S_CNT}, 51
    s_cmp_eq_u32 s{S_SPLIT}, 5
    s_cselect_b32 s{S_CNT}, 52, s{S_CNT}
    s_mov_b32 m0, s{S_M0}
    s_waitcnt lgkmcnt(0)
    s_and_b32 s{S_SRD + 1}, s{S_SRD + 1}, 0xffff
    """)
    srd = f"s[{S_SRD}:{S_SRD + 3}]"

    def dma_stage():
        for k in range(4):
            a(f"buffer_load_dwordx4 v{R.VL16}, {srd}, s{S_SRC} offen offset:{1024 * k} lds")

    def dma_adv():
        a(f"s_add_u32 s{S_M0}, s{S_M0}, 0x4000")
        a(f"s_and_b32 m0, s{S_M0}, 0x1ffff")
        a(f"s_add_u32 s{S_SRC}, s{S_SRC}, 0x2000")

    dma_stage()
    for i in range(4 * NQ):
        a(f"buffer_load_dwordx4 {ar(4 * i, 4)}, v{R.VL16}, {srd}, s{S_Q0 + (i >> 2)} offen offset:{1024 * (i & 3)}")
    for st in range(PF):
        dma_adv()
        dma_stage()
    for i in range(32 * NQ):
        a(f"v_mov_b32 v{R.O + i}, 0")
    for i in range(32):
        a(f"v_accvgpr_write_b32 a{R.AV + i}, 0")
    for qb in qbs("B"):
        for i in range(4):
            a(f"v_mov_b32 v{R.P + 4 * qb + i}, 0")
    for qb in range(NQ):
        a(f"v_mov_b32 v{R.L + qb}, 0")
    a(f"s_waitcnt vmcnt({4 * PF})")
    a("s_barrier")
    for s in range(8):
        a(f"ds_read_b128 {ar(R.AK + 4 * s, 4)}, v{R.VL16} offset:{1024 * s}")
    a(f"v_add_u32 v{R.VLDS}, 0x4000, v{R.VL16}")
    a("s_waitcnt lgkmcnt(0)")
    for qb in range(NQ):
        for kb in range(2):
            for s in range(4):
                a(mfma_qk(qb, kb, s, czero=True))
    a("s_nop 7")
    for qb in range(NQ):
        emit_rowmax(a, qb, 2, R.VT)
        for i in range(4):
            a(f"v_sub_f32 v{R.N + 4 * qb + i}, 0, v{R.VT}")
        if qb in qbs("A"):
            for i in range(8):
                a(f"v_sub_f32 v{St(qb, 0) + i}, v{St(qb, 0) + i}, v{R.VT}")
    if cfg.get("noexp"):
        for k in range(8):
            a(f"v_exp_f32 v{R.E}, v{R.S + 2 * k}")
            a(f"v_exp_f32 v{R.E + 1}, v{R.S + 2 * k + 1}")
            a("s_nop 0")
            a(f"v_cvt_pk_bf16_f32 v{R.P + k}, v{R.E}, v{R.E + 1}")
            a(f"v_cvt_pk_bf16_f32 v{R.P + 15 - k}, v{R.E + 1}, v{R.E}")
        for qb in range(NQ):
            a(f"v_mov_b32 v{R.T + qb}, 1.0")
    if cfg.get("nods"):
        a("s_waitcnt vmcnt(0)")
        a("s_barrier")
        for j in range(8):
            a(f"ds_read_b128 {ar(R.AV + 4 * j, 4)}, v{R.VLDS} offset:{8192 + 1024 * j}")
        a("s_waitcnt lgkmcnt(0)")
    if cfg.get("stamp"):
        a("s_memtime s[30:31]")
        a("s_memrealtime s[32:33]")
        a("s_waitcnt lgkmcnt(0)")
    a.raw(".p2align 6")
    emit_body(a, cfg, "m")
    a.seg("k2_mid")
    if cfg.get("stamp"):
        a("s_memtime s[34:35]")
        a("s_memrealtime s[36:37]")
        a(f"s_load_dwordx2 s[40:41], s[0:1], 80")
        a("s_waitcnt lgkmcnt(0)")
        a("s_sub_u32 s34, s34, s30")
        a("s_sub_u32 s36, s36, s32")
        a("v_mov_b32 v2, s34")
        a("v_mov_b32 v3, s36")
        a("s_and_b32 s41, s41, 0xffff")
        a("s_mov_b32 s42, 256")
        a("s_mov_b32 s43, 0x00020000")
        a("s_lshr_b32 s44, s2, 3")
        a("s_lshl_b32 s44, s44, 3")
        a("v_mov_b32 v4, s44")
        a("s_and_b32 s45, s2, 7")
        a(f"s_or_b32 s45, s45, s{S_W}")
        a("s_cmp_lg_u32 s45, 0")
        a("s_cbranch_scc1 L_nostamp")
        a("buffer_store_dwordx2 v[2:3], v4, s[40:43], 0 offen")
        a.label("L_nostamp")
    a(f"s_cmp_eq_u32 s{S_SPLIT}, 5")
    a("s_cbranch_scc1 L_body_lm")
    emit_body(a, cfg, "lf", last=True, nkb=2)
    a("s_branch L_k2_epi")
    emit_body(a, cfg, "lm", last=True, nkb=1)
    a.label("L_k2_epi")
    a.seg("k2_epi")
    a(f"""
    v_and_b32 v2, 15, v0
    v_lshlrev_b32 v2, 8, v2
    v_bfe_u32 v3, v0, 4, 2
    v_lshl_add_u32 v2, v3, 4, v2
    v_lshrrev_b32 v3, 1, v{R.VL16}
    s_nop 7
    """)
    n = 0
    for qb in range(NQ):
        a(f"s_add_u32 s{S_T0}, s{S_PO}, {qb * 4096}")
        for p in range(4):
            t = 32 + 4 * (n % 4)
            n += 1
            for d in range(4):
                src = R.O + (qb * 8 + 2 * p) * 4 + 2 * d
                a(f"v_cvt_pk_bf16_f32 v{t + d}, v{src}, v{src + 1}")
            a(f"buffer_store_dwordx4 {vr(t, 4)}, v2, {srd}, s{S_T0} offen offset:{64 * p}")
    for qb in range(NQ):
        a(f"v_sub_f32 v{4 + 2 * qb}, 0, v{R.N + 4 * qb}")
        a(f"v_mov_b32 v{5 + 2 * qb}, v{R.L + qb}")
        a(f"buffer_store_dwordx2 v[{4 + 2 * qb}:{5 + 2 * qb}], v3, {srd}, s{S_PL} offen offset:{512 * qb}")
    a("s_waitcnt vmcnt(0)")
    if cfg.get("stamp"):
        a("s_memrealtime s[58:59]")
        a("s_waitcnt lgkmcnt(0)")
        a("v_mov_b32 v4, s56")
        a("v_mov_b32 v5, s32")
        a("s_add_u32 s36, s36, s32")
        a("v_mov_b32 v6, s36")
        a("v_mov_b32 v7, s58")
        a("s_lshl_b32 s60, s2, 6")
        a(f"s_lshl_b32 s61, s{S_W}, 4")
        a("s_add_u32 s60, s60, s61")
        a(f"s_add_u32 s60, s60, {OVF + 0x400000}")
        a("v_mov_b32 v8, 0")
        a(f"buffer_store_dwordx4 v[4:7], v8, {srd}, s60 offen")
        a("s_waitcnt vmcnt(0)")
    stamp_exit(a, cfg, 56, 2, srd, TR)
    a.label("L_k2_end")
    a("s_endpgm")
    if not cfg.get("nocheck"):
        for tag, nkb in (("m", 2), ("lf", 2), ("lm", 1)):
            for X in "AB":
                emit_slow(a, X, nkb, tag + X)
    return dict(name=name, vgpr=512, accum=256, sgpr=64, grid=NWG, block=256, lds=131072,
                chains=[["k2_pro", "body_m", "body_m", "k2_mid", "body_lf", "k2_epi"],
                        ["body_m", "k2_mid", "body_lm", "k2_epi"]] +
                       ([] if cfg.get("nocheck") else [["slow_" + t + X] for t in ("m", "lf", "lm") for X in "AB"]))
```

```python
from layout import *
from asmlib import stamp_entry, stamp_exit

CFG = {}
MF = "v_mfma_f32_16x16x32_bf16"
NWG = 240
NQ = 4
CAP = 72
NGMAX = 15
NSLOT = 24

O, S, NM, P, E_, T, L = 128, 64, 96, 112, 26, 42, 52
VLDS, VL16, VT, VT2, VT3, VOOB = 20, 21, 22, 23, 24, 25
RC, VREM, VSEG, BT = 26, 50, 51, 56
AQ, AK, AV = 0, 64, 96
S_SRD = 4
S_W, S_SRC, S_M0, S_CNT, S_THR, S_SPLIT, S_QT, S_T0, S_T1 = 8, 9, 10, 11, 12, 13, 14, 15, 16
S_LEFT, S_EV, S_NB, S_MODE = 17, 18, 19, 30
S_Q0 = 20
S_PO, S_PL, S_SRC0, S_U = 24, 25, 26, 27
S_K0, S_FV = 28, 29
SRD = f"s[{S_SRD}:{S_SRD + 3}]"
SKV = 80
KVS = "s[80:83]"
LDS_FLAG = 131072
ABUF, AAG, AAH, AXV, ADI = 128, 176, 200, 208, 220
GI, GOFF, GLA = 26, 13, 14
SMP = 44
RB = 131072 + 256
LOFF = 384
RSZ = LOFF + CAP * 64 + 384
SENT = 0x7fffff00


def vr(b, n):
    return f"v[{b}:{b + n - 1}]"


def ar(b, n):
    return f"a[{b}:{b + n - 1}]"


def qbs(X):
    return [0, 1] if X == "A" else [2, 3]


def St(qb, kb):
    return S + (qb * 2 + kb) * 4


def mfma_qk(qb, kb, s, czero=False):
    d = vr(St(qb, kb), 4)
    c = ("0" if czero else vr(NM + 4 * qb, 4)) if s == 0 else d
    return f"{MF} {d}, {ar(AK + (kb * 4 + s) * 4, 4)}, {ar(AQ + (qb * 4 + s) * 4, 4)}, {c}"


def mfma_pv(qb, db):
    o = vr(O + (qb * 8 + db) * 4, 4)
    return f"{MF} {o}, {ar(AV + 4 * db, 4)}, {vr(P + 4 * qb, 4)}, {o}"


def qk_order(X, nkb=2):
    return [(qb, kb, s) for s in range(4) for kb in range(nkb) for qb in qbs(X)]


def pv_order(X):
    return [(qb, db) for qb in qbs(X) for db in range(8)]


class Op:
    def __init__(self, text, cost, est=0, lst=10 ** 6, deps=(), stream=None):
        self.text, self.cost, self.est, self.lst, self.deps, self.stream = text, cost, est, lst, list(deps), stream
        self.pos = None


def sm_group(X, nkb, tag, chk, rdy, dl):
    ops = []
    idx = 0
    q = qbs(X)
    lastadd = {}
    prev_small = None
    for qb in q:
        d = dl[qb] if not chk else min(dl.values())
        if nkb == 1:
            for k in (2, 3):
                ops.append(Op(f"v_mov_b32 v{P + 4 * qb + k}, 0", 4, rdy["p", qb], d - 1, stream="s" + X))
        for kb in range(nkb):
            for pr in range(2):
                s0 = St(qb, kb) + 2 * pr
                e0, e1 = (E_ + (2 * idx) % 16, E_ + (2 * idx + 1) % 16) if chk else (s0, s0 + 1)
                x0 = Op(f"v_exp_f32 v{e0}, v{s0}", 8, rdy[qb, kb], d - 2, stream="x" + X)
                x1 = Op(f"v_exp_f32 v{e1}, v{s0 + 1}", 8, rdy[qb, kb], d - 2, stream="x" + X)
                ops += [x0, x1]
                acc = (T if chk else L) + qb
                dadd = d - 1 if chk else dl["end"]
                c = Op(f"v_cvt_pk_bf16_f32 v{P + 4 * qb + 2 * kb + pr}, v{e0}, v{e1}", 4, rdy["p", qb], d - 1, [x0, x1], stream="c" + X)
                if chk and qb not in lastadd:
                    a1 = Op(f"v_add_f32 v{acc}, v{e0}, v{e1}", 4, 0, dadd, [x0, x1], stream="a" + X)
                    ops += [a1, c]
                else:
                    a0 = Op(f"v_add_f32 v{acc}, v{acc}, v{e0}", 4, 0, dadd, [x0], stream="a" + X)
                    a1 = Op(f"v_add_f32 v{acc}, v{acc}, v{e1}", 4, 0, dadd, [x1], stream="a" + X)
                    ops += [a0, a1, c]
                lastadd[qb] = a1
                lastc = c
                idx += 1
    if chk:
        d = min(dl.values())
        m = Op(f"v_max_f32 v{VT}, v{T + q[0]}, v{T + q[1]}", 4, 0, d, list(lastadd.values()), stream="a" + X)
        c = Op(f"v_cmp_lt_f32 vcc, s{S_THR}, v{VT}", 4, 0, d, [m], stream="a" + X)
        b = Op(f"s_cbranch_vccnz L_slow_{tag}\nL_back_{tag}:", 0, 0, d, [c, lastc], stream="a" + X)
        ops += [m, c, b]
        for qb in q:
            ops.append(Op(f"v_add_f32 v{L + qb}, v{L + qb}, v{T + qb}", 4, 0, dl["end"], [b], stream="a" + X))
    return ops


def schedule(ops, nm, base=8):
    streams = {}
    for o in ops:
        streams.setdefault(o.stream, []).append(o)
    best = None
    for nextra in range(0, 3 * nm):
        for o in ops:
            o.pos = None
        cap = [base + 4 * ((g + 1) * nextra // nm - g * nextra // nm) for g in range(nm)]
        head = {s: 0 for s in streams}
        out = [[] for _ in range(nm)]
        pos = 0
        ok = True
        for g in range(nm):
            pos += 1
            rem = cap[g]
            while True:
                cand = []
                for s, lst in streams.items():
                    if head[s] >= len(lst):
                        continue
                    o = lst[head[s]]
                    if o.est > g:
                        continue
                    if CFG.get("ds1") and s == "l" and any(t.startswith(("ds_", "buffer")) for t in out[g]) and o.lst > g:
                        continue
                    if any(d.pos is None or pos - d.pos < (CFG.get('xd', 2) if d.cost == 8 else 1) for d in o.deps):
                        continue
                    urg = 10 ** 9
                    acc = 0
                    for o2 in lst[head[s]:]:
                        acc += o2.cost
                        urg = min(urg, (o2.lst - g + 1) * base * o2_share(s) - acc)
                    cand.append((urg, s, o))
                if not cand:
                    break
                cand.sort(key=lambda c: c[0])
                pick = None
                for urg, s, o in cand:
                    if o.cost <= rem or o.lst <= g:
                        pick = (s, o)
                        break
                if pick is None:
                    break
                s, o = pick
                out[g].append(o.text)
                o.pos = pos
                pos += 1
                head[s] += 1
                rem -= o.cost
                if rem <= 0 and not any(streams[t][head[t]].lst <= g or streams[t][head[t]].cost == 0
                                        for t in streams if head[t] < len(streams[t])):
                    break
            if any(head[s] < len(l) and l[head[s]].lst <= g for s, l in streams.items()):
                ok = False
                break
        if ok and all(head[s] == len(l) for s, l in streams.items()):
            cost = {o.text: o.cost for o in ops}
            tot = sum(max(16, 8 + sum(cost[t] for t in out[g])) for g in range(nm))
            if best is None or tot < best[0]:
                best = (tot, out, nextra)
            if nextra > best[2] + 6:
                break
    if best is None:
        raise RuntimeError("cannot schedule")
    return best


def o2_share(s):
    return {"x": 0.5, "a": 0.3, "c": 0.3, "s": 0.3}.get(s[0], 0.3)


def emit_rowmax(a, qb, nkb, dst):
    s = St(qb, 0)
    a(f"v_max3_f32 v{dst}, v{s}, v{s + 1}, v{s + 2}")
    if nkb == 2:
        a(f"v_max3_f32 v{dst}, v{dst}, v{s + 3}, v{s + 4}")
        a(f"v_max3_f32 v{dst}, v{dst}, v{s + 5}, v{s + 6}")
        a(f"v_max_f32 v{dst}, v{dst}, v{s + 7}")
    else:
        a(f"v_max_f32 v{dst}, v{dst}, v{s + 3}")
    for sw in ("v_permlane32_swap_b32", "v_permlane16_swap_b32"):
        a(f"v_mov_b32 v{VT3}, v{dst}")
        a("s_nop 1")
        a(f"{sw} v{dst}, v{VT3}")
        a("s_nop 1")
        a(f"v_max_f32 v{dst}, v{dst}, v{VT3}")


def emit_slow(a, X, nkb, tag):
    a.seg("slow_" + tag)
    a.label(f"L_slow_{tag}")
    a("s_nop 15")
    for qb in qbs(X):
        emit_rowmax(a, qb, nkb, VT)
        a(f"v_max_f32 v{VT}, 0, v{VT}")
        a(f"v_exp_f32 v{VT2}, -v{VT}")
        a("s_nop 0")
        a(f"v_mul_f32 v{L + qb}, v{L + qb}, v{VT2}")
        for i in range(32):
            o = O + qb * 32 + i
            a(f"v_mul_f32 v{o}, v{o}, v{VT2}")
        for i in range(4):
            a(f"v_sub_f32 v{NM + 4 * qb + i}, v{NM + 4 * qb + i}, v{VT}")
        for k in range(2 * nkb):
            s = St(qb, 0) + 2 * k
            a(f"v_sub_f32 v{s}, v{s}, v{VT}")
            a(f"v_sub_f32 v{s + 1}, v{s + 1}, v{VT}")
            a(f"v_exp_f32 v{E_}, v{s}")
            a(f"v_exp_f32 v{E_ + 1}, v{s + 1}")
            a("s_nop 0")
            if k == 0:
                a(f"v_add_f32 v{T + qb}, v{E_}, v{E_ + 1}")
            else:
                a(f"v_add_f32 v{T + qb}, v{T + qb}, v{E_}")
                a(f"v_add_f32 v{T + qb}, v{T + qb}, v{E_ + 1}")
            a(f"v_cvt_pk_bf16_f32 v{P + 4 * qb + k}, v{E_}, v{E_ + 1}")
    a("s_nop 7")
    a(f"s_branch L_back_{tag}")


def emit_body(a, cfg, tag, chk, last=False, nkb=2, gb=None, loop=None):
    PF = cfg["PF"]
    lead = cfg.get("lead", 3)
    mg = cfg.get("mg", 0)
    pvB, qkB, pvA, qkA = pv_order("B"), qk_order("B", nkb), pv_order("A"), qk_order("A")
    mf = [mfma_pv(*x) for x in pvB] + [mfma_qk(*x) for x in qkB]
    pA0 = len(mf)
    mf += [mfma_pv(*x) for x in pvA]
    qA0 = len(mf)
    if not last:
        mf += [mfma_qk(*x) for x in qkA]
    gpos = []
    if gb is not None:
        for k, at in enumerate(cfg.get("gslots", [40, 47, 54, 61])):
            d = ar(AAG + 8 * gb + 4 * (k >> 1), 4)
            mf.insert(at, f"{MF} {d}, {ar(AAH + 4 * (k & 1), 4)}, {ar(ABUF + 16 * gb + 4 * k, 4)}, {d}")
            gpos.append(at)
            if at <= qA0:
                qA0 += 1
    nm = len(mf)
    ops = []
    lds = []
    if gb is not None:
        lds.append(Op(f"ds_read_b128 {vr(GI, 4)}, v{GLA} offset:{gb * RSZ + LOFF}", 4, 2, 7, stream="l"))
        for k, at in enumerate(gpos):
            ad = Op(f"v_add_u32 v{GI + k}, v{GI + k}, v{GOFF}", 4, pA0, at - 1, stream="g")
            ops += [ad, Op(f"buffer_load_dwordx4 {ar(ABUF + 16 * gb + 4 * k, 4)}, v{GI + k}, s[{SMP}:{SMP + 3}], 0 offen offset:{12 - 4 * k}",
                           cfg.get("dmacost", 8), at, at, [ad], stream="g")]
        if gb == 2:
            ops.append(Op(f"v_add_u32 v{GLA}, 256, v{GLA}", 4, 10, nm - 1, stream="y"))
    for db in range(8):
        lds.append(Op(f"ds_read_b128 {ar(AV + 4 * db, 4)}, v{VLDS} offset:{8192 + 1024 * db}", 4, 8 + db, pA0 - 6, stream="l"))
    if not last:
        kf = sorted(range(8), key=lambda f: max(i for i, x in enumerate(qkB) if x[1] * 4 + x[2] == f))
        for n, f in enumerate(kf):
            g = 16 + max(i for i, x in enumerate(qkB) if x[1] * 4 + x[2] == f)
            lds.append(Op(f"ds_read_b128 {ar(AK + 4 * f, 4)}, v{VLDS} offset:{1024 * f}", 4, g, qA0 - 6, stream="l"))
        adv = Op(f"v_add_u32 v{VLDS}, 0x4000, v{VLDS}", 4, 0, nm - 1, [lds[-1]], stream="z")
        ops += [adv, Op(f"v_and_b32 v{VLDS}, 0x1ffff, v{VLDS}", 4, 0, nm - 1, [adv], stream="z")]
        dg = cfg.get("dgaps", [0, 1, 33, 34])
        for k in range(4):
            ops.append(Op(f"buffer_load_dwordx4 v{VL16}, {KVS}, s{S_SRC} offen offset:{1024 * k} lds", cfg.get("dmacost", 8),
                          dg[k], dg[k], stream="d"))
    ops += lds
    finA = {}
    for i, (qb, kb, s_) in enumerate(qkA):
        finA[qb, kb] = i
    rdy = {t: max(0, finA[t] - len(qkA) + 1 + lead) for t in finA}
    rdy["p", 0] = rdy["p", 1] = 0
    ops += sm_group("A", nkb, tag + "A", chk, rdy, {0: pA0 - 1 - mg, 1: pA0 + 7 - mg, "end": qA0 - 2})
    finB = {}
    for i, (qb, kb, s_) in enumerate(qkB):
        finB[qb, kb] = i
    rdy = {t: 16 + finB[t] + 1 + lead for t in finB}
    rdy["p", 2], rdy["p", 3] = 8, 16
    ops += sm_group("B", nkb, tag + "B", chk, rdy, {2: nm - 1 - mg, 3: nm - 1, "end": nm - 1})
    tot, gaps, nx = schedule(ops, nm)
    if cfg.get("verbose"):
        print("body", tag, "model cycles", tot, "extra", nx)
    if cfg.get("memfirst"):
        for g in range(nm):
            gaps[g].sort(key=lambda t: 0 if t.startswith(("ds_", "buffer")) else 1)
    if cfg.get("explast"):
        for g in range(nm):
            if not any("L_back" in t for t in gaps[g]):
                gaps[g].sort(key=lambda t: 1 if t.startswith("v_exp") else 0)
    order = [t for g in range(nm) for t in gaps[g]]

    def nlds_after(g_end, first_k):
        n = 0
        for g in range(g_end):
            n += sum(1 for t in gaps[g] if t.startswith("ds_read") and f"offset:{0}" is not None and "a[" in t and int(t.split("a[")[1].split(":")[0]) < AV)
        return n

    gaps[pA0 - 1].append(f"s_waitcnt lgkmcnt({nlds_after(pA0, 0)})")
    if not last:
        gaps[qA0 - 1].append("s_waitcnt lgkmcnt(0)")
        lastd = max(dg)
        gaps[lastd + 2].insert(0, f"s_add_u32 s{S_M0}, s{S_M0}, 0x4000")
        gaps[lastd + 3].insert(0, f"s_and_b32 m0, s{S_M0}, 0x1ffff")
        gaps[lastd + 4].insert(0, f"s_add_u32 s{S_SRC}, s{S_SRC}, 0x2000")
        if gb is None or gb == 2:
            gaps[lastd + 5].insert(0, f"s_sub_u32 s{S_CNT}, s{S_CNT}, 1")
            gaps[nm - 2].insert(0, f"s_cmp_lg_u32 s{S_CNT}, 0")
            gaps[nm - 1].append(f"s_cbranch_scc1 L_body_{loop or tag}")
        for at in gpos:
            gaps[at - 1].append("s_waitcnt vmcnt(23)")
    a.seg("body_" + tag)
    a.label(f"L_body_{tag}")
    a(f"s_waitcnt vmcnt({4 * (PF - 1) if gb is None else 24})")
    a("s_barrier")
    for g in range(nm):
        a(mf[g])
        for t in gaps[g]:
            a(t)
    if last:
        a("s_nop 1")
        for x in pvB:
            a(mfma_pv(*x))


SX, SDG, SOUT = 32, 36, 40
S_REC, S_CAP, S_MAXC, S_N, S_I, S_MASK, S_FLG, S_NOWN = 48, 49, 50, 51, 52, 53, 54, 55
SMK = 64
VX = 15
VDC = 16
VRB, VDUM, VDREC = 17, 18, 19


def emit_region_reset(a):
    a(f"""
    v_and_b32 v2, 63, v0
    v_and_b32 v3, 15, v0
    v_lshl_add_u32 v3, v3, 2, v{VRB}
    v_mov_b32 v4, 0
    v_lshl_add_u32 v5, v2, 4, v{VRB}
    ds_write_b32 v3, v4
    v_mov_b32 v4, 0x40000000
    ds_write_b32 v{VDC}, v4
    v_mov_b32 v6, {SENT}
    v_mov_b32 v7, {SENT}
    v_mov_b32 v8, {SENT}
    v_mov_b32 v9, {SENT}
    v_lshl_add_u32 v3, v2, 3, v{VRB}
    """)
    for k in range(4):
        a(f"ds_write_b128 v5, v[6:9] offset:{LOFF + 1024 * k}")
    a(f"ds_write_b64 v3, v[6:7] offset:{LOFF + 4096}")


def emit_careful(a, tag, ret):
    a.seg("careful_" + tag)
    a.label(f"L_car_{tag}")
    a("s_nop 7")
    emit_region_reset(a)
    a(f"""
    v_mov_b32 v10, 1
    v_mov_b32 v11, v{VSEG}
    v_mov_b32 v12, 0
    s_mov_b32 s{S_I}, 0
    s_waitcnt lgkmcnt(0)
    """)
    a.label(f"L_car_loop_{tag}")
    a(f"""
    s_lshl_b32 s{S_T0}, s{S_I}, 2
    v_add_u32 v{BT}, s{S_T0}, v{VSEG}
    buffer_load_dwordx4 {vr(RC, 4)}, v{BT}, {SRD}, s{S_REC} offen sc1
    s_waitcnt vmcnt(0)
    """)
    for k in range(4):
        r = RC + k
        a(f"""
        v_cmp_lt_u32 s[{SMK}:{SMK + 1}], s{S_I}, v{VREM}
        s_add_u32 s{S_I}, s{S_I}, 1
        v_and_or_b32 v{BT}, v{r}, 60, v{VRB}
        v_cndmask_b32 v{BT}, v{VDC}, v{BT}, s[{SMK}:{SMK + 1}]
        ds_add_rtn_u32 v{BT + 1}, v{BT}, v10
        s_waitcnt lgkmcnt(0)
        v_cmp_le_u32 vcc, s{S_CAP}, v{BT + 1}
        v_min_u32 v{BT + 1}, s{S_CAP}, v{BT + 1}
        v_lshl_add_u32 v{BT}, v{BT + 1}, 6, v{BT}
        ds_write_b32 v{BT}, v{r} offset:{LOFF}
        s_and_b64 vcc, s[{SMK}:{SMK + 1}], vcc
        s_nop 0
        v_cndmask_b32 v{BT}, v{VOOB}, v11, vcc
        v_cndmask_b32 v{BT + 1}, 0, v10, vcc
        buffer_store_dword v{r}, v{BT}, {SRD}, s{S_REC} offen sc1
        v_add_u32 v12, v12, v{BT + 1}
        v_lshl_add_u32 v11, v{BT + 1}, 2, v11
        """)
    a(f"""
    v_cmp_lt_u32 vcc, s{S_I}, v{VREM}
    s_cbranch_vccnz L_car_loop_{tag}
    v_mov_b32 v{VREM}, v12
    s_waitcnt vmcnt(0) lgkmcnt(0)
    s_branch {ret}
    """)


def emit_k2(a, cfg):
    PF = cfg["PF"]
    NB0 = cfg.get("NB0", 3)
    CFG.clear()
    CFG.update(cfg)
    LIM = cfg.get("lim", NWG)
    name = "k2_attn_kernel"
    if cfg.get("map", 0) == 0:
        mapping = f"""s_and_b32 s{S_T0}, s2, 7
    s_mul_i32 s{S_T0}, s{S_T0}, {NWG // 8}
    s_lshr_b32 s{S_T1}, s2, 3
    s_add_u32 s{S_T0}, s{S_T0}, s{S_T1}          ; g
    s_mul_i32 s{S_SPLIT}, s{S_T0}, 1639
    s_lshr_b32 s{S_SPLIT}, s{S_SPLIT}, 16        ; split = g / 40
    s_mul_i32 s{S_T1}, s{S_SPLIT}, 40
    s_sub_u32 s{S_QT}, s{S_T0}, s{S_T1}          ; q tile"""
    else:
        mapping = f"""s_and_b32 s{S_T0}, s2, 7
    s_mul_i32 s{S_T0}, s{S_T0}, 5
    s_lshr_b32 s{S_T1}, s2, 3
    s_mul_i32 s{S_QT}, s{S_T1}, 43
    s_lshr_b32 s{S_QT}, s{S_QT}, 8               ; j / 6
    s_mul_i32 s{S_SPLIT}, s{S_QT}, 6
    s_sub_u32 s{S_SPLIT}, s{S_T1}, s{S_SPLIT}
    s_add_u32 s{S_QT}, s{S_QT}, s{S_T0}"""
    a.raw(".text")
    a.raw(f".globl {name}\n.p2align 8\n.type {name},@function")
    a.label(name)
    a.seg("k2_pro0")
    a(f"""
    s_cmp_ge_u32 s2, {LIM}
    s_cbranch_scc1 L_k2_end
    """)
    if cfg.get("tl") or cfg.get("stamp"):
        a("s_memrealtime s[84:85]")
    a(f"""
    s_load_dwordx2 s[{S_SRD}:{S_SRD + 1}], s[0:1], 88
    s_load_dwordx2 s[{SX}:{SX + 1}], s[0:1], 0
    s_load_dwordx2 s[{SDG}:{SDG + 1}], s[0:1], 24
    s_load_dwordx2 s[{SOUT}:{SOUT + 1}], s[0:1], 72
    v_lshrrev_b32 v1, 6, v0
    v_and_b32 v2, 63, v0
    v_readfirstlane_b32 s{S_W}, v1
    v_lshlrev_b32 v{VL16}, 4, v2
    v_lshlrev_b32 v12, 2, v2
    {mapping}
    s_mov_b32 s{S_SRD + 2}, 0x10000000
    s_mov_b32 s{S_SRD + 3}, 0x00020000
    s_mov_b32 s{SX + 2}, {N * 256}
    s_mov_b32 s{SX + 3}, 0x00020000
    s_mov_b32 s{SDG + 2}, {N * 2}
    s_mov_b32 s{SDG + 3}, 0x00020000
    s_mov_b32 s{SOUT + 2}, {N * 256}
    s_mov_b32 s{SOUT + 3}, 0x00020000
    s_mov_b32 s{SMP + 2}, {N * 256}
    s_mov_b32 s{SMP + 3}, 0x00020000
    s_mov_b32 s{S_THR}, 0x4b800000               ; 2^24
    s_lshl_b32 s{S_T0}, s{S_W}, 12
    s_mul_i32 s{S_SRC0}, s{S_SPLIT}, {52 * 8192}
    s_add_u32 s{S_SRC0}, s{S_SRC0}, s{S_T0}
    s_mov_b32 s{S_T1}, {KF}
    s_cmp_lt_u32 s{S_W}, 2
    s_cselect_b32 s{S_T1}, s{S_T1}, {VF - 8192 - 8192}
    s_add_u32 s{S_SRC0}, s{S_SRC0}, s{S_T1}
    s_lshl_b32 s{S_Q0}, s{S_QT}, 16
    s_lshl_b32 s{S_T1}, s{S_W}, 14
    s_add_u32 s{S_Q0}, s{S_Q0}, s{S_T1}
    s_add_u32 s{S_Q0}, s{S_Q0}, {QF}
    s_add_u32 s{S_Q0 + 1}, s{S_Q0}, 0x1000
    s_add_u32 s{S_Q0 + 2}, s{S_Q0}, 0x2000
    s_add_u32 s{S_Q0 + 3}, s{S_Q0}, 0x3000
    s_mul_i32 s{S_T1}, s{S_QT}, 6
    s_add_u32 s{S_T1}, s{S_T1}, s{S_SPLIT}
    s_lshl_b32 s{S_PO}, s{S_T1}, 16
    s_lshl_b32 s{S_T0}, s{S_W}, 14
    s_add_u32 s{S_PO}, s{S_PO}, s{S_T0}
    s_add_u32 s{S_PO}, s{S_PO}, {PO}
    s_lshl_b32 s{S_PL}, s{S_T1}, 11
    s_lshl_b32 s{S_T0}, s{S_W}, 9
    s_add_u32 s{S_PL}, s{S_PL}, s{S_T0}
    s_add_u32 s{S_PL}, s{S_PL}, {PL}
    s_mov_b32 s{S_U}, 51
    s_cmp_eq_u32 s{S_SPLIT}, 5
    s_cselect_b32 s{S_U}, 52, s{S_U}
    s_mov_b32 s{S_MODE}, 0
    s_add_u32 s{S_T0}, s{S_U}, 1
    s_cmp_lt_u32 s{S_W}, 2
    s_cselect_b32 s{S_T1}, 0, 1
    s_add_u32 s{S_T0}, s{S_T0}, s{S_T1}
    s_lshl_b32 s{S_T0}, s{S_T0}, 13
    s_add_u32 s{SKV + 2}, s{S_SRC0}, s{S_T0}
    s_sub_u32 s{SKV + 2}, s{SKV + 2}, 4096
    s_mov_b32 s{SKV + 3}, 0x00020000
    s_mov_b32 s{S_REC}, {REC}
    s_mov_b32 s{S_K0}, {KF}
    s_mov_b32 s{S_CAP}, {CAP}
    s_lshl_b32 s{S_FLG}, s{S_QT}, 7
    s_add_u32 s{S_FLG}, s{S_FLG}, {FLG}
    s_mul_i32 s{S_T0}, s{S_W}, 6
    s_add_u32 s{S_T0}, s{S_T0}, s{S_SPLIT}
    s_lshl_b32 s{S_T1}, s{S_QT}, 4
    s_add_u32 s{S_T1}, s{S_T1}, s{S_T0}
    s_cmp_lt_u32 s{S_T0}, 16
    s_cselect_b32 s{S_MASK}, -1, 0
    s_cmp_lt_u32 s{S_T1}, {N // 16}
    s_cselect_b32 s{S_MASK}, s{S_MASK}, 0
    s_lshl_b32 s{S_I}, s{S_T1}, 8
    s_add_u32 s{S_I}, s{S_I}, {TAB}
    s_mul_i32 s{S_T0}, s{S_W}, {RSZ}
    s_add_u32 s{S_T0}, s{S_T0}, {RB}
    v_mov_b32 v{VRB}, s{S_T0}
    s_add_u32 s{S_T0}, s{S_T0}, 64
    v_add_u32 v{VDC}, s{S_T0}, v12
    v_mov_b32 v{VOOB}, 0x7fffffff
    v_mov_b32 v4, 0
    v_mov_b32 v5, {LDS_FLAG}
    ds_write_b32 v5, v4
    """)
    emit_region_reset(a)
    a(f"""
    s_waitcnt lgkmcnt(0)
    s_and_b32 s{S_SRD + 1}, s{S_SRD + 1}, 0xffff
    s_and_b32 s{SX + 1}, s{SX + 1}, 0xffff
    s_and_b32 s{SDG + 1}, s{SDG + 1}, 0xffff
    s_and_b32 s{SOUT + 1}, s{SOUT + 1}, 0xffff
    s_mov_b32 s{SKV}, s{S_SRD}
    s_mov_b32 s{SKV + 1}, s{S_SRD + 1}
    s_add_u32 s{SMP}, s{S_SRD}, {MP}
    s_addc_u32 s{SMP + 1}, s{S_SRD + 1}, 0
    buffer_load_dword v{VREM}, v12, {SRD}, s{S_I} offen
    """)
    def lane_setup():
        a(f"""
        v_bfe_u32 v2, v0, 2, 2
        v_and_b32 v3, 3, v0
        v_bfe_u32 v4, v0, 4, 2
        s_lshl_b32 s{S_T0}, s{S_W}, 6
        s_sub_u32 s{S_T1}, s{S_T0}, 12
        v_lshlrev_b32 v{GOFF}, 4, v3
        v_add_u32 v{GOFF}, s{S_T1}, v{GOFF}
        v_lshlrev_b32 v5, 4, v2
        v_sub_u32 v{GOFF}, v{GOFF}, v5               ; 64w + 16q - 16n' - 12
        v_lshlrev_b32 v{GLA}, 4, v2
        v_lshl_add_u32 v{GLA}, v4, 6, v{GLA}
        v_add_u32 v{GLA}, {RB}, v{GLA}
        """)

    def maxc():
        a(f"""
        v_and_b32 v6, 15, v0
        v_bfe_u32 v7, v0, 4, 2
        v_mul_u32_u24 v7, {RSZ}, v7
        v_lshl_add_u32 v7, v6, 2, v7
        v_add_u32 v7, {RB}, v7
        ds_read_b32 v9, v7
        s_waitcnt lgkmcnt(0)
        """)
        for sh in ("row_shr:1", "row_shr:2", "row_shr:4", "row_shr:8"):
            a(f"v_max_u32_dpp v9, v9, v9 {sh} row_mask:0xf bank_mask:0xf")
            a("s_nop 1")
        a("v_max_u32_dpp v9, v9, v9 row_bcast:15 row_mask:0xa bank_mask:0xf")
        a("s_nop 1")
        a("v_max_u32_dpp v9, v9, v9 row_bcast:31 row_mask:0xc bank_mask:0xf")
        a("s_nop 1")
        a(f"v_readlane_b32 s{S_MAXC}, v9, 63")
        a("s_nop 3")
        a(f"s_min_u32 s{S_N}, s{S_MAXC}, {CAP}")
        a(f"s_add_u32 s{S_N}, s{S_N}, 3")
        a(f"s_lshr_b32 s{S_N}, s{S_N}, 2")

    a.label("L_k2_restart")
    a.seg("k2_pro")
    a(f"s_mov_b32 s{S_SRC}, s{S_SRC0}")
    a(f"s_lshl_b32 s{S_M0}, s{S_W}, 12")
    a(f"s_mov_b32 m0, s{S_M0}")
    a(f"s_mov_b32 s{S_LEFT}, s{S_U}")

    def dma_stage():
        for k in range(4):
            a(f"buffer_load_dwordx4 v{VL16}, {KVS}, s{S_SRC} offen offset:{1024 * k} lds")

    def dma_adv():
        a(f"s_add_u32 s{S_M0}, s{S_M0}, 0x4000")
        a(f"s_and_b32 m0, s{S_M0}, 0x1ffff")
        a(f"s_add_u32 s{S_SRC}, s{S_SRC}, 0x2000")

    for s_ in range(4):
        a(f"buffer_load_dwordx4 {ar(AK + 16 + 4 * s_, 4)}, v{VL16}, {SRD}, s{S_K0} offen offset:{1024 * s_}")
    for i in range(16):
        a(f"buffer_load_dwordx4 {ar(4 * i, 4)}, v{VL16}, {SRD}, s{S_Q0 + (i >> 2)} offen offset:{1024 * (i & 3)}")
    for st in range(PF + 1):
        dma_stage()
        dma_adv()
    a(f"s_cmp_lg_u32 s{S_MODE}, 0")
    a("s_cbranch_scc1 L_k2_nosetup")
    lane_setup()
    a(f"""
    s_lshl_b32 s{S_T1}, s{S_QT}, 4
    s_add_u32 s{S_T1}, s{S_T1}, s{S_SPLIT}
    s_lshl_b32 s{S_I}, s{S_T1}, 12
    s_add_u32 s{S_I}, s{S_I}, s{S_T0}
    v_lshrrev_b32 v5, 1, v4
    v_lshl_add_u32 v5, v5, 2, v2
    v_and_b32 v6, 1, v4
    v_lshlrev_b32 v{VX}, 8, v5
    v_lshl_add_u32 v{VX}, v6, 5, v{VX}
    v_lshl_add_u32 v{VX}, v3, 3, v{VX}
    v_add_u32 v{VX}, s{S_I}, v{VX}
    v_add_u32 v10, {6 * 4096}, v{VX}
    v_add_u32 v11, {12 * 4096}, v{VX}
    s_lshl_b32 s{S_I}, s{S_T1}, 5
    v_lshlrev_b32 v5, 1, v5
    v_add_u32 v5, s{S_I}, v5
    """)
    for b in range(3):
        for m in range(2):
            a(f"buffer_load_dwordx2 {ar(AXV + 4 * b + 2 * m, 2)}, v{[VX, 10, 11][b]}, s[{SX}:{SX + 3}], 0 offen offset:{2048 * m}")
            a(f"buffer_load_ushort a{ADI + 2 * b + m}, v5, s[{SDG}:{SDG + 3}], 0 offen offset:{192 * b + 16 * m}")
    a(f"""
    v_and_b32 v6, 15, v0
    v_and_b32 v7, 1, v6
    v_lshlrev_b32 v7, 4, v7
    v_mov_b32 v8, 0x3f80
    v_lshlrev_b32 v7, v7, v8                     ; value
    v_lshrrev_b32 v6, 1, v6                      ; 0..7 = (h, dword)
    """)
    for k in range(8):
        a(f"v_cmp_eq_u32 s[{SMK + 2 * k}:{SMK + 2 * k + 1}], {k}, v6")
    for k in range(8):
        a(f"v_cndmask_b32 v{BT + k}, 0, v7, s[{SMK + 2 * k}:{SMK + 2 * k + 1}]")
    for k in range(8):
        a(f"v_accvgpr_write_b32 a{AAH + k}, v{BT + k}")
    for i in range(72):
        a(f"v_accvgpr_write_b32 a{ABUF + i}, 0")
    a.label("L_k2_nosetup")
    for i in range(32 * NQ):
        a(f"v_mov_b32 v{O + i}, 0")
    for i in range(32):
        a(f"v_accvgpr_write_b32 a{AV + i}, 0")
    for i in range(8):
        a(f"v_mov_b32 v{P + 8 + i}, 0")
    for qb in range(NQ):
        a(f"v_mov_b32 v{L + qb}, 0")
    a(f"v_add_u32 v{VLDS}, 0x4000, v{VL16}")
    a(f"s_cmp_lg_u32 s{S_MODE}, 0")
    a("s_cbranch_scc1 L_k2_norec")
    a(f"s_waitcnt vmcnt({4 * (PF + 1) + 12})")
    a(f"""
    v_and_b32 v{VREM}, s{S_MASK}, v{VREM}
    v_and_b32 v2, 63, v0
    v_mul_u32_u24 v2, {RECS}, v2
    v_and_b32 v3, 0xffff, v{VREM}
    v_lshl_add_u32 v{VSEG}, v3, 2, v2
    v_lshrrev_b32 v{VREM}, 16, v{VREM}
    """)
    for k in range(NSLOT // 4):
        a(f"buffer_load_dwordx4 {vr(RC + 4 * k, 4)}, v{VSEG}, {SRD}, s{S_REC} offen offset:{16 * k}")
    a("s_branch L_k2_ref")
    a.label("L_k2_norec")
    a("s_waitcnt vmcnt(0)")
    a.label("L_k2_ref")
    a.seg("k2_pro2")
    for s_ in range(4):
        for qb in range(4):
            d = vr(St(qb, 1), 4)
            a(f"{MF} {d}, {ar(AK + 16 + 4 * s_, 4)}, {ar(AQ + (qb * 4 + s_) * 4, 4)}, {'0' if s_ == 0 else d}")
    a(f"s_waitcnt vmcnt({4 * PF + 12 + 6})")
    a("s_barrier")
    for s in range(8):
        a(f"ds_read_b128 {ar(AK + 4 * s, 4)}, v{VL16} offset:{1024 * s}")
    a("s_nop 1")
    for qb in range(4):
        s0 = St(qb, 1)
        a(f"v_max3_f32 v{s0}, v{s0}, v{s0 + 1}, v{s0 + 2}")
    for qb in range(4):
        s0 = St(qb, 1)
        a(f"v_max_f32 v{s0}, v{s0}, v{s0 + 3}")
    for sw in ("v_permlane32_swap_b32", "v_permlane16_swap_b32"):
        for qb in range(4):
            a(f"v_mov_b32 v{St(qb, 1) + 1}, v{St(qb, 1)}")
        a("s_nop 0")
        for qb in range(4):
            a(f"{sw} v{St(qb, 1)}, v{St(qb, 1) + 1}")
        a("s_nop 0")
        for qb in range(4):
            a(f"v_max_f32 v{St(qb, 1)}, v{St(qb, 1)}, v{St(qb, 1) + 1}")
    for qb in range(4):
        for i in range(4):
            a(f"v_sub_f32 v{NM + 4 * qb + i}, 0, v{St(qb, 1)}")
    a("s_waitcnt lgkmcnt(0)")
    for x in qk_order("A"):
        a(mfma_qk(*x))
    if cfg.get("stamp"):
        a("s_memtime s[90:91]")
        a("s_memrealtime s[92:93]")
        a("s_waitcnt lgkmcnt(0)")
    a(f"s_cmp_lg_u32 s{S_MODE}, 0")
    a("s_cbranch_scc1 L_safe")
    a(f"s_mov_b32 s{S_CNT}, {NB0}")
    a(f"s_mov_b32 s{S_EV}, 0")
    a.raw(".p2align 6")
    emit_body(a, cfg, "m", False)
    a.seg("k2_mid")
    a(f"s_add_u32 s{S_EV}, s{S_EV}, 1")
    a(f"s_cmp_eq_u32 s{S_EV}, 3")
    a("s_cbranch_scc1 L_loop_done")
    a(f"s_cmp_eq_u32 s{S_EV}, 2")
    a("s_cbranch_scc1 L_ev_g")
    a.seg("k2_ev")
    a(f"s_waitcnt vmcnt({4 * NB0})")
    a("v_mov_b32 v12, 1")
    RK = 4
    for grp in range(NSLOT // 8):
        for k in range(8):
            a(f"v_cmp_lt_u32 s[{SMK + 2 * k}:{SMK + 2 * k + 1}], {8 * grp + k}, v{VREM}")
        for k in range(8):
            a(f"v_and_or_b32 v{BT + k}, v{RC + 8 * grp + k}, 60, v{VRB}")
        if grp:
            a(f"s_cmp_eq_u64 s[{SMK}:{SMK + 1}], 0")
            a("s_cbranch_scc1 L_ev_built")
        for k in range(8):
            a(f"v_cndmask_b32 v{BT + k}, v{VDC}, v{BT + k}, s[{SMK + 2 * k}:{SMK + 2 * k + 1}]")
            a(f"ds_add_rtn_u32 v{RK + k}, v{BT + k}, v12")
        for k in range(8):
            a(f"s_waitcnt lgkmcnt(7)")
            a(f"v_min_u32 v{RK + k}, s{S_CAP}, v{RK + k}")
            a(f"v_lshl_add_u32 v{BT + k}, v{RK + k}, 6, v{BT + k}")
            a(f"ds_write_b32 v{BT + k}, v{RC + 8 * grp + k} offset:{LOFF}")
    a.label("L_ev_built")
    a(f"""
    v_and_b32 v2, 15, v0
    v_lshl_add_u32 v2, v2, 2, v{VRB}
    ds_read_b32 v3, v2
    v_cmp_lt_u32 s[{SMK}:{SMK + 1}], {NSLOT}, v{VREM}
    s_waitcnt lgkmcnt(0)
    v_cmp_lt_u32 vcc, s{S_CAP}, v3
    s_nop 3
    s_or_b64 vcc, vcc, s[{SMK}:{SMK + 1}]
    s_cbranch_vccnz L_car_e
    v_mov_b32 v{VREM}, 0
    """)
    a.label("L_ev_ret")

    a(f"s_mov_b32 s{S_CNT}, 1")
    a("s_branch L_body_m")
    a.label("L_ev_g")
    a.seg("k2_evg")
    maxc()
    a(f"""
    s_min_u32 s{S_CNT}, s{S_N}, {NGMAX}
    s_max_u32 s{S_CNT}, s{S_CNT}, 1
    s_sub_u32 s{S_N}, s{S_N}, s{S_CNT}
    s_mul_i32 s{S_T0}, s{S_CNT}, 3
    s_sub_u32 s{S_LEFT}, s{S_LEFT}, s{S_T0}
    s_sub_u32 s{S_LEFT}, s{S_LEFT}, {NB0 + 1}
    s_waitcnt vmcnt(0)
    """)
    a.raw(".p2align 6")
    for gb in range(3):
        emit_body(a, cfg, f"g{gb}", False, gb=gb, loop="g0")
    a.seg("k2_gx")
    a(f"s_mov_b32 s{S_CNT}, s{S_LEFT}")
    a("s_branch L_body_m")
    a.label("L_loop_done")
    a.seg("k2_mid2")
    if cfg.get("stamp"):
        a("s_memtime s[94:95]")
        a("s_memrealtime s[96:97]")
        a(f"s_load_dwordx2 s[64:65], s[0:1], 80")
        a("s_waitcnt lgkmcnt(0)")
        a("s_sub_u32 s94, s94, s90")
        a("s_sub_u32 s96, s96, s92")
        a("v_mov_b32 v2, s94")
        a("v_mov_b32 v3, s96")
        a("s_and_b32 s65, s65, 0xffff")
        a("s_mov_b32 s66, 256")
        a("s_mov_b32 s67, 0x00020000")
        a("s_lshr_b32 s72, s2, 3")
        a("s_lshl_b32 s72, s72, 3")
        a("v_mov_b32 v4, s72")
        a("s_and_b32 s73, s2, 7")
        a(f"s_or_b32 s73, s73, s{S_W}")
        a("s_cmp_lg_u32 s73, 0")
        a("s_cbranch_scc1 L_nostamp")
        a("buffer_store_dwordx2 v[2:3], v4, s[64:67], 0 offen")
        a.label("L_nostamp")
    a(f"s_cmp_eq_u32 s{S_SPLIT}, 5")
    a("s_cbranch_scc1 L_body_lm")
    emit_body(a, cfg, "lf", False, last=True, nkb=2)
    a("s_branch L_k2_chk")
    emit_body(a, cfg, "lm", False, last=True, nkb=1)
    a.label("L_k2_chk")
    a.seg("k2_chk")
    a(f"""
    v_max3_f32 v4, v{L}, v{L + 1}, v{L + 2}
    v_max_f32 v4, v4, v{L + 3}
    v_add_f32 v6, v{L}, v{L + 1}
    v_add_f32 v7, v{L + 2}, v{L + 3}
    v_add_f32 v6, v6, v7
    s_mov_b32 s{S_T0}, 0x53800000
    v_cmp_ngt_f32 vcc, s{S_T0}, v4
    v_cmp_u_f32 s[{SMK}:{SMK + 1}], v6, v6
    v_mov_b32 v5, {LDS_FLAG}
    v_mov_b32 v4, 1
    s_or_b64 vcc, vcc, s[{SMK}:{SMK + 1}]
    s_cbranch_vccz L_k2_chk2
    ds_write_b32 v5, v4
    """)
    a.label("L_k2_chk2")
    a(f"""
    s_waitcnt vmcnt(0) lgkmcnt(0)
    s_barrier
    ds_read_b32 v4, v5
    s_waitcnt lgkmcnt(0)
    v_readfirstlane_b32 s{S_T0}, v4
    s_nop 3
    s_cmp_eq_u32 s{S_T0}, 0
    s_cbranch_scc1 L_k2_epi
    s_waitcnt vmcnt(0)
    s_barrier
    """)
    a(f"s_mov_b32 s{S_MODE}, 1")
    a("s_branch L_k2_restart")
    a.label("L_safe")
    a.seg("k2_safe0")
    a(f"s_mov_b32 s{S_CNT}, s{S_LEFT}")
    emit_body(a, cfg, "s", True)
    a.seg("k2_smid")
    a(f"s_cmp_eq_u32 s{S_SPLIT}, 5")
    a("s_cbranch_scc1 L_body_sm")
    emit_body(a, cfg, "sf", True, last=True, nkb=2)
    a("s_branch L_k2_epi0")
    emit_body(a, cfg, "sm", True, last=True, nkb=1)
    a.label("L_k2_epi0")
    a.seg("k2_epi0")
    a("s_nop 7")
    a("s_waitcnt vmcnt(0) lgkmcnt(0)")
    a("s_barrier")
    a.label("L_k2_epi")
    a.seg("k2_epi")
    if cfg.get("tl"):
        a("s_memrealtime s[98:99]")
    VPLA = 8
    smp = f"s[{SMP}:{SMP + 3}]"

    def consume_all():
        for b in range(3):
            for k in range(4):
                d = ar(AAG + 8 * b + 4 * (k >> 1), 4)
                a(f"{MF} {d}, {ar(AAH + 4 * (k & 1), 4)}, {ar(ABUF + 16 * b + 4 * k, 4)}, {d}")

    def publish():
        for sw in ("v_permlane32_swap_b32", "v_permlane16_swap_b32"):
            for qb in range(NQ):
                a(f"v_mov_b32 v{T + qb}, v{L + qb}")
            a("s_nop 0")
            for qb in range(NQ):
                a(f"{sw} v{L + qb}, v{T + qb}")
            a("s_nop 0")
            for qb in range(NQ):
                a(f"v_add_f32 v{L + qb}, v{L + qb}, v{T + qb}")
        for qb in range(NQ):
            a(f"v_mov_b32 v{57 + 2 * qb}, v{L + qb}")
        n = 0
        a(f"s_lshl_b32 s{S_I}, s{S_W}, 2")
        a(f"s_sub_u32 s{S_I}, s{S_I}, s{S_SPLIT}")
        for qb in range(NQ):
            a(f"s_add_u32 s{S_T0}, s{S_PO}, {qb * 4096}")
            a(f"s_lshl_b32 s{S_T1}, 1, s{S_I}")
            a(f"s_cmp_lt_u32 s{S_I}, 13")
            a(f"s_cselect_b32 s{S_T1}, s{S_T1}, 0")
            a(f"s_and_b32 s{S_T1}, s{S_T1}, {1 | 1 << 6 | 1 << 12}")
            a(f"s_cbranch_scc1 L_own{qb}")
            for p in range(4):
                t = 26 + 4 * (n % 2)
                n += 1
                for d in range(4):
                    src = O + (qb * 8 + 2 * p) * 4 + 2 * d
                    a(f"v_cvt_pk_bf16_f32 v{t + d}, v{src}, v{src + 1}")
                a(f"buffer_store_dwordx4 {vr(t, 4)}, v{VL16}, {SRD}, s{S_T0} offen offset:{1024 * p} sc1")
            a.label(f"L_ownr{qb}")
            a(f"s_add_u32 s{S_I}, s{S_I}, 1")
        a("s_mov_b64 exec, 0xffff")
        for qb in range(NQ):
            a(f"buffer_store_dwordx2 v[{56 + 2 * qb}:{57 + 2 * qb}], v{VPLA}, {SRD}, s{S_PL} offen offset:{128 * qb} sc1")
        a("s_mov_b64 exec, -1")


    a(f"v_and_b32 v{VPLA}, 15, v0")
    a(f"v_lshlrev_b32 v{VPLA}, 3, v{VPLA}")
    for qb in range(NQ):
        a(f"v_sub_f32 v{56 + 2 * qb}, 0, v{NM + 4 * qb}")
    publish()
    if cfg.get("tl"):
        a("s_memrealtime s[62:63]")
        a("s_memrealtime s[60:61]")
    consume_all()
    a("s_waitcnt vmcnt(0) lgkmcnt(0)")
    if cfg.get("tl"):
        a("s_memrealtime s[56:57]")
    a("s_barrier")
    a(f"""
    s_cmp_lg_u32 s{S_W}, 0
    s_cbranch_scc1 L_nosig
    s_lshl_b32 s{S_T0}, s{S_SPLIT}, 2
    v_mov_b32 v10, s{S_T0}
    s_add_u32 s{S_T1}, s{S_MODE}, 1
    v_mov_b32 v11, s{S_T1}
    s_mov_b64 exec, 1
    buffer_store_dword v11, v10, {SRD}, s{S_FLG} offen sc1
    s_mov_b64 exec, -1
    """)
    a.label("L_nosig")
    a(f"s_cmp_gt_i32 s{S_N}, 0")
    a("s_cbranch_scc1 L_left")
    a.label("L_gdone")
    a.seg("k2_fin")
    if cfg.get("tl"):
        a("s_memrealtime s[58:59]")
    POV, PLV = 128, 200
    ACC, BP, AI, XA, VXB = 26, 64, 34, 96, 5
    a(f"""
    v_and_b32 v{VPLA}, 15, v0
    v_and_b32 v9, 63, v0
    v_min_u32 v9, 5, v9
    v_lshlrev_b32 v9, 2, v9
    buffer_load_dword v10, v9, {SRD}, s{S_FLG} offen sc1
    s_mul_i32 s{S_T0}, s{S_QT}, {6 * 65536}
    s_lshl_b32 s{S_T1}, s{S_SPLIT}, 12
    s_add_u32 s{S_T0}, s{S_T0}, s{S_T1}
    s_lshl_b32 s{S_T1}, s{S_W}, 10
    s_add_u32 s{S_T0}, s{S_T0}, s{S_T1}
    s_add_u32 s{S_PO}, s{S_T0}, {PO}
    s_mul_i32 s{S_T0}, s{S_QT}, {6 * 2048}
    s_lshl_b32 s{S_T1}, s{S_SPLIT}, 7
    s_add_u32 s{S_T0}, s{S_T0}, s{S_T1}
    s_add_u32 s{S_PL}, s{S_T0}, {PL}
    v_mov_b32 v{VXB}, v{VX}
    v_add_u32 v{VXB + 1}, {6 * 4096}, v{VX}
    v_add_u32 v{VXB + 2}, {12 * 4096}, v{VX}
    v_bfe_u32 v2, v0, 2, 2
    v_and_b32 v3, 3, v0
    v_bfe_u32 v4, v0, 5, 1
    v_lshl_add_u32 v2, v4, 2, v2
    v_lshl_add_u32 v2, v3, 4, v2
    v_lshlrev_b32 v14, 2, v2
    v_add_u32 v15, 32, v14                       ; m = 1
    v_and_b32 v4, 16, v0
    v_cmp_ne_u32 s[{SMK}:{SMK + 1}], 0, v4
    v_and_b32 v2, 1, v{VPLA}
    v_lshlrev_b32 v2, 4, v2
    v_mov_b32 v3, 0x3f80
    v_lshlrev_b32 v2, v2, v3
    v_bfe_u32 v3, v{VPLA}, 1, 1
    v_lshrrev_b32 v4, 2, v{VPLA}
    v_bfe_u32 v11, v0, 4, 2
    v_xor_b32 v4, v4, v11
    v_lshl_add_u32 v3, v4, 1, v3
    v_cmp_eq_u32 s[{SMK + 2}:{SMK + 3}], 0, v3
    v_cmp_eq_u32 s[{SMK + 4}:{SMK + 5}], 1, v3
    v_lshlrev_b32 v{VPLA}, 3, v{VPLA}
    """)
    for k in (2, 3, 4, 5):
        a(f"v_mov_b32 v{AI + k}, 0")
    for k in range(2):
        a(f"v_cndmask_b32 v{AI + k}, 0, v2, s[{SMK + 2 + 2 * k}:{SMK + 3 + 2 * k}]")
        a(f"v_cndmask_b32 v{AI + 6 + k}, 0, v2, s[{SMK + 2 + 2 * k}:{SMK + 3 + 2 * k}]")
    for b in range(3):
        for m in range(2):
            a(f"v_accvgpr_read_b32 v2, a{ADI + 2 * b + m}")
            for d in range(2):
                a(f"v_accvgpr_read_b32 v{3 + d}, a{AXV + 4 * b + 2 * m + d}")
            for r in range(4):
                a(f"v_accvgpr_read_b32 v{80 + r}, a{AAG + 8 * b + 4 * m + r}")
            a("v_lshlrev_b32 v2, 16, v2")
            xa = XA + 8 * b + 4 * m
            for d in range(2):
                a(f"v_lshlrev_b32 v{xa + 2 * d}, 16, v{3 + d}")
                a(f"v_and_b32 v{xa + 2 * d + 1}, 0xffff0000, v{3 + d}")
            for r in range(4):
                a(f"v_fmac_f32 v{xa + r}, v{80 + r}, v2")
    a(f"s_mov_b32 s{S_T1}, s{S_SPLIT}")
    for s in range(6):
        a(f"s_lshl_b32 s{S_T0}, s{S_T1}, 11")
        a(f"s_add_u32 s{SMK + 8 + s}, s{S_PL}, s{S_T0}")
        if s:
            a(f"s_lshl_b32 s{S_T0}, s{S_T1}, 16")
            a(f"s_add_u32 s{SMK + 14 + s}, s{S_PO}, s{S_T0}")
        a(f"s_add_u32 s{S_T1}, s{S_T1}, 1")
        a(f"s_cmp_eq_u32 s{S_T1}, 6")
        a(f"s_cselect_b32 s{S_T1}, 0, s{S_T1}")
    a(f"s_lshl_b32 s{S_T0}, s{S_W}, 10")
    a(f"v_add_u32 v2, s{S_T0}, v{VL16}")
    for b in range(3):
        a(f"ds_read_b128 {vr(POV + 24 * b, 4)}, v2 offset:{4096 * b}")
    a("s_waitcnt lgkmcnt(0)")
    a("s_branch L_poll1")
    a.label("L_poll")
    a("s_sleep 2")
    a(f"buffer_load_dword v10, v9, {SRD}, s{S_FLG} offen sc1")
    a.label("L_poll1")
    a(f"""
    s_waitcnt vmcnt(0)
    v_cmp_eq_u32 vcc, 0, v10
    s_cbranch_vccnz L_poll
    """)
    if cfg.get("tl"):
        a("s_memrealtime s[100:101]")
        a("s_waitcnt lgkmcnt(0)")
    a("v_cmp_ne_u32 vcc, 1, v10")
    for b in range(3):
        if b == 2:
            a(f"s_cmp_gt_u32 s{S_SPLIT}, 3")
            a("s_cbranch_scc1 L_no3")
        for s in range(6):
            a(f"buffer_load_dwordx2 {vr(PLV + 12 * b + 2 * s, 2)}, v{VPLA}, {SRD}, s{SMK + 8 + s} offen offset:{768 * b} sc1")
        for s in range(1, 6):
            a(f"s_add_u32 s{S_T0}, s{SMK + 14 + s}, {b * 6 * 4096}")
            a(f"buffer_load_dwordx4 {vr(POV + 24 * b + 4 * s, 4)}, v{VL16}, {SRD}, s{S_T0} offen sc1")
    a.label("L_ld_done")
    a("s_cbranch_vccnz L_general")

    def finish(b, rcp):
        for m in range(2):
            if rcp:
                a(f"ds_bpermute_b32 v{80 + m}, v{14 + m}, v{rcp}")
            for j in range(8):
                a(f"ds_bpermute_b32 v{BP + 8 * m + j}, v{14 + m}, v{ACC + j}")
        ob = 56 + 4 * (b & 1)
        for m in range(2):
            a(f"s_waitcnt lgkmcnt({(9 if rcp else 8) * (1 - m)})")
            xa = XA + 8 * b + 4 * m
            for r in range(4):
                a(f"v_cndmask_b32 v{BP + 8 * m + r}, v{BP + 8 * m + r}, v{BP + 8 * m + 4 + r}, s[{SMK}:{SMK + 1}]")
                if rcp:
                    a(f"v_fmac_f32 v{xa + r}, v{BP + 8 * m + r}, v{80 + m}")
                else:
                    a(f"v_add_f32 v{xa + r}, v{xa + r}, v{BP + 8 * m + r}")
            for d in range(2):
                a(f"v_cvt_pk_bf16_f32 v{ob + 2 * m + d}, v{xa + 2 * d}, v{xa + 2 * d + 1}")
            a(f"buffer_store_dwordx2 {vr(ob + 2 * m, 2)}, v{VXB + b}, s[{SOUT}:{SOUT + 3}], 0 offen offset:{2048 * m}")

    for b in range(3):
        pl, po = PLV + 12 * b, POV + 24 * b
        if b == 2:
            a(f"s_cmp_gt_u32 s{S_SPLIT}, 3")
            a("s_cbranch_scc1 L_k2_done")
        for s in range(6):
            if s:
                a(f"s_waitcnt vmcnt({5 - s + 11 * (2 - b) + 2 * b})")
            for h in range(2):
                d = vr(ACC + 4 * h, 4)
                a(f"{MF} {d}, {vr(AI + 4 * h, 4)}, {vr(po + 4 * s, 4)}, {'0' if s == 0 else d}")
            if s == 1:
                a(f"v_add_f32 v42, v{pl + 1}, v{pl + 3}")
            elif s > 1:
                a(f"v_add_f32 v42, v42, v{pl + 2 * s + 1}")
        a("v_rcp_f32 v42, v42")
        a("s_nop 5")
        finish(b, 42)
    a("s_branch L_k2_done")
    a.label("L_no3")
    a("s_waitcnt vmcnt(11)")
    a("s_cbranch_vccnz L_no3g")
    a.seg("k2_no3")
    for b in range(2):
        pl, po = PLV + 12 * b, POV + 24 * b
        for s in range(6):
            if s and b:
                a(f"s_waitcnt vmcnt({5 - s + 2})")
            for h in range(2):
                d = vr(ACC + 4 * h, 4)
                a(f"{MF} {d}, {vr(AI + 4 * h, 4)}, {vr(po + 4 * s, 4)}, {'0' if s == 0 else d}")
            if s == 1:
                a(f"v_add_f32 v42, v{pl + 1}, v{pl + 3}")
            elif s > 1:
                a(f"v_add_f32 v42, v42, v{pl + 2 * s + 1}")
        a("v_rcp_f32 v42, v42")
        a("s_nop 5")
        finish(b, 42)
    a("s_branch L_k2_done")
    a.label("L_no3g")
    a("s_waitcnt vmcnt(0)")
    a.label("L_general")
    a.seg("k2_gen")
    for b in range(3):
        pl, po = PLV + 12 * b, POV + 24 * b
        if b == 2:
            a(f"s_cmp_gt_u32 s{S_SPLIT}, 3")
            a("s_cbranch_scc1 L_k2_done")
        a(f"s_waitcnt vmcnt({11 * (2 - b) + 2 * b})")
        a(f"v_max3_f32 v44, v{pl}, v{pl + 2}, v{pl + 4}")
        a(f"v_max3_f32 v44, v44, v{pl + 6}, v{pl + 8}")
        a(f"v_max_f32 v44, v44, v{pl + 10}")
        for s in range(6):
            a(f"v_sub_f32 v{pl + 2 * s}, v{pl + 2 * s}, v44")
        for s in range(6):
            a(f"v_exp_f32 v{pl + 2 * s}, v{pl + 2 * s}")
        a("s_nop 0")
        a(f"v_mul_f32 v45, v{pl}, v{pl + 1}")
        for s in range(1, 6):
            a(f"v_fmac_f32 v45, v{pl + 2 * s}, v{pl + 2 * s + 1}")
        a("v_rcp_f32 v45, v45")
        a("s_nop 0")
        for s in range(6):
            a(f"v_mul_f32 v{pl + 2 * s}, v{pl + 2 * s}, v45")
        for s in range(6):
            for d in range(4):
                r = po + 4 * s + d
                a(f"v_lshlrev_b32 v42, 16, v{r}")
                a(f"v_and_b32 v43, 0xffff0000, v{r}")
                op = "v_mul_f32" if s == 0 else "v_fmac_f32"
                a(f"{op} v{ACC + 2 * d}, v42, v{pl + 2 * s}")
                a(f"{op} v{ACC + 2 * d + 1}, v43, v{pl + 2 * s}")
        finish(b, None)
    a.label("L_k2_done")
    a("s_waitcnt vmcnt(0)")
    if cfg.get("tl"):
        a("s_waitcnt lgkmcnt(0)")
        a("s_mov_b64 exec, 1")
        a("v_lshrrev_b32 v1, 6, v0")
        a("v_lshlrev_b32 v1, 5, v1")
        a(f"s_lshl_b32 s88, s2, 7")
        a(f"s_add_u32 s88, s88, {TR + 3 * 0x40000}")
        for i, sr in enumerate((98, 62, 60, 56, 58, 100)):
            a(f"v_mov_b32 v{2 + i}, s{sr}")
        a(f"buffer_store_dwordx4 v[2:5], v1, {SRD}, s88 offen")
        a(f"buffer_store_dwordx2 v[6:7], v1, {SRD}, s88 offen offset:16")
    stamp_exit(a, cfg, 84, 2, SRD, TR)
    a.label("L_k2_end")
    a("s_endpgm")
    a.label("L_left")
    a.seg("k2_left0")
    lane_setup()
    a(f"v_add_u32 v{GLA}, {NGMAX * 256}, v{GLA}")
    a.label("L_left_loop")
    a.seg("k2_left")
    for b in range(3):
        a(f"ds_read_b128 {vr(64 + 4 * b, 4)}, v{GLA} offset:{b * RSZ + LOFF}")
    a(f"v_add_u32 v{GLA}, 256, v{GLA}")
    a("s_waitcnt lgkmcnt(0)")
    for b in range(3):
        for k in range(4):
            a(f"v_add_u32 v{64 + 4 * b + k}, v{64 + 4 * b + k}, v{GOFF}")
            a(f"buffer_load_dwordx4 {ar(ABUF + 16 * b + 4 * k, 4)}, v{64 + 4 * b + k}, {smp}, 0 offen offset:{12 - 4 * k}")
    a("s_waitcnt vmcnt(0)")
    consume_all()
    a(f"""
    s_sub_u32 s{S_N}, s{S_N}, 1
    s_cmp_gt_i32 s{S_N}, 0
    s_cbranch_scc1 L_left_loop
    s_nop 7
    s_cmp_le_u32 s{S_MAXC}, {CAP}
    s_cbranch_scc1 L_gdone
    s_barrier
    s_branch L_car_t
    """)
    a.label("L_more2")
    a.seg("k2_more2")
    a("s_barrier")
    maxc()
    lane_setup()
    a("s_branch L_left_loop")
    for qb in range(NQ):
        a.label(f"L_own{qb}")
        a.seg(f"k2_own{qb}")
        a(f"s_mul_i32 s{S_T1}, s{S_I}, 683")
        a(f"s_and_b32 s{S_T1}, s{S_T1}, 0x3000")
        a(f"v_add_u32 v42, s{S_T1}, v{VL16}")
        for p in range(4):
            t = 26 + 4 * (p % 2)
            for d in range(4):
                src = O + (qb * 8 + 2 * p) * 4 + 2 * d
                a(f"v_cvt_pk_bf16_f32 v{t + d}, v{src}, v{src + 1}")
            a(f"ds_write_b128 v42, {vr(t, 4)} offset:{1024 * p}")
        a(f"s_branch L_ownr{qb}")
    emit_careful(a, "e", "L_ev_ret")
    emit_careful(a, "t", "L_more2")
    for tag, nkb in (("s", 2), ("sf", 2), ("sm", 1)):
        for X in "AB":
            emit_slow(a, X, nkb, tag + X)
    return dict(name=name, vgpr=512, accum=256, sgpr=102, grid=NWG, block=256, lds=RB + 4 * RSZ,
                chains=[["k2_pro0", "k2_pro", "k2_pro2", "body_m", "body_m", "k2_mid", "k2_mid2", "body_lf", "k2_chk", "k2_epi", "k2_fin"],
                        ["body_m", "k2_mid", "k2_ev", "body_m"], ["k2_ev", "careful_e", "body_m"],
                        ["body_m", "k2_mid", "k2_evg", "body_g0", "body_g1", "body_g2", "body_g0", "body_g1", "body_g2", "k2_gx", "body_m"],
                        ["body_m", "k2_mid", "k2_mid2", "body_lm", "k2_chk", "k2_pro"],
                        ["k2_pro", "k2_pro2", "k2_safe0", "body_s", "body_s", "k2_smid", "body_sf", "k2_epi0", "k2_epi"],
                        ["body_s", "k2_smid", "body_sm", "k2_epi0", "k2_epi"],
                        ["k2_fin", "k2_gen"], ["k2_fin", "k2_no3"], ["k2_chk", "k2_own0", "k2_own1", "k2_own2", "k2_own3"], ["k2_epi", "k2_left0", "k2_left", "k2_left", "k2_fin"], ["k2_left", "careful_t", "k2_more2", "k2_left"]] +
                       [["slow_" + t + X] for t in ("s", "sf", "sm") for X in "AB"])
```

```python
import sys, json, os
sys.path.insert(0, os.path.dirname(__file__))
from asmlib import Asm
import k2, k2b, k2c, k2d, k2e, k2f, k2g, k2h

HEADER = open(os.path.join(os.path.dirname(__file__), "..", "cdna_kernels",
              "standalone__hybrid_graph_tf_graphgps__graph.s.ref")).read().split("; Override launch")[0]

def build(cfg, kernels):
    a = Asm()
    infos = []
    order = []
    done = {}
    for k in kernels:
        if k not in done:
            done[k] = k(a, cfg)
            infos.append(done[k])
        order.append(done[k])
    probs = []
    for inf in infos:
        probs += a.check(inf["chains"])
    out = [HEADER.rstrip("\n")]
    for inf in order:
        out.append(f"; @launch kernel={inf['name']} grid=({inf['grid']},1,1) block=({inf['block']},1,1) lds={inf['lds']}")
    out.append('.amdgcn_target "amdgcn-amd-amdhsa--gfx950"')
    out.append(a.text())
    out.append('.section .rodata,"a"')
    for inf in infos:
        out.append(f""".p2align 6
.amdhsa_kernel {inf['name']}
  .amdhsa_next_free_vgpr {inf['vgpr']}
  .amdhsa_next_free_sgpr {inf['sgpr']}
  .amdhsa_accum_offset {inf['accum']}
  .amdhsa_group_segment_fixed_size 0
  .amdhsa_kernarg_size 96
  .amdhsa_user_sgpr_count 2
  .amdhsa_user_sgpr_kernarg_segment_ptr 1
  .amdhsa_system_sgpr_workgroup_id_x 1
.end_amdhsa_kernel""")
    return "\n".join(out) + "\n", probs

if __name__ == "__main__":
    outp = sys.argv[1]
    cfg = dict(PF=4, ds1=1, memfirst=1, explast=1, dgaps=[1, 3, 34, 36], lead=3, pathA=1, nperm=2, k1sc=1, prio=1, map=2, osc=2)
    for kv in sys.argv[2:]:
        k, v = kv.split("=", 1)
        try:
            v = json.loads(v)
        except Exception:
            pass
        cfg[k] = v
    ks = cfg.get("kernels", "2")
    import nop
    table = {"2": k2.emit_k2, "c": k2b.emit_k2, "n": nop.emit_nop, "d": k2c.emit_k2, "e": k2d.emit_k2, "f": k2e.emit_k2, "g": k2f.emit_k2, "h": k2g.emit_k2, "i": k2h.emit_k2}
    try:
        import k1, k3
        import k1b
        table.update({"a": k1b.emit_k1})
        table.update({"1": k1.emit_k1, "3": k3.emit_k3, "b": k3.emit_kb})
    except ImportError:
        pass
    text, probs = build(cfg, [table[c] for c in str(ks)])
    for p in probs:
        print("HAZARD", p)
    open(outp, "w").write(text)
    print("wrote", outp, len(text), "bytes;", len(probs), "hazard problems")
```

```python
from layout import *
from asmlib import stamp_entry, stamp_exit

CFG = {}
MF = "v_mfma_f32_16x16x32_bf16"
NWG = 240
NQ = 4
CAP = 72
NGMAX = 15
NSLOT = 24

O, S, NM, P, E_, T, L = 128, 64, 96, 112, 26, 42, 52
VLDS, VL16, VT, VT2, VT3, VOOB = 20, 21, 22, 23, 24, 25
RC, VREM, VSEG, BT = 26, 50, 51, 56
AQ, AK, AV = 0, 64, 96
S_SRD = 4
S_W, S_SRC, S_M0, S_CNT, S_THR, S_SPLIT, S_QT, S_T0, S_T1 = 8, 9, 10, 11, 12, 13, 14, 15, 16
S_LEFT, S_EV, S_NB, S_MODE = 17, 18, 19, 30
S_Q0 = 20
S_PO, S_PL, S_SRC0, S_U = 24, 25, 26, 27
S_K0, S_FV = 28, 29
SRD = f"s[{S_SRD}:{S_SRD + 3}]"
SKV = 80
KVS = "s[80:83]"
LDS_FLAG = 131072
ABUF, AAG, AAH, AXV, ADI = 128, 176, 200, 208, 220
GI, GOFF, GLA = 26, 13, 14
SMP = 44
RB = 131072 + 256
LOFF = 384
RSZ = LOFF + CAP * 64 + 384
SENT = 0x7fffff00


def vr(b, n):
    return f"v[{b}:{b + n - 1}]"


def ar(b, n):
    return f"a[{b}:{b + n - 1}]"


def qbs(X):
    return [0, 1] if X == "A" else [2, 3]


def St(qb, kb):
    return S + (qb * 2 + kb) * 4


def mfma_qk(qb, kb, s, czero=False):
    d = vr(St(qb, kb), 4)
    c = ("0" if czero else vr(NM + 4 * qb, 4)) if s == 0 else d
    return f"{MF} {d}, {ar(AK + (kb * 4 + s) * 4, 4)}, {ar(AQ + (qb * 4 + s) * 4, 4)}, {c}"


def mfma_pv(qb, db):
    o = vr(O + (qb * 8 + db) * 4, 4)
    return f"{MF} {o}, {ar(AV + 4 * db, 4)}, {vr(P + 4 * qb, 4)}, {o}"


def qk_order(X, nkb=2):
    return [(qb, kb, s) for s in range(4) for kb in range(nkb) for qb in qbs(X)]


def pv_order(X):
    return [(qb, db) for qb in qbs(X) for db in range(8)]


class Op:
    def __init__(self, text, cost, est=0, lst=10 ** 6, deps=(), stream=None):
        self.text, self.cost, self.est, self.lst, self.deps, self.stream = text, cost, est, lst, list(deps), stream
        self.pos = None


def sm_group(X, nkb, tag, chk, rdy, dl):
    ops = []
    idx = 0
    q = qbs(X)
    lastadd = {}
    prev_small = None
    for qb in q:
        d = dl[qb] if not chk else min(dl.values())
        if nkb == 1:
            for k in (2, 3):
                ops.append(Op(f"v_mov_b32 v{P + 4 * qb + k}, 0", 4, rdy["p", qb], d - 1, stream="s" + X))
        for kb in range(nkb):
            for pr in range(2):
                s0 = St(qb, kb) + 2 * pr
                e0, e1 = (E_ + (2 * idx) % 16, E_ + (2 * idx + 1) % 16) if chk else (s0, s0 + 1)
                x0 = Op(f"v_exp_f32 v{e0}, v{s0}", 8, rdy[qb, kb], d - 2, stream="x" + X)
                x1 = Op(f"v_exp_f32 v{e1}, v{s0 + 1}", 8, rdy[qb, kb], d - 2, stream="x" + X)
                ops += [x0, x1]
                acc = (T if chk else L) + qb
                dadd = d - 1 if chk else dl["end"]
                c = Op(f"v_cvt_pk_bf16_f32 v{P + 4 * qb + 2 * kb + pr}, v{e0}, v{e1}", 4, rdy["p", qb], d - 1, [x0, x1], stream="c" + X)
                if chk and qb not in lastadd:
                    a1 = Op(f"v_add_f32 v{acc}, v{e0}, v{e1}", 4, 0, dadd, [x0, x1], stream="a" + X)
                    ops += [a1, c]
                else:
                    a0 = Op(f"v_add_f32 v{acc}, v{acc}, v{e0}", 4, 0, dadd, [x0], stream="a" + X)
                    a1 = Op(f"v_add_f32 v{acc}, v{acc}, v{e1}", 4, 0, dadd, [x1], stream="a" + X)
                    ops += [a0, a1, c]
                lastadd[qb] = a1
                lastc = c
                idx += 1
    if chk:
        d = min(dl.values())
        m = Op(f"v_max_f32 v{VT}, v{T + q[0]}, v{T + q[1]}", 4, 0, d, list(lastadd.values()), stream="a" + X)
        c = Op(f"v_cmp_lt_f32 vcc, s{S_THR}, v{VT}", 4, 0, d, [m], stream="a" + X)
        b = Op(f"s_cbranch_vccnz L_slow_{tag}\nL_back_{tag}:", 0, 0, d, [c, lastc], stream="a" + X)
        ops += [m, c, b]
        for qb in q:
            ops.append(Op(f"v_add_f32 v{L + qb}, v{L + qb}, v{T + qb}", 4, 0, dl["end"], [b], stream="a" + X))
    return ops


def schedule(ops, nm, base=8):
    streams = {}
    for o in ops:
        streams.setdefault(o.stream, []).append(o)
    best = None
    for nextra in range(0, 3 * nm):
        for o in ops:
            o.pos = None
        cap = [base + 4 * ((g + 1) * nextra // nm - g * nextra // nm) for g in range(nm)]
        head = {s: 0 for s in streams}
        out = [[] for _ in range(nm)]
        pos = 0
        ok = True
        for g in range(nm):
            pos += 1
            rem = cap[g]
            while True:
                cand = []
                for s, lst in streams.items():
                    if head[s] >= len(lst):
                        continue
                    o = lst[head[s]]
                    if o.est > g:
                        continue
                    if CFG.get("ds1") and s == "l" and any(t.startswith(("ds_", "buffer")) for t in out[g]) and o.lst > g:
                        continue
                    if any(d.pos is None or pos - d.pos < (CFG.get('xd', 2) if d.cost == 8 else 1) for d in o.deps):
                        continue
                    urg = 10 ** 9
                    acc = 0
                    for o2 in lst[head[s]:]:
                        acc += o2.cost
                        urg = min(urg, (o2.lst - g + 1) * base * o2_share(s) - acc)
                    cand.append((urg, s, o))
                if not cand:
                    break
                cand.sort(key=lambda c: c[0])
                pick = None
                for urg, s, o in cand:
                    if o.cost <= rem or o.lst <= g:
                        pick = (s, o)
                        break
                if pick is None:
                    break
                s, o = pick
                out[g].append(o.text)
                o.pos = pos
                pos += 1
                head[s] += 1
                rem -= o.cost
                if rem <= 0 and not any(streams[t][head[t]].lst <= g or streams[t][head[t]].cost == 0
                                        for t in streams if head[t] < len(streams[t])):
                    break
            if any(head[s] < len(l) and l[head[s]].lst <= g for s, l in streams.items()):
                ok = False
                break
        if ok and all(head[s] == len(l) for s, l in streams.items()):
            cost = {o.text: o.cost for o in ops}
            tot = sum(max(16, 8 + sum(cost[t] for t in out[g])) for g in range(nm))
            if best is None or tot < best[0]:
                best = (tot, out, nextra)
            if nextra > best[2] + 6:
                break
    if best is None:
        raise RuntimeError("cannot schedule")
    return best


def o2_share(s):
    return {"x": 0.5, "a": 0.3, "c": 0.3, "s": 0.3}.get(s[0], 0.3)


def emit_rowmax(a, qb, nkb, dst):
    s = St(qb, 0)
    a(f"v_max3_f32 v{dst}, v{s}, v{s + 1}, v{s + 2}")
    if nkb == 2:
        a(f"v_max3_f32 v{dst}, v{dst}, v{s + 3}, v{s + 4}")
        a(f"v_max3_f32 v{dst}, v{dst}, v{s + 5}, v{s + 6}")
        a(f"v_max_f32 v{dst}, v{dst}, v{s + 7}")
    else:
        a(f"v_max_f32 v{dst}, v{dst}, v{s + 3}")
    for sw in ("v_permlane32_swap_b32", "v_permlane16_swap_b32"):
        a(f"v_mov_b32 v{VT3}, v{dst}")
        a("s_nop 1")
        a(f"{sw} v{dst}, v{VT3}")
        a("s_nop 1")
        a(f"v_max_f32 v{dst}, v{dst}, v{VT3}")


def emit_slow(a, X, nkb, tag):
    a.seg("slow_" + tag)
    a.label(f"L_slow_{tag}")
    a("s_nop 15")
    for qb in qbs(X):
        emit_rowmax(a, qb, nkb, VT)
        a(f"v_max_f32 v{VT}, 0, v{VT}")
        a(f"v_exp_f32 v{VT2}, -v{VT}")
        a("s_nop 0")
        a(f"v_mul_f32 v{L + qb}, v{L + qb}, v{VT2}")
        for i in range(32):
            o = O + qb * 32 + i
            a(f"v_mul_f32 v{o}, v{o}, v{VT2}")
        for i in range(4):
            a(f"v_sub_f32 v{NM + 4 * qb + i}, v{NM + 4 * qb + i}, v{VT}")
        for k in range(2 * nkb):
            s = St(qb, 0) + 2 * k
            a(f"v_sub_f32 v{s}, v{s}, v{VT}")
            a(f"v_sub_f32 v{s + 1}, v{s + 1}, v{VT}")
            a(f"v_exp_f32 v{E_}, v{s}")
            a(f"v_exp_f32 v{E_ + 1}, v{s + 1}")
            a("s_nop 0")
            if k == 0:
                a(f"v_add_f32 v{T + qb}, v{E_}, v{E_ + 1}")
            else:
                a(f"v_add_f32 v{T + qb}, v{T + qb}, v{E_}")
                a(f"v_add_f32 v{T + qb}, v{T + qb}, v{E_ + 1}")
            a(f"v_cvt_pk_bf16_f32 v{P + 4 * qb + k}, v{E_}, v{E_ + 1}")
    a("s_nop 7")
    a(f"s_branch L_back_{tag}")


def emit_body(a, cfg, tag, chk, last=False, nkb=2, gb=None, loop=None):
    PF = cfg["PF"]
    lead = cfg.get("lead", 3)
    mg = cfg.get("mg", 0)
    pvB, qkB, pvA, qkA = pv_order("B"), qk_order("B", nkb), pv_order("A"), qk_order("A")
    mf = [mfma_pv(*x) for x in pvB] + [mfma_qk(*x) for x in qkB]
    pA0 = len(mf)
    mf += [mfma_pv(*x) for x in pvA]
    qA0 = len(mf)
    if not last:
        mf += [mfma_qk(*x) for x in qkA]
    gpos = []
    if gb is not None:
        for k, at in enumerate(cfg.get("gslots", [40, 47, 54, 61])):
            d = ar(AAG + 8 * gb + 4 * (k >> 1), 4)
            mf.insert(at, f"{MF} {d}, {ar(AAH + 4 * (k & 1), 4)}, {ar(ABUF + 16 * gb + 4 * k, 4)}, {d}")
            gpos.append(at)
            if at <= qA0:
                qA0 += 1
    nm = len(mf)
    ops = []
    lds = []
    if gb is not None:
        lds.append(Op(f"ds_read_b128 {vr(GI, 4)}, v{GLA} offset:{gb * RSZ + LOFF}", 4, 2, 7, stream="l"))
        for k, at in enumerate(gpos):
            ad = Op(f"v_add_u32 v{GI + k}, v{GI + k}, v{GOFF}", 4, pA0, at - 1, stream="g")
            ops += [ad, Op(f"buffer_load_dwordx4 {ar(ABUF + 16 * gb + 4 * k, 4)}, v{GI + k}, s[{SMP}:{SMP + 3}], 0 offen offset:{12 - 4 * k}",
                           cfg.get("dmacost", 8), at, at, [ad], stream="g")]
        if gb == 2:
            ops.append(Op(f"v_add_u32 v{GLA}, 256, v{GLA}", 4, 10, nm - 1, stream="y"))
    for db in range(8):
        lds.append(Op(f"ds_read_b128 {ar(AV + 4 * db, 4)}, v{VLDS} offset:{8192 + 1024 * db}", 4, 8 + db, pA0 - 6, stream="l"))
    if not last:
        kf = sorted(range(8), key=lambda f: max(i for i, x in enumerate(qkB) if x[1] * 4 + x[2] == f))
        for n, f in enumerate(kf):
            g = 16 + max(i for i, x in enumerate(qkB) if x[1] * 4 + x[2] == f)
            lds.append(Op(f"ds_read_b128 {ar(AK + 4 * f, 4)}, v{VLDS} offset:{1024 * f}", 4, g, qA0 - 6, stream="l"))
        adv = Op(f"v_add_u32 v{VLDS}, 0x4000, v{VLDS}", 4, 0, nm - 1, [lds[-1]], stream="z")
        ops += [adv, Op(f"v_and_b32 v{VLDS}, 0x1ffff, v{VLDS}", 4, 0, nm - 1, [adv], stream="z")]
        dg = cfg.get("dgaps", [0, 1, 33, 34])
        for k in range(4):
            ops.append(Op(f"buffer_load_dwordx4 v{VL16}, {KVS}, s{S_SRC} offen offset:{1024 * k} lds", cfg.get("dmacost", 8),
                          dg[k], dg[k], stream="d"))
    ops += lds
    finA = {}
    for i, (qb, kb, s_) in enumerate(qkA):
        finA[qb, kb] = i
    rdy = {t: max(0, finA[t] - len(qkA) + 1 + lead) for t in finA}
    rdy["p", 0] = rdy["p", 1] = 0
    ops += sm_group("A", nkb, tag + "A", chk, rdy, {0: pA0 - 1 - mg, 1: pA0 + 7 - mg, "end": qA0 - 2})
    finB = {}
    for i, (qb, kb, s_) in enumerate(qkB):
        finB[qb, kb] = i
    rdy = {t: 16 + finB[t] + 1 + lead for t in finB}
    rdy["p", 2], rdy["p", 3] = 8, 16
    ops += sm_group("B", nkb, tag + "B", chk, rdy, {2: nm - 1 - mg, 3: nm - 1, "end": nm - 1})
    tot, gaps, nx = schedule(ops, nm)
    if cfg.get("verbose"):
        print("body", tag, "model cycles", tot, "extra", nx)
    if cfg.get("memfirst"):
        for g in range(nm):
            gaps[g].sort(key=lambda t: 0 if t.startswith(("ds_", "buffer")) else 1)
    if cfg.get("explast"):
        for g in range(nm):
            if not any("L_back" in t for t in gaps[g]):
                gaps[g].sort(key=lambda t: 1 if t.startswith("v_exp") else 0)
    order = [t for g in range(nm) for t in gaps[g]]

    def nlds_after(g_end, first_k):
        n = 0
        for g in range(g_end):
            n += sum(1 for t in gaps[g] if t.startswith("ds_read") and f"offset:{0}" is not None and "a[" in t and int(t.split("a[")[1].split(":")[0]) < AV)
        return n

    gaps[pA0 - 1].append(f"s_waitcnt lgkmcnt({nlds_after(pA0, 0)})")
    if not last:
        gaps[qA0 - 1].append("s_waitcnt lgkmcnt(0)")
        lastd = max(dg)
        gaps[lastd + 2].insert(0, f"s_add_u32 s{S_M0}, s{S_M0}, 0x4000")
        gaps[lastd + 3].insert(0, f"s_and_b32 m0, s{S_M0}, 0x1ffff")
        gaps[lastd + 4].insert(0, f"s_add_u32 s{S_SRC}, s{S_SRC}, 0x2000")
        if gb is None or gb == 2:
            gaps[lastd + 5].insert(0, f"s_sub_u32 s{S_CNT}, s{S_CNT}, 1")
            gaps[nm - 2].insert(0, f"s_cmp_lg_u32 s{S_CNT}, 0")
            gaps[nm - 1].append(f"s_cbranch_scc1 L_body_{loop or tag}")
        for at in gpos:
            gaps[at - 1].append("s_waitcnt vmcnt(23)")
    a.seg("body_" + tag)
    a.label(f"L_body_{tag}")
    a(f"s_waitcnt vmcnt({4 * (PF - 1) if gb is None else 24})")
    a("s_barrier")
    for g in range(nm):
        a(mf[g])
        for t in gaps[g]:
            a(t)
    if last:
        a("s_nop 1")
        for x in pvB:
            a(mfma_pv(*x))


SX, SDG, SOUT = 32, 36, 40
S_REC, S_CAP, S_MAXC, S_N, S_I, S_MASK, S_FLG, S_NOWN = 48, 49, 50, 51, 52, 53, 54, 55
SMK = 64
VX = 15
VDC = 16
VRB, VDUM, VDREC = 17, 18, 19


def emit_region_reset(a):
    a(f"""
    v_and_b32 v2, 63, v0
    v_and_b32 v3, 15, v0
    v_lshl_add_u32 v3, v3, 2, v{VRB}
    v_mov_b32 v4, 0
    v_lshl_add_u32 v5, v2, 4, v{VRB}
    ds_write_b32 v3, v4
    v_mov_b32 v4, 0x40000000
    ds_write_b32 v{VDC}, v4
    v_mov_b32 v6, {SENT}
    v_mov_b32 v7, {SENT}
    v_mov_b32 v8, {SENT}
    v_mov_b32 v9, {SENT}
    v_lshl_add_u32 v3, v2, 3, v{VRB}
    """)
    for k in range(4):
        a(f"ds_write_b128 v5, v[6:9] offset:{LOFF + 1024 * k}")
    a(f"ds_write_b64 v3, v[6:7] offset:{LOFF + 4096}")


def emit_careful(a, tag, ret):
    a.seg("careful_" + tag)
    a.label(f"L_car_{tag}")
    a("s_nop 7")
    emit_region_reset(a)
    a(f"""
    v_mov_b32 v10, 1
    v_mov_b32 v11, v{VSEG}
    v_mov_b32 v12, 0
    s_mov_b32 s{S_I}, 0
    s_waitcnt lgkmcnt(0)
    """)
    a.label(f"L_car_loop_{tag}")
    a(f"""
    s_lshl_b32 s{S_T0}, s{S_I}, 2
    v_add_u32 v{BT}, s{S_T0}, v{VSEG}
    buffer_load_dwordx4 {vr(RC, 4)}, v{BT}, {SRD}, s{S_REC} offen sc1
    s_waitcnt vmcnt(0)
    """)
    for k in range(4):
        r = RC + k
        a(f"""
        v_cmp_lt_u32 s[{SMK}:{SMK + 1}], s{S_I}, v{VREM}
        s_add_u32 s{S_I}, s{S_I}, 1
        v_and_or_b32 v{BT}, v{r}, 60, v{VRB}
        v_cndmask_b32 v{BT}, v{VDC}, v{BT}, s[{SMK}:{SMK + 1}]
        ds_add_rtn_u32 v{BT + 1}, v{BT}, v10
        s_waitcnt lgkmcnt(0)
        v_cmp_le_u32 vcc, s{S_CAP}, v{BT + 1}
        v_min_u32 v{BT + 1}, s{S_CAP}, v{BT + 1}
        v_lshl_add_u32 v{BT}, v{BT + 1}, 6, v{BT}
        ds_write_b32 v{BT}, v{r} offset:{LOFF}
        s_and_b64 vcc, s[{SMK}:{SMK + 1}], vcc
        s_nop 0
        v_cndmask_b32 v{BT}, v{VOOB}, v11, vcc
        v_cndmask_b32 v{BT + 1}, 0, v10, vcc
        buffer_store_dword v{r}, v{BT}, {SRD}, s{S_REC} offen sc1
        v_add_u32 v12, v12, v{BT + 1}
        v_lshl_add_u32 v11, v{BT + 1}, 2, v11
        """)
    a(f"""
    v_cmp_lt_u32 vcc, s{S_I}, v{VREM}
    s_cbranch_vccnz L_car_loop_{tag}
    v_mov_b32 v{VREM}, v12
    s_waitcnt vmcnt(0) lgkmcnt(0)
    s_branch {ret}
    """)


def emit_k2(a, cfg):
    PF = cfg["PF"]
    NB0 = cfg.get("NB0", 3)
    CFG.clear()
    CFG.update(cfg)
    LIM = cfg.get("lim", NWG)
    name = "k2_attn_kernel"
    if cfg.get("map", 0) == 0:
        mapping = f"""s_and_b32 s{S_T0}, s2, 7
    s_mul_i32 s{S_T0}, s{S_T0}, {NWG // 8}
    s_lshr_b32 s{S_T1}, s2, 3
    s_add_u32 s{S_T0}, s{S_T0}, s{S_T1}          ; g
    s_mul_i32 s{S_SPLIT}, s{S_T0}, 1639
    s_lshr_b32 s{S_SPLIT}, s{S_SPLIT}, 16        ; split = g / 40
    s_mul_i32 s{S_T1}, s{S_SPLIT}, 40
    s_sub_u32 s{S_QT}, s{S_T0}, s{S_T1}          ; q tile"""
    else:
        mapping = f"""s_and_b32 s{S_T0}, s2, 7
    s_mul_i32 s{S_T0}, s{S_T0}, 5
    s_lshr_b32 s{S_T1}, s2, 3
    s_mul_i32 s{S_QT}, s{S_T1}, 43
    s_lshr_b32 s{S_QT}, s{S_QT}, 8               ; j / 6
    s_mul_i32 s{S_SPLIT}, s{S_QT}, 6
    s_sub_u32 s{S_SPLIT}, s{S_T1}, s{S_SPLIT}
    s_add_u32 s{S_QT}, s{S_QT}, s{S_T0}"""
    a.raw(".text")
    a.raw(f".globl {name}\n.p2align 8\n.type {name},@function")
    a.label(name)
    a.seg("k2_pro0")
    a(f"""
    s_cmp_ge_u32 s2, {LIM}
    s_cbranch_scc1 L_k2_end
    """)
    if cfg.get("tl") or cfg.get("stamp"):
        a("s_memrealtime s[84:85]")
    a(f"""
    s_load_dwordx2 s[{S_SRD}:{S_SRD + 1}], s[0:1], 88
    s_load_dwordx2 s[{SX}:{SX + 1}], s[0:1], 0
    s_load_dwordx2 s[{SDG}:{SDG + 1}], s[0:1], 24
    s_load_dwordx2 s[{SOUT}:{SOUT + 1}], s[0:1], 72
    v_lshrrev_b32 v1, 6, v0
    v_and_b32 v2, 63, v0
    v_readfirstlane_b32 s{S_W}, v1
    v_lshlrev_b32 v{VL16}, 4, v2
    v_lshlrev_b32 v12, 2, v2
    {mapping}
    s_mov_b32 s{S_SRD + 2}, 0x10000000
    s_mov_b32 s{S_SRD + 3}, 0x00020000
    s_mov_b32 s{SX + 2}, {N * 256}
    s_mov_b32 s{SX + 3}, 0x00020000
    s_mov_b32 s{SDG + 2}, {N * 2}
    s_mov_b32 s{SDG + 3}, 0x00020000
    s_mov_b32 s{SOUT + 2}, {N * 256}
    s_mov_b32 s{SOUT + 3}, 0x00020000
    s_mov_b32 s{SMP + 2}, {N * 256}
    s_mov_b32 s{SMP + 3}, 0x00020000
    s_mov_b32 s{S_THR}, 0x4b800000               ; 2^24
    s_lshl_b32 s{S_T0}, s{S_W}, 12
    s_mul_i32 s{S_SRC0}, s{S_SPLIT}, {52 * 8192}
    s_add_u32 s{S_SRC0}, s{S_SRC0}, s{S_T0}
    s_mov_b32 s{S_T1}, {KF}
    s_cmp_lt_u32 s{S_W}, 2
    s_cselect_b32 s{S_T1}, s{S_T1}, {VF - 8192 - 8192}
    s_add_u32 s{S_SRC0}, s{S_SRC0}, s{S_T1}
    s_lshl_b32 s{S_Q0}, s{S_QT}, 16
    s_lshl_b32 s{S_T1}, s{S_W}, 14
    s_add_u32 s{S_Q0}, s{S_Q0}, s{S_T1}
    s_add_u32 s{S_Q0}, s{S_Q0}, {QF}
    s_add_u32 s{S_Q0 + 1}, s{S_Q0}, 0x1000
    s_add_u32 s{S_Q0 + 2}, s{S_Q0}, 0x2000
    s_add_u32 s{S_Q0 + 3}, s{S_Q0}, 0x3000
    s_mul_i32 s{S_T1}, s{S_QT}, 6
    s_add_u32 s{S_T1}, s{S_T1}, s{S_SPLIT}
    s_lshl_b32 s{S_PO}, s{S_T1}, 16
    s_lshl_b32 s{S_T0}, s{S_W}, 14
    s_add_u32 s{S_PO}, s{S_PO}, s{S_T0}
    s_add_u32 s{S_PO}, s{S_PO}, {PO}
    s_lshl_b32 s{S_PL}, s{S_T1}, 11
    s_lshl_b32 s{S_T0}, s{S_W}, 9
    s_add_u32 s{S_PL}, s{S_PL}, s{S_T0}
    s_add_u32 s{S_PL}, s{S_PL}, {PL}
    s_mov_b32 s{S_U}, 51
    s_cmp_eq_u32 s{S_SPLIT}, 5
    s_cselect_b32 s{S_U}, 52, s{S_U}
    s_mov_b32 s{S_MODE}, 0
    s_add_u32 s{S_T0}, s{S_U}, 1
    s_cmp_lt_u32 s{S_W}, 2
    s_cselect_b32 s{S_T1}, 0, 1
    s_add_u32 s{S_T0}, s{S_T0}, s{S_T1}
    s_lshl_b32 s{S_T0}, s{S_T0}, 13
    s_add_u32 s{SKV + 2}, s{S_SRC0}, s{S_T0}
    s_sub_u32 s{SKV + 2}, s{SKV + 2}, 4096
    s_mov_b32 s{SKV + 3}, 0x00020000
    s_mov_b32 s{S_REC}, {REC}
    s_mov_b32 s{S_K0}, {KF}
    s_mov_b32 s{S_CAP}, {CAP}
    s_lshl_b32 s{S_FLG}, s{S_QT}, 7
    s_add_u32 s{S_FLG}, s{S_FLG}, {FLG}
    s_mul_i32 s{S_T0}, s{S_W}, 6
    s_add_u32 s{S_T0}, s{S_T0}, s{S_SPLIT}
    s_lshl_b32 s{S_T1}, s{S_QT}, 4
    s_add_u32 s{S_T1}, s{S_T1}, s{S_T0}
    s_cmp_lt_u32 s{S_T0}, 16
    s_cselect_b32 s{S_MASK}, -1, 0
    s_cmp_lt_u32 s{S_T1}, {N // 16}
    s_cselect_b32 s{S_MASK}, s{S_MASK}, 0
    s_lshl_b32 s{S_I}, s{S_T1}, 8
    s_add_u32 s{S_I}, s{S_I}, {TAB}
    s_mul_i32 s{S_T0}, s{S_W}, {RSZ}
    s_add_u32 s{S_T0}, s{S_T0}, {RB}
    v_mov_b32 v{VRB}, s{S_T0}
    s_add_u32 s{S_T0}, s{S_T0}, 64
    v_add_u32 v{VDC}, s{S_T0}, v12
    v_mov_b32 v{VOOB}, 0x7fffffff
    v_mov_b32 v4, 0
    v_mov_b32 v5, {LDS_FLAG}
    ds_write_b32 v5, v4
    """)
    emit_region_reset(a)
    a(f"""
    s_waitcnt lgkmcnt(0)
    s_and_b32 s{S_SRD + 1}, s{S_SRD + 1}, 0xffff
    s_and_b32 s{SX + 1}, s{SX + 1}, 0xffff
    s_and_b32 s{SDG + 1}, s{SDG + 1}, 0xffff
    s_and_b32 s{SOUT + 1}, s{SOUT + 1}, 0xffff
    s_mov_b32 s{SKV}, s{S_SRD}
    s_mov_b32 s{SKV + 1}, s{S_SRD + 1}
    s_add_u32 s{SMP}, s{S_SRD}, {MP}
    s_addc_u32 s{SMP + 1}, s{S_SRD + 1}, 0
    buffer_load_dword v{VREM}, v12, {SRD}, s{S_I} offen
    """)
    def lane_setup():
        a(f"""
        v_bfe_u32 v2, v0, 2, 2
        v_and_b32 v3, 3, v0
        v_bfe_u32 v4, v0, 4, 2
        s_lshl_b32 s{S_T0}, s{S_W}, 6
        s_sub_u32 s{S_T1}, s{S_T0}, 12
        v_lshlrev_b32 v{GOFF}, 4, v3
        v_add_u32 v{GOFF}, s{S_T1}, v{GOFF}
        v_lshlrev_b32 v5, 4, v2
        v_sub_u32 v{GOFF}, v{GOFF}, v5               ; 64w + 16q - 16n' - 12
        v_lshlrev_b32 v{GLA}, 4, v2
        v_lshl_add_u32 v{GLA}, v4, 6, v{GLA}
        v_add_u32 v{GLA}, {RB}, v{GLA}
        """)

    def maxc():
        a(f"""
        v_and_b32 v6, 15, v0
        v_bfe_u32 v7, v0, 4, 2
        v_mul_u32_u24 v7, {RSZ}, v7
        v_lshl_add_u32 v7, v6, 2, v7
        v_add_u32 v7, {RB}, v7
        ds_read_b32 v9, v7
        s_waitcnt lgkmcnt(0)
        """)
        for sh in ("row_shr:1", "row_shr:2", "row_shr:4", "row_shr:8"):
            a(f"v_max_u32_dpp v9, v9, v9 {sh} row_mask:0xf bank_mask:0xf")
            a("s_nop 1")
        a("v_max_u32_dpp v9, v9, v9 row_bcast:15 row_mask:0xa bank_mask:0xf")
        a("s_nop 1")
        a("v_max_u32_dpp v9, v9, v9 row_bcast:31 row_mask:0xc bank_mask:0xf")
        a("s_nop 1")
        a(f"v_readlane_b32 s{S_MAXC}, v9, 63")
        a("s_nop 3")
        a(f"s_min_u32 s{S_N}, s{S_MAXC}, {CAP}")
        a(f"s_add_u32 s{S_N}, s{S_N}, 3")
        a(f"s_lshr_b32 s{S_N}, s{S_N}, 2")

    if cfg.get("ptl"):
        a("s_memrealtime s[98:99]")
    a.label("L_k2_restart")
    a.seg("k2_pro")
    a(f"s_mov_b32 s{S_SRC}, s{S_SRC0}")
    a(f"s_lshl_b32 s{S_M0}, s{S_W}, 12")
    a(f"s_mov_b32 m0, s{S_M0}")
    a(f"s_mov_b32 s{S_LEFT}, s{S_U}")

    def dma_stage():
        for k in range(4):
            a(f"buffer_load_dwordx4 v{VL16}, {KVS}, s{S_SRC} offen offset:{1024 * k} lds")

    def dma_adv():
        a(f"s_add_u32 s{S_M0}, s{S_M0}, 0x4000")
        a(f"s_and_b32 m0, s{S_M0}, 0x1ffff")
        a(f"s_add_u32 s{S_SRC}, s{S_SRC}, 0x2000")

    for i in range(8):
        a(f"v_mov_b32 v{P + 8 + i}, 0")
    zq = [f"v_mfma_f32_32x32x16_bf16 {vr(O + 16 * i, 16)}, {vr(P + 8, 4)}, {vr(P + 8, 4)}, 0" for i in range(8)]
    zq += [f"v_mfma_f32_32x32x16_bf16 {ar(AV + 16 * i, 16)}, {vr(P + 8, 4)}, {vr(P + 8, 4)}, 0" for i in range(2)]
    for s_ in range(4):
        a(f"buffer_load_dwordx4 {ar(AK + 16 + 4 * s_, 4)}, v{VL16}, {SRD}, s{S_K0} offen offset:{1024 * s_}")
    for i in range(16):
        a(f"buffer_load_dwordx4 {ar(4 * i, 4)}, v{VL16}, {SRD}, s{S_Q0 + (i >> 2)} offen offset:{1024 * (i & 3)}")
        if i % 3 == 2:
            a(zq.pop())
    for st in range(PF + 1):
        dma_stage()
        dma_adv()
        a(zq.pop())
    assert not zq
    a(f"s_cmp_lg_u32 s{S_MODE}, 0")
    a("s_cbranch_scc1 L_k2_nosetup")
    lane_setup()
    a(f"""
    s_lshl_b32 s{S_T1}, s{S_QT}, 4
    s_add_u32 s{S_T1}, s{S_T1}, s{S_SPLIT}
    s_lshl_b32 s{S_I}, s{S_T1}, 12
    s_add_u32 s{S_I}, s{S_I}, s{S_T0}
    v_lshrrev_b32 v5, 1, v4
    v_lshl_add_u32 v5, v5, 2, v2
    v_and_b32 v6, 1, v4
    v_lshlrev_b32 v{VX}, 8, v5
    v_lshl_add_u32 v{VX}, v6, 5, v{VX}
    v_lshl_add_u32 v{VX}, v3, 3, v{VX}
    v_add_u32 v{VX}, s{S_I}, v{VX}
    v_add_u32 v10, {6 * 4096}, v{VX}
    v_add_u32 v11, {12 * 4096}, v{VX}
    s_lshl_b32 s{S_I}, s{S_T1}, 5
    v_lshlrev_b32 v5, 1, v5
    v_add_u32 v5, s{S_I}, v5
    """)
    for b in range(3):
        for m in range(2):
            a(f"buffer_load_dwordx2 {ar(AXV + 4 * b + 2 * m, 2)}, v{[VX, 10, 11][b]}, s[{SX}:{SX + 3}], 0 offen offset:{2048 * m}")
            a(f"buffer_load_ushort a{ADI + 2 * b + m}, v5, s[{SDG}:{SDG + 3}], 0 offen offset:{192 * b + 16 * m}")
    a(f"""
    v_and_b32 v6, 15, v0
    v_and_b32 v7, 1, v6
    v_lshlrev_b32 v7, 4, v7
    v_mov_b32 v8, 0x3f80
    v_lshlrev_b32 v7, v7, v8                     ; value
    v_lshrrev_b32 v6, 1, v6                      ; 0..7 = (h, dword)
    """)
    for k in range(8):
        a(f"v_cmp_eq_u32 s[{SMK + 2 * k}:{SMK + 2 * k + 1}], {k}, v6")
    for k in range(8):
        a(f"v_cndmask_b32 v{BT + k}, 0, v7, s[{SMK + 2 * k}:{SMK + 2 * k + 1}]")
    for k in range(8):
        a(f"v_accvgpr_write_b32 a{AAH + k}, v{BT + k}")
    Z = vr(P + 8, 4)
    for i in range(4):
        a(f"v_mfma_f32_32x32x16_bf16 {ar(ABUF + 16 * i, 16)}, {Z}, {Z}, 0")
    for i in range(2):
        a(f"{MF} {ar(ABUF + 64 + 4 * i, 4)}, {Z}, {Z}, 0")
    a.label("L_k2_nosetup")
    for qb in range(NQ):
        a(f"v_mov_b32 v{L + qb}, 0")
    a(f"v_add_u32 v{VLDS}, 0x4000, v{VL16}")
    a(f"s_cmp_lg_u32 s{S_MODE}, 0")
    a("s_cbranch_scc1 L_k2_norec")
    if cfg.get("ptl"):
        a("s_memrealtime s[62:63]")
    a(f"s_waitcnt vmcnt({4 * (PF + 1) + 12})")
    if cfg.get("ptl"):
        a("s_memrealtime s[60:61]")
    a(f"""
    v_and_b32 v{VREM}, s{S_MASK}, v{VREM}
    v_and_b32 v2, 63, v0
    v_mul_u32_u24 v2, {RECS}, v2
    v_and_b32 v3, 0xffff, v{VREM}
    v_lshl_add_u32 v{VSEG}, v3, 2, v2
    v_lshrrev_b32 v{VREM}, 16, v{VREM}
    """)
    for k in range(NSLOT // 4):
        a(f"buffer_load_dwordx4 {vr(RC + 4 * k, 4)}, v{VSEG}, {SRD}, s{S_REC} offen offset:{16 * k}")
    a("s_branch L_k2_ref")
    a.label("L_k2_norec")
    a("s_waitcnt vmcnt(0)")
    a.label("L_k2_ref")
    a.seg("k2_pro2")
    for s_ in range(4):
        for qb in range(4):
            d = vr(St(qb, 1), 4)
            a(f"{MF} {d}, {ar(AK + 16 + 4 * s_, 4)}, {ar(AQ + (qb * 4 + s_) * 4, 4)}, {'0' if s_ == 0 else d}")
    a(f"s_waitcnt vmcnt({4 * PF + 12 + 6})")
    a("s_barrier")
    if cfg.get("ptl"):
        a("s_memrealtime s[56:57]")
    for s in range(8):
        a(f"ds_read_b128 {ar(AK + 4 * s, 4)}, v{VL16} offset:{1024 * s}")
    a("s_nop 1")
    for qb in range(4):
        s0 = St(qb, 1)
        a(f"v_max3_f32 v{s0}, v{s0}, v{s0 + 1}, v{s0 + 2}")
    for qb in range(4):
        s0 = St(qb, 1)
        a(f"v_max_f32 v{s0}, v{s0}, v{s0 + 3}")
    for sw in ("v_permlane32_swap_b32", "v_permlane16_swap_b32"):
        for qb in range(4):
            a(f"v_mov_b32 v{St(qb, 1) + 1}, v{St(qb, 1)}")
        a("s_nop 0")
        for qb in range(4):
            a(f"{sw} v{St(qb, 1)}, v{St(qb, 1) + 1}")
        a("s_nop 0")
        for qb in range(4):
            a(f"v_max_f32 v{St(qb, 1)}, v{St(qb, 1)}, v{St(qb, 1) + 1}")
    for qb in range(4):
        for i in range(4):
            a(f"v_sub_f32 v{NM + 4 * qb + i}, 0, v{St(qb, 1)}")
    a("s_waitcnt lgkmcnt(0)")
    for x in qk_order("A"):
        a(mfma_qk(*x))
    if cfg.get("stamp"):
        a("s_memtime s[90:91]")
        a("s_memrealtime s[92:93]")
        a("s_waitcnt lgkmcnt(0)")
    a(f"s_cmp_lg_u32 s{S_MODE}, 0")
    a("s_cbranch_scc1 L_safe")
    if cfg.get("ptl"):
        a("s_memrealtime s[58:59]")
        a("s_waitcnt lgkmcnt(0)")
    a(f"s_mov_b32 s{S_CNT}, {NB0}")
    a(f"s_mov_b32 s{S_EV}, 0")
    a.raw(".p2align 6")
    emit_body(a, cfg, "m", False)
    a.seg("k2_mid")
    a(f"s_add_u32 s{S_EV}, s{S_EV}, 1")
    a(f"s_cmp_eq_u32 s{S_EV}, 3")
    a("s_cbranch_scc1 L_loop_done")
    a(f"s_cmp_eq_u32 s{S_EV}, 2")
    a("s_cbranch_scc1 L_ev_g")
    a.seg("k2_ev")
    if cfg.get("ptl"):
        a("s_memrealtime s[100:101]")
        a("s_waitcnt lgkmcnt(0)")
    a(f"s_waitcnt vmcnt({4 * NB0})")
    a("v_mov_b32 v12, 1")
    RK = 4
    for grp in range(NSLOT // 8):
        for k in range(8):
            a(f"v_cmp_lt_u32 s[{SMK + 2 * k}:{SMK + 2 * k + 1}], {8 * grp + k}, v{VREM}")
        for k in range(8):
            a(f"v_and_or_b32 v{BT + k}, v{RC + 8 * grp + k}, 60, v{VRB}")
        if grp:
            a(f"s_cmp_eq_u64 s[{SMK}:{SMK + 1}], 0")
            a("s_cbranch_scc1 L_ev_built")
        for k in range(8):
            a(f"v_cndmask_b32 v{BT + k}, v{VDC}, v{BT + k}, s[{SMK + 2 * k}:{SMK + 2 * k + 1}]")
            a(f"ds_add_rtn_u32 v{RK + k}, v{BT + k}, v12")
        for k in range(8):
            a(f"s_waitcnt lgkmcnt(7)")
            a(f"v_min_u32 v{RK + k}, s{S_CAP}, v{RK + k}")
            a(f"v_lshl_add_u32 v{BT + k}, v{RK + k}, 6, v{BT + k}")
            a(f"ds_write_b32 v{BT + k}, v{RC + 8 * grp + k} offset:{LOFF}")
    a.label("L_ev_built")
    a(f"""
    v_and_b32 v2, 15, v0
    v_lshl_add_u32 v2, v2, 2, v{VRB}
    ds_read_b32 v3, v2
    v_cmp_lt_u32 s[{SMK}:{SMK + 1}], {NSLOT}, v{VREM}
    s_waitcnt lgkmcnt(0)
    v_cmp_lt_u32 vcc, s{S_CAP}, v3
    s_nop 3
    s_or_b64 vcc, vcc, s[{SMK}:{SMK + 1}]
    s_cbranch_vccnz L_car_e
    v_mov_b32 v{VREM}, 0
    """)
    a.label("L_ev_ret")

    a(f"s_mov_b32 s{S_CNT}, 1")
    a("s_branch L_body_m")
    a.label("L_ev_g")
    a.seg("k2_evg")
    maxc()
    a(f"""
    s_min_u32 s{S_CNT}, s{S_N}, {NGMAX}
    s_max_u32 s{S_CNT}, s{S_CNT}, 1
    s_sub_u32 s{S_N}, s{S_N}, s{S_CNT}
    s_mul_i32 s{S_T0}, s{S_CNT}, 3
    s_sub_u32 s{S_LEFT}, s{S_LEFT}, s{S_T0}
    s_sub_u32 s{S_LEFT}, s{S_LEFT}, {NB0 + 1}
    s_waitcnt vmcnt(0)
    """)
    a.raw(".p2align 6")
    for gb in range(3):
        emit_body(a, cfg, f"g{gb}", False, gb=gb, loop="g0")
    a.seg("k2_gx")
    a(f"s_mov_b32 s{S_CNT}, s{S_LEFT}")
    a("s_branch L_body_m")
    a.label("L_loop_done")
    a.seg("k2_mid2")
    if cfg.get("stamp"):
        a("s_memtime s[94:95]")
        a("s_memrealtime s[96:97]")
        a(f"s_load_dwordx2 s[64:65], s[0:1], 80")
        a("s_waitcnt lgkmcnt(0)")
        a("s_sub_u32 s94, s94, s90")
        a("s_sub_u32 s96, s96, s92")
        a("v_mov_b32 v2, s94")
        a("v_mov_b32 v3, s96")
        a("s_and_b32 s65, s65, 0xffff")
        a("s_mov_b32 s66, 256")
        a("s_mov_b32 s67, 0x00020000")
        a("s_lshr_b32 s72, s2, 3")
        a("s_lshl_b32 s72, s72, 3")
        a("v_mov_b32 v4, s72")
        a("s_and_b32 s73, s2, 7")
        a(f"s_or_b32 s73, s73, s{S_W}")
        a("s_cmp_lg_u32 s73, 0")
        a("s_cbranch_scc1 L_nostamp")
        a("buffer_store_dwordx2 v[2:3], v4, s[64:67], 0 offen")
        a.label("L_nostamp")
    a(f"s_cmp_eq_u32 s{S_SPLIT}, 5")
    a("s_cbranch_scc1 L_body_lm")
    emit_body(a, cfg, "lf", False, last=True, nkb=2)
    a("s_branch L_k2_chk")
    emit_body(a, cfg, "lm", False, last=True, nkb=1)
    a.label("L_k2_chk")
    a.seg("k2_chk")
    a(f"""
    v_max3_f32 v4, v{L}, v{L + 1}, v{L + 2}
    v_max_f32 v4, v4, v{L + 3}
    v_add_f32 v6, v{L}, v{L + 1}
    v_add_f32 v7, v{L + 2}, v{L + 3}
    v_add_f32 v6, v6, v7
    s_mov_b32 s{S_T0}, 0x53800000
    v_cmp_ngt_f32 vcc, s{S_T0}, v4
    v_cmp_u_f32 s[{SMK}:{SMK + 1}], v6, v6
    v_mov_b32 v5, {LDS_FLAG}
    v_mov_b32 v4, 1
    s_or_b64 vcc, vcc, s[{SMK}:{SMK + 1}]
    s_cbranch_vccz L_k2_chk2
    ds_write_b32 v5, v4
    """)
    a.label("L_k2_chk2")
    a(f"""
    s_waitcnt vmcnt(0) lgkmcnt(0)
    s_barrier
    ds_read_b32 v4, v5
    s_waitcnt lgkmcnt(0)
    v_readfirstlane_b32 s{S_T0}, v4
    s_nop 3
    s_cmp_eq_u32 s{S_T0}, 0
    s_cbranch_scc1 L_k2_epi
    s_waitcnt vmcnt(0)
    s_barrier
    """)
    a(f"s_mov_b32 s{S_MODE}, 1")
    a("s_branch L_k2_restart")
    a.label("L_safe")
    a.seg("k2_safe0")
    a(f"s_mov_b32 s{S_CNT}, s{S_LEFT}")
    emit_body(a, cfg, "s", True)
    a.seg("k2_smid")
    a(f"s_cmp_eq_u32 s{S_SPLIT}, 5")
    a("s_cbranch_scc1 L_body_sm")
    emit_body(a, cfg, "sf", True, last=True, nkb=2)
    a("s_branch L_k2_epi0")
    emit_body(a, cfg, "sm", True, last=True, nkb=1)
    a.label("L_k2_epi0")
    a.seg("k2_epi0")
    a("s_nop 7")
    a("s_waitcnt vmcnt(0) lgkmcnt(0)")
    a("s_barrier")
    a.label("L_k2_epi")
    a.seg("k2_epi")
    if cfg.get("tl") and not cfg.get("ptl"):
        a("s_memrealtime s[98:99]")
    VPLA = 8
    smp = f"s[{SMP}:{SMP + 3}]"

    def consume_all():
        for b in range(3):
            for k in range(4):
                d = ar(AAG + 8 * b + 4 * (k >> 1), 4)
                a(f"{MF} {d}, {ar(AAH + 4 * (k & 1), 4)}, {ar(ABUF + 16 * b + 4 * k, 4)}, {d}")

    def publish():
        for sw in ("v_permlane32_swap_b32", "v_permlane16_swap_b32"):
            for qb in range(NQ):
                a(f"v_mov_b32 v{T + qb}, v{L + qb}")
            a("s_nop 0")
            for qb in range(NQ):
                a(f"{sw} v{L + qb}, v{T + qb}")
            a("s_nop 0")
            for qb in range(NQ):
                a(f"v_add_f32 v{L + qb}, v{L + qb}, v{T + qb}")
        for qb in range(NQ):
            a(f"v_mov_b32 v{57 + 2 * qb}, v{L + qb}")
        n = 0
        a(f"s_lshl_b32 s{S_I}, s{S_W}, 2")
        a(f"s_sub_u32 s{S_I}, s{S_I}, s{S_SPLIT}")
        for qb in range(NQ):
            a(f"s_add_u32 s{S_T0}, s{S_PO}, {qb * 4096}")
            a(f"s_lshl_b32 s{S_T1}, 1, s{S_I}")
            a(f"s_cmp_lt_u32 s{S_I}, 13")
            a(f"s_cselect_b32 s{S_T1}, s{S_T1}, 0")
            a(f"s_and_b32 s{S_T1}, s{S_T1}, {1 | 1 << 6 | 1 << 12}")
            a(f"s_cbranch_scc1 L_own{qb}")
            for p in range(4):
                t = 26 + 4 * (n % 2)
                n += 1
                for d in range(4):
                    src = O + (qb * 8 + 2 * p) * 4 + 2 * d
                    a(f"v_cvt_pk_bf16_f32 v{t + d}, v{src}, v{src + 1}")
                a(f"buffer_store_dwordx4 {vr(t, 4)}, v{VL16}, {SRD}, s{S_T0} offen offset:{1024 * p} sc1")
            a.label(f"L_ownr{qb}")
            a(f"s_add_u32 s{S_I}, s{S_I}, 1")
        a("s_mov_b64 exec, 0xffff")
        for qb in range(NQ):
            a(f"buffer_store_dwordx2 v[{56 + 2 * qb}:{57 + 2 * qb}], v{VPLA}, {SRD}, s{S_PL} offen offset:{128 * qb} sc1")
        a("s_mov_b64 exec, -1")


    a(f"v_and_b32 v{VPLA}, 15, v0")
    a(f"v_lshlrev_b32 v{VPLA}, 3, v{VPLA}")
    for qb in range(NQ):
        a(f"v_sub_f32 v{56 + 2 * qb}, 0, v{NM + 4 * qb}")
    publish()
    if cfg.get("tl") and not cfg.get("ptl"):
        a("s_memrealtime s[62:63]")
        a("s_memrealtime s[60:61]")
    consume_all()
    a("s_waitcnt vmcnt(0) lgkmcnt(0)")
    if cfg.get("tl") and not cfg.get("ptl"):
        a("s_memrealtime s[56:57]")
    a("s_barrier")
    a(f"""
    s_cmp_lg_u32 s{S_W}, 0
    s_cbranch_scc1 L_nosig
    s_lshl_b32 s{S_T0}, s{S_SPLIT}, 2
    v_mov_b32 v10, s{S_T0}
    s_add_u32 s{S_T1}, s{S_MODE}, 1
    v_mov_b32 v11, s{S_T1}
    s_mov_b64 exec, 1
    buffer_store_dword v11, v10, {SRD}, s{S_FLG} offen sc1
    s_mov_b64 exec, -1
    """)
    a.label("L_nosig")
    a(f"s_cmp_gt_i32 s{S_N}, 0")
    a("s_cbranch_scc1 L_left")
    a.label("L_gdone")
    a.seg("k2_fin")
    if cfg.get("tl") and not cfg.get("ptl"):
        a("s_memrealtime s[58:59]")
    POV, PLV = 128, 200
    ACC, BP, AI, XA, VXB = 26, 64, 34, 96, 5
    a(f"""
    v_and_b32 v{VPLA}, 15, v0
    v_and_b32 v9, 63, v0
    v_min_u32 v9, 5, v9
    v_lshlrev_b32 v9, 2, v9
    buffer_load_dword v10, v9, {SRD}, s{S_FLG} offen sc1
    s_mul_i32 s{S_T0}, s{S_QT}, {6 * 65536}
    s_lshl_b32 s{S_T1}, s{S_SPLIT}, 12
    s_add_u32 s{S_T0}, s{S_T0}, s{S_T1}
    s_lshl_b32 s{S_T1}, s{S_W}, 10
    s_add_u32 s{S_T0}, s{S_T0}, s{S_T1}
    s_add_u32 s{S_PO}, s{S_T0}, {PO}
    s_mul_i32 s{S_T0}, s{S_QT}, {6 * 2048}
    s_lshl_b32 s{S_T1}, s{S_SPLIT}, 7
    s_add_u32 s{S_T0}, s{S_T0}, s{S_T1}
    s_add_u32 s{S_PL}, s{S_T0}, {PL}
    v_mov_b32 v{VXB}, v{VX}
    v_add_u32 v{VXB + 1}, {6 * 4096}, v{VX}
    v_add_u32 v{VXB + 2}, {12 * 4096}, v{VX}
    v_bfe_u32 v2, v0, 2, 2
    v_and_b32 v3, 3, v0
    v_bfe_u32 v4, v0, 5, 1
    v_lshl_add_u32 v2, v4, 2, v2
    v_lshl_add_u32 v2, v3, 4, v2
    v_lshlrev_b32 v14, 2, v2
    v_add_u32 v15, 32, v14                       ; m = 1
    v_and_b32 v4, 16, v0
    v_cmp_ne_u32 s[{SMK}:{SMK + 1}], 0, v4
    v_and_b32 v2, 1, v{VPLA}
    v_lshlrev_b32 v2, 4, v2
    v_mov_b32 v3, 0x3f80
    v_lshlrev_b32 v2, v2, v3
    v_bfe_u32 v3, v{VPLA}, 1, 1
    v_lshrrev_b32 v4, 2, v{VPLA}
    v_bfe_u32 v11, v0, 4, 2
    v_xor_b32 v4, v4, v11
    v_lshl_add_u32 v3, v4, 1, v3
    v_cmp_eq_u32 s[{SMK + 2}:{SMK + 3}], 0, v3
    v_cmp_eq_u32 s[{SMK + 4}:{SMK + 5}], 1, v3
    v_lshlrev_b32 v{VPLA}, 3, v{VPLA}
    """)
    for k in (2, 3, 4, 5):
        a(f"v_mov_b32 v{AI + k}, 0")
    for k in range(2):
        a(f"v_cndmask_b32 v{AI + k}, 0, v2, s[{SMK + 2 + 2 * k}:{SMK + 3 + 2 * k}]")
        a(f"v_cndmask_b32 v{AI + 6 + k}, 0, v2, s[{SMK + 2 + 2 * k}:{SMK + 3 + 2 * k}]")
    for b in range(3):
        for m in range(2):
            a(f"v_accvgpr_read_b32 v2, a{ADI + 2 * b + m}")
            for d in range(2):
                a(f"v_accvgpr_read_b32 v{3 + d}, a{AXV + 4 * b + 2 * m + d}")
            for r in range(4):
                a(f"v_accvgpr_read_b32 v{80 + r}, a{AAG + 8 * b + 4 * m + r}")
            a("v_lshlrev_b32 v2, 16, v2")
            xa = XA + 8 * b + 4 * m
            for d in range(2):
                a(f"v_lshlrev_b32 v{xa + 2 * d}, 16, v{3 + d}")
                a(f"v_and_b32 v{xa + 2 * d + 1}, 0xffff0000, v{3 + d}")
            for r in range(4):
                a(f"v_fmac_f32 v{xa + r}, v{80 + r}, v2")
    a(f"s_mov_b32 s{S_T1}, s{S_SPLIT}")
    for s in range(6):
        a(f"s_lshl_b32 s{S_T0}, s{S_T1}, 11")
        a(f"s_add_u32 s{SMK + 8 + s}, s{S_PL}, s{S_T0}")
        if s:
            a(f"s_lshl_b32 s{S_T0}, s{S_T1}, 16")
            a(f"s_add_u32 s{SMK + 14 + s}, s{S_PO}, s{S_T0}")
        a(f"s_add_u32 s{S_T1}, s{S_T1}, 1")
        a(f"s_cmp_eq_u32 s{S_T1}, 6")
        a(f"s_cselect_b32 s{S_T1}, 0, s{S_T1}")
    a(f"s_lshl_b32 s{S_T0}, s{S_W}, 10")
    a(f"v_add_u32 v2, s{S_T0}, v{VL16}")
    for b in range(3):
        a(f"ds_read_b128 {vr(POV + 24 * b, 4)}, v2 offset:{4096 * b}")
    a("s_waitcnt lgkmcnt(0)")
    a("s_branch L_poll1")
    a.label("L_poll")
    a("s_sleep 2")
    a(f"buffer_load_dword v10, v9, {SRD}, s{S_FLG} offen sc1")
    a.label("L_poll1")
    a(f"""
    s_waitcnt vmcnt(0)
    v_cmp_eq_u32 vcc, 0, v10
    s_cbranch_vccnz L_poll
    """)
    if cfg.get("tl") and not cfg.get("ptl"):
        a("s_memrealtime s[100:101]")
        a("s_waitcnt lgkmcnt(0)")
    a("v_cmp_ne_u32 vcc, 1, v10")
    for b in range(3):
        if b == 2:
            a(f"s_cmp_gt_u32 s{S_SPLIT}, 3")
            a("s_cbranch_scc1 L_no3")
        for s in range(6):
            a(f"buffer_load_dwordx2 {vr(PLV + 12 * b + 2 * s, 2)}, v{VPLA}, {SRD}, s{SMK + 8 + s} offen offset:{768 * b} sc1")
        for s in range(1, 6):
            a(f"s_add_u32 s{S_T0}, s{SMK + 14 + s}, {b * 6 * 4096}")
            a(f"buffer_load_dwordx4 {vr(POV + 24 * b + 4 * s, 4)}, v{VL16}, {SRD}, s{S_T0} offen sc1")
    a.label("L_ld_done")
    a("s_cbranch_vccnz L_general")

    def finish(b, rcp):
        for m in range(2):
            if rcp:
                a(f"ds_bpermute_b32 v{80 + m}, v{14 + m}, v{rcp}")
            for j in range(8):
                a(f"ds_bpermute_b32 v{BP + 8 * m + j}, v{14 + m}, v{ACC + j}")
        ob = 56 + 4 * (b & 1)
        for m in range(2):
            a(f"s_waitcnt lgkmcnt({(9 if rcp else 8) * (1 - m)})")
            xa = XA + 8 * b + 4 * m
            for r in range(4):
                a(f"v_cndmask_b32 v{BP + 8 * m + r}, v{BP + 8 * m + r}, v{BP + 8 * m + 4 + r}, s[{SMK}:{SMK + 1}]")
                if rcp:
                    a(f"v_fmac_f32 v{xa + r}, v{BP + 8 * m + r}, v{80 + m}")
                else:
                    a(f"v_add_f32 v{xa + r}, v{xa + r}, v{BP + 8 * m + r}")
            for d in range(2):
                a(f"v_cvt_pk_bf16_f32 v{ob + 2 * m + d}, v{xa + 2 * d}, v{xa + 2 * d + 1}")
            a(f"buffer_store_dwordx2 {vr(ob + 2 * m, 2)}, v{VXB + b}, s[{SOUT}:{SOUT + 3}], 0 offen offset:{2048 * m}")

    for b in range(3):
        pl, po = PLV + 12 * b, POV + 24 * b
        if b == 2:
            a(f"s_cmp_gt_u32 s{S_SPLIT}, 3")
            a("s_cbranch_scc1 L_k2_done")
        for s in range(6):
            if s:
                a(f"s_waitcnt vmcnt({5 - s + 11 * (2 - b) + 2 * b})")
            for h in range(2):
                d = vr(ACC + 4 * h, 4)
                a(f"{MF} {d}, {vr(AI + 4 * h, 4)}, {vr(po + 4 * s, 4)}, {'0' if s == 0 else d}")
            if s == 1:
                a(f"v_add_f32 v42, v{pl + 1}, v{pl + 3}")
            elif s > 1:
                a(f"v_add_f32 v42, v42, v{pl + 2 * s + 1}")
        a("v_rcp_f32 v42, v42")
        a("s_nop 5")
        finish(b, 42)
    a("s_branch L_k2_done")
    a.label("L_no3")
    a("s_waitcnt vmcnt(11)")
    a("s_cbranch_vccnz L_no3g")
    a.seg("k2_no3")
    for b in range(2):
        pl, po = PLV + 12 * b, POV + 24 * b
        for s in range(6):
            if s and b:
                a(f"s_waitcnt vmcnt({5 - s + 2})")
            for h in range(2):
                d = vr(ACC + 4 * h, 4)
                a(f"{MF} {d}, {vr(AI + 4 * h, 4)}, {vr(po + 4 * s, 4)}, {'0' if s == 0 else d}")
            if s == 1:
                a(f"v_add_f32 v42, v{pl + 1}, v{pl + 3}")
            elif s > 1:
                a(f"v_add_f32 v42, v42, v{pl + 2 * s + 1}")
        a("v_rcp_f32 v42, v42")
        a("s_nop 5")
        finish(b, 42)
    a("s_branch L_k2_done")
    a.label("L_no3g")
    a("s_waitcnt vmcnt(0)")
    a.label("L_general")
    a.seg("k2_gen")
    for b in range(3):
        pl, po = PLV + 12 * b, POV + 24 * b
        if b == 2:
            a(f"s_cmp_gt_u32 s{S_SPLIT}, 3")
            a("s_cbranch_scc1 L_k2_done")
        a(f"s_waitcnt vmcnt({11 * (2 - b) + 2 * b})")
        a(f"v_max3_f32 v44, v{pl}, v{pl + 2}, v{pl + 4}")
        a(f"v_max3_f32 v44, v44, v{pl + 6}, v{pl + 8}")
        a(f"v_max_f32 v44, v44, v{pl + 10}")
        for s in range(6):
            a(f"v_sub_f32 v{pl + 2 * s}, v{pl + 2 * s}, v44")
        for s in range(6):
            a(f"v_exp_f32 v{pl + 2 * s}, v{pl + 2 * s}")
        a("s_nop 0")
        a(f"v_mul_f32 v45, v{pl}, v{pl + 1}")
        for s in range(1, 6):
            a(f"v_fmac_f32 v45, v{pl + 2 * s}, v{pl + 2 * s + 1}")
        a("v_rcp_f32 v45, v45")
        a("s_nop 0")
        for s in range(6):
            a(f"v_mul_f32 v{pl + 2 * s}, v{pl + 2 * s}, v45")
        for s in range(6):
            for d in range(4):
                r = po + 4 * s + d
                a(f"v_lshlrev_b32 v42, 16, v{r}")
                a(f"v_and_b32 v43, 0xffff0000, v{r}")
                op = "v_mul_f32" if s == 0 else "v_fmac_f32"
                a(f"{op} v{ACC + 2 * d}, v42, v{pl + 2 * s}")
                a(f"{op} v{ACC + 2 * d + 1}, v43, v{pl + 2 * s}")
        finish(b, None)
    a.label("L_k2_done")
    a("s_waitcnt vmcnt(0)")
    if cfg.get("tl"):
        a("s_waitcnt lgkmcnt(0)")
        a("s_mov_b64 exec, 1")
        a("v_lshrrev_b32 v1, 6, v0")
        a("v_lshlrev_b32 v1, 5, v1")
        a(f"s_lshl_b32 s88, s2, 7")
        a(f"s_add_u32 s88, s88, {TR + 3 * 0x40000}")
        for i, sr in enumerate((98, 62, 60, 56, 58, 100)):
            a(f"v_mov_b32 v{2 + i}, s{sr}")
        a(f"buffer_store_dwordx4 v[2:5], v1, {SRD}, s88 offen")
        a(f"buffer_store_dwordx2 v[6:7], v1, {SRD}, s88 offen offset:16")
    stamp_exit(a, cfg, 84, 2, SRD, TR)
    a.label("L_k2_end")
    a("s_endpgm")
    a.label("L_left")
    a.seg("k2_left0")
    lane_setup()
    a(f"v_add_u32 v{GLA}, {NGMAX * 256}, v{GLA}")
    a.label("L_left_loop")
    a.seg("k2_left")
    for b in range(3):
        a(f"ds_read_b128 {vr(64 + 4 * b, 4)}, v{GLA} offset:{b * RSZ + LOFF}")
    a(f"v_add_u32 v{GLA}, 256, v{GLA}")
    a("s_waitcnt lgkmcnt(0)")
    for b in range(3):
        for k in range(4):
            a(f"v_add_u32 v{64 + 4 * b + k}, v{64 + 4 * b + k}, v{GOFF}")
            a(f"buffer_load_dwordx4 {ar(ABUF + 16 * b + 4 * k, 4)}, v{64 + 4 * b + k}, {smp}, 0 offen offset:{12 - 4 * k}")
    a("s_waitcnt vmcnt(0)")
    consume_all()
    a(f"""
    s_sub_u32 s{S_N}, s{S_N}, 1
    s_cmp_gt_i32 s{S_N}, 0
    s_cbranch_scc1 L_left_loop
    s_nop 7
    s_cmp_le_u32 s{S_MAXC}, {CAP}
    s_cbranch_scc1 L_gdone
    s_barrier
    s_branch L_car_t
    """)
    a.label("L_more2")
    a.seg("k2_more2")
    a("s_barrier")
    maxc()
    lane_setup()
    a("s_branch L_left_loop")
    for qb in range(NQ):
        a.label(f"L_own{qb}")
        a.seg(f"k2_own{qb}")
        a(f"s_mul_i32 s{S_T1}, s{S_I}, 683")
        a(f"s_and_b32 s{S_T1}, s{S_T1}, 0x3000")
        a(f"v_add_u32 v42, s{S_T1}, v{VL16}")
        for p in range(4):
            t = 26 + 4 * (p % 2)
            for d in range(4):
                src = O + (qb * 8 + 2 * p) * 4 + 2 * d
                a(f"v_cvt_pk_bf16_f32 v{t + d}, v{src}, v{src + 1}")
            a(f"ds_write_b128 v42, {vr(t, 4)} offset:{1024 * p}")
        a(f"s_branch L_ownr{qb}")
    emit_careful(a, "e", "L_ev_ret")
    emit_careful(a, "t", "L_more2")
    for tag, nkb in (("s", 2), ("sf", 2), ("sm", 1)):
        for X in "AB":
            emit_slow(a, X, nkb, tag + X)
    return dict(name=name, vgpr=512, accum=256, sgpr=102, grid=NWG, block=256, lds=RB + 4 * RSZ,
                chains=[["k2_pro0", "k2_pro", "k2_pro2", "body_m", "body_m", "k2_mid", "k2_mid2", "body_lf", "k2_chk", "k2_epi", "k2_fin"],
                        ["body_m", "k2_mid", "k2_ev", "body_m"], ["k2_ev", "careful_e", "body_m"],
                        ["body_m", "k2_mid", "k2_evg", "body_g0", "body_g1", "body_g2", "body_g0", "body_g1", "body_g2", "k2_gx", "body_m"],
                        ["body_m", "k2_mid", "k2_mid2", "body_lm", "k2_chk", "k2_pro"],
                        ["k2_pro", "k2_pro2", "k2_safe0", "body_s", "body_s", "k2_smid", "body_sf", "k2_epi0", "k2_epi"],
                        ["body_s", "k2_smid", "body_sm", "k2_epi0", "k2_epi"],
                        ["k2_fin", "k2_gen"], ["k2_fin", "k2_no3"], ["k2_chk", "k2_own0", "k2_own1", "k2_own2", "k2_own3"], ["k2_epi", "k2_left0", "k2_left", "k2_left", "k2_fin"], ["k2_left", "careful_t", "k2_more2", "k2_left"]] +
                       [["slow_" + t + X] for t in ("s", "sf", "sm") for X in "AB"])
```

```python
from layout import *
from asmlib import stamp_entry, stamp_exit

CFG = {}
MF = "v_mfma_f32_16x16x32_bf16"
NWG = 240
NQ = 4
CAP = 72
NGMAX = 15
NSLOT = 24

O, S, NM, P, E_, T, L = 128, 64, 96, 112, 26, 42, 52
VLDS, VL16, VT, VT2, VT3, VOOB = 20, 21, 22, 23, 24, 25
RC, VREM, VSEG, BT = 26, 50, 51, 56
AQ, AK, AV = 0, 64, 96
S_SRD = 4
S_W, S_SRC, S_M0, S_CNT, S_THR, S_SPLIT, S_QT, S_T0, S_T1 = 8, 9, 10, 11, 12, 13, 14, 15, 16
S_LEFT, S_EV, S_NB, S_MODE = 17, 18, 19, 30
S_Q0 = 20
S_PO, S_PL, S_SRC0, S_U = 24, 25, 26, 27
S_K0, S_FV = 28, 29
S_PA = 86
S_OWN = 31
SRD = f"s[{S_SRD}:{S_SRD + 3}]"
SKV = 80
KVS = "s[80:83]"
LDS_FLAG = 131072
ABUF, AAG, AAH, AXV, ADI = 128, 176, 200, 208, 220
GI, GOFF, GLA = 26, 13, 14
SMP = 44
RB = 131072 + 256
LOFF = 384
RSZ = LOFF + CAP * 64 + 384
SENT = 0x7fffff00


def vr(b, n):
    return f"v[{b}:{b + n - 1}]"


def ar(b, n):
    return f"a[{b}:{b + n - 1}]"


def qbs(X):
    return [0, 1] if X == "A" else [2, 3]


def St(qb, kb):
    return S + (qb * 2 + kb) * 4


def mfma_qk(qb, kb, s, czero=False):
    d = vr(St(qb, kb), 4)
    c = ("0" if czero else vr(NM + 4 * qb, 4)) if s == 0 else d
    return f"{MF} {d}, {ar(AK + (kb * 4 + s) * 4, 4)}, {ar(AQ + (qb * 4 + s) * 4, 4)}, {c}"


def mfma_pv(qb, db):
    o = vr(O + (qb * 8 + db) * 4, 4)
    return f"{MF} {o}, {ar(AV + 4 * db, 4)}, {vr(P + 4 * qb, 4)}, {o}"


def qk_order(X, nkb=2):
    return [(qb, kb, s) for s in range(4) for kb in range(nkb) for qb in qbs(X)]


def pv_order(X):
    return [(qb, db) for qb in qbs(X) for db in range(8)]


class Op:
    def __init__(self, text, cost, est=0, lst=10 ** 6, deps=(), stream=None):
        self.text, self.cost, self.est, self.lst, self.deps, self.stream = text, cost, est, lst, list(deps), stream
        self.pos = None


def sm_group(X, nkb, tag, chk, rdy, dl):
    ops = []
    idx = 0
    q = qbs(X)
    lastadd = {}
    prev_small = None
    for qb in q:
        d = dl[qb] if not chk else min(dl.values())
        if nkb == 1:
            for k in (2, 3):
                ops.append(Op(f"v_mov_b32 v{P + 4 * qb + k}, 0", 4, rdy["p", qb], d - 1, stream="s" + X))
        for kb in range(nkb):
            for pr in range(2):
                s0 = St(qb, kb) + 2 * pr
                e0, e1 = (E_ + (2 * idx) % 16, E_ + (2 * idx + 1) % 16) if chk else (s0, s0 + 1)
                x0 = Op(f"v_exp_f32 v{e0}, v{s0}", 8, rdy[qb, kb], d - 2, stream="x" + X)
                x1 = Op(f"v_exp_f32 v{e1}, v{s0 + 1}", 8, rdy[qb, kb], d - 2, stream="x" + X)
                ops += [x0, x1]
                acc = (T if chk else L) + qb
                dadd = d - 1 if chk else dl["end"]
                c = Op(f"v_cvt_pk_bf16_f32 v{P + 4 * qb + 2 * kb + pr}, v{e0}, v{e1}", 4, rdy["p", qb], d - 1, [x0, x1], stream="c" + X)
                if chk and qb not in lastadd:
                    a1 = Op(f"v_add_f32 v{acc}, v{e0}, v{e1}", 4, 0, dadd, [x0, x1], stream="a" + X)
                    ops += [a1, c]
                else:
                    a0 = Op(f"v_add_f32 v{acc}, v{acc}, v{e0}", 4, 0, dadd, [x0], stream="a" + X)
                    a1 = Op(f"v_add_f32 v{acc}, v{acc}, v{e1}", 4, 0, dadd, [x1], stream="a" + X)
                    ops += [a0, a1, c]
                lastadd[qb] = a1
                lastc = c
                idx += 1
    if chk:
        d = min(dl.values())
        m = Op(f"v_max_f32 v{VT}, v{T + q[0]}, v{T + q[1]}", 4, 0, d, list(lastadd.values()), stream="a" + X)
        c = Op(f"v_cmp_lt_f32 vcc, s{S_THR}, v{VT}", 4, 0, d, [m], stream="a" + X)
        b = Op(f"s_cbranch_vccnz L_slow_{tag}\nL_back_{tag}:", 0, 0, d, [c, lastc], stream="a" + X)
        ops += [m, c, b]
        for qb in q:
            ops.append(Op(f"v_add_f32 v{L + qb}, v{L + qb}, v{T + qb}", 4, 0, dl["end"], [b], stream="a" + X))
    return ops


def schedule(ops, nm, base=8):
    streams = {}
    for o in ops:
        streams.setdefault(o.stream, []).append(o)
    best = None
    for nextra in range(0, 3 * nm):
        for o in ops:
            o.pos = None
        cap = [base + 4 * ((g + 1) * nextra // nm - g * nextra // nm) for g in range(nm)]
        head = {s: 0 for s in streams}
        out = [[] for _ in range(nm)]
        pos = 0
        ok = True
        for g in range(nm):
            pos += 1
            rem = cap[g]
            while True:
                cand = []
                for s, lst in streams.items():
                    if head[s] >= len(lst):
                        continue
                    o = lst[head[s]]
                    if o.est > g:
                        continue
                    if CFG.get("ds1") and s == "l" and any(t.startswith(("ds_", "buffer")) for t in out[g]) and o.lst > g:
                        continue
                    if any(d.pos is None or pos - d.pos < (CFG.get('xd', 2) if d.cost == 8 else 1) for d in o.deps):
                        continue
                    urg = 10 ** 9
                    acc = 0
                    for o2 in lst[head[s]:]:
                        acc += o2.cost
                        urg = min(urg, (o2.lst - g + 1) * base * o2_share(s) - acc)
                    cand.append((urg, s, o))
                if not cand:
                    break
                cand.sort(key=lambda c: c[0])
                pick = None
                for urg, s, o in cand:
                    if o.cost <= rem or o.lst <= g:
                        pick = (s, o)
                        break
                if pick is None:
                    break
                s, o = pick
                out[g].append(o.text)
                o.pos = pos
                pos += 1
                head[s] += 1
                rem -= o.cost
                if rem <= 0 and not any(streams[t][head[t]].lst <= g or streams[t][head[t]].cost == 0
                                        for t in streams if head[t] < len(streams[t])):
                    break
            if any(head[s] < len(l) and l[head[s]].lst <= g for s, l in streams.items()):
                ok = False
                break
        if ok and all(head[s] == len(l) for s, l in streams.items()):
            cost = {o.text: o.cost for o in ops}
            tot = sum(max(16, 8 + sum(cost[t] for t in out[g])) for g in range(nm))
            if best is None or tot < best[0]:
                best = (tot, out, nextra)
            if nextra > best[2] + 6:
                break
    if best is None:
        raise RuntimeError("cannot schedule")
    return best


def o2_share(s):
    return {"x": 0.5, "a": 0.3, "c": 0.3, "s": 0.3}.get(s[0], 0.3)


def emit_rowmax(a, qb, nkb, dst):
    s = St(qb, 0)
    a(f"v_max3_f32 v{dst}, v{s}, v{s + 1}, v{s + 2}")
    if nkb == 2:
        a(f"v_max3_f32 v{dst}, v{dst}, v{s + 3}, v{s + 4}")
        a(f"v_max3_f32 v{dst}, v{dst}, v{s + 5}, v{s + 6}")
        a(f"v_max_f32 v{dst}, v{dst}, v{s + 7}")
    else:
        a(f"v_max_f32 v{dst}, v{dst}, v{s + 3}")
    for sw in ("v_permlane32_swap_b32", "v_permlane16_swap_b32"):
        a(f"v_mov_b32 v{VT3}, v{dst}")
        a("s_nop 1")
        a(f"{sw} v{dst}, v{VT3}")
        a("s_nop 1")
        a(f"v_max_f32 v{dst}, v{dst}, v{VT3}")


def emit_slow(a, X, nkb, tag):
    a.seg("slow_" + tag)
    a.label(f"L_slow_{tag}")
    a("s_nop 15")
    for qb in qbs(X):
        emit_rowmax(a, qb, nkb, VT)
        a(f"v_max_f32 v{VT}, 0, v{VT}")
        a(f"v_exp_f32 v{VT2}, -v{VT}")
        a("s_nop 0")
        a(f"v_mul_f32 v{L + qb}, v{L + qb}, v{VT2}")
        for i in range(32):
            o = O + qb * 32 + i
            a(f"v_mul_f32 v{o}, v{o}, v{VT2}")
        for i in range(4):
            a(f"v_sub_f32 v{NM + 4 * qb + i}, v{NM + 4 * qb + i}, v{VT}")
        for k in range(2 * nkb):
            s = St(qb, 0) + 2 * k
            a(f"v_sub_f32 v{s}, v{s}, v{VT}")
            a(f"v_sub_f32 v{s + 1}, v{s + 1}, v{VT}")
            a(f"v_exp_f32 v{E_}, v{s}")
            a(f"v_exp_f32 v{E_ + 1}, v{s + 1}")
            a("s_nop 0")
            if k == 0:
                a(f"v_add_f32 v{T + qb}, v{E_}, v{E_ + 1}")
            else:
                a(f"v_add_f32 v{T + qb}, v{T + qb}, v{E_}")
                a(f"v_add_f32 v{T + qb}, v{T + qb}, v{E_ + 1}")
            a(f"v_cvt_pk_bf16_f32 v{P + 4 * qb + k}, v{E_}, v{E_ + 1}")
    a("s_nop 7")
    a(f"s_branch L_back_{tag}")


def emit_body(a, cfg, tag, chk, last=False, nkb=2, gb=None, loop=None):
    PF = cfg["PF"]
    lead = cfg.get("lead", 3)
    mg = cfg.get("mg", 0)
    pvB, qkB, pvA, qkA = pv_order("B"), qk_order("B", nkb), pv_order("A"), qk_order("A")
    mf = [mfma_pv(*x) for x in pvB] + [mfma_qk(*x) for x in qkB]
    pA0 = len(mf)
    mf += [mfma_pv(*x) for x in pvA]
    qA0 = len(mf)
    if not last:
        mf += [mfma_qk(*x) for x in qkA]
    gpos = []
    if gb is not None:
        for k, at in enumerate(cfg.get("gslots", [40, 47, 54, 61])):
            d = ar(AAG + 8 * gb + 4 * (k >> 1), 4)
            mf.insert(at, f"{MF} {d}, {ar(AAH + 4 * (k & 1), 4)}, {ar(ABUF + 16 * gb + 4 * k, 4)}, {d}")
            gpos.append(at)
            if at <= qA0:
                qA0 += 1
    nm = len(mf)
    ops = []
    lds = []
    if gb is not None:
        lds.append(Op(f"ds_read_b128 {vr(GI, 4)}, v{GLA} offset:{gb * RSZ + LOFF}", 4, 2, 7, stream="l"))
        for k, at in enumerate(gpos):
            ad = Op(f"v_add_u32 v{GI + k}, v{GI + k}, v{GOFF}", 4, pA0, at - 1, stream="g")
            ops += [ad, Op(f"buffer_load_dwordx4 {ar(ABUF + 16 * gb + 4 * k, 4)}, v{GI + k}, s[{SMP}:{SMP + 3}], 0 offen offset:{12 - 4 * k}",
                           cfg.get("dmacost", 8), at, at, [ad], stream="g")]
        if gb == 2:
            ops.append(Op(f"v_add_u32 v{GLA}, 256, v{GLA}", 4, 10, nm - 1, stream="y"))
    for db in range(8):
        lds.append(Op(f"ds_read_b128 {ar(AV + 4 * db, 4)}, v{VLDS} offset:{8192 + 1024 * db}", 4, 8 + db, pA0 - 6, stream="l"))
    if not last:
        kf = sorted(range(8), key=lambda f: max(i for i, x in enumerate(qkB) if x[1] * 4 + x[2] == f))
        for n, f in enumerate(kf):
            g = 16 + max(i for i, x in enumerate(qkB) if x[1] * 4 + x[2] == f)
            lds.append(Op(f"ds_read_b128 {ar(AK + 4 * f, 4)}, v{VLDS} offset:{1024 * f}", 4, g, qA0 - 6, stream="l"))
        adv = Op(f"v_add_u32 v{VLDS}, 0x4000, v{VLDS}", 4, 0, nm - 1, [lds[-1]], stream="z")
        ops += [adv, Op(f"v_and_b32 v{VLDS}, 0x1ffff, v{VLDS}", 4, 0, nm - 1, [adv], stream="z")]
        dg = cfg.get("dgaps", [0, 1, 33, 34])
        for k in range(4):
            ops.append(Op(f"buffer_load_dwordx4 v{VL16}, {KVS}, s{S_SRC} offen offset:{1024 * k} lds", cfg.get("dmacost", 8),
                          dg[k], dg[k], stream="d"))
    ops += lds
    finA = {}
    for i, (qb, kb, s_) in enumerate(qkA):
        finA[qb, kb] = i
    rdy = {t: max(0, finA[t] - len(qkA) + 1 + lead) for t in finA}
    rdy["p", 0] = rdy["p", 1] = 0
    ops += sm_group("A", nkb, tag + "A", chk, rdy, {0: pA0 - 1 - mg, 1: pA0 + 7 - mg, "end": qA0 - 2})
    finB = {}
    for i, (qb, kb, s_) in enumerate(qkB):
        finB[qb, kb] = i
    rdy = {t: 16 + finB[t] + 1 + lead for t in finB}
    rdy["p", 2], rdy["p", 3] = 8, 16
    ops += sm_group("B", nkb, tag + "B", chk, rdy, {2: nm - 1 - mg, 3: nm - 1, "end": nm - 1})
    tot, gaps, nx = schedule(ops, nm)
    if cfg.get("verbose"):
        print("body", tag, "model cycles", tot, "extra", nx)
    if cfg.get("memfirst"):
        for g in range(nm):
            gaps[g].sort(key=lambda t: 0 if t.startswith(("ds_", "buffer")) else 1)
    if cfg.get("explast"):
        for g in range(nm):
            if not any("L_back" in t for t in gaps[g]):
                gaps[g].sort(key=lambda t: 1 if t.startswith("v_exp") else 0)
    order = [t for g in range(nm) for t in gaps[g]]

    def nlds_after(g_end, first_k):
        n = 0
        for g in range(g_end):
            n += sum(1 for t in gaps[g] if t.startswith("ds_read") and f"offset:{0}" is not None and "a[" in t and int(t.split("a[")[1].split(":")[0]) < AV)
        return n

    gaps[pA0 - 1].append(f"s_waitcnt lgkmcnt({nlds_after(pA0, 0)})")
    if not last:
        gaps[qA0 - 1].append("s_waitcnt lgkmcnt(0)")
        lastd = max(dg)
        gaps[lastd + 2].insert(0, f"s_add_u32 s{S_M0}, s{S_M0}, 0x4000")
        gaps[lastd + 3].insert(0, f"s_and_b32 m0, s{S_M0}, 0x1ffff")
        gaps[lastd + 4].insert(0, f"s_add_u32 s{S_SRC}, s{S_SRC}, 0x2000")
        if gb is None or gb == 2:
            gaps[lastd + 5].insert(0, f"s_sub_u32 s{S_CNT}, s{S_CNT}, 1")
            gaps[nm - 2].insert(0, f"s_cmp_lg_u32 s{S_CNT}, 0")
            gaps[nm - 1].append(f"s_cbranch_scc1 L_body_{loop or tag}")
        for at in gpos:
            gaps[at - 1].append("s_waitcnt vmcnt(23)")
    a.seg("body_" + tag)
    a.label(f"L_body_{tag}")
    a(f"s_waitcnt vmcnt({4 * (PF - 1) if gb is None else 24})")
    a("s_barrier")
    for g in range(nm):
        a(mf[g])
        for t in gaps[g]:
            a(t)
    if last:
        fill = []
        for qb in range(2):
            for p in range(4):
                t = 26 + 4 * (p % 2)
                for d in range(4):
                    src = O + (qb * 8 + 2 * p) * 4 + 2 * d
                    fill.append(f"v_cvt_pk_bf16_f32 v{t + d}, v{src}, v{src + 1}")
                fill.append(f"buffer_store_dwordx4 {vr(t, 4)}, v{VL16}, {SRD}, s{S_PA + qb} offen offset:{1024 * p} sc1")
        a("s_nop 1")
        for n, x in enumerate(pvB):
            a(mfma_pv(*x))
            for t in fill[(5 * n) // 2:(5 * (n + 1)) // 2]:
                a(t)


SX, SDG, SOUT = 32, 36, 40
S_REC, S_CAP, S_MAXC, S_N, S_I, S_MASK, S_FLG, S_NOWN = 48, 49, 50, 51, 52, 53, 54, 55
SMK = 64
VX = 15
VDC = 16
VRB, VDUM, VDREC = 17, 18, 19


def emit_region_reset(a):
    a(f"""
    v_and_b32 v2, 63, v0
    v_and_b32 v3, 15, v0
    v_lshl_add_u32 v3, v3, 2, v{VRB}
    v_mov_b32 v4, 0
    v_lshl_add_u32 v5, v2, 4, v{VRB}
    ds_write_b32 v3, v4
    v_mov_b32 v4, 0x40000000
    ds_write_b32 v{VDC}, v4
    v_mov_b32 v6, {SENT}
    v_mov_b32 v7, {SENT}
    v_mov_b32 v8, {SENT}
    v_mov_b32 v9, {SENT}
    v_lshl_add_u32 v3, v2, 3, v{VRB}
    """)
    for k in range(4):
        a(f"ds_write_b128 v5, v[6:9] offset:{LOFF + 1024 * k}")
    a(f"ds_write_b64 v3, v[6:7] offset:{LOFF + 4096}")


def emit_careful(a, tag, ret):
    a.seg("careful_" + tag)
    a.label(f"L_car_{tag}")
    a("s_nop 7")
    emit_region_reset(a)
    a(f"""
    v_mov_b32 v10, 1
    v_mov_b32 v11, v{VSEG}
    v_mov_b32 v12, 0
    s_mov_b32 s{S_I}, 0
    s_waitcnt lgkmcnt(0)
    """)
    a.label(f"L_car_loop_{tag}")
    a(f"""
    s_lshl_b32 s{S_T0}, s{S_I}, 2
    v_add_u32 v{BT}, s{S_T0}, v{VSEG}
    buffer_load_dwordx4 {vr(RC, 4)}, v{BT}, {SRD}, s{S_REC} offen sc1
    s_waitcnt vmcnt(0)
    """)
    for k in range(4):
        r = RC + k
        a(f"""
        v_cmp_lt_u32 s[{SMK}:{SMK + 1}], s{S_I}, v{VREM}
        s_add_u32 s{S_I}, s{S_I}, 1
        v_and_or_b32 v{BT}, v{r}, 60, v{VRB}
        v_cndmask_b32 v{BT}, v{VDC}, v{BT}, s[{SMK}:{SMK + 1}]
        ds_add_rtn_u32 v{BT + 1}, v{BT}, v10
        s_waitcnt lgkmcnt(0)
        v_cmp_le_u32 vcc, s{S_CAP}, v{BT + 1}
        v_min_u32 v{BT + 1}, s{S_CAP}, v{BT + 1}
        v_lshl_add_u32 v{BT}, v{BT + 1}, 6, v{BT}
        ds_write_b32 v{BT}, v{r} offset:{LOFF}
        s_and_b64 vcc, s[{SMK}:{SMK + 1}], vcc
        s_nop 0
        v_cndmask_b32 v{BT}, v{VOOB}, v11, vcc
        v_cndmask_b32 v{BT + 1}, 0, v10, vcc
        buffer_store_dword v{r}, v{BT}, {SRD}, s{S_REC} offen sc1
        v_add_u32 v12, v12, v{BT + 1}
        v_lshl_add_u32 v11, v{BT + 1}, 2, v11
        """)
    a(f"""
    v_cmp_lt_u32 vcc, s{S_I}, v{VREM}
    s_cbranch_vccnz L_car_loop_{tag}
    v_mov_b32 v{VREM}, v12
    s_waitcnt vmcnt(0) lgkmcnt(0)
    s_branch {ret}
    """)


def emit_k2(a, cfg):
    PF = cfg["PF"]
    NB0 = cfg.get("NB0", 3)
    NBR = cfg.get("NBR", 2)
    OSC = {0: "", 1: " sc1", 2: " nt", 3: " sc0 sc1"}[cfg.get("osc", 0)]
    CFG.clear()
    CFG.update(cfg)
    LIM = cfg.get("lim", NWG)
    name = "k2_attn_kernel"
    if cfg.get("map", 0) == 0:
        mapping = f"""s_and_b32 s{S_T0}, s2, 7
    s_mul_i32 s{S_T0}, s{S_T0}, {NWG // 8}
    s_lshr_b32 s{S_T1}, s2, 3
    s_add_u32 s{S_T0}, s{S_T0}, s{S_T1}          ; g
    s_mul_i32 s{S_SPLIT}, s{S_T0}, 1639
    s_lshr_b32 s{S_SPLIT}, s{S_SPLIT}, 16        ; split = g / 40
    s_mul_i32 s{S_T1}, s{S_SPLIT}, 40
    s_sub_u32 s{S_QT}, s{S_T0}, s{S_T1}          ; q tile"""
    else:
        mapping = f"""s_and_b32 s{S_T0}, s2, 7
    s_mul_i32 s{S_T0}, s{S_T0}, 5
    s_lshr_b32 s{S_T1}, s2, 3
    s_mul_i32 s{S_QT}, s{S_T1}, 43
    s_lshr_b32 s{S_QT}, s{S_QT}, 8               ; j / 6
    s_mul_i32 s{S_SPLIT}, s{S_QT}, 6
    s_sub_u32 s{S_SPLIT}, s{S_T1}, s{S_SPLIT}
    s_add_u32 s{S_QT}, s{S_QT}, s{S_T0}"""
    a.raw(".text")
    a.raw(f".globl {name}\n.p2align 8\n.type {name},@function")
    a.label(name)
    a.seg("k2_pro0")
    a(f"""
    s_cmp_ge_u32 s2, {LIM}
    s_cbranch_scc1 L_k2_end
    """)
    if cfg.get("tl") or cfg.get("stamp"):
        a("s_memrealtime s[84:85]")
    a(f"""
    s_load_dwordx2 s[{S_SRD}:{S_SRD + 1}], s[0:1], 88
    s_load_dwordx2 s[{SX}:{SX + 1}], s[0:1], 0
    s_load_dwordx2 s[{SDG}:{SDG + 1}], s[0:1], 24
    s_load_dwordx2 s[{SOUT}:{SOUT + 1}], s[0:1], 72
    v_lshrrev_b32 v1, 6, v0
    v_and_b32 v2, 63, v0
    v_readfirstlane_b32 s{S_W}, v1
    v_lshlrev_b32 v{VL16}, 4, v2
    v_lshlrev_b32 v12, 2, v2
    {mapping}
    s_mov_b32 s{S_SRD + 2}, 0x10000000
    s_mov_b32 s{S_SRD + 3}, 0x00020000
    s_mov_b32 s{SX + 2}, {N * 256}
    s_mov_b32 s{SX + 3}, 0x00020000
    s_mov_b32 s{SDG + 2}, {N * 2}
    s_mov_b32 s{SDG + 3}, 0x00020000
    s_mov_b32 s{SOUT + 2}, {N * 256}
    s_mov_b32 s{SOUT + 3}, 0x00020000
    s_mov_b32 s{SMP + 2}, {N * 256}
    s_mov_b32 s{SMP + 3}, 0x00020000
    s_mov_b32 s{S_THR}, 0x4b800000               ; 2^24
    s_lshl_b32 s{S_T0}, s{S_W}, 12
    s_mul_i32 s{S_SRC0}, s{S_SPLIT}, {52 * 8192}
    s_add_u32 s{S_SRC0}, s{S_SRC0}, s{S_T0}
    s_mov_b32 s{S_T1}, {KF}
    s_cmp_lt_u32 s{S_W}, 2
    s_cselect_b32 s{S_T1}, s{S_T1}, {VF - 8192 - 8192}
    s_add_u32 s{S_SRC0}, s{S_SRC0}, s{S_T1}
    s_lshl_b32 s{S_Q0}, s{S_QT}, 16
    s_lshl_b32 s{S_T1}, s{S_W}, 14
    s_add_u32 s{S_Q0}, s{S_Q0}, s{S_T1}
    s_add_u32 s{S_Q0}, s{S_Q0}, {QF}
    s_add_u32 s{S_Q0 + 1}, s{S_Q0}, 0x1000
    s_add_u32 s{S_Q0 + 2}, s{S_Q0}, 0x2000
    s_add_u32 s{S_Q0 + 3}, s{S_Q0}, 0x3000
    s_mul_i32 s{S_T1}, s{S_QT}, 6
    s_add_u32 s{S_T1}, s{S_T1}, s{S_SPLIT}
    s_lshl_b32 s{S_PO}, s{S_T1}, 16
    s_lshl_b32 s{S_T0}, s{S_W}, 14
    s_add_u32 s{S_PO}, s{S_PO}, s{S_T0}
    s_add_u32 s{S_PO}, s{S_PO}, {PO}
    s_lshl_b32 s{S_PL}, s{S_T1}, 11
    s_lshl_b32 s{S_T0}, s{S_W}, 9
    s_add_u32 s{S_PL}, s{S_PL}, s{S_T0}
    s_add_u32 s{S_PL}, s{S_PL}, {PL}
    s_lshl_b32 s{S_T0}, s{S_W}, 2
    s_lshl_b32 s{S_OWN}, {1 | 1 << 6 | 1 << 12}, s{S_SPLIT}
    s_lshr_b32 s{S_OWN}, s{S_OWN}, s{S_T0}
    s_bitcmp1_b32 s{S_OWN}, 0
    s_cselect_b32 s{S_PA}, 0x7fff0000, s{S_PO}
    s_add_u32 s{S_T0}, s{S_PO}, 4096
    s_bitcmp1_b32 s{S_OWN}, 1
    s_cselect_b32 s{S_PA + 1}, 0x7fff0000, s{S_T0}
    v_mov_b32 v{VX}, 0x7fff0000
    s_mov_b32 s{S_U}, 51
    s_cmp_eq_u32 s{S_SPLIT}, 5
    s_cselect_b32 s{S_U}, 52, s{S_U}
    s_mov_b32 s{S_MODE}, 0
    s_add_u32 s{S_T0}, s{S_U}, 1
    s_cmp_lt_u32 s{S_W}, 2
    s_cselect_b32 s{S_T1}, 0, 1
    s_add_u32 s{S_T0}, s{S_T0}, s{S_T1}
    s_lshl_b32 s{S_T0}, s{S_T0}, 13
    s_add_u32 s{SKV + 2}, s{S_SRC0}, s{S_T0}
    s_sub_u32 s{SKV + 2}, s{SKV + 2}, 4096
    s_mov_b32 s{SKV + 3}, 0x00020000
    s_mov_b32 s{S_REC}, {REC}
    s_mov_b32 s{S_K0}, {KF}
    s_mov_b32 s{S_CAP}, {CAP}
    s_lshl_b32 s{S_FLG}, s{S_QT}, 7
    s_add_u32 s{S_FLG}, s{S_FLG}, {FLG}
    s_mul_i32 s{S_T0}, s{S_W}, 6
    s_add_u32 s{S_T0}, s{S_T0}, s{S_SPLIT}
    s_lshl_b32 s{S_T1}, s{S_QT}, 4
    s_add_u32 s{S_T1}, s{S_T1}, s{S_T0}
    s_cmp_lt_u32 s{S_T0}, 16
    s_cselect_b32 s{S_MASK}, -1, 0
    s_cmp_lt_u32 s{S_T1}, {N // 16}
    s_cselect_b32 s{S_MASK}, s{S_MASK}, 0
    s_lshl_b32 s{S_I}, s{S_T1}, 8
    s_add_u32 s{S_I}, s{S_I}, {TAB}
    s_mul_i32 s{S_T0}, s{S_W}, {RSZ}
    s_add_u32 s{S_T0}, s{S_T0}, {RB}
    v_mov_b32 v{VRB}, s{S_T0}
    s_add_u32 s{S_T0}, s{S_T0}, 64
    v_add_u32 v{VDC}, s{S_T0}, v12
    v_mov_b32 v{VOOB}, 0x7fffffff
    v_mov_b32 v4, 0
    v_mov_b32 v5, {LDS_FLAG}
    ds_write_b32 v5, v4
    """)
    emit_region_reset(a)
    a(f"""
    s_waitcnt lgkmcnt(0)
    s_and_b32 s{S_SRD + 1}, s{S_SRD + 1}, 0xffff
    s_and_b32 s{SX + 1}, s{SX + 1}, 0xffff
    s_and_b32 s{SDG + 1}, s{SDG + 1}, 0xffff
    s_and_b32 s{SOUT + 1}, s{SOUT + 1}, 0xffff
    s_mov_b32 s{SKV}, s{S_SRD}
    s_mov_b32 s{SKV + 1}, s{S_SRD + 1}
    s_add_u32 s{SMP}, s{S_SRD}, {MP}
    s_addc_u32 s{SMP + 1}, s{S_SRD + 1}, 0
    buffer_load_dword v{VREM}, v12, {SRD}, s{S_I} offen
    """)
    def lane_setup():
        a(f"""
        v_bfe_u32 v2, v0, 2, 2
        v_and_b32 v3, 3, v0
        v_bfe_u32 v4, v0, 4, 2
        s_lshl_b32 s{S_T0}, s{S_W}, 6
        s_sub_u32 s{S_T1}, s{S_T0}, 12
        v_lshlrev_b32 v{GOFF}, 4, v3
        v_add_u32 v{GOFF}, s{S_T1}, v{GOFF}
        v_lshlrev_b32 v5, 4, v2
        v_sub_u32 v{GOFF}, v{GOFF}, v5               ; 64w + 16q - 16n' - 12
        v_lshlrev_b32 v{GLA}, 4, v2
        v_lshl_add_u32 v{GLA}, v4, 6, v{GLA}
        v_add_u32 v{GLA}, {RB}, v{GLA}
        """)

    def maxc():
        a(f"""
        v_and_b32 v6, 15, v0
        v_bfe_u32 v7, v0, 4, 2
        v_mul_u32_u24 v7, {RSZ}, v7
        v_lshl_add_u32 v7, v6, 2, v7
        v_add_u32 v7, {RB}, v7
        ds_read_b32 v9, v7
        s_waitcnt lgkmcnt(0)
        """)
        for sh in ("row_shr:1", "row_shr:2", "row_shr:4", "row_shr:8"):
            a(f"v_max_u32_dpp v9, v9, v9 {sh} row_mask:0xf bank_mask:0xf")
            a("s_nop 1")
        a("v_max_u32_dpp v9, v9, v9 row_bcast:15 row_mask:0xa bank_mask:0xf")
        a("s_nop 1")
        a("v_max_u32_dpp v9, v9, v9 row_bcast:31 row_mask:0xc bank_mask:0xf")
        a("s_nop 1")
        a(f"v_readlane_b32 s{S_MAXC}, v9, 63")
        a("s_nop 3")
        a(f"s_min_u32 s{S_N}, s{S_MAXC}, {CAP}")
        a(f"s_add_u32 s{S_N}, s{S_N}, 3")
        a(f"s_lshr_b32 s{S_N}, s{S_N}, 2")

    if cfg.get("ptl"):
        a("s_memrealtime s[98:99]")
    a.label("L_k2_restart")
    a.seg("k2_pro")
    a(f"s_mov_b32 s{S_SRC}, s{S_SRC0}")
    a(f"s_lshl_b32 s{S_M0}, s{S_W}, 12")
    a(f"s_mov_b32 m0, s{S_M0}")
    a(f"s_mov_b32 s{S_LEFT}, s{S_U}")

    def dma_stage():
        for k in range(4):
            a(f"buffer_load_dwordx4 v{VL16}, {KVS}, s{S_SRC} offen offset:{1024 * k} lds")

    def dma_adv():
        a(f"s_add_u32 s{S_M0}, s{S_M0}, 0x4000")
        a(f"s_and_b32 m0, s{S_M0}, 0x1ffff")
        a(f"s_add_u32 s{S_SRC}, s{S_SRC}, 0x2000")

    for i in range(8):
        a(f"v_mov_b32 v{P + 8 + i}, 0")
    zq = [f"v_mfma_f32_32x32x16_bf16 {vr(O + 16 * i, 16)}, {vr(P + 8, 4)}, {vr(P + 8, 4)}, 0" for i in range(8)]
    zq += [f"v_mfma_f32_32x32x16_bf16 {ar(AV + 16 * i, 16)}, {vr(P + 8, 4)}, {vr(P + 8, 4)}, 0" for i in range(2)]
    for s_ in range(4):
        a(f"buffer_load_dwordx4 {ar(AK + 16 + 4 * s_, 4)}, v{VL16}, {SRD}, s{S_K0} offen offset:{1024 * s_}")
    for i in range(16):
        a(f"buffer_load_dwordx4 {ar(4 * i, 4)}, v{VL16}, {SRD}, s{S_Q0 + (i >> 2)} offen offset:{1024 * (i & 3)}")
        if i % 2 == 1:
            a(zq.pop())
    for st in range(2):
        dma_stage()
        dma_adv()
        a(zq.pop())
    assert not zq
    a(f"s_cmp_lg_u32 s{S_MODE}, 0")
    a("s_cbranch_scc1 L_k2_nosetup")
    lane_setup()
    a(f"""
    v_and_b32 v6, 15, v0
    v_and_b32 v7, 1, v6
    v_lshlrev_b32 v7, 4, v7
    v_mov_b32 v8, 0x3f80
    v_lshlrev_b32 v7, v7, v8                     ; value
    v_lshrrev_b32 v6, 1, v6                      ; 0..7 = (h, dword)
    """)
    for k in range(8):
        a(f"v_cmp_eq_u32 s[{SMK + 2 * k}:{SMK + 2 * k + 1}], {k}, v6")
    for k in range(8):
        a(f"v_cndmask_b32 v{BT + k}, 0, v7, s[{SMK + 2 * k}:{SMK + 2 * k + 1}]")
    for k in range(8):
        a(f"v_accvgpr_write_b32 a{AAH + k}, v{BT + k}")
    Z = vr(P + 8, 4)
    for i in range(4):
        a(f"v_mfma_f32_32x32x16_bf16 {ar(ABUF + 16 * i, 16)}, {Z}, {Z}, 0")
    for i in range(2):
        a(f"{MF} {ar(ABUF + 64 + 4 * i, 4)}, {Z}, {Z}, 0")
    a.label("L_k2_nosetup")
    a.seg("k2_pro2")
    for qb in range(NQ):
        a(f"v_mov_b32 v{L + qb}, 0")
    a(f"v_add_u32 v{VLDS}, 0x4000, v{VL16}")
    if cfg.get("ptl"):
        a("s_memrealtime s[62:63]")
    a("s_waitcnt vmcnt(8)")
    if cfg.get("ptl"):
        a("s_memrealtime s[60:61]")
    dq = []
    for st in range(PF - 1):
        dq += [[f"buffer_load_dwordx4 v{VL16}, {KVS}, s{S_SRC} offen offset:{1024 * k} lds"] for k in range(4)]
        dq[-1] += [f"s_add_u32 s{S_M0}, s{S_M0}, 0x4000", f"s_and_b32 m0, s{S_M0}, 0x1ffff", f"s_add_u32 s{S_SRC}, s{S_SRC}, 0x2000"]
    n = 0
    for s_ in range(4):
        for qb in range(4):
            d = vr(St(qb, 1), 4)
            a(f"{MF} {d}, {ar(AK + 16 + 4 * s_, 4)}, {ar(AQ + (qb * 4 + s_) * 4, 4)}, {'0' if s_ == 0 else d}")
            if n % 4 == 1:
                for t in dq.pop(0):
                    a(t)
            n += 1
    a("s_waitcnt vmcnt(8)")
    a("s_barrier")
    if cfg.get("ptl"):
        a("s_memrealtime s[56:57]")
    for s in range(8):
        a(f"ds_read_b128 {ar(AK + 4 * s, 4)}, v{VL16} offset:{1024 * s}")
    a("s_nop 1")
    for qb in range(4):
        s0 = St(qb, 1)
        a(f"v_max3_f32 v{s0}, v{s0}, v{s0 + 1}, v{s0 + 2}")
    for qb in range(4):
        s0 = St(qb, 1)
        a(f"v_max_f32 v{s0}, v{s0}, v{s0 + 3}")
    for sw in ("v_permlane32_swap_b32", "v_permlane16_swap_b32"):
        for qb in range(4):
            a(f"v_mov_b32 v{St(qb, 1) + 1}, v{St(qb, 1)}")
        a("s_nop 0")
        for qb in range(4):
            a(f"{sw} v{St(qb, 1)}, v{St(qb, 1) + 1}")
        a("s_nop 0")
        for qb in range(4):
            a(f"v_max_f32 v{St(qb, 1)}, v{St(qb, 1)}, v{St(qb, 1) + 1}")
    for qb in range(4):
        for i in range(4):
            a(f"v_sub_f32 v{NM + 4 * qb + i}, 0, v{St(qb, 1)}")
    a("s_waitcnt lgkmcnt(0)")
    for n, x in enumerate(qk_order("A")):
        a(mfma_qk(*x))
        if n % 2 == 0 and dq:
            for t in dq.pop(0):
                a(t)
    assert not dq
    if cfg.get("stamp"):
        a("s_memtime s[90:91]")
        a("s_memrealtime s[92:93]")
        a("s_waitcnt lgkmcnt(0)")
    a(f"s_cmp_lg_u32 s{S_MODE}, 0")
    a("s_cbranch_scc1 L_safe")
    if cfg.get("ptl"):
        a("s_memrealtime s[58:59]")
        a("s_waitcnt lgkmcnt(0)")
    a(f"s_mov_b32 s{S_CNT}, {NBR}")
    a(f"s_mov_b32 s{S_EV}, 0")
    a.raw(".p2align 6")
    emit_body(a, cfg, "m", False)
    a.seg("k2_mid")
    a(f"s_add_u32 s{S_EV}, s{S_EV}, 1")
    a(f"s_cmp_eq_u32 s{S_EV}, 4")
    a("s_cbranch_scc1 L_loop_done")
    a(f"s_cmp_eq_u32 s{S_EV}, 3")
    a("s_cbranch_scc1 L_ev_g")
    a(f"s_cmp_eq_u32 s{S_EV}, 2")
    a("s_cbranch_scc1 L_ev_b")
    a.seg("k2_evr")
    a(f"""
    v_and_b32 v{VREM}, s{S_MASK}, v{VREM}
    v_and_b32 v2, 63, v0
    v_mul_u32_u24 v2, {RECS}, v2
    v_and_b32 v3, 0xffff, v{VREM}
    v_lshl_add_u32 v{VSEG}, v3, 2, v2
    v_lshrrev_b32 v{VREM}, 16, v{VREM}
    """)
    for k in range(NSLOT // 4):
        a(f"buffer_load_dwordx4 {vr(RC + 4 * k, 4)}, v{VSEG}, {SRD}, s{S_REC} offen offset:{16 * k}")
    a(f"s_mov_b32 s{S_CNT}, {NB0}")
    a("s_branch L_body_m")
    a.label("L_ev_b")
    a.seg("k2_ev")
    if cfg.get("ptl"):
        a("s_memrealtime s[100:101]")
        a("s_waitcnt lgkmcnt(0)")
    a(f"s_waitcnt vmcnt({4 * NB0})")
    a("v_mov_b32 v12, 1")
    RK = 4
    for grp in range(NSLOT // 8):
        for k in range(8):
            a(f"v_cmp_lt_u32 s[{SMK + 2 * k}:{SMK + 2 * k + 1}], {8 * grp + k}, v{VREM}")
        for k in range(8):
            a(f"v_and_or_b32 v{BT + k}, v{RC + 8 * grp + k}, 60, v{VRB}")
        if grp:
            a(f"s_cmp_eq_u64 s[{SMK}:{SMK + 1}], 0")
            a("s_cbranch_scc1 L_ev_built")
        for k in range(8):
            a(f"v_cndmask_b32 v{BT + k}, v{VDC}, v{BT + k}, s[{SMK + 2 * k}:{SMK + 2 * k + 1}]")
            a(f"ds_add_rtn_u32 v{RK + k}, v{BT + k}, v12")
        for k in range(8):
            a(f"s_waitcnt lgkmcnt(7)")
            a(f"v_min_u32 v{RK + k}, s{S_CAP}, v{RK + k}")
            a(f"v_lshl_add_u32 v{BT + k}, v{RK + k}, 6, v{BT + k}")
            a(f"ds_write_b32 v{BT + k}, v{RC + 8 * grp + k} offset:{LOFF}")
    a.label("L_ev_built")
    a(f"""
    v_and_b32 v2, 15, v0
    v_lshl_add_u32 v2, v2, 2, v{VRB}
    ds_read_b32 v3, v2
    v_cmp_lt_u32 s[{SMK}:{SMK + 1}], {NSLOT}, v{VREM}
    s_waitcnt lgkmcnt(0)
    v_cmp_lt_u32 vcc, s{S_CAP}, v3
    s_nop 3
    s_or_b64 vcc, vcc, s[{SMK}:{SMK + 1}]
    s_cbranch_vccnz L_car_e
    v_mov_b32 v{VREM}, 0
    """)
    a.label("L_ev_ret")

    a(f"s_mov_b32 s{S_CNT}, 1")
    a("s_branch L_body_m")
    a.label("L_ev_g")
    a.seg("k2_evg")
    maxc()
    a(f"""
    s_min_u32 s{S_CNT}, s{S_N}, {NGMAX}
    s_max_u32 s{S_CNT}, s{S_CNT}, 1
    s_sub_u32 s{S_N}, s{S_N}, s{S_CNT}
    s_mul_i32 s{S_T0}, s{S_CNT}, 3
    s_sub_u32 s{S_LEFT}, s{S_LEFT}, s{S_T0}
    s_sub_u32 s{S_LEFT}, s{S_LEFT}, {NBR + NB0 + 1}
    v_bfe_u32 v2, v0, 2, 2
    v_and_b32 v3, 3, v0
    v_bfe_u32 v4, v0, 4, 2
    s_lshl_b32 s{S_T0}, s{S_W}, 6
    s_lshl_b32 s{S_T1}, s{S_QT}, 4
    s_add_u32 s{S_T1}, s{S_T1}, s{S_SPLIT}
    s_lshl_b32 s{S_I}, s{S_T1}, 12
    s_add_u32 s{S_I}, s{S_I}, s{S_T0}
    v_lshrrev_b32 v5, 1, v4
    v_lshl_add_u32 v5, v5, 2, v2
    v_and_b32 v6, 1, v4
    v_lshlrev_b32 v{VX}, 8, v5
    v_lshl_add_u32 v{VX}, v6, 5, v{VX}
    v_lshl_add_u32 v{VX}, v3, 3, v{VX}
    v_add_u32 v{VX}, s{S_I}, v{VX}
    v_add_u32 v10, {6 * 4096}, v{VX}
    v_add_u32 v11, {12 * 4096}, v{VX}
    s_lshl_b32 s{S_I}, s{S_T1}, 5
    v_lshlrev_b32 v5, 1, v5
    v_add_u32 v5, s{S_I}, v5
    s_waitcnt vmcnt(0)
    """)
    for b in range(3):
        for m in range(2):
            a(f"buffer_load_dwordx2 {ar(AXV + 4 * b + 2 * m, 2)}, v{[VX, 10, 11][b]}, s[{SX}:{SX + 3}], 0 offen offset:{2048 * m}")
            a(f"buffer_load_ushort a{ADI + 2 * b + m}, v5, s[{SDG}:{SDG + 3}], 0 offen offset:{192 * b + 16 * m}")
    a.raw(".p2align 6")
    for gb in range(3):
        emit_body(a, cfg, f"g{gb}", False, gb=gb, loop="g0")
    a.seg("k2_gx")
    a(f"s_mov_b32 s{S_CNT}, s{S_LEFT}")
    a(f"s_cmp_lg_u32 s{S_LEFT}, 0")
    a("s_cbranch_scc1 L_body_m")
    a.label("L_loop_done")
    a.seg("k2_mid2")
    if cfg.get("stamp"):
        a("s_memtime s[94:95]")
        a("s_memrealtime s[96:97]")
        a(f"s_load_dwordx2 s[64:65], s[0:1], 80")
        a("s_waitcnt lgkmcnt(0)")
        a("s_sub_u32 s94, s94, s90")
        a("s_sub_u32 s96, s96, s92")
        a("v_mov_b32 v2, s94")
        a("v_mov_b32 v3, s96")
        a("s_and_b32 s65, s65, 0xffff")
        a("s_mov_b32 s66, 256")
        a("s_mov_b32 s67, 0x00020000")
        a("s_lshr_b32 s72, s2, 3")
        a("s_lshl_b32 s72, s72, 3")
        a("v_mov_b32 v4, s72")
        a("s_and_b32 s73, s2, 7")
        a(f"s_or_b32 s73, s73, s{S_W}")
        a("s_cmp_lg_u32 s73, 0")
        a("s_cbranch_scc1 L_nostamp")
        a("buffer_store_dwordx2 v[2:3], v4, s[64:67], 0 offen")
        a.label("L_nostamp")
    a(f"s_cmp_eq_u32 s{S_SPLIT}, 5")
    a("s_cbranch_scc1 L_body_lm")
    emit_body(a, cfg, "lf", False, last=True, nkb=2)
    a("s_branch L_k2_chk")
    emit_body(a, cfg, "lm", False, last=True, nkb=1)
    a.label("L_k2_chk")
    a.seg("k2_chk")
    a(f"""
    v_max3_f32 v4, v{L}, v{L + 1}, v{L + 2}
    v_max_f32 v4, v4, v{L + 3}
    v_add_f32 v6, v{L}, v{L + 1}
    v_add_f32 v7, v{L + 2}, v{L + 3}
    v_add_f32 v6, v6, v7
    s_mov_b32 s{S_T0}, 0x53800000
    v_cmp_ngt_f32 vcc, s{S_T0}, v4
    v_cmp_u_f32 s[{SMK}:{SMK + 1}], v6, v6
    v_mov_b32 v5, {LDS_FLAG}
    v_mov_b32 v4, 1
    s_or_b64 vcc, vcc, s[{SMK}:{SMK + 1}]
    s_cbranch_vccz L_k2_chk2
    ds_write_b32 v5, v4
    """)
    a.label("L_k2_chk2")
    a(f"""
    s_waitcnt vmcnt(8) lgkmcnt(0)
    s_barrier
    ds_read_b32 v4, v5
    s_waitcnt lgkmcnt(0)
    v_readfirstlane_b32 s{S_T0}, v4
    s_nop 3
    s_cmp_eq_u32 s{S_T0}, 0
    s_cbranch_scc1 L_k2_epi
    s_waitcnt vmcnt(0)
    s_barrier
    """)
    a(f"s_mov_b32 s{S_MODE}, 1")
    a("s_branch L_k2_restart")
    a.label("L_safe")
    a.seg("k2_safe0")
    a(f"s_mov_b32 s{S_CNT}, s{S_LEFT}")
    emit_body(a, cfg, "s", True)
    a.seg("k2_smid")
    a(f"s_cmp_eq_u32 s{S_SPLIT}, 5")
    a("s_cbranch_scc1 L_body_sm")
    emit_body(a, cfg, "sf", True, last=True, nkb=2)
    a("s_branch L_k2_epi0")
    emit_body(a, cfg, "sm", True, last=True, nkb=1)
    a.label("L_k2_epi0")
    a.seg("k2_epi0")
    a("s_nop 7")
    a("s_waitcnt vmcnt(8) lgkmcnt(0)")
    a("s_barrier")
    a.label("L_k2_epi")
    a.seg("k2_epi")
    if cfg.get("tl") and not cfg.get("ptl"):
        a("s_memrealtime s[98:99]")
    VPLA = 8
    smp = f"s[{SMP}:{SMP + 3}]"

    def consume_all():
        for b in range(3):
            for k in range(4):
                d = ar(AAG + 8 * b + 4 * (k >> 1), 4)
                a(f"{MF} {d}, {ar(AAH + 4 * (k & 1), 4)}, {ar(ABUF + 16 * b + 4 * k, 4)}, {d}")

    def publish():
        for sw in ("v_permlane32_swap_b32", "v_permlane16_swap_b32"):
            for qb in range(NQ):
                a(f"v_mov_b32 v{T + qb}, v{L + qb}")
            a("s_nop 0")
            for qb in range(NQ):
                a(f"{sw} v{L + qb}, v{T + qb}")
            a("s_nop 0")
            for qb in range(NQ):
                a(f"v_add_f32 v{L + qb}, v{L + qb}, v{T + qb}")
        for qb in range(NQ):
            a(f"v_mov_b32 v{57 + 2 * qb}, v{L + qb}")
        n = 0
        for qb in (2, 3, 0, 1):
            a(f"s_bitcmp1_b32 s{S_OWN}, {qb}")
            a(f"s_cbranch_scc1 L_own{qb}")
            if qb >= 2:
                a(f"s_add_u32 s{S_T0}, s{S_PO}, {qb * 4096}")
                for p in range(4):
                    t = 26 + 4 * (n % 2)
                    n += 1
                    for d in range(4):
                        src = O + (qb * 8 + 2 * p) * 4 + 2 * d
                        a(f"v_cvt_pk_bf16_f32 v{t + d}, v{src}, v{src + 1}")
                    a(f"buffer_store_dwordx4 {vr(t, 4)}, v{VL16}, {SRD}, s{S_T0} offen offset:{1024 * p} sc1")
            a.label(f"L_ownr{qb}")
        a("s_mov_b64 exec, 0xffff")
        for qb in range(NQ):
            a(f"buffer_store_dwordx2 v[{56 + 2 * qb}:{57 + 2 * qb}], v{VPLA}, {SRD}, s{S_PL} offen offset:{128 * qb} sc1")
        a("s_mov_b64 exec, -1")


    a(f"v_and_b32 v{VPLA}, 15, v0")
    a(f"v_lshlrev_b32 v{VPLA}, 3, v{VPLA}")
    for qb in range(NQ):
        a(f"v_sub_f32 v{56 + 2 * qb}, 0, v{NM + 4 * qb}")
    publish()
    if cfg.get("tl") and not cfg.get("ptl"):
        a("s_memrealtime s[62:63]")
        a("s_memrealtime s[60:61]")
    consume_all()
    a("s_waitcnt vmcnt(0) lgkmcnt(0)")
    if cfg.get("tl") and not cfg.get("ptl"):
        a("s_memrealtime s[56:57]")
    a("s_barrier")
    a(f"""
    s_cmp_lg_u32 s{S_W}, 0
    s_cbranch_scc1 L_nosig
    s_lshl_b32 s{S_T0}, s{S_SPLIT}, 2
    v_mov_b32 v10, s{S_T0}
    s_add_u32 s{S_T1}, s{S_MODE}, 1
    v_mov_b32 v11, s{S_T1}
    s_mov_b64 exec, 1
    buffer_store_dword v11, v10, {SRD}, s{S_FLG} offen sc1
    s_mov_b64 exec, -1
    """)
    a.label("L_nosig")
    a(f"s_cmp_gt_i32 s{S_N}, 0")
    a("s_cbranch_scc1 L_left")
    a.label("L_gdone")
    a.seg("k2_fin")
    if cfg.get("tl") and not cfg.get("ptl"):
        a("s_memrealtime s[58:59]")
    POV, PLV = 128, 200
    ACC, BP, AI, XA, VXB = 26, 64, 34, 96, 5
    a(f"""
    v_and_b32 v{VPLA}, 15, v0
    v_and_b32 v9, 63, v0
    v_min_u32 v9, 5, v9
    v_lshlrev_b32 v9, 2, v9
    buffer_load_dword v10, v9, {SRD}, s{S_FLG} offen sc1
    s_mul_i32 s{S_T0}, s{S_QT}, {6 * 65536}
    s_lshl_b32 s{S_T1}, s{S_SPLIT}, 12
    s_add_u32 s{S_T0}, s{S_T0}, s{S_T1}
    s_lshl_b32 s{S_T1}, s{S_W}, 10
    s_add_u32 s{S_T0}, s{S_T0}, s{S_T1}
    s_add_u32 s{S_PO}, s{S_T0}, {PO}
    s_mul_i32 s{S_T0}, s{S_QT}, {6 * 2048}
    s_lshl_b32 s{S_T1}, s{S_SPLIT}, 7
    s_add_u32 s{S_T0}, s{S_T0}, s{S_T1}
    s_add_u32 s{S_PL}, s{S_T0}, {PL}
    v_mov_b32 v{VXB}, v{VX}
    v_add_u32 v{VXB + 1}, {6 * 4096}, v{VX}
    v_add_u32 v{VXB + 2}, {12 * 4096}, v{VX}
    v_bfe_u32 v2, v0, 2, 2
    v_and_b32 v3, 3, v0
    v_bfe_u32 v4, v0, 5, 1
    v_lshl_add_u32 v2, v4, 2, v2
    v_lshl_add_u32 v2, v3, 4, v2
    v_lshlrev_b32 v14, 2, v2
    v_add_u32 v15, 32, v14                       ; m = 1
    v_and_b32 v4, 16, v0
    v_cmp_ne_u32 s[{SMK}:{SMK + 1}], 0, v4
    v_and_b32 v2, 1, v{VPLA}
    v_lshlrev_b32 v2, 4, v2
    v_mov_b32 v3, 0x3f80
    v_lshlrev_b32 v2, v2, v3
    v_bfe_u32 v3, v{VPLA}, 1, 1
    v_lshrrev_b32 v4, 2, v{VPLA}
    v_bfe_u32 v11, v0, 4, 2
    v_xor_b32 v4, v4, v11
    v_lshl_add_u32 v3, v4, 1, v3
    v_cmp_eq_u32 s[{SMK + 2}:{SMK + 3}], 0, v3
    v_cmp_eq_u32 s[{SMK + 4}:{SMK + 5}], 1, v3
    v_lshlrev_b32 v{VPLA}, 3, v{VPLA}
    """)
    for k in (2, 3, 4, 5):
        a(f"v_mov_b32 v{AI + k}, 0")
    for k in range(2):
        a(f"v_cndmask_b32 v{AI + k}, 0, v2, s[{SMK + 2 + 2 * k}:{SMK + 3 + 2 * k}]")
        a(f"v_cndmask_b32 v{AI + 6 + k}, 0, v2, s[{SMK + 2 + 2 * k}:{SMK + 3 + 2 * k}]")
    for b in range(3):
        for m in range(2):
            a(f"v_accvgpr_read_b32 v2, a{ADI + 2 * b + m}")
            for d in range(2):
                a(f"v_accvgpr_read_b32 v{3 + d}, a{AXV + 4 * b + 2 * m + d}")
            for r in range(4):
                a(f"v_accvgpr_read_b32 v{80 + r}, a{AAG + 8 * b + 4 * m + r}")
            a("v_lshlrev_b32 v2, 16, v2")
            xa = XA + 8 * b + 4 * m
            for d in range(2):
                a(f"v_lshlrev_b32 v{xa + 2 * d}, 16, v{3 + d}")
                a(f"v_and_b32 v{xa + 2 * d + 1}, 0xffff0000, v{3 + d}")
            for r in range(4):
                a(f"v_fmac_f32 v{xa + r}, v{80 + r}, v2")
    a(f"s_mov_b32 s{S_T1}, s{S_SPLIT}")
    for s in range(6):
        a(f"s_lshl_b32 s{S_T0}, s{S_T1}, 11")
        a(f"s_add_u32 s{SMK + 8 + s}, s{S_PL}, s{S_T0}")
        if s:
            a(f"s_lshl_b32 s{S_T0}, s{S_T1}, 16")
            a(f"s_add_u32 s{SMK + 14 + s}, s{S_PO}, s{S_T0}")
        a(f"s_add_u32 s{S_T1}, s{S_T1}, 1")
        a(f"s_cmp_eq_u32 s{S_T1}, 6")
        a(f"s_cselect_b32 s{S_T1}, 0, s{S_T1}")
    a(f"s_lshl_b32 s{S_T0}, s{S_W}, 10")
    a(f"v_add_u32 v2, s{S_T0}, v{VL16}")
    for b in range(3):
        a(f"ds_read_b128 {vr(POV + 24 * b, 4)}, v2 offset:{4096 * b}")
    a("s_waitcnt lgkmcnt(0)")
    a("s_branch L_poll1")
    a.label("L_poll")
    a("s_sleep 1")
    a(f"buffer_load_dword v10, v9, {SRD}, s{S_FLG} offen sc1")
    a.label("L_poll1")
    a(f"""
    s_waitcnt vmcnt(0)
    v_cmp_eq_u32 vcc, 0, v10
    s_cbranch_vccnz L_poll
    """)
    if cfg.get("tl") and not cfg.get("ptl"):
        a("s_memrealtime s[100:101]")
        a("s_waitcnt lgkmcnt(0)")
    a("v_cmp_ne_u32 vcc, 1, v10")
    for b in range(3):
        if b == 2:
            a(f"s_cmp_gt_u32 s{S_SPLIT}, 3")
            a("s_cbranch_scc1 L_no3")
        for s in range(6):
            a(f"buffer_load_dwordx2 {vr(PLV + 12 * b + 2 * s, 2)}, v{VPLA}, {SRD}, s{SMK + 8 + s} offen offset:{768 * b} sc1")
        for s in range(1, 6):
            a(f"s_add_u32 s{S_T0}, s{SMK + 14 + s}, {b * 6 * 4096}")
            a(f"buffer_load_dwordx4 {vr(POV + 24 * b + 4 * s, 4)}, v{VL16}, {SRD}, s{S_T0} offen sc1")
    a.label("L_ld_done")
    a("s_cbranch_vccnz L_general")

    def finish(b, rcp):
        for m in range(2):
            if rcp:
                a(f"ds_bpermute_b32 v{80 + m}, v{14 + m}, v{rcp}")
            for j in range(8):
                a(f"ds_bpermute_b32 v{BP + 8 * m + j}, v{14 + m}, v{ACC + j}")
        ob = 56 + 4 * (b & 1)
        for m in range(2):
            a(f"s_waitcnt lgkmcnt({(9 if rcp else 8) * (1 - m)})")
            xa = XA + 8 * b + 4 * m
            for r in range(4):
                a(f"v_cndmask_b32 v{BP + 8 * m + r}, v{BP + 8 * m + r}, v{BP + 8 * m + 4 + r}, s[{SMK}:{SMK + 1}]")
                if rcp:
                    a(f"v_fmac_f32 v{xa + r}, v{BP + 8 * m + r}, v{80 + m}")
                else:
                    a(f"v_add_f32 v{xa + r}, v{xa + r}, v{BP + 8 * m + r}")
            for d in range(2):
                a(f"v_cvt_pk_bf16_f32 v{ob + 2 * m + d}, v{xa + 2 * d}, v{xa + 2 * d + 1}")
            a(f"buffer_store_dwordx2 {vr(ob + 2 * m, 2)}, v{VXB + b}, s[{SOUT}:{SOUT + 3}], 0 offen offset:{2048 * m}{OSC}")

    for b in range(3):
        pl, po = PLV + 12 * b, POV + 24 * b
        if b == 2:
            a(f"s_cmp_gt_u32 s{S_SPLIT}, 3")
            a("s_cbranch_scc1 L_k2_done")
        for s in range(6):
            if s:
                a(f"s_waitcnt vmcnt({5 - s + 11 * (2 - b) + 2 * b})")
            for h in range(2):
                d = vr(ACC + 4 * h, 4)
                a(f"{MF} {d}, {vr(AI + 4 * h, 4)}, {vr(po + 4 * s, 4)}, {'0' if s == 0 else d}")
            if s == 1:
                a(f"v_add_f32 v42, v{pl + 1}, v{pl + 3}")
            elif s > 1:
                a(f"v_add_f32 v42, v42, v{pl + 2 * s + 1}")
        a("v_rcp_f32 v42, v42")
        a("s_nop 5")
        finish(b, 42)
    a("s_branch L_k2_done")
    a.label("L_no3")
    a("s_waitcnt vmcnt(11)")
    a("s_cbranch_vccnz L_no3g")
    a.seg("k2_no3")
    for b in range(2):
        pl, po = PLV + 12 * b, POV + 24 * b
        for s in range(6):
            if s and b:
                a(f"s_waitcnt vmcnt({5 - s + 2})")
            for h in range(2):
                d = vr(ACC + 4 * h, 4)
                a(f"{MF} {d}, {vr(AI + 4 * h, 4)}, {vr(po + 4 * s, 4)}, {'0' if s == 0 else d}")
            if s == 1:
                a(f"v_add_f32 v42, v{pl + 1}, v{pl + 3}")
            elif s > 1:
                a(f"v_add_f32 v42, v42, v{pl + 2 * s + 1}")
        a("v_rcp_f32 v42, v42")
        a("s_nop 5")
        finish(b, 42)
    a("s_branch L_k2_done")
    a.label("L_no3g")
    a("s_waitcnt vmcnt(0)")
    a.label("L_general")
    a.seg("k2_gen")
    for b in range(3):
        pl, po = PLV + 12 * b, POV + 24 * b
        if b == 2:
            a(f"s_cmp_gt_u32 s{S_SPLIT}, 3")
            a("s_cbranch_scc1 L_k2_done")
        a(f"s_waitcnt vmcnt({11 * (2 - b) + 2 * b})")
        a(f"v_max3_f32 v44, v{pl}, v{pl + 2}, v{pl + 4}")
        a(f"v_max3_f32 v44, v44, v{pl + 6}, v{pl + 8}")
        a(f"v_max_f32 v44, v44, v{pl + 10}")
        for s in range(6):
            a(f"v_sub_f32 v{pl + 2 * s}, v{pl + 2 * s}, v44")
        for s in range(6):
            a(f"v_exp_f32 v{pl + 2 * s}, v{pl + 2 * s}")
        a("s_nop 0")
        a(f"v_mul_f32 v45, v{pl}, v{pl + 1}")
        for s in range(1, 6):
            a(f"v_fmac_f32 v45, v{pl + 2 * s}, v{pl + 2 * s + 1}")
        a("v_rcp_f32 v45, v45")
        a("s_nop 0")
        for s in range(6):
            a(f"v_mul_f32 v{pl + 2 * s}, v{pl + 2 * s}, v45")
        for s in range(6):
            for d in range(4):
                r = po + 4 * s + d
                a(f"v_lshlrev_b32 v42, 16, v{r}")
                a(f"v_and_b32 v43, 0xffff0000, v{r}")
                op = "v_mul_f32" if s == 0 else "v_fmac_f32"
                a(f"{op} v{ACC + 2 * d}, v42, v{pl + 2 * s}")
                a(f"{op} v{ACC + 2 * d + 1}, v43, v{pl + 2 * s}")
        finish(b, None)
    a.label("L_k2_done")
    a("s_waitcnt vmcnt(0)")
    if cfg.get("tl"):
        a("s_waitcnt lgkmcnt(0)")
        a("s_mov_b64 exec, 1")
        a("v_lshrrev_b32 v1, 6, v0")
        a("v_lshlrev_b32 v1, 5, v1")
        a(f"s_lshl_b32 s88, s2, 7")
        a(f"s_add_u32 s88, s88, {TR + 3 * 0x40000}")
        for i, sr in enumerate((98, 62, 60, 56, 58, 100)):
            a(f"v_mov_b32 v{2 + i}, s{sr}")
        a(f"buffer_store_dwordx4 v[2:5], v1, {SRD}, s88 offen")
        a(f"buffer_store_dwordx2 v[6:7], v1, {SRD}, s88 offen offset:16")
    stamp_exit(a, cfg, 84, 2, SRD, TR)
    a.label("L_k2_end")
    a("s_endpgm")
    a.label("L_left")
    a.seg("k2_left0")
    lane_setup()
    a(f"v_add_u32 v{GLA}, {NGMAX * 256}, v{GLA}")
    a.label("L_left_loop")
    a.seg("k2_left")
    for b in range(3):
        a(f"ds_read_b128 {vr(64 + 4 * b, 4)}, v{GLA} offset:{b * RSZ + LOFF}")
    a(f"v_add_u32 v{GLA}, 256, v{GLA}")
    a("s_waitcnt lgkmcnt(0)")
    for b in range(3):
        for k in range(4):
            a(f"v_add_u32 v{64 + 4 * b + k}, v{64 + 4 * b + k}, v{GOFF}")
            a(f"buffer_load_dwordx4 {ar(ABUF + 16 * b + 4 * k, 4)}, v{64 + 4 * b + k}, {smp}, 0 offen offset:{12 - 4 * k}")
    a("s_waitcnt vmcnt(0)")
    consume_all()
    a(f"""
    s_sub_u32 s{S_N}, s{S_N}, 1
    s_cmp_gt_i32 s{S_N}, 0
    s_cbranch_scc1 L_left_loop
    s_nop 7
    s_cmp_le_u32 s{S_MAXC}, {CAP}
    s_cbranch_scc1 L_gdone
    s_barrier
    s_branch L_car_t
    """)
    a.label("L_more2")
    a.seg("k2_more2")
    a("s_barrier")
    maxc()
    lane_setup()
    a("s_branch L_left_loop")
    for qb in range(NQ):
        a.label(f"L_own{qb}")
        a.seg(f"k2_own{qb}")
        a(f"s_lshl_b32 s{S_I}, s{S_W}, 2")
        a(f"s_add_u32 s{S_I}, s{S_I}, {qb}")
        a(f"s_sub_u32 s{S_I}, s{S_I}, s{S_SPLIT}")
        a(f"s_mul_i32 s{S_T1}, s{S_I}, 683")
        a(f"s_and_b32 s{S_T1}, s{S_T1}, 0x3000")
        a(f"v_add_u32 v42, s{S_T1}, v{VL16}")
        for p in range(4):
            t = 26 + 4 * (p % 2)
            for d in range(4):
                src = O + (qb * 8 + 2 * p) * 4 + 2 * d
                a(f"v_cvt_pk_bf16_f32 v{t + d}, v{src}, v{src + 1}")
            a(f"ds_write_b128 v42, {vr(t, 4)} offset:{1024 * p}")
        a(f"s_branch L_ownr{qb}")
    emit_careful(a, "e", "L_ev_ret")
    emit_careful(a, "t", "L_more2")
    for tag, nkb in (("s", 2), ("sf", 2), ("sm", 1)):
        for X in "AB":
            emit_slow(a, X, nkb, tag + X)
    return dict(name=name, vgpr=512, accum=256, sgpr=102, grid=NWG, block=256, lds=RB + 4 * RSZ,
                chains=[["k2_pro0", "k2_pro", "k2_pro2", "body_m", "body_m", "k2_mid", "k2_mid2", "body_lf", "k2_chk", "k2_epi", "k2_fin"],
                        ["body_m", "k2_mid", "k2_ev", "body_m"], ["body_m", "k2_mid", "k2_evr", "body_m"], ["body_g2", "k2_gx", "k2_mid2", "body_lf"], ["body_g2", "k2_gx", "k2_mid2", "body_lm"], ["k2_ev", "careful_e", "body_m"],
                        ["body_m", "k2_mid", "k2_evg", "body_g0", "body_g1", "body_g2", "body_g0", "body_g1", "body_g2", "k2_gx", "body_m"],
                        ["body_m", "k2_mid", "k2_mid2", "body_lm", "k2_chk", "k2_pro"],
                        ["k2_pro", "k2_pro2", "k2_safe0", "body_s", "body_s", "k2_smid", "body_sf", "k2_epi0", "k2_epi"],
                        ["body_s", "k2_smid", "body_sm", "k2_epi0", "k2_epi"],
                        ["k2_fin", "k2_gen"], ["k2_fin", "k2_no3"], ["k2_chk", "k2_own0", "k2_own1", "k2_own2", "k2_own3"], ["k2_epi", "k2_left0", "k2_left", "k2_left", "k2_fin"], ["k2_left", "careful_t", "k2_more2", "k2_left"]] +
                       [["slow_" + t + X] for t in ("s", "sf", "sm") for X in "AB"])
```

```python
from layout import *
from asmlib import stamp_entry, stamp_exit
from k1 import emit_bucket, f2u, vr

MF = "v_mfma_f32_32x32x16_bf16"


def emit_k1(a, cfg):
    name = "k1_proj_kernel"
    NT = 80
    NWG = 3 * NT
    NBK = GB
    SC1 = {0: '', 1: ' sc1', 2: ' nt', 3: ' sc0 sc1'}[cfg.get('k1sc', 0)]
    a.raw(".text")
    a.raw(f".globl {name}\n.p2align 8\n.type {name},@function")
    a.label(name)
    a.seg("k1_a")
    SX, SW1, SW2, SWS = 4, 8, 12, 16
    S_JOB, S_BLK, S_W, S_T0, S_T1, S_SC = 20, 21, 22, 23, 24, 26
    S_O1, S_O2 = 28, 29
    XR = 64
    XF = 96
    H = 32
    D = 160
    VA = 8
    ws = f"s[{SWS}:{SWS + 3}]"

    def st(k):
        if cfg.get("k1tl"):
            a(f"s_memrealtime s[{48 + 2 * k}:{49 + 2 * k}]")

    a(f"""
    s_cmp_ge_u32 s2, {NWG + NBK}
    s_cbranch_scc1 L_k1_exit
    """)
    stamp_entry(a, cfg, 32)
    a(f"s_cmp_lt_u32 s2, {NBK}")
    a("s_cbranch_scc1 L_k1_bucket")
    if cfg.get("prio"):
        a("s_setprio 3")
    a(f"""
    s_sub_u32 s25, s2, {NBK}
    s_mul_i32 s{S_T0}, s25, 820
    s_lshr_b32 s{S_T0}, s{S_T0}, 16            ; wg / 80
    s_mul_i32 s3, s{S_T0}, 80
    s_sub_u32 s3, s25, s3                      ; tile
    s_add_u32 s{S_JOB}, s{S_T0}, 2
    s_cmp_gt_u32 s{S_JOB}, 2
    s_cselect_b32 s{S_T1}, 3, 0
    s_sub_u32 s{S_JOB}, s{S_JOB}, s{S_T1}      ; 2, 0, 1
    s_mov_b32 s{S_T0}, 40
    s_cmp_eq_u32 s{S_JOB}, 1
    s_cselect_b32 s{S_T0}, 56, s{S_T0}
    s_cmp_eq_u32 s{S_JOB}, 2
    s_cselect_b32 s{S_T0}, 32, s{S_T0}
    s_cmp_eq_u32 s{S_JOB}, 0
    s_cselect_b32 s{S_T1}, 48, 64
    s_load_dwordx2 s[{SX}:{SX + 1}], s[0:1], 0
    s_load_dwordx2 s[{SW1}:{SW1 + 1}], s[0:1], s{S_T0}
    s_load_dwordx2 s[{SW2}:{SW2 + 1}], s[0:1], s{S_T1}
    s_load_dwordx2 s[{SWS}:{SWS + 1}], s[0:1], 88
    v_lshrrev_b32 v1, 6, v0
    v_and_b32 v2, 63, v0                      ; lane
    v_readfirstlane_b32 s{S_W}, v1
    s_mov_b32 s{SX + 2}, {N * 256}
    s_mov_b32 s{SX + 3}, 0x00020000
    s_mov_b32 s{SW1 + 2}, 32768
    s_mov_b32 s{SW1 + 3}, 0x00020000
    s_mov_b32 s{SW2 + 2}, 32768
    s_mov_b32 s{SW2 + 3}, 0x00020000
    s_mov_b32 s{SWS + 2}, 0x10000000
    s_mov_b32 s{SWS + 3}, 0x00020000
    s_lshl_b32 s{S_BLK}, s3, 2
    s_add_u32 s{S_BLK}, s{S_BLK}, s{S_W}
    s_lshl_b32 s{S_BLK}, s{S_BLK}, 13          ; *8192 bytes
    s_add_u32 s{S_O2}, s{S_BLK}, 4096
    v_and_b32 v3, 31, v2                       ; n
    v_lshrrev_b32 v4, 5, v2                    ; h
    v_lshrrev_b32 v6, 4, v2                    ; g
    v_and_b32 v7, 15, v2                       ; t
    v_lshlrev_b32 v16, 2, v6
    v_xor_b32 v16, v16, v7
    v_lshlrev_b32 v16, 4, v16
    v_lshl_add_u32 v16, v6, 8, v16
    v_xor_b32 v17, v6, v7
    v_lshlrev_b32 v17, 4, v17
    v_lshl_add_u32 v17, v6, 8, v17
    v_xor_b32 v18, 64, v17
    v_xor_b32 v19, 128, v17
    v_xor_b32 v20, 192, v17
    s_lshl_b32 s{S_T0}, s{S_W}, 13             ; w*8192
    s_add_u32 s{S_T1}, s{S_T0}, 4096
    s_add_u32 m0, s{S_T0}, 0x8000
    s_waitcnt lgkmcnt(0)
    s_and_b32 s{SX + 1}, s{SX + 1}, 0xffff
    s_and_b32 s{SW1 + 1}, s{SW1 + 1}, 0xffff
    s_and_b32 s{SW2 + 1}, s{SW2 + 1}, 0xffff
    s_and_b32 s{SWS + 1}, s{SWS + 1}, 0xffff
    """)
    st(0)
    for k in range(4):
        a(f"buffer_load_dwordx4 v{17 + k}, s[{SX}:{SX + 3}], s{S_BLK} offen offset:{1024 * k} lds")
    a(f"s_add_u32 m0, s{S_T1}, 0x8000")
    a("s_nop 0")
    for k in range(4):
        a(f"buffer_load_dwordx4 v{17 + k}, s[{SX}:{SX + 3}], s{S_O2} offen offset:{1024 * k} lds")

    def wdma(srd, base):
        for half, so in ((0, S_T0), (1, S_T1)):
            a(f"s_add_u32 m0, s{so}, {base}")
            a("s_nop 0")
            for k in range(4):
                a(f"buffer_load_dwordx4 v16, s[{srd}:{srd + 3}], s{so} offen offset:{1024 * k} lds")

    wdma(SW1, 0)
    a(f"""
    v_mov_b32 v21, 0
    v_lshlrev_b32 v22, 2, v0
    s_lshl_b32 s{S_O1}, s25, 7
    s_add_u32 s{S_O1}, s{S_O1}, {FLG}
    v_cmp_gt_u32 vcc, 32, v0
    s_and_saveexec_b64 s[30:31], vcc
    s_cbranch_execz L_k1_nz
    buffer_store_dword v21, v22, {ws}, s{S_O1} offen
    """)
    a.label("L_k1_nz")
    a(f"""
    s_mov_b64 exec, s[30:31]
    v_and_b32 v21, 15, v3
    v_xor_b32 v21, v21, v4
    v_lshlrev_b32 v21, 4, v21
    v_lshl_add_u32 v21, v3, 8, v21
    v_add_u32 v21, s{S_T0}, v21
    v_lshrrev_b32 v17, 2, v7                   ; r = t>>2
    v_lshrrev_b32 v18, 1, v6                   ; hh = g>>1
    v_and_b32 v19, 1, v6                       ; g&1
    v_lshlrev_b32 v20, 6, v17                  ; r*64
    v_lshl_add_u32 v20, v19, 5, v20            ; + (g&1)*32
    v_and_b32 v22, 3, v7
    v_lshl_add_u32 v20, v22, 3, v20            ; + (t&3)*8
    v_lshl_add_u32 v20, v17, 8, v20            ; + r*256
    v_lshl_add_u32 v{VA}, v18, 11, v20
    v_lshl_add_u32 v{VA + 4}, v18, 10, v20
    """)
    for i in range(1, 4):
        a(f"v_xor_b32 v{VA + i}, {i << 6}, v{VA}")
        a(f"v_xor_b32 v{VA + 4 + i}, {i << 6}, v{VA + 4}")
    for s in range(1, 8):
        a(f"v_xor_b32 v{224 + s}, {s << 5}, v21")
    if cfg.get("cpf"):
        a(f"""
        s_lshl_b32 s34, s25, 2
        s_add_u32 s34, s34, s{S_W}
        s_cmp_ge_u32 s34, {cfg["cpf"]}
        s_cbranch_scc1 L_k1_nocpf
        s_getpc_b64 s[36:37]
        L_k1_pc:
        s_add_u32 s36, s36, k2_attn_kernel - L_k1_pc
        s_addc_u32 s37, s37, 0
        s_lshl_b32 s34, s34, 10
        v_lshl_add_u32 v22, v2, 4, s34
        global_load_dwordx4 v[232:235], v22, s[36:37]
        s_waitcnt vmcnt(9)
        s_branch L_k1_xw
        L_k1_nocpf:
        """)
    a("s_waitcnt vmcnt(8)")
    a.label("L_k1_xw")
    st(1)
    for s in range(8):
        a(f"ds_read_b128 {vr(XR + 4 * s, 4)}, v{21 if s == 0 else 224 + s} offset:32768")
    a("s_waitcnt lgkmcnt(0)")
    wdma(SW2, 0x8000)
    a.seg("k1_b")
    for i in range(32):
        a(f"v_lshlrev_b32 v{XF + 2 * i}, 16, v{XR + i}")
        a(f"v_and_b32 v{XF + 2 * i + 1}, 0xffff0000, v{XR + i}")
    AC = 22
    a(f"v_pk_add_f32 {vr(AC, 2)}, {vr(XF, 2)}, {vr(XF + 2, 2)}")
    a(f"v_pk_add_f32 {vr(AC + 2, 2)}, {vr(XF + 4, 2)}, {vr(XF + 6, 2)}")
    for i in range(4, 32):
        t = AC + 2 * (i & 1)
        a(f"v_pk_add_f32 {vr(t, 2)}, {vr(t, 2)}, {vr(XF + 2 * i, 2)}")
    a(f"v_pk_add_f32 {vr(AC, 2)}, {vr(AC, 2)}, {vr(AC + 2, 2)}")
    a(f"v_add_f32 v{AC}, v{AC}, v{AC + 1}")

    def xhalf_sum(r, t):
        a(f"v_mov_b32 v{t}, v{r}")
        a("s_nop 1")
        a(f"v_permlane32_swap_b32 v{r}, v{t}")
        a("s_nop 1")
        a(f"v_add_f32 v{r}, v{r}, v{t}")

    xhalf_sum(AC, AC + 1)
    a(f"v_mul_f32 v26, {hex(f2u(-1.0 / 128))}, v{AC}")
    a("v_mov_b32 v27, v26")
    for i in range(32):
        a(f"v_pk_add_f32 {vr(XF + 2 * i, 2)}, {vr(XF + 2 * i, 2)}, v[26:27]")
    a(f"v_pk_mul_f32 {vr(AC, 2)}, {vr(XF, 2)}, {vr(XF, 2)}")
    a(f"v_pk_mul_f32 {vr(AC + 2, 2)}, {vr(XF + 2, 2)}, {vr(XF + 2, 2)}")
    for i in range(2, 32):
        t = AC + 2 * (i & 1)
        a(f"v_pk_fma_f32 {vr(t, 2)}, {vr(XF + 2 * i, 2)}, {vr(XF + 2 * i, 2)}, {vr(t, 2)}")
    a(f"v_pk_add_f32 {vr(AC, 2)}, {vr(AC, 2)}, {vr(AC + 2, 2)}")
    a(f"v_add_f32 v{AC}, v{AC}, v{AC + 1}")
    xhalf_sum(AC, AC + 1)

    def rnd(r):
        a(f"v_cvt_pk_bf16_f32 v{r}, v{r}, v{r}")
        a(f"v_lshlrev_b32 v{r}, 16, v{r}")

    a(f"v_mul_f32 v{AC}, {hex(f2u(1.0 / 128))}, v{AC}")
    rnd(AC)
    a(f"v_add_f32 v{AC}, {hex(f2u(1e-5))}, v{AC}")
    rnd(AC)
    a(f"v_sqrt_f32 v{AC}, v{AC}")
    a(f"v_cvt_pk_bf16_f32 v24, v26, v26")
    rnd(AC)
    a(f"v_rcp_f32 v28, v{AC}")
    a(f"v_lshlrev_b32 v24, 16, v24")
    a(f"v_sub_f32 v24, v24, v26")
    a(f"v_mov_b32 v29, v28")
    a(f"v_mul_f32 v24, v24, v28")
    a(f"v_mov_b32 v25, v24")
    for i in range(32):
        a(f"v_pk_fma_f32 {vr(XF + 2 * i, 2)}, {vr(XF + 2 * i, 2)}, v[28:29], v[24:25]")
    for i in range(32):
        a(f"v_cvt_pk_bf16_f32 v{H + i}, v{XF + 2 * i}, v{XF + 2 * i + 1}")
    c = 1.4426950408889634 / 128 ** 0.5
    a(f"s_mov_b32 s{S_SC}, {hex(f2u(c))}")
    a(f"s_cmp_eq_u32 s{S_JOB}, 0")
    a(f"s_cselect_b32 s{S_SC}, s{S_SC}, 1.0")
    st(2)
    a("s_waitcnt vmcnt(8)")
    a("s_barrier")
    st(3)
    WB = [XF, XF + 32]

    def reads(i, buf, addr, base, second):
        for s in range(8):
            a(f"ds_read_b64_tr_b16 {vr(buf + 4 * s, 2)}, v{addr + i} offset:{base + 4096 * s}")
            a(f"ds_read_b64_tr_b16 {vr(buf + 4 * s + 2, 2)}, v{addr + i} offset:{base + 4096 * s + second}")

    def rd(i, s, buf, addr, base, second):
        return [f"ds_read_b64_tr_b16 {vr(buf + 4 * s, 2)}, v{addr + i} offset:{base + 4096 * s}",
                f"ds_read_b64_tr_b16 {vr(buf + 4 * s + 2, 2)}, v{addr + i} offset:{base + 4096 * s + second}"]

    def gemm(addr, base, second, other, w_is_a, first_issued=False, fill=None):
        if not first_issued:
            reads(0, WB[0], addr, base, second)
        for i in range(4):
            fl = list(fill[i]) if fill else []
            per = -(-len(fl) // 6)
            fl = [None] * (2 * per) + fl
            for s in range(8):
                young = 2 * (7 - s) + (2 * s if i < 3 else 0)
                a(f"s_waitcnt lgkmcnt({min(young, 15)})")
                w = vr(WB[i & 1] + 4 * s, 4)
                o = vr(other + 4 * s, 4)
                A, B = (w, o) if w_is_a else (o, w)
                d = vr(D + 16 * i, 16)
                a(f"{MF} {d}, {A}, {B}, {'0' if s == 0 else d}")
                if i < 3:
                    for t in rd(i + 1, s, WB[(i + 1) & 1], addr, base, second):
                        a(t)
                for t in fl[per * s:per * (s + 1)]:
                    if t:
                        a(t)

    G1 = XR

    def pack1(i, scale):
        out = []
        for k in range(8):
            b = D + 16 * i + 2 * k
            if scale:
                out.append(f"v_mul_f32 v{b}, s{S_SC}, v{b}")
                out.append(f"v_mul_f32 v{b + 1}, s{S_SC}, v{b + 1}")
            out.append(f"v_cvt_pk_bf16_f32 v{G1 + 8 * i + k}, v{b}, v{b + 1}")
        return out

    gemm(VA, 0, 1024, H, True, fill=[[]] + [pack1(i, True) for i in range(3)])
    st(4)
    a("s_waitcnt vmcnt(0)")
    a("s_barrier")
    a(f"s_cmp_lg_u32 s{S_JOB}, 0")
    a("s_cbranch_scc1 L_k1_second")
    a.seg("k1_qk")
    a(f"""
    v_lshrrev_b32 v17, 4, v3
    v_lshlrev_b32 v17, 12, v17
    v_and_b32 v18, 15, v3
    v_lshl_add_u32 v17, v18, 4, v17
    v_lshl_add_u32 v17, v4, 8, v17
    s_add_u32 s{S_O1}, s{S_BLK}, {QF}
    s_add_u32 s{S_O2}, s{S_BLK}, {KF}
    """)
    reads(0, WB[0], VA, 32768, 1024)

    def qkst(i, so):
        return [f"buffer_store_dwordx4 {vr(G1 + 8 * i + 4 * k, 4)}, v17, {ws}, s{so} offen offset:{1024 * i + 512 * k}{SC1}" for k in range(2)]

    for i in range(3):
        for t in qkst(i, S_O1):
            a(t)
    for t in pack1(3, True) + qkst(3, S_O1):
        a(t)
    gemm(VA, 32768, 1024, H, True, first_issued=True, fill=[[]] + [pack1(i, False) + qkst(i, S_O2) for i in range(3)])
    a("s_nop 7")
    a("s_nop 3")
    st(5)
    for t in pack1(3, False) + qkst(3, S_O2):
        a(t)
    a("s_branch L_k1_end")
    a.label("L_k1_second")
    a.seg("k1_c")
    reads(0, WB[0], VA + 4, 32768, 2048)
    for t in pack1(3, False):
        a(t)
    a(f"s_cmp_eq_u32 s{S_JOB}, 2")
    a("s_cbranch_scc1 L_k1_m")

    def pack2(i, st_):
        out = []
        for kk in range(2):
            t = H + 4 * (2 * i + kk)
            b = D + 16 * i + 4 * kk
            for d, src in enumerate([b, b + 2, b + 8, b + 10]):
                out.append(f"v_cvt_pk_bf16_f32 v{t + d}, v{src}, v{src + 1}")
            out.append(st_(i, kk, t))
        return out

    a.seg("k1_v")
    a(f"""
    v_lshrrev_b32 v17, 4, v3
    v_lshlrev_b32 v17, 10, v17
    v_and_b32 v18, 15, v3
    v_lshl_add_u32 v17, v18, 4, v17
    v_lshl_add_u32 v17, v4, 8, v17
    s_add_u32 s{S_O1}, s{S_BLK}, {VF}
    s_add_u32 s{S_O2}, s{S_O1}, 4096
    """)
    vst = lambda i, kk, t: f"buffer_store_dwordx4 {vr(t, 4)}, v17, {ws}, s{S_O1 if i < 2 else S_O2} offen offset:{(i & 1) * 2048 + kk * 512}{SC1}"
    gemm(VA + 4, 32768, 2048, G1, False, first_issued=True, fill=[[]] + [pack2(i, vst) for i in range(3)])
    a("s_nop 7")
    a("s_nop 3")
    st(5)
    for t in pack2(3, vst):
        a(t)
    a("s_branch L_k1_end")
    a.label("L_k1_m")
    a.seg("k1_m")
    a(f"""
    s_add_u32 s{S_O1}, s{S_BLK}, {MP}
    s_add_u32 s{S_O2}, s{S_O1}, 4096
    v_xor_b32 v17, v6, v7
    v_lshlrev_b32 v17, 4, v17
    v_lshl_add_u32 v17, v6, 8, v17
    v_add_u32 v17, s{S_T0}, v17
    v_xor_b32 v18, 64, v17
    v_xor_b32 v19, 128, v17
    v_xor_b32 v20, 192, v17
    v_lshlrev_b32 v16, 4, v2
    """)
    nost = lambda i, kk, t: "s_nop 0"
    gemm(VA + 4, 32768, 2048, G1, True, first_issued=True, fill=[[]] + [pack2(i, nost) for i in range(3)])
    for s in range(6):
        a(f"ds_write_b128 v{21 if s == 0 else 224 + s}, {vr(H + 4 * s, 4)}")
    a("s_nop 5")
    st(5)
    for t in pack2(3, lambda i, kk, t: f"ds_write_b128 v{224 + 2 * i + kk}, {vr(t, 4)}"):
        a(t)
    a("s_waitcnt lgkmcnt(0)")
    for k in range(8):
        a(f"ds_read_b128 {vr(XF + 4 * k, 4)}, v{17 + (k & 3)} offset:{1024 * k}")
    for k in range(8):
        a(f"s_waitcnt lgkmcnt({7 - k})")
        a(f"buffer_store_dwordx4 {vr(XF + 4 * k, 4)}, v16, {ws}, s{S_O1 if k < 4 else S_O2} offen offset:{1024 * (k & 3)}{SC1}")
    a("s_branch L_k1_end")
    emit_bucket(a, cfg, SWS)
    a.label("L_k1_end")
    if cfg.get("k1tl"):
        a("s_memrealtime s[60:61]")
        a("s_waitcnt lgkmcnt(0)")
        a("v_lshrrev_b32 v1, 6, v0")
        a("v_lshlrev_b32 v1, 5, v1")
        a(f"s_lshl_b32 s40, s2, 7")
        a(f"s_add_u32 s40, s40, {TR + 0x40000}")
        for i in range(7):
            a(f"v_mov_b32 v{2 + i}, s{48 + 2 * i}")
        a(f"buffer_store_dwordx4 v[2:5], v1, {ws}, s40 offen")
        a(f"buffer_store_dwordx4 v[6:9], v1, {ws}, s40 offen offset:16")
    stamp_exit(a, cfg, 32, 0, ws, TR)
    a.label("L_k1_exit")
    a("s_endpgm")
    return dict(name=name, vgpr=240, accum=240, sgpr=64, grid=NWG + NBK, block=256, lds=65536,
                chains=[["k1_a", "k1_b", "k1_qk"], ["k1_b", "k1_c", "k1_v"], ["k1_b", "k1_c", "k1_m"], ["k1_bk"]])
```

```python
from layout import *
from asmlib import stamp_entry, stamp_exit

CFG = {}
MF = "v_mfma_f32_16x16x32_bf16"
NWG = 240
NQ = 4
CAP = 72
NGMAX = 15
NSLOT = 24

O, S, NM, P, E_, T, L = 128, 64, 96, 112, 26, 42, 52
VLDS, VL16, VT, VT2, VT3, VOOB = 20, 21, 22, 23, 24, 25
RC, VREM, VSEG, BT = 26, 50, 51, 56
AQ, AK, AV = 0, 64, 96
S_SRD = 4
S_W, S_SRC, S_M0, S_CNT, S_THR, S_SPLIT, S_QT, S_T0, S_T1 = 8, 9, 10, 11, 12, 13, 14, 15, 16
S_LEFT, S_EV, S_NB, S_MODE = 17, 18, 19, 30
S_Q0 = 20
S_PO, S_PL, S_SRC0, S_U = 24, 25, 26, 27
S_K0, S_FV = 28, 29
S_PA = 86
S_OWN = 31
SRD = f"s[{S_SRD}:{S_SRD + 3}]"
SKV = 80
KVS = "s[80:83]"
LDS_FLAG = 131072
ABUF, AAG, AAH, AXV, ADI = 128, 176, 200, 208, 220
GI, GOFF, GLA = 26, 13, 14
SMP = 44
RB = 131072 + 256
LOFF = 384
RSZ = LOFF + CAP * 64 + 384
SENT = 0x7fffff00


def vr(b, n):
    return f"v[{b}:{b + n - 1}]"


def ar(b, n):
    return f"a[{b}:{b + n - 1}]"


def qbs(X):
    return [0, 1] if X == "A" else [2, 3]


def St(qb, kb):
    return S + (qb * 2 + kb) * 4


def mfma_qk(qb, kb, s, czero=False):
    d = vr(St(qb, kb), 4)
    c = ("0" if czero else vr(NM + 4 * qb, 4)) if s == 0 else d
    return f"{MF} {d}, {ar(AK + (kb * 4 + s) * 4, 4)}, {ar(AQ + (qb * 4 + s) * 4, 4)}, {c}"


def mfma_pv(qb, db):
    o = vr(O + (qb * 8 + db) * 4, 4)
    return f"{MF} {o}, {ar(AV + 4 * db, 4)}, {vr(P + 4 * qb, 4)}, {o}"


def qk_order(X, nkb=2):
    return [(qb, kb, s) for s in range(4) for kb in range(nkb) for qb in qbs(X)]


def pv_order(X):
    return [(qb, db) for qb in qbs(X) for db in range(8)]


class Op:
    def __init__(self, text, cost, est=0, lst=10 ** 6, deps=(), stream=None):
        self.text, self.cost, self.est, self.lst, self.deps, self.stream = text, cost, est, lst, list(deps), stream
        self.pos = None


def sm_group(X, nkb, tag, chk, rdy, dl):
    ops = []
    idx = 0
    q = qbs(X)
    lastadd = {}
    prev_small = None
    for qb in q:
        d = dl[qb] if not chk else min(dl.values())
        if nkb == 1:
            for k in (2, 3):
                ops.append(Op(f"v_mov_b32 v{P + 4 * qb + k}, 0", 4, rdy["p", qb], d - 1, stream="s" + X))
        for kb in range(nkb):
            for pr in range(2):
                s0 = St(qb, kb) + 2 * pr
                e0, e1 = (E_ + (2 * idx) % 16, E_ + (2 * idx + 1) % 16) if chk else (s0, s0 + 1)
                x0 = Op(f"v_exp_f32 v{e0}, v{s0}", 8, rdy[qb, kb], d - 2, stream="x" + X)
                x1 = Op(f"v_exp_f32 v{e1}, v{s0 + 1}", 8, rdy[qb, kb], d - 2, stream="x" + X)
                ops += [x0, x1]
                acc = (T if chk else L) + qb
                dadd = d - 1 if chk else dl["end"]
                c = Op(f"v_cvt_pk_bf16_f32 v{P + 4 * qb + 2 * kb + pr}, v{e0}, v{e1}", 4, rdy["p", qb], d - 1, [x0, x1], stream="c" + X)
                if chk and qb not in lastadd:
                    a1 = Op(f"v_add_f32 v{acc}, v{e0}, v{e1}", 4, 0, dadd, [x0, x1], stream="a" + X)
                    ops += [a1, c]
                else:
                    a0 = Op(f"v_add_f32 v{acc}, v{acc}, v{e0}", 4, 0, dadd, [x0], stream="a" + X)
                    a1 = Op(f"v_add_f32 v{acc}, v{acc}, v{e1}", 4, 0, dadd, [x1], stream="a" + X)
                    ops += [a0, a1, c]
                lastadd[qb] = a1
                lastc = c
                idx += 1
    if chk:
        d = min(dl.values())
        m = Op(f"v_max_f32 v{VT}, v{T + q[0]}, v{T + q[1]}", 4, 0, d, list(lastadd.values()), stream="a" + X)
        c = Op(f"v_cmp_lt_f32 vcc, s{S_THR}, v{VT}", 4, 0, d, [m], stream="a" + X)
        b = Op(f"s_cbranch_vccnz L_slow_{tag}\nL_back_{tag}:", 0, 0, d, [c, lastc], stream="a" + X)
        ops += [m, c, b]
        for qb in q:
            ops.append(Op(f"v_add_f32 v{L + qb}, v{L + qb}, v{T + qb}", 4, 0, dl["end"], [b], stream="a" + X))
    return ops


def schedule(ops, nm, base=8):
    streams = {}
    for o in ops:
        streams.setdefault(o.stream, []).append(o)
    best = None
    for nextra in range(0, 3 * nm):
        for o in ops:
            o.pos = None
        cap = [base + 4 * ((g + 1) * nextra // nm - g * nextra // nm) for g in range(nm)]
        head = {s: 0 for s in streams}
        out = [[] for _ in range(nm)]
        pos = 0
        ok = True
        for g in range(nm):
            pos += 1
            rem = cap[g]
            while True:
                cand = []
                for s, lst in streams.items():
                    if head[s] >= len(lst):
                        continue
                    o = lst[head[s]]
                    if o.est > g:
                        continue
                    if CFG.get("ds1") and s == "l" and any(t.startswith(("ds_", "buffer")) for t in out[g]) and o.lst > g:
                        continue
                    if any(d.pos is None or pos - d.pos < (CFG.get('xd', 2) if d.cost == 8 else 1) for d in o.deps):
                        continue
                    urg = 10 ** 9
                    acc = 0
                    for o2 in lst[head[s]:]:
                        acc += o2.cost
                        urg = min(urg, (o2.lst - g + 1) * base * o2_share(s) - acc)
                    cand.append((urg, s, o))
                if not cand:
                    break
                cand.sort(key=lambda c: c[0])
                pick = None
                for urg, s, o in cand:
                    if o.cost <= rem or o.lst <= g:
                        pick = (s, o)
                        break
                if pick is None:
                    break
                s, o = pick
                out[g].append(o.text)
                o.pos = pos
                pos += 1
                head[s] += 1
                rem -= o.cost
                if rem <= 0 and not any(streams[t][head[t]].lst <= g or streams[t][head[t]].cost == 0
                                        for t in streams if head[t] < len(streams[t])):
                    break
            if any(head[s] < len(l) and l[head[s]].lst <= g for s, l in streams.items()):
                ok = False
                break
        if ok and all(head[s] == len(l) for s, l in streams.items()):
            cost = {o.text: o.cost for o in ops}
            tot = sum(max(16, 8 + sum(cost[t] for t in out[g])) for g in range(nm))
            if best is None or tot < best[0]:
                best = (tot, out, nextra)
            if nextra > best[2] + 6:
                break
    if best is None:
        raise RuntimeError("cannot schedule")
    return best


def o2_share(s):
    return {"x": 0.5, "a": 0.3, "c": 0.3, "s": 0.3}.get(s[0], 0.3)


def emit_rowmax(a, qb, nkb, dst):
    s = St(qb, 0)
    a(f"v_max3_f32 v{dst}, v{s}, v{s + 1}, v{s + 2}")
    if nkb == 2:
        a(f"v_max3_f32 v{dst}, v{dst}, v{s + 3}, v{s + 4}")
        a(f"v_max3_f32 v{dst}, v{dst}, v{s + 5}, v{s + 6}")
        a(f"v_max_f32 v{dst}, v{dst}, v{s + 7}")
    else:
        a(f"v_max_f32 v{dst}, v{dst}, v{s + 3}")
    for sw in ("v_permlane32_swap_b32", "v_permlane16_swap_b32"):
        a(f"v_mov_b32 v{VT3}, v{dst}")
        a("s_nop 1")
        a(f"{sw} v{dst}, v{VT3}")
        a("s_nop 1")
        a(f"v_max_f32 v{dst}, v{dst}, v{VT3}")


def emit_slow(a, X, nkb, tag):
    a.seg("slow_" + tag)
    a.label(f"L_slow_{tag}")
    a("s_nop 15")
    for qb in qbs(X):
        emit_rowmax(a, qb, nkb, VT)
        a(f"v_max_f32 v{VT}, 0, v{VT}")
        a(f"v_exp_f32 v{VT2}, -v{VT}")
        a("s_nop 0")
        a(f"v_mul_f32 v{L + qb}, v{L + qb}, v{VT2}")
        for i in range(32):
            o = O + qb * 32 + i
            a(f"v_mul_f32 v{o}, v{o}, v{VT2}")
        for i in range(4):
            a(f"v_sub_f32 v{NM + 4 * qb + i}, v{NM + 4 * qb + i}, v{VT}")
        for k in range(2 * nkb):
            s = St(qb, 0) + 2 * k
            a(f"v_sub_f32 v{s}, v{s}, v{VT}")
            a(f"v_sub_f32 v{s + 1}, v{s + 1}, v{VT}")
            a(f"v_exp_f32 v{E_}, v{s}")
            a(f"v_exp_f32 v{E_ + 1}, v{s + 1}")
            a("s_nop 0")
            if k == 0:
                a(f"v_add_f32 v{T + qb}, v{E_}, v{E_ + 1}")
            else:
                a(f"v_add_f32 v{T + qb}, v{T + qb}, v{E_}")
                a(f"v_add_f32 v{T + qb}, v{T + qb}, v{E_ + 1}")
            a(f"v_cvt_pk_bf16_f32 v{P + 4 * qb + k}, v{E_}, v{E_ + 1}")
    a("s_nop 7")
    a(f"s_branch L_back_{tag}")


def emit_body(a, cfg, tag, chk, last=False, nkb=2, gb=None, loop=None):
    PF = cfg["PF"]
    lead = cfg.get("lead", 3)
    mg = cfg.get("mg", 0)
    pvB, qkB, pvA, qkA = pv_order("B"), qk_order("B", nkb), pv_order("A"), qk_order("A")
    mf = [mfma_pv(*x) for x in pvB] + [mfma_qk(*x) for x in qkB]
    pA0 = len(mf)
    mf += [mfma_pv(*x) for x in pvA]
    qA0 = len(mf)
    if not last:
        mf += [mfma_qk(*x) for x in qkA]
    gpos = []
    if gb is not None:
        for k, at in enumerate(cfg.get("gslots", [40, 47, 54, 61])):
            d = ar(AAG + 8 * gb + 4 * (k >> 1), 4)
            mf.insert(at, f"{MF} {d}, {ar(AAH + 4 * (k & 1), 4)}, {ar(ABUF + 16 * gb + 4 * k, 4)}, {d}")
            gpos.append(at)
            if at <= qA0:
                qA0 += 1
    nm = len(mf)
    ops = []
    lds = []
    if gb is not None:
        lds.append(Op(f"ds_read_b128 {vr(GI, 4)}, v{GLA} offset:{gb * RSZ + LOFF}", 4, 2, 7, stream="l"))
        for k, at in enumerate(gpos):
            ad = Op(f"v_add_u32 v{GI + k}, v{GI + k}, v{GOFF}", 4, pA0, at - 1, stream="g")
            ops += [ad, Op(f"buffer_load_dwordx4 {ar(ABUF + 16 * gb + 4 * k, 4)}, v{GI + k}, s[{SMP}:{SMP + 3}], 0 offen offset:{12 - 4 * k}",
                           cfg.get("dmacost", 8), at, at, [ad], stream="g")]
        if gb == 2:
            ops.append(Op(f"v_add_u32 v{GLA}, 256, v{GLA}", 4, 10, nm - 1, stream="y"))
    for db in range(8):
        lds.append(Op(f"ds_read_b128 {ar(AV + 4 * db, 4)}, v{VLDS} offset:{8192 + 1024 * db}", 4, 8 + db, pA0 - 6, stream="l"))
    if not last:
        kf = sorted(range(8), key=lambda f: max(i for i, x in enumerate(qkB) if x[1] * 4 + x[2] == f))
        for n, f in enumerate(kf):
            g = 16 + max(i for i, x in enumerate(qkB) if x[1] * 4 + x[2] == f)
            lds.append(Op(f"ds_read_b128 {ar(AK + 4 * f, 4)}, v{VLDS} offset:{1024 * f}", 4, g, qA0 - 6, stream="l"))
        adv = Op(f"v_add_u32 v{VLDS}, 0x4000, v{VLDS}", 4, 0, nm - 1, [lds[-1]], stream="z")
        ops += [adv, Op(f"v_and_b32 v{VLDS}, 0x1ffff, v{VLDS}", 4, 0, nm - 1, [adv], stream="z")]
        dg = cfg.get("dgaps", [0, 1, 33, 34])
        for k in range(4):
            ops.append(Op(f"buffer_load_dwordx4 v{VL16}, {KVS}, s{S_SRC} offen offset:{1024 * k} lds", cfg.get("dmacost", 8),
                          dg[k], dg[k], stream="d"))
    ops += lds
    finA = {}
    for i, (qb, kb, s_) in enumerate(qkA):
        finA[qb, kb] = i
    rdy = {t: max(0, finA[t] - len(qkA) + 1 + lead) for t in finA}
    rdy["p", 0] = rdy["p", 1] = 0
    ops += sm_group("A", nkb, tag + "A", chk, rdy, {0: pA0 - 1 - mg, 1: pA0 + 7 - mg, "end": qA0 - 2})
    finB = {}
    for i, (qb, kb, s_) in enumerate(qkB):
        finB[qb, kb] = i
    rdy = {t: 16 + finB[t] + 1 + lead for t in finB}
    rdy["p", 2], rdy["p", 3] = 8, 16
    ops += sm_group("B", nkb, tag + "B", chk, rdy, {2: nm - 1 - mg, 3: nm - 1, "end": nm - 1})
    tot, gaps, nx = schedule(ops, nm)
    if cfg.get("verbose"):
        print("body", tag, "model cycles", tot, "extra", nx)
    if cfg.get("memfirst"):
        for g in range(nm):
            gaps[g].sort(key=lambda t: 0 if t.startswith(("ds_", "buffer")) else 1)
    if cfg.get("explast"):
        for g in range(nm):
            if not any("L_back" in t for t in gaps[g]):
                gaps[g].sort(key=lambda t: 1 if t.startswith("v_exp") else 0)
    order = [t for g in range(nm) for t in gaps[g]]

    def nlds_after(g_end, first_k):
        n = 0
        for g in range(g_end):
            n += sum(1 for t in gaps[g] if t.startswith("ds_read") and f"offset:{0}" is not None and "a[" in t and int(t.split("a[")[1].split(":")[0]) < AV)
        return n

    gaps[pA0 - 1].append(f"s_waitcnt lgkmcnt({nlds_after(pA0, 0)})")
    if not last:
        gaps[qA0 - 1].append("s_waitcnt lgkmcnt(0)")
        lastd = max(dg)
        gaps[lastd + 2].insert(0, f"s_add_u32 s{S_M0}, s{S_M0}, 0x4000")
        gaps[lastd + 3].insert(0, f"s_and_b32 m0, s{S_M0}, 0x1ffff")
        gaps[lastd + 4].insert(0, f"s_add_u32 s{S_SRC}, s{S_SRC}, 0x2000")
        if gb is None or gb == 2:
            gaps[lastd + 5].insert(0, f"s_sub_u32 s{S_CNT}, s{S_CNT}, 1")
            gaps[nm - 2].insert(0, f"s_cmp_lg_u32 s{S_CNT}, 0")
            gaps[nm - 1].append(f"s_cbranch_scc1 L_body_{loop or tag}")
        for at in gpos:
            gaps[at - 1].append("s_waitcnt vmcnt(23)")
    a.seg("body_" + tag)
    a.label(f"L_body_{tag}")
    a(f"s_waitcnt vmcnt({4 * (PF - 1) if gb is None else 24})")
    a("s_barrier")
    for g in range(nm):
        a(mf[g])
        for t in gaps[g]:
            a(t)
    if last:
        fill = []
        for qb in range(2):
            for p in range(4):
                t = 26 + 4 * (p % 2)
                for d in range(4):
                    src = O + (qb * 8 + 2 * p) * 4 + 2 * d
                    fill.append(f"v_cvt_pk_bf16_f32 v{t + d}, v{src}, v{src + 1}")
                fill.append(f"buffer_store_dwordx4 {vr(t, 4)}, v{VL16}, {SRD}, s{S_PA + qb} offen offset:{1024 * p} sc1")
        a("s_nop 1")
        for n, x in enumerate(pvB):
            a(mfma_pv(*x))
            for t in fill[(5 * n) // 2:(5 * (n + 1)) // 2]:
                a(t)


SX, SDG, SOUT = 32, 36, 40
S_REC, S_CAP, S_MAXC, S_N, S_I, S_MASK, S_FLG, S_NOWN = 48, 49, 50, 51, 52, 53, 54, 55
SMK = 64
VX = 15
VDC = 16
VRB, VDUM, VDREC = 17, 18, 19


def emit_region_reset(a):
    a(f"""
    v_and_b32 v2, 63, v0
    v_and_b32 v3, 15, v0
    v_lshl_add_u32 v3, v3, 2, v{VRB}
    v_mov_b32 v4, 0
    v_lshl_add_u32 v5, v2, 4, v{VRB}
    ds_write_b32 v3, v4
    v_mov_b32 v4, 0x40000000
    ds_write_b32 v{VDC}, v4
    v_mov_b32 v6, {SENT}
    v_mov_b32 v7, {SENT}
    v_mov_b32 v8, {SENT}
    v_mov_b32 v9, {SENT}
    v_lshl_add_u32 v3, v2, 3, v{VRB}
    """)
    for k in range(4):
        a(f"ds_write_b128 v5, v[6:9] offset:{LOFF + 1024 * k}")
    a(f"ds_write_b64 v3, v[6:7] offset:{LOFF + 4096}")


def emit_careful(a, tag, ret):
    a.seg("careful_" + tag)
    a.label(f"L_car_{tag}")
    a("s_nop 7")
    emit_region_reset(a)
    a(f"""
    v_mov_b32 v10, 1
    v_mov_b32 v11, v{VSEG}
    v_mov_b32 v12, 0
    s_mov_b32 s{S_I}, 0
    s_waitcnt lgkmcnt(0)
    """)
    a.label(f"L_car_loop_{tag}")
    a(f"""
    s_lshl_b32 s{S_T0}, s{S_I}, 2
    v_add_u32 v{BT}, s{S_T0}, v{VSEG}
    buffer_load_dwordx4 {vr(RC, 4)}, v{BT}, {SRD}, s{S_REC} offen sc1
    s_waitcnt vmcnt(0)
    """)
    for k in range(4):
        r = RC + k
        a(f"""
        v_cmp_lt_u32 s[{SMK}:{SMK + 1}], s{S_I}, v{VREM}
        s_add_u32 s{S_I}, s{S_I}, 1
        v_and_or_b32 v{BT}, v{r}, 60, v{VRB}
        v_cndmask_b32 v{BT}, v{VDC}, v{BT}, s[{SMK}:{SMK + 1}]
        ds_add_rtn_u32 v{BT + 1}, v{BT}, v10
        s_waitcnt lgkmcnt(0)
        v_cmp_le_u32 vcc, s{S_CAP}, v{BT + 1}
        v_min_u32 v{BT + 1}, s{S_CAP}, v{BT + 1}
        v_lshl_add_u32 v{BT}, v{BT + 1}, 6, v{BT}
        ds_write_b32 v{BT}, v{r} offset:{LOFF}
        s_and_b64 vcc, s[{SMK}:{SMK + 1}], vcc
        s_nop 0
        v_cndmask_b32 v{BT}, v{VOOB}, v11, vcc
        v_cndmask_b32 v{BT + 1}, 0, v10, vcc
        buffer_store_dword v{r}, v{BT}, {SRD}, s{S_REC} offen sc1
        v_add_u32 v12, v12, v{BT + 1}
        v_lshl_add_u32 v11, v{BT + 1}, 2, v11
        """)
    a(f"""
    v_cmp_lt_u32 vcc, s{S_I}, v{VREM}
    s_cbranch_vccnz L_car_loop_{tag}
    v_mov_b32 v{VREM}, v12
    s_waitcnt vmcnt(0) lgkmcnt(0)
    s_branch {ret}
    """)


def emit_k2(a, cfg):
    PF = cfg["PF"]
    NB0 = cfg.get("NB0", 3)
    NBR = cfg.get("NBR", 2)
    OSC = {0: "", 1: " sc1", 2: " nt", 3: " sc0 sc1"}[cfg.get("osc", 0)]
    CFG.clear()
    CFG.update(cfg)
    LIM = cfg.get("lim", NWG)
    name = "k2_attn_kernel"
    if cfg.get("map", 0) == 0:
        mapping = f"""s_and_b32 s{S_T0}, s2, 7
    s_mul_i32 s{S_T0}, s{S_T0}, {NWG // 8}
    s_lshr_b32 s{S_T1}, s2, 3
    s_add_u32 s{S_T0}, s{S_T0}, s{S_T1}          ; g
    s_mul_i32 s{S_SPLIT}, s{S_T0}, 1639
    s_lshr_b32 s{S_SPLIT}, s{S_SPLIT}, 16        ; split = g / 40
    s_mul_i32 s{S_T1}, s{S_SPLIT}, 40
    s_sub_u32 s{S_QT}, s{S_T0}, s{S_T1}          ; q tile"""
    else:
        mapping = f"""s_and_b32 s{S_T0}, s2, 7
    s_mul_i32 s{S_T0}, s{S_T0}, 5
    s_lshr_b32 s{S_T1}, s2, 3
    s_mul_i32 s{S_QT}, s{S_T1}, 43
    s_lshr_b32 s{S_QT}, s{S_QT}, 8               ; j / 6
    s_mul_i32 s{S_SPLIT}, s{S_QT}, 6
    s_sub_u32 s{S_SPLIT}, s{S_T1}, s{S_SPLIT}
    s_add_u32 s{S_QT}, s{S_QT}, s{S_T0}"""
    a.raw(".text")
    a.raw(f".globl {name}\n.p2align 8\n.type {name},@function")
    a.label(name)
    a.seg("k2_pro0")
    a(f"""
    s_cmp_ge_u32 s2, {LIM}
    s_cbranch_scc1 L_k2_end
    """)
    if cfg.get("tl") or cfg.get("stamp"):
        a("s_memrealtime s[84:85]")
    a(f"""
    s_load_dwordx2 s[{S_SRD}:{S_SRD + 1}], s[0:1], 88
    s_load_dwordx2 s[{SX}:{SX + 1}], s[0:1], 0
    s_load_dwordx2 s[{SDG}:{SDG + 1}], s[0:1], 24
    s_load_dwordx2 s[{SOUT}:{SOUT + 1}], s[0:1], 72
    v_lshrrev_b32 v1, 6, v0
    v_and_b32 v2, 63, v0
    v_readfirstlane_b32 s{S_W}, v1
    v_lshlrev_b32 v{VL16}, 4, v2
    v_lshlrev_b32 v12, 2, v2
    {mapping}
    s_mov_b32 s{S_SRD + 2}, 0x10000000
    s_mov_b32 s{S_SRD + 3}, 0x00020000
    s_mov_b32 s{SX + 2}, {N * 256}
    s_mov_b32 s{SX + 3}, 0x00020000
    s_mov_b32 s{SDG + 2}, {N * 2}
    s_mov_b32 s{SDG + 3}, 0x00020000
    s_mov_b32 s{SOUT + 2}, {N * 256}
    s_mov_b32 s{SOUT + 3}, 0x00020000
    s_mov_b32 s{SMP + 2}, {N * 256}
    s_mov_b32 s{SMP + 3}, 0x00020000
    s_mov_b32 s{S_THR}, 0x4b800000               ; 2^24
    s_lshl_b32 s{S_T0}, s{S_W}, 12
    s_mul_i32 s{S_SRC0}, s{S_SPLIT}, {52 * 8192}
    s_add_u32 s{S_SRC0}, s{S_SRC0}, s{S_T0}
    s_mov_b32 s{S_T1}, {KF}
    s_cmp_lt_u32 s{S_W}, 2
    s_cselect_b32 s{S_T1}, s{S_T1}, {VF - 8192 - 8192}
    s_add_u32 s{S_SRC0}, s{S_SRC0}, s{S_T1}
    s_lshl_b32 s{S_Q0}, s{S_QT}, 16
    s_lshl_b32 s{S_T1}, s{S_W}, 14
    s_add_u32 s{S_Q0}, s{S_Q0}, s{S_T1}
    s_add_u32 s{S_Q0}, s{S_Q0}, {QF}
    s_add_u32 s{S_Q0 + 1}, s{S_Q0}, 0x1000
    s_add_u32 s{S_Q0 + 2}, s{S_Q0}, 0x2000
    s_add_u32 s{S_Q0 + 3}, s{S_Q0}, 0x3000
    s_mul_i32 s{S_T1}, s{S_QT}, 6
    s_add_u32 s{S_T1}, s{S_T1}, s{S_SPLIT}
    s_lshl_b32 s{S_PO}, s{S_T1}, 16
    s_lshl_b32 s{S_T0}, s{S_W}, 14
    s_add_u32 s{S_PO}, s{S_PO}, s{S_T0}
    s_add_u32 s{S_PO}, s{S_PO}, {PO}
    s_lshl_b32 s{S_PL}, s{S_T1}, 11
    s_lshl_b32 s{S_T0}, s{S_W}, 9
    s_add_u32 s{S_PL}, s{S_PL}, s{S_T0}
    s_add_u32 s{S_PL}, s{S_PL}, {PL}
    s_lshl_b32 s{S_T0}, s{S_W}, 2
    s_lshl_b32 s{S_OWN}, {1 | 1 << 6 | 1 << 12}, s{S_SPLIT}
    s_lshr_b32 s{S_OWN}, s{S_OWN}, s{S_T0}
    s_bitcmp1_b32 s{S_OWN}, 0
    s_cselect_b32 s{S_PA}, 0x7fff0000, s{S_PO}
    s_add_u32 s{S_T0}, s{S_PO}, 4096
    s_bitcmp1_b32 s{S_OWN}, 1
    s_cselect_b32 s{S_PA + 1}, 0x7fff0000, s{S_T0}
    v_mov_b32 v{VX}, 0x7fff0000
    s_mov_b32 s{S_U}, 51
    s_cmp_eq_u32 s{S_SPLIT}, 5
    s_cselect_b32 s{S_U}, 52, s{S_U}
    s_mov_b32 s{S_MODE}, 0
    s_add_u32 s{S_T0}, s{S_U}, 1
    s_cmp_lt_u32 s{S_W}, 2
    s_cselect_b32 s{S_T1}, 0, 1
    s_add_u32 s{S_T0}, s{S_T0}, s{S_T1}
    s_lshl_b32 s{S_T0}, s{S_T0}, 13
    s_add_u32 s{SKV + 2}, s{S_SRC0}, s{S_T0}
    s_sub_u32 s{SKV + 2}, s{SKV + 2}, 4096
    s_mov_b32 s{SKV + 3}, 0x00020000
    s_mov_b32 s{S_REC}, {REC}
    s_mov_b32 s{S_K0}, {KF}
    s_mov_b32 s{S_CAP}, {CAP}
    s_lshl_b32 s{S_FLG}, s{S_QT}, 7
    s_add_u32 s{S_FLG}, s{S_FLG}, {FLG}
    s_mul_i32 s{S_T0}, s{S_W}, 6
    s_add_u32 s{S_T0}, s{S_T0}, s{S_SPLIT}
    s_lshl_b32 s{S_T1}, s{S_QT}, 4
    s_add_u32 s{S_T1}, s{S_T1}, s{S_T0}
    s_cmp_lt_u32 s{S_T0}, 16
    s_cselect_b32 s{S_MASK}, -1, 0
    s_cmp_lt_u32 s{S_T1}, {N // 16}
    s_cselect_b32 s{S_MASK}, s{S_MASK}, 0
    s_lshl_b32 s{S_I}, s{S_T1}, 8
    s_add_u32 s{S_I}, s{S_I}, {TAB}
    s_mul_i32 s{S_T0}, s{S_W}, {RSZ}
    s_add_u32 s{S_T0}, s{S_T0}, {RB}
    v_mov_b32 v{VRB}, s{S_T0}
    s_add_u32 s{S_T0}, s{S_T0}, 64
    v_add_u32 v{VDC}, s{S_T0}, v12
    v_mov_b32 v{VOOB}, 0x7fffffff
    v_mov_b32 v4, 0
    v_mov_b32 v5, {LDS_FLAG}
    ds_write_b32 v5, v4
    """)
    emit_region_reset(a)
    a(f"""
    s_waitcnt lgkmcnt(0)
    s_and_b32 s{S_SRD + 1}, s{S_SRD + 1}, 0xffff
    s_and_b32 s{SX + 1}, s{SX + 1}, 0xffff
    s_and_b32 s{SDG + 1}, s{SDG + 1}, 0xffff
    s_and_b32 s{SOUT + 1}, s{SOUT + 1}, 0xffff
    s_mov_b32 s{SKV}, s{S_SRD}
    s_mov_b32 s{SKV + 1}, s{S_SRD + 1}
    s_add_u32 s{SMP}, s{S_SRD}, {MP}
    s_addc_u32 s{SMP + 1}, s{S_SRD + 1}, 0
    buffer_load_dword v{VREM}, v12, {SRD}, s{S_I} offen
    """)
    def lane_setup():
        a(f"""
        v_bfe_u32 v2, v0, 2, 2
        v_and_b32 v3, 3, v0
        v_bfe_u32 v4, v0, 4, 2
        s_lshl_b32 s{S_T0}, s{S_W}, 6
        s_sub_u32 s{S_T1}, s{S_T0}, 12
        v_lshlrev_b32 v{GOFF}, 4, v3
        v_add_u32 v{GOFF}, s{S_T1}, v{GOFF}
        v_lshlrev_b32 v5, 4, v2
        v_sub_u32 v{GOFF}, v{GOFF}, v5               ; 64w + 16q - 16n' - 12
        v_lshlrev_b32 v{GLA}, 4, v2
        v_lshl_add_u32 v{GLA}, v4, 6, v{GLA}
        v_add_u32 v{GLA}, {RB}, v{GLA}
        """)

    def maxc():
        a(f"""
        v_and_b32 v6, 15, v0
        v_bfe_u32 v7, v0, 4, 2
        v_mul_u32_u24 v7, {RSZ}, v7
        v_lshl_add_u32 v7, v6, 2, v7
        v_add_u32 v7, {RB}, v7
        ds_read_b32 v9, v7
        s_waitcnt lgkmcnt(0)
        """)
        for sh in ("row_shr:1", "row_shr:2", "row_shr:4", "row_shr:8"):
            a(f"v_max_u32_dpp v9, v9, v9 {sh} row_mask:0xf bank_mask:0xf")
            a("s_nop 1")
        a("v_max_u32_dpp v9, v9, v9 row_bcast:15 row_mask:0xa bank_mask:0xf")
        a("s_nop 1")
        a("v_max_u32_dpp v9, v9, v9 row_bcast:31 row_mask:0xc bank_mask:0xf")
        a("s_nop 1")
        a(f"v_readlane_b32 s{S_MAXC}, v9, 63")
        a("s_nop 3")
        a(f"s_min_u32 s{S_N}, s{S_MAXC}, {CAP}")
        a(f"s_add_u32 s{S_N}, s{S_N}, 3")
        a(f"s_lshr_b32 s{S_N}, s{S_N}, 2")

    if cfg.get("ptl"):
        a("s_memrealtime s[98:99]")
    a.label("L_k2_restart")
    a.seg("k2_pro")
    a(f"s_mov_b32 s{S_SRC}, s{S_SRC0}")
    a(f"s_lshl_b32 s{S_M0}, s{S_W}, 12")
    a(f"s_mov_b32 m0, s{S_M0}")
    a(f"s_mov_b32 s{S_LEFT}, s{S_U}")

    def dma_stage():
        for k in range(4):
            a(f"buffer_load_dwordx4 v{VL16}, {KVS}, s{S_SRC} offen offset:{1024 * k} lds")

    def dma_adv():
        a(f"s_add_u32 s{S_M0}, s{S_M0}, 0x4000")
        a(f"s_and_b32 m0, s{S_M0}, 0x1ffff")
        a(f"s_add_u32 s{S_SRC}, s{S_SRC}, 0x2000")

    for i in range(8):
        a(f"v_mov_b32 v{P + 8 + i}, 0")
    zq = [f"v_mfma_f32_32x32x16_bf16 {vr(O + 16 * i, 16)}, {vr(P + 8, 4)}, {vr(P + 8, 4)}, 0" for i in range(8)]
    zq += [f"v_mfma_f32_32x32x16_bf16 {ar(AV + 16 * i, 16)}, {vr(P + 8, 4)}, {vr(P + 8, 4)}, 0" for i in range(2)]
    for s_ in range(4):
        a(f"buffer_load_dwordx4 {ar(AK + 16 + 4 * s_, 4)}, v{VL16}, {SRD}, s{S_K0} offen offset:{1024 * s_}")
    for i in range(16):
        a(f"buffer_load_dwordx4 {ar(4 * i, 4)}, v{VL16}, {SRD}, s{S_Q0 + (i >> 2)} offen offset:{1024 * (i & 3)}")
        if i % 2 == 1:
            a(zq.pop())
    for st in range(2):
        dma_stage()
        dma_adv()
        a(zq.pop())
    assert not zq
    a(f"s_cmp_lg_u32 s{S_MODE}, 0")
    a("s_cbranch_scc1 L_k2_nosetup")
    lane_setup()
    a(f"""
    v_and_b32 v6, 15, v0
    v_and_b32 v7, 1, v6
    v_lshlrev_b32 v7, 4, v7
    v_mov_b32 v8, 0x3f80
    v_lshlrev_b32 v7, v7, v8                     ; value
    v_lshrrev_b32 v6, 1, v6                      ; 0..7 = (h, dword)
    """)
    for k in range(8):
        a(f"v_cmp_eq_u32 s[{SMK + 2 * k}:{SMK + 2 * k + 1}], {k}, v6")
    for k in range(8):
        a(f"v_cndmask_b32 v{BT + k}, 0, v7, s[{SMK + 2 * k}:{SMK + 2 * k + 1}]")
    for k in range(8):
        a(f"v_accvgpr_write_b32 a{AAH + k}, v{BT + k}")
    Z = vr(P + 8, 4)
    for i in range(4):
        a(f"v_mfma_f32_32x32x16_bf16 {ar(ABUF + 16 * i, 16)}, {Z}, {Z}, 0")
    for i in range(2):
        a(f"{MF} {ar(ABUF + 64 + 4 * i, 4)}, {Z}, {Z}, 0")
    a.label("L_k2_nosetup")
    a.seg("k2_pro2")
    for qb in range(NQ):
        a(f"v_mov_b32 v{L + qb}, 0")
    a(f"v_add_u32 v{VLDS}, 0x4000, v{VL16}")
    if cfg.get("ptl"):
        a("s_memrealtime s[62:63]")
    a("s_waitcnt vmcnt(8)")
    if cfg.get("ptl"):
        a("s_memrealtime s[60:61]")
    dq = []
    for st in range(PF - 1):
        dq += [[f"buffer_load_dwordx4 v{VL16}, {KVS}, s{S_SRC} offen offset:{1024 * k} lds"] for k in range(4)]
        dq[-1] += [f"s_add_u32 s{S_M0}, s{S_M0}, 0x4000", f"s_and_b32 m0, s{S_M0}, 0x1ffff", f"s_add_u32 s{S_SRC}, s{S_SRC}, 0x2000"]
    n = 0
    for s_ in range(4):
        for qb in range(4):
            d = vr(St(qb, 1), 4)
            a(f"{MF} {d}, {ar(AK + 16 + 4 * s_, 4)}, {ar(AQ + (qb * 4 + s_) * 4, 4)}, {'0' if s_ == 0 else d}")
            if n % 4 == 1:
                for t in dq.pop(0):
                    a(t)
            n += 1
    a("s_waitcnt vmcnt(8)")
    a("s_barrier")
    if cfg.get("ptl"):
        a("s_memrealtime s[56:57]")
    for s in range(8):
        a(f"ds_read_b128 {ar(AK + 4 * s, 4)}, v{VL16} offset:{1024 * s}")
    a("s_nop 1")
    for qb in range(4):
        s0 = St(qb, 1)
        a(f"v_max3_f32 v{s0}, v{s0}, v{s0 + 1}, v{s0 + 2}")
    for qb in range(4):
        s0 = St(qb, 1)
        a(f"v_max_f32 v{s0}, v{s0}, v{s0 + 3}")
    for sw in ("v_permlane32_swap_b32", "v_permlane16_swap_b32"):
        for qb in range(4):
            a(f"v_mov_b32 v{St(qb, 1) + 1}, v{St(qb, 1)}")
        a("s_nop 0")
        for qb in range(4):
            a(f"{sw} v{St(qb, 1)}, v{St(qb, 1) + 1}")
        a("s_nop 0")
        for qb in range(4):
            a(f"v_max_f32 v{St(qb, 1)}, v{St(qb, 1)}, v{St(qb, 1) + 1}")
    for qb in range(4):
        for i in range(4):
            a(f"v_sub_f32 v{NM + 4 * qb + i}, 0, v{St(qb, 1)}")
    a("s_waitcnt lgkmcnt(0)")
    for n, x in enumerate(qk_order("A")):
        a(mfma_qk(*x))
        if n % 2 == 0 and dq:
            for t in dq.pop(0):
                a(t)
    assert not dq
    if cfg.get("stamp"):
        a("s_memtime s[90:91]")
        a("s_memrealtime s[92:93]")
        a("s_waitcnt lgkmcnt(0)")
    a(f"s_cmp_lg_u32 s{S_MODE}, 0")
    a("s_cbranch_scc1 L_safe")
    if cfg.get("ptl"):
        a("s_memrealtime s[58:59]")
        a("s_waitcnt lgkmcnt(0)")
    a(f"s_mov_b32 s{S_CNT}, {NBR}")
    a(f"s_mov_b32 s{S_EV}, 0")
    a.raw(".p2align 6")
    emit_body(a, cfg, "m", False)
    a.seg("k2_mid")
    a(f"s_add_u32 s{S_EV}, s{S_EV}, 1")
    a(f"s_cmp_eq_u32 s{S_EV}, 4")
    a("s_cbranch_scc1 L_loop_done")
    a(f"s_cmp_eq_u32 s{S_EV}, 3")
    a("s_cbranch_scc1 L_ev_g")
    a(f"s_cmp_eq_u32 s{S_EV}, 2")
    a("s_cbranch_scc1 L_ev_b")
    a.seg("k2_evr")
    a(f"""
    v_and_b32 v{VREM}, s{S_MASK}, v{VREM}
    v_and_b32 v2, 63, v0
    v_mul_u32_u24 v2, {RECS}, v2
    v_and_b32 v3, 0xffff, v{VREM}
    v_lshl_add_u32 v{VSEG}, v3, 2, v2
    v_lshrrev_b32 v{VREM}, 16, v{VREM}
    """)
    for k in range(NSLOT // 4):
        a(f"buffer_load_dwordx4 {vr(RC + 4 * k, 4)}, v{VSEG}, {SRD}, s{S_REC} offen offset:{16 * k}")
    a(f"s_mov_b32 s{S_CNT}, {NB0}")
    a("s_branch L_body_m")
    a.label("L_ev_b")
    a.seg("k2_ev")
    if cfg.get("ptl"):
        a("s_memrealtime s[100:101]")
        a("s_waitcnt lgkmcnt(0)")
    a(f"s_waitcnt vmcnt({4 * NB0})")
    a("v_mov_b32 v12, 1")
    RK = 4
    for grp in range(NSLOT // 8):
        for k in range(8):
            a(f"v_cmp_lt_u32 s[{SMK + 2 * k}:{SMK + 2 * k + 1}], {8 * grp + k}, v{VREM}")
        for k in range(8):
            a(f"v_and_or_b32 v{BT + k}, v{RC + 8 * grp + k}, 60, v{VRB}")
        if grp:
            a(f"s_cmp_eq_u64 s[{SMK}:{SMK + 1}], 0")
            a("s_cbranch_scc1 L_ev_built")
        for k in range(8):
            a(f"v_cndmask_b32 v{BT + k}, v{VDC}, v{BT + k}, s[{SMK + 2 * k}:{SMK + 2 * k + 1}]")
            a(f"ds_add_rtn_u32 v{RK + k}, v{BT + k}, v12")
        for k in range(8):
            a(f"s_waitcnt lgkmcnt(7)")
            a(f"v_min_u32 v{RK + k}, s{S_CAP}, v{RK + k}")
            a(f"v_lshl_add_u32 v{BT + k}, v{RK + k}, 6, v{BT + k}")
            a(f"ds_write_b32 v{BT + k}, v{RC + 8 * grp + k} offset:{LOFF}")
    a.label("L_ev_built")
    a(f"""
    v_and_b32 v2, 15, v0
    v_lshl_add_u32 v2, v2, 2, v{VRB}
    ds_read_b32 v3, v2
    v_cmp_lt_u32 s[{SMK}:{SMK + 1}], {NSLOT}, v{VREM}
    s_waitcnt lgkmcnt(0)
    v_cmp_lt_u32 vcc, s{S_CAP}, v3
    s_nop 3
    s_or_b64 vcc, vcc, s[{SMK}:{SMK + 1}]
    s_cbranch_vccnz L_car_e
    v_mov_b32 v{VREM}, 0
    """)
    a.label("L_ev_ret")

    a(f"s_mov_b32 s{S_CNT}, 1")
    a("s_branch L_body_m")
    a.label("L_ev_g")
    a.seg("k2_evg")
    maxc()
    a(f"""
    s_min_u32 s{S_CNT}, s{S_N}, {NGMAX}
    s_max_u32 s{S_CNT}, s{S_CNT}, 1
    s_sub_u32 s{S_N}, s{S_N}, s{S_CNT}
    s_mul_i32 s{S_T0}, s{S_CNT}, 3
    s_sub_u32 s{S_LEFT}, s{S_LEFT}, s{S_T0}
    s_sub_u32 s{S_LEFT}, s{S_LEFT}, {NBR + NB0 + 1}
    v_bfe_u32 v2, v0, 2, 2
    v_and_b32 v3, 3, v0
    v_bfe_u32 v4, v0, 4, 2
    s_lshl_b32 s{S_T0}, s{S_W}, 6
    s_lshl_b32 s{S_T1}, s{S_QT}, 4
    s_add_u32 s{S_T1}, s{S_T1}, s{S_SPLIT}
    s_lshl_b32 s{S_I}, s{S_T1}, 12
    s_add_u32 s{S_I}, s{S_I}, s{S_T0}
    v_lshrrev_b32 v5, 1, v4
    v_lshl_add_u32 v5, v5, 2, v2
    v_and_b32 v6, 1, v4
    v_lshlrev_b32 v{VX}, 8, v5
    v_lshl_add_u32 v{VX}, v6, 5, v{VX}
    v_lshl_add_u32 v{VX}, v3, 3, v{VX}
    v_add_u32 v{VX}, s{S_I}, v{VX}
    v_add_u32 v10, {6 * 4096}, v{VX}
    v_add_u32 v11, {12 * 4096}, v{VX}
    s_lshl_b32 s{S_I}, s{S_T1}, 5
    v_lshlrev_b32 v5, 1, v5
    v_add_u32 v5, s{S_I}, v5
    s_waitcnt vmcnt(0)
    """)
    for b in range(3):
        for m in range(2):
            a(f"buffer_load_dwordx2 {ar(AXV + 4 * b + 2 * m, 2)}, v{[VX, 10, 11][b]}, s[{SX}:{SX + 3}], 0 offen offset:{2048 * m}")
            a(f"buffer_load_ushort a{ADI + 2 * b + m}, v5, s[{SDG}:{SDG + 3}], 0 offen offset:{192 * b + 16 * m}")
    if cfg.get("touch"):
        a(f"buffer_load_dword a226, v{VL16}, {SRD}, s{S_PO} offen")
        a(f"buffer_load_dword a227, v{VL16}, {SRD}, s{S_PL} offen")
        a(f"buffer_load_dword a228, v{VL16}, {SRD}, s{S_FLG} offen")
        a(f"buffer_load_dword a229, v{VX}, s[{SOUT}:{SOUT + 3}], 0 offen")
    a.raw(".p2align 6")
    for gb in range(3):
        emit_body(a, cfg, f"g{gb}", False, gb=gb, loop="g0")
    a.seg("k2_gx")
    a(f"s_mov_b32 s{S_CNT}, s{S_LEFT}")
    a(f"s_cmp_lg_u32 s{S_LEFT}, 0")
    a("s_cbranch_scc1 L_body_m")
    a.label("L_loop_done")
    a.seg("k2_mid2")
    if cfg.get("stamp"):
        a("s_memtime s[94:95]")
        a("s_memrealtime s[96:97]")
        a(f"s_load_dwordx2 s[64:65], s[0:1], 80")
        a("s_waitcnt lgkmcnt(0)")
        a("s_sub_u32 s94, s94, s90")
        a("s_sub_u32 s96, s96, s92")
        a("v_mov_b32 v2, s94")
        a("v_mov_b32 v3, s96")
        a("s_and_b32 s65, s65, 0xffff")
        a("s_mov_b32 s66, 256")
        a("s_mov_b32 s67, 0x00020000")
        a("s_lshr_b32 s72, s2, 3")
        a("s_lshl_b32 s72, s72, 3")
        a("v_mov_b32 v4, s72")
        a("s_and_b32 s73, s2, 7")
        a(f"s_or_b32 s73, s73, s{S_W}")
        a("s_cmp_lg_u32 s73, 0")
        a("s_cbranch_scc1 L_nostamp")
        a("buffer_store_dwordx2 v[2:3], v4, s[64:67], 0 offen")
        a.label("L_nostamp")
    a(f"s_cmp_eq_u32 s{S_SPLIT}, 5")
    a("s_cbranch_scc1 L_body_lm")
    emit_body(a, cfg, "lf", False, last=True, nkb=2)
    a("s_branch L_k2_chk")
    emit_body(a, cfg, "lm", False, last=True, nkb=1)
    a.label("L_k2_chk")
    a.seg("k2_chk")
    a(f"""
    v_max3_f32 v4, v{L}, v{L + 1}, v{L + 2}
    v_max_f32 v4, v4, v{L + 3}
    v_add_f32 v6, v{L}, v{L + 1}
    v_add_f32 v7, v{L + 2}, v{L + 3}
    v_add_f32 v6, v6, v7
    s_mov_b32 s{S_T0}, 0x53800000
    v_cmp_ngt_f32 vcc, s{S_T0}, v4
    v_cmp_u_f32 s[{SMK}:{SMK + 1}], v6, v6
    v_mov_b32 v5, {LDS_FLAG}
    v_mov_b32 v4, 1
    s_or_b64 vcc, vcc, s[{SMK}:{SMK + 1}]
    s_cbranch_vccz L_k2_chk2
    ds_write_b32 v5, v4
    """)
    a.label("L_k2_chk2")
    a(f"""
    s_waitcnt vmcnt(8) lgkmcnt(0)
    s_barrier
    ds_read_b32 v4, v5
    s_waitcnt lgkmcnt(0)
    v_readfirstlane_b32 s{S_T0}, v4
    s_nop 3
    s_cmp_eq_u32 s{S_T0}, 0
    s_cbranch_scc1 L_k2_epi
    s_waitcnt vmcnt(0)
    s_barrier
    """)
    a(f"s_mov_b32 s{S_MODE}, 1")
    a("s_branch L_k2_restart")
    a.label("L_safe")
    a.seg("k2_safe0")
    a(f"s_mov_b32 s{S_CNT}, s{S_LEFT}")
    emit_body(a, cfg, "s", True)
    a.seg("k2_smid")
    a(f"s_cmp_eq_u32 s{S_SPLIT}, 5")
    a("s_cbranch_scc1 L_body_sm")
    emit_body(a, cfg, "sf", True, last=True, nkb=2)
    a("s_branch L_k2_epi0")
    emit_body(a, cfg, "sm", True, last=True, nkb=1)
    a.label("L_k2_epi0")
    a.seg("k2_epi0")
    a("s_nop 7")
    a("s_waitcnt vmcnt(8) lgkmcnt(0)")
    a("s_barrier")
    a.label("L_k2_epi")
    a.seg("k2_epi")
    if cfg.get("tl") and not cfg.get("ptl"):
        a("s_memrealtime s[98:99]")
    VPLA = 8
    smp = f"s[{SMP}:{SMP + 3}]"

    def consume_all():
        for b in range(3):
            for k in range(4):
                d = ar(AAG + 8 * b + 4 * (k >> 1), 4)
                a(f"{MF} {d}, {ar(AAH + 4 * (k & 1), 4)}, {ar(ABUF + 16 * b + 4 * k, 4)}, {d}")

    def publish():
        for sw in ("v_permlane32_swap_b32", "v_permlane16_swap_b32"):
            for qb in range(NQ):
                a(f"v_mov_b32 v{T + qb}, v{L + qb}")
            a("s_nop 0")
            for qb in range(NQ):
                a(f"{sw} v{L + qb}, v{T + qb}")
            a("s_nop 0")
            for qb in range(NQ):
                a(f"v_add_f32 v{L + qb}, v{L + qb}, v{T + qb}")
        for qb in range(NQ):
            a(f"v_mov_b32 v{57 + 2 * qb}, v{L + qb}")
        n = 0
        for qb in (2, 3, 0, 1):
            a(f"s_bitcmp1_b32 s{S_OWN}, {qb}")
            a(f"s_cbranch_scc1 L_own{qb}")
            if qb >= 2:
                a(f"s_add_u32 s{S_T0}, s{S_PO}, {qb * 4096}")
                for p in range(4):
                    t = 26 + 4 * (n % 2)
                    n += 1
                    for d in range(4):
                        src = O + (qb * 8 + 2 * p) * 4 + 2 * d
                        a(f"v_cvt_pk_bf16_f32 v{t + d}, v{src}, v{src + 1}")
                    a(f"buffer_store_dwordx4 {vr(t, 4)}, v{VL16}, {SRD}, s{S_T0} offen offset:{1024 * p} sc1")
            a.label(f"L_ownr{qb}")
        a("s_mov_b64 exec, 0xffff")
        for qb in range(NQ):
            a(f"buffer_store_dwordx2 v[{56 + 2 * qb}:{57 + 2 * qb}], v{VPLA}, {SRD}, s{S_PL} offen offset:{128 * qb} sc1")
        a("s_mov_b64 exec, -1")


    a(f"v_and_b32 v{VPLA}, 15, v0")
    a(f"v_lshlrev_b32 v{VPLA}, 3, v{VPLA}")
    for qb in range(NQ):
        a(f"v_sub_f32 v{56 + 2 * qb}, 0, v{NM + 4 * qb}")
    publish()
    if cfg.get("tl") and not cfg.get("ptl"):
        a("s_memrealtime s[62:63]")
        a("s_memrealtime s[60:61]")
    consume_all()
    a("s_waitcnt vmcnt(0) lgkmcnt(0)")
    if cfg.get("tl") and not cfg.get("ptl"):
        a("s_memrealtime s[56:57]")
    a("s_barrier")
    a(f"""
    s_cmp_lg_u32 s{S_W}, 0
    s_cbranch_scc1 L_nosig
    s_lshl_b32 s{S_T0}, s{S_SPLIT}, 2
    v_mov_b32 v10, s{S_T0}
    s_add_u32 s{S_T1}, s{S_MODE}, 1
    v_mov_b32 v11, s{S_T1}
    s_mov_b64 exec, 1
    buffer_store_dword v11, v10, {SRD}, s{S_FLG} offen sc1
    s_mov_b64 exec, -1
    """)
    a.label("L_nosig")
    a(f"s_cmp_gt_i32 s{S_N}, 0")
    a("s_cbranch_scc1 L_left")
    a.label("L_gdone")
    a.seg("k2_fin")
    if cfg.get("tl") and not cfg.get("ptl"):
        a("s_memrealtime s[58:59]")
    POV, PLV = 128, 200
    ACC, BP, AI, XA, VXB = 26, 64, 34, 96, 5
    a(f"""
    v_and_b32 v{VPLA}, 15, v0
    v_and_b32 v9, 63, v0
    v_min_u32 v9, 5, v9
    v_lshlrev_b32 v9, 2, v9
    buffer_load_dword v10, v9, {SRD}, s{S_FLG} offen sc1
    s_mul_i32 s{S_T0}, s{S_QT}, {6 * 65536}
    s_lshl_b32 s{S_T1}, s{S_SPLIT}, 12
    s_add_u32 s{S_T0}, s{S_T0}, s{S_T1}
    s_lshl_b32 s{S_T1}, s{S_W}, 10
    s_add_u32 s{S_T0}, s{S_T0}, s{S_T1}
    s_add_u32 s{S_PO}, s{S_T0}, {PO}
    s_mul_i32 s{S_T0}, s{S_QT}, {6 * 2048}
    s_lshl_b32 s{S_T1}, s{S_SPLIT}, 7
    s_add_u32 s{S_T0}, s{S_T0}, s{S_T1}
    s_add_u32 s{S_PL}, s{S_T0}, {PL}
    v_mov_b32 v{VXB}, v{VX}
    v_add_u32 v{VXB + 1}, {6 * 4096}, v{VX}
    v_add_u32 v{VXB + 2}, {12 * 4096}, v{VX}
    v_bfe_u32 v2, v0, 2, 2
    v_and_b32 v3, 3, v0
    v_bfe_u32 v4, v0, 5, 1
    v_lshl_add_u32 v2, v4, 2, v2
    v_lshl_add_u32 v2, v3, 4, v2
    v_lshlrev_b32 v14, 2, v2
    v_add_u32 v15, 32, v14                       ; m = 1
    v_and_b32 v4, 16, v0
    v_cmp_ne_u32 s[{SMK}:{SMK + 1}], 0, v4
    v_and_b32 v2, 1, v{VPLA}
    v_lshlrev_b32 v2, 4, v2
    v_mov_b32 v3, 0x3f80
    v_lshlrev_b32 v2, v2, v3
    v_bfe_u32 v3, v{VPLA}, 1, 1
    v_lshrrev_b32 v4, 2, v{VPLA}
    v_bfe_u32 v11, v0, 4, 2
    v_xor_b32 v4, v4, v11
    v_lshl_add_u32 v3, v4, 1, v3
    v_cmp_eq_u32 s[{SMK + 2}:{SMK + 3}], 0, v3
    v_cmp_eq_u32 s[{SMK + 4}:{SMK + 5}], 1, v3
    v_lshlrev_b32 v{VPLA}, 3, v{VPLA}
    """)
    for k in (2, 3, 4, 5):
        a(f"v_mov_b32 v{AI + k}, 0")
    for k in range(2):
        a(f"v_cndmask_b32 v{AI + k}, 0, v2, s[{SMK + 2 + 2 * k}:{SMK + 3 + 2 * k}]")
        a(f"v_cndmask_b32 v{AI + 6 + k}, 0, v2, s[{SMK + 2 + 2 * k}:{SMK + 3 + 2 * k}]")
    for b in range(3):
        for m in range(2):
            a(f"v_accvgpr_read_b32 v2, a{ADI + 2 * b + m}")
            for d in range(2):
                a(f"v_accvgpr_read_b32 v{3 + d}, a{AXV + 4 * b + 2 * m + d}")
            for r in range(4):
                a(f"v_accvgpr_read_b32 v{80 + r}, a{AAG + 8 * b + 4 * m + r}")
            a("v_lshlrev_b32 v2, 16, v2")
            xa = XA + 8 * b + 4 * m
            for d in range(2):
                a(f"v_lshlrev_b32 v{xa + 2 * d}, 16, v{3 + d}")
                a(f"v_and_b32 v{xa + 2 * d + 1}, 0xffff0000, v{3 + d}")
            for r in range(4):
                a(f"v_fmac_f32 v{xa + r}, v{80 + r}, v2")
    a(f"s_mov_b32 s{S_T1}, s{S_SPLIT}")
    for s in range(6):
        a(f"s_lshl_b32 s{S_T0}, s{S_T1}, 11")
        a(f"s_add_u32 s{SMK + 8 + s}, s{S_PL}, s{S_T0}")
        if s:
            a(f"s_lshl_b32 s{S_T0}, s{S_T1}, 16")
            a(f"s_add_u32 s{SMK + 14 + s}, s{S_PO}, s{S_T0}")
        a(f"s_add_u32 s{S_T1}, s{S_T1}, 1")
        a(f"s_cmp_eq_u32 s{S_T1}, 6")
        a(f"s_cselect_b32 s{S_T1}, 0, s{S_T1}")
    a(f"s_lshl_b32 s{S_T0}, s{S_W}, 10")
    a(f"v_add_u32 v2, s{S_T0}, v{VL16}")
    for b in range(3):
        a(f"ds_read_b128 {vr(POV + 24 * b, 4)}, v2 offset:{4096 * b}")
    a("s_waitcnt lgkmcnt(0)")
    a("s_branch L_poll1")
    a.label("L_poll")
    a("s_sleep 1")
    a(f"buffer_load_dword v10, v9, {SRD}, s{S_FLG} offen sc1")
    a.label("L_poll1")
    a(f"""
    s_waitcnt vmcnt(0)
    v_cmp_eq_u32 vcc, 0, v10
    s_cbranch_vccnz L_poll
    """)
    if cfg.get("tl") and not cfg.get("ptl"):
        a("s_memrealtime s[100:101]")
        a("s_waitcnt lgkmcnt(0)")
    a("v_cmp_ne_u32 vcc, 1, v10")
    for b in range(3):
        if b == 2:
            a(f"s_cmp_gt_u32 s{S_SPLIT}, 3")
            a("s_cbranch_scc1 L_no3")
        for s in range(6):
            a(f"buffer_load_dwordx2 {vr(PLV + 12 * b + 2 * s, 2)}, v{VPLA}, {SRD}, s{SMK + 8 + s} offen offset:{768 * b} sc1")
        for s in range(1, 6):
            a(f"s_add_u32 s{S_T0}, s{SMK + 14 + s}, {b * 6 * 4096}")
            a(f"buffer_load_dwordx4 {vr(POV + 24 * b + 4 * s, 4)}, v{VL16}, {SRD}, s{S_T0} offen sc1")
    a.label("L_ld_done")
    a("s_cbranch_vccnz L_general")

    def finish(b, rcp):
        for m in range(2):
            if rcp:
                a(f"ds_bpermute_b32 v{80 + m}, v{14 + m}, v{rcp}")
            for j in range(8):
                a(f"ds_bpermute_b32 v{BP + 8 * m + j}, v{14 + m}, v{ACC + j}")
        ob = 56 + 4 * (b & 1)
        for m in range(2):
            a(f"s_waitcnt lgkmcnt({(9 if rcp else 8) * (1 - m)})")
            xa = XA + 8 * b + 4 * m
            for r in range(4):
                a(f"v_cndmask_b32 v{BP + 8 * m + r}, v{BP + 8 * m + r}, v{BP + 8 * m + 4 + r}, s[{SMK}:{SMK + 1}]")
                if rcp:
                    a(f"v_fmac_f32 v{xa + r}, v{BP + 8 * m + r}, v{80 + m}")
                else:
                    a(f"v_add_f32 v{xa + r}, v{xa + r}, v{BP + 8 * m + r}")
            for d in range(2):
                a(f"v_cvt_pk_bf16_f32 v{ob + 2 * m + d}, v{xa + 2 * d}, v{xa + 2 * d + 1}")
            a(f"buffer_store_dwordx2 {vr(ob + 2 * m, 2)}, v{VXB + b}, s[{SOUT}:{SOUT + 3}], 0 offen offset:{2048 * m}{OSC}")

    for b in range(3):
        pl, po = PLV + 12 * b, POV + 24 * b
        if b == 2:
            a(f"s_cmp_gt_u32 s{S_SPLIT}, 3")
            a("s_cbranch_scc1 L_k2_done")
        for s in range(6):
            if s:
                a(f"s_waitcnt vmcnt({5 - s + 11 * (2 - b) + 2 * b})")
            for h in range(2):
                d = vr(ACC + 4 * h, 4)
                a(f"{MF} {d}, {vr(AI + 4 * h, 4)}, {vr(po + 4 * s, 4)}, {'0' if s == 0 else d}")
            if s == 1:
                a(f"v_add_f32 v42, v{pl + 1}, v{pl + 3}")
            elif s > 1:
                a(f"v_add_f32 v42, v42, v{pl + 2 * s + 1}")
        a("v_rcp_f32 v42, v42")
        a("s_nop 5")
        finish(b, 42)
    a("s_branch L_k2_done")
    a.label("L_no3")
    a("s_waitcnt vmcnt(11)")
    a("s_cbranch_vccnz L_no3g")
    a.seg("k2_no3")
    for b in range(2):
        pl, po = PLV + 12 * b, POV + 24 * b
        for s in range(6):
            if s and b:
                a(f"s_waitcnt vmcnt({5 - s + 2})")
            for h in range(2):
                d = vr(ACC + 4 * h, 4)
                a(f"{MF} {d}, {vr(AI + 4 * h, 4)}, {vr(po + 4 * s, 4)}, {'0' if s == 0 else d}")
            if s == 1:
                a(f"v_add_f32 v42, v{pl + 1}, v{pl + 3}")
            elif s > 1:
                a(f"v_add_f32 v42, v42, v{pl + 2 * s + 1}")
        a("v_rcp_f32 v42, v42")
        a("s_nop 5")
        finish(b, 42)
    a("s_branch L_k2_done")
    a.label("L_no3g")
    a("s_waitcnt vmcnt(0)")
    a.label("L_general")
    a.seg("k2_gen")
    for b in range(3):
        pl, po = PLV + 12 * b, POV + 24 * b
        if b == 2:
            a(f"s_cmp_gt_u32 s{S_SPLIT}, 3")
            a("s_cbranch_scc1 L_k2_done")
        a(f"s_waitcnt vmcnt({11 * (2 - b) + 2 * b})")
        a(f"v_max3_f32 v44, v{pl}, v{pl + 2}, v{pl + 4}")
        a(f"v_max3_f32 v44, v44, v{pl + 6}, v{pl + 8}")
        a(f"v_max_f32 v44, v44, v{pl + 10}")
        for s in range(6):
            a(f"v_sub_f32 v{pl + 2 * s}, v{pl + 2 * s}, v44")
        for s in range(6):
            a(f"v_exp_f32 v{pl + 2 * s}, v{pl + 2 * s}")
        a("s_nop 0")
        a(f"v_mul_f32 v45, v{pl}, v{pl + 1}")
        for s in range(1, 6):
            a(f"v_fmac_f32 v45, v{pl + 2 * s}, v{pl + 2 * s + 1}")
        a("v_rcp_f32 v45, v45")
        a("s_nop 0")
        for s in range(6):
            a(f"v_mul_f32 v{pl + 2 * s}, v{pl + 2 * s}, v45")
        for s in range(6):
            for d in range(4):
                r = po + 4 * s + d
                a(f"v_lshlrev_b32 v42, 16, v{r}")
                a(f"v_and_b32 v43, 0xffff0000, v{r}")
                op = "v_mul_f32" if s == 0 else "v_fmac_f32"
                a(f"{op} v{ACC + 2 * d}, v42, v{pl + 2 * s}")
                a(f"{op} v{ACC + 2 * d + 1}, v43, v{pl + 2 * s}")
        finish(b, None)
    a.label("L_k2_done")
    a("s_waitcnt vmcnt(0)")
    if cfg.get("tl"):
        a("s_waitcnt lgkmcnt(0)")
        a("s_mov_b64 exec, 1")
        a("v_lshrrev_b32 v1, 6, v0")
        a("v_lshlrev_b32 v1, 5, v1")
        a(f"s_lshl_b32 s88, s2, 7")
        a(f"s_add_u32 s88, s88, {TR + 3 * 0x40000}")
        for i, sr in enumerate((98, 62, 60, 56, 58, 100)):
            a(f"v_mov_b32 v{2 + i}, s{sr}")
        a(f"buffer_store_dwordx4 v[2:5], v1, {SRD}, s88 offen")
        a(f"buffer_store_dwordx2 v[6:7], v1, {SRD}, s88 offen offset:16")
    stamp_exit(a, cfg, 84, 2, SRD, TR)
    a.label("L_k2_end")
    a("s_endpgm")
    a.label("L_left")
    a.seg("k2_left0")
    lane_setup()
    a(f"v_add_u32 v{GLA}, {NGMAX * 256}, v{GLA}")
    a.label("L_left_loop")
    a.seg("k2_left")
    for b in range(3):
        a(f"ds_read_b128 {vr(64 + 4 * b, 4)}, v{GLA} offset:{b * RSZ + LOFF}")
    a(f"v_add_u32 v{GLA}, 256, v{GLA}")
    a("s_waitcnt lgkmcnt(0)")
    for b in range(3):
        for k in range(4):
            a(f"v_add_u32 v{64 + 4 * b + k}, v{64 + 4 * b + k}, v{GOFF}")
            a(f"buffer_load_dwordx4 {ar(ABUF + 16 * b + 4 * k, 4)}, v{64 + 4 * b + k}, {smp}, 0 offen offset:{12 - 4 * k}")
    a("s_waitcnt vmcnt(0)")
    consume_all()
    a(f"""
    s_sub_u32 s{S_N}, s{S_N}, 1
    s_cmp_gt_i32 s{S_N}, 0
    s_cbranch_scc1 L_left_loop
    s_nop 7
    s_cmp_le_u32 s{S_MAXC}, {CAP}
    s_cbranch_scc1 L_gdone
    s_barrier
    s_branch L_car_t
    """)
    a.label("L_more2")
    a.seg("k2_more2")
    a("s_barrier")
    maxc()
    lane_setup()
    a("s_branch L_left_loop")
    for qb in range(NQ):
        a.label(f"L_own{qb}")
        a.seg(f"k2_own{qb}")
        a(f"s_lshl_b32 s{S_I}, s{S_W}, 2")
        a(f"s_add_u32 s{S_I}, s{S_I}, {qb}")
        a(f"s_sub_u32 s{S_I}, s{S_I}, s{S_SPLIT}")
        a(f"s_mul_i32 s{S_T1}, s{S_I}, 683")
        a(f"s_and_b32 s{S_T1}, s{S_T1}, 0x3000")
        a(f"v_add_u32 v42, s{S_T1}, v{VL16}")
        for p in range(4):
            t = 26 + 4 * (p % 2)
            for d in range(4):
                src = O + (qb * 8 + 2 * p) * 4 + 2 * d
                a(f"v_cvt_pk_bf16_f32 v{t + d}, v{src}, v{src + 1}")
            a(f"ds_write_b128 v42, {vr(t, 4)} offset:{1024 * p}")
        a(f"s_branch L_ownr{qb}")
    emit_careful(a, "e", "L_ev_ret")
    emit_careful(a, "t", "L_more2")
    for tag, nkb in (("s", 2), ("sf", 2), ("sm", 1)):
        for X in "AB":
            emit_slow(a, X, nkb, tag + X)
    return dict(name=name, vgpr=512, accum=256, sgpr=102, grid=NWG, block=256, lds=RB + 4 * RSZ,
                chains=[["k2_pro0", "k2_pro", "k2_pro2", "body_m", "body_m", "k2_mid", "k2_mid2", "body_lf", "k2_chk", "k2_epi", "k2_fin"],
                        ["body_m", "k2_mid", "k2_ev", "body_m"], ["body_m", "k2_mid", "k2_evr", "body_m"], ["body_g2", "k2_gx", "k2_mid2", "body_lf"], ["body_g2", "k2_gx", "k2_mid2", "body_lm"], ["k2_ev", "careful_e", "body_m"],
                        ["body_m", "k2_mid", "k2_evg", "body_g0", "body_g1", "body_g2", "body_g0", "body_g1", "body_g2", "k2_gx", "body_m"],
                        ["body_m", "k2_mid", "k2_mid2", "body_lm", "k2_chk", "k2_pro"],
                        ["k2_pro", "k2_pro2", "k2_safe0", "body_s", "body_s", "k2_smid", "body_sf", "k2_epi0", "k2_epi"],
                        ["body_s", "k2_smid", "body_sm", "k2_epi0", "k2_epi"],
                        ["k2_fin", "k2_gen"], ["k2_fin", "k2_no3"], ["k2_chk", "k2_own0", "k2_own1", "k2_own2", "k2_own3"], ["k2_epi", "k2_left0", "k2_left", "k2_left", "k2_fin"], ["k2_left", "careful_t", "k2_more2", "k2_left"]] +
                       [["slow_" + t + X] for t in ("s", "sf", "sm") for X in "AB"])
```

```python
import re

TRANS = ("v_exp_f32", "v_log_f32", "v_rcp_f32", "v_rsq_f32", "v_sqrt_f32", "v_sin_f32", "v_cos_f32")


def _regs(tok):
    tok = tok.strip()
    tok = tok.replace("abs(", "").replace(")", "").replace("|", "")
    if tok.startswith("-"):
        tok = tok[1:]
    m = re.fullmatch(r"([vas])(\d+)", tok)
    if m:
        return [(m.group(1), int(m.group(2)))]
    m = re.fullmatch(r"([vas])\[(\d+):(\d+)\]", tok)
    if m:
        return [(m.group(1), i) for i in range(int(m.group(2)), int(m.group(3)) + 1)]
    if tok in ("vcc", "vcc_lo", "vcc_hi"):
        return [("s", "vcc")]
    if tok in ("exec", "exec_lo", "exec_hi"):
        return [("s", "exec")]
    if tok == "m0":
        return [("s", "m0")]
    return []


class Ins:
    __slots__ = ("text", "op", "ops", "mods", "kind", "wr", "rd", "mf", "passes", "states", "dpp", "lds", "cread")

    def __init__(self, text):
        self.text = text
        t = text.split(";")[0].strip()
        parts = t.split(None, 1)
        self.op = parts[0]
        rest = parts[1] if len(parts) > 1 else ""
        toks = [x.strip() for x in rest.split(",")] if rest else []
        mods = []
        rest2 = re.sub(r"\b(op_sel|op_sel_hi|neg_lo|neg_hi):\[[^\]]*\]", lambda m: (mods.append(m.group(0)), "")[1], rest)
        toks = [x.strip() for x in rest2.split(",")] if rest2.strip() else []
        if toks:
            last = toks[-1].split()
            toks[-1] = last[0] if last else ""
            mods += last[1:]
        self.ops = toks
        self.mods = mods
        op = self.op
        base = re.sub(r"_(e32|e64|dpp|sdwa)$", "", op)
        self.dpp = op.endswith("_dpp") or any(m.startswith(("row_", "quad_perm", "wave_")) for m in mods)
        self.lds = "lds" in mods
        self.mf = None
        self.passes = 0
        self.states = 1
        self.cread = []
        wr, rd = [], []
        if base.startswith("v_mfma"):
            self.kind = "mfma"
            wr = _regs(toks[0])
            a, b, c = _regs(toks[1]), _regs(toks[2]), _regs(toks[3])
            self.mf = (wr, a, b, c)
            rd = a + b + c
            self.cread = c
            self.passes = 8 if "32x32" in base else 4
        elif base.startswith("v_cmp"):
            self.kind = "valu"
            wr = _regs(toks[0])
            if base.startswith("v_cmpx"):
                wr += [("s", "exec")]
            for x in toks[1:]:
                rd += _regs(x)
        elif base in ("v_readfirstlane_b32", "v_readlane_b32"):
            self.kind = "valu"
            wr = _regs(toks[0])
            for x in toks[1:]:
                rd += _regs(x)
        elif base.startswith("v_permlane"):
            self.kind = "valu"
            wr = _regs(toks[0]) + _regs(toks[1])
            rd = list(wr)
        elif base in ("v_add_co_u32", "v_sub_co_u32", "v_addc_co_u32", "v_subb_co_u32"):
            self.kind = "valu"
            wr = _regs(toks[0]) + _regs(toks[1])
            for x in toks[2:]:
                rd += _regs(x)
        elif base == "v_nop":
            self.kind = "valu"
        elif base.startswith("v_"):
            self.kind = "valu"
            wr = _regs(toks[0])
            for x in toks[1:]:
                rd += _regs(x)
            if base in ("v_fmac_f32", "v_dot2c_f32_bf16", "v_pk_fmac_f16") or self.dpp:
                rd += wr
            if base == "v_cndmask_b32" and len(toks) == 3:
                rd += [("s", "vcc")]
        elif base.startswith("ds_"):
            self.kind = "ds"
            if base.startswith(("ds_read", "ds_bpermute", "ds_permute", "ds_swizzle")) or "_rtn" in base:
                wr = _regs(toks[0])
                for x in toks[1:]:
                    rd += _regs(x)
            else:
                for x in toks:
                    rd += _regs(x)
        elif base.startswith(("buffer_", "global_")):
            self.kind = "vmem"
            if base in ("buffer_wbl2", "buffer_inv"):
                pass
            elif "load" in base and not self.lds:
                wr = _regs(toks[0])
                for x in toks[1:]:
                    rd += _regs(x)
            elif "atomic" in base and "sc0" in mods:
                wr = _regs(toks[0])
                for x in toks:
                    rd += _regs(x)
            else:
                for x in toks:
                    rd += _regs(x)
            if self.lds:
                rd += [("s", "m0")]
        elif base == "s_nop":
            self.kind = "salu"
            self.states = int(toks[0], 0) + 1
        elif base.startswith("s_"):
            self.kind = "salu"
            if base.startswith(("s_cmp", "s_cbranch", "s_branch", "s_waitcnt", "s_barrier", "s_endpgm", "s_setprio", "s_sleep", "s_bitcmp")):
                for x in toks:
                    rd += _regs(x)
            else:
                wr = _regs(toks[0]) if toks else []
                for x in toks[1:]:
                    rd += _regs(x)
                if "saveexec" in base:
                    wr += [("s", "exec")]
        else:
            raise ValueError("unknown instruction: " + text)
        self.wr, self.rd = wr, rd
        self.op = base

    @property
    def trans(self):
        return self.op in TRANS


def check_hazards(seq, name=""):
    probs = []
    n = len(seq)
    tm = []
    mft = []
    t = 0
    for c in seq:
        if c.kind == "mfma":
            if len(mft) >= 2:
                t = max(t, mft[-2][0] + mft[-2][1])
            mft.append((t, c.passes))
        tm.append(t)
        t += c.states
    for i, c in enumerate(seq):
        for j in range(i - 1, -1, -1):
            p = seq[j]
            dist = tm[i] - tm[j] - p.states if p.kind == "mfma" else sum(x.states for x in seq[j + 1:i][:24])
            need = 0
            why = ""
            pw = set(p.wr)
            crd, cwr = set(c.rd), set(c.wr)
            vpw = {r for r in pw if r[0] in "va"}
            spw = {r for r in pw if r[0] == "s"}
            if p.kind == "valu":
                if c.kind == "mfma" and vpw & crd:
                    need, why = 2, "VALU->MFMA operand"
                if c.kind == "valu" and p.trans and not c.trans and vpw & crd:
                    need, why = max(need, 1), "trans->VALU"
                if c.kind == "valu" and (c.op.startswith("v_permlane") or c.dpp) and vpw & crd:
                    need, why = max(need, 2), "VALU->permlane/dpp"
                if c.op in ("v_readfirstlane_b32", "v_readlane_b32") and vpw & crd:
                    need, why = max(need, 1), "VALU->readlane"
                if spw:
                    if c.kind == "valu" and (spw - {("s", "exec")}) & crd:
                        need, why = max(need, 2), "VALU sgpr->VALU const"
                        if c.op in ("v_readlane_b32", "v_writelane_b32"):
                            need = max(need, 4)
                    if c.kind == "vmem" and spw & crd:
                        need, why = max(need, 5), "VALU sgpr->VMEM"
                    if ("s", "exec") in spw:
                        if c.kind == "mfma":
                            need, why = max(need, 4), "exec->mfma"
                        if c.dpp:
                            need, why = max(need, 5), "exec->dpp"
                        if c.op.startswith(("v_permlane", "v_read")):
                            need, why = max(need, 4), "exec->permlane"
            if p.kind == "mfma":
                big = p.passes == 8
                D = set(p.mf[0])
                if c.kind in ("valu",) and (D & crd or D & cwr):
                    need, why = max(need, 12 if big else 8), "MFMA D->VALU"
                if c.kind in ("vmem", "ds") and (D & crd or D & cwr):
                    need, why = max(need, 12 if big else 8), "MFMA D->mem"
                if c.kind == "mfma":
                    if D & (set(c.mf[1]) | set(c.mf[2])):
                        need, why = max(need, 12 if big else 8), "MFMA D->MFMA A/B"
                    cc = set(c.mf[3])
                    if D & cc and not (p.mf[0] == c.mf[3] and p.passes == c.passes):
                        need, why = max(need, 10 if big else 6), "MFMA D->MFMA C partial"
                    if D & set(c.mf[0]) and not (p.mf[0] == c.mf[3]):
                        need, why = max(need, 10 if big else 6), "MFMA D WAW"
                if c.kind == "valu" and set(p.cread) & cwr:
                    need, why = max(need, 7 if big else 3), "MFMA C WAR"
            if p.kind == "salu" and ("s", "m0") in pw and c.kind == "vmem" and c.lds:
                need, why = max(need, 1), "m0->lds dma"
            if p.kind == "vmem" and "store" in p.op and ("x3" in p.op or "x4" in p.op):
                data = set(_regs(p.ops[0])) if p.op.startswith("buffer") else set(_regs(p.ops[1]))
                if data & cwr:
                    need, why = max(need, 2 if c.kind == "valu" else 1), "wide store data WAR"
            if need > dist:
                probs.append(f"{name}: [{j}] {p.text.strip()}  ->  [{i}] {c.text.strip()} : {why} needs {need}, has {dist}")
            if i - j > 24:
                break
    return probs


class Asm:
    def __init__(self):
        self.lines = []
        self.segs = {}
        self.cur = None

    def seg(self, name):
        self.cur = self.segs.setdefault(name, [])

    def raw(self, text):
        self.lines.append(text)

    def label(self, name):
        self.lines.append(name + ":")

    def __call__(self, text):
        for t in text.strip().split("\n"):
            t = t.strip()
            if not t or t.startswith(";"):
                if t:
                    self.lines.append("    " + t)
                continue
            if t.endswith(":") or t.startswith("."):
                self.lines.append(t)
                continue
            self.lines.append("    " + t)
            if self.cur is not None:
                self.cur.append(Ins(t))

    def check(self, chains):
        bad = []
        for ch in chains:
            seq = []
            for s in ch:
                seq += self.segs[s]
            bad += check_hazards(seq, "+".join(ch))
        seen = set()
        out = []
        for b in bad:
            k = b.split(":", 1)[1]
            k = re.sub(r"\[\d+\]", "", k)
            if k not in seen:
                seen.add(k)
                out.append(b)
        return out

    def text(self):
        return "\n".join(self.lines) + "\n"


def stamp_entry(a, cfg, s):
    if cfg.get("tl"):
        a(f"s_memrealtime s[{s}:{s + 1}]")


def stamp_exit(a, cfg, s, kidx, srd, TR):
    if cfg.get("tl"):
        a("s_waitcnt vmcnt(0) lgkmcnt(0)")
        a(f"s_memrealtime s[{s + 2}:{s + 3}]")
        a("s_mov_b64 exec, 1")
        a("v_lshrrev_b32 v1, 6, v0")
        a("v_lshlrev_b32 v1, 3, v1")
        a(f"s_lshl_b32 s{s + 4}, s2, 5")
        a(f"s_add_u32 s{s + 4}, s{s + 4}, {TR + kidx * 0x40000}")
        a("s_waitcnt lgkmcnt(0)")
        a(f"v_mov_b32 v2, s{s}")
        a(f"v_mov_b32 v3, s{s + 2}")
        a(f"buffer_store_dwordx2 v[2:3], v1, {srd}, s{s + 4} offen")


def dbg_stamp(a, cfg, slot, back, inv=False, s=88, v=1):
    if not cfg.get("dbg"):
        return
    a(f"s_memrealtime s[{s}:{s + 1}]")
    a(f"s_load_dwordx2 s[{s + 4}:{s + 5}], s[0:1], 80")
    a("s_waitcnt lgkmcnt(0)")
    a(f"s_sub_u32 s{s + 4}, s{s + 4}, {back}")
    a(f"s_subb_u32 s{s + 5}, s{s + 5}, 0")
    a(f"s_and_b32 s{s + 5}, s{s + 5}, 0xffff")
    a(f"s_mov_b32 s{s + 6}, 256")
    a(f"s_mov_b32 s{s + 7}, 0x00020000")
    if inv:
        a(f"s_not_b32 s{s}, s{s}")
    a(f"v_mov_b32 v{v}, s{s}")
    a(f"v_mov_b32 v{v + 1}, {4 * slot}")
    a(f"s_mov_b64 s[{s + 2}:{s + 3}], exec")
    a("s_mov_b64 exec, 1")
    a(f"buffer_atomic_umax v{v}, v{v + 1}, s[{s + 4}:{s + 7}], 0 offen")
    a(f"s_mov_b64 exec, s[{s + 2}:{s + 3}]")
```

```python
from layout import *
from asmlib import stamp_entry, stamp_exit, dbg_stamp
from k1 import emit_bucket, f2u, vr

MF = "v_mfma_f32_32x32x16_bf16"


def emit_k1(a, cfg):
    name = "k1_proj_kernel"
    NT = 80
    NWG = 3 * NT
    NBK = GB
    SC1 = {0: '', 1: ' sc1', 2: ' nt', 3: ' sc0 sc1'}[cfg.get('k1sc', 0)]
    a.raw(".text")
    a.raw(f".globl {name}\n.p2align 8\n.type {name},@function")
    a.label(name)
    a.seg("k1_a")
    SX, SW1, SW2, SWS = 4, 8, 12, 16
    S_JOB, S_BLK, S_W, S_T0, S_T1, S_SC = 20, 21, 22, 23, 24, 26
    S_O1, S_O2 = 28, 29
    XR = 64
    XF = 96
    H = 32
    D = 160
    VA = 8
    ws = f"s[{SWS}:{SWS + 3}]"

    def st(k):
        if cfg.get("k1tl"):
            a(f"s_memrealtime s[{48 + 2 * k}:{49 + 2 * k}]")

    a(f"""
    s_cmp_ge_u32 s2, {NWG + NBK}
    s_cbranch_scc1 L_k1_exit
    """)
    stamp_entry(a, cfg, 32)
    if cfg.get("dbg"):
        a("s_cmp_gt_u32 s2, 7")
        a("s_cbranch_scc1 L_k1_nod")
        dbg_stamp(a, cfg, 0, 0, inv=True, s=48, v=100)
        a.label("L_k1_nod")
    a(f"s_cmp_lt_u32 s2, {NBK}")
    a("s_cbranch_scc1 L_k1_bucket")
    if cfg.get("prio"):
        a("s_setprio 3")
    a(f"""
    s_sub_u32 s25, s2, {NBK}
    s_mul_i32 s{S_T0}, s25, 820
    s_lshr_b32 s{S_T0}, s{S_T0}, 16            ; wg / 80
    s_mul_i32 s3, s{S_T0}, 80
    s_sub_u32 s3, s25, s3                      ; tile
    s_add_u32 s{S_JOB}, s{S_T0}, 2
    s_cmp_gt_u32 s{S_JOB}, 2
    s_cselect_b32 s{S_T1}, 3, 0
    s_sub_u32 s{S_JOB}, s{S_JOB}, s{S_T1}      ; 2, 0, 1
    s_mov_b32 s{S_T0}, 40
    s_cmp_eq_u32 s{S_JOB}, 1
    s_cselect_b32 s{S_T0}, 56, s{S_T0}
    s_cmp_eq_u32 s{S_JOB}, 2
    s_cselect_b32 s{S_T0}, 32, s{S_T0}
    s_cmp_eq_u32 s{S_JOB}, 0
    s_cselect_b32 s{S_T1}, 48, 64
    s_load_dwordx2 s[{SX}:{SX + 1}], s[0:1], 0
    s_load_dwordx2 s[{SW1}:{SW1 + 1}], s[0:1], s{S_T0}
    s_load_dwordx2 s[{SW2}:{SW2 + 1}], s[0:1], s{S_T1}
    s_load_dwordx2 s[{SWS}:{SWS + 1}], s[0:1], 88
    v_lshrrev_b32 v1, 6, v0
    v_and_b32 v2, 63, v0                      ; lane
    v_readfirstlane_b32 s{S_W}, v1
    s_mov_b32 s{SX + 2}, {N * 256}
    s_mov_b32 s{SX + 3}, 0x00020000
    s_mov_b32 s{SW1 + 2}, 32768
    s_mov_b32 s{SW1 + 3}, 0x00020000
    s_mov_b32 s{SW2 + 2}, 32768
    s_mov_b32 s{SW2 + 3}, 0x00020000
    s_mov_b32 s{SWS + 2}, 0x10000000
    s_mov_b32 s{SWS + 3}, 0x00020000
    s_lshl_b32 s{S_BLK}, s3, 2
    s_add_u32 s{S_BLK}, s{S_BLK}, s{S_W}
    s_lshl_b32 s{S_BLK}, s{S_BLK}, 13          ; *8192 bytes
    s_add_u32 s{S_O2}, s{S_BLK}, 4096
    v_and_b32 v3, 31, v2                       ; n
    v_lshrrev_b32 v4, 5, v2                    ; h
    v_lshrrev_b32 v6, 4, v2                    ; g
    v_and_b32 v7, 15, v2                       ; t
    v_lshlrev_b32 v16, 2, v6
    v_xor_b32 v16, v16, v7
    v_lshlrev_b32 v16, 4, v16
    v_lshl_add_u32 v16, v6, 8, v16
    v_xor_b32 v17, v6, v7
    v_lshlrev_b32 v17, 4, v17
    v_lshl_add_u32 v17, v6, 8, v17
    v_xor_b32 v18, 64, v17
    v_xor_b32 v19, 128, v17
    v_xor_b32 v20, 192, v17
    s_lshl_b32 s{S_T0}, s{S_W}, 13             ; w*8192
    s_add_u32 s{S_T1}, s{S_T0}, 4096
    s_add_u32 m0, s{S_T0}, 0x8000
    s_waitcnt lgkmcnt(0)
    s_and_b32 s{SX + 1}, s{SX + 1}, 0xffff
    s_and_b32 s{SW1 + 1}, s{SW1 + 1}, 0xffff
    s_and_b32 s{SW2 + 1}, s{SW2 + 1}, 0xffff
    s_and_b32 s{SWS + 1}, s{SWS + 1}, 0xffff
    """)
    st(0)
    for k in range(4):
        a(f"buffer_load_dwordx4 v{17 + k}, s[{SX}:{SX + 3}], s{S_BLK} offen offset:{1024 * k} lds")
    a(f"s_add_u32 m0, s{S_T1}, 0x8000")
    a("s_nop 0")
    for k in range(4):
        a(f"buffer_load_dwordx4 v{17 + k}, s[{SX}:{SX + 3}], s{S_O2} offen offset:{1024 * k} lds")

    def wdma(srd, base):
        for half, so in ((0, S_T0), (1, S_T1)):
            a(f"s_add_u32 m0, s{so}, {base}")
            a("s_nop 0")
            for k in range(4):
                a(f"buffer_load_dwordx4 v16, s[{srd}:{srd + 3}], s{so} offen offset:{1024 * k} lds")

    wdma(SW1, 0)
    a(f"""
    v_mov_b32 v21, 0
    v_lshlrev_b32 v22, 2, v0
    s_lshl_b32 s{S_O1}, s25, 7
    s_add_u32 s{S_O1}, s{S_O1}, {FLG}
    v_cmp_gt_u32 vcc, 32, v0
    s_and_saveexec_b64 s[30:31], vcc
    s_cbranch_execz L_k1_nz
    buffer_store_dword v21, v22, {ws}, s{S_O1} offen
    """)
    a.label("L_k1_nz")
    a(f"""
    s_mov_b64 exec, s[30:31]
    v_and_b32 v21, 15, v3
    v_xor_b32 v21, v21, v4
    v_lshlrev_b32 v21, 4, v21
    v_lshl_add_u32 v21, v3, 8, v21
    v_add_u32 v21, s{S_T0}, v21
    v_lshrrev_b32 v17, 2, v7                   ; r = t>>2
    v_lshrrev_b32 v18, 1, v6                   ; hh = g>>1
    v_and_b32 v19, 1, v6                       ; g&1
    v_lshlrev_b32 v20, 6, v17                  ; r*64
    v_lshl_add_u32 v20, v19, 5, v20            ; + (g&1)*32
    v_and_b32 v22, 3, v7
    v_lshl_add_u32 v20, v22, 3, v20            ; + (t&3)*8
    v_lshl_add_u32 v20, v17, 8, v20            ; + r*256
    v_lshl_add_u32 v{VA}, v18, 11, v20
    v_lshl_add_u32 v{VA + 4}, v18, 10, v20
    """)
    for i in range(1, 4):
        a(f"v_xor_b32 v{VA + i}, {i << 6}, v{VA}")
        a(f"v_xor_b32 v{VA + 4 + i}, {i << 6}, v{VA + 4}")
    for s in range(1, 8):
        a(f"v_xor_b32 v{224 + s}, {s << 5}, v21")
    if cfg.get("cpf"):
        a(f"""
        s_lshl_b32 s34, s25, 2
        s_add_u32 s34, s34, s{S_W}
        s_cmp_ge_u32 s34, {cfg["cpf"]}
        s_cbranch_scc1 L_k1_nocpf
        s_getpc_b64 s[36:37]
        L_k1_pc:
        s_add_u32 s36, s36, k2_attn_kernel - L_k1_pc
        s_addc_u32 s37, s37, 0
        s_lshl_b32 s34, s34, 10
        v_lshl_add_u32 v22, v2, 4, s34
        global_load_dwordx4 v[232:235], v22, s[36:37]
        s_waitcnt vmcnt(9)
        s_branch L_k1_xw
        L_k1_nocpf:
        """)
    a("s_waitcnt vmcnt(8)")
    a.label("L_k1_xw")
    st(1)
    for s in range(8):
        a(f"ds_read_b128 {vr(XR + 4 * s, 4)}, v{21 if s == 0 else 224 + s} offset:32768")
    a("s_waitcnt lgkmcnt(0)")
    wdma(SW2, 0x8000)
    a.seg("k1_b")
    for i in range(32):
        a(f"v_lshlrev_b32 v{XF + 2 * i}, 16, v{XR + i}")
        a(f"v_and_b32 v{XF + 2 * i + 1}, 0xffff0000, v{XR + i}")
    AC = 22
    a(f"v_pk_add_f32 {vr(AC, 2)}, {vr(XF, 2)}, {vr(XF + 2, 2)}")
    a(f"v_pk_add_f32 {vr(AC + 2, 2)}, {vr(XF + 4, 2)}, {vr(XF + 6, 2)}")
    for i in range(4, 32):
        t = AC + 2 * (i & 1)
        a(f"v_pk_add_f32 {vr(t, 2)}, {vr(t, 2)}, {vr(XF + 2 * i, 2)}")
    a(f"v_pk_add_f32 {vr(AC, 2)}, {vr(AC, 2)}, {vr(AC + 2, 2)}")
    a(f"v_add_f32 v{AC}, v{AC}, v{AC + 1}")

    def xhalf_sum(r, t):
        a(f"v_mov_b32 v{t}, v{r}")
        a("s_nop 1")
        a(f"v_permlane32_swap_b32 v{r}, v{t}")
        a("s_nop 1")
        a(f"v_add_f32 v{r}, v{r}, v{t}")

    xhalf_sum(AC, AC + 1)
    a(f"v_mul_f32 v26, {hex(f2u(-1.0 / 128))}, v{AC}")
    a("v_mov_b32 v27, v26")
    for i in range(32):
        a(f"v_pk_add_f32 {vr(XF + 2 * i, 2)}, {vr(XF + 2 * i, 2)}, v[26:27]")
    a(f"v_pk_mul_f32 {vr(AC, 2)}, {vr(XF, 2)}, {vr(XF, 2)}")
    a(f"v_pk_mul_f32 {vr(AC + 2, 2)}, {vr(XF + 2, 2)}, {vr(XF + 2, 2)}")
    for i in range(2, 32):
        t = AC + 2 * (i & 1)
        a(f"v_pk_fma_f32 {vr(t, 2)}, {vr(XF + 2 * i, 2)}, {vr(XF + 2 * i, 2)}, {vr(t, 2)}")
    a(f"v_pk_add_f32 {vr(AC, 2)}, {vr(AC, 2)}, {vr(AC + 2, 2)}")
    a(f"v_add_f32 v{AC}, v{AC}, v{AC + 1}")
    xhalf_sum(AC, AC + 1)

    def rnd(r):
        a(f"v_cvt_pk_bf16_f32 v{r}, v{r}, v{r}")
        a(f"v_lshlrev_b32 v{r}, 16, v{r}")

    a(f"v_mul_f32 v{AC}, {hex(f2u(1.0 / 128))}, v{AC}")
    rnd(AC)
    a(f"v_add_f32 v{AC}, {hex(f2u(1e-5))}, v{AC}")
    rnd(AC)
    a(f"v_sqrt_f32 v{AC}, v{AC}")
    a(f"v_cvt_pk_bf16_f32 v24, v26, v26")
    rnd(AC)
    a(f"v_rcp_f32 v28, v{AC}")
    a(f"v_lshlrev_b32 v24, 16, v24")
    a(f"v_sub_f32 v24, v24, v26")
    a(f"v_mov_b32 v29, v28")
    a(f"v_mul_f32 v24, v24, v28")
    a(f"v_mov_b32 v25, v24")
    for i in range(32):
        a(f"v_pk_fma_f32 {vr(XF + 2 * i, 2)}, {vr(XF + 2 * i, 2)}, v[28:29], v[24:25]")
    for i in range(32):
        a(f"v_cvt_pk_bf16_f32 v{H + i}, v{XF + 2 * i}, v{XF + 2 * i + 1}")
    c = 1.4426950408889634 / 128 ** 0.5
    a(f"s_mov_b32 s{S_SC}, {hex(f2u(c))}")
    a(f"s_cmp_eq_u32 s{S_JOB}, 0")
    a(f"s_cselect_b32 s{S_SC}, s{S_SC}, 1.0")
    st(2)
    a("s_waitcnt vmcnt(8)")
    a("s_barrier")
    st(3)
    WB = [XF, XF + 32]

    def reads(i, buf, addr, base, second):
        for s in range(8):
            a(f"ds_read_b64_tr_b16 {vr(buf + 4 * s, 2)}, v{addr + i} offset:{base + 4096 * s}")
            a(f"ds_read_b64_tr_b16 {vr(buf + 4 * s + 2, 2)}, v{addr + i} offset:{base + 4096 * s + second}")

    def rd(i, s, buf, addr, base, second):
        return [f"ds_read_b64_tr_b16 {vr(buf + 4 * s, 2)}, v{addr + i} offset:{base + 4096 * s}",
                f"ds_read_b64_tr_b16 {vr(buf + 4 * s + 2, 2)}, v{addr + i} offset:{base + 4096 * s + second}"]

    def gemm(addr, base, second, other, w_is_a, first_issued=False, fill=None):
        if not first_issued:
            reads(0, WB[0], addr, base, second)
        for i in range(4):
            fl = list(fill[i]) if fill else []
            per = -(-len(fl) // 6)
            fl = [None] * (2 * per) + fl
            for s in range(8):
                young = 2 * (7 - s) + (2 * s if i < 3 else 0)
                a(f"s_waitcnt lgkmcnt({min(young, 15)})")
                w = vr(WB[i & 1] + 4 * s, 4)
                o = vr(other + 4 * s, 4)
                A, B = (w, o) if w_is_a else (o, w)
                d = vr(D + 16 * i, 16)
                a(f"{MF} {d}, {A}, {B}, {'0' if s == 0 else d}")
                if i < 3:
                    for t in rd(i + 1, s, WB[(i + 1) & 1], addr, base, second):
                        a(t)
                for t in fl[per * s:per * (s + 1)]:
                    if t:
                        a(t)

    G1 = XR

    def pack1(i, scale):
        out = []
        for k in range(8):
            b = D + 16 * i + 2 * k
            if scale:
                out.append(f"v_mul_f32 v{b}, s{S_SC}, v{b}")
                out.append(f"v_mul_f32 v{b + 1}, s{S_SC}, v{b + 1}")
            out.append(f"v_cvt_pk_bf16_f32 v{G1 + 8 * i + k}, v{b}, v{b + 1}")
        return out

    gemm(VA, 0, 1024, H, True, fill=[[]] + [pack1(i, True) for i in range(3)])
    st(4)
    a("s_waitcnt vmcnt(0)")
    a("s_barrier")
    a(f"s_cmp_lg_u32 s{S_JOB}, 0")
    a("s_cbranch_scc1 L_k1_second")
    a.seg("k1_qk")
    a(f"""
    v_lshrrev_b32 v17, 4, v3
    v_lshlrev_b32 v17, 12, v17
    v_and_b32 v18, 15, v3
    v_lshl_add_u32 v17, v18, 4, v17
    v_lshl_add_u32 v17, v4, 8, v17
    s_add_u32 s{S_O1}, s{S_BLK}, {QF}
    s_add_u32 s{S_O2}, s{S_BLK}, {KF}
    """)
    reads(0, WB[0], VA, 32768, 1024)

    def qkst(i, so):
        return [f"buffer_store_dwordx4 {vr(G1 + 8 * i + 4 * k, 4)}, v17, {ws}, s{so} offen offset:{1024 * i + 512 * k}{SC1}" for k in range(2)]

    for i in range(3):
        for t in qkst(i, S_O1):
            a(t)
    for t in pack1(3, True) + qkst(3, S_O1):
        a(t)
    gemm(VA, 32768, 1024, H, True, first_issued=True, fill=[[]] + [pack1(i, False) + qkst(i, S_O2) for i in range(3)])
    a("s_nop 7")
    a("s_nop 3")
    st(5)
    for t in pack1(3, False) + qkst(3, S_O2):
        a(t)
    a("s_branch L_k1_end")
    a.label("L_k1_second")
    a.seg("k1_c")
    reads(0, WB[0], VA + 4, 32768, 2048)
    for t in pack1(3, False):
        a(t)
    a(f"s_cmp_eq_u32 s{S_JOB}, 2")
    a("s_cbranch_scc1 L_k1_m")

    def pack2(i, st_):
        out = []
        for kk in range(2):
            t = H + 4 * (2 * i + kk)
            b = D + 16 * i + 4 * kk
            for d, src in enumerate([b, b + 2, b + 8, b + 10]):
                out.append(f"v_cvt_pk_bf16_f32 v{t + d}, v{src}, v{src + 1}")
            out.append(st_(i, kk, t))
        return out

    a.seg("k1_v")
    a(f"""
    v_lshrrev_b32 v17, 4, v3
    v_lshlrev_b32 v17, 10, v17
    v_and_b32 v18, 15, v3
    v_lshl_add_u32 v17, v18, 4, v17
    v_lshl_add_u32 v17, v4, 8, v17
    s_add_u32 s{S_O1}, s{S_BLK}, {VF}
    s_add_u32 s{S_O2}, s{S_O1}, 4096
    """)
    vst = lambda i, kk, t: f"buffer_store_dwordx4 {vr(t, 4)}, v17, {ws}, s{S_O1 if i < 2 else S_O2} offen offset:{(i & 1) * 2048 + kk * 512}{SC1}"
    gemm(VA + 4, 32768, 2048, G1, False, first_issued=True, fill=[[]] + [pack2(i, vst) for i in range(3)])
    a("s_nop 7")
    a("s_nop 3")
    st(5)
    for t in pack2(3, vst):
        a(t)
    a("s_branch L_k1_end")
    a.label("L_k1_m")
    a.seg("k1_m")
    a(f"""
    s_add_u32 s{S_O1}, s{S_BLK}, {MP}
    s_add_u32 s{S_O2}, s{S_O1}, 4096
    v_xor_b32 v17, v6, v7
    v_lshlrev_b32 v17, 4, v17
    v_lshl_add_u32 v17, v6, 8, v17
    v_add_u32 v17, s{S_T0}, v17
    v_xor_b32 v18, 64, v17
    v_xor_b32 v19, 128, v17
    v_xor_b32 v20, 192, v17
    v_lshlrev_b32 v16, 4, v2
    """)
    nost = lambda i, kk, t: "s_nop 0"
    gemm(VA + 4, 32768, 2048, G1, True, first_issued=True, fill=[[]] + [pack2(i, nost) for i in range(3)])
    for s in range(6):
        a(f"ds_write_b128 v{21 if s == 0 else 224 + s}, {vr(H + 4 * s, 4)}")
    a("s_nop 5")
    st(5)
    for t in pack2(3, lambda i, kk, t: f"ds_write_b128 v{224 + 2 * i + kk}, {vr(t, 4)}"):
        a(t)
    a("s_waitcnt lgkmcnt(0)")
    for k in range(8):
        a(f"ds_read_b128 {vr(XF + 4 * k, 4)}, v{17 + (k & 3)} offset:{1024 * k}")
    for k in range(8):
        a(f"s_waitcnt lgkmcnt({7 - k})")
        a(f"buffer_store_dwordx4 {vr(XF + 4 * k, 4)}, v16, {ws}, s{S_O1 if k < 4 else S_O2} offen offset:{1024 * (k & 3)}{SC1}")
    a("s_branch L_k1_end")
    emit_bucket(a, cfg, SWS)
    a.label("L_k1_end")
    if cfg.get("k1tl"):
        a("s_memrealtime s[60:61]")
        a("s_waitcnt lgkmcnt(0)")
        a("v_lshrrev_b32 v1, 6, v0")
        a("v_lshlrev_b32 v1, 5, v1")
        a(f"s_lshl_b32 s40, s2, 7")
        a(f"s_add_u32 s40, s40, {TR + 0x40000}")
        for i in range(7):
            a(f"v_mov_b32 v{2 + i}, s{48 + 2 * i}")
        a(f"buffer_store_dwordx4 v[2:5], v1, {ws}, s40 offen")
        a(f"buffer_store_dwordx4 v[6:9], v1, {ws}, s40 offen offset:16")
    if cfg.get("dbg"):
        a("s_waitcnt vmcnt(0)")
    dbg_stamp(a, cfg, 1, 0, s=48, v=100)
    stamp_exit(a, cfg, 32, 0, ws, TR)
    a.label("L_k1_exit")
    a("s_endpgm")
    return dict(name=name, vgpr=240, accum=240, sgpr=64, grid=NWG + NBK, block=256, lds=65536,
                chains=[["k1_a", "k1_b", "k1_qk"], ["k1_b", "k1_c", "k1_v"], ["k1_b", "k1_c", "k1_m"], ["k1_bk"]])
```

```python
from layout import *
from asmlib import stamp_entry, stamp_exit, dbg_stamp

CFG = {}
MF = "v_mfma_f32_16x16x32_bf16"
NWG = 240
NQ = 4
CAP = 72
NGMAX = 15
NSLOT = 24

O, S, NM, P, E_, T, L = 128, 64, 96, 112, 26, 42, 52
VLDS, VL16, VT, VT2, VT3, VOOB = 20, 21, 22, 23, 24, 25
RC, VREM, VSEG, BT = 26, 50, 51, 56
AQ, AK, AV = 0, 64, 96
S_SRD = 4
S_W, S_SRC, S_M0, S_CNT, S_THR, S_SPLIT, S_QT, S_T0, S_T1 = 8, 9, 10, 11, 12, 13, 14, 15, 16
S_LEFT, S_EV, S_NB, S_MODE = 17, 18, 19, 30
S_Q0 = 20
S_PO, S_PL, S_SRC0, S_U = 24, 25, 26, 27
S_K0, S_FV = 28, 29
S_PA = 86
S_OWN = 31
SRD = f"s[{S_SRD}:{S_SRD + 3}]"
SKV = 80
KVS = "s[80:83]"
LDS_FLAG = 131072
ABUF, AAG, AAH, AXV, ADI = 128, 176, 200, 208, 220
GI, GOFF, GLA = 26, 13, 14
SMP = 44
RB = 131072 + 256
LOFF = 384
RSZ = LOFF + CAP * 64 + 384
SENT = 0x7fffff00


def vr(b, n):
    return f"v[{b}:{b + n - 1}]"


def ar(b, n):
    return f"a[{b}:{b + n - 1}]"


def qbs(X):
    return [0, 1] if X == "A" else [2, 3]


def St(qb, kb):
    return S + (qb * 2 + kb) * 4


def mfma_qk(qb, kb, s, czero=False):
    d = vr(St(qb, kb), 4)
    c = ("0" if czero else vr(NM + 4 * qb, 4)) if s == 0 else d
    return f"{MF} {d}, {ar(AK + (kb * 4 + s) * 4, 4)}, {ar(AQ + (qb * 4 + s) * 4, 4)}, {c}"


def mfma_pv(qb, db):
    o = vr(O + (qb * 8 + db) * 4, 4)
    return f"{MF} {o}, {ar(AV + 4 * db, 4)}, {vr(P + 4 * qb, 4)}, {o}"


def qk_order(X, nkb=2):
    return [(qb, kb, s) for s in range(4) for kb in range(nkb) for qb in qbs(X)]


def pv_order(X):
    return [(qb, db) for qb in qbs(X) for db in range(8)]


class Op:
    def __init__(self, text, cost, est=0, lst=10 ** 6, deps=(), stream=None):
        self.text, self.cost, self.est, self.lst, self.deps, self.stream = text, cost, est, lst, list(deps), stream
        self.pos = None


def sm_group(X, nkb, tag, chk, rdy, dl):
    ops = []
    idx = 0
    q = qbs(X)
    lastadd = {}
    prev_small = None
    for qb in q:
        d = dl[qb] if not chk else min(dl.values())
        if nkb == 1:
            for k in (2, 3):
                ops.append(Op(f"v_mov_b32 v{P + 4 * qb + k}, 0", 4, rdy["p", qb], d - 1, stream="s" + X))
        for kb in range(nkb):
            for pr in range(2):
                s0 = St(qb, kb) + 2 * pr
                e0, e1 = (E_ + (2 * idx) % 16, E_ + (2 * idx + 1) % 16) if chk else (s0, s0 + 1)
                x0 = Op(f"v_exp_f32 v{e0}, v{s0}", 8, rdy[qb, kb], d - 2, stream="x" + X)
                x1 = Op(f"v_exp_f32 v{e1}, v{s0 + 1}", 8, rdy[qb, kb], d - 2, stream="x" + X)
                ops += [x0, x1]
                acc = (T if chk else L) + qb
                dadd = d - 1 if chk else dl["end"]
                c = Op(f"v_cvt_pk_bf16_f32 v{P + 4 * qb + 2 * kb + pr}, v{e0}, v{e1}", 4, rdy["p", qb], d - 1, [x0, x1], stream="c" + X)
                if chk and qb not in lastadd:
                    a1 = Op(f"v_add_f32 v{acc}, v{e0}, v{e1}", 4, 0, dadd, [x0, x1], stream="a" + X)
                    ops += [a1, c]
                else:
                    a0 = Op(f"v_add_f32 v{acc}, v{acc}, v{e0}", 4, 0, dadd, [x0], stream="a" + X)
                    a1 = Op(f"v_add_f32 v{acc}, v{acc}, v{e1}", 4, 0, dadd, [x1], stream="a" + X)
                    ops += [a0, a1, c]
                lastadd[qb] = a1
                lastc = c
                idx += 1
    if chk:
        d = min(dl.values())
        m = Op(f"v_max_f32 v{VT}, v{T + q[0]}, v{T + q[1]}", 4, 0, d, list(lastadd.values()), stream="a" + X)
        c = Op(f"v_cmp_lt_f32 vcc, s{S_THR}, v{VT}", 4, 0, d, [m], stream="a" + X)
        b = Op(f"s_cbranch_vccnz L_slow_{tag}\nL_back_{tag}:", 0, 0, d, [c, lastc], stream="a" + X)
        ops += [m, c, b]
        for qb in q:
            ops.append(Op(f"v_add_f32 v{L + qb}, v{L + qb}, v{T + qb}", 4, 0, dl["end"], [b], stream="a" + X))
    return ops


def schedule(ops, nm, base=8):
    streams = {}
    for o in ops:
        streams.setdefault(o.stream, []).append(o)
    best = None
    for nextra in range(0, 3 * nm):
        for o in ops:
            o.pos = None
        cap = [base + 4 * ((g + 1) * nextra // nm - g * nextra // nm) for g in range(nm)]
        head = {s: 0 for s in streams}
        out = [[] for _ in range(nm)]
        pos = 0
        ok = True
        for g in range(nm):
            pos += 1
            rem = cap[g]
            while True:
                cand = []
                for s, lst in streams.items():
                    if head[s] >= len(lst):
                        continue
                    o = lst[head[s]]
                    if o.est > g:
                        continue
                    if CFG.get("ds1") and s == "l" and any(t.startswith(("ds_", "buffer")) for t in out[g]) and o.lst > g:
                        continue
                    if any(d.pos is None or pos - d.pos < (CFG.get('xd', 2) if d.cost == 8 else 1) for d in o.deps):
                        continue
                    urg = 10 ** 9
                    acc = 0
                    for o2 in lst[head[s]:]:
                        acc += o2.cost
                        urg = min(urg, (o2.lst - g + 1) * base * o2_share(s) - acc)
                    cand.append((urg, s, o))
                if not cand:
                    break
                cand.sort(key=lambda c: c[0])
                pick = None
                for urg, s, o in cand:
                    if o.cost <= rem or o.lst <= g:
                        pick = (s, o)
                        break
                if pick is None:
                    break
                s, o = pick
                out[g].append(o.text)
                o.pos = pos
                pos += 1
                head[s] += 1
                rem -= o.cost
                if rem <= 0 and not any(streams[t][head[t]].lst <= g or streams[t][head[t]].cost == 0
                                        for t in streams if head[t] < len(streams[t])):
                    break
            if any(head[s] < len(l) and l[head[s]].lst <= g for s, l in streams.items()):
                ok = False
                break
        if ok and all(head[s] == len(l) for s, l in streams.items()):
            cost = {o.text: o.cost for o in ops}
            tot = sum(max(16, 8 + sum(cost[t] for t in out[g])) for g in range(nm))
            if best is None or tot < best[0]:
                best = (tot, out, nextra)
            if nextra > best[2] + 6:
                break
    if best is None:
        raise RuntimeError("cannot schedule")
    return best


def o2_share(s):
    return {"x": 0.5, "a": 0.3, "c": 0.3, "s": 0.3}.get(s[0], 0.3)


def emit_rowmax(a, qb, nkb, dst):
    s = St(qb, 0)
    a(f"v_max3_f32 v{dst}, v{s}, v{s + 1}, v{s + 2}")
    if nkb == 2:
        a(f"v_max3_f32 v{dst}, v{dst}, v{s + 3}, v{s + 4}")
        a(f"v_max3_f32 v{dst}, v{dst}, v{s + 5}, v{s + 6}")
        a(f"v_max_f32 v{dst}, v{dst}, v{s + 7}")
    else:
        a(f"v_max_f32 v{dst}, v{dst}, v{s + 3}")
    for sw in ("v_permlane32_swap_b32", "v_permlane16_swap_b32"):
        a(f"v_mov_b32 v{VT3}, v{dst}")
        a("s_nop 1")
        a(f"{sw} v{dst}, v{VT3}")
        a("s_nop 1")
        a(f"v_max_f32 v{dst}, v{dst}, v{VT3}")


def emit_slow(a, X, nkb, tag):
    a.seg("slow_" + tag)
    a.label(f"L_slow_{tag}")
    a("s_nop 15")
    for qb in qbs(X):
        emit_rowmax(a, qb, nkb, VT)
        a(f"v_max_f32 v{VT}, 0, v{VT}")
        a(f"v_exp_f32 v{VT2}, -v{VT}")
        a("s_nop 0")
        a(f"v_mul_f32 v{L + qb}, v{L + qb}, v{VT2}")
        for i in range(32):
            o = O + qb * 32 + i
            a(f"v_mul_f32 v{o}, v{o}, v{VT2}")
        for i in range(4):
            a(f"v_sub_f32 v{NM + 4 * qb + i}, v{NM + 4 * qb + i}, v{VT}")
        for k in range(2 * nkb):
            s = St(qb, 0) + 2 * k
            a(f"v_sub_f32 v{s}, v{s}, v{VT}")
            a(f"v_sub_f32 v{s + 1}, v{s + 1}, v{VT}")
            a(f"v_exp_f32 v{E_}, v{s}")
            a(f"v_exp_f32 v{E_ + 1}, v{s + 1}")
            a("s_nop 0")
            if k == 0:
                a(f"v_add_f32 v{T + qb}, v{E_}, v{E_ + 1}")
            else:
                a(f"v_add_f32 v{T + qb}, v{T + qb}, v{E_}")
                a(f"v_add_f32 v{T + qb}, v{T + qb}, v{E_ + 1}")
            a(f"v_cvt_pk_bf16_f32 v{P + 4 * qb + k}, v{E_}, v{E_ + 1}")
    a("s_nop 7")
    a(f"s_branch L_back_{tag}")


def emit_body(a, cfg, tag, chk, last=False, nkb=2, gb=None, loop=None):
    PF = cfg["PF"]
    lead = cfg.get("lead", 3)
    mg = cfg.get("mg", 0)
    pvB, qkB, pvA, qkA = pv_order("B"), qk_order("B", nkb), pv_order("A"), qk_order("A")
    mf = [mfma_pv(*x) for x in pvB] + [mfma_qk(*x) for x in qkB]
    pA0 = len(mf)
    mf += [mfma_pv(*x) for x in pvA]
    qA0 = len(mf)
    if not last:
        mf += [mfma_qk(*x) for x in qkA]
    gpos = []
    if gb is not None:
        for k, at in enumerate(cfg.get("gslots", [40, 47, 54, 61])):
            d = ar(AAG + 8 * gb + 4 * (k >> 1), 4)
            mf.insert(at, f"{MF} {d}, {ar(AAH + 4 * (k & 1), 4)}, {ar(ABUF + 16 * gb + 4 * k, 4)}, {d}")
            gpos.append(at)
            if at <= qA0:
                qA0 += 1
    nm = len(mf)
    ops = []
    lds = []
    if gb is not None:
        lds.append(Op(f"ds_read_b128 {vr(GI, 4)}, v{GLA} offset:{gb * RSZ + LOFF}", 4, 2, 7, stream="l"))
        for k, at in enumerate(gpos):
            ad = Op(f"v_add_u32 v{GI + k}, v{GI + k}, v{GOFF}", 4, pA0, at - 1, stream="g")
            ops += [ad, Op(f"buffer_load_dwordx4 {ar(ABUF + 16 * gb + 4 * k, 4)}, v{GI + k}, s[{SMP}:{SMP + 3}], 0 offen offset:{12 - 4 * k}",
                           cfg.get("dmacost", 8), at, at, [ad], stream="g")]
        if gb == 2:
            ops.append(Op(f"v_add_u32 v{GLA}, 256, v{GLA}", 4, 10, nm - 1, stream="y"))
    for db in range(8):
        lds.append(Op(f"ds_read_b128 {ar(AV + 4 * db, 4)}, v{VLDS} offset:{8192 + 1024 * db}", 4, 8 + db, pA0 - 6, stream="l"))
    if not last:
        kf = sorted(range(8), key=lambda f: max(i for i, x in enumerate(qkB) if x[1] * 4 + x[2] == f))
        for n, f in enumerate(kf):
            g = 16 + max(i for i, x in enumerate(qkB) if x[1] * 4 + x[2] == f)
            lds.append(Op(f"ds_read_b128 {ar(AK + 4 * f, 4)}, v{VLDS} offset:{1024 * f}", 4, g, qA0 - 6, stream="l"))
        adv = Op(f"v_add_u32 v{VLDS}, 0x4000, v{VLDS}", 4, 0, nm - 1, [lds[-1]], stream="z")
        ops += [adv, Op(f"v_and_b32 v{VLDS}, 0x1ffff, v{VLDS}", 4, 0, nm - 1, [adv], stream="z")]
        dg = cfg.get("dgaps", [0, 1, 33, 34])
        for k in range(4):
            ops.append(Op(f"buffer_load_dwordx4 v{VL16}, {KVS}, s{S_SRC} offen offset:{1024 * k} lds", cfg.get("dmacost", 8),
                          dg[k], dg[k], stream="d"))
    ops += lds
    finA = {}
    for i, (qb, kb, s_) in enumerate(qkA):
        finA[qb, kb] = i
    rdy = {t: max(0, finA[t] - len(qkA) + 1 + lead) for t in finA}
    rdy["p", 0] = rdy["p", 1] = 0
    ops += sm_group("A", nkb, tag + "A", chk, rdy, {0: pA0 - 1 - mg, 1: pA0 + 7 - mg, "end": qA0 - 2})
    finB = {}
    for i, (qb, kb, s_) in enumerate(qkB):
        finB[qb, kb] = i
    rdy = {t: 16 + finB[t] + 1 + lead for t in finB}
    rdy["p", 2], rdy["p", 3] = 8, 16
    ops += sm_group("B", nkb, tag + "B", chk, rdy, {2: nm - 1 - mg, 3: nm - 1, "end": nm - 1})
    tot, gaps, nx = schedule(ops, nm)
    if cfg.get("verbose"):
        print("body", tag, "model cycles", tot, "extra", nx)
    if cfg.get("memfirst"):
        for g in range(nm):
            gaps[g].sort(key=lambda t: 0 if t.startswith(("ds_", "buffer")) else 1)
    if cfg.get("explast"):
        for g in range(nm):
            if not any("L_back" in t for t in gaps[g]):
                gaps[g].sort(key=lambda t: 1 if t.startswith("v_exp") else 0)
    order = [t for g in range(nm) for t in gaps[g]]

    def nlds_after(g_end, first_k):
        n = 0
        for g in range(g_end):
            n += sum(1 for t in gaps[g] if t.startswith("ds_read") and f"offset:{0}" is not None and "a[" in t and int(t.split("a[")[1].split(":")[0]) < AV)
        return n

    gaps[pA0 - 1].append(f"s_waitcnt lgkmcnt({nlds_after(pA0, 0)})")
    if not last:
        gaps[qA0 - 1].append("s_waitcnt lgkmcnt(0)")
        lastd = max(dg)
        gaps[lastd + 2].insert(0, f"s_add_u32 s{S_M0}, s{S_M0}, 0x4000")
        gaps[lastd + 3].insert(0, f"s_and_b32 m0, s{S_M0}, 0x1ffff")
        gaps[lastd + 4].insert(0, f"s_add_u32 s{S_SRC}, s{S_SRC}, 0x2000")
        if gb is None or gb == 2:
            gaps[lastd + 5].insert(0, f"s_sub_u32 s{S_CNT}, s{S_CNT}, 1")
            gaps[nm - 2].insert(0, f"s_cmp_lg_u32 s{S_CNT}, 0")
            gaps[nm - 1].append(f"s_cbranch_scc1 L_body_{loop or tag}")
        for at in gpos:
            gaps[at - 1].append("s_waitcnt vmcnt(23)")
    a.seg("body_" + tag)
    a.label(f"L_body_{tag}")
    a(f"s_waitcnt vmcnt({4 * (PF - 1) if gb is None else 24})")
    a("s_barrier")
    for g in range(nm):
        a(mf[g])
        for t in gaps[g]:
            a(t)
    if last:
        fill = []
        for qb in range(2):
            for p in range(4):
                t = 26 + 4 * (p % 2)
                for d in range(4):
                    src = O + (qb * 8 + 2 * p) * 4 + 2 * d
                    fill.append(f"v_cvt_pk_bf16_f32 v{t + d}, v{src}, v{src + 1}")
                fill.append(f"buffer_store_dwordx4 {vr(t, 4)}, v{VL16}, {SRD}, s{S_PA + qb} offen offset:{1024 * p} sc1")
        a("s_nop 1")
        for n, x in enumerate(pvB):
            a(mfma_pv(*x))
            for t in fill[(5 * n) // 2:(5 * (n + 1)) // 2]:
                a(t)


SX, SDG, SOUT = 32, 36, 40
S_REC, S_CAP, S_MAXC, S_N, S_I, S_MASK, S_FLG, S_NOWN = 48, 49, 50, 51, 52, 53, 54, 55
SMK = 64
VX = 15
VDC = 16
VRB, VDUM, VDREC = 17, 18, 19


def emit_region_reset(a):
    a(f"""
    v_and_b32 v2, 63, v0
    v_and_b32 v3, 15, v0
    v_lshl_add_u32 v3, v3, 2, v{VRB}
    v_mov_b32 v4, 0
    v_lshl_add_u32 v5, v2, 4, v{VRB}
    ds_write_b32 v3, v4
    v_mov_b32 v4, 0x40000000
    ds_write_b32 v{VDC}, v4
    v_mov_b32 v6, {SENT}
    v_mov_b32 v7, {SENT}
    v_mov_b32 v8, {SENT}
    v_mov_b32 v9, {SENT}
    v_lshl_add_u32 v3, v2, 3, v{VRB}
    """)
    for k in range(4):
        a(f"ds_write_b128 v5, v[6:9] offset:{LOFF + 1024 * k}")
    a(f"ds_write_b64 v3, v[6:7] offset:{LOFF + 4096}")


def emit_careful(a, tag, ret):
    a.seg("careful_" + tag)
    a.label(f"L_car_{tag}")
    a("s_nop 7")
    emit_region_reset(a)
    a(f"""
    v_mov_b32 v10, 1
    v_mov_b32 v11, v{VSEG}
    v_mov_b32 v12, 0
    s_mov_b32 s{S_I}, 0
    s_waitcnt lgkmcnt(0)
    """)
    a.label(f"L_car_loop_{tag}")
    a(f"""
    s_lshl_b32 s{S_T0}, s{S_I}, 2
    v_add_u32 v{BT}, s{S_T0}, v{VSEG}
    buffer_load_dwordx4 {vr(RC, 4)}, v{BT}, {SRD}, s{S_REC} offen sc1
    s_waitcnt vmcnt(0)
    """)
    for k in range(4):
        r = RC + k
        a(f"""
        v_cmp_lt_u32 s[{SMK}:{SMK + 1}], s{S_I}, v{VREM}
        s_add_u32 s{S_I}, s{S_I}, 1
        v_and_or_b32 v{BT}, v{r}, 60, v{VRB}
        v_cndmask_b32 v{BT}, v{VDC}, v{BT}, s[{SMK}:{SMK + 1}]
        ds_add_rtn_u32 v{BT + 1}, v{BT}, v10
        s_waitcnt lgkmcnt(0)
        v_cmp_le_u32 vcc, s{S_CAP}, v{BT + 1}
        v_min_u32 v{BT + 1}, s{S_CAP}, v{BT + 1}
        v_lshl_add_u32 v{BT}, v{BT + 1}, 6, v{BT}
        ds_write_b32 v{BT}, v{r} offset:{LOFF}
        s_and_b64 vcc, s[{SMK}:{SMK + 1}], vcc
        s_nop 0
        v_cndmask_b32 v{BT}, v{VOOB}, v11, vcc
        v_cndmask_b32 v{BT + 1}, 0, v10, vcc
        buffer_store_dword v{r}, v{BT}, {SRD}, s{S_REC} offen sc1
        v_add_u32 v12, v12, v{BT + 1}
        v_lshl_add_u32 v11, v{BT + 1}, 2, v11
        """)
    a(f"""
    v_cmp_lt_u32 vcc, s{S_I}, v{VREM}
    s_cbranch_vccnz L_car_loop_{tag}
    v_mov_b32 v{VREM}, v12
    s_waitcnt vmcnt(0) lgkmcnt(0)
    s_branch {ret}
    """)


def emit_k2(a, cfg):
    PF = cfg["PF"]
    NB0 = cfg.get("NB0", 3)
    NBR = cfg.get("NBR", 2)
    OSC = {0: "", 1: " sc1", 2: " nt", 3: " sc0 sc1"}[cfg.get("osc", 0)]
    CFG.clear()
    CFG.update(cfg)
    LIM = cfg.get("lim", NWG)
    name = "k2_attn_kernel"
    if cfg.get("map", 0) == 0:
        mapping = f"""s_and_b32 s{S_T0}, s2, 7
    s_mul_i32 s{S_T0}, s{S_T0}, {NWG // 8}
    s_lshr_b32 s{S_T1}, s2, 3
    s_add_u32 s{S_T0}, s{S_T0}, s{S_T1}          ; g
    s_mul_i32 s{S_SPLIT}, s{S_T0}, 1639
    s_lshr_b32 s{S_SPLIT}, s{S_SPLIT}, 16        ; split = g / 40
    s_mul_i32 s{S_T1}, s{S_SPLIT}, 40
    s_sub_u32 s{S_QT}, s{S_T0}, s{S_T1}          ; q tile"""
    else:
        mapping = f"""s_and_b32 s{S_T0}, s2, 7
    s_mul_i32 s{S_T0}, s{S_T0}, 5
    s_lshr_b32 s{S_T1}, s2, 3
    s_mul_i32 s{S_QT}, s{S_T1}, 43
    s_lshr_b32 s{S_QT}, s{S_QT}, 8               ; j / 6
    s_mul_i32 s{S_SPLIT}, s{S_QT}, 6
    s_sub_u32 s{S_SPLIT}, s{S_T1}, s{S_SPLIT}
    s_add_u32 s{S_QT}, s{S_QT}, s{S_T0}"""
    a.raw(".text")
    a.raw(f".globl {name}\n.p2align 8\n.type {name},@function")
    a.label(name)
    a.seg("k2_pro0")
    a(f"""
    s_cmp_ge_u32 s2, {LIM}
    s_cbranch_scc1 L_k2_end
    """)
    if cfg.get("dbg"):
        a("s_cmp_gt_u32 s2, 7")
        a("s_cbranch_scc1 L_k2_nod")
        dbg_stamp(a, cfg, 2, 512, inv=True, s=88, v=100)
        a.label("L_k2_nod")
    if cfg.get("tl") or cfg.get("stamp"):
        a("s_memrealtime s[84:85]")
    a(f"""
    s_load_dwordx2 s[{S_SRD}:{S_SRD + 1}], s[0:1], 88
    s_load_dwordx2 s[{SX}:{SX + 1}], s[0:1], 0
    s_load_dwordx2 s[{SDG}:{SDG + 1}], s[0:1], 24
    s_load_dwordx2 s[{SOUT}:{SOUT + 1}], s[0:1], 72
    v_lshrrev_b32 v1, 6, v0
    v_and_b32 v2, 63, v0
    v_readfirstlane_b32 s{S_W}, v1
    v_lshlrev_b32 v{VL16}, 4, v2
    v_lshlrev_b32 v12, 2, v2
    {mapping}
    s_mov_b32 s{S_SRD + 2}, 0x10000000
    s_mov_b32 s{S_SRD + 3}, 0x00020000
    s_mov_b32 s{SX + 2}, {N * 256}
    s_mov_b32 s{SX + 3}, 0x00020000
    s_mov_b32 s{SDG + 2}, {N * 2}
    s_mov_b32 s{SDG + 3}, 0x00020000
    s_mov_b32 s{SOUT + 2}, {N * 256}
    s_mov_b32 s{SOUT + 3}, 0x00020000
    s_mov_b32 s{SMP + 2}, {N * 256}
    s_mov_b32 s{SMP + 3}, 0x00020000
    s_mov_b32 s{S_THR}, 0x4b800000               ; 2^24
    s_lshl_b32 s{S_T0}, s{S_W}, 12
    s_mul_i32 s{S_SRC0}, s{S_SPLIT}, {52 * 8192}
    s_add_u32 s{S_SRC0}, s{S_SRC0}, s{S_T0}
    s_mov_b32 s{S_T1}, {KF}
    s_cmp_lt_u32 s{S_W}, 2
    s_cselect_b32 s{S_T1}, s{S_T1}, {VF - 8192 - 8192}
    s_add_u32 s{S_SRC0}, s{S_SRC0}, s{S_T1}
    s_lshl_b32 s{S_Q0}, s{S_QT}, 16
    s_lshl_b32 s{S_T1}, s{S_W}, 14
    s_add_u32 s{S_Q0}, s{S_Q0}, s{S_T1}
    s_add_u32 s{S_Q0}, s{S_Q0}, {QF}
    s_add_u32 s{S_Q0 + 1}, s{S_Q0}, 0x1000
    s_add_u32 s{S_Q0 + 2}, s{S_Q0}, 0x2000
    s_add_u32 s{S_Q0 + 3}, s{S_Q0}, 0x3000
    s_mul_i32 s{S_T1}, s{S_QT}, 6
    s_add_u32 s{S_T1}, s{S_T1}, s{S_SPLIT}
    s_lshl_b32 s{S_PO}, s{S_T1}, 16
    s_lshl_b32 s{S_T0}, s{S_W}, 14
    s_add_u32 s{S_PO}, s{S_PO}, s{S_T0}
    s_add_u32 s{S_PO}, s{S_PO}, {PO}
    s_lshl_b32 s{S_PL}, s{S_T1}, 11
    s_lshl_b32 s{S_T0}, s{S_W}, 9
    s_add_u32 s{S_PL}, s{S_PL}, s{S_T0}
    s_add_u32 s{S_PL}, s{S_PL}, {PL}
    s_lshl_b32 s{S_T0}, s{S_W}, 2
    s_lshl_b32 s{S_OWN}, {1 | 1 << 6 | 1 << 12}, s{S_SPLIT}
    s_lshr_b32 s{S_OWN}, s{S_OWN}, s{S_T0}
    s_bitcmp1_b32 s{S_OWN}, 0
    s_cselect_b32 s{S_PA}, 0x7fff0000, s{S_PO}
    s_add_u32 s{S_T0}, s{S_PO}, 4096
    s_bitcmp1_b32 s{S_OWN}, 1
    s_cselect_b32 s{S_PA + 1}, 0x7fff0000, s{S_T0}
    v_mov_b32 v{VX}, 0x7fff0000
    s_mov_b32 s{S_U}, 51
    s_cmp_eq_u32 s{S_SPLIT}, 5
    s_cselect_b32 s{S_U}, 52, s{S_U}
    s_mov_b32 s{S_MODE}, 0
    s_add_u32 s{S_T0}, s{S_U}, 1
    s_cmp_lt_u32 s{S_W}, 2
    s_cselect_b32 s{S_T1}, 0, 1
    s_add_u32 s{S_T0}, s{S_T0}, s{S_T1}
    s_lshl_b32 s{S_T0}, s{S_T0}, 13
    s_add_u32 s{SKV + 2}, s{S_SRC0}, s{S_T0}
    s_sub_u32 s{SKV + 2}, s{SKV + 2}, 4096
    s_mov_b32 s{SKV + 3}, 0x00020000
    s_mov_b32 s{S_REC}, {REC}
    s_mov_b32 s{S_K0}, {KF}
    s_mov_b32 s{S_CAP}, {CAP}
    s_lshl_b32 s{S_FLG}, s{S_QT}, 7
    s_add_u32 s{S_FLG}, s{S_FLG}, {FLG}
    s_mul_i32 s{S_T0}, s{S_W}, 6
    s_add_u32 s{S_T0}, s{S_T0}, s{S_SPLIT}
    s_lshl_b32 s{S_T1}, s{S_QT}, 4
    s_add_u32 s{S_T1}, s{S_T1}, s{S_T0}
    s_cmp_lt_u32 s{S_T0}, 16
    s_cselect_b32 s{S_MASK}, -1, 0
    s_cmp_lt_u32 s{S_T1}, {N // 16}
    s_cselect_b32 s{S_MASK}, s{S_MASK}, 0
    s_lshl_b32 s{S_I}, s{S_T1}, 8
    s_add_u32 s{S_I}, s{S_I}, {TAB}
    s_mul_i32 s{S_T0}, s{S_W}, {RSZ}
    s_add_u32 s{S_T0}, s{S_T0}, {RB}
    v_mov_b32 v{VRB}, s{S_T0}
    s_add_u32 s{S_T0}, s{S_T0}, 64
    v_add_u32 v{VDC}, s{S_T0}, v12
    v_mov_b32 v{VOOB}, 0x7fffffff
    v_mov_b32 v4, 0
    v_mov_b32 v5, {LDS_FLAG}
    ds_write_b32 v5, v4
    """)
    emit_region_reset(a)
    a(f"""
    s_waitcnt lgkmcnt(0)
    s_and_b32 s{S_SRD + 1}, s{S_SRD + 1}, 0xffff
    s_and_b32 s{SX + 1}, s{SX + 1}, 0xffff
    s_and_b32 s{SDG + 1}, s{SDG + 1}, 0xffff
    s_and_b32 s{SOUT + 1}, s{SOUT + 1}, 0xffff
    s_mov_b32 s{SKV}, s{S_SRD}
    s_mov_b32 s{SKV + 1}, s{S_SRD + 1}
    s_add_u32 s{SMP}, s{S_SRD}, {MP}
    s_addc_u32 s{SMP + 1}, s{S_SRD + 1}, 0
    buffer_load_dword v{VREM}, v12, {SRD}, s{S_I} offen
    """)
    def lane_setup():
        a(f"""
        v_bfe_u32 v2, v0, 2, 2
        v_and_b32 v3, 3, v0
        v_bfe_u32 v4, v0, 4, 2
        s_lshl_b32 s{S_T0}, s{S_W}, 6
        s_sub_u32 s{S_T1}, s{S_T0}, 12
        v_lshlrev_b32 v{GOFF}, 4, v3
        v_add_u32 v{GOFF}, s{S_T1}, v{GOFF}
        v_lshlrev_b32 v5, 4, v2
        v_sub_u32 v{GOFF}, v{GOFF}, v5               ; 64w + 16q - 16n' - 12
        v_lshlrev_b32 v{GLA}, 4, v2
        v_lshl_add_u32 v{GLA}, v4, 6, v{GLA}
        v_add_u32 v{GLA}, {RB}, v{GLA}
        """)

    def maxc():
        a(f"""
        v_and_b32 v6, 15, v0
        v_bfe_u32 v7, v0, 4, 2
        v_mul_u32_u24 v7, {RSZ}, v7
        v_lshl_add_u32 v7, v6, 2, v7
        v_add_u32 v7, {RB}, v7
        ds_read_b32 v9, v7
        s_waitcnt lgkmcnt(0)
        """)
        for sh in ("row_shr:1", "row_shr:2", "row_shr:4", "row_shr:8"):
            a(f"v_max_u32_dpp v9, v9, v9 {sh} row_mask:0xf bank_mask:0xf")
            a("s_nop 1")
        a("v_max_u32_dpp v9, v9, v9 row_bcast:15 row_mask:0xa bank_mask:0xf")
        a("s_nop 1")
        a("v_max_u32_dpp v9, v9, v9 row_bcast:31 row_mask:0xc bank_mask:0xf")
        a("s_nop 1")
        a(f"v_readlane_b32 s{S_MAXC}, v9, 63")
        a("s_nop 3")
        a(f"s_min_u32 s{S_N}, s{S_MAXC}, {CAP}")
        a(f"s_add_u32 s{S_N}, s{S_N}, 3")
        a(f"s_lshr_b32 s{S_N}, s{S_N}, 2")

    if cfg.get("ptl"):
        a("s_memrealtime s[98:99]")
    a.label("L_k2_restart")
    a.seg("k2_pro")
    a(f"s_mov_b32 s{S_SRC}, s{S_SRC0}")
    a(f"s_lshl_b32 s{S_M0}, s{S_W}, 12")
    a(f"s_mov_b32 m0, s{S_M0}")
    a(f"s_mov_b32 s{S_LEFT}, s{S_U}")

    def dma_stage():
        for k in range(4):
            a(f"buffer_load_dwordx4 v{VL16}, {KVS}, s{S_SRC} offen offset:{1024 * k} lds")

    def dma_adv():
        a(f"s_add_u32 s{S_M0}, s{S_M0}, 0x4000")
        a(f"s_and_b32 m0, s{S_M0}, 0x1ffff")
        a(f"s_add_u32 s{S_SRC}, s{S_SRC}, 0x2000")

    for i in range(8):
        a(f"v_mov_b32 v{P + 8 + i}, 0")
    zq = [f"v_mfma_f32_32x32x16_bf16 {vr(O + 16 * i, 16)}, {vr(P + 8, 4)}, {vr(P + 8, 4)}, 0" for i in range(8)]
    zq += [f"v_mfma_f32_32x32x16_bf16 {ar(AV + 16 * i, 16)}, {vr(P + 8, 4)}, {vr(P + 8, 4)}, 0" for i in range(2)]
    for s_ in range(4):
        a(f"buffer_load_dwordx4 {ar(AK + 16 + 4 * s_, 4)}, v{VL16}, {SRD}, s{S_K0} offen offset:{1024 * s_}")
    for i in range(16):
        a(f"buffer_load_dwordx4 {ar(4 * i, 4)}, v{VL16}, {SRD}, s{S_Q0 + (i >> 2)} offen offset:{1024 * (i & 3)}")
        if i % 2 == 1:
            a(zq.pop())
    for st in range(2):
        dma_stage()
        dma_adv()
        a(zq.pop())
    assert not zq
    a(f"s_cmp_lg_u32 s{S_MODE}, 0")
    a("s_cbranch_scc1 L_k2_nosetup")
    lane_setup()
    a(f"""
    v_and_b32 v6, 15, v0
    v_and_b32 v7, 1, v6
    v_lshlrev_b32 v7, 4, v7
    v_mov_b32 v8, 0x3f80
    v_lshlrev_b32 v7, v7, v8                     ; value
    v_lshrrev_b32 v6, 1, v6                      ; 0..7 = (h, dword)
    """)
    for k in range(8):
        a(f"v_cmp_eq_u32 s[{SMK + 2 * k}:{SMK + 2 * k + 1}], {k}, v6")
    for k in range(8):
        a(f"v_cndmask_b32 v{BT + k}, 0, v7, s[{SMK + 2 * k}:{SMK + 2 * k + 1}]")
    for k in range(8):
        a(f"v_accvgpr_write_b32 a{AAH + k}, v{BT + k}")
    Z = vr(P + 8, 4)
    for i in range(4):
        a(f"v_mfma_f32_32x32x16_bf16 {ar(ABUF + 16 * i, 16)}, {Z}, {Z}, 0")
    for i in range(2):
        a(f"{MF} {ar(ABUF + 64 + 4 * i, 4)}, {Z}, {Z}, 0")
    a.label("L_k2_nosetup")
    a.seg("k2_pro2")
    for qb in range(NQ):
        a(f"v_mov_b32 v{L + qb}, 0")
    a(f"v_add_u32 v{VLDS}, 0x4000, v{VL16}")
    if cfg.get("ptl"):
        a("s_memrealtime s[62:63]")
    a("s_waitcnt vmcnt(8)")
    if cfg.get("ptl"):
        a("s_memrealtime s[60:61]")
    dq = []
    for st in range(PF - 1):
        dq += [[f"buffer_load_dwordx4 v{VL16}, {KVS}, s{S_SRC} offen offset:{1024 * k} lds"] for k in range(4)]
        dq[-1] += [f"s_add_u32 s{S_M0}, s{S_M0}, 0x4000", f"s_and_b32 m0, s{S_M0}, 0x1ffff", f"s_add_u32 s{S_SRC}, s{S_SRC}, 0x2000"]
    n = 0
    for s_ in range(4):
        for qb in range(4):
            d = vr(St(qb, 1), 4)
            a(f"{MF} {d}, {ar(AK + 16 + 4 * s_, 4)}, {ar(AQ + (qb * 4 + s_) * 4, 4)}, {'0' if s_ == 0 else d}")
            if n % 4 == 1:
                for t in dq.pop(0):
                    a(t)
            n += 1
    a("s_waitcnt vmcnt(8)")
    a("s_barrier")
    if cfg.get("ptl"):
        a("s_memrealtime s[56:57]")
    for s in range(8):
        a(f"ds_read_b128 {ar(AK + 4 * s, 4)}, v{VL16} offset:{1024 * s}")
    a("s_nop 1")
    for qb in range(4):
        s0 = St(qb, 1)
        a(f"v_max3_f32 v{s0}, v{s0}, v{s0 + 1}, v{s0 + 2}")
    for qb in range(4):
        s0 = St(qb, 1)
        a(f"v_max_f32 v{s0}, v{s0}, v{s0 + 3}")
    for sw in ("v_permlane32_swap_b32", "v_permlane16_swap_b32"):
        for qb in range(4):
            a(f"v_mov_b32 v{St(qb, 1) + 1}, v{St(qb, 1)}")
        a("s_nop 0")
        for qb in range(4):
            a(f"{sw} v{St(qb, 1)}, v{St(qb, 1) + 1}")
        a("s_nop 0")
        for qb in range(4):
            a(f"v_max_f32 v{St(qb, 1)}, v{St(qb, 1)}, v{St(qb, 1) + 1}")
    for qb in range(4):
        for i in range(4):
            a(f"v_sub_f32 v{NM + 4 * qb + i}, 0, v{St(qb, 1)}")
    a("s_waitcnt lgkmcnt(0)")
    for n, x in enumerate(qk_order("A")):
        a(mfma_qk(*x))
        if n % 2 == 0 and dq:
            for t in dq.pop(0):
                a(t)
    assert not dq
    if cfg.get("stamp"):
        a("s_memtime s[90:91]")
        a("s_memrealtime s[92:93]")
        a("s_waitcnt lgkmcnt(0)")
    a(f"s_cmp_lg_u32 s{S_MODE}, 0")
    a("s_cbranch_scc1 L_safe")
    if cfg.get("ptl"):
        a("s_memrealtime s[58:59]")
        a("s_waitcnt lgkmcnt(0)")
    a(f"s_mov_b32 s{S_CNT}, {NBR}")
    a(f"s_mov_b32 s{S_EV}, 0")
    a.raw(".p2align 6")
    emit_body(a, cfg, "m", False)
    a.seg("k2_mid")
    a(f"s_add_u32 s{S_EV}, s{S_EV}, 1")
    a(f"s_cmp_eq_u32 s{S_EV}, 4")
    a("s_cbranch_scc1 L_loop_done")
    a(f"s_cmp_eq_u32 s{S_EV}, 3")
    a("s_cbranch_scc1 L_ev_g")
    a(f"s_cmp_eq_u32 s{S_EV}, 2")
    a("s_cbranch_scc1 L_ev_b")
    a.seg("k2_evr")
    dbg_stamp(a, cfg, 3, 512, s=88, v=2)
    a(f"""
    v_and_b32 v{VREM}, s{S_MASK}, v{VREM}
    v_and_b32 v2, 63, v0
    v_mul_u32_u24 v2, {RECS}, v2
    v_and_b32 v3, 0xffff, v{VREM}
    v_lshl_add_u32 v{VSEG}, v3, 2, v2
    v_lshrrev_b32 v{VREM}, 16, v{VREM}
    """)
    for k in range(NSLOT // 4):
        a(f"buffer_load_dwordx4 {vr(RC + 4 * k, 4)}, v{VSEG}, {SRD}, s{S_REC} offen offset:{16 * k}")
    a(f"s_mov_b32 s{S_CNT}, {NB0}")
    a("s_branch L_body_m")
    a.label("L_ev_b")
    a.seg("k2_ev")
    if cfg.get("ptl"):
        a("s_memrealtime s[100:101]")
        a("s_waitcnt lgkmcnt(0)")
    a(f"s_waitcnt vmcnt({4 * NB0})")
    a("v_mov_b32 v12, 1")
    RK = 4
    for grp in range(NSLOT // 8):
        for k in range(8):
            a(f"v_cmp_lt_u32 s[{SMK + 2 * k}:{SMK + 2 * k + 1}], {8 * grp + k}, v{VREM}")
        for k in range(8):
            a(f"v_and_or_b32 v{BT + k}, v{RC + 8 * grp + k}, 60, v{VRB}")
        if grp:
            a(f"s_cmp_eq_u64 s[{SMK}:{SMK + 1}], 0")
            a("s_cbranch_scc1 L_ev_built")
        for k in range(8):
            a(f"v_cndmask_b32 v{BT + k}, v{VDC}, v{BT + k}, s[{SMK + 2 * k}:{SMK + 2 * k + 1}]")
            a(f"ds_add_rtn_u32 v{RK + k}, v{BT + k}, v12")
        for k in range(8):
            a(f"s_waitcnt lgkmcnt(7)")
            a(f"v_min_u32 v{RK + k}, s{S_CAP}, v{RK + k}")
            a(f"v_lshl_add_u32 v{BT + k}, v{RK + k}, 6, v{BT + k}")
            a(f"ds_write_b32 v{BT + k}, v{RC + 8 * grp + k} offset:{LOFF}")
    a.label("L_ev_built")
    a(f"""
    v_and_b32 v2, 15, v0
    v_lshl_add_u32 v2, v2, 2, v{VRB}
    ds_read_b32 v3, v2
    v_cmp_lt_u32 s[{SMK}:{SMK + 1}], {NSLOT}, v{VREM}
    s_waitcnt lgkmcnt(0)
    v_cmp_lt_u32 vcc, s{S_CAP}, v3
    s_nop 3
    s_or_b64 vcc, vcc, s[{SMK}:{SMK + 1}]
    s_cbranch_vccnz L_car_e
    v_mov_b32 v{VREM}, 0
    """)
    a.label("L_ev_ret")

    a(f"s_mov_b32 s{S_CNT}, 1")
    a("s_branch L_body_m")
    a.label("L_ev_g")
    a.seg("k2_evg")
    maxc()
    a(f"""
    s_min_u32 s{S_CNT}, s{S_N}, {NGMAX}
    s_max_u32 s{S_CNT}, s{S_CNT}, 1
    s_sub_u32 s{S_N}, s{S_N}, s{S_CNT}
    s_mul_i32 s{S_T0}, s{S_CNT}, 3
    s_sub_u32 s{S_LEFT}, s{S_LEFT}, s{S_T0}
    s_sub_u32 s{S_LEFT}, s{S_LEFT}, {NBR + NB0 + 1}
    v_bfe_u32 v2, v0, 2, 2
    v_and_b32 v3, 3, v0
    v_bfe_u32 v4, v0, 4, 2
    s_lshl_b32 s{S_T0}, s{S_W}, 6
    s_lshl_b32 s{S_T1}, s{S_QT}, 4
    s_add_u32 s{S_T1}, s{S_T1}, s{S_SPLIT}
    s_lshl_b32 s{S_I}, s{S_T1}, 12
    s_add_u32 s{S_I}, s{S_I}, s{S_T0}
    v_lshrrev_b32 v5, 1, v4
    v_lshl_add_u32 v5, v5, 2, v2
    v_and_b32 v6, 1, v4
    v_lshlrev_b32 v{VX}, 8, v5
    v_lshl_add_u32 v{VX}, v6, 5, v{VX}
    v_lshl_add_u32 v{VX}, v3, 3, v{VX}
    v_add_u32 v{VX}, s{S_I}, v{VX}
    v_add_u32 v10, {6 * 4096}, v{VX}
    v_add_u32 v11, {12 * 4096}, v{VX}
    s_lshl_b32 s{S_I}, s{S_T1}, 5
    v_lshlrev_b32 v5, 1, v5
    v_add_u32 v5, s{S_I}, v5
    s_waitcnt vmcnt(0)
    """)
    for b in range(3):
        for m in range(2):
            a(f"buffer_load_dwordx2 {ar(AXV + 4 * b + 2 * m, 2)}, v{[VX, 10, 11][b]}, s[{SX}:{SX + 3}], 0 offen offset:{2048 * m}")
            a(f"buffer_load_ushort a{ADI + 2 * b + m}, v5, s[{SDG}:{SDG + 3}], 0 offen offset:{192 * b + 16 * m}")
    if cfg.get("touch"):
        a(f"buffer_load_dword a226, v{VL16}, {SRD}, s{S_PO} offen")
        a(f"buffer_load_dword a227, v{VL16}, {SRD}, s{S_PL} offen")
        a(f"buffer_load_dword a228, v{VL16}, {SRD}, s{S_FLG} offen")
        a(f"buffer_load_dword a229, v{VX}, s[{SOUT}:{SOUT + 3}], 0 offen")
    a.raw(".p2align 6")
    for gb in range(3):
        emit_body(a, cfg, f"g{gb}", False, gb=gb, loop="g0")
    a.seg("k2_gx")
    a(f"s_mov_b32 s{S_CNT}, s{S_LEFT}")
    a(f"s_cmp_lg_u32 s{S_LEFT}, 0")
    a("s_cbranch_scc1 L_body_m")
    a.label("L_loop_done")
    a.seg("k2_mid2")
    if cfg.get("stamp"):
        a("s_memtime s[94:95]")
        a("s_memrealtime s[96:97]")
        a(f"s_load_dwordx2 s[64:65], s[0:1], 80")
        a("s_waitcnt lgkmcnt(0)")
        a("s_sub_u32 s94, s94, s90")
        a("s_sub_u32 s96, s96, s92")
        a("v_mov_b32 v2, s94")
        a("v_mov_b32 v3, s96")
        a("s_and_b32 s65, s65, 0xffff")
        a("s_mov_b32 s66, 256")
        a("s_mov_b32 s67, 0x00020000")
        a("s_lshr_b32 s72, s2, 3")
        a("s_lshl_b32 s72, s72, 3")
        a("v_mov_b32 v4, s72")
        a("s_and_b32 s73, s2, 7")
        a(f"s_or_b32 s73, s73, s{S_W}")
        a("s_cmp_lg_u32 s73, 0")
        a("s_cbranch_scc1 L_nostamp")
        a("buffer_store_dwordx2 v[2:3], v4, s[64:67], 0 offen")
        a.label("L_nostamp")
    a(f"s_cmp_eq_u32 s{S_SPLIT}, 5")
    a("s_cbranch_scc1 L_body_lm")
    emit_body(a, cfg, "lf", False, last=True, nkb=2)
    a("s_branch L_k2_chk")
    emit_body(a, cfg, "lm", False, last=True, nkb=1)
    a.label("L_k2_chk")
    a.seg("k2_chk")
    a(f"""
    v_max3_f32 v4, v{L}, v{L + 1}, v{L + 2}
    v_max_f32 v4, v4, v{L + 3}
    v_add_f32 v6, v{L}, v{L + 1}
    v_add_f32 v7, v{L + 2}, v{L + 3}
    v_add_f32 v6, v6, v7
    s_mov_b32 s{S_T0}, 0x53800000
    v_cmp_ngt_f32 vcc, s{S_T0}, v4
    v_cmp_u_f32 s[{SMK}:{SMK + 1}], v6, v6
    v_mov_b32 v5, {LDS_FLAG}
    v_mov_b32 v4, 1
    s_or_b64 vcc, vcc, s[{SMK}:{SMK + 1}]
    s_cbranch_vccz L_k2_chk2
    ds_write_b32 v5, v4
    """)
    a.label("L_k2_chk2")
    a(f"""
    s_waitcnt vmcnt(8) lgkmcnt(0)
    s_barrier
    ds_read_b32 v4, v5
    s_waitcnt lgkmcnt(0)
    v_readfirstlane_b32 s{S_T0}, v4
    s_nop 3
    s_cmp_eq_u32 s{S_T0}, 0
    s_cbranch_scc1 L_k2_epi
    s_waitcnt vmcnt(0)
    s_barrier
    """)
    a(f"s_mov_b32 s{S_MODE}, 1")
    a("s_branch L_k2_restart")
    a.label("L_safe")
    a.seg("k2_safe0")
    a(f"s_mov_b32 s{S_CNT}, s{S_LEFT}")
    emit_body(a, cfg, "s", True)
    a.seg("k2_smid")
    a(f"s_cmp_eq_u32 s{S_SPLIT}, 5")
    a("s_cbranch_scc1 L_body_sm")
    emit_body(a, cfg, "sf", True, last=True, nkb=2)
    a("s_branch L_k2_epi0")
    emit_body(a, cfg, "sm", True, last=True, nkb=1)
    a.label("L_k2_epi0")
    a.seg("k2_epi0")
    a("s_nop 7")
    a("s_waitcnt vmcnt(8) lgkmcnt(0)")
    a("s_barrier")
    a.label("L_k2_epi")
    a.seg("k2_epi")
    dbg_stamp(a, cfg, 4, 512, s=88, v=2)
    dbg_stamp(a, cfg, 6, 512, inv=True, s=88, v=2)
    if cfg.get("tl") and not cfg.get("ptl"):
        a("s_memrealtime s[98:99]")
    VPLA = 8
    smp = f"s[{SMP}:{SMP + 3}]"

    def consume_all():
        for b in range(3):
            for k in range(4):
                d = ar(AAG + 8 * b + 4 * (k >> 1), 4)
                a(f"{MF} {d}, {ar(AAH + 4 * (k & 1), 4)}, {ar(ABUF + 16 * b + 4 * k, 4)}, {d}")

    def publish():
        for sw in ("v_permlane32_swap_b32", "v_permlane16_swap_b32"):
            for qb in range(NQ):
                a(f"v_mov_b32 v{T + qb}, v{L + qb}")
            a("s_nop 0")
            for qb in range(NQ):
                a(f"{sw} v{L + qb}, v{T + qb}")
            a("s_nop 0")
            for qb in range(NQ):
                a(f"v_add_f32 v{L + qb}, v{L + qb}, v{T + qb}")
        for qb in range(NQ):
            a(f"v_mov_b32 v{57 + 2 * qb}, v{L + qb}")
        n = 0
        for qb in (2, 3, 0, 1):
            a(f"s_bitcmp1_b32 s{S_OWN}, {qb}")
            a(f"s_cbranch_scc1 L_own{qb}")
            if qb >= 2:
                a(f"s_add_u32 s{S_T0}, s{S_PO}, {qb * 4096}")
                for p in range(4):
                    t = 26 + 4 * (n % 2)
                    n += 1
                    for d in range(4):
                        src = O + (qb * 8 + 2 * p) * 4 + 2 * d
                        a(f"v_cvt_pk_bf16_f32 v{t + d}, v{src}, v{src + 1}")
                    a(f"buffer_store_dwordx4 {vr(t, 4)}, v{VL16}, {SRD}, s{S_T0} offen offset:{1024 * p} sc1")
            a.label(f"L_ownr{qb}")
        a("s_mov_b64 exec, 0xffff")
        for qb in range(NQ):
            a(f"buffer_store_dwordx2 v[{56 + 2 * qb}:{57 + 2 * qb}], v{VPLA}, {SRD}, s{S_PL} offen offset:{128 * qb} sc1")
        a("s_mov_b64 exec, -1")


    a(f"v_and_b32 v{VPLA}, 15, v0")
    a(f"v_lshlrev_b32 v{VPLA}, 3, v{VPLA}")
    for qb in range(NQ):
        a(f"v_sub_f32 v{56 + 2 * qb}, 0, v{NM + 4 * qb}")
    publish()
    if cfg.get("tl") and not cfg.get("ptl"):
        a("s_memrealtime s[62:63]")
        a("s_memrealtime s[60:61]")
    consume_all()
    a("s_waitcnt vmcnt(0) lgkmcnt(0)")
    if cfg.get("tl") and not cfg.get("ptl"):
        a("s_memrealtime s[56:57]")
    a("s_barrier")
    a(f"""
    s_cmp_lg_u32 s{S_W}, 0
    s_cbranch_scc1 L_nosig
    s_lshl_b32 s{S_T0}, s{S_SPLIT}, 2
    v_mov_b32 v10, s{S_T0}
    s_add_u32 s{S_T1}, s{S_MODE}, 1
    v_mov_b32 v11, s{S_T1}
    s_mov_b64 exec, 1
    buffer_store_dword v11, v10, {SRD}, s{S_FLG} offen sc1
    s_mov_b64 exec, -1
    """)
    a.label("L_nosig")
    a(f"s_cmp_gt_i32 s{S_N}, 0")
    a("s_cbranch_scc1 L_left")
    a.label("L_gdone")
    a.seg("k2_fin")
    if cfg.get("tl") and not cfg.get("ptl"):
        a("s_memrealtime s[58:59]")
    POV, PLV = 128, 200
    ACC, BP, AI, XA, VXB = 26, 64, 34, 96, 5
    a(f"""
    v_and_b32 v{VPLA}, 15, v0
    v_and_b32 v9, 63, v0
    v_min_u32 v9, 5, v9
    v_lshlrev_b32 v9, 2, v9
    buffer_load_dword v10, v9, {SRD}, s{S_FLG} offen sc1
    s_mul_i32 s{S_T0}, s{S_QT}, {6 * 65536}
    s_lshl_b32 s{S_T1}, s{S_SPLIT}, 12
    s_add_u32 s{S_T0}, s{S_T0}, s{S_T1}
    s_lshl_b32 s{S_T1}, s{S_W}, 10
    s_add_u32 s{S_T0}, s{S_T0}, s{S_T1}
    s_add_u32 s{S_PO}, s{S_T0}, {PO}
    s_mul_i32 s{S_T0}, s{S_QT}, {6 * 2048}
    s_lshl_b32 s{S_T1}, s{S_SPLIT}, 7
    s_add_u32 s{S_T0}, s{S_T0}, s{S_T1}
    s_add_u32 s{S_PL}, s{S_T0}, {PL}
    v_mov_b32 v{VXB}, v{VX}
    v_add_u32 v{VXB + 1}, {6 * 4096}, v{VX}
    v_add_u32 v{VXB + 2}, {12 * 4096}, v{VX}
    v_bfe_u32 v2, v0, 2, 2
    v_and_b32 v3, 3, v0
    v_bfe_u32 v4, v0, 5, 1
    v_lshl_add_u32 v2, v4, 2, v2
    v_lshl_add_u32 v2, v3, 4, v2
    v_lshlrev_b32 v14, 2, v2
    v_add_u32 v15, 32, v14                       ; m = 1
    v_and_b32 v4, 16, v0
    v_cmp_ne_u32 s[{SMK}:{SMK + 1}], 0, v4
    v_and_b32 v2, 1, v{VPLA}
    v_lshlrev_b32 v2, 4, v2
    v_mov_b32 v3, 0x3f80
    v_lshlrev_b32 v2, v2, v3
    v_bfe_u32 v3, v{VPLA}, 1, 1
    v_lshrrev_b32 v4, 2, v{VPLA}
    v_bfe_u32 v11, v0, 4, 2
    v_xor_b32 v4, v4, v11
    v_lshl_add_u32 v3, v4, 1, v3
    v_cmp_eq_u32 s[{SMK + 2}:{SMK + 3}], 0, v3
    v_cmp_eq_u32 s[{SMK + 4}:{SMK + 5}], 1, v3
    v_lshlrev_b32 v{VPLA}, 3, v{VPLA}
    """)
    for k in (2, 3, 4, 5):
        a(f"v_mov_b32 v{AI + k}, 0")
    for k in range(2):
        a(f"v_cndmask_b32 v{AI + k}, 0, v2, s[{SMK + 2 + 2 * k}:{SMK + 3 + 2 * k}]")
        a(f"v_cndmask_b32 v{AI + 6 + k}, 0, v2, s[{SMK + 2 + 2 * k}:{SMK + 3 + 2 * k}]")
    for b in range(3):
        for m in range(2):
            a(f"v_accvgpr_read_b32 v2, a{ADI + 2 * b + m}")
            for d in range(2):
                a(f"v_accvgpr_read_b32 v{3 + d}, a{AXV + 4 * b + 2 * m + d}")
            for r in range(4):
                a(f"v_accvgpr_read_b32 v{80 + r}, a{AAG + 8 * b + 4 * m + r}")
            a("v_lshlrev_b32 v2, 16, v2")
            xa = XA + 8 * b + 4 * m
            for d in range(2):
                a(f"v_lshlrev_b32 v{xa + 2 * d}, 16, v{3 + d}")
                a(f"v_and_b32 v{xa + 2 * d + 1}, 0xffff0000, v{3 + d}")
            for r in range(4):
                a(f"v_fmac_f32 v{xa + r}, v{80 + r}, v2")
    a(f"s_mov_b32 s{S_T1}, s{S_SPLIT}")
    for s in range(6):
        a(f"s_lshl_b32 s{S_T0}, s{S_T1}, 11")
        a(f"s_add_u32 s{SMK + 8 + s}, s{S_PL}, s{S_T0}")
        if s:
            a(f"s_lshl_b32 s{S_T0}, s{S_T1}, 16")
            a(f"s_add_u32 s{SMK + 14 + s}, s{S_PO}, s{S_T0}")
        a(f"s_add_u32 s{S_T1}, s{S_T1}, 1")
        a(f"s_cmp_eq_u32 s{S_T1}, 6")
        a(f"s_cselect_b32 s{S_T1}, 0, s{S_T1}")
    a(f"s_lshl_b32 s{S_T0}, s{S_W}, 10")
    a(f"v_add_u32 v2, s{S_T0}, v{VL16}")
    for b in range(3):
        a(f"ds_read_b128 {vr(POV + 24 * b, 4)}, v2 offset:{4096 * b}")
    a("s_waitcnt lgkmcnt(0)")
    a("s_branch L_poll1")
    a.label("L_poll")
    a("s_sleep 1")
    a(f"buffer_load_dword v10, v9, {SRD}, s{S_FLG} offen sc1")
    a.label("L_poll1")
    a(f"""
    s_waitcnt vmcnt(0)
    v_cmp_eq_u32 vcc, 0, v10
    s_cbranch_vccnz L_poll
    """)
    if cfg.get("tl") and not cfg.get("ptl"):
        a("s_memrealtime s[100:101]")
        a("s_waitcnt lgkmcnt(0)")
    a("v_cmp_ne_u32 vcc, 1, v10")
    for b in range(3):
        if b == 2:
            a(f"s_cmp_gt_u32 s{S_SPLIT}, 3")
            a("s_cbranch_scc1 L_no3")
        for s in range(6):
            a(f"buffer_load_dwordx2 {vr(PLV + 12 * b + 2 * s, 2)}, v{VPLA}, {SRD}, s{SMK + 8 + s} offen offset:{768 * b} sc1")
        for s in range(1, 6):
            a(f"s_add_u32 s{S_T0}, s{SMK + 14 + s}, {b * 6 * 4096}")
            a(f"buffer_load_dwordx4 {vr(POV + 24 * b + 4 * s, 4)}, v{VL16}, {SRD}, s{S_T0} offen sc1")
    a.label("L_ld_done")
    a("s_cbranch_vccnz L_general")

    def finish(b, rcp):
        for m in range(2):
            if rcp:
                a(f"ds_bpermute_b32 v{80 + m}, v{14 + m}, v{rcp}")
            for j in range(8):
                a(f"ds_bpermute_b32 v{BP + 8 * m + j}, v{14 + m}, v{ACC + j}")
        ob = 56 + 4 * (b & 1)
        for m in range(2):
            a(f"s_waitcnt lgkmcnt({(9 if rcp else 8) * (1 - m)})")
            xa = XA + 8 * b + 4 * m
            for r in range(4):
                a(f"v_cndmask_b32 v{BP + 8 * m + r}, v{BP + 8 * m + r}, v{BP + 8 * m + 4 + r}, s[{SMK}:{SMK + 1}]")
                if rcp:
                    a(f"v_fmac_f32 v{xa + r}, v{BP + 8 * m + r}, v{80 + m}")
                else:
                    a(f"v_add_f32 v{xa + r}, v{xa + r}, v{BP + 8 * m + r}")
            for d in range(2):
                a(f"v_cvt_pk_bf16_f32 v{ob + 2 * m + d}, v{xa + 2 * d}, v{xa + 2 * d + 1}")
            a(f"buffer_store_dwordx2 {vr(ob + 2 * m, 2)}, v{VXB + b}, s[{SOUT}:{SOUT + 3}], 0 offen offset:{2048 * m}{OSC}")

    for b in range(3):
        pl, po = PLV + 12 * b, POV + 24 * b
        if b == 2:
            a(f"s_cmp_gt_u32 s{S_SPLIT}, 3")
            a("s_cbranch_scc1 L_k2_done")
        for s in range(6):
            if s:
                a(f"s_waitcnt vmcnt({5 - s + 11 * (2 - b) + 2 * b})")
            for h in range(2):
                d = vr(ACC + 4 * h, 4)
                a(f"{MF} {d}, {vr(AI + 4 * h, 4)}, {vr(po + 4 * s, 4)}, {'0' if s == 0 else d}")
            if s == 1:
                a(f"v_add_f32 v42, v{pl + 1}, v{pl + 3}")
            elif s > 1:
                a(f"v_add_f32 v42, v42, v{pl + 2 * s + 1}")
        a("v_rcp_f32 v42, v42")
        a("s_nop 5")
        finish(b, 42)
    a("s_branch L_k2_done")
    a.label("L_no3")
    a("s_waitcnt vmcnt(11)")
    a("s_cbranch_vccnz L_no3g")
    a.seg("k2_no3")
    for b in range(2):
        pl, po = PLV + 12 * b, POV + 24 * b
        for s in range(6):
            if s and b:
                a(f"s_waitcnt vmcnt({5 - s + 2})")
            for h in range(2):
                d = vr(ACC + 4 * h, 4)
                a(f"{MF} {d}, {vr(AI + 4 * h, 4)}, {vr(po + 4 * s, 4)}, {'0' if s == 0 else d}")
            if s == 1:
                a(f"v_add_f32 v42, v{pl + 1}, v{pl + 3}")
            elif s > 1:
                a(f"v_add_f32 v42, v42, v{pl + 2 * s + 1}")
        a("v_rcp_f32 v42, v42")
        a("s_nop 5")
        finish(b, 42)
    a("s_branch L_k2_done")
    a.label("L_no3g")
    a("s_waitcnt vmcnt(0)")
    a.label("L_general")
    a.seg("k2_gen")
    for b in range(3):
        pl, po = PLV + 12 * b, POV + 24 * b
        if b == 2:
            a(f"s_cmp_gt_u32 s{S_SPLIT}, 3")
            a("s_cbranch_scc1 L_k2_done")
        a(f"s_waitcnt vmcnt({11 * (2 - b) + 2 * b})")
        a(f"v_max3_f32 v44, v{pl}, v{pl + 2}, v{pl + 4}")
        a(f"v_max3_f32 v44, v44, v{pl + 6}, v{pl + 8}")
        a(f"v_max_f32 v44, v44, v{pl + 10}")
        for s in range(6):
            a(f"v_sub_f32 v{pl + 2 * s}, v{pl + 2 * s}, v44")
        for s in range(6):
            a(f"v_exp_f32 v{pl + 2 * s}, v{pl + 2 * s}")
        a("s_nop 0")
        a(f"v_mul_f32 v45, v{pl}, v{pl + 1}")
        for s in range(1, 6):
            a(f"v_fmac_f32 v45, v{pl + 2 * s}, v{pl + 2 * s + 1}")
        a("v_rcp_f32 v45, v45")
        a("s_nop 0")
        for s in range(6):
            a(f"v_mul_f32 v{pl + 2 * s}, v{pl + 2 * s}, v45")
        for s in range(6):
            for d in range(4):
                r = po + 4 * s + d
                a(f"v_lshlrev_b32 v42, 16, v{r}")
                a(f"v_and_b32 v43, 0xffff0000, v{r}")
                op = "v_mul_f32" if s == 0 else "v_fmac_f32"
                a(f"{op} v{ACC + 2 * d}, v42, v{pl + 2 * s}")
                a(f"{op} v{ACC + 2 * d + 1}, v43, v{pl + 2 * s}")
        finish(b, None)
    a.label("L_k2_done")
    a("s_waitcnt vmcnt(0)")
    if cfg.get("tl"):
        a("s_waitcnt lgkmcnt(0)")
        a("s_mov_b64 exec, 1")
        a("v_lshrrev_b32 v1, 6, v0")
        a("v_lshlrev_b32 v1, 5, v1")
        a(f"s_lshl_b32 s88, s2, 7")
        a(f"s_add_u32 s88, s88, {TR + 3 * 0x40000}")
        for i, sr in enumerate((98, 62, 60, 56, 58, 100)):
            a(f"v_mov_b32 v{2 + i}, s{sr}")
        a(f"buffer_store_dwordx4 v[2:5], v1, {SRD}, s88 offen")
        a(f"buffer_store_dwordx2 v[6:7], v1, {SRD}, s88 offen offset:16")
    dbg_stamp(a, cfg, 5, 512, s=88, v=2)
    stamp_exit(a, cfg, 84, 2, SRD, TR)
    a.label("L_k2_end")
    a("s_endpgm")
    a.label("L_left")
    a.seg("k2_left0")
    lane_setup()
    a(f"v_add_u32 v{GLA}, {NGMAX * 256}, v{GLA}")
    a.label("L_left_loop")
    a.seg("k2_left")
    for b in range(3):
        a(f"ds_read_b128 {vr(64 + 4 * b, 4)}, v{GLA} offset:{b * RSZ + LOFF}")
    a(f"v_add_u32 v{GLA}, 256, v{GLA}")
    a("s_waitcnt lgkmcnt(0)")
    for b in range(3):
        for k in range(4):
            a(f"v_add_u32 v{64 + 4 * b + k}, v{64 + 4 * b + k}, v{GOFF}")
            a(f"buffer_load_dwordx4 {ar(ABUF + 16 * b + 4 * k, 4)}, v{64 + 4 * b + k}, {smp}, 0 offen offset:{12 - 4 * k}")
    a("s_waitcnt vmcnt(0)")
    consume_all()
    a(f"""
    s_sub_u32 s{S_N}, s{S_N}, 1
    s_cmp_gt_i32 s{S_N}, 0
    s_cbranch_scc1 L_left_loop
    s_nop 7
    s_cmp_le_u32 s{S_MAXC}, {CAP}
    s_cbranch_scc1 L_gdone
    s_barrier
    s_branch L_car_t
    """)
    a.label("L_more2")
    a.seg("k2_more2")
    a("s_barrier")
    maxc()
    lane_setup()
    a("s_branch L_left_loop")
    for qb in range(NQ):
        a.label(f"L_own{qb}")
        a.seg(f"k2_own{qb}")
        a(f"s_lshl_b32 s{S_I}, s{S_W}, 2")
        a(f"s_add_u32 s{S_I}, s{S_I}, {qb}")
        a(f"s_sub_u32 s{S_I}, s{S_I}, s{S_SPLIT}")
        a(f"s_mul_i32 s{S_T1}, s{S_I}, 683")
        a(f"s_and_b32 s{S_T1}, s{S_T1}, 0x3000")
        a(f"v_add_u32 v42, s{S_T1}, v{VL16}")
        for p in range(4):
            t = 26 + 4 * (p % 2)
            for d in range(4):
                src = O + (qb * 8 + 2 * p) * 4 + 2 * d
                a(f"v_cvt_pk_bf16_f32 v{t + d}, v{src}, v{src + 1}")
            a(f"ds_write_b128 v42, {vr(t, 4)} offset:{1024 * p}")
        a(f"s_branch L_ownr{qb}")
    emit_careful(a, "e", "L_ev_ret")
    emit_careful(a, "t", "L_more2")
    for tag, nkb in (("s", 2), ("sf", 2), ("sm", 1)):
        for X in "AB":
            emit_slow(a, X, nkb, tag + X)
    return dict(name=name, vgpr=512, accum=256, sgpr=102, grid=NWG, block=256, lds=RB + 4 * RSZ,
                chains=[["k2_pro0", "k2_pro", "k2_pro2", "body_m", "body_m", "k2_mid", "k2_mid2", "body_lf", "k2_chk", "k2_epi", "k2_fin"],
                        ["body_m", "k2_mid", "k2_ev", "body_m"], ["body_m", "k2_mid", "k2_evr", "body_m"], ["body_g2", "k2_gx", "k2_mid2", "body_lf"], ["body_g2", "k2_gx", "k2_mid2", "body_lm"], ["k2_ev", "careful_e", "body_m"],
                        ["body_m", "k2_mid", "k2_evg", "body_g0", "body_g1", "body_g2", "body_g0", "body_g1", "body_g2", "k2_gx", "body_m"],
                        ["body_m", "k2_mid", "k2_mid2", "body_lm", "k2_chk", "k2_pro"],
                        ["k2_pro", "k2_pro2", "k2_safe0", "body_s", "body_s", "k2_smid", "body_sf", "k2_epi0", "k2_epi"],
                        ["body_s", "k2_smid", "body_sm", "k2_epi0", "k2_epi"],
                        ["k2_fin", "k2_gen"], ["k2_fin", "k2_no3"], ["k2_chk", "k2_own0", "k2_own1", "k2_own2", "k2_own3"], ["k2_epi", "k2_left0", "k2_left", "k2_left", "k2_fin"], ["k2_left", "careful_t", "k2_more2", "k2_left"]] +
                       [["slow_" + t + X] for t in ("s", "sf", "sm") for X in "AB"])
```

```python
import re

TRANS = ("v_exp_f32", "v_log_f32", "v_rcp_f32", "v_rsq_f32", "v_sqrt_f32", "v_sin_f32", "v_cos_f32")


def _regs(tok):
    tok = tok.strip()
    tok = tok.replace("abs(", "").replace(")", "").replace("|", "")
    if tok.startswith("-"):
        tok = tok[1:]
    m = re.fullmatch(r"([vas])(\d+)", tok)
    if m:
        return [(m.group(1), int(m.group(2)))]
    m = re.fullmatch(r"([vas])\[(\d+):(\d+)\]", tok)
    if m:
        return [(m.group(1), i) for i in range(int(m.group(2)), int(m.group(3)) + 1)]
    if tok in ("vcc", "vcc_lo", "vcc_hi"):
        return [("s", "vcc")]
    if tok in ("exec", "exec_lo", "exec_hi"):
        return [("s", "exec")]
    if tok == "m0":
        return [("s", "m0")]
    return []


class Ins:
    __slots__ = ("text", "op", "ops", "mods", "kind", "wr", "rd", "mf", "passes", "states", "dpp", "lds", "cread")

    def __init__(self, text):
        self.text = text
        t = text.split(";")[0].strip()
        parts = t.split(None, 1)
        self.op = parts[0]
        rest = parts[1] if len(parts) > 1 else ""
        toks = [x.strip() for x in rest.split(",")] if rest else []
        mods = []
        rest2 = re.sub(r"\b(op_sel|op_sel_hi|neg_lo|neg_hi):\[[^\]]*\]", lambda m: (mods.append(m.group(0)), "")[1], rest)
        toks = [x.strip() for x in rest2.split(",")] if rest2.strip() else []
        if toks:
            last = toks[-1].split()
            toks[-1] = last[0] if last else ""
            mods += last[1:]
        self.ops = toks
        self.mods = mods
        op = self.op
        base = re.sub(r"_(e32|e64|dpp|sdwa)$", "", op)
        self.dpp = op.endswith("_dpp") or any(m.startswith(("row_", "quad_perm", "wave_")) for m in mods)
        self.lds = "lds" in mods
        self.mf = None
        self.passes = 0
        self.states = 1
        self.cread = []
        wr, rd = [], []
        if base.startswith("v_mfma"):
            self.kind = "mfma"
            wr = _regs(toks[0])
            a, b, c = _regs(toks[1]), _regs(toks[2]), _regs(toks[3])
            self.mf = (wr, a, b, c)
            rd = a + b + c
            self.cread = c
            self.passes = 8 if "32x32" in base else 4
        elif base.startswith("v_cmp"):
            self.kind = "valu"
            wr = _regs(toks[0])
            if base.startswith("v_cmpx"):
                wr += [("s", "exec")]
            for x in toks[1:]:
                rd += _regs(x)
        elif base in ("v_readfirstlane_b32", "v_readlane_b32"):
            self.kind = "valu"
            wr = _regs(toks[0])
            for x in toks[1:]:
                rd += _regs(x)
        elif base.startswith("v_permlane"):
            self.kind = "valu"
            wr = _regs(toks[0]) + _regs(toks[1])
            rd = list(wr)
        elif base in ("v_add_co_u32", "v_sub_co_u32", "v_addc_co_u32", "v_subb_co_u32"):
            self.kind = "valu"
            wr = _regs(toks[0]) + _regs(toks[1])
            for x in toks[2:]:
                rd += _regs(x)
        elif base == "v_nop":
            self.kind = "valu"
        elif base.startswith("v_"):
            self.kind = "valu"
            wr = _regs(toks[0])
            for x in toks[1:]:
                rd += _regs(x)
            if base in ("v_fmac_f32", "v_dot2c_f32_bf16", "v_pk_fmac_f16") or self.dpp:
                rd += wr
            if base == "v_cndmask_b32" and len(toks) == 3:
                rd += [("s", "vcc")]
        elif base.startswith("ds_"):
            self.kind = "ds"
            if base.startswith(("ds_read", "ds_bpermute", "ds_permute", "ds_swizzle")) or "_rtn" in base:
                wr = _regs(toks[0])
                for x in toks[1:]:
                    rd += _regs(x)
            else:
                for x in toks:
                    rd += _regs(x)
        elif base.startswith(("buffer_", "global_")):
            self.kind = "vmem"
            if base in ("buffer_wbl2", "buffer_inv"):
                pass
            elif "load" in base and not self.lds:
                wr = _regs(toks[0])
                for x in toks[1:]:
                    rd += _regs(x)
            elif "atomic" in base and "sc0" in mods:
                wr = _regs(toks[0])
                for x in toks:
                    rd += _regs(x)
            else:
                for x in toks:
                    rd += _regs(x)
            if self.lds:
                rd += [("s", "m0")]
        elif base == "s_nop":
            self.kind = "salu"
            self.states = int(toks[0], 0) + 1
        elif base.startswith("s_"):
            self.kind = "salu"
            if base.startswith(("s_cmp", "s_cbranch", "s_branch", "s_waitcnt", "s_barrier", "s_endpgm", "s_setprio", "s_sleep", "s_bitcmp")):
                for x in toks:
                    rd += _regs(x)
            else:
                wr = _regs(toks[0]) if toks else []
                for x in toks[1:]:
                    rd += _regs(x)
                if "saveexec" in base:
                    wr += [("s", "exec")]
        else:
            raise ValueError("unknown instruction: " + text)
        self.wr, self.rd = wr, rd
        self.op = base

    @property
    def trans(self):
        return self.op in TRANS


def check_hazards(seq, name=""):
    probs = []
    n = len(seq)
    tm = []
    mft = []
    t = 0
    for c in seq:
        if c.kind == "mfma":
            if len(mft) >= 2:
                t = max(t, mft[-2][0] + mft[-2][1])
            mft.append((t, c.passes))
        tm.append(t)
        t += c.states
    for i, c in enumerate(seq):
        for j in range(i - 1, -1, -1):
            p = seq[j]
            dist = tm[i] - tm[j] - p.states if p.kind == "mfma" else sum(x.states for x in seq[j + 1:i][:24])
            need = 0
            why = ""
            pw = set(p.wr)
            crd, cwr = set(c.rd), set(c.wr)
            vpw = {r for r in pw if r[0] in "va"}
            spw = {r for r in pw if r[0] == "s"}
            if p.kind == "valu":
                if c.kind == "mfma" and vpw & crd:
                    need, why = 2, "VALU->MFMA operand"
                if c.kind == "valu" and p.trans and not c.trans and vpw & crd:
                    need, why = max(need, 1), "trans->VALU"
                if c.kind == "valu" and (c.op.startswith("v_permlane") or c.dpp) and vpw & crd:
                    need, why = max(need, 2), "VALU->permlane/dpp"
                if c.op in ("v_readfirstlane_b32", "v_readlane_b32") and vpw & crd:
                    need, why = max(need, 1), "VALU->readlane"
                if spw:
                    if c.kind == "valu" and (spw - {("s", "exec")}) & crd:
                        need, why = max(need, 2), "VALU sgpr->VALU const"
                        if c.op in ("v_readlane_b32", "v_writelane_b32"):
                            need = max(need, 4)
                    if c.kind == "vmem" and spw & crd:
                        need, why = max(need, 5), "VALU sgpr->VMEM"
                    if ("s", "exec") in spw:
                        if c.kind == "mfma":
                            need, why = max(need, 4), "exec->mfma"
                        if c.dpp:
                            need, why = max(need, 5), "exec->dpp"
                        if c.op.startswith(("v_permlane", "v_read")):
                            need, why = max(need, 4), "exec->permlane"
            if p.kind == "mfma":
                big = p.passes == 8
                D = set(p.mf[0])
                if c.kind in ("valu",) and (D & crd or D & cwr):
                    need, why = max(need, 12 if big else 8), "MFMA D->VALU"
                if c.kind in ("vmem", "ds") and (D & crd or D & cwr):
                    need, why = max(need, 12 if big else 8), "MFMA D->mem"
                if c.kind == "mfma":
                    if D & (set(c.mf[1]) | set(c.mf[2])):
                        need, why = max(need, 12 if big else 8), "MFMA D->MFMA A/B"
                    cc = set(c.mf[3])
                    if D & cc and not (p.mf[0] == c.mf[3] and p.passes == c.passes):
                        need, why = max(need, 10 if big else 6), "MFMA D->MFMA C partial"
                    if D & set(c.mf[0]) and not (p.mf[0] == c.mf[3]):
                        need, why = max(need, 10 if big else 6), "MFMA D WAW"
                if c.kind == "valu" and set(p.cread) & cwr:
                    need, why = max(need, 7 if big else 3), "MFMA C WAR"
            if p.kind == "salu" and ("s", "m0") in pw and c.kind == "vmem" and c.lds:
                need, why = max(need, 1), "m0->lds dma"
            if p.kind == "vmem" and "store" in p.op and ("x3" in p.op or "x4" in p.op):
                data = set(_regs(p.ops[0])) if p.op.startswith("buffer") else set(_regs(p.ops[1]))
                if data & cwr:
                    need, why = max(need, 2 if c.kind == "valu" else 1), "wide store data WAR"
            if need > dist:
                probs.append(f"{name}: [{j}] {p.text.strip()}  ->  [{i}] {c.text.strip()} : {why} needs {need}, has {dist}")
            if i - j > 24:
                break
    return probs


class Asm:
    def __init__(self):
        self.lines = []
        self.segs = {}
        self.cur = None

    def seg(self, name):
        self.cur = self.segs.setdefault(name, [])

    def raw(self, text):
        self.lines.append(text)

    def label(self, name):
        self.lines.append(name + ":")

    def __call__(self, text):
        for t in text.strip().split("\n"):
            t = t.strip()
            if not t or t.startswith(";"):
                if t:
                    self.lines.append("    " + t)
                continue
            if t.endswith(":") or t.startswith("."):
                self.lines.append(t)
                continue
            self.lines.append("    " + t)
            if self.cur is not None:
                self.cur.append(Ins(t))

    def check(self, chains):
        bad = []
        for ch in chains:
            seq = []
            for s in ch:
                seq += self.segs[s]
            bad += check_hazards(seq, "+".join(ch))
        seen = set()
        out = []
        for b in bad:
            k = b.split(":", 1)[1]
            k = re.sub(r"\[\d+\]", "", k)
            if k not in seen:
                seen.add(k)
                out.append(b)
        return out

    def text(self):
        return "\n".join(self.lines) + "\n"


def stamp_entry(a, cfg, s):
    if cfg.get("tl"):
        a(f"s_memrealtime s[{s}:{s + 1}]")


def stamp_exit(a, cfg, s, kidx, srd, TR):
    if cfg.get("tl"):
        a("s_waitcnt vmcnt(0) lgkmcnt(0)")
        a(f"s_memrealtime s[{s + 2}:{s + 3}]")
        a("s_mov_b64 exec, 1")
        a("v_lshrrev_b32 v1, 6, v0")
        a("v_lshlrev_b32 v1, 3, v1")
        a(f"s_lshl_b32 s{s + 4}, s2, 5")
        a(f"s_add_u32 s{s + 4}, s{s + 4}, {TR + kidx * 0x40000}")
        a("s_waitcnt lgkmcnt(0)")
        a(f"v_mov_b32 v2, s{s}")
        a(f"v_mov_b32 v3, s{s + 2}")
        a(f"buffer_store_dwordx2 v[2:3], v1, {srd}, s{s + 4} offen")


def dbg_stamp(a, cfg, slot, back, inv=False, s=88, v=1):
    if not cfg.get("dbg"):
        return
    global _dbgn
    _dbgn += 1
    back = back + cfg.get("dbgoff", 0)
    a(f"v_readfirstlane_b32 s{s}, v0")
    a("s_nop 3")
    a(f"s_cmp_lg_u32 s{s}, 0")
    a(f"s_cbranch_scc1 L_dbg{_dbgn}")
    a(f"s_memrealtime s[{s}:{s + 1}]")
    a(f"s_load_dwordx2 s[{s + 4}:{s + 5}], s[0:1], 80")
    a("s_waitcnt lgkmcnt(0)")
    if back >= 0:
        a(f"s_sub_u32 s{s + 4}, s{s + 4}, {back}")
        a(f"s_subb_u32 s{s + 5}, s{s + 5}, 0")
    else:
        a(f"s_add_u32 s{s + 4}, s{s + 4}, {-back}")
        a(f"s_addc_u32 s{s + 5}, s{s + 5}, 0")
    a(f"s_and_b32 s{s + 5}, s{s + 5}, 0xffff")
    a(f"s_mov_b32 s{s + 6}, 256")
    a(f"s_mov_b32 s{s + 7}, 0x00020000")
    if inv:
        a(f"s_not_b32 s{s}, s{s}")
    a(f"v_mov_b32 v{v}, s{s}")
    a(f"v_mov_b32 v{v + 1}, {4 * slot}")
    a(f"s_mov_b64 s[{s + 2}:{s + 3}], exec")
    a("s_mov_b64 exec, 1")
    a(f"buffer_atomic_umax v{v}, v{v + 1}, s[{s + 4}:{s + 7}], 0 offen")
    a(f"s_mov_b64 exec, s[{s + 2}:{s + 3}]")
    a.label(f"L_dbg{_dbgn}")


_dbgn = 0
```

```python
from layout import *
from asmlib import stamp_entry, stamp_exit
import struct

MF = "v_mfma_f32_32x32x16_bf16"


def f2u(x):
    return struct.unpack("<I", struct.pack("<f", x))[0]


def vr(b, n):
    return f"v[{b}:{b + n - 1}]"


def emit_k1(a, cfg):
    name = "k1_proj_kernel"
    NT = 80
    NWG = 4 * NT
    NBK = GB if cfg.get('pathA') else 0
    a.raw(".text")
    a.raw(f".globl {name}\n.p2align 8\n.type {name},@function")
    a.label(name)
    a.seg("k1_a")
    SX, SW1, SWO, SWS = 4, 8, 12, 16
    S_JOB, S_BLK, S_W, S_T0, S_T1, S_SC = 20, 21, 22, 23, 24, 26
    S_O1, S_O2 = 28, 29
    XR = 64
    XF = 96
    H = 32
    D = 160
    VA = 8
    a(f"""
    s_cmp_ge_u32 s2, {NWG + NBK}
    s_cbranch_scc1 L_k1_exit
    """)
    stamp_entry(a, cfg, 32)
    if NBK:
        a(f"s_cmp_lt_u32 s2, {NBK}")
        a("s_cbranch_scc1 L_k1_bucket")
    a(f"""
    s_sub_u32 s3, s2, {NBK}
    s_and_b32 s{S_JOB}, s3, 3
    s_add_u32 s{S_T0}, s{S_JOB}, 1
    s_and_b32 s{S_T0}, s{S_T0}, 3
    s_lshl_b32 s{S_T0}, s{S_T0}, 3
    s_add_u32 s{S_T0}, s{S_T0}, 32
    s_load_dwordx2 s[{SX}:{SX + 1}], s[0:1], 0
    s_load_dwordx2 s[{SW1}:{SW1 + 1}], s[0:1], s{S_T0}
    s_load_dwordx2 s[{SWO}:{SWO + 1}], s[0:1], 64
    s_load_dwordx2 s[{SWS}:{SWS + 1}], s[0:1], 88
    v_lshrrev_b32 v1, 6, v0
    v_and_b32 v2, 63, v0                      ; lane
    v_readfirstlane_b32 s{S_W}, v1
    s_mov_b32 s{SX + 2}, {N * 256}
    s_mov_b32 s{SX + 3}, 0x00020000
    s_mov_b32 s{SW1 + 2}, 32768
    s_mov_b32 s{SW1 + 3}, 0x00020000
    s_mov_b32 s{SWO + 2}, 32768
    s_mov_b32 s{SWO + 3}, 0x00020000
    s_mov_b32 s{SWS + 2}, 0x10000000
    s_mov_b32 s{SWS + 3}, 0x00020000
    s_lshr_b32 s{S_BLK}, s3, 2
    s_lshl_b32 s{S_BLK}, s{S_BLK}, 2
    s_add_u32 s{S_BLK}, s{S_BLK}, s{S_W}
    s_lshl_b32 s{S_BLK}, s{S_BLK}, 13          ; *8192 bytes
    ; x address: n*256 + h*16
    v_and_b32 v3, 31, v2
    v_lshrrev_b32 v4, 5, v2                    ; h
    v_lshlrev_b32 v5, 8, v3
    v_lshl_add_u32 v5, v4, 4, v5               ; v5 = n*256 + h*16
    v_lshrrev_b32 v6, 4, v2                    ; g
    v_and_b32 v7, 15, v2                       ; t
    v_lshlrev_b32 v16, 2, v6
    v_xor_b32 v16, v16, v7
    v_lshlrev_b32 v16, 4, v16
    v_lshl_add_u32 v16, v6, 8, v16
    s_lshl_b32 s{S_T0}, s{S_W}, 13             ; w*8192
    s_add_u32 s{S_T1}, s{S_T0}, 4096
    s_mov_b32 m0, s{S_T0}
    s_waitcnt lgkmcnt(0)
    s_and_b32 s{SX + 1}, s{SX + 1}, 0xffff
    s_and_b32 s{SW1 + 1}, s{SW1 + 1}, 0xffff
    s_and_b32 s{SWO + 1}, s{SWO + 1}, 0xffff
    s_and_b32 s{SWS + 1}, s{SWS + 1}, 0xffff
    """)
    if cfg.get("k1tl"):
        a("s_memrealtime s[48:49]")
    for s in range(8):
        a(f"buffer_load_dwordx4 {vr(XR + 4 * s, 4)}, v5, s[{SX}:{SX + 3}], s{S_BLK} offen offset:{32 * s}")
    for k in range(4):
        a(f"buffer_load_dwordx4 v16, s[{SW1}:{SW1 + 3}], s{S_T0} offen offset:{1024 * k} lds")
    a(f"s_mov_b32 m0, s{S_T1}")
    a("s_nop 0")
    for k in range(4):
        a(f"buffer_load_dwordx4 v16, s[{SW1}:{SW1 + 3}], s{S_T1} offen offset:{1024 * k} lds")
    a(f"s_cmp_lt_u32 s{S_JOB}, 2")
    a("s_cbranch_scc1 L_k1_nowo")
    a(f"s_add_u32 m0, s{S_T0}, 0x8000")
    a("s_nop 0")
    for k in range(4):
        a(f"buffer_load_dwordx4 v16, s[{SWO}:{SWO + 3}], s{S_T0} offen offset:{1024 * k} lds")
    a(f"s_add_u32 m0, s{S_T1}, 0x8000")
    a("s_nop 0")
    for k in range(4):
        a(f"buffer_load_dwordx4 v16, s[{SWO}:{SWO + 3}], s{S_T1} offen offset:{1024 * k} lds")
    a("s_waitcnt vmcnt(16)")
    a("s_branch L_k1_ln")
    a.label("L_k1_nowo")
    a("s_waitcnt vmcnt(8)")
    a.label("L_k1_ln")
    a.seg("k1_b")
    if cfg.get("k1tl"):
        a("s_memrealtime s[50:51]")
    if NBK:
        a(f"""
        v_mov_b32 v17, 0
        v_lshlrev_b32 v18, 2, v0
        s_lshl_b32 s{S_T0}, s3, 7
        s_add_u32 s{S_T0}, s{S_T0}, {FLG}
        v_cmp_gt_u32 vcc, 32, v0
        s_and_saveexec_b64 s[30:31], vcc
        s_cbranch_execz L_k1_nz
        buffer_store_dword v17, v18, s[{SWS}:{SWS + 3}], s{S_T0} offen
        """)
    else:
        a(f"""
        v_mov_b32 v17, 0
        v_lshlrev_b32 v18, 6, v0
        s_lshl_b32 s{S_T0}, s3, 11
        s_add_u32 s{S_T0}, s{S_T0}, {CNT}
        v_cmp_gt_u32 vcc, 32, v0
        s_and_saveexec_b64 s[30:31], vcc
        s_cbranch_execz L_k1_nz
        buffer_store_dword v17, v18, s[{SWS}:{SWS + 3}], s{S_T0} offen
        """)
    a.label("L_k1_nz")
    a("s_mov_b64 exec, s[30:31]")
    a(f"""
    v_lshrrev_b32 v17, 2, v7                   ; r = t>>2
    v_lshrrev_b32 v18, 1, v6                   ; hh = g>>1
    v_and_b32 v19, 1, v6                       ; g&1
    v_lshlrev_b32 v20, 6, v17                  ; r*64
    v_lshl_add_u32 v20, v19, 5, v20            ; + (g&1)*32
    v_and_b32 v21, 3, v7
    v_lshl_add_u32 v20, v21, 3, v20            ; + (t&3)*8
    v_lshl_add_u32 v20, v17, 8, v20            ; + r*256
    v_lshl_add_u32 v{VA}, v18, 11, v20
    v_lshl_add_u32 v{VA + 4}, v18, 10, v20
    """)
    for i in range(1, 4):
        a(f"v_xor_b32 v{VA + i}, {i << 6}, v{VA}")
        a(f"v_xor_b32 v{VA + 4 + i}, {i << 6}, v{VA + 4}")
    for i in range(32):
        a(f"v_lshlrev_b32 v{XF + 2 * i}, 16, v{XR + i}")
        a(f"v_and_b32 v{XF + 2 * i + 1}, 0xffff0000, v{XR + i}")
    AC = 22
    a(f"v_pk_add_f32 {vr(AC, 2)}, {vr(XF, 2)}, {vr(XF + 2, 2)}")
    a(f"v_pk_add_f32 {vr(AC + 2, 2)}, {vr(XF + 4, 2)}, {vr(XF + 6, 2)}")
    for i in range(4, 32):
        t = AC + 2 * (i & 1)
        a(f"v_pk_add_f32 {vr(t, 2)}, {vr(t, 2)}, {vr(XF + 2 * i, 2)}")
    a(f"v_pk_add_f32 {vr(AC, 2)}, {vr(AC, 2)}, {vr(AC + 2, 2)}")
    a(f"v_add_f32 v{AC}, v{AC}, v{AC + 1}")

    def xhalf_sum(r, t):
        a(f"v_mov_b32 v{t}, v{r}")
        a("s_nop 1")
        a(f"v_permlane32_swap_b32 v{r}, v{t}")
        a("s_nop 1")
        a(f"v_add_f32 v{r}, v{r}, v{t}")

    xhalf_sum(AC, AC + 1)
    a(f"v_mul_f32 v26, {hex(f2u(-1.0 / 128))}, v{AC}")
    a("v_mov_b32 v27, v26")
    for i in range(32):
        a(f"v_pk_add_f32 {vr(XF + 2 * i, 2)}, {vr(XF + 2 * i, 2)}, v[26:27]")
    a(f"v_pk_mul_f32 {vr(AC, 2)}, {vr(XF, 2)}, {vr(XF, 2)}")
    a(f"v_pk_mul_f32 {vr(AC + 2, 2)}, {vr(XF + 2, 2)}, {vr(XF + 2, 2)}")
    for i in range(2, 32):
        t = AC + 2 * (i & 1)
        a(f"v_pk_fma_f32 {vr(t, 2)}, {vr(XF + 2 * i, 2)}, {vr(XF + 2 * i, 2)}, {vr(t, 2)}")
    a(f"v_pk_add_f32 {vr(AC, 2)}, {vr(AC, 2)}, {vr(AC + 2, 2)}")
    a(f"v_add_f32 v{AC}, v{AC}, v{AC + 1}")
    xhalf_sum(AC, AC + 1)

    def rnd(r):
        a(f"v_cvt_pk_bf16_f32 v{r}, v{r}, v{r}")
        a(f"v_lshlrev_b32 v{r}, 16, v{r}")

    a(f"v_mul_f32 v{AC}, {hex(f2u(1.0 / 128))}, v{AC}")
    rnd(AC)
    a(f"v_add_f32 v{AC}, {hex(f2u(1e-5))}, v{AC}")
    rnd(AC)
    a(f"v_sqrt_f32 v{AC}, v{AC}")
    a(f"v_cvt_pk_bf16_f32 v24, v26, v26")
    rnd(AC)
    a(f"v_rcp_f32 v28, v{AC}")
    a(f"v_lshlrev_b32 v24, 16, v24")
    a(f"v_sub_f32 v24, v24, v26")
    a(f"v_mov_b32 v29, v28")
    a(f"v_mul_f32 v24, v24, v28")
    a(f"v_mov_b32 v25, v24")
    for i in range(32):
        a(f"v_pk_fma_f32 {vr(XF + 2 * i, 2)}, {vr(XF + 2 * i, 2)}, v[28:29], v[24:25]")
    for i in range(32):
        a(f"v_cvt_pk_bf16_f32 v{H + i}, v{XF + 2 * i}, v{XF + 2 * i + 1}")
    c = 1.4426950408889634 / 128 ** 0.5
    a(f"s_mov_b32 s{S_SC}, {hex(f2u(c))}")
    a(f"s_cmp_eq_u32 s{S_JOB}, 0")
    a(f"s_cselect_b32 s{S_SC}, s{S_SC}, 1.0")
    a(f"s_mov_b32 s{S_SC + 1}, s{S_SC}")
    if cfg.get("k1tl"):
        a("s_memrealtime s[52:53]")
    a("s_waitcnt vmcnt(0)")
    a("s_barrier")
    if cfg.get("k1tl"):
        a("s_memrealtime s[54:55]")

    WB = [XF, XF + 32]

    def reads(i, buf, addr, base, second):
        for s in range(8):
            a(f"ds_read_b64_tr_b16 {vr(buf + 4 * s, 2)}, v{addr + i} offset:{base + 4096 * s}")
            a(f"ds_read_b64_tr_b16 {vr(buf + 4 * s + 2, 2)}, v{addr + i} offset:{base + 4096 * s + second}")

    def gemm(addr, base, second, other, w_is_a):
        reads(0, WB[0], addr, base, second)
        for i in range(4):
            a("s_waitcnt lgkmcnt(0)")
            if i < 3:
                reads(i + 1, WB[(i + 1) & 1], addr, base, second)
            for s in range(8):
                w = vr(WB[i & 1] + 4 * s, 4)
                o = vr(other + 4 * s, 4)
                A, B = (w, o) if w_is_a else (o, w)
                d = vr(D + 16 * i, 16)
                a(f"{MF} {d}, {A}, {B}, {'0' if s == 0 else d}")

    gemm(VA, 0, 1024, H, True)
    a("s_nop 7")
    a("s_nop 3")
    if cfg.get("k1tl"):
        a("s_memrealtime s[56:57]")
    G1 = XR
    for i in range(32):
        a(f"v_pk_mul_f32 {vr(D + 2 * i, 2)}, {vr(D + 2 * i, 2)}, s[{S_SC}:{S_SC + 1}]")
    for i in range(32):
        a(f"v_cvt_pk_bf16_f32 v{G1 + i}, v{D + 2 * i}, v{D + 2 * i + 1}")
    a(f"s_cmp_ge_u32 s{S_JOB}, 2")
    a("s_cbranch_scc1 L_k1_second")
    a.seg("k1_qk")
    a(f"""
    v_lshrrev_b32 v17, 4, v3
    v_lshlrev_b32 v17, 12, v17
    v_and_b32 v18, 15, v3
    v_lshl_add_u32 v17, v18, 4, v17
    v_lshl_add_u32 v17, v4, 8, v17
    s_mul_i32 s{S_O1}, s{S_JOB}, {KF - QF}
    s_add_u32 s{S_O1}, s{S_O1}, s{S_BLK}
    s_add_u32 s{S_O1}, s{S_O1}, {QF}
    """)
    for c_ in range(8):
        i, k = c_ >> 1, c_ & 1
        a(f"buffer_store_dwordx4 {vr(G1 + 4 * c_, 4)}, v17, s[{SWS}:{SWS + 3}], s{S_O1} offen offset:{1024 * i + 512 * k}")
    a("s_branch L_k1_end")
    a.label("L_k1_second")
    a.seg("k1_c")
    a(f"s_cmp_eq_u32 s{S_JOB}, 3")
    a("s_cbranch_scc1 L_k1_m")

    def pack_store(addr, soffs, nat=False):
        a("s_nop 7")
        if cfg.get("k1tl"):
            a("s_memrealtime s[58:59]")
        a("s_nop 3")
        n = 0
        for i in range(4):
            for kk in range(2):
                t = H + 4 * n
                n += 1
                if nat:
                    b = D + 16 * i + 8 * kk
                    src = [b, b + 2, b + 4, b + 6]
                else:
                    b = D + 16 * i + 4 * kk
                    src = [b, b + 2, b + 8, b + 10]
                for d in range(4):
                    a(f"v_cvt_pk_bf16_f32 v{t + d}, v{src[d]}, v{src[d] + 1}")
                so, imm = soffs(i, kk)
                a(f"buffer_store_dwordx4 {vr(t, 4)}, v{addr}, s[{SWS}:{SWS + 3}], s{so} offen offset:{imm}")

    a.seg("k1_v")
    a(f"""
    v_lshrrev_b32 v17, 4, v3
    v_lshlrev_b32 v17, 10, v17
    v_and_b32 v18, 15, v3
    v_lshl_add_u32 v17, v18, 4, v17
    v_lshl_add_u32 v17, v4, 8, v17
    s_add_u32 s{S_O1}, s{S_BLK}, {VF}
    s_add_u32 s{S_O2}, s{S_O1}, 4096
    """)
    gemm(VA + 4, 32768, 2048, G1, False)
    pack_store(17, lambda i, kk: (S_O1 if i < 2 else S_O2, (i & 1) * 2048 + kk * 512))
    a("s_branch L_k1_end")
    a.label("L_k1_m")
    a.seg("k1_m")
    a(f"s_add_u32 s{S_O1}, s{S_BLK}, {MP}")
    gemm(VA + 4, 32768, 2048, G1, True)
    pack_store(5, lambda i, kk: (S_O1, i * 64 + kk * 32), nat=False)
    if NBK:
        a("s_branch L_k1_end")
        emit_bucket(a, cfg, SWS)
    a.label("L_k1_end")
    if cfg.get("k1tl"):
        a("s_memrealtime s[60:61]")
        a("s_waitcnt lgkmcnt(0)")
        a("v_lshrrev_b32 v1, 6, v0")
        a("v_lshlrev_b32 v1, 5, v1")
        a(f"s_lshl_b32 s40, s2, 7")
        a(f"s_add_u32 s40, s40, {TR + 0x40000}")
        for i in range(7):
            a(f"v_mov_b32 v{2 + i}, s{48 + 2 * i}")
        a(f"buffer_store_dwordx4 v[2:5], v1, s[{SWS}:{SWS + 3}], s40 offen")
        a(f"buffer_store_dwordx4 v[6:9], v1, s[{SWS}:{SWS + 3}], s40 offen offset:16")
    stamp_exit(a, cfg, 32, 0, f"s[{SWS}:{SWS + 3}]", TR)
    a.label("L_k1_exit")
    a("s_endpgm")
    return dict(name=name, vgpr=224, accum=224, sgpr=64, grid=NWG + NBK, block=256, lds=65536,
                chains=[["k1_a", "k1_b", "k1_qk"], ["k1_b", "k1_c", "k1_v"], ["k1_b", "k1_c", "k1_m"]] + ([["k1_bk"]] if NBK else []))


def emit_bucket(a, cfg, SWS):
    a.label("L_k1_bucket")
    a.seg("k1_bk")
    NE = 4 * NLD
    DS, SR, RK, AD = 32, 32 + NE, 32 + 2 * NE, 32 + 3 * NE
    HIST, BASE, STG = 0, 4096, 16384
    ws = f"s[{SWS}:{SWS + 3}]"
    a(f"""
    s_load_dwordx4 s[20:23], s[0:1], 8
    s_load_dwordx2 s[{SWS}:{SWS + 1}], s[0:1], 88
    s_mov_b32 s6, {E * 4}
    s_mov_b32 s7, 0x00020000
    s_mov_b32 s10, {E * 4}
    s_mov_b32 s11, 0x00020000
    s_mov_b32 s{SWS + 2}, 0x10000000
    s_mov_b32 s{SWS + 3}, 0x00020000
    s_mul_i32 s24, s2, {EPW * 4}
    v_lshlrev_b32 v1, 4, v0                   ; t*16
    v_mov_b32 v4, 0
    v_mov_b32 v5, 0
    v_mov_b32 v6, 0
    v_mov_b32 v7, 0
    ds_write_b128 v1, v[4:7] offset:{HIST}
    v_mov_b32 v8, 1
    s_waitcnt lgkmcnt(0)
    s_mov_b32 s4, s20
    s_and_b32 s5, s21, 0xffff
    s_mov_b32 s8, s22
    s_and_b32 s9, s23, 0xffff
    s_and_b32 s{SWS + 1}, s{SWS + 1}, 0xffff
    """)
    a("s_mov_b32 s25, s24")
    for k in range(NLD):
        a(f"buffer_load_dwordx4 {vr(DS + 4 * k, 4)}, v1, s[8:11], s25 offen")
        a("s_add_u32 s25, s25, 4096")
    for k in range(NLD):
        a(f"buffer_load_dwordx4 {vr(SR + 4 * k, 4)}, v1, s[4:7], s24 offen")
        a("s_add_u32 s24, s24, 4096")
    a("s_barrier")
    a(f"v_cmp_gt_u32 vcc, {(EPW - 1024 * (NLD - 1)) // 4}, v0")
    a("v_mov_b32 v9, 10239")
    for i in range(NE):
        if i % 4 == 0:
            a(f"s_waitcnt vmcnt({2 * NLD - 1 - i // 4})")
        if i >= NE - 4:
            a(f"v_cndmask_b32 v{DS + i}, v9, v{DS + i}, vcc")
        a(f"v_lshrrev_b32 v{AD + i}, 4, v{DS + i}")
        a(f"v_lshlrev_b32 v{AD + i}, 2, v{AD + i}")
        a(f"ds_add_rtn_u32 v{RK + i}, v{AD + i}, v8 offset:{HIST}")
    a("s_waitcnt vmcnt(0)")
    for i in range(NE):
        if cfg.get("nperm"):
            if cfg["nperm"] == 2:
                a(f"v_and_b32 v4, 12, v{DS + i}")
                a(f"v_lshl_or_b32 v{SR + i}, v{SR + i}, 8, v4")
                a(f"v_and_b32 v{DS + i}, 3, v{DS + i}")
                a(f"v_lshl_or_b32 v{SR + i}, v{DS + i}, 4, v{SR + i}")
                continue
            a(f"v_bfe_u32 v4, v{DS + i}, 2, 2")
            a(f"v_lshl_or_b32 v{SR + i}, v{SR + i}, 8, v4")
            a(f"v_and_b32 v{DS + i}, 3, v{DS + i}")
            a(f"v_lshl_or_b32 v{SR + i}, v{DS + i}, 2, v{SR + i}")
        else:
            a(f"v_and_b32 v{DS + i}, 15, v{DS + i}")
            a(f"v_lshl_or_b32 v{SR + i}, v{SR + i}, 8, v{DS + i}")
    a("s_waitcnt lgkmcnt(0)")
    a("s_barrier")
    C = 112 if NE == 20 else 192
    a(f"""
    v_and_b32 v2, 63, v0
    v_mul_u32_u24 v3, 40, v2
    v_lshrrev_b32 v10, 6, v0
    """)
    for k in range(5):
        a(f"ds_read_b64 {vr(C + 2 * k, 2)}, v3 offset:{HIST + 8 * k}")
    a(f"""
    v_readfirstlane_b32 s43, v10
    v_mul_u32_u24 v10, 2560, v10
    v_add_u32 v3, v3, v10
    v_mul_u32_u24 v28, {40 * GB}, v2
    s_lshl_b32 s29, s2, 2
    s_add_u32 s29, s29, {TAB}
    s_lshl_b32 s43, s43, 4
    s_lshl_b64 s[30:31], 0xffff, s43
    """)
    for i in range(NE):
        a(f"v_add_u32 v{AD + i}, v{AD + i}, v10")
    a("s_waitcnt lgkmcnt(0)")
    B = C + 10
    a(f"v_mov_b32 v{B}, 0")
    for k in range(1, 10):
        a(f"v_add_u32 v{B + k}, v{B + k - 1}, v{C + k - 1}")
    a(f"v_add_u32 v12, v{B + 9}, v{C + 9}")
    a("v_mov_b32 v13, v12")
    for sh, rm in (("row_shr:1", "0xf"), ("row_shr:2", "0xf"), ("row_shr:4", "0xf"), ("row_shr:8", "0xf"), ("row_bcast:15", "0xa"), ("row_bcast:31", "0xc")):
        a("s_nop 1")
        a(f"v_add_u32_dpp v13, v13, v13 {sh} row_mask:{rm} bank_mask:0xf")
    a("v_sub_u32 v13, v13, v12")
    for k in range(10):
        a(f"v_add_u32 v{B + k}, v{B + k}, v13")
    for k in range(5):
        a(f"ds_write_b64 v3, {vr(B + 2 * k, 2)} offset:{BASE + 8 * k}")
    for k in range(10):
        a(f"v_lshl_or_b32 v{C + k}, v{C + k}, 16, v{B + k}")
    a("s_mov_b64 exec, s[30:31]")
    for k in range(10):
        a(f"buffer_store_dword v{C + k}, v28, {ws}, s29 offen offset:{4 * GB * k}{' sc1' if cfg.get('bsc', 0) > 1 else ''}")
    a("s_mov_b64 exec, -1")
    a("s_waitcnt lgkmcnt(0)")
    for i in range(NE):
        a(f"ds_read_b32 v{AD + i}, v{AD + i} offset:{BASE}")
    for i in range(NE):
        if i == 0:
            a("s_waitcnt lgkmcnt(0)")
        a(f"v_add_lshl_u32 v{AD + i}, v{AD + i}, v{RK + i}, 2")
        a(f"ds_write_b32 v{AD + i}, v{SR + i} offset:{STG}")
    a("s_waitcnt lgkmcnt(0)")
    a("s_barrier")
    for k in range(NLD):
        a(f"ds_read_b128 {vr(DS + 4 * k, 4)}, v1 offset:{STG + 4096 * k}")
    a(f"s_mul_i32 s24, s2, {RECS}")
    a(f"s_add_u32 s24, s24, {REC}")
    for k in range(NLD):
        a(f"s_waitcnt lgkmcnt({NLD - 1 - k})")
        a(f"buffer_store_dwordx4 {vr(DS + 4 * k, 4)}, v1, {ws}, s24 offen{' sc1' if cfg.get('bsc') else ''}")
        a(f"s_add_u32 s24, s24, 4096")
```

```python
from layout import *
from asmlib import stamp_entry, stamp_exit, dbg_stamp
from k1 import emit_bucket, f2u, vr

MF = "v_mfma_f32_32x32x16_bf16"


def emit_k1(a, cfg):
    name = "k1_proj_kernel"
    NT = 80
    NWG = 3 * NT
    NBK = GB
    SC1 = {0: '', 1: ' sc1', 2: ' nt', 3: ' sc0 sc1'}[cfg.get('k1sc', 0)]
    a.raw(".text")
    a.raw(f".globl {name}\n.p2align 8\n.type {name},@function")
    a.label(name)
    a.seg("k1_a")
    SX, SW1, SW2, SWS = 4, 8, 12, 16
    S_JOB, S_BLK, S_W, S_T0, S_T1, S_SC = 20, 21, 22, 23, 24, 26
    S_O1, S_O2 = 28, 29
    XR = 64
    XF = 96
    H = 32
    D = 160
    VA = 8
    ws = f"s[{SWS}:{SWS + 3}]"

    def st(k):
        if cfg.get("k1tl"):
            a(f"s_memrealtime s[{48 + 2 * k}:{49 + 2 * k}]")

    a(f"""
    s_cmp_ge_u32 s2, {NWG + NBK}
    s_cbranch_scc1 L_k1_exit
    """)
    stamp_entry(a, cfg, 32)
    if cfg.get("dbg"):
        a("s_cmp_gt_u32 s2, 7")
        a("s_cbranch_scc1 L_k1_nod")
        dbg_stamp(a, cfg, 0, 0, inv=True, s=48, v=100)
        a.label("L_k1_nod")
    BL = cfg.get("blast", 0)
    if BL:
        a(f"s_sub_u32 s2, s2, {NWG}")
    a(f"s_cmp_lt_u32 s2, {NBK}")
    a("s_cbranch_scc1 L_k1_bucket")
    if BL:
        a(f"s_add_u32 s2, s2, {NWG + NBK}")
    if cfg.get("prio"):
        a("s_setprio 3")
    a(f"""
    s_sub_u32 s25, s2, {NBK}
    s_mul_i32 s{S_T0}, s25, 820
    s_lshr_b32 s{S_T0}, s{S_T0}, 16            ; wg / 80
    s_mul_i32 s3, s{S_T0}, 80
    s_sub_u32 s3, s25, s3                      ; tile
    s_lshl_b32 s{S_T0}, s{S_T0}, 2
    s_lshr_b32 s{S_JOB}, {cfg.get("jobs", 0x102)}, s{S_T0}
    s_and_b32 s{S_JOB}, s{S_JOB}, 3
    s_mov_b32 s{S_T0}, 40
    s_cmp_eq_u32 s{S_JOB}, 1
    s_cselect_b32 s{S_T0}, 56, s{S_T0}
    s_cmp_eq_u32 s{S_JOB}, 2
    s_cselect_b32 s{S_T0}, 32, s{S_T0}
    s_cmp_eq_u32 s{S_JOB}, 0
    s_cselect_b32 s{S_T1}, 48, 64
    s_load_dwordx2 s[{SX}:{SX + 1}], s[0:1], 0
    s_load_dwordx2 s[{SW1}:{SW1 + 1}], s[0:1], s{S_T0}
    s_load_dwordx2 s[{SW2}:{SW2 + 1}], s[0:1], s{S_T1}
    s_load_dwordx2 s[{SWS}:{SWS + 1}], s[0:1], 88
    v_lshrrev_b32 v1, 6, v0
    v_and_b32 v2, 63, v0                      ; lane
    v_readfirstlane_b32 s{S_W}, v1
    s_mov_b32 s{SX + 2}, {N * 256}
    s_mov_b32 s{SX + 3}, 0x00020000
    s_mov_b32 s{SW1 + 2}, 32768
    s_mov_b32 s{SW1 + 3}, 0x00020000
    s_mov_b32 s{SW2 + 2}, 32768
    s_mov_b32 s{SW2 + 3}, 0x00020000
    s_mov_b32 s{SWS + 2}, 0x10000000
    s_mov_b32 s{SWS + 3}, 0x00020000
    s_lshl_b32 s{S_BLK}, s3, 2
    s_add_u32 s{S_BLK}, s{S_BLK}, s{S_W}
    s_lshl_b32 s{S_BLK}, s{S_BLK}, 13          ; *8192 bytes
    s_add_u32 s{S_O2}, s{S_BLK}, 4096
    v_and_b32 v3, 31, v2                       ; n
    v_lshrrev_b32 v4, 5, v2                    ; h
    v_lshrrev_b32 v6, 4, v2                    ; g
    v_and_b32 v7, 15, v2                       ; t
    v_lshlrev_b32 v16, 2, v6
    v_xor_b32 v16, v16, v7
    v_lshlrev_b32 v16, 4, v16
    v_lshl_add_u32 v16, v6, 8, v16
    v_xor_b32 v17, v6, v7
    v_lshlrev_b32 v17, 4, v17
    v_lshl_add_u32 v17, v6, 8, v17
    v_xor_b32 v18, 64, v17
    v_xor_b32 v19, 128, v17
    v_xor_b32 v20, 192, v17
    s_lshl_b32 s{S_T0}, s{S_W}, 13             ; w*8192
    s_add_u32 s{S_T1}, s{S_T0}, 4096
    s_add_u32 m0, s{S_T0}, 0x8000
    s_waitcnt lgkmcnt(0)
    s_and_b32 s{SX + 1}, s{SX + 1}, 0xffff
    s_and_b32 s{SW1 + 1}, s{SW1 + 1}, 0xffff
    s_and_b32 s{SW2 + 1}, s{SW2 + 1}, 0xffff
    s_and_b32 s{SWS + 1}, s{SWS + 1}, 0xffff
    """)
    st(0)
    for k in range(4):
        a(f"buffer_load_dwordx4 v{17 + k}, s[{SX}:{SX + 3}], s{S_BLK} offen offset:{1024 * k} lds")
    a(f"s_add_u32 m0, s{S_T1}, 0x8000")
    a("s_nop 0")
    for k in range(4):
        a(f"buffer_load_dwordx4 v{17 + k}, s[{SX}:{SX + 3}], s{S_O2} offen offset:{1024 * k} lds")

    def wdma(srd, base):
        for half, so in ((0, S_T0), (1, S_T1)):
            a(f"s_add_u32 m0, s{so}, {base}")
            a("s_nop 0")
            for k in range(4):
                a(f"buffer_load_dwordx4 v16, s[{srd}:{srd + 3}], s{so} offen offset:{1024 * k} lds")

    wdma(SW1, 0)
    a(f"""
    v_mov_b32 v21, 0
    v_lshlrev_b32 v22, 2, v0
    s_lshl_b32 s{S_O1}, s25, 7
    s_add_u32 s{S_O1}, s{S_O1}, {FLG}
    v_cmp_gt_u32 vcc, 32, v0
    s_and_saveexec_b64 s[30:31], vcc
    s_cbranch_execz L_k1_nz
    buffer_store_dword v21, v22, {ws}, s{S_O1} offen
    """)
    a.label("L_k1_nz")
    a(f"""
    s_mov_b64 exec, s[30:31]
    v_and_b32 v21, 15, v3
    v_xor_b32 v21, v21, v4
    v_lshlrev_b32 v21, 4, v21
    v_lshl_add_u32 v21, v3, 8, v21
    v_add_u32 v21, s{S_T0}, v21
    v_lshrrev_b32 v17, 2, v7                   ; r = t>>2
    v_lshrrev_b32 v18, 1, v6                   ; hh = g>>1
    v_and_b32 v19, 1, v6                       ; g&1
    v_lshlrev_b32 v20, 6, v17                  ; r*64
    v_lshl_add_u32 v20, v19, 5, v20            ; + (g&1)*32
    v_and_b32 v22, 3, v7
    v_lshl_add_u32 v20, v22, 3, v20            ; + (t&3)*8
    v_lshl_add_u32 v20, v17, 8, v20            ; + r*256
    v_lshl_add_u32 v{VA}, v18, 11, v20
    v_lshl_add_u32 v{VA + 4}, v18, 10, v20
    """)
    for i in range(1, 4):
        a(f"v_xor_b32 v{VA + i}, {i << 6}, v{VA}")
        a(f"v_xor_b32 v{VA + 4 + i}, {i << 6}, v{VA + 4}")
    for s in range(1, 8):
        a(f"v_xor_b32 v{224 + s}, {s << 5}, v21")
    if cfg.get("cpf"):
        a(f"""
        s_lshl_b32 s34, s25, 2
        s_add_u32 s34, s34, s{S_W}
        s_cmp_ge_u32 s34, {cfg["cpf"]}
        s_cbranch_scc1 L_k1_nocpf
        s_getpc_b64 s[36:37]
        L_k1_pc:
        s_add_u32 s36, s36, k2_attn_kernel - L_k1_pc
        s_addc_u32 s37, s37, 0
        s_lshl_b32 s34, s34, 10
        v_lshl_add_u32 v22, v2, 4, s34
        global_load_dwordx4 v[232:235], v22, s[36:37]
        s_waitcnt vmcnt(9)
        s_branch L_k1_xw
        L_k1_nocpf:
        """)
    a("s_waitcnt vmcnt(8)")
    a.label("L_k1_xw")
    st(1)
    for s in range(8):
        a(f"ds_read_b128 {vr(XR + 4 * s, 4)}, v{21 if s == 0 else 224 + s} offset:32768")
    a("s_waitcnt lgkmcnt(0)")
    wdma(SW2, 0x8000)
    a.seg("k1_b")
    for i in range(32):
        a(f"v_lshlrev_b32 v{XF + 2 * i}, 16, v{XR + i}")
        a(f"v_and_b32 v{XF + 2 * i + 1}, 0xffff0000, v{XR + i}")
    AC = 22
    a(f"v_pk_add_f32 {vr(AC, 2)}, {vr(XF, 2)}, {vr(XF + 2, 2)}")
    a(f"v_pk_add_f32 {vr(AC + 2, 2)}, {vr(XF + 4, 2)}, {vr(XF + 6, 2)}")
    for i in range(4, 32):
        t = AC + 2 * (i & 1)
        a(f"v_pk_add_f32 {vr(t, 2)}, {vr(t, 2)}, {vr(XF + 2 * i, 2)}")
    a(f"v_pk_add_f32 {vr(AC, 2)}, {vr(AC, 2)}, {vr(AC + 2, 2)}")
    a(f"v_add_f32 v{AC}, v{AC}, v{AC + 1}")

    def xhalf_sum(r, t):
        a(f"v_mov_b32 v{t}, v{r}")
        a("s_nop 1")
        a(f"v_permlane32_swap_b32 v{r}, v{t}")
        a("s_nop 1")
        a(f"v_add_f32 v{r}, v{r}, v{t}")

    xhalf_sum(AC, AC + 1)
    a(f"v_mul_f32 v26, {hex(f2u(-1.0 / 128))}, v{AC}")
    a("v_mov_b32 v27, v26")
    for i in range(32):
        a(f"v_pk_add_f32 {vr(XF + 2 * i, 2)}, {vr(XF + 2 * i, 2)}, v[26:27]")
    a(f"v_pk_mul_f32 {vr(AC, 2)}, {vr(XF, 2)}, {vr(XF, 2)}")
    a(f"v_pk_mul_f32 {vr(AC + 2, 2)}, {vr(XF + 2, 2)}, {vr(XF + 2, 2)}")
    for i in range(2, 32):
        t = AC + 2 * (i & 1)
        a(f"v_pk_fma_f32 {vr(t, 2)}, {vr(XF + 2 * i, 2)}, {vr(XF + 2 * i, 2)}, {vr(t, 2)}")
    a(f"v_pk_add_f32 {vr(AC, 2)}, {vr(AC, 2)}, {vr(AC + 2, 2)}")
    a(f"v_add_f32 v{AC}, v{AC}, v{AC + 1}")
    xhalf_sum(AC, AC + 1)

    def rnd(r):
        a(f"v_cvt_pk_bf16_f32 v{r}, v{r}, v{r}")
        a(f"v_lshlrev_b32 v{r}, 16, v{r}")

    a(f"v_mul_f32 v{AC}, {hex(f2u(1.0 / 128))}, v{AC}")
    rnd(AC)
    a(f"v_add_f32 v{AC}, {hex(f2u(1e-5))}, v{AC}")
    rnd(AC)
    a(f"v_sqrt_f32 v{AC}, v{AC}")
    a(f"v_cvt_pk_bf16_f32 v24, v26, v26")
    rnd(AC)
    a(f"v_rcp_f32 v28, v{AC}")
    a(f"v_lshlrev_b32 v24, 16, v24")
    a(f"v_sub_f32 v24, v24, v26")
    a(f"v_mov_b32 v29, v28")
    a(f"v_mul_f32 v24, v24, v28")
    a(f"v_mov_b32 v25, v24")
    for i in range(32):
        a(f"v_pk_fma_f32 {vr(XF + 2 * i, 2)}, {vr(XF + 2 * i, 2)}, v[28:29], v[24:25]")
    for i in range(32):
        a(f"v_cvt_pk_bf16_f32 v{H + i}, v{XF + 2 * i}, v{XF + 2 * i + 1}")
    c = 1.4426950408889634 / 128 ** 0.5
    a(f"s_mov_b32 s{S_SC}, {hex(f2u(c))}")
    a(f"s_cmp_eq_u32 s{S_JOB}, 0")
    a(f"s_cselect_b32 s{S_SC}, s{S_SC}, 1.0")
    st(2)
    a("s_waitcnt vmcnt(8)")
    a("s_barrier")
    st(3)
    WB = [XF, XF + 32]

    def reads(i, buf, addr, base, second):
        for s in range(8):
            a(f"ds_read_b64_tr_b16 {vr(buf + 4 * s, 2)}, v{addr + i} offset:{base + 4096 * s}")
            a(f"ds_read_b64_tr_b16 {vr(buf + 4 * s + 2, 2)}, v{addr + i} offset:{base + 4096 * s + second}")

    def rd(i, s, buf, addr, base, second):
        return [f"ds_read_b64_tr_b16 {vr(buf + 4 * s, 2)}, v{addr + i} offset:{base + 4096 * s}",
                f"ds_read_b64_tr_b16 {vr(buf + 4 * s + 2, 2)}, v{addr + i} offset:{base + 4096 * s + second}"]

    def gemm(addr, base, second, other, w_is_a, first_issued=False, fill=None):
        if not first_issued:
            reads(0, WB[0], addr, base, second)
        for i in range(4):
            fl = list(fill[i]) if fill else []
            per = -(-len(fl) // 6)
            fl = [None] * (2 * per) + fl
            for s in range(8):
                young = 2 * (7 - s) + (2 * s if i < 3 else 0)
                a(f"s_waitcnt lgkmcnt({min(young, 15)})")
                w = vr(WB[i & 1] + 4 * s, 4)
                o = vr(other + 4 * s, 4)
                A, B = (w, o) if w_is_a else (o, w)
                d = vr(D + 16 * i, 16)
                a(f"{MF} {d}, {A}, {B}, {'0' if s == 0 else d}")
                if i < 3:
                    for t in rd(i + 1, s, WB[(i + 1) & 1], addr, base, second):
                        a(t)
                for t in fl[per * s:per * (s + 1)]:
                    if t:
                        a(t)

    G1 = XR

    def pack1(i, scale):
        out = []
        for k in range(8):
            b = D + 16 * i + 2 * k
            if scale:
                out.append(f"v_mul_f32 v{b}, s{S_SC}, v{b}")
                out.append(f"v_mul_f32 v{b + 1}, s{S_SC}, v{b + 1}")
            out.append(f"v_cvt_pk_bf16_f32 v{G1 + 8 * i + k}, v{b}, v{b + 1}")
        return out

    gemm(VA, 0, 1024, H, True, fill=[[]] + [pack1(i, True) for i in range(3)])
    st(4)
    a("s_waitcnt vmcnt(0)")
    a("s_barrier")
    a(f"s_cmp_lg_u32 s{S_JOB}, 0")
    a("s_cbranch_scc1 L_k1_second")
    a.seg("k1_qk")
    a(f"""
    v_lshrrev_b32 v17, 4, v3
    v_lshlrev_b32 v17, 12, v17
    v_and_b32 v18, 15, v3
    v_lshl_add_u32 v17, v18, 4, v17
    v_lshl_add_u32 v17, v4, 8, v17
    s_add_u32 s{S_O1}, s{S_BLK}, {QF}
    s_add_u32 s{S_O2}, s{S_BLK}, {KF}
    """)
    reads(0, WB[0], VA, 32768, 1024)

    def qkst(i, so):
        return [f"buffer_store_dwordx4 {vr(G1 + 8 * i + 4 * k, 4)}, v17, {ws}, s{so} offen offset:{1024 * i + 512 * k}{SC1}" for k in range(2)]

    for i in range(3):
        for t in qkst(i, S_O1):
            a(t)
    for t in pack1(3, True) + qkst(3, S_O1):
        a(t)
    gemm(VA, 32768, 1024, H, True, first_issued=True, fill=[[]] + [pack1(i, False) + qkst(i, S_O2) for i in range(3)])
    a("s_nop 7")
    a("s_nop 3")
    st(5)
    for t in pack1(3, False) + qkst(3, S_O2):
        a(t)
    a("s_branch L_k1_end")
    a.label("L_k1_second")
    a.seg("k1_c")
    reads(0, WB[0], VA + 4, 32768, 2048)
    for t in pack1(3, False):
        a(t)
    a(f"s_cmp_eq_u32 s{S_JOB}, 2")
    a("s_cbranch_scc1 L_k1_m")

    def pack2(i, st_):
        out = []
        for kk in range(2):
            t = H + 4 * (2 * i + kk)
            b = D + 16 * i + 4 * kk
            for d, src in enumerate([b, b + 2, b + 8, b + 10]):
                out.append(f"v_cvt_pk_bf16_f32 v{t + d}, v{src}, v{src + 1}")
            out.append(st_(i, kk, t))
        return out

    a.seg("k1_v")
    a(f"""
    v_lshrrev_b32 v17, 4, v3
    v_lshlrev_b32 v17, 10, v17
    v_and_b32 v18, 15, v3
    v_lshl_add_u32 v17, v18, 4, v17
    v_lshl_add_u32 v17, v4, 8, v17
    s_add_u32 s{S_O1}, s{S_BLK}, {VF}
    s_add_u32 s{S_O2}, s{S_O1}, 4096
    """)
    vst = lambda i, kk, t: f"buffer_store_dwordx4 {vr(t, 4)}, v17, {ws}, s{S_O1 if i < 2 else S_O2} offen offset:{(i & 1) * 2048 + kk * 512}{SC1}"
    gemm(VA + 4, 32768, 2048, G1, False, first_issued=True, fill=[[]] + [pack2(i, vst) for i in range(3)])
    a("s_nop 7")
    a("s_nop 3")
    st(5)
    for t in pack2(3, vst):
        a(t)
    a("s_branch L_k1_end")
    a.label("L_k1_m")
    a.seg("k1_m")
    a(f"""
    s_add_u32 s{S_O1}, s{S_BLK}, {MP}
    s_add_u32 s{S_O2}, s{S_O1}, 4096
    v_xor_b32 v17, v6, v7
    v_lshlrev_b32 v17, 4, v17
    v_lshl_add_u32 v17, v6, 8, v17
    v_add_u32 v17, s{S_T0}, v17
    v_xor_b32 v18, 64, v17
    v_xor_b32 v19, 128, v17
    v_xor_b32 v20, 192, v17
    v_lshlrev_b32 v16, 4, v2
    """)
    nost = lambda i, kk, t: "s_nop 0"
    gemm(VA + 4, 32768, 2048, G1, True, first_issued=True, fill=[[]] + [pack2(i, nost) for i in range(3)])
    for s in range(6):
        a(f"ds_write_b128 v{21 if s == 0 else 224 + s}, {vr(H + 4 * s, 4)}")
    a("s_nop 5")
    st(5)
    for t in pack2(3, lambda i, kk, t: f"ds_write_b128 v{224 + 2 * i + kk}, {vr(t, 4)}"):
        a(t)
    a("s_waitcnt lgkmcnt(0)")
    for k in range(8):
        a(f"ds_read_b128 {vr(XF + 4 * k, 4)}, v{17 + (k & 3)} offset:{1024 * k}")
    for k in range(8):
        a(f"s_waitcnt lgkmcnt({7 - k})")
        a(f"buffer_store_dwordx4 {vr(XF + 4 * k, 4)}, v16, {ws}, s{S_O1 if k < 4 else S_O2} offen offset:{1024 * (k & 3)}{SC1}")
    a("s_branch L_k1_end")
    emit_bucket(a, cfg, SWS)
    if BL:
        a(f"s_add_u32 s2, s2, {NWG + NBK}")
    a.label("L_k1_end")
    if BL:
        a(f"s_sub_u32 s2, s2, {NBK}")
    if cfg.get("k1tl"):
        a("s_memrealtime s[60:61]")
        a("s_waitcnt lgkmcnt(0)")
        a("v_lshrrev_b32 v1, 6, v0")
        a("v_lshlrev_b32 v1, 5, v1")
        a(f"s_lshl_b32 s40, s2, 7")
        a(f"s_add_u32 s40, s40, {TR + 0x40000}")
        for i in range(7):
            a(f"v_mov_b32 v{2 + i}, s{48 + 2 * i}")
        a(f"buffer_store_dwordx4 v[2:5], v1, {ws}, s40 offen")
        a(f"buffer_store_dwordx4 v[6:9], v1, {ws}, s40 offen offset:16")
    if cfg.get("dbg"):
        a("s_waitcnt vmcnt(0)")
    dbg_stamp(a, cfg, 1, 0, s=48, v=100)
    stamp_exit(a, cfg, 32, 0, ws, TR)
    a.label("L_k1_exit")
    a("s_endpgm")
    return dict(name=name, vgpr=240, accum=240, sgpr=64, grid=NWG + NBK, block=256, lds=65536,
                chains=[["k1_a", "k1_b", "k1_qk"], ["k1_b", "k1_c", "k1_v"], ["k1_b", "k1_c", "k1_m"], ["k1_bk"]])
```

```python
from layout import *
from asmlib import stamp_entry, stamp_exit, dbg_stamp

CFG = {}
MF = "v_mfma_f32_16x16x32_bf16"
NWG = 240
NQ = 4
CAP = 72
NGMAX = 15
NSLOT = 24

O, S, NM, P, E_, T, L = 128, 64, 96, 112, 26, 42, 52
VLDS, VL16, VT, VT2, VT3, VOOB = 20, 21, 22, 23, 24, 25
RC, VREM, VSEG, BT = 26, 50, 51, 56
AQ, AK, AV = 0, 64, 96
S_SRD = 4
S_W, S_SRC, S_M0, S_CNT, S_THR, S_SPLIT, S_QT, S_T0, S_T1 = 8, 9, 10, 11, 12, 13, 14, 15, 16
S_LEFT, S_EV, S_NB, S_MODE = 17, 18, 19, 30
S_Q0 = 20
S_PO, S_PL, S_SRC0, S_U = 24, 25, 26, 27
S_K0, S_FV = 28, 29
S_PA = 86
S_OWN = 31
SRD = f"s[{S_SRD}:{S_SRD + 3}]"
SKV = 80
KVS = "s[80:83]"
LDS_FLAG = 131072
ABUF, AAG, AAH, AXV, ADI = 128, 176, 200, 208, 220
GI, GOFF, GLA = 26, 13, 14
SMP = 44
RB = 131072 + 256
LOFF = 384
RSZ = LOFF + CAP * 64 + 384
SENT = 0x7fffff00


def LS():
    return " sc1" if CFG.get("ls") else ""


def vr(b, n):
    return f"v[{b}:{b + n - 1}]"


def ar(b, n):
    return f"a[{b}:{b + n - 1}]"


def qbs(X):
    return [0, 1] if X == "A" else [2, 3]


def St(qb, kb):
    return S + (qb * 2 + kb) * 4


def mfma_qk(qb, kb, s, czero=False):
    d = vr(St(qb, kb), 4)
    c = ("0" if czero else vr(NM + 4 * qb, 4)) if s == 0 else d
    return f"{MF} {d}, {ar(AK + (kb * 4 + s) * 4, 4)}, {ar(AQ + (qb * 4 + s) * 4, 4)}, {c}"


def mfma_pv(qb, db):
    o = vr(O + (qb * 8 + db) * 4, 4)
    return f"{MF} {o}, {ar(AV + 4 * db, 4)}, {vr(P + 4 * qb, 4)}, {o}"


def qk_order(X, nkb=2):
    return [(qb, kb, s) for s in range(4) for kb in range(nkb) for qb in qbs(X)]


def pv_order(X):
    return [(qb, db) for qb in qbs(X) for db in range(8)]


class Op:
    def __init__(self, text, cost, est=0, lst=10 ** 6, deps=(), stream=None):
        self.text, self.cost, self.est, self.lst, self.deps, self.stream = text, cost, est, lst, list(deps), stream
        self.pos = None


def sm_group(X, nkb, tag, chk, rdy, dl):
    ops = []
    idx = 0
    q = qbs(X)
    lastadd = {}
    prev_small = None
    for qb in q:
        d = dl[qb] if not chk else min(dl.values())
        if nkb == 1:
            for k in (2, 3):
                ops.append(Op(f"v_mov_b32 v{P + 4 * qb + k}, 0", 4, rdy["p", qb], d - 1, stream="s" + X))
        for kb in range(nkb):
            for pr in range(2):
                s0 = St(qb, kb) + 2 * pr
                e0, e1 = (E_ + (2 * idx) % 16, E_ + (2 * idx + 1) % 16) if chk else (s0, s0 + 1)
                x0 = Op(f"v_exp_f32 v{e0}, v{s0}", 8, rdy[qb, kb], d - 2, stream="x" + X)
                x1 = Op(f"v_exp_f32 v{e1}, v{s0 + 1}", 8, rdy[qb, kb], d - 2, stream="x" + X)
                ops += [x0, x1]
                acc = (T if chk else L) + qb
                dadd = d - 1 if chk else dl["end"]
                c = Op(f"v_cvt_pk_bf16_f32 v{P + 4 * qb + 2 * kb + pr}, v{e0}, v{e1}", 4, rdy["p", qb], d - 1, [x0, x1], stream="c" + X)
                if chk and qb not in lastadd:
                    a1 = Op(f"v_add_f32 v{acc}, v{e0}, v{e1}", 4, 0, dadd, [x0, x1], stream="a" + X)
                    ops += [a1, c]
                else:
                    a0 = Op(f"v_add_f32 v{acc}, v{acc}, v{e0}", 4, 0, dadd, [x0], stream="a" + X)
                    a1 = Op(f"v_add_f32 v{acc}, v{acc}, v{e1}", 4, 0, dadd, [x1], stream="a" + X)
                    ops += [a0, a1, c]
                lastadd[qb] = a1
                lastc = c
                idx += 1
    if chk:
        d = min(dl.values())
        m = Op(f"v_max_f32 v{VT}, v{T + q[0]}, v{T + q[1]}", 4, 0, d, list(lastadd.values()), stream="a" + X)
        c = Op(f"v_cmp_lt_f32 vcc, s{S_THR}, v{VT}", 4, 0, d, [m], stream="a" + X)
        b = Op(f"s_cbranch_vccnz L_slow_{tag}\nL_back_{tag}:", 0, 0, d, [c, lastc], stream="a" + X)
        ops += [m, c, b]
        for qb in q:
            ops.append(Op(f"v_add_f32 v{L + qb}, v{L + qb}, v{T + qb}", 4, 0, dl["end"], [b], stream="a" + X))
    return ops


def schedule(ops, nm, base=8):
    streams = {}
    for o in ops:
        streams.setdefault(o.stream, []).append(o)
    best = None
    for nextra in range(0, 3 * nm):
        for o in ops:
            o.pos = None
        cap = [base + 4 * ((g + 1) * nextra // nm - g * nextra // nm) for g in range(nm)]
        head = {s: 0 for s in streams}
        out = [[] for _ in range(nm)]
        pos = 0
        ok = True
        for g in range(nm):
            pos += 1
            rem = cap[g]
            while True:
                cand = []
                for s, lst in streams.items():
                    if head[s] >= len(lst):
                        continue
                    o = lst[head[s]]
                    if o.est > g:
                        continue
                    if CFG.get("ds1") and s == "l" and any(t.startswith(("ds_", "buffer")) for t in out[g]) and o.lst > g:
                        continue
                    if any(d.pos is None or pos - d.pos < (CFG.get('xd', 2) if d.cost == 8 else 1) for d in o.deps):
                        continue
                    urg = 10 ** 9
                    acc = 0
                    for o2 in lst[head[s]:]:
                        acc += o2.cost
                        urg = min(urg, (o2.lst - g + 1) * base * o2_share(s) - acc)
                    cand.append((urg, s, o))
                if not cand:
                    break
                cand.sort(key=lambda c: c[0])
                pick = None
                for urg, s, o in cand:
                    if o.cost <= rem or o.lst <= g:
                        pick = (s, o)
                        break
                if pick is None:
                    break
                s, o = pick
                out[g].append(o.text)
                o.pos = pos
                pos += 1
                head[s] += 1
                rem -= o.cost
                if rem <= 0 and not any(streams[t][head[t]].lst <= g or streams[t][head[t]].cost == 0
                                        for t in streams if head[t] < len(streams[t])):
                    break
            if any(head[s] < len(l) and l[head[s]].lst <= g for s, l in streams.items()):
                ok = False
                break
        if ok and all(head[s] == len(l) for s, l in streams.items()):
            cost = {o.text: o.cost for o in ops}
            tot = sum(max(16, 8 + sum(cost[t] for t in out[g])) for g in range(nm))
            if best is None or tot < best[0]:
                best = (tot, out, nextra)
            if nextra > best[2] + 6:
                break
    if best is None:
        raise RuntimeError("cannot schedule")
    return best


def o2_share(s):
    return {"x": 0.5, "a": 0.3, "c": 0.3, "s": 0.3}.get(s[0], 0.3)


def emit_rowmax(a, qb, nkb, dst):
    s = St(qb, 0)
    a(f"v_max3_f32 v{dst}, v{s}, v{s + 1}, v{s + 2}")
    if nkb == 2:
        a(f"v_max3_f32 v{dst}, v{dst}, v{s + 3}, v{s + 4}")
        a(f"v_max3_f32 v{dst}, v{dst}, v{s + 5}, v{s + 6}")
        a(f"v_max_f32 v{dst}, v{dst}, v{s + 7}")
    else:
        a(f"v_max_f32 v{dst}, v{dst}, v{s + 3}")
    for sw in ("v_permlane32_swap_b32", "v_permlane16_swap_b32"):
        a(f"v_mov_b32 v{VT3}, v{dst}")
        a("s_nop 1")
        a(f"{sw} v{dst}, v{VT3}")
        a("s_nop 1")
        a(f"v_max_f32 v{dst}, v{dst}, v{VT3}")


def emit_slow(a, X, nkb, tag):
    a.seg("slow_" + tag)
    a.label(f"L_slow_{tag}")
    a("s_nop 15")
    for qb in qbs(X):
        emit_rowmax(a, qb, nkb, VT)
        a(f"v_max_f32 v{VT}, 0, v{VT}")
        a(f"v_exp_f32 v{VT2}, -v{VT}")
        a("s_nop 0")
        a(f"v_mul_f32 v{L + qb}, v{L + qb}, v{VT2}")
        for i in range(32):
            o = O + qb * 32 + i
            a(f"v_mul_f32 v{o}, v{o}, v{VT2}")
        for i in range(4):
            a(f"v_sub_f32 v{NM + 4 * qb + i}, v{NM + 4 * qb + i}, v{VT}")
        for k in range(2 * nkb):
            s = St(qb, 0) + 2 * k
            a(f"v_sub_f32 v{s}, v{s}, v{VT}")
            a(f"v_sub_f32 v{s + 1}, v{s + 1}, v{VT}")
            a(f"v_exp_f32 v{E_}, v{s}")
            a(f"v_exp_f32 v{E_ + 1}, v{s + 1}")
            a("s_nop 0")
            if k == 0:
                a(f"v_add_f32 v{T + qb}, v{E_}, v{E_ + 1}")
            else:
                a(f"v_add_f32 v{T + qb}, v{T + qb}, v{E_}")
                a(f"v_add_f32 v{T + qb}, v{T + qb}, v{E_ + 1}")
            a(f"v_cvt_pk_bf16_f32 v{P + 4 * qb + k}, v{E_}, v{E_ + 1}")
    a("s_nop 7")
    a(f"s_branch L_back_{tag}")


def emit_body(a, cfg, tag, chk, last=False, nkb=2, gb=None, loop=None):
    PF = cfg["PF"]
    lead = cfg.get("lead", 3)
    mg = cfg.get("mg", 0)
    pvB, qkB, pvA, qkA = pv_order("B"), qk_order("B", nkb), pv_order("A"), qk_order("A")
    mf = [mfma_pv(*x) for x in pvB] + [mfma_qk(*x) for x in qkB]
    pA0 = len(mf)
    mf += [mfma_pv(*x) for x in pvA]
    qA0 = len(mf)
    if not last:
        mf += [mfma_qk(*x) for x in qkA]
    gpos = []
    if gb is not None:
        for k, at in enumerate(cfg.get("gslots", [40, 47, 54, 61])):
            d = ar(AAG + 8 * gb + 4 * (k >> 1), 4)
            mf.insert(at, f"{MF} {d}, {ar(AAH + 4 * (k & 1), 4)}, {ar(ABUF + 16 * gb + 4 * k, 4)}, {d}")
            gpos.append(at)
            if at <= qA0:
                qA0 += 1
    nm = len(mf)
    ops = []
    lds = []
    if gb is not None:
        lds.append(Op(f"ds_read_b128 {vr(GI, 4)}, v{GLA} offset:{gb * RSZ + LOFF}", 4, 2, 7, stream="l"))
        for k, at in enumerate(gpos):
            ad = Op(f"v_add_u32 v{GI + k}, v{GI + k}, v{GOFF}", 4, pA0, at - 1, stream="g")
            ops += [ad, Op(f"buffer_load_dwordx4 {ar(ABUF + 16 * gb + 4 * k, 4)}, v{GI + k}, s[{SMP}:{SMP + 3}], 0 offen offset:{12 - 4 * k}{LS()}",
                           cfg.get("dmacost", 8), at, at, [ad], stream="g")]
        if gb == 2:
            ops.append(Op(f"v_add_u32 v{GLA}, 256, v{GLA}", 4, 10, nm - 1, stream="y"))
    for db in range(8):
        lds.append(Op(f"ds_read_b128 {ar(AV + 4 * db, 4)}, v{VLDS} offset:{8192 + 1024 * db}", 4, 8 + db, pA0 - 6, stream="l"))
    if not last:
        kf = sorted(range(8), key=lambda f: max(i for i, x in enumerate(qkB) if x[1] * 4 + x[2] == f))
        for n, f in enumerate(kf):
            g = 16 + max(i for i, x in enumerate(qkB) if x[1] * 4 + x[2] == f)
            lds.append(Op(f"ds_read_b128 {ar(AK + 4 * f, 4)}, v{VLDS} offset:{1024 * f}", 4, g, qA0 - 6, stream="l"))
        adv = Op(f"v_add_u32 v{VLDS}, 0x4000, v{VLDS}", 4, 0, nm - 1, [lds[-1]], stream="z")
        ops += [adv, Op(f"v_and_b32 v{VLDS}, 0x1ffff, v{VLDS}", 4, 0, nm - 1, [adv], stream="z")]
        dg = cfg.get("dgaps", [0, 1, 33, 34])
        for k in range(4):
            ops.append(Op(f"buffer_load_dwordx4 v{VL16}, {KVS}, s{S_SRC} offen offset:{1024 * k}{LS()} lds", cfg.get("dmacost", 8),
                          dg[k], dg[k], stream="d"))
    ops += lds
    finA = {}
    for i, (qb, kb, s_) in enumerate(qkA):
        finA[qb, kb] = i
    rdy = {t: max(0, finA[t] - len(qkA) + 1 + lead) for t in finA}
    rdy["p", 0] = rdy["p", 1] = 0
    ops += sm_group("A", nkb, tag + "A", chk, rdy, {0: pA0 - 1 - mg, 1: pA0 + 7 - mg, "end": qA0 - 2})
    finB = {}
    for i, (qb, kb, s_) in enumerate(qkB):
        finB[qb, kb] = i
    rdy = {t: 16 + finB[t] + 1 + lead for t in finB}
    rdy["p", 2], rdy["p", 3] = 8, 16
    ops += sm_group("B", nkb, tag + "B", chk, rdy, {2: nm - 1 - mg, 3: nm - 1, "end": nm - 1})
    tot, gaps, nx = schedule(ops, nm)
    if cfg.get("verbose"):
        print("body", tag, "model cycles", tot, "extra", nx)
    if cfg.get("memfirst"):
        for g in range(nm):
            gaps[g].sort(key=lambda t: 0 if t.startswith(("ds_", "buffer")) else 1)
    if cfg.get("explast"):
        for g in range(nm):
            if not any("L_back" in t for t in gaps[g]):
                gaps[g].sort(key=lambda t: 1 if t.startswith("v_exp") else 0)
    order = [t for g in range(nm) for t in gaps[g]]

    def nlds_after(g_end, first_k):
        n = 0
        for g in range(g_end):
            n += sum(1 for t in gaps[g] if t.startswith("ds_read") and f"offset:{0}" is not None and "a[" in t and int(t.split("a[")[1].split(":")[0]) < AV)
        return n

    gaps[pA0 - 1].append(f"s_waitcnt lgkmcnt({nlds_after(pA0, 0)})")
    if not last:
        gaps[qA0 - 1].append("s_waitcnt lgkmcnt(0)")
        lastd = max(dg)
        gaps[lastd + 2].insert(0, f"s_add_u32 s{S_M0}, s{S_M0}, 0x4000")
        gaps[lastd + 3].insert(0, f"s_and_b32 m0, s{S_M0}, 0x1ffff")
        gaps[lastd + 4].insert(0, f"s_add_u32 s{S_SRC}, s{S_SRC}, 0x2000")
        if gb is None or gb == 2:
            gaps[lastd + 5].insert(0, f"s_sub_u32 s{S_CNT}, s{S_CNT}, 1")
            gaps[nm - 2].insert(0, f"s_cmp_lg_u32 s{S_CNT}, 0")
            gaps[nm - 1].append(f"s_cbranch_scc1 L_body_{loop or tag}")
        for at in gpos:
            gaps[at - 1].append("s_waitcnt vmcnt(23)")
    a.seg("body_" + tag)
    a.label(f"L_body_{tag}")
    a(f"s_waitcnt vmcnt({4 * (PF - 1) if gb is None else 24})")
    a("s_barrier")
    for g in range(nm):
        a(mf[g])
        for t in gaps[g]:
            a(t)
    if last:
        fill = []
        for qb in range(2):
            for p in range(4):
                t = 26 + 4 * (p % 2)
                for d in range(4):
                    src = O + (qb * 8 + 2 * p) * 4 + 2 * d
                    fill.append(f"v_cvt_pk_bf16_f32 v{t + d}, v{src}, v{src + 1}")
                fill.append(f"buffer_store_dwordx4 {vr(t, 4)}, v{VL16}, {SRD}, s{S_PA + qb} offen offset:{1024 * p} sc1")
        a("s_nop 1")
        for n, x in enumerate(pvB):
            a(mfma_pv(*x))
            for t in fill[(5 * n) // 2:(5 * (n + 1)) // 2]:
                a(t)


SX, SDG, SOUT = 32, 36, 40
S_REC, S_CAP, S_MAXC, S_N, S_I, S_MASK, S_FLG, S_NOWN = 48, 49, 50, 51, 52, 53, 54, 55
SMK = 64
VX = 15
VDC = 16
VRB, VDUM, VDREC = 17, 18, 19


def emit_region_reset(a):
    a(f"""
    v_and_b32 v2, 63, v0
    v_and_b32 v3, 15, v0
    v_lshl_add_u32 v3, v3, 2, v{VRB}
    v_mov_b32 v4, 0
    v_lshl_add_u32 v5, v2, 4, v{VRB}
    ds_write_b32 v3, v4
    v_mov_b32 v4, 0x40000000
    ds_write_b32 v{VDC}, v4
    v_mov_b32 v6, {SENT}
    v_mov_b32 v7, {SENT}
    v_mov_b32 v8, {SENT}
    v_mov_b32 v9, {SENT}
    v_lshl_add_u32 v3, v2, 3, v{VRB}
    """)
    for k in range(4):
        a(f"ds_write_b128 v5, v[6:9] offset:{LOFF + 1024 * k}")
    a(f"ds_write_b64 v3, v[6:7] offset:{LOFF + 4096}")


def emit_careful(a, tag, ret):
    a.seg("careful_" + tag)
    a.label(f"L_car_{tag}")
    a("s_nop 7")
    emit_region_reset(a)
    a(f"""
    v_mov_b32 v10, 1
    s_mov_b64 s[{SMK + 2}:{SMK + 3}], -1
    s_waitcnt lgkmcnt(0)
    """)
    a.label(f"L_car_loop_{tag}")
    a(f"""
    buffer_load_dwordx4 {vr(RC, 4)}, v{VSEG}, {SRD}, s{S_REC} offen{LS()}
    s_waitcnt vmcnt(0)
    """)
    for k in range(4):
        r = RC + k
        a(f"""
        v_cmp_lt_u32 vcc, 0, v{VREM}
        v_and_or_b32 v{BT}, v{r}, 60, v{VRB}
        s_nop 0
        s_and_b64 vcc, vcc, s[{SMK + 2}:{SMK + 3}]
        s_nop 0
        v_cndmask_b32 v{BT}, v{VDC}, v{BT}, vcc
        ds_add_rtn_u32 v{BT + 1}, v{BT}, v10
        s_waitcnt lgkmcnt(0)
        v_cmp_gt_u32 s[{SMK + 2}:{SMK + 3}], s{S_CAP}, v{BT + 1}
        v_min_u32 v{BT + 1}, s{S_CAP}, v{BT + 1}
        v_lshl_add_u32 v{BT}, v{BT + 1}, 6, v{BT}
        ds_write_b32 v{BT}, v{r} offset:{LOFF}
        v_cndmask_b32 v{BT + 1}, 0, v10, s[{SMK + 2}:{SMK + 3}]
        v_sub_u32 v{VREM}, v{VREM}, v{BT + 1}
        v_lshl_add_u32 v{VSEG}, v{BT + 1}, 2, v{VSEG}
        """)
    a(f"""
    s_cmp_lg_u64 s[{SMK + 2}:{SMK + 3}], 0
    s_cbranch_scc1 L_car_loop_{tag}
    s_waitcnt lgkmcnt(0)
    s_branch {ret}
    """)


def emit_k2(a, cfg):
    PF = cfg["PF"]
    NB0 = cfg.get("NB0", 3)
    NBR = cfg.get("NBR", 2)
    OSC = {0: "", 1: " sc1", 2: " nt", 3: " sc0 sc1"}[cfg.get("osc", 0)]
    CFG.clear()
    CFG.update(cfg)
    LIM = cfg.get("lim", NWG)
    name = "k2_attn_kernel"
    if cfg.get("map", 0) == 0:
        mapping = f"""s_and_b32 s{S_T0}, s2, 7
    s_mul_i32 s{S_T0}, s{S_T0}, {NWG // 8}
    s_lshr_b32 s{S_T1}, s2, 3
    s_add_u32 s{S_T0}, s{S_T0}, s{S_T1}          ; g
    s_mul_i32 s{S_SPLIT}, s{S_T0}, 1639
    s_lshr_b32 s{S_SPLIT}, s{S_SPLIT}, 16        ; split = g / 40
    s_mul_i32 s{S_T1}, s{S_SPLIT}, 40
    s_sub_u32 s{S_QT}, s{S_T0}, s{S_T1}          ; q tile"""
    else:
        mapping = f"""s_and_b32 s{S_T0}, s2, 7
    s_mul_i32 s{S_T0}, s{S_T0}, 5
    s_lshr_b32 s{S_T1}, s2, 3
    s_mul_i32 s{S_QT}, s{S_T1}, 43
    s_lshr_b32 s{S_QT}, s{S_QT}, 8               ; j / 6
    s_mul_i32 s{S_SPLIT}, s{S_QT}, 6
    s_sub_u32 s{S_SPLIT}, s{S_T1}, s{S_SPLIT}
    s_add_u32 s{S_QT}, s{S_QT}, s{S_T0}"""
    a.raw(".text")
    a.raw(f".globl {name}\n.p2align 8\n.type {name},@function")
    a.label(name)
    a.seg("k2_pro0")
    a(f"""
    s_cmp_ge_u32 s2, {LIM}
    s_cbranch_scc1 L_k2_end
    """)
    if cfg.get("dbg"):
        a("s_cmp_gt_u32 s2, 7")
        a("s_cbranch_scc1 L_k2_nod")
        dbg_stamp(a, cfg, 2, 512, inv=True, s=88, v=100)
        a.label("L_k2_nod")
    if cfg.get("tl") or cfg.get("stamp"):
        a("s_memrealtime s[84:85]")
    a(f"""
    s_load_dwordx2 s[{S_SRD}:{S_SRD + 1}], s[0:1], 88
    s_load_dwordx2 s[{SX}:{SX + 1}], s[0:1], 0
    s_load_dwordx2 s[{SDG}:{SDG + 1}], s[0:1], 24
    s_load_dwordx2 s[{SOUT}:{SOUT + 1}], s[0:1], 72
    v_lshrrev_b32 v1, 6, v0
    v_and_b32 v2, 63, v0
    v_readfirstlane_b32 s{S_W}, v1
    v_lshlrev_b32 v{VL16}, 4, v2
    v_lshlrev_b32 v12, 2, v2
    {mapping}
    s_mov_b32 s{S_SRD + 2}, 0x10000000
    s_mov_b32 s{S_SRD + 3}, 0x00020000
    s_mov_b32 s{SX + 2}, {N * 256}
    s_mov_b32 s{SX + 3}, 0x00020000
    s_mov_b32 s{SDG + 2}, {N * 2}
    s_mov_b32 s{SDG + 3}, 0x00020000
    s_mov_b32 s{SOUT + 2}, {N * 256}
    s_mov_b32 s{SOUT + 3}, 0x00020000
    s_mov_b32 s{SMP + 2}, {N * 256}
    s_mov_b32 s{SMP + 3}, 0x00020000
    s_mov_b32 s{S_THR}, 0x4b800000               ; 2^24
    s_lshl_b32 s{S_T0}, s{S_W}, 12
    s_mul_i32 s{S_SRC0}, s{S_SPLIT}, {52 * 8192}
    s_add_u32 s{S_SRC0}, s{S_SRC0}, s{S_T0}
    s_mov_b32 s{S_T1}, {KF}
    s_cmp_lt_u32 s{S_W}, 2
    s_cselect_b32 s{S_T1}, s{S_T1}, {VF - 8192 - 8192}
    s_add_u32 s{S_SRC0}, s{S_SRC0}, s{S_T1}
    s_lshl_b32 s{S_Q0}, s{S_QT}, 16
    s_lshl_b32 s{S_T1}, s{S_W}, 14
    s_add_u32 s{S_Q0}, s{S_Q0}, s{S_T1}
    s_add_u32 s{S_Q0}, s{S_Q0}, {QF}
    s_add_u32 s{S_Q0 + 1}, s{S_Q0}, 0x1000
    s_add_u32 s{S_Q0 + 2}, s{S_Q0}, 0x2000
    s_add_u32 s{S_Q0 + 3}, s{S_Q0}, 0x3000
    s_mul_i32 s{S_T1}, s{S_QT}, 6
    s_add_u32 s{S_T1}, s{S_T1}, s{S_SPLIT}
    s_lshl_b32 s{S_PO}, s{S_T1}, 16
    s_lshl_b32 s{S_T0}, s{S_W}, 14
    s_add_u32 s{S_PO}, s{S_PO}, s{S_T0}
    s_add_u32 s{S_PO}, s{S_PO}, {PO}
    s_lshl_b32 s{S_PL}, s{S_T1}, 11
    s_lshl_b32 s{S_T0}, s{S_W}, 9
    s_add_u32 s{S_PL}, s{S_PL}, s{S_T0}
    s_add_u32 s{S_PL}, s{S_PL}, {PL}
    s_lshl_b32 s{S_T0}, s{S_W}, 2
    s_lshl_b32 s{S_OWN}, {1 | 1 << 6 | 1 << 12}, s{S_SPLIT}
    s_lshr_b32 s{S_OWN}, s{S_OWN}, s{S_T0}
    s_bitcmp1_b32 s{S_OWN}, 0
    s_cselect_b32 s{S_PA}, 0x7fff0000, s{S_PO}
    s_add_u32 s{S_T0}, s{S_PO}, 4096
    s_bitcmp1_b32 s{S_OWN}, 1
    s_cselect_b32 s{S_PA + 1}, 0x7fff0000, s{S_T0}
    v_mov_b32 v{VX}, 0x7fff0000
    v_mov_b32 v{VSEG}, 0
    s_mov_b32 s{S_U}, 51
    s_cmp_eq_u32 s{S_SPLIT}, 5
    s_cselect_b32 s{S_U}, 52, s{S_U}
    s_mov_b32 s{S_MODE}, 0
    s_add_u32 s{S_T0}, s{S_U}, 1
    s_cmp_lt_u32 s{S_W}, 2
    s_cselect_b32 s{S_T1}, 0, 1
    s_add_u32 s{S_T0}, s{S_T0}, s{S_T1}
    s_lshl_b32 s{S_T0}, s{S_T0}, 13
    s_add_u32 s{SKV + 2}, s{S_SRC0}, s{S_T0}
    s_sub_u32 s{SKV + 2}, s{SKV + 2}, 4096
    s_mov_b32 s{SKV + 3}, 0x00020000
    s_mov_b32 s{S_REC}, {REC}
    s_mov_b32 s{S_K0}, {KF}
    s_mov_b32 s{S_CAP}, {CAP}
    s_lshl_b32 s{S_FLG}, s{S_QT}, 7
    s_add_u32 s{S_FLG}, s{S_FLG}, {FLG}
    s_mul_i32 s{S_T0}, s{S_W}, 6
    s_add_u32 s{S_T0}, s{S_T0}, s{S_SPLIT}
    s_lshl_b32 s{S_T1}, s{S_QT}, 4
    s_add_u32 s{S_T1}, s{S_T1}, s{S_T0}
    s_cmp_lt_u32 s{S_T0}, 16
    s_cselect_b32 s{S_MASK}, -1, 0
    s_cmp_lt_u32 s{S_T1}, {N // 16}
    s_cselect_b32 s{S_MASK}, s{S_MASK}, 0
    s_lshl_b32 s{S_I}, s{S_T1}, 8
    s_add_u32 s{S_I}, s{S_I}, {TAB}
    s_mul_i32 s{S_T0}, s{S_W}, {RSZ}
    s_add_u32 s{S_T0}, s{S_T0}, {RB}
    v_mov_b32 v{VRB}, s{S_T0}
    s_add_u32 s{S_T0}, s{S_T0}, 64
    v_add_u32 v{VDC}, s{S_T0}, v12
    v_mov_b32 v{VOOB}, 0x7fffffff
    v_mov_b32 v4, 0
    v_mov_b32 v5, {LDS_FLAG}
    ds_write_b32 v5, v4
    """)
    emit_region_reset(a)
    a(f"""
    s_waitcnt lgkmcnt(0)
    s_and_b32 s{S_SRD + 1}, s{S_SRD + 1}, 0xffff
    s_and_b32 s{SX + 1}, s{SX + 1}, 0xffff
    s_and_b32 s{SDG + 1}, s{SDG + 1}, 0xffff
    s_and_b32 s{SOUT + 1}, s{SOUT + 1}, 0xffff
    s_mov_b32 s{SKV}, s{S_SRD}
    s_mov_b32 s{SKV + 1}, s{S_SRD + 1}
    s_add_u32 s{SMP}, s{S_SRD}, {MP}
    s_addc_u32 s{SMP + 1}, s{S_SRD + 1}, 0
    buffer_load_dword v{VREM}, v12, {SRD}, s{S_I} offen{LS()}
    """)
    def lane_setup():
        a(f"""
        v_bfe_u32 v2, v0, 2, 2
        v_and_b32 v3, 3, v0
        v_bfe_u32 v4, v0, 4, 2
        s_lshl_b32 s{S_T0}, s{S_W}, 6
        s_sub_u32 s{S_T1}, s{S_T0}, 12
        v_lshlrev_b32 v{GOFF}, 4, v3
        v_add_u32 v{GOFF}, s{S_T1}, v{GOFF}
        v_lshlrev_b32 v5, 4, v2
        v_sub_u32 v{GOFF}, v{GOFF}, v5               ; 64w + 16q - 16n' - 12
        v_lshlrev_b32 v{GLA}, 4, v2
        v_lshl_add_u32 v{GLA}, v4, 6, v{GLA}
        v_add_u32 v{GLA}, {RB}, v{GLA}
        """)

    def maxc():
        a(f"""
        v_and_b32 v6, 15, v0
        v_bfe_u32 v7, v0, 4, 2
        v_mul_u32_u24 v7, {RSZ}, v7
        v_lshl_add_u32 v7, v6, 2, v7
        v_add_u32 v7, {RB}, v7
        ds_read_b32 v9, v7
        s_waitcnt lgkmcnt(0)
        """)
        for sh in ("row_shr:1", "row_shr:2", "row_shr:4", "row_shr:8"):
            a(f"v_max_u32_dpp v9, v9, v9 {sh} row_mask:0xf bank_mask:0xf")
            a("s_nop 1")
        a("v_max_u32_dpp v9, v9, v9 row_bcast:15 row_mask:0xa bank_mask:0xf")
        a("s_nop 1")
        a("v_max_u32_dpp v9, v9, v9 row_bcast:31 row_mask:0xc bank_mask:0xf")
        a("s_nop 1")
        a(f"v_readlane_b32 s{S_MAXC}, v9, 63")
        a("s_nop 3")
        a(f"s_min_u32 s{S_N}, s{S_MAXC}, {CAP}")
        a(f"s_add_u32 s{S_N}, s{S_N}, 3")
        a(f"s_lshr_b32 s{S_N}, s{S_N}, 2")

    if cfg.get("ptl"):
        a("s_memrealtime s[98:99]")
    a.label("L_k2_restart")
    a.seg("k2_pro")
    a(f"s_mov_b32 s{S_SRC}, s{S_SRC0}")
    a(f"s_lshl_b32 s{S_M0}, s{S_W}, 12")
    a(f"s_mov_b32 m0, s{S_M0}")
    a(f"s_mov_b32 s{S_LEFT}, s{S_U}")

    def dma_stage():
        for k in range(4):
            a(f"buffer_load_dwordx4 v{VL16}, {KVS}, s{S_SRC} offen offset:{1024 * k}{LS()} lds")

    def dma_adv():
        a(f"s_add_u32 s{S_M0}, s{S_M0}, 0x4000")
        a(f"s_and_b32 m0, s{S_M0}, 0x1ffff")
        a(f"s_add_u32 s{S_SRC}, s{S_SRC}, 0x2000")

    for i in range(8):
        a(f"v_mov_b32 v{P + 8 + i}, 0")
    zq = [f"v_mfma_f32_32x32x16_bf16 {vr(O + 16 * i, 16)}, {vr(P + 8, 4)}, {vr(P + 8, 4)}, 0" for i in range(8)]
    zq += [f"v_mfma_f32_32x32x16_bf16 {ar(AV + 16 * i, 16)}, {vr(P + 8, 4)}, {vr(P + 8, 4)}, 0" for i in range(2)]
    for s_ in range(4):
        a(f"buffer_load_dwordx4 {ar(AK + 16 + 4 * s_, 4)}, v{VL16}, {SRD}, s{S_K0} offen offset:{1024 * s_}{LS()}")
    for i in range(16):
        a(f"buffer_load_dwordx4 {ar(4 * i, 4)}, v{VL16}, {SRD}, s{S_Q0 + (i >> 2)} offen offset:{1024 * (i & 3)}{LS()}")
        if i % 2 == 1:
            a(zq.pop())
    for st in range(2):
        dma_stage()
        dma_adv()
        a(zq.pop())
    assert not zq
    a(f"s_cmp_lg_u32 s{S_MODE}, 0")
    a("s_cbranch_scc1 L_k2_nosetup")
    lane_setup()
    a(f"""
    v_and_b32 v6, 15, v0
    v_and_b32 v7, 1, v6
    v_lshlrev_b32 v7, 4, v7
    v_mov_b32 v8, 0x3f80
    v_lshlrev_b32 v7, v7, v8                     ; value
    v_lshrrev_b32 v6, 1, v6                      ; 0..7 = (h, dword)
    """)
    for k in range(8):
        a(f"v_cmp_eq_u32 s[{SMK + 2 * k}:{SMK + 2 * k + 1}], {k}, v6")
    for k in range(8):
        a(f"v_cndmask_b32 v{BT + k}, 0, v7, s[{SMK + 2 * k}:{SMK + 2 * k + 1}]")
    for k in range(8):
        a(f"v_accvgpr_write_b32 a{AAH + k}, v{BT + k}")
    Z = vr(P + 8, 4)
    for i in range(4):
        a(f"v_mfma_f32_32x32x16_bf16 {ar(ABUF + 16 * i, 16)}, {Z}, {Z}, 0")
    for i in range(2):
        a(f"{MF} {ar(ABUF + 64 + 4 * i, 4)}, {Z}, {Z}, 0")
    a.label("L_k2_nosetup")
    a.seg("k2_pro2")
    for qb in range(NQ):
        a(f"v_mov_b32 v{L + qb}, 0")
    a(f"v_add_u32 v{VLDS}, 0x4000, v{VL16}")
    if cfg.get("ptl"):
        a("s_memrealtime s[62:63]")
    a("s_waitcnt vmcnt(8)")
    if cfg.get("ptl"):
        a("s_memrealtime s[60:61]")
    dq = []
    for st in range(PF - 1):
        dq += [[f"buffer_load_dwordx4 v{VL16}, {KVS}, s{S_SRC} offen offset:{1024 * k}{LS()} lds"] for k in range(4)]
        dq[-1] += [f"s_add_u32 s{S_M0}, s{S_M0}, 0x4000", f"s_and_b32 m0, s{S_M0}, 0x1ffff", f"s_add_u32 s{S_SRC}, s{S_SRC}, 0x2000"]
    n = 0
    for s_ in range(4):
        for qb in range(4):
            d = vr(St(qb, 1), 4)
            a(f"{MF} {d}, {ar(AK + 16 + 4 * s_, 4)}, {ar(AQ + (qb * 4 + s_) * 4, 4)}, {'0' if s_ == 0 else d}")
            if n % 4 == 1:
                for t in dq.pop(0):
                    a(t)
            n += 1
    a("s_waitcnt vmcnt(8)")
    a("s_barrier")
    if cfg.get("ptl"):
        a("s_memrealtime s[56:57]")
    for s in range(8):
        a(f"ds_read_b128 {ar(AK + 4 * s, 4)}, v{VL16} offset:{1024 * s}")
    a("s_nop 1")
    for qb in range(4):
        s0 = St(qb, 1)
        a(f"v_max3_f32 v{s0}, v{s0}, v{s0 + 1}, v{s0 + 2}")
    for qb in range(4):
        s0 = St(qb, 1)
        a(f"v_max_f32 v{s0}, v{s0}, v{s0 + 3}")
    for sw in ("v_permlane32_swap_b32", "v_permlane16_swap_b32"):
        for qb in range(4):
            a(f"v_mov_b32 v{St(qb, 1) + 1}, v{St(qb, 1)}")
        a("s_nop 0")
        for qb in range(4):
            a(f"{sw} v{St(qb, 1)}, v{St(qb, 1) + 1}")
        a("s_nop 0")
        for qb in range(4):
            a(f"v_max_f32 v{St(qb, 1)}, v{St(qb, 1)}, v{St(qb, 1) + 1}")
    for qb in range(4):
        for i in range(4):
            a(f"v_sub_f32 v{NM + 4 * qb + i}, 0, v{St(qb, 1)}")
    a("s_waitcnt lgkmcnt(0)")
    for n, x in enumerate(qk_order("A")):
        a(mfma_qk(*x))
        if n % 2 == 0 and dq:
            for t in dq.pop(0):
                a(t)
    assert not dq
    if cfg.get("stamp"):
        a("s_memtime s[90:91]")
        a("s_memrealtime s[92:93]")
        a("s_waitcnt lgkmcnt(0)")
    a(f"s_cmp_lg_u32 s{S_MODE}, 0")
    a("s_cbranch_scc1 L_safe")
    if cfg.get("ptl"):
        a("s_memrealtime s[58:59]")
        a("s_waitcnt lgkmcnt(0)")
    a(f"s_mov_b32 s{S_CNT}, {NBR}")
    a(f"s_mov_b32 s{S_EV}, 0")
    a.raw(".p2align 6")
    emit_body(a, cfg, "m", False)
    a.seg("k2_mid")
    a(f"s_add_u32 s{S_EV}, s{S_EV}, 1")
    a(f"s_cmp_eq_u32 s{S_EV}, 4")
    a("s_cbranch_scc1 L_loop_done")
    a(f"s_cmp_eq_u32 s{S_EV}, 3")
    a("s_cbranch_scc1 L_ev_g")
    a(f"s_cmp_eq_u32 s{S_EV}, 2")
    a("s_cbranch_scc1 L_ev_b")
    a.seg("k2_evr")
    dbg_stamp(a, cfg, 3, 512, s=88, v=2)
    a(f"""
    v_and_b32 v{VREM}, s{S_MASK}, v{VREM}
    v_and_b32 v2, 63, v0
    v_mul_u32_u24 v2, {RECS}, v2
    v_and_b32 v3, 0xffff, v{VREM}
    v_lshl_add_u32 v{VSEG}, v3, 2, v2
    v_lshrrev_b32 v{VREM}, 16, v{VREM}
    """)
    for k in range(NSLOT // 4):
        a(f"buffer_load_dwordx4 {vr(RC + 4 * k, 4)}, v{VSEG}, {SRD}, s{S_REC} offen offset:{16 * k}{LS()}")
    a(f"s_mov_b32 s{S_CNT}, {NB0}")
    a("s_branch L_body_m")
    a.label("L_ev_b")
    a.seg("k2_ev")
    if cfg.get("ptl"):
        a("s_memrealtime s[100:101]")
        a("s_waitcnt lgkmcnt(0)")
    a(f"s_waitcnt vmcnt({4 * NB0})")
    a("v_mov_b32 v12, 1")
    RK = 4
    for grp in range(NSLOT // 8):
        for k in range(8):
            a(f"v_cmp_lt_u32 s[{SMK + 2 * k}:{SMK + 2 * k + 1}], {8 * grp + k}, v{VREM}")
        for k in range(8):
            a(f"v_and_or_b32 v{BT + k}, v{RC + 8 * grp + k}, 60, v{VRB}")
        if grp:
            a(f"s_cmp_eq_u64 s[{SMK}:{SMK + 1}], 0")
            a("s_cbranch_scc1 L_ev_built")
        for k in range(8):
            a(f"v_cndmask_b32 v{BT + k}, v{VDC}, v{BT + k}, s[{SMK + 2 * k}:{SMK + 2 * k + 1}]")
            a(f"ds_add_rtn_u32 v{RK + k}, v{BT + k}, v12")
        for k in range(8):
            a(f"s_waitcnt lgkmcnt(7)")
            a(f"v_min_u32 v{RK + k}, s{S_CAP}, v{RK + k}")
            a(f"v_lshl_add_u32 v{BT + k}, v{RK + k}, 6, v{BT + k}")
            a(f"ds_write_b32 v{BT + k}, v{RC + 8 * grp + k} offset:{LOFF}")
    a.label("L_ev_built")
    a(f"""
    v_and_b32 v2, 15, v0
    v_lshl_add_u32 v2, v2, 2, v{VRB}
    ds_read_b32 v3, v2
    v_cmp_lt_u32 s[{SMK}:{SMK + 1}], {NSLOT}, v{VREM}
    s_waitcnt lgkmcnt(0)
    v_cmp_lt_u32 vcc, s{S_CAP}, v3
    s_nop 3
    s_or_b64 vcc, vcc, s[{SMK}:{SMK + 1}]
    s_cbranch_vccnz L_car_e
    v_mov_b32 v{VREM}, 0
    """)
    a.label("L_ev_ret")

    a(f"s_mov_b32 s{S_CNT}, 1")
    a("s_branch L_body_m")
    a.label("L_ev_g")
    a.seg("k2_evg")
    maxc()
    a(f"""
    s_min_u32 s{S_CNT}, s{S_N}, {NGMAX}
    s_max_u32 s{S_CNT}, s{S_CNT}, 1
    s_sub_u32 s{S_N}, s{S_N}, s{S_CNT}
    s_mul_i32 s{S_T0}, s{S_CNT}, 3
    s_sub_u32 s{S_LEFT}, s{S_LEFT}, s{S_T0}
    s_sub_u32 s{S_LEFT}, s{S_LEFT}, {NBR + NB0 + 1}
    v_bfe_u32 v2, v0, 2, 2
    v_and_b32 v3, 3, v0
    v_bfe_u32 v4, v0, 4, 2
    s_lshl_b32 s{S_T0}, s{S_W}, 6
    s_lshl_b32 s{S_T1}, s{S_QT}, 4
    s_add_u32 s{S_T1}, s{S_T1}, s{S_SPLIT}
    s_lshl_b32 s{S_I}, s{S_T1}, 12
    s_add_u32 s{S_I}, s{S_I}, s{S_T0}
    v_lshrrev_b32 v5, 1, v4
    v_lshl_add_u32 v5, v5, 2, v2
    v_and_b32 v6, 1, v4
    v_lshlrev_b32 v{VX}, 8, v5
    v_lshl_add_u32 v{VX}, v6, 5, v{VX}
    v_lshl_add_u32 v{VX}, v3, 3, v{VX}
    v_add_u32 v{VX}, s{S_I}, v{VX}
    v_add_u32 v10, {6 * 4096}, v{VX}
    v_add_u32 v11, {12 * 4096}, v{VX}
    s_lshl_b32 s{S_I}, s{S_T1}, 5
    v_lshlrev_b32 v5, 1, v5
    v_add_u32 v5, s{S_I}, v5
    s_waitcnt vmcnt(0)
    """)
    for b in range(3):
        for m in range(2):
            a(f"buffer_load_dwordx2 {ar(AXV + 4 * b + 2 * m, 2)}, v{[VX, 10, 11][b]}, s[{SX}:{SX + 3}], 0 offen offset:{2048 * m}")
            a(f"buffer_load_ushort a{ADI + 2 * b + m}, v5, s[{SDG}:{SDG + 3}], 0 offen offset:{192 * b + 16 * m}")
    if cfg.get("touch"):
        a(f"buffer_load_dword a226, v{VL16}, {SRD}, s{S_PO} offen")
        a(f"buffer_load_dword a227, v{VL16}, {SRD}, s{S_PL} offen")
        a(f"buffer_load_dword a228, v{VL16}, {SRD}, s{S_FLG} offen")
        a(f"buffer_load_dword a229, v{VX}, s[{SOUT}:{SOUT + 3}], 0 offen")
    a.raw(".p2align 6")
    for gb in range(3):
        emit_body(a, cfg, f"g{gb}", False, gb=gb, loop="g0")
    a.seg("k2_gx")
    a(f"s_mov_b32 s{S_CNT}, s{S_LEFT}")
    a(f"s_cmp_lg_u32 s{S_LEFT}, 0")
    a("s_cbranch_scc1 L_body_m")
    a.label("L_loop_done")
    a.seg("k2_mid2")
    if cfg.get("stamp"):
        a("s_memtime s[94:95]")
        a("s_memrealtime s[96:97]")
        a(f"s_load_dwordx2 s[64:65], s[0:1], 80")
        a("s_waitcnt lgkmcnt(0)")
        a("s_sub_u32 s94, s94, s90")
        a("s_sub_u32 s96, s96, s92")
        a("v_mov_b32 v2, s94")
        a("v_mov_b32 v3, s96")
        a("s_and_b32 s65, s65, 0xffff")
        a("s_mov_b32 s66, 256")
        a("s_mov_b32 s67, 0x00020000")
        a("s_lshr_b32 s72, s2, 3")
        a("s_lshl_b32 s72, s72, 3")
        a("v_mov_b32 v4, s72")
        a("s_and_b32 s73, s2, 7")
        a(f"s_or_b32 s73, s73, s{S_W}")
        a("s_cmp_lg_u32 s73, 0")
        a("s_cbranch_scc1 L_nostamp")
        a("buffer_store_dwordx2 v[2:3], v4, s[64:67], 0 offen")
        a.label("L_nostamp")
    a(f"s_cmp_eq_u32 s{S_SPLIT}, 5")
    a("s_cbranch_scc1 L_body_lm")
    emit_body(a, cfg, "lf", False, last=True, nkb=2)
    a("s_branch L_k2_chk")
    emit_body(a, cfg, "lm", False, last=True, nkb=1)
    a.label("L_k2_chk")
    a.seg("k2_chk")
    a(f"""
    v_max3_f32 v4, v{L}, v{L + 1}, v{L + 2}
    v_max_f32 v4, v4, v{L + 3}
    v_add_f32 v6, v{L}, v{L + 1}
    v_add_f32 v7, v{L + 2}, v{L + 3}
    v_add_f32 v6, v6, v7
    s_mov_b32 s{S_T0}, 0x53800000
    v_cmp_ngt_f32 vcc, s{S_T0}, v4
    v_cmp_u_f32 s[{SMK}:{SMK + 1}], v6, v6
    v_mov_b32 v5, {LDS_FLAG}
    v_mov_b32 v4, 1
    s_or_b64 vcc, vcc, s[{SMK}:{SMK + 1}]
    s_cbranch_vccz L_k2_chk2
    ds_write_b32 v5, v4
    """)
    a.label("L_k2_chk2")
    a(f"""
    s_waitcnt vmcnt(8) lgkmcnt(0)
    s_barrier
    ds_read_b32 v4, v5
    s_waitcnt lgkmcnt(0)
    v_readfirstlane_b32 s{S_T0}, v4
    s_nop 3
    s_cmp_eq_u32 s{S_T0}, 0
    s_cbranch_scc1 L_k2_epi
    s_waitcnt vmcnt(0)
    s_barrier
    """)
    a(f"s_mov_b32 s{S_MODE}, 1")
    a("s_branch L_k2_restart")
    a.label("L_safe")
    a.seg("k2_safe0")
    a(f"s_mov_b32 s{S_CNT}, s{S_LEFT}")
    emit_body(a, cfg, "s", True)
    a.seg("k2_smid")
    a(f"s_cmp_eq_u32 s{S_SPLIT}, 5")
    a("s_cbranch_scc1 L_body_sm")
    emit_body(a, cfg, "sf", True, last=True, nkb=2)
    a("s_branch L_k2_epi0")
    emit_body(a, cfg, "sm", True, last=True, nkb=1)
    a.label("L_k2_epi0")
    a.seg("k2_epi0")
    a("s_nop 7")
    a("s_waitcnt vmcnt(8) lgkmcnt(0)")
    a("s_barrier")
    a.label("L_k2_epi")
    a.seg("k2_epi")
    dbg_stamp(a, cfg, 4, 512, s=88, v=2)
    dbg_stamp(a, cfg, 6, 512, inv=True, s=88, v=2)
    if cfg.get("tl") and not cfg.get("ptl"):
        a("s_memrealtime s[98:99]")
    VPLA = 8
    smp = f"s[{SMP}:{SMP + 3}]"

    def consume_all():
        for b in range(3):
            for k in range(4):
                d = ar(AAG + 8 * b + 4 * (k >> 1), 4)
                a(f"{MF} {d}, {ar(AAH + 4 * (k & 1), 4)}, {ar(ABUF + 16 * b + 4 * k, 4)}, {d}")

    def publish():
        for sw in ("v_permlane32_swap_b32", "v_permlane16_swap_b32"):
            for qb in range(NQ):
                a(f"v_mov_b32 v{T + qb}, v{L + qb}")
            a("s_nop 0")
            for qb in range(NQ):
                a(f"{sw} v{L + qb}, v{T + qb}")
            a("s_nop 0")
            for qb in range(NQ):
                a(f"v_add_f32 v{L + qb}, v{L + qb}, v{T + qb}")
        for qb in range(NQ):
            a(f"v_mov_b32 v{57 + 2 * qb}, v{L + qb}")
        n = 0
        for qb in (2, 3, 0, 1):
            a(f"s_bitcmp1_b32 s{S_OWN}, {qb}")
            a(f"s_cbranch_scc1 L_own{qb}")
            if qb >= 2:
                a(f"s_add_u32 s{S_T0}, s{S_PO}, {qb * 4096}")
                for p in range(4):
                    t = 26 + 4 * (n % 2)
                    n += 1
                    for d in range(4):
                        src = O + (qb * 8 + 2 * p) * 4 + 2 * d
                        a(f"v_cvt_pk_bf16_f32 v{t + d}, v{src}, v{src + 1}")
                    a(f"buffer_store_dwordx4 {vr(t, 4)}, v{VL16}, {SRD}, s{S_T0} offen offset:{1024 * p} sc1")
            a.label(f"L_ownr{qb}")
        a("s_mov_b64 exec, 0xffff")
        for qb in range(NQ):
            a(f"buffer_store_dwordx2 v[{56 + 2 * qb}:{57 + 2 * qb}], v{VPLA}, {SRD}, s{S_PL} offen offset:{128 * qb} sc1")
        a("s_mov_b64 exec, -1")


    a(f"v_and_b32 v{VPLA}, 15, v0")
    a(f"v_lshlrev_b32 v{VPLA}, 3, v{VPLA}")
    for qb in range(NQ):
        a(f"v_sub_f32 v{56 + 2 * qb}, 0, v{NM + 4 * qb}")
    publish()
    if cfg.get("tl") and not cfg.get("ptl"):
        a("s_memrealtime s[62:63]")
        a("s_memrealtime s[60:61]")
    consume_all()
    a("s_waitcnt vmcnt(0) lgkmcnt(0)")
    if cfg.get("tl") and not cfg.get("ptl"):
        a("s_memrealtime s[56:57]")
    a("s_barrier")
    a(f"""
    s_cmp_lg_u32 s{S_W}, 0
    s_cbranch_scc1 L_nosig
    s_lshl_b32 s{S_T0}, s{S_SPLIT}, 2
    v_mov_b32 v10, s{S_T0}
    s_add_u32 s{S_T1}, s{S_MODE}, 1
    v_mov_b32 v11, s{S_T1}
    s_mov_b64 exec, 1
    buffer_store_dword v11, v10, {SRD}, s{S_FLG} offen sc1
    s_mov_b64 exec, -1
    """)
    a.label("L_nosig")
    a(f"s_cmp_gt_i32 s{S_N}, 0")
    a("s_cbranch_scc1 L_left")
    a.label("L_gdone")
    a.seg("k2_fin")
    if cfg.get("tl") and not cfg.get("ptl"):
        a("s_memrealtime s[58:59]")
    POV, PLV = 128, 200
    ACC, BP, AI, XA, VXB = 26, 64, 34, 96, 5
    a(f"""
    v_and_b32 v{VPLA}, 15, v0
    v_and_b32 v9, 63, v0
    v_min_u32 v9, 5, v9
    v_lshlrev_b32 v9, 2, v9
    buffer_load_dword v10, v9, {SRD}, s{S_FLG} offen sc1
    s_mul_i32 s{S_T0}, s{S_QT}, {6 * 65536}
    s_lshl_b32 s{S_T1}, s{S_SPLIT}, 12
    s_add_u32 s{S_T0}, s{S_T0}, s{S_T1}
    s_lshl_b32 s{S_T1}, s{S_W}, 10
    s_add_u32 s{S_T0}, s{S_T0}, s{S_T1}
    s_add_u32 s{S_PO}, s{S_T0}, {PO}
    s_mul_i32 s{S_T0}, s{S_QT}, {6 * 2048}
    s_lshl_b32 s{S_T1}, s{S_SPLIT}, 7
    s_add_u32 s{S_T0}, s{S_T0}, s{S_T1}
    s_add_u32 s{S_PL}, s{S_T0}, {PL}
    v_mov_b32 v{VXB}, v{VX}
    v_add_u32 v{VXB + 1}, {6 * 4096}, v{VX}
    v_add_u32 v{VXB + 2}, {12 * 4096}, v{VX}
    v_bfe_u32 v2, v0, 2, 2
    v_and_b32 v3, 3, v0
    v_bfe_u32 v4, v0, 5, 1
    v_lshl_add_u32 v2, v4, 2, v2
    v_lshl_add_u32 v2, v3, 4, v2
    v_lshlrev_b32 v14, 2, v2
    v_add_u32 v15, 32, v14                       ; m = 1
    v_and_b32 v4, 16, v0
    v_cmp_ne_u32 s[{SMK}:{SMK + 1}], 0, v4
    v_and_b32 v2, 1, v{VPLA}
    v_lshlrev_b32 v2, 4, v2
    v_mov_b32 v3, 0x3f80
    v_lshlrev_b32 v2, v2, v3
    v_bfe_u32 v3, v{VPLA}, 1, 1
    v_lshrrev_b32 v4, 2, v{VPLA}
    v_bfe_u32 v11, v0, 4, 2
    v_xor_b32 v4, v4, v11
    v_lshl_add_u32 v3, v4, 1, v3
    v_cmp_eq_u32 s[{SMK + 2}:{SMK + 3}], 0, v3
    v_cmp_eq_u32 s[{SMK + 4}:{SMK + 5}], 1, v3
    v_lshlrev_b32 v{VPLA}, 3, v{VPLA}
    """)
    for k in (2, 3, 4, 5):
        a(f"v_mov_b32 v{AI + k}, 0")
    for k in range(2):
        a(f"v_cndmask_b32 v{AI + k}, 0, v2, s[{SMK + 2 + 2 * k}:{SMK + 3 + 2 * k}]")
        a(f"v_cndmask_b32 v{AI + 6 + k}, 0, v2, s[{SMK + 2 + 2 * k}:{SMK + 3 + 2 * k}]")
    for b in range(3):
        for m in range(2):
            a(f"v_accvgpr_read_b32 v2, a{ADI + 2 * b + m}")
            for d in range(2):
                a(f"v_accvgpr_read_b32 v{3 + d}, a{AXV + 4 * b + 2 * m + d}")
            for r in range(4):
                a(f"v_accvgpr_read_b32 v{80 + r}, a{AAG + 8 * b + 4 * m + r}")
            a("v_lshlrev_b32 v2, 16, v2")
            xa = XA + 8 * b + 4 * m
            for d in range(2):
                a(f"v_lshlrev_b32 v{xa + 2 * d}, 16, v{3 + d}")
                a(f"v_and_b32 v{xa + 2 * d + 1}, 0xffff0000, v{3 + d}")
            for r in range(4):
                a(f"v_fmac_f32 v{xa + r}, v{80 + r}, v2")
    a(f"s_mov_b32 s{S_T1}, s{S_SPLIT}")
    for s in range(6):
        a(f"s_lshl_b32 s{S_T0}, s{S_T1}, 11")
        a(f"s_add_u32 s{SMK + 8 + s}, s{S_PL}, s{S_T0}")
        if s:
            a(f"s_lshl_b32 s{S_T0}, s{S_T1}, 16")
            a(f"s_add_u32 s{SMK + 14 + s}, s{S_PO}, s{S_T0}")
        a(f"s_add_u32 s{S_T1}, s{S_T1}, 1")
        a(f"s_cmp_eq_u32 s{S_T1}, 6")
        a(f"s_cselect_b32 s{S_T1}, 0, s{S_T1}")
    a(f"s_lshl_b32 s{S_T0}, s{S_W}, 10")
    a(f"v_add_u32 v2, s{S_T0}, v{VL16}")
    for b in range(3):
        a(f"ds_read_b128 {vr(POV + 24 * b, 4)}, v2 offset:{4096 * b}")
    a("s_waitcnt lgkmcnt(0)")
    a(f"s_mov_b32 s{S_I}, 0")
    a("s_branch L_poll1")
    a.label("L_poll")
    a("s_sleep 1")
    a(f"s_add_u32 s{S_I}, s{S_I}, 1")
    a(f"s_cmp_gt_u32 s{S_I}, 0x1000000")
    a("s_cbranch_scc1 L_k2_end")
    a(f"buffer_load_dword v10, v9, {SRD}, s{S_FLG} offen sc1")
    a.label("L_poll1")
    a(f"""
    s_waitcnt vmcnt(0)
    v_cmp_eq_u32 vcc, 0, v10
    s_cbranch_vccnz L_poll
    """)
    if cfg.get("tl") and not cfg.get("ptl"):
        a("s_memrealtime s[100:101]")
        a("s_waitcnt lgkmcnt(0)")
    a("v_cmp_ne_u32 vcc, 1, v10")
    for b in range(3):
        if b == 2:
            a(f"s_cmp_gt_u32 s{S_SPLIT}, 3")
            a("s_cbranch_scc1 L_no3")
        for s in range(6):
            a(f"buffer_load_dwordx2 {vr(PLV + 12 * b + 2 * s, 2)}, v{VPLA}, {SRD}, s{SMK + 8 + s} offen offset:{768 * b} sc1")
        for s in range(1, 6):
            a(f"s_add_u32 s{S_T0}, s{SMK + 14 + s}, {b * 6 * 4096}")
            a(f"buffer_load_dwordx4 {vr(POV + 24 * b + 4 * s, 4)}, v{VL16}, {SRD}, s{S_T0} offen sc1")
    a.label("L_ld_done")
    a("s_cbranch_vccnz L_general")

    def finish(b, rcp):
        for m in range(2):
            if rcp:
                a(f"ds_bpermute_b32 v{80 + m}, v{14 + m}, v{rcp}")
            for j in range(8):
                a(f"ds_bpermute_b32 v{BP + 8 * m + j}, v{14 + m}, v{ACC + j}")
        ob = 56 + 4 * (b & 1)
        for m in range(2):
            a(f"s_waitcnt lgkmcnt({(9 if rcp else 8) * (1 - m)})")
            xa = XA + 8 * b + 4 * m
            for r in range(4):
                a(f"v_cndmask_b32 v{BP + 8 * m + r}, v{BP + 8 * m + r}, v{BP + 8 * m + 4 + r}, s[{SMK}:{SMK + 1}]")
                if rcp:
                    a(f"v_fmac_f32 v{xa + r}, v{BP + 8 * m + r}, v{80 + m}")
                else:
                    a(f"v_add_f32 v{xa + r}, v{xa + r}, v{BP + 8 * m + r}")
            for d in range(2):
                a(f"v_cvt_pk_bf16_f32 v{ob + 2 * m + d}, v{xa + 2 * d}, v{xa + 2 * d + 1}")
            a(f"buffer_store_dwordx2 {vr(ob + 2 * m, 2)}, v{VXB + b}, s[{SOUT}:{SOUT + 3}], 0 offen offset:{2048 * m}{OSC}")

    for b in range(3):
        pl, po = PLV + 12 * b, POV + 24 * b
        if b == 2:
            a(f"s_cmp_gt_u32 s{S_SPLIT}, 3")
            a("s_cbranch_scc1 L_k2_done")
        for s in range(6):
            if s:
                a(f"s_waitcnt vmcnt({5 - s + 11 * (2 - b) + 2 * b})")
            for h in range(2):
                d = vr(ACC + 4 * h, 4)
                a(f"{MF} {d}, {vr(AI + 4 * h, 4)}, {vr(po + 4 * s, 4)}, {'0' if s == 0 else d}")
            if s == 1:
                a(f"v_add_f32 v42, v{pl + 1}, v{pl + 3}")
            elif s > 1:
                a(f"v_add_f32 v42, v42, v{pl + 2 * s + 1}")
        a("v_rcp_f32 v42, v42")
        a("s_nop 5")
        finish(b, 42)
    a("s_branch L_k2_done")
    a.label("L_no3")
    a("s_waitcnt vmcnt(11)")
    a("s_cbranch_vccnz L_no3g")
    a.seg("k2_no3")
    for b in range(2):
        pl, po = PLV + 12 * b, POV + 24 * b
        for s in range(6):
            if s and b:
                a(f"s_waitcnt vmcnt({5 - s + 2})")
            for h in range(2):
                d = vr(ACC + 4 * h, 4)
                a(f"{MF} {d}, {vr(AI + 4 * h, 4)}, {vr(po + 4 * s, 4)}, {'0' if s == 0 else d}")
            if s == 1:
                a(f"v_add_f32 v42, v{pl + 1}, v{pl + 3}")
            elif s > 1:
                a(f"v_add_f32 v42, v42, v{pl + 2 * s + 1}")
        a("v_rcp_f32 v42, v42")
        a("s_nop 5")
        finish(b, 42)
    a("s_branch L_k2_done")
    a.label("L_no3g")
    a("s_waitcnt vmcnt(0)")
    a.label("L_general")
    a.seg("k2_gen")
    for b in range(3):
        pl, po = PLV + 12 * b, POV + 24 * b
        if b == 2:
            a(f"s_cmp_gt_u32 s{S_SPLIT}, 3")
            a("s_cbranch_scc1 L_k2_done")
        a(f"s_waitcnt vmcnt({11 * (2 - b) + 2 * b})")
        a(f"v_max3_f32 v44, v{pl}, v{pl + 2}, v{pl + 4}")
        a(f"v_max3_f32 v44, v44, v{pl + 6}, v{pl + 8}")
        a(f"v_max_f32 v44, v44, v{pl + 10}")
        for s in range(6):
            a(f"v_sub_f32 v{pl + 2 * s}, v{pl + 2 * s}, v44")
        for s in range(6):
            a(f"v_exp_f32 v{pl + 2 * s}, v{pl + 2 * s}")
        a("s_nop 0")
        a(f"v_mul_f32 v45, v{pl}, v{pl + 1}")
        for s in range(1, 6):
            a(f"v_fmac_f32 v45, v{pl + 2 * s}, v{pl + 2 * s + 1}")
        a("v_rcp_f32 v45, v45")
        a("s_nop 0")
        for s in range(6):
            a(f"v_mul_f32 v{pl + 2 * s}, v{pl + 2 * s}, v45")
        for s in range(6):
            for d in range(4):
                r = po + 4 * s + d
                a(f"v_lshlrev_b32 v42, 16, v{r}")
                a(f"v_and_b32 v43, 0xffff0000, v{r}")
                op = "v_mul_f32" if s == 0 else "v_fmac_f32"
                a(f"{op} v{ACC + 2 * d}, v42, v{pl + 2 * s}")
                a(f"{op} v{ACC + 2 * d + 1}, v43, v{pl + 2 * s}")
        finish(b, None)
    a.label("L_k2_done")
    a("s_waitcnt vmcnt(0)")
    if cfg.get("tl"):
        a("s_waitcnt lgkmcnt(0)")
        a("s_mov_b64 exec, 1")
        a("v_lshrrev_b32 v1, 6, v0")
        a("v_lshlrev_b32 v1, 5, v1")
        a(f"s_lshl_b32 s88, s2, 7")
        a(f"s_add_u32 s88, s88, {TR + 3 * 0x40000}")
        for i, sr in enumerate((98, 62, 60, 56, 58, 100)):
            a(f"v_mov_b32 v{2 + i}, s{sr}")
        a(f"buffer_store_dwordx4 v[2:5], v1, {SRD}, s88 offen")
        a(f"buffer_store_dwordx2 v[6:7], v1, {SRD}, s88 offen offset:16")
    dbg_stamp(a, cfg, 5, 512, s=88, v=2)
    stamp_exit(a, cfg, 84, 2, SRD, TR)
    a.label("L_k2_end")
    a("s_endpgm")
    a.label("L_left")
    a.seg("k2_left0")
    lane_setup()
    a(f"v_add_u32 v{GLA}, {NGMAX * 256}, v{GLA}")
    a.label("L_left_loop")
    a.seg("k2_left")
    for b in range(3):
        a(f"ds_read_b128 {vr(64 + 4 * b, 4)}, v{GLA} offset:{b * RSZ + LOFF}")
    a(f"v_add_u32 v{GLA}, 256, v{GLA}")
    a("s_waitcnt lgkmcnt(0)")
    for b in range(3):
        for k in range(4):
            a(f"v_add_u32 v{64 + 4 * b + k}, v{64 + 4 * b + k}, v{GOFF}")
            a(f"buffer_load_dwordx4 {ar(ABUF + 16 * b + 4 * k, 4)}, v{64 + 4 * b + k}, {smp}, 0 offen offset:{12 - 4 * k}{LS()}")
    a("s_waitcnt vmcnt(0)")
    consume_all()
    a(f"""
    s_sub_u32 s{S_N}, s{S_N}, 1
    s_cmp_gt_i32 s{S_N}, 0
    s_cbranch_scc1 L_left_loop
    s_nop 7
    s_cmp_le_u32 s{S_MAXC}, {CAP}
    s_cbranch_scc1 L_gdone
    s_barrier
    s_branch L_car_t
    """)
    a.label("L_more2")
    a.seg("k2_more2")
    a("s_barrier")
    maxc()
    lane_setup()
    a("s_branch L_left_loop")
    for qb in range(NQ):
        a.label(f"L_own{qb}")
        a.seg(f"k2_own{qb}")
        a(f"s_lshl_b32 s{S_I}, s{S_W}, 2")
        a(f"s_add_u32 s{S_I}, s{S_I}, {qb}")
        a(f"s_sub_u32 s{S_I}, s{S_I}, s{S_SPLIT}")
        a(f"s_mul_i32 s{S_T1}, s{S_I}, 683")
        a(f"s_and_b32 s{S_T1}, s{S_T1}, 0x3000")
        a(f"v_add_u32 v42, s{S_T1}, v{VL16}")
        for p in range(4):
            t = 26 + 4 * (p % 2)
            for d in range(4):
                src = O + (qb * 8 + 2 * p) * 4 + 2 * d
                a(f"v_cvt_pk_bf16_f32 v{t + d}, v{src}, v{src + 1}")
            a(f"ds_write_b128 v42, {vr(t, 4)} offset:{1024 * p}")
        a(f"s_branch L_ownr{qb}")
    emit_careful(a, "e", "L_ev_ret")
    emit_careful(a, "t", "L_more2")
    for tag, nkb in (("s", 2), ("sf", 2), ("sm", 1)):
        for X in "AB":
            emit_slow(a, X, nkb, tag + X)
    return dict(name=name, vgpr=512, accum=256, sgpr=102, grid=NWG, block=256, lds=RB + 4 * RSZ,
                chains=[["k2_pro0", "k2_pro", "k2_pro2", "body_m", "body_m", "k2_mid", "k2_mid2", "body_lf", "k2_chk", "k2_epi", "k2_fin"],
                        ["body_m", "k2_mid", "k2_ev", "body_m"], ["body_m", "k2_mid", "k2_evr", "body_m"], ["body_g2", "k2_gx", "k2_mid2", "body_lf"], ["body_g2", "k2_gx", "k2_mid2", "body_lm"], ["k2_ev", "careful_e", "body_m"],
                        ["body_m", "k2_mid", "k2_evg", "body_g0", "body_g1", "body_g2", "body_g0", "body_g1", "body_g2", "k2_gx", "body_m"],
                        ["body_m", "k2_mid", "k2_mid2", "body_lm", "k2_chk", "k2_pro"],
                        ["k2_pro", "k2_pro2", "k2_safe0", "body_s", "body_s", "k2_smid", "body_sf", "k2_epi0", "k2_epi"],
                        ["body_s", "k2_smid", "body_sm", "k2_epi0", "k2_epi"],
                        ["k2_fin", "k2_gen"], ["k2_fin", "k2_no3"], ["k2_chk", "k2_own0", "k2_own1", "k2_own2", "k2_own3"], ["k2_epi", "k2_left0", "k2_left", "k2_left", "k2_fin"], ["k2_left", "careful_t", "k2_more2", "k2_left"]] +
                       [["slow_" + t + X] for t in ("s", "sf", "sm") for X in "AB"])
```

```python
from layout import *
from asmlib import stamp_entry, stamp_exit, dbg_stamp

CFG = {}
MF = "v_mfma_f32_16x16x32_bf16"
NWG = 240
NQ = 4
CAP = 72
NGMAX = 15
NSLOT = 24

O, S, NM, P, E_, T, L = 128, 64, 96, 112, 26, 42, 52
VLDS, VL16, VT, VT2, VT3, VOOB = 20, 21, 22, 23, 24, 25
RC, VREM, VSEG, BT = 26, 50, 51, 56
AQ, AK, AV = 0, 64, 96
S_SRD = 4
S_W, S_SRC, S_M0, S_CNT, S_THR, S_SPLIT, S_QT, S_T0, S_T1 = 8, 9, 10, 11, 12, 13, 14, 15, 16
S_LEFT, S_EV, S_NB, S_MODE = 17, 18, 19, 30
S_Q0 = 20
S_PO, S_PL, S_SRC0, S_U = 24, 25, 26, 27
S_K0, S_FV = 28, 29
S_PA = 56
S_V1 = 3
S_OWN = 31
SRD = f"s[{S_SRD}:{S_SRD + 3}]"
SKV = 80
KVS = "s[80:83]"
LDS_FLAG = 131072
ABUF, AAG, AAH, AXV, ADI = 128, 176, 200, 208, 220
GI, GOFF, GLA = 26, 13, 14
SMP = 44
RB = 131072 + 256
LOFF = 384
RSZ = LOFF + CAP * 64 + 384
SENT = 0x7fffff00


def LS():
    return " sc1" if CFG.get("ls") else ""


def vr(b, n):
    return f"v[{b}:{b + n - 1}]"


def ar(b, n):
    return f"a[{b}:{b + n - 1}]"


def qbs(X):
    return [0, 1] if X == "A" else [2, 3]


def St(qb, kb):
    return S + (qb * 2 + kb) * 4


def mfma_qk(qb, kb, s, czero=False):
    d = vr(St(qb, kb), 4)
    c = ("0" if czero else vr(NM + 4 * qb, 4)) if s == 0 else d
    return f"{MF} {d}, {ar(AK + (kb * 4 + s) * 4, 4)}, {ar(AQ + (qb * 4 + s) * 4, 4)}, {c}"


def mfma_pv(qb, db):
    o = vr(O + (qb * 8 + db) * 4, 4)
    return f"{MF} {o}, {ar(AV + 4 * db, 4)}, {vr(P + 4 * qb, 4)}, {o}"


def qk_order(X, nkb=2):
    return [(qb, kb, s) for s in range(4) for kb in range(nkb) for qb in qbs(X)]


def pv_order(X):
    return [(qb, db) for qb in qbs(X) for db in range(8)]


class Op:
    def __init__(self, text, cost, est=0, lst=10 ** 6, deps=(), stream=None):
        self.text, self.cost, self.est, self.lst, self.deps, self.stream = text, cost, est, lst, list(deps), stream
        self.pos = None


def sm_group(X, nkb, tag, chk, rdy, dl):
    ops = []
    idx = 0
    q = qbs(X)
    lastadd = {}
    prev_small = None
    for qb in q:
        d = dl[qb] if not chk else min(dl.values())
        if nkb == 1:
            for k in (2, 3):
                ops.append(Op(f"v_mov_b32 v{P + 4 * qb + k}, 0", 4, rdy["p", qb], d - 1, stream="s" + X))
        for kb in range(nkb):
            for pr in range(2):
                s0 = St(qb, kb) + 2 * pr
                e0, e1 = (E_ + (2 * idx) % 16, E_ + (2 * idx + 1) % 16) if chk else (s0, s0 + 1)
                x0 = Op(f"v_exp_f32 v{e0}, v{s0}", 8, rdy[qb, kb], d - 2, stream="x" + X)
                x1 = Op(f"v_exp_f32 v{e1}, v{s0 + 1}", 8, rdy[qb, kb], d - 2, stream="x" + X)
                ops += [x0, x1]
                acc = (T if chk else L) + qb
                dadd = d - 1 if chk else dl["end"]
                c = Op(f"v_cvt_pk_bf16_f32 v{P + 4 * qb + 2 * kb + pr}, v{e0}, v{e1}", 4, rdy["p", qb], d - 1, [x0, x1], stream="c" + X)
                if chk and qb not in lastadd:
                    a1 = Op(f"v_add_f32 v{acc}, v{e0}, v{e1}", 4, 0, dadd, [x0, x1], stream="a" + X)
                    ops += [a1, c]
                else:
                    a0 = Op(f"v_add_f32 v{acc}, v{acc}, v{e0}", 4, 0, dadd, [x0], stream="a" + X)
                    a1 = Op(f"v_add_f32 v{acc}, v{acc}, v{e1}", 4, 0, dadd, [x1], stream="a" + X)
                    ops += [a0, a1, c]
                lastadd[qb] = a1
                lastc = c
                idx += 1
    if chk:
        d = min(dl.values())
        m = Op(f"v_max_f32 v{VT}, v{T + q[0]}, v{T + q[1]}", 4, 0, d, list(lastadd.values()), stream="a" + X)
        c = Op(f"v_cmp_lt_f32 vcc, s{S_THR}, v{VT}", 4, 0, d, [m], stream="a" + X)
        b = Op(f"s_cbranch_vccnz L_slow_{tag}\nL_back_{tag}:", 0, 0, d, [c, lastc], stream="a" + X)
        ops += [m, c, b]
        for qb in q:
            ops.append(Op(f"v_add_f32 v{L + qb}, v{L + qb}, v{T + qb}", 4, 0, dl["end"], [b], stream="a" + X))
    return ops


def schedule(ops, nm, base=8):
    streams = {}
    for o in ops:
        streams.setdefault(o.stream, []).append(o)
    best = None
    for nextra in range(0, 3 * nm):
        for o in ops:
            o.pos = None
        cap = [base + 4 * ((g + 1) * nextra // nm - g * nextra // nm) for g in range(nm)]
        head = {s: 0 for s in streams}
        out = [[] for _ in range(nm)]
        pos = 0
        ok = True
        for g in range(nm):
            pos += 1
            rem = cap[g]
            while True:
                cand = []
                for s, lst in streams.items():
                    if head[s] >= len(lst):
                        continue
                    o = lst[head[s]]
                    if o.est > g:
                        continue
                    if CFG.get("ds1") and s == "l" and any(t.startswith(("ds_", "buffer")) for t in out[g]) and o.lst > g:
                        continue
                    if any(d.pos is None or pos - d.pos < (CFG.get('xd', 2) if d.cost == 8 else 1) for d in o.deps):
                        continue
                    urg = 10 ** 9
                    acc = 0
                    for o2 in lst[head[s]:]:
                        acc += o2.cost
                        urg = min(urg, (o2.lst - g + 1) * base * o2_share(s) - acc)
                    cand.append((urg, s, o))
                if not cand:
                    break
                cand.sort(key=lambda c: c[0])
                pick = None
                for urg, s, o in cand:
                    if o.cost <= rem or o.lst <= g:
                        pick = (s, o)
                        break
                if pick is None:
                    break
                s, o = pick
                out[g].append(o.text)
                o.pos = pos
                pos += 1
                head[s] += 1
                rem -= o.cost
                if rem <= 0 and not any(streams[t][head[t]].lst <= g or streams[t][head[t]].cost == 0
                                        for t in streams if head[t] < len(streams[t])):
                    break
            if any(head[s] < len(l) and l[head[s]].lst <= g for s, l in streams.items()):
                ok = False
                break
        if ok and all(head[s] == len(l) for s, l in streams.items()):
            cost = {o.text: o.cost for o in ops}
            tot = sum(max(16, 8 + sum(cost[t] for t in out[g])) for g in range(nm))
            if best is None or tot < best[0]:
                best = (tot, out, nextra)
            if nextra > best[2] + 6:
                break
    if best is None:
        raise RuntimeError("cannot schedule")
    return best


def o2_share(s):
    return {"x": 0.5, "a": 0.3, "c": 0.3, "s": 0.3}.get(s[0], 0.3)


def emit_rowmax(a, qb, nkb, dst):
    s = St(qb, 0)
    a(f"v_max3_f32 v{dst}, v{s}, v{s + 1}, v{s + 2}")
    if nkb == 2:
        a(f"v_max3_f32 v{dst}, v{dst}, v{s + 3}, v{s + 4}")
        a(f"v_max3_f32 v{dst}, v{dst}, v{s + 5}, v{s + 6}")
        a(f"v_max_f32 v{dst}, v{dst}, v{s + 7}")
    else:
        a(f"v_max_f32 v{dst}, v{dst}, v{s + 3}")
    for sw in ("v_permlane32_swap_b32", "v_permlane16_swap_b32"):
        a(f"v_mov_b32 v{VT3}, v{dst}")
        a("s_nop 1")
        a(f"{sw} v{dst}, v{VT3}")
        a("s_nop 1")
        a(f"v_max_f32 v{dst}, v{dst}, v{VT3}")


def emit_slow(a, X, nkb, tag):
    a.seg("slow_" + tag)
    a.label(f"L_slow_{tag}")
    a("s_nop 15")
    for qb in qbs(X):
        emit_rowmax(a, qb, nkb, VT)
        a(f"v_max_f32 v{VT}, 0, v{VT}")
        a(f"v_exp_f32 v{VT2}, -v{VT}")
        a("s_nop 0")
        a(f"v_mul_f32 v{L + qb}, v{L + qb}, v{VT2}")
        for i in range(32):
            o = O + qb * 32 + i
            a(f"v_mul_f32 v{o}, v{o}, v{VT2}")
        for i in range(4):
            a(f"v_sub_f32 v{NM + 4 * qb + i}, v{NM + 4 * qb + i}, v{VT}")
        for k in range(2 * nkb):
            s = St(qb, 0) + 2 * k
            a(f"v_sub_f32 v{s}, v{s}, v{VT}")
            a(f"v_sub_f32 v{s + 1}, v{s + 1}, v{VT}")
            a(f"v_exp_f32 v{E_}, v{s}")
            a(f"v_exp_f32 v{E_ + 1}, v{s + 1}")
            a("s_nop 0")
            if k == 0:
                a(f"v_add_f32 v{T + qb}, v{E_}, v{E_ + 1}")
            else:
                a(f"v_add_f32 v{T + qb}, v{T + qb}, v{E_}")
                a(f"v_add_f32 v{T + qb}, v{T + qb}, v{E_ + 1}")
            a(f"v_cvt_pk_bf16_f32 v{P + 4 * qb + k}, v{E_}, v{E_ + 1}")
    a("s_nop 7")
    a(f"s_branch L_back_{tag}")


def emit_body(a, cfg, tag, chk, last=False, nkb=2, gb=None, loop=None):
    PF = cfg["PF"]
    lead = cfg.get("lead", 3)
    mg = cfg.get("mg", 0)
    pvB, qkB, pvA, qkA = pv_order("B"), qk_order("B", nkb), pv_order("A"), qk_order("A")
    mf = [mfma_pv(*x) for x in pvB] + [mfma_qk(*x) for x in qkB]
    pA0 = len(mf)
    mf += [mfma_pv(*x) for x in pvA]
    qA0 = len(mf)
    if not last:
        mf += [mfma_qk(*x) for x in qkA]
    gpos = []
    if gb is not None:
        for k, at in enumerate(cfg.get("gslots", [40, 47, 54, 61])):
            d = ar(AAG + 8 * gb + 4 * (k >> 1), 4)
            mf.insert(at, f"{MF} {d}, {ar(AAH + 4 * (k & 1), 4)}, {ar(ABUF + 16 * gb + 4 * k, 4)}, {d}")
            gpos.append(at)
            if at <= qA0:
                qA0 += 1
    nm = len(mf)
    ops = []
    lds = []
    if gb is not None:
        lds.append(Op(f"ds_read_b128 {vr(GI, 4)}, v{GLA} offset:{gb * RSZ + LOFF}", 4, 2, 7, stream="l"))
        for k, at in enumerate(gpos):
            ad = Op(f"v_add_u32 v{GI + k}, v{GI + k}, v{GOFF}", 4, pA0, at - 1, stream="g")
            ops += [ad, Op(f"buffer_load_dwordx4 {ar(ABUF + 16 * gb + 4 * k, 4)}, v{GI + k}, s[{SMP}:{SMP + 3}], 0 offen offset:{12 - 4 * k}{LS()}",
                           cfg.get("dmacost", 8), at, at, [ad], stream="g")]
        if gb == 2:
            ops.append(Op(f"v_add_u32 v{GLA}, 256, v{GLA}", 4, 10, nm - 1, stream="y"))
    for db in range(8):
        lds.append(Op(f"ds_read_b128 {ar(AV + 4 * db, 4)}, v{VLDS} offset:{8192 + 1024 * db}", 4, 8 + db, pA0 - 6, stream="l"))
    if not last:
        kf = sorted(range(8), key=lambda f: max(i for i, x in enumerate(qkB) if x[1] * 4 + x[2] == f))
        for n, f in enumerate(kf):
            g = 16 + max(i for i, x in enumerate(qkB) if x[1] * 4 + x[2] == f)
            lds.append(Op(f"ds_read_b128 {ar(AK + 4 * f, 4)}, v{VLDS} offset:{1024 * f}", 4, g, qA0 - 6, stream="l"))
        adv = Op(f"v_add_u32 v{VLDS}, 0x4000, v{VLDS}", 4, 0, nm - 1, [lds[-1]], stream="z")
        ops += [adv, Op(f"v_and_b32 v{VLDS}, 0x1ffff, v{VLDS}", 4, 0, nm - 1, [adv], stream="z")]
        dg = cfg.get("dgaps", [0, 1, 33, 34])
        for k in range(4):
            ops.append(Op(f"buffer_load_dwordx4 v{VL16}, {KVS}, s{S_SRC} offen offset:{1024 * k}{LS()} lds", cfg.get("dmacost", 8),
                          dg[k], dg[k], stream="d"))
    ops += lds
    finA = {}
    for i, (qb, kb, s_) in enumerate(qkA):
        finA[qb, kb] = i
    rdy = {t: max(0, finA[t] - len(qkA) + 1 + lead) for t in finA}
    rdy["p", 0] = rdy["p", 1] = 0
    ops += sm_group("A", nkb, tag + "A", chk, rdy, {0: pA0 - 1 - mg, 1: pA0 + 7 - mg, "end": qA0 - 2})
    finB = {}
    for i, (qb, kb, s_) in enumerate(qkB):
        finB[qb, kb] = i
    rdy = {t: 16 + finB[t] + 1 + lead for t in finB}
    rdy["p", 2], rdy["p", 3] = 8, 16
    ops += sm_group("B", nkb, tag + "B", chk, rdy, {2: nm - 1 - mg, 3: nm - 1, "end": nm - 1})
    tot, gaps, nx = schedule(ops, nm)
    if cfg.get("verbose"):
        print("body", tag, "model cycles", tot, "extra", nx)
    if cfg.get("memfirst"):
        for g in range(nm):
            gaps[g].sort(key=lambda t: 0 if t.startswith(("ds_", "buffer")) else 1)
    if cfg.get("explast"):
        for g in range(nm):
            if not any("L_back" in t for t in gaps[g]):
                gaps[g].sort(key=lambda t: 1 if t.startswith("v_exp") else 0)
    order = [t for g in range(nm) for t in gaps[g]]

    def nlds_after(g_end, first_k):
        n = 0
        for g in range(g_end):
            n += sum(1 for t in gaps[g] if t.startswith("ds_read") and f"offset:{0}" is not None and "a[" in t and int(t.split("a[")[1].split(":")[0]) < AV)
        return n

    gaps[pA0 - 1].append(f"s_waitcnt lgkmcnt({nlds_after(pA0, 0)})")
    if not last:
        gaps[qA0 - 1].append("s_waitcnt lgkmcnt(0)")
        lastd = max(dg)
        gaps[lastd + 2].insert(0, f"s_add_u32 s{S_M0}, s{S_M0}, 0x4000")
        gaps[lastd + 3].insert(0, f"s_and_b32 m0, s{S_M0}, 0x1ffff")
        gaps[lastd + 4].insert(0, f"s_add_u32 s{S_SRC}, s{S_SRC}, 0x2000")
        if gb is None or gb == 2:
            gaps[lastd + 5].insert(0, f"s_sub_u32 s{S_CNT}, s{S_CNT}, 1")
            gaps[nm - 2].insert(0, f"s_cmp_lg_u32 s{S_CNT}, 0")
            gaps[nm - 1].append(f"s_cbranch_scc1 L_body_{loop or tag}")
        for at in gpos:
            gaps[at - 1].append("s_waitcnt vmcnt(23)")
    a.seg("body_" + tag)
    a.label(f"L_body_{tag}")
    a(f"s_waitcnt vmcnt({4 * (PF - 1) if gb is None else 24})")
    a("s_barrier")
    for g in range(nm):
        a(mf[g])
        for t in gaps[g]:
            a(t)
    if last:
        fill = []
        for qb in range(2):
            for p in range(4):
                t = 26 + 4 * (p % 2)
                for d in range(4):
                    src = O + (qb * 8 + 2 * p) * 4 + 2 * d
                    fill.append(f"v_cvt_pk_bf16_f32 v{t + d}, v{src}, v{src + 1}")
                fill.append(f"buffer_store_dwordx4 {vr(t, 4)}, v{VL16}, {SRD}, s{S_PA + qb} offen offset:{1024 * p} sc1")
        a("s_nop 1")
        for n, x in enumerate(pvB):
            a(mfma_pv(*x))
            for t in fill[(5 * n) // 2:(5 * (n + 1)) // 2]:
                a(t)


SX, SDG, SOUT = 32, 36, 40
S_REC, S_CAP, S_MAXC, S_N, S_I, S_MASK, S_FLG, S_NOWN = 48, 49, 50, 51, 52, 53, 54, 55
SMK = 64
VX = 15
VDC = 16
VVL = 18
VRB, VDUM, VDREC = 17, 18, 19


def emit_region_reset(a):
    a(f"""
    v_and_b32 v2, 63, v0
    v_and_b32 v3, 15, v0
    v_lshl_add_u32 v3, v3, 2, v{VRB}
    v_mov_b32 v4, 0
    v_lshl_add_u32 v5, v2, 4, v{VRB}
    ds_write_b32 v3, v4
    v_mov_b32 v4, 0x40000000
    ds_write_b32 v{VDC}, v4
    v_mov_b32 v6, {SENT}
    v_mov_b32 v7, {SENT}
    v_mov_b32 v8, {SENT}
    v_mov_b32 v9, {SENT}
    v_lshl_add_u32 v3, v2, 3, v{VRB}
    """)
    for k in range(4):
        a(f"ds_write_b128 v5, v[6:9] offset:{LOFF + 1024 * k}")
    a(f"ds_write_b64 v3, v[6:7] offset:{LOFF + 4096}")


def emit_careful(a, tag, ret):
    a.seg("careful_" + tag)
    a.label(f"L_car_{tag}")
    a("s_nop 7")
    emit_region_reset(a)
    a(f"""
    v_mov_b32 v10, 1
    s_mov_b64 s[{SMK + 2}:{SMK + 3}], -1
    s_waitcnt lgkmcnt(0)
    """)
    a.label(f"L_car_loop_{tag}")
    a(f"""
    buffer_load_dwordx4 {vr(RC, 4)}, v{VSEG}, {SRD}, s{S_REC} offen{LS()}
    s_waitcnt vmcnt(0)
    """)
    for k in range(4):
        r = RC + k
        a(f"""
        v_cmp_lt_u32 vcc, 0, v{VREM}
        v_and_or_b32 v{BT}, v{r}, 60, v{VRB}
        s_nop 0
        s_and_b64 vcc, vcc, s[{SMK + 2}:{SMK + 3}]
        s_nop 0
        v_cndmask_b32 v{BT}, v{VDC}, v{BT}, vcc
        ds_add_rtn_u32 v{BT + 1}, v{BT}, v10
        s_waitcnt lgkmcnt(0)
        v_cmp_gt_u32 s[{SMK + 2}:{SMK + 3}], s{S_CAP}, v{BT + 1}
        v_min_u32 v{BT + 1}, s{S_CAP}, v{BT + 1}
        v_lshl_add_u32 v{BT}, v{BT + 1}, 6, v{BT}
        ds_write_b32 v{BT}, v{r} offset:{LOFF}
        v_cndmask_b32 v{BT + 1}, 0, v10, s[{SMK + 2}:{SMK + 3}]
        v_sub_u32 v{VREM}, v{VREM}, v{BT + 1}
        v_lshl_add_u32 v{VSEG}, v{BT + 1}, 2, v{VSEG}
        """)
    a(f"""
    s_cmp_lg_u64 s[{SMK + 2}:{SMK + 3}], 0
    s_cbranch_scc1 L_car_loop_{tag}
    s_waitcnt lgkmcnt(0)
    s_branch {ret}
    """)


def emit_k2(a, cfg):
    PF = cfg["PF"]
    NB0 = cfg.get("NB0", 3)
    NBR = cfg.get("NBR", 2)
    OSC = {0: "", 1: " sc1", 2: " nt", 3: " sc0 sc1"}[cfg.get("osc", 0)]
    CFG.clear()
    CFG.update(cfg)
    LIM = cfg.get("lim", NWG)
    name = "k2_attn_kernel"
    if cfg.get("map", 0) == 0:
        mapping = f"""s_and_b32 s{S_T0}, s2, 7
    s_mul_i32 s{S_T0}, s{S_T0}, {NWG // 8}
    s_lshr_b32 s{S_T1}, s2, 3
    s_add_u32 s{S_T0}, s{S_T0}, s{S_T1}          ; g
    s_mul_i32 s{S_SPLIT}, s{S_T0}, 1639
    s_lshr_b32 s{S_SPLIT}, s{S_SPLIT}, 16        ; split = g / 40
    s_mul_i32 s{S_T1}, s{S_SPLIT}, 40
    s_sub_u32 s{S_QT}, s{S_T0}, s{S_T1}          ; q tile"""
    elif cfg.get("map") == 2:
        mapping = f"""s_and_b32 s{S_T0}, s2, 7
    s_lshr_b32 s{S_T1}, s2, 3
    s_mul_i32 s{S_QT}, s{S_T0}, 29
    s_add_u32 s{S_QT}, s{S_QT}, s{S_T1}
    s_cmp_eq_u32 s{S_T0}, 7
    s_addc_u32 s{S_QT}, s{S_QT}, 0
    s_add_u32 s{S_SPLIT}, s{S_T0}, 234
    s_cmp_lt_u32 s{S_T0}, 6
    s_cselect_b32 s{S_MODE}, 29, 99
    s_cmp_eq_u32 s{S_T1}, s{S_MODE}
    s_cselect_b32 s{S_T0}, s{S_SPLIT}, s{S_QT}
    s_mul_i32 s{S_QT}, s{S_T0}, 10923
    s_lshr_b32 s{S_QT}, s{S_QT}, 16
    s_mul_i32 s{S_SPLIT}, s{S_QT}, 6
    s_sub_u32 s{S_SPLIT}, s{S_T0}, s{S_SPLIT}"""
    else:
        mapping = f"""s_and_b32 s{S_T0}, s2, 7
    s_mul_i32 s{S_T0}, s{S_T0}, 5
    s_lshr_b32 s{S_T1}, s2, 3
    s_mul_i32 s{S_QT}, s{S_T1}, 43
    s_lshr_b32 s{S_QT}, s{S_QT}, 8               ; j / 6
    s_mul_i32 s{S_SPLIT}, s{S_QT}, 6
    s_sub_u32 s{S_SPLIT}, s{S_T1}, s{S_SPLIT}
    s_add_u32 s{S_QT}, s{S_QT}, s{S_T0}"""
    a.raw(".text")
    a.raw(f".globl {name}\n.p2align 8\n.type {name},@function")
    a.label(name)
    a.seg("k2_pro0")
    a(f"""
    s_cmp_ge_u32 s2, {LIM}
    s_cbranch_scc1 L_k2_end
    """)
    if cfg.get("dbg"):
        a("s_cmp_gt_u32 s2, 7")
        a("s_cbranch_scc1 L_k2_nod")
        dbg_stamp(a, cfg, 2, 512, inv=True, s=88, v=100)
        a.label("L_k2_nod")
    if cfg.get("tl") or cfg.get("stamp"):
        a("s_memrealtime s[84:85]")
    a(f"""
    s_load_dwordx2 s[{S_SRD}:{S_SRD + 1}], s[0:1], 88
    s_load_dwordx2 s[{SX}:{SX + 1}], s[0:1], 0
    s_load_dwordx2 s[{SDG}:{SDG + 1}], s[0:1], 24
    s_load_dwordx2 s[{SOUT}:{SOUT + 1}], s[0:1], 72
    v_lshrrev_b32 v1, 6, v0
    v_and_b32 v2, 63, v0
    v_readfirstlane_b32 s{S_W}, v1
    v_lshlrev_b32 v{VL16}, 4, v2
    v_lshlrev_b32 v12, 2, v2
    {mapping}
    s_mov_b32 s{S_SRD + 2}, 0x10000000
    s_mov_b32 s{S_SRD + 3}, 0x00020000
    s_mov_b32 s{SX + 2}, {N * 256}
    s_mov_b32 s{SX + 3}, 0x00020000
    s_mov_b32 s{SDG + 2}, {N * 2}
    s_mov_b32 s{SDG + 3}, 0x00020000
    s_mov_b32 s{SOUT + 2}, {N * 256}
    s_mov_b32 s{SOUT + 3}, 0x00020000
    s_mov_b32 s{SMP + 2}, {N * 256}
    s_mov_b32 s{SMP + 3}, 0x00020000
    s_mov_b32 s{S_THR}, 0x4b800000               ; 2^24
    s_lshl_b32 s{S_T0}, s{S_W}, 12
    s_mul_i32 s{S_SRC0}, s{S_SPLIT}, {52 * 8192}
    s_add_u32 s{S_SRC0}, s{S_SRC0}, s{S_T0}
    s_mov_b32 s{S_T1}, {KF}
    s_cmp_lt_u32 s{S_W}, 2
    s_cselect_b32 s{S_T1}, s{S_T1}, {VF - 8192 - 8192}
    s_add_u32 s{S_SRC0}, s{S_SRC0}, s{S_T1}
    s_lshl_b32 s{S_Q0}, s{S_QT}, 16
    s_lshl_b32 s{S_T1}, s{S_W}, 14
    s_add_u32 s{S_Q0}, s{S_Q0}, s{S_T1}
    s_add_u32 s{S_Q0}, s{S_Q0}, {QF}
    s_add_u32 s{S_Q0 + 1}, s{S_Q0}, 0x1000
    s_add_u32 s{S_Q0 + 2}, s{S_Q0}, 0x2000
    s_add_u32 s{S_Q0 + 3}, s{S_Q0}, 0x3000
    s_mul_i32 s{S_T1}, s{S_QT}, 6
    s_add_u32 s{S_T1}, s{S_T1}, s{S_SPLIT}
    s_lshl_b32 s{S_PO}, s{S_T1}, 16
    s_lshl_b32 s{S_T0}, s{S_W}, 14
    s_add_u32 s{S_PO}, s{S_PO}, s{S_T0}
    s_add_u32 s{S_PO}, s{S_PO}, {PO}
    s_lshl_b32 s{S_PL}, s{S_T1}, 11
    s_lshl_b32 s{S_T0}, s{S_W}, 9
    s_add_u32 s{S_PL}, s{S_PL}, s{S_T0}
    s_add_u32 s{S_PL}, s{S_PL}, {PL}
    s_lshl_b32 s{S_T0}, s{S_W}, 2
    s_lshl_b32 s{S_OWN}, {1 | 1 << 6 | 1 << 12}, s{S_SPLIT}
    s_lshr_b32 s{S_OWN}, s{S_OWN}, s{S_T0}
    s_add_u32 s{S_T0}, s{S_PO}, 0
    s_bitcmp1_b32 s{S_OWN}, 0
    s_cselect_b32 s{S_PA + 0}, 0x7fff0000, s{S_T0}
    s_add_u32 s{S_T0}, s{S_PO}, 4096
    s_bitcmp1_b32 s{S_OWN}, 1
    s_cselect_b32 s{S_PA + 1}, 0x7fff0000, s{S_T0}
    s_add_u32 s{S_T0}, s{S_PO}, 8192
    s_bitcmp1_b32 s{S_OWN}, 2
    s_cselect_b32 s{S_PA + 2}, 0x7fff0000, s{S_T0}
    s_add_u32 s{S_T0}, s{S_PO}, 12288
    s_bitcmp1_b32 s{S_OWN}, 3
    s_cselect_b32 s{S_PA + 3}, 0x7fff0000, s{S_T0}
    v_mov_b32 v{VX}, 0x7fff0000
    v_mov_b32 v{VSEG}, 0
    s_cmp_lt_u32 s{S_SPLIT}, 2
    s_cselect_b32 s{S_T0}, 0, 0x7fff0000
    v_add_u32 v{VVL}, s{S_T0}, v{VL16}
    s_mov_b32 s{S_U}, 51
    s_mov_b32 s{S_MODE}, 0
    s_add_u32 s{S_T0}, s{S_U}, 1
    s_cmp_lt_u32 s{S_W}, 2
    s_cselect_b32 s{S_T1}, 0, 1
    s_add_u32 s{S_T0}, s{S_T0}, s{S_T1}
    s_lshl_b32 s{S_T0}, s{S_T0}, 13
    s_add_u32 s{SKV + 2}, s{S_SRC0}, s{S_T0}
    s_sub_u32 s{SKV + 2}, s{SKV + 2}, 4096
    s_mov_b32 s{SKV + 3}, 0x00020000
    s_mov_b32 s{S_REC}, {REC}
    s_mov_b32 s{S_K0}, {KF + 312 * 8192}
    s_mov_b32 s{S_FV}, {VF + 312 * 8192}
    s_add_u32 s{S_V1}, s{S_FV}, 4096
    s_mov_b32 s{S_CAP}, {CAP}
    s_lshl_b32 s{S_FLG}, s{S_QT}, 7
    s_add_u32 s{S_FLG}, s{S_FLG}, {FLG}
    s_mul_i32 s{S_T0}, s{S_W}, 6
    s_add_u32 s{S_T0}, s{S_T0}, s{S_SPLIT}
    s_lshl_b32 s{S_T1}, s{S_QT}, 4
    s_add_u32 s{S_T1}, s{S_T1}, s{S_T0}
    s_cmp_lt_u32 s{S_T0}, 16
    s_cselect_b32 s{S_MASK}, -1, 0
    s_cmp_lt_u32 s{S_T1}, {N // 16}
    s_cselect_b32 s{S_MASK}, s{S_MASK}, 0
    s_lshl_b32 s{S_I}, s{S_T1}, 8
    s_add_u32 s{S_I}, s{S_I}, {TAB}
    s_mul_i32 s{S_T0}, s{S_W}, {RSZ}
    s_add_u32 s{S_T0}, s{S_T0}, {RB}
    v_mov_b32 v{VRB}, s{S_T0}
    s_add_u32 s{S_T0}, s{S_T0}, 64
    v_add_u32 v{VDC}, s{S_T0}, v12
    v_mov_b32 v{VOOB}, 0x7fffffff
    v_mov_b32 v4, 0
    v_mov_b32 v5, {LDS_FLAG}
    ds_write_b32 v5, v4
    """)
    emit_region_reset(a)
    a(f"""
    s_waitcnt lgkmcnt(0)
    s_and_b32 s{S_SRD + 1}, s{S_SRD + 1}, 0xffff
    s_and_b32 s{SX + 1}, s{SX + 1}, 0xffff
    s_and_b32 s{SDG + 1}, s{SDG + 1}, 0xffff
    s_and_b32 s{SOUT + 1}, s{SOUT + 1}, 0xffff
    s_mov_b32 s{SKV}, s{S_SRD}
    s_mov_b32 s{SKV + 1}, s{S_SRD + 1}
    s_add_u32 s{SMP}, s{S_SRD}, {MP}
    s_addc_u32 s{SMP + 1}, s{S_SRD + 1}, 0
    buffer_load_dword v{VREM}, v12, {SRD}, s{S_I} offen{LS()}
    """)
    def lane_setup():
        a(f"""
        v_bfe_u32 v2, v0, 2, 2
        v_and_b32 v3, 3, v0
        v_bfe_u32 v4, v0, 4, 2
        s_lshl_b32 s{S_T0}, s{S_W}, 6
        s_sub_u32 s{S_T1}, s{S_T0}, 12
        v_lshlrev_b32 v{GOFF}, 4, v3
        v_add_u32 v{GOFF}, s{S_T1}, v{GOFF}
        v_lshlrev_b32 v5, 4, v2
        v_sub_u32 v{GOFF}, v{GOFF}, v5               ; 64w + 16q - 16n' - 12
        v_lshlrev_b32 v{GLA}, 4, v2
        v_lshl_add_u32 v{GLA}, v4, 6, v{GLA}
        v_add_u32 v{GLA}, {RB}, v{GLA}
        """)

    def maxc():
        a(f"""
        v_and_b32 v6, 15, v0
        v_bfe_u32 v7, v0, 4, 2
        v_mul_u32_u24 v7, {RSZ}, v7
        v_lshl_add_u32 v7, v6, 2, v7
        v_add_u32 v7, {RB}, v7
        ds_read_b32 v9, v7
        s_waitcnt lgkmcnt(0)
        """)
        for sh in ("row_shr:1", "row_shr:2", "row_shr:4", "row_shr:8"):
            a(f"v_max_u32_dpp v9, v9, v9 {sh} row_mask:0xf bank_mask:0xf")
            a("s_nop 1")
        a("v_max_u32_dpp v9, v9, v9 row_bcast:15 row_mask:0xa bank_mask:0xf")
        a("s_nop 1")
        a("v_max_u32_dpp v9, v9, v9 row_bcast:31 row_mask:0xc bank_mask:0xf")
        a("s_nop 1")
        a(f"v_readlane_b32 s{S_MAXC}, v9, 63")
        a("s_nop 3")
        a(f"s_min_u32 s{S_N}, s{S_MAXC}, {CAP}")
        a(f"s_add_u32 s{S_N}, s{S_N}, 3")
        a(f"s_lshr_b32 s{S_N}, s{S_N}, 2")

    if cfg.get("ptl"):
        a("s_memrealtime s[98:99]")
    a.label("L_k2_restart")
    a.seg("k2_pro")
    a(f"s_mov_b32 s{S_SRC}, s{S_SRC0}")
    a(f"s_lshl_b32 s{S_M0}, s{S_W}, 12")
    a(f"s_mov_b32 m0, s{S_M0}")
    a(f"s_mov_b32 s{S_LEFT}, s{S_U}")

    def dma_stage():
        for k in range(4):
            a(f"buffer_load_dwordx4 v{VL16}, {KVS}, s{S_SRC} offen offset:{1024 * k}{LS()} lds")

    def dma_adv():
        a(f"s_add_u32 s{S_M0}, s{S_M0}, 0x4000")
        a(f"s_and_b32 m0, s{S_M0}, 0x1ffff")
        a(f"s_add_u32 s{S_SRC}, s{S_SRC}, 0x2000")

    for i in range(8):
        a(f"v_mov_b32 v{P + 8 + i}, 0")
    zq = [f"v_mfma_f32_32x32x16_bf16 {vr(O + 16 * i, 16)}, {vr(P + 8, 4)}, {vr(P + 8, 4)}, 0" for i in range(8)]
    for s_ in range(4):
        a(f"buffer_load_dwordx4 {ar(AK + 16 + 4 * s_, 4)}, v{VL16}, {SRD}, s{S_K0} offen offset:{1024 * s_}{LS()}")
    for i in range(16):
        a(f"buffer_load_dwordx4 {ar(4 * i, 4)}, v{VL16}, {SRD}, s{S_Q0 + (i >> 2)} offen offset:{1024 * (i & 3)}{LS()}")
        if i % 2 == 1:
            a(zq.pop())
    dma_stage()
    dma_adv()
    for j in range(8):
        a(f"buffer_load_dwordx4 {ar(AV + 4 * j, 4)}, v{VVL}, {SRD}, s{S_FV if j < 4 else S_V1} offen offset:{1024 * (j & 3)}{LS()}")
    dma_stage()
    dma_adv()
    assert not zq
    a(f"s_cmp_lg_u32 s{S_MODE}, 0")
    a("s_cbranch_scc1 L_k2_nosetup")
    lane_setup()
    a(f"""
    v_and_b32 v6, 15, v0
    v_and_b32 v7, 1, v6
    v_lshlrev_b32 v7, 4, v7
    v_mov_b32 v8, 0x3f80
    v_lshlrev_b32 v7, v7, v8                     ; value
    v_lshrrev_b32 v6, 1, v6                      ; 0..7 = (h, dword)
    """)
    for k in range(8):
        a(f"v_cmp_eq_u32 s[{SMK + 2 * k}:{SMK + 2 * k + 1}], {k}, v6")
    for k in range(8):
        a(f"v_cndmask_b32 v{BT + k}, 0, v7, s[{SMK + 2 * k}:{SMK + 2 * k + 1}]")
    for k in range(8):
        a(f"v_accvgpr_write_b32 a{AAH + k}, v{BT + k}")
    Z = vr(P + 8, 4)
    for i in range(4):
        a(f"v_mfma_f32_32x32x16_bf16 {ar(ABUF + 16 * i, 16)}, {Z}, {Z}, 0")
    for i in range(2):
        a(f"{MF} {ar(ABUF + 64 + 4 * i, 4)}, {Z}, {Z}, 0")
    a.label("L_k2_nosetup")
    a.seg("k2_pro2")
    for qb in range(NQ):
        a(f"v_mov_b32 v{L + qb}, 0")
    a(f"v_add_u32 v{VLDS}, 0x4000, v{VL16}")
    if cfg.get("ptl"):
        a("s_memrealtime s[62:63]")
    a("s_waitcnt vmcnt(16)")
    if cfg.get("ptl"):
        a("s_memrealtime s[60:61]")
    dq = []
    for st in range(PF - 1):
        dq += [[f"buffer_load_dwordx4 v{VL16}, {KVS}, s{S_SRC} offen offset:{1024 * k}{LS()} lds"] for k in range(4)]
        dq[-1] += [f"s_add_u32 s{S_M0}, s{S_M0}, 0x4000", f"s_and_b32 m0, s{S_M0}, 0x1ffff", f"s_add_u32 s{S_SRC}, s{S_SRC}, 0x2000"]
    n = 0
    for s_ in range(4):
        for qb in range(4):
            d = vr(St(qb, 1), 4)
            a(f"{MF} {d}, {ar(AK + 16 + 4 * s_, 4)}, {ar(AQ + (qb * 4 + s_) * 4, 4)}, {'0' if s_ == 0 else d}")
            if n % 4 == 1:
                for t in dq.pop(0):
                    a(t)
            n += 1
    a("s_waitcnt vmcnt(16)")
    a("s_barrier")
    if cfg.get("ptl"):
        a("s_memrealtime s[88:89]")
    for s in range(8):
        a(f"ds_read_b128 {ar(AK + 4 * s, 4)}, v{VL16} offset:{1024 * s}")
    a("s_nop 1")
    MX = 26
    for qb in range(4):
        s0 = St(qb, 1)
        a(f"v_max3_f32 v{MX + qb}, v{s0}, v{s0 + 1}, v{s0 + 2}")
    for qb in range(4):
        a(f"v_max_f32 v{MX + qb}, v{MX + qb}, v{St(qb, 1) + 3}")
    for sw in ("v_permlane32_swap_b32", "v_permlane16_swap_b32"):
        for qb in range(4):
            a(f"v_mov_b32 v{MX + 4 + qb}, v{MX + qb}")
        a("s_nop 0")
        for qb in range(4):
            a(f"{sw} v{MX + qb}, v{MX + 4 + qb}")
        a("s_nop 0")
        for qb in range(4):
            a(f"v_max_f32 v{MX + qb}, v{MX + qb}, v{MX + 4 + qb}")
    for qb in range(4):
        for i in range(4):
            a(f"v_sub_f32 v{NM + 4 * qb + i}, 0, v{MX + qb}")
    a(f"s_cmp_lt_u32 s{S_SPLIT}, 2")
    a("s_cbranch_scc1 L_lo")
    a.label("L_lo_ret")
    a.seg("k2_pro3")
    a("s_waitcnt lgkmcnt(0)")
    for n, x in enumerate(qk_order("A")):
        a(mfma_qk(*x))
        if n % 2 == 0 and dq:
            for t in dq.pop(0):
                a(t)
    assert not dq
    if cfg.get("stamp"):
        a("s_memtime s[90:91]")
        a("s_memrealtime s[92:93]")
        a("s_waitcnt lgkmcnt(0)")
    a(f"s_cmp_lg_u32 s{S_MODE}, 0")
    a("s_cbranch_scc1 L_safe")
    if cfg.get("ptl"):
        a("s_memrealtime s[86:87]")
        a("s_waitcnt lgkmcnt(0)")
    a(f"s_mov_b32 s{S_CNT}, {NBR}")
    a(f"s_mov_b32 s{S_EV}, 0")
    a.raw(".p2align 6")
    emit_body(a, cfg, "m", False)
    a.seg("k2_mid")
    a(f"s_add_u32 s{S_EV}, s{S_EV}, 1")
    a(f"s_cmp_eq_u32 s{S_EV}, 4")
    a("s_cbranch_scc1 L_loop_done")
    a(f"s_cmp_eq_u32 s{S_EV}, 3")
    a("s_cbranch_scc1 L_ev_g")
    a(f"s_cmp_eq_u32 s{S_EV}, 2")
    a("s_cbranch_scc1 L_ev_b")
    a.seg("k2_evr")
    dbg_stamp(a, cfg, 3, 512, s=88, v=2)
    a(f"""
    v_and_b32 v{VREM}, s{S_MASK}, v{VREM}
    v_and_b32 v2, 63, v0
    v_mul_u32_u24 v2, {RECS}, v2
    v_and_b32 v3, 0xffff, v{VREM}
    v_lshl_add_u32 v{VSEG}, v3, 2, v2
    v_lshrrev_b32 v{VREM}, 16, v{VREM}
    """)
    for k in range(NSLOT // 4):
        a(f"buffer_load_dwordx4 {vr(RC + 4 * k, 4)}, v{VSEG}, {SRD}, s{S_REC} offen offset:{16 * k}{LS()}")
    a(f"s_mov_b32 s{S_CNT}, {NB0}")
    a("s_branch L_body_m")
    a.label("L_ev_b")
    a.seg("k2_ev")
    if cfg.get("ptl"):
        a("s_memrealtime s[100:101]")
        a("s_waitcnt lgkmcnt(0)")
    a(f"s_waitcnt vmcnt({4 * NB0})")
    a("v_mov_b32 v12, 1")
    RK = 4
    for grp in range(NSLOT // 8):
        for k in range(8):
            a(f"v_cmp_lt_u32 s[{SMK + 2 * k}:{SMK + 2 * k + 1}], {8 * grp + k}, v{VREM}")
        for k in range(8):
            a(f"v_and_or_b32 v{BT + k}, v{RC + 8 * grp + k}, 60, v{VRB}")
        if grp:
            a(f"s_cmp_eq_u64 s[{SMK}:{SMK + 1}], 0")
            a("s_cbranch_scc1 L_ev_built")
        for k in range(8):
            a(f"v_cndmask_b32 v{BT + k}, v{VDC}, v{BT + k}, s[{SMK + 2 * k}:{SMK + 2 * k + 1}]")
            a(f"ds_add_rtn_u32 v{RK + k}, v{BT + k}, v12")
        for k in range(8):
            a(f"s_waitcnt lgkmcnt(7)")
            a(f"v_min_u32 v{RK + k}, s{S_CAP}, v{RK + k}")
            a(f"v_lshl_add_u32 v{BT + k}, v{RK + k}, 6, v{BT + k}")
            a(f"ds_write_b32 v{BT + k}, v{RC + 8 * grp + k} offset:{LOFF}")
    a.label("L_ev_built")
    a(f"""
    v_and_b32 v2, 15, v0
    v_lshl_add_u32 v2, v2, 2, v{VRB}
    ds_read_b32 v3, v2
    v_cmp_lt_u32 s[{SMK}:{SMK + 1}], {NSLOT}, v{VREM}
    s_waitcnt lgkmcnt(0)
    v_cmp_lt_u32 vcc, s{S_CAP}, v3
    s_nop 3
    s_or_b64 vcc, vcc, s[{SMK}:{SMK + 1}]
    s_cbranch_vccnz L_car_e
    v_mov_b32 v{VREM}, 0
    """)
    a.label("L_ev_ret")

    a(f"s_mov_b32 s{S_CNT}, 1")
    a("s_branch L_body_m")
    a.label("L_ev_g")
    a.seg("k2_evg")
    maxc()
    a(f"""
    s_min_u32 s{S_CNT}, s{S_N}, {NGMAX}
    s_max_u32 s{S_CNT}, s{S_CNT}, 1
    s_sub_u32 s{S_N}, s{S_N}, s{S_CNT}
    s_mul_i32 s{S_T0}, s{S_CNT}, 3
    s_sub_u32 s{S_LEFT}, s{S_LEFT}, s{S_T0}
    s_sub_u32 s{S_LEFT}, s{S_LEFT}, {NBR + NB0 + 1}
    v_bfe_u32 v2, v0, 2, 2
    v_and_b32 v3, 3, v0
    v_bfe_u32 v4, v0, 4, 2
    s_lshl_b32 s{S_T0}, s{S_W}, 6
    s_lshl_b32 s{S_T1}, s{S_QT}, 4
    s_add_u32 s{S_T1}, s{S_T1}, s{S_SPLIT}
    s_lshl_b32 s{S_I}, s{S_T1}, 12
    s_add_u32 s{S_I}, s{S_I}, s{S_T0}
    v_lshrrev_b32 v5, 1, v4
    v_lshl_add_u32 v5, v5, 2, v2
    v_and_b32 v6, 1, v4
    v_lshlrev_b32 v{VX}, 8, v5
    v_lshl_add_u32 v{VX}, v6, 5, v{VX}
    v_lshl_add_u32 v{VX}, v3, 3, v{VX}
    v_add_u32 v{VX}, s{S_I}, v{VX}
    v_add_u32 v10, {6 * 4096}, v{VX}
    v_add_u32 v11, {12 * 4096}, v{VX}
    s_lshl_b32 s{S_I}, s{S_T1}, 5
    v_lshlrev_b32 v5, 1, v5
    v_add_u32 v5, s{S_I}, v5
    s_waitcnt vmcnt(0)
    """)
    for b in range(3):
        for m in range(2):
            a(f"buffer_load_dwordx2 {ar(AXV + 4 * b + 2 * m, 2)}, v{[VX, 10, 11][b]}, s[{SX}:{SX + 3}], 0 offen offset:{2048 * m}")
            a(f"buffer_load_ushort a{ADI + 2 * b + m}, v5, s[{SDG}:{SDG + 3}], 0 offen offset:{192 * b + 16 * m}")
    if cfg.get("touch"):
        a(f"buffer_load_dword a226, v{VL16}, {SRD}, s{S_PO} offen")
        a(f"buffer_load_dword a227, v{VL16}, {SRD}, s{S_PL} offen")
        a(f"buffer_load_dword a228, v{VL16}, {SRD}, s{S_FLG} offen")
        a(f"buffer_load_dword a229, v{VX}, s[{SOUT}:{SOUT + 3}], 0 offen")
    a.raw(".p2align 6")
    for gb in range(3):
        emit_body(a, cfg, f"g{gb}", False, gb=gb, loop="g0")
    a.seg("k2_gx")
    a(f"s_mov_b32 s{S_CNT}, s{S_LEFT}")
    a(f"s_cmp_lg_u32 s{S_LEFT}, 0")
    a("s_cbranch_scc1 L_body_m")
    a.label("L_loop_done")
    a.seg("k2_mid2")
    if cfg.get("stamp"):
        a("s_memtime s[94:95]")
        a("s_memrealtime s[96:97]")
        a(f"s_load_dwordx2 s[64:65], s[0:1], 80")
        a("s_waitcnt lgkmcnt(0)")
        a("s_sub_u32 s94, s94, s90")
        a("s_sub_u32 s96, s96, s92")
        a("v_mov_b32 v2, s94")
        a("v_mov_b32 v3, s96")
        a("s_and_b32 s65, s65, 0xffff")
        a("s_mov_b32 s66, 256")
        a("s_mov_b32 s67, 0x00020000")
        a("s_lshr_b32 s72, s2, 3")
        a("s_lshl_b32 s72, s72, 3")
        a("v_mov_b32 v4, s72")
        a("s_and_b32 s73, s2, 7")
        a(f"s_or_b32 s73, s73, s{S_W}")
        a("s_cmp_lg_u32 s73, 0")
        a("s_cbranch_scc1 L_nostamp")
        a("buffer_store_dwordx2 v[2:3], v4, s[64:67], 0 offen")
        a.label("L_nostamp")
    emit_body(a, cfg, "lf", False, last=True, nkb=2)
    a("s_branch L_k2_chk")
    a.label("L_safe")
    a.seg("k2_safe0")
    a(f"s_mov_b32 s{S_CNT}, s{S_LEFT}")
    emit_body(a, cfg, "s", True)
    a.seg("k2_smid")
    emit_body(a, cfg, "sf", True, last=True, nkb=2)
    a.label("L_k2_chk")
    a.seg("k2_chk")
    if cfg.get("tl") and not cfg.get("ptl"):
        a("s_memrealtime s[98:99]")
    VPLA = 8
    smp = f"s[{SMP}:{SMP + 3}]"

    def consume_all():
        for b in range(3):
            for k in range(4):
                d = ar(AAG + 8 * b + 4 * (k >> 1), 4)
                a(f"{MF} {d}, {ar(AAH + 4 * (k & 1), 4)}, {ar(ABUF + 16 * b + 4 * k, 4)}, {d}")

    def pub(qb):
        for p in range(4):
            t = 26 + 4 * (p % 2)
            for d in range(4):
                src = O + (qb * 8 + 2 * p) * 4 + 2 * d
                a(f"v_cvt_pk_bf16_f32 v{t + d}, v{src}, v{src + 1}")
            a(f"buffer_store_dwordx4 {vr(t, 4)}, v{VL16}, {SRD}, s{S_PA + qb} offen offset:{1024 * p} sc1")

    pub(2)
    pub(3)
    a(f"""
    v_max3_f32 v4, v{L}, v{L + 1}, v{L + 2}
    v_max_f32 v4, v4, v{L + 3}
    v_add_f32 v6, v{L}, v{L + 1}
    v_add_f32 v7, v{L + 2}, v{L + 3}
    v_add_f32 v6, v6, v7
    s_mov_b32 s{S_T0}, 0x53800000
    v_cmp_ngt_f32 vcc, s{S_T0}, v4
    v_cmp_u_f32 s[{SMK}:{SMK + 1}], v6, v6
    v_mov_b32 v5, {LDS_FLAG}
    v_mov_b32 v4, 1
    s_or_b64 vcc, vcc, s[{SMK}:{SMK + 1}]
    s_cbranch_vccz L_k2_chk2
    ds_write_b32 v5, v4
    """)
    a.label("L_k2_chk2")
    a(f"v_and_b32 v{VPLA}, 15, v0")
    a(f"v_lshlrev_b32 v{VPLA}, 3, v{VPLA}")
    for sw in ("v_permlane32_swap_b32", "v_permlane16_swap_b32"):
        for qb in range(NQ):
            a(f"v_mov_b32 v{T + qb}, v{L + qb}")
        a("s_nop 0")
        for qb in range(NQ):
            a(f"{sw} v{L + qb}, v{T + qb}")
        a("s_nop 0")
        for qb in range(NQ):
            a(f"v_add_f32 v{57 + 2 * qb if sw[10] == '1' else L + qb}, v{L + qb}, v{T + qb}")
    for qb in range(NQ):
        a(f"v_sub_f32 v{56 + 2 * qb}, 0, v{NM + 4 * qb}")
    a("s_mov_b64 exec, 0xffff")
    for qb in range(NQ):
        a(f"buffer_store_dwordx2 v[{56 + 2 * qb}:{57 + 2 * qb}], v{VPLA}, {SRD}, s{S_PL} offen offset:{128 * qb} sc1")
    a("s_mov_b64 exec, -1")
    if cfg.get("tl") and not cfg.get("ptl"):
        a("s_memrealtime s[62:63]")
    a("s_waitcnt vmcnt(20) lgkmcnt(0)")
    a("s_barrier")
    a("ds_read_b32 v4, v5")
    a(f"s_and_b32 s{S_T0}, s{S_OWN}, 15")
    a("s_cbranch_scc1 L_own")
    a.label("L_ownr")
    a.seg("k2_epi")
    a(f"""
    s_waitcnt lgkmcnt(0)
    v_readfirstlane_b32 s{S_T0}, v4
    s_nop 3
    s_cmp_gt_u32 s{S_T0}, s{S_MODE}
    s_cbranch_scc1 L_redo
    """)
    if cfg.get("tl") and not cfg.get("ptl"):
        a("s_memrealtime s[60:61]")
    consume_all()
    a("s_waitcnt vmcnt(0) lgkmcnt(0)")
    if cfg.get("tl") and not cfg.get("ptl"):
        a("s_memrealtime s[88:89]")
    a("s_barrier")
    a(f"""
    s_cmp_lg_u32 s{S_W}, 0
    s_cbranch_scc1 L_nosig
    s_lshl_b32 s{S_T0}, s{S_SPLIT}, 2
    v_mov_b32 v10, s{S_T0}
    s_add_u32 s{S_T1}, s{S_MODE}, 1
    v_mov_b32 v11, s{S_T1}
    s_mov_b64 exec, 1
    buffer_store_dword v11, v10, {SRD}, s{S_FLG} offen sc1
    s_mov_b64 exec, -1
    """)
    a.label("L_nosig")
    a(f"s_cmp_gt_i32 s{S_N}, 0")
    a("s_cbranch_scc1 L_left")
    a.label("L_gdone")
    a.seg("k2_fin")
    if cfg.get("tl") and not cfg.get("ptl"):
        a("s_memrealtime s[86:87]")
    POV, PLV = 128, 200
    ACC, BP, AI, XA, VXB = 26, 64, 34, 96, 5
    a(f"""
    v_and_b32 v{VPLA}, 15, v0
    v_and_b32 v9, 63, v0
    v_min_u32 v9, 5, v9
    v_lshlrev_b32 v9, 2, v9
    buffer_load_dword v10, v9, {SRD}, s{S_FLG} offen sc1
    s_mul_i32 s{S_T0}, s{S_QT}, {6 * 65536}
    s_lshl_b32 s{S_T1}, s{S_SPLIT}, 12
    s_add_u32 s{S_T0}, s{S_T0}, s{S_T1}
    s_lshl_b32 s{S_T1}, s{S_W}, 10
    s_add_u32 s{S_T0}, s{S_T0}, s{S_T1}
    s_add_u32 s{S_PO}, s{S_T0}, {PO}
    s_mul_i32 s{S_T0}, s{S_QT}, {6 * 2048}
    s_lshl_b32 s{S_T1}, s{S_SPLIT}, 7
    s_add_u32 s{S_T0}, s{S_T0}, s{S_T1}
    s_add_u32 s{S_PL}, s{S_T0}, {PL}
    v_mov_b32 v{VXB}, v{VX}
    v_add_u32 v{VXB + 1}, {6 * 4096}, v{VX}
    v_add_u32 v{VXB + 2}, {12 * 4096}, v{VX}
    v_bfe_u32 v2, v0, 2, 2
    v_and_b32 v3, 3, v0
    v_bfe_u32 v4, v0, 5, 1
    v_lshl_add_u32 v2, v4, 2, v2
    v_lshl_add_u32 v2, v3, 4, v2
    v_lshlrev_b32 v14, 2, v2
    v_add_u32 v15, 32, v14                       ; m = 1
    v_and_b32 v4, 16, v0
    v_cmp_ne_u32 s[{SMK}:{SMK + 1}], 0, v4
    v_and_b32 v2, 1, v{VPLA}
    v_lshlrev_b32 v2, 4, v2
    v_mov_b32 v3, 0x3f80
    v_lshlrev_b32 v2, v2, v3
    v_bfe_u32 v3, v{VPLA}, 1, 1
    v_lshrrev_b32 v4, 2, v{VPLA}
    v_bfe_u32 v11, v0, 4, 2
    v_xor_b32 v4, v4, v11
    v_lshl_add_u32 v3, v4, 1, v3
    v_cmp_eq_u32 s[{SMK + 2}:{SMK + 3}], 0, v3
    v_cmp_eq_u32 s[{SMK + 4}:{SMK + 5}], 1, v3
    v_lshlrev_b32 v{VPLA}, 3, v{VPLA}
    """)
    for k in (2, 3, 4, 5):
        a(f"v_mov_b32 v{AI + k}, 0")
    for k in range(2):
        a(f"v_cndmask_b32 v{AI + k}, 0, v2, s[{SMK + 2 + 2 * k}:{SMK + 3 + 2 * k}]")
        a(f"v_cndmask_b32 v{AI + 6 + k}, 0, v2, s[{SMK + 2 + 2 * k}:{SMK + 3 + 2 * k}]")
    for b in range(3):
        for m in range(2):
            a(f"v_accvgpr_read_b32 v2, a{ADI + 2 * b + m}")
            for d in range(2):
                a(f"v_accvgpr_read_b32 v{3 + d}, a{AXV + 4 * b + 2 * m + d}")
            for r in range(4):
                a(f"v_accvgpr_read_b32 v{80 + r}, a{AAG + 8 * b + 4 * m + r}")
            a("v_lshlrev_b32 v2, 16, v2")
            xa = XA + 8 * b + 4 * m
            for d in range(2):
                a(f"v_lshlrev_b32 v{xa + 2 * d}, 16, v{3 + d}")
                a(f"v_and_b32 v{xa + 2 * d + 1}, 0xffff0000, v{3 + d}")
            for r in range(4):
                a(f"v_fmac_f32 v{xa + r}, v{80 + r}, v2")
    a(f"s_mov_b32 s{S_T1}, s{S_SPLIT}")
    for s in range(6):
        a(f"s_lshl_b32 s{S_T0}, s{S_T1}, 11")
        a(f"s_add_u32 s{SMK + 8 + s}, s{S_PL}, s{S_T0}")
        if s:
            a(f"s_lshl_b32 s{S_T0}, s{S_T1}, 16")
            a(f"s_add_u32 s{SMK + 14 + s}, s{S_PO}, s{S_T0}")
        a(f"s_add_u32 s{S_T1}, s{S_T1}, 1")
        a(f"s_cmp_eq_u32 s{S_T1}, 6")
        a(f"s_cselect_b32 s{S_T1}, 0, s{S_T1}")
    a(f"s_lshl_b32 s{S_T0}, s{S_W}, 10")
    a(f"v_add_u32 v2, s{S_T0}, v{VL16}")
    for b in range(3):
        a(f"ds_read_b128 {vr(POV + 24 * b, 4)}, v2 offset:{4096 * b}")
    a("s_waitcnt lgkmcnt(0)")
    a(f"s_mov_b32 s{S_I}, 0")
    a.label("L_poll")
    a(f"""
    buffer_load_dword v11, v9, {SRD}, s{S_FLG} offen sc1
    s_waitcnt vmcnt(1)
    v_cmp_eq_u32 vcc, 0, v10
    s_cbranch_vccz L_poll_done
    s_add_u32 s{S_I}, s{S_I}, 1
    s_cmp_gt_u32 s{S_I}, 0x1000000
    s_cbranch_scc1 L_k2_end
    buffer_load_dword v10, v9, {SRD}, s{S_FLG} offen sc1
    s_waitcnt vmcnt(1)
    v_cmp_eq_u32 vcc, 0, v11
    s_cbranch_vccnz L_poll
    v_mov_b32 v12, v11
    s_branch L_poll_d2
    """)
    a.label("L_poll_done")
    a("v_mov_b32 v12, v10")
    a.label("L_poll_d2")
    if cfg.get("tl") and not cfg.get("ptl"):
        a("s_memrealtime s[100:101]")
        a("s_waitcnt lgkmcnt(0)")
    a("v_cmp_ne_u32 vcc, 1, v12")
    for b in range(3):
        if b == 2:
            a(f"s_cmp_gt_u32 s{S_SPLIT}, 3")
            a("s_cbranch_scc1 L_no3")
        for s in range(6):
            a(f"buffer_load_dwordx2 {vr(PLV + 12 * b + 2 * s, 2)}, v{VPLA}, {SRD}, s{SMK + 8 + s} offen offset:{768 * b} sc1")
        for s in range(1, 6):
            a(f"s_add_u32 s{S_T0}, s{SMK + 14 + s}, {b * 6 * 4096}")
            a(f"buffer_load_dwordx4 {vr(POV + 24 * b + 4 * s, 4)}, v{VL16}, {SRD}, s{S_T0} offen sc1")
    a.label("L_ld_done")
    a("s_cbranch_vccnz L_general")

    def finish(b, rcp):
        for m in range(2):
            if rcp:
                a(f"ds_bpermute_b32 v{80 + m}, v{14 + m}, v{rcp}")
            for j in range(8):
                a(f"ds_bpermute_b32 v{BP + 8 * m + j}, v{14 + m}, v{ACC + j}")
        ob = 56 + 4 * (b & 1)
        for m in range(2):
            a(f"s_waitcnt lgkmcnt({(9 if rcp else 8) * (1 - m)})")
            xa = XA + 8 * b + 4 * m
            for r in range(4):
                a(f"v_cndmask_b32 v{BP + 8 * m + r}, v{BP + 8 * m + r}, v{BP + 8 * m + 4 + r}, s[{SMK}:{SMK + 1}]")
                if rcp:
                    a(f"v_fmac_f32 v{xa + r}, v{BP + 8 * m + r}, v{80 + m}")
                else:
                    a(f"v_add_f32 v{xa + r}, v{xa + r}, v{BP + 8 * m + r}")
            for d in range(2):
                a(f"v_cvt_pk_bf16_f32 v{ob + 2 * m + d}, v{xa + 2 * d}, v{xa + 2 * d + 1}")
            a(f"buffer_store_dwordx2 {vr(ob + 2 * m, 2)}, v{VXB + b}, s[{SOUT}:{SOUT + 3}], 0 offen offset:{2048 * m}{OSC}")

    AC3, BP3, RC3 = 26, 64, 124
    acc = [26, 236, 244]
    bp = [64, 80, 0]
    bp[2] = POV
    rb = [120, 122, 252]
    rc = [42, 43, 44]

    def M(b, nb):
        pl, po = PLV + 12 * b, POV + 24 * b
        for s in range(6):
            if s:
                a(f"s_waitcnt vmcnt({5 - s + 11 * (nb - 1 - b)})")
            for h in range(2):
                d = vr(acc[b] + 4 * h, 4)
                a(f"{MF} {d}, {vr(AI + 4 * h, 4)}, {vr(po + 4 * s, 4)}, {'0' if s == 0 else d}")
            if s == 1:
                a(f"v_add_f32 v{rc[b]}, v{pl + 1}, v{pl + 3}")
            elif s > 1:
                a(f"v_add_f32 v{rc[b]}, v{rc[b]}, v{pl + 2 * s + 1}")
        a(f"v_rcp_f32 v{rc[b]}, v{rc[b]}")

    def B(b):
        for m in range(2):
            a(f"ds_bpermute_b32 v{rb[b] + m}, v{14 + m}, v{rc[b]}")
            for j in range(8):
                a(f"ds_bpermute_b32 v{bp[b] + 8 * m + j}, v{14 + m}, v{acc[b] + j}")

    def F(b, younger):
        ob = 56 + 4 * (b & 1) if b < 2 else 46
        for m in range(2):
            a(f"s_waitcnt lgkmcnt({min(15, younger + 9 * (1 - m))})")
            xa = XA + 8 * b + 4 * m
            q = bp[b] + 8 * m
            for r in range(4):
                a(f"v_cndmask_b32 v{q + r}, v{q + r}, v{q + 4 + r}, s[{SMK}:{SMK + 1}]")
                a(f"v_fmac_f32 v{xa + r}, v{q + r}, v{rb[b] + m}")
            for d in range(2):
                a(f"v_cvt_pk_bf16_f32 v{ob + 2 * m + d}, v{xa + 2 * d}, v{xa + 2 * d + 1}")
            a(f"buffer_store_dwordx2 {vr(ob + 2 * m, 2)}, v{VXB + b}, s[{SOUT}:{SOUT + 3}], 0 offen offset:{2048 * m}{OSC}")

    M(0, 3)
    M(1, 3)
    B(0)
    M(2, 3)
    B(1)
    F(0, 18)
    B(2)
    F(1, 18)
    F(2, 0)
    a("s_branch L_k2_done")
    a.label("L_no3")
    a("s_cbranch_vccnz L_no3g")
    a.seg("k2_no3")
    M(0, 2)
    M(1, 2)
    B(0)
    a("s_nop 0")
    B(1)
    F(0, 18)
    F(1, 0)
    a("s_branch L_k2_done")
    a.label("L_no3g")
    a("s_waitcnt vmcnt(0)")
    a.label("L_general")
    a.seg("k2_gen")
    for b in range(3):
        pl, po = PLV + 12 * b, POV + 24 * b
        if b == 2:
            a(f"s_cmp_gt_u32 s{S_SPLIT}, 3")
            a("s_cbranch_scc1 L_k2_done")
        a(f"s_waitcnt vmcnt({11 * (2 - b) + 2 * b})")
        a(f"v_max3_f32 v44, v{pl}, v{pl + 2}, v{pl + 4}")
        a(f"v_max3_f32 v44, v44, v{pl + 6}, v{pl + 8}")
        a(f"v_max_f32 v44, v44, v{pl + 10}")
        for s in range(6):
            a(f"v_sub_f32 v{pl + 2 * s}, v{pl + 2 * s}, v44")
        for s in range(6):
            a(f"v_exp_f32 v{pl + 2 * s}, v{pl + 2 * s}")
        a("s_nop 0")
        a(f"v_mul_f32 v45, v{pl}, v{pl + 1}")
        for s in range(1, 6):
            a(f"v_fmac_f32 v45, v{pl + 2 * s}, v{pl + 2 * s + 1}")
        a("v_rcp_f32 v45, v45")
        a("s_nop 0")
        for s in range(6):
            a(f"v_mul_f32 v{pl + 2 * s}, v{pl + 2 * s}, v45")
        for s in range(6):
            for d in range(4):
                r = po + 4 * s + d
                a(f"v_lshlrev_b32 v42, 16, v{r}")
                a(f"v_and_b32 v43, 0xffff0000, v{r}")
                op = "v_mul_f32" if s == 0 else "v_fmac_f32"
                a(f"{op} v{ACC + 2 * d}, v42, v{pl + 2 * s}")
                a(f"{op} v{ACC + 2 * d + 1}, v43, v{pl + 2 * s}")
        finish(b, None)
    a.label("L_k2_done")
    a("s_waitcnt vmcnt(0)")
    if cfg.get("tl"):
        a("s_waitcnt lgkmcnt(0)")
        a("s_mov_b64 exec, 1")
        a("v_lshrrev_b32 v1, 6, v0")
        a("v_lshlrev_b32 v1, 5, v1")
        a(f"s_lshl_b32 s90, s2, 7")
        a(f"s_add_u32 s90, s90, {TR + 3 * 0x40000}")
        for i, sr in enumerate((98, 62, 60, 88, 86, 100)):
            a(f"v_mov_b32 v{2 + i}, s{sr}")
        a(f"buffer_store_dwordx4 v[2:5], v1, {SRD}, s90 offen")
        a(f"buffer_store_dwordx2 v[6:7], v1, {SRD}, s90 offen offset:16")
    dbg_stamp(a, cfg, 5, 512, s=88, v=2)
    stamp_exit(a, cfg, 84, 2, SRD, TR)
    a.label("L_k2_end")
    a("s_endpgm")
    a.label("L_left")
    a.seg("k2_left0")
    lane_setup()
    a(f"v_add_u32 v{GLA}, {NGMAX * 256}, v{GLA}")
    a.label("L_left_loop")
    a.seg("k2_left")
    for b in range(3):
        a(f"ds_read_b128 {vr(64 + 4 * b, 4)}, v{GLA} offset:{b * RSZ + LOFF}")
    a(f"v_add_u32 v{GLA}, 256, v{GLA}")
    a("s_waitcnt lgkmcnt(0)")
    for b in range(3):
        for k in range(4):
            a(f"v_add_u32 v{64 + 4 * b + k}, v{64 + 4 * b + k}, v{GOFF}")
            a(f"buffer_load_dwordx4 {ar(ABUF + 16 * b + 4 * k, 4)}, v{64 + 4 * b + k}, {smp}, 0 offen offset:{12 - 4 * k}{LS()}")
    a("s_waitcnt vmcnt(0)")
    consume_all()
    a(f"""
    s_sub_u32 s{S_N}, s{S_N}, 1
    s_cmp_gt_i32 s{S_N}, 0
    s_cbranch_scc1 L_left_loop
    s_nop 7
    s_cmp_le_u32 s{S_MAXC}, {CAP}
    s_cbranch_scc1 L_gdone
    s_barrier
    s_branch L_car_t
    """)
    a.label("L_more2")
    a.seg("k2_more2")
    a("s_barrier")
    maxc()
    lane_setup()
    a("s_branch L_left_loop")
    a.label("L_redo")
    a.seg("k2_redo")
    a("s_waitcnt vmcnt(0)")
    a("s_barrier")
    a(f"s_mov_b32 s{S_MODE}, 1")
    a("s_branch L_k2_restart")
    a.label("L_own")
    a.seg("k2_ownx")
    a(f"s_ff1_i32_b32 s{S_T1}, s{S_T0}")
    a(f"s_lshl_b32 s{S_I}, s{S_W}, 2")
    a(f"s_add_u32 s{S_I}, s{S_I}, s{S_T1}")
    a(f"s_sub_u32 s{S_I}, s{S_I}, s{S_SPLIT}")
    a(f"s_mul_i32 s{S_I}, s{S_I}, 683")
    a(f"s_and_b32 s{S_I}, s{S_I}, 0x3000")
    a(f"v_add_u32 v42, s{S_I}, v{VL16}")
    for qb in range(1, NQ):
        a(f"s_cmp_eq_u32 s{S_T1}, {qb}")
        a(f"s_cbranch_scc1 L_own{qb}")
    for qb in range(NQ):
        a.label(f"L_own{qb}")
        a.seg(f"k2_own{qb}")
        for p in range(4):
            t = 26 + 4 * p
            for d in range(4):
                src = O + (qb * 8 + 2 * p) * 4 + 2 * d
                a(f"v_cvt_pk_bf16_f32 v{t + d}, v{src}, v{src + 1}")
            a(f"ds_write_b128 v42, {vr(t, 4)} offset:{1024 * p}")
        a("s_branch L_ownr")
    a.label("L_lo")
    a.seg("k2_lo")
    a(f"s_cmp_eq_u32 s{S_SPLIT}, 1")
    a("s_cbranch_scc1 L_lo1")

    def lo_softmax(qs):
        for qb in qs:
            for i in range(4):
                a(f"v_sub_f32 v{St(qb, 1) + i}, v{St(qb, 1) + i}, v{26 + qb}")
        for qb in qs:
            for i in range(4):
                a(f"v_exp_f32 v{St(qb, 1) + i}, v{St(qb, 1) + i}")
        for qb in qs:
            s0 = St(qb, 1)
            a(f"v_add_f32 v{L + qb}, v{s0}, v{s0 + 1}")
            a(f"v_cvt_pk_bf16_f32 v{P + 4 * qb}, v{s0}, v{s0 + 1}")
            a(f"v_add_f32 v{L + qb}, v{L + qb}, v{s0 + 2}")
            a(f"v_cvt_pk_bf16_f32 v{P + 4 * qb + 1}, v{s0 + 2}, v{s0 + 3}")
            a(f"v_add_f32 v{L + qb}, v{L + qb}, v{s0 + 3}")

    lo_softmax((2, 3))
    a("s_branch L_lo_ret")
    a.label("L_lo1")
    a.seg("k2_lo1")
    for qb in range(2):
        a(f"v_mov_b32 v{P + 4 * qb + 2}, 0")
        a(f"v_mov_b32 v{P + 4 * qb + 3}, 0")
    lo_softmax((0, 1))
    a("s_waitcnt vmcnt(8)")
    for x in pv_order("A"):
        a(mfma_pv(*x))
    a("s_branch L_lo_ret")
    emit_careful(a, "e", "L_ev_ret")
    emit_careful(a, "t", "L_more2")
    for tag, nkb in (("s", 2), ("sf", 2)):
        for X in "AB":
            emit_slow(a, X, nkb, tag + X)
    return dict(name=name, vgpr=512, accum=256, sgpr=102, grid=NWG, block=256, lds=RB + 4 * RSZ,
                chains=[["k2_pro0", "k2_pro", "k2_pro2", "k2_pro3", "body_m", "body_m", "k2_mid", "k2_mid2", "body_lf", "k2_chk", "k2_epi", "k2_fin"],
                        ["body_m", "k2_mid", "k2_ev", "body_m"], ["body_m", "k2_mid", "k2_evr", "body_m"], ["body_g2", "k2_gx", "k2_mid2", "body_lf"], ["k2_ev", "careful_e", "body_m"],
                        ["body_m", "k2_mid", "k2_evg", "body_g0", "body_g1", "body_g2", "body_g0", "body_g1", "body_g2", "k2_gx", "body_m"],
                        ["body_lf", "k2_chk", "k2_epi", "k2_redo", "k2_pro"], ["k2_pro2", "k2_lo", "k2_pro3", "body_m"], ["k2_pro2", "k2_lo1", "k2_pro3", "body_m"],
                        ["k2_pro", "k2_pro2", "k2_pro3", "k2_safe0", "body_s", "body_s", "k2_smid", "body_sf", "k2_chk", "k2_epi"],
                        ["k2_fin", "k2_gen"], ["k2_fin", "k2_no3"], ["k2_chk", "k2_ownx", "k2_own0", "k2_own1", "k2_own2", "k2_own3", "k2_epi"], ["k2_epi", "k2_left0", "k2_left", "k2_left", "k2_fin"], ["k2_left", "careful_t", "k2_more2", "k2_left"]] +
                       [["slow_" + t + X] for t in ("s", "sf") for X in "AB"])
```

```python
N = 10000
D = 128
E = 320000
QF = 0x0000000
KF = 0x0400000
VF = 0x0800000
MP = 0x0C00000
PO = 0x1000000
PL = 0x2800000
CNT = 0x3000000
LST = 0x3400000
OVF = 0x3800000
FLG = 0x3000000
TAB = 0x3100000
REC = 0x3200000
TR = 0x4000000
import os
GB = int(os.environ.get('GB', 64))
EPW = E // GB
NLD = -(-EPW // 1024)
RECS = NLD * 4096
WMO = 0x0F00000
```

```python
from layout import *
from asmlib import stamp_entry, stamp_exit, dbg_stamp
from k1 import emit_bucket, f2u, vr

MF = "v_mfma_f32_32x32x16_bf16"


def emit_k1(a, cfg):
    name = "k1_proj_kernel"
    NT = 80
    NWG = 3 * NT
    NBK = GB
    SC1 = {0: '', 1: ' sc1', 2: ' nt', 3: ' sc0 sc1'}[cfg.get('k1sc', 0)]
    a.raw(".text")
    a.raw(f".globl {name}\n.p2align 8\n.type {name},@function")
    a.label(name)
    a.seg("k1_a")
    SX, SW1, SW2, SWS = 4, 8, 12, 16
    S_JOB, S_BLK, S_W, S_T0, S_T1, S_SC = 20, 21, 22, 23, 24, 26
    S_O1, S_O2 = 28, 29
    XR = 64
    XF = 96
    H = 32
    D = 160
    VA = 8
    ws = f"s[{SWS}:{SWS + 3}]"

    def st(k):
        if cfg.get("k1tl"):
            a(f"s_memrealtime s[{48 + 2 * k}:{49 + 2 * k}]")

    a(f"""
    s_cmp_ge_u32 s2, {NWG + NBK}
    s_cbranch_scc1 L_k1_exit
    """)
    stamp_entry(a, cfg, 32)
    if cfg.get("dbg"):
        a("s_cmp_gt_u32 s2, 7")
        a("s_cbranch_scc1 L_k1_nod")
        dbg_stamp(a, cfg, 0, 0, inv=True, s=48, v=100)
        a.label("L_k1_nod")
    if cfg.get("spf"):
        a(f"""
        s_getpc_b64 s[36:37]
        L_k1_pc2:
        s_sub_u32 s36, s36, L_k1_pc2 - k1_proj_kernel
        s_subb_u32 s37, s37, 0
        s_lshr_b32 s34, s2, 3
        s_and_b32 s34, s34, 15
        s_lshl_b32 s34, s34, 10
        v_lshl_add_u32 v236, v0, 2, s34
        global_load_dword v237, v236, s[36:37]
        """)
    BL = cfg.get("blast", 0)
    if BL:
        a(f"s_sub_u32 s2, s2, {NWG}")
    a(f"s_cmp_lt_u32 s2, {NBK}")
    a("s_cbranch_scc1 L_k1_bucket")
    if BL:
        a(f"s_add_u32 s2, s2, {NWG + NBK}")
    if cfg.get("prio"):
        a("s_setprio 3")
    a(f"""
    s_sub_u32 s25, s2, {NBK}
    s_mul_i32 s{S_T0}, s25, 820
    s_lshr_b32 s{S_T0}, s{S_T0}, 16            ; wg / 80
    s_mul_i32 s3, s{S_T0}, 80
    s_sub_u32 s3, s25, s3                      ; tile
    s_lshl_b32 s{S_T0}, s{S_T0}, 2
    s_lshr_b32 s{S_JOB}, {cfg.get("jobs", 0x102)}, s{S_T0}
    s_and_b32 s{S_JOB}, s{S_JOB}, 3
    s_mov_b32 s{S_T0}, 40
    s_cmp_eq_u32 s{S_JOB}, 1
    s_cselect_b32 s{S_T0}, 56, s{S_T0}
    s_cmp_eq_u32 s{S_JOB}, 2
    s_cselect_b32 s{S_T0}, 32, s{S_T0}
    s_cmp_eq_u32 s{S_JOB}, 0
    s_cselect_b32 s{S_T1}, 48, 64
    s_load_dwordx2 s[{SX}:{SX + 1}], s[0:1], 0
    s_load_dwordx2 s[{SW1}:{SW1 + 1}], s[0:1], s{S_T0}
    s_load_dwordx2 s[{SW2}:{SW2 + 1}], s[0:1], s{S_T1}
    s_load_dwordx2 s[{SWS}:{SWS + 1}], s[0:1], 88
    v_lshrrev_b32 v1, 6, v0
    v_and_b32 v2, 63, v0                      ; lane
    v_readfirstlane_b32 s{S_W}, v1
    s_mov_b32 s{SX + 2}, {N * 256}
    s_mov_b32 s{SX + 3}, 0x00020000
    s_mov_b32 s{SW1 + 2}, 32768
    s_mov_b32 s{SW1 + 3}, 0x00020000
    s_mov_b32 s{SW2 + 2}, 32768
    s_mov_b32 s{SW2 + 3}, 0x00020000
    s_mov_b32 s{SWS + 2}, 0x10000000
    s_mov_b32 s{SWS + 3}, 0x00020000
    s_lshl_b32 s{S_BLK}, s3, 2
    s_add_u32 s{S_BLK}, s{S_BLK}, s{S_W}
    s_lshl_b32 s{S_BLK}, s{S_BLK}, 13          ; *8192 bytes
    s_add_u32 s{S_O2}, s{S_BLK}, 4096
    v_and_b32 v3, 31, v2                       ; n
    v_lshrrev_b32 v4, 5, v2                    ; h
    v_lshrrev_b32 v6, 4, v2                    ; g
    v_and_b32 v7, 15, v2                       ; t
    v_lshlrev_b32 v16, 2, v6
    v_xor_b32 v16, v16, v7
    v_lshlrev_b32 v16, 4, v16
    v_lshl_add_u32 v16, v6, 8, v16
    v_xor_b32 v17, v6, v7
    v_lshlrev_b32 v17, 4, v17
    v_lshl_add_u32 v17, v6, 8, v17
    v_xor_b32 v18, 64, v17
    v_xor_b32 v19, 128, v17
    v_xor_b32 v20, 192, v17
    s_lshl_b32 s{S_T0}, s{S_W}, 13             ; w*8192
    s_add_u32 s{S_T1}, s{S_T0}, 4096
    s_add_u32 m0, s{S_T0}, 0x8000
    s_waitcnt lgkmcnt(0)
    s_and_b32 s{SX + 1}, s{SX + 1}, 0xffff
    s_and_b32 s{SW1 + 1}, s{SW1 + 1}, 0xffff
    s_and_b32 s{SW2 + 1}, s{SW2 + 1}, 0xffff
    s_and_b32 s{SWS + 1}, s{SWS + 1}, 0xffff
    """)
    st(0)
    for k in range(4):
        a(f"buffer_load_dwordx4 v{17 + k}, s[{SX}:{SX + 3}], s{S_BLK} offen offset:{1024 * k} lds")
    a(f"s_add_u32 m0, s{S_T1}, 0x8000")
    a("s_nop 0")
    for k in range(4):
        a(f"buffer_load_dwordx4 v{17 + k}, s[{SX}:{SX + 3}], s{S_O2} offen offset:{1024 * k} lds")

    def wdma(srd, base):
        for half, so in ((0, S_T0), (1, S_T1)):
            a(f"s_add_u32 m0, s{so}, {base}")
            a("s_nop 0")
            for k in range(4):
                a(f"buffer_load_dwordx4 v16, s[{srd}:{srd + 3}], s{so} offen offset:{1024 * k} lds")

    wdma(SW1, 0)
    a(f"""
    v_mov_b32 v21, 0
    v_lshlrev_b32 v22, 2, v0
    s_lshl_b32 s{S_O1}, s25, 7
    s_add_u32 s{S_O1}, s{S_O1}, {FLG}
    v_cmp_gt_u32 vcc, 32, v0
    s_and_saveexec_b64 s[30:31], vcc
    s_cbranch_execz L_k1_nz
    buffer_store_dword v21, v22, {ws}, s{S_O1} offen
    """)
    a.label("L_k1_nz")
    a(f"""
    s_mov_b64 exec, s[30:31]
    v_and_b32 v21, 15, v3
    v_xor_b32 v21, v21, v4
    v_lshlrev_b32 v21, 4, v21
    v_lshl_add_u32 v21, v3, 8, v21
    v_add_u32 v21, s{S_T0}, v21
    v_lshrrev_b32 v17, 2, v7                   ; r = t>>2
    v_lshrrev_b32 v18, 1, v6                   ; hh = g>>1
    v_and_b32 v19, 1, v6                       ; g&1
    v_lshlrev_b32 v20, 6, v17                  ; r*64
    v_lshl_add_u32 v20, v19, 5, v20            ; + (g&1)*32
    v_and_b32 v22, 3, v7
    v_lshl_add_u32 v20, v22, 3, v20            ; + (t&3)*8
    v_lshl_add_u32 v20, v17, 8, v20            ; + r*256
    v_lshl_add_u32 v{VA}, v18, 11, v20
    v_lshl_add_u32 v{VA + 4}, v18, 10, v20
    """)
    for i in range(1, 4):
        a(f"v_xor_b32 v{VA + i}, {i << 6}, v{VA}")
        a(f"v_xor_b32 v{VA + 4 + i}, {i << 6}, v{VA + 4}")
    for s in range(1, 8):
        a(f"v_xor_b32 v{224 + s}, {s << 5}, v21")
    if cfg.get("cpf"):
        a(f"""
        s_lshl_b32 s34, s25, 2
        s_add_u32 s34, s34, s{S_W}
        s_cmp_ge_u32 s34, {cfg["cpf"]}
        s_cbranch_scc1 L_k1_nocpf
        s_getpc_b64 s[36:37]
        L_k1_pc:
        s_add_u32 s36, s36, k2_attn_kernel - L_k1_pc
        s_addc_u32 s37, s37, 0
        s_lshl_b32 s34, s34, 10
        v_lshl_add_u32 v22, v2, 4, s34
        global_load_dwordx4 v[232:235], v22, s[36:37]
        s_waitcnt vmcnt(9)
        s_branch L_k1_xw
        L_k1_nocpf:
        """)
    a("s_waitcnt vmcnt(8)")
    a.label("L_k1_xw")
    st(1)
    for s in range(8):
        a(f"ds_read_b128 {vr(XR + 4 * s, 4)}, v{21 if s == 0 else 224 + s} offset:32768")
    a("s_waitcnt lgkmcnt(0)")
    wdma(SW2, 0x8000)
    a.seg("k1_b")
    for i in range(32):
        a(f"v_lshlrev_b32 v{XF + 2 * i}, 16, v{XR + i}")
        a(f"v_and_b32 v{XF + 2 * i + 1}, 0xffff0000, v{XR + i}")
    AC = 22
    a(f"v_pk_add_f32 {vr(AC, 2)}, {vr(XF, 2)}, {vr(XF + 2, 2)}")
    a(f"v_pk_add_f32 {vr(AC + 2, 2)}, {vr(XF + 4, 2)}, {vr(XF + 6, 2)}")
    for i in range(4, 32):
        t = AC + 2 * (i & 1)
        a(f"v_pk_add_f32 {vr(t, 2)}, {vr(t, 2)}, {vr(XF + 2 * i, 2)}")
    a(f"v_pk_add_f32 {vr(AC, 2)}, {vr(AC, 2)}, {vr(AC + 2, 2)}")
    a(f"v_add_f32 v{AC}, v{AC}, v{AC + 1}")

    def xhalf_sum(r, t):
        a(f"v_mov_b32 v{t}, v{r}")
        a("s_nop 1")
        a(f"v_permlane32_swap_b32 v{r}, v{t}")
        a("s_nop 1")
        a(f"v_add_f32 v{r}, v{r}, v{t}")

    xhalf_sum(AC, AC + 1)
    a(f"v_mul_f32 v26, {hex(f2u(-1.0 / 128))}, v{AC}")
    a("v_mov_b32 v27, v26")
    for i in range(32):
        a(f"v_pk_add_f32 {vr(XF + 2 * i, 2)}, {vr(XF + 2 * i, 2)}, v[26:27]")
    a(f"v_pk_mul_f32 {vr(AC, 2)}, {vr(XF, 2)}, {vr(XF, 2)}")
    a(f"v_pk_mul_f32 {vr(AC + 2, 2)}, {vr(XF + 2, 2)}, {vr(XF + 2, 2)}")
    for i in range(2, 32):
        t = AC + 2 * (i & 1)
        a(f"v_pk_fma_f32 {vr(t, 2)}, {vr(XF + 2 * i, 2)}, {vr(XF + 2 * i, 2)}, {vr(t, 2)}")
    a(f"v_pk_add_f32 {vr(AC, 2)}, {vr(AC, 2)}, {vr(AC + 2, 2)}")
    a(f"v_add_f32 v{AC}, v{AC}, v{AC + 1}")
    xhalf_sum(AC, AC + 1)

    def rnd(r):
        a(f"v_cvt_pk_bf16_f32 v{r}, v{r}, v{r}")
        a(f"v_lshlrev_b32 v{r}, 16, v{r}")

    a(f"v_mul_f32 v{AC}, {hex(f2u(1.0 / 128))}, v{AC}")
    rnd(AC)
    a(f"v_add_f32 v{AC}, {hex(f2u(1e-5))}, v{AC}")
    rnd(AC)
    a(f"v_sqrt_f32 v{AC}, v{AC}")
    a(f"v_cvt_pk_bf16_f32 v24, v26, v26")
    rnd(AC)
    a(f"v_rcp_f32 v28, v{AC}")
    a(f"v_lshlrev_b32 v24, 16, v24")
    a(f"v_sub_f32 v24, v24, v26")
    a(f"v_mov_b32 v29, v28")
    a(f"v_mul_f32 v24, v24, v28")
    a(f"v_mov_b32 v25, v24")
    for i in range(32):
        a(f"v_pk_fma_f32 {vr(XF + 2 * i, 2)}, {vr(XF + 2 * i, 2)}, v[28:29], v[24:25]")
    for i in range(32):
        a(f"v_cvt_pk_bf16_f32 v{H + i}, v{XF + 2 * i}, v{XF + 2 * i + 1}")
    c = 1.4426950408889634 / 128 ** 0.5
    a(f"s_mov_b32 s{S_SC}, {hex(f2u(c))}")
    a(f"s_cmp_eq_u32 s{S_JOB}, 0")
    a(f"s_cselect_b32 s{S_SC}, s{S_SC}, 1.0")
    st(2)
    a("s_waitcnt vmcnt(8)")
    a("s_barrier")
    st(3)
    WB = [XF, XF + 32]

    def reads(i, buf, addr, base, second):
        for s in range(8):
            a(f"ds_read_b64_tr_b16 {vr(buf + 4 * s, 2)}, v{addr + i} offset:{base + 4096 * s}")
            a(f"ds_read_b64_tr_b16 {vr(buf + 4 * s + 2, 2)}, v{addr + i} offset:{base + 4096 * s + second}")

    def rd(i, s, buf, addr, base, second):
        return [f"ds_read_b64_tr_b16 {vr(buf + 4 * s, 2)}, v{addr + i} offset:{base + 4096 * s}",
                f"ds_read_b64_tr_b16 {vr(buf + 4 * s + 2, 2)}, v{addr + i} offset:{base + 4096 * s + second}"]

    def gemm(addr, base, second, other, w_is_a, first_issued=False, fill=None):
        if not first_issued:
            reads(0, WB[0], addr, base, second)
        for i in range(4):
            fl = list(fill[i]) if fill else []
            per = -(-len(fl) // 6)
            fl = [None] * (2 * per) + fl
            for s in range(8):
                young = 2 * (7 - s) + (2 * s if i < 3 else 0)
                a(f"s_waitcnt lgkmcnt({min(young, 15)})")
                w = vr(WB[i & 1] + 4 * s, 4)
                o = vr(other + 4 * s, 4)
                A, B = (w, o) if w_is_a else (o, w)
                d = vr(D + 16 * i, 16)
                a(f"{MF} {d}, {A}, {B}, {'0' if s == 0 else d}")
                if i < 3:
                    for t in rd(i + 1, s, WB[(i + 1) & 1], addr, base, second):
                        a(t)
                for t in fl[per * s:per * (s + 1)]:
                    if t:
                        a(t)

    G1 = XR

    def pack1(i, scale):
        out = []
        for k in range(8):
            b = D + 16 * i + 2 * k
            if scale:
                out.append(f"v_mul_f32 v{b}, s{S_SC}, v{b}")
                out.append(f"v_mul_f32 v{b + 1}, s{S_SC}, v{b + 1}")
            out.append(f"v_cvt_pk_bf16_f32 v{G1 + 8 * i + k}, v{b}, v{b + 1}")
        return out

    gemm(VA, 0, 1024, H, True, fill=[[]] + [pack1(i, True) for i in range(3)])
    st(4)
    a("s_waitcnt vmcnt(0)")
    a("s_barrier")
    a(f"s_cmp_lg_u32 s{S_JOB}, 0")
    a("s_cbranch_scc1 L_k1_second")
    a.seg("k1_qk")
    a(f"""
    v_lshrrev_b32 v17, 4, v3
    v_lshlrev_b32 v17, 12, v17
    v_and_b32 v18, 15, v3
    v_lshl_add_u32 v17, v18, 4, v17
    v_lshl_add_u32 v17, v4, 8, v17
    s_add_u32 s{S_O1}, s{S_BLK}, {QF}
    s_add_u32 s{S_O2}, s{S_BLK}, {KF}
    """)
    reads(0, WB[0], VA, 32768, 1024)

    def qkst(i, so):
        return [f"buffer_store_dwordx4 {vr(G1 + 8 * i + 4 * k, 4)}, v17, {ws}, s{so} offen offset:{1024 * i + 512 * k}{SC1}" for k in range(2)]

    for i in range(3):
        for t in qkst(i, S_O1):
            a(t)
    for t in pack1(3, True) + qkst(3, S_O1):
        a(t)
    gemm(VA, 32768, 1024, H, True, first_issued=True, fill=[[]] + [pack1(i, False) + qkst(i, S_O2) for i in range(3)])
    a("s_nop 7")
    a("s_nop 3")
    st(5)
    for t in pack1(3, False) + qkst(3, S_O2):
        a(t)
    a("s_branch L_k1_end")
    a.label("L_k1_second")
    a.seg("k1_c")
    reads(0, WB[0], VA + 4, 32768, 2048)
    for t in pack1(3, False):
        a(t)
    a(f"s_cmp_eq_u32 s{S_JOB}, 2")
    a("s_cbranch_scc1 L_k1_m")

    def pack2(i, st_):
        out = []
        for kk in range(2):
            t = H + 4 * (2 * i + kk)
            b = D + 16 * i + 4 * kk
            for d, src in enumerate([b, b + 2, b + 8, b + 10]):
                out.append(f"v_cvt_pk_bf16_f32 v{t + d}, v{src}, v{src + 1}")
            out.append(st_(i, kk, t))
        return out

    a.seg("k1_v")
    a(f"""
    v_lshrrev_b32 v17, 4, v3
    v_lshlrev_b32 v17, 10, v17
    v_and_b32 v18, 15, v3
    v_lshl_add_u32 v17, v18, 4, v17
    v_lshl_add_u32 v17, v4, 8, v17
    s_add_u32 s{S_O1}, s{S_BLK}, {VF}
    s_add_u32 s{S_O2}, s{S_O1}, 4096
    """)
    vst = lambda i, kk, t: f"buffer_store_dwordx4 {vr(t, 4)}, v17, {ws}, s{S_O1 if i < 2 else S_O2} offen offset:{(i & 1) * 2048 + kk * 512}{SC1}"
    gemm(VA + 4, 32768, 2048, G1, False, first_issued=True, fill=[[]] + [pack2(i, vst) for i in range(3)])
    a("s_nop 7")
    a("s_nop 3")
    st(5)
    for t in pack2(3, vst):
        a(t)
    a("s_branch L_k1_end")
    a.label("L_k1_m")
    a.seg("k1_m")
    a(f"""
    s_add_u32 s{S_O1}, s{S_BLK}, {MP}
    s_add_u32 s{S_O2}, s{S_O1}, 4096
    v_xor_b32 v17, v6, v7
    v_lshlrev_b32 v17, 4, v17
    v_lshl_add_u32 v17, v6, 8, v17
    v_add_u32 v17, s{S_T0}, v17
    v_xor_b32 v18, 64, v17
    v_xor_b32 v19, 128, v17
    v_xor_b32 v20, 192, v17
    v_lshlrev_b32 v16, 4, v2
    """)
    nost = lambda i, kk, t: "s_nop 0"
    gemm(VA + 4, 32768, 2048, G1, True, first_issued=True, fill=[[]] + [pack2(i, nost) for i in range(3)])
    for s in range(6):
        a(f"ds_write_b128 v{21 if s == 0 else 224 + s}, {vr(H + 4 * s, 4)}")
    a("s_nop 5")
    st(5)
    for t in pack2(3, lambda i, kk, t: f"ds_write_b128 v{224 + 2 * i + kk}, {vr(t, 4)}"):
        a(t)
    a("s_waitcnt lgkmcnt(0)")
    for k in range(8):
        a(f"ds_read_b128 {vr(XF + 4 * k, 4)}, v{17 + (k & 3)} offset:{1024 * k}")
    for k in range(8):
        a(f"s_waitcnt lgkmcnt({7 - k})")
        a(f"buffer_store_dwordx4 {vr(XF + 4 * k, 4)}, v16, {ws}, s{S_O1 if k < 4 else S_O2} offen offset:{1024 * (k & 3)}{SC1}")
    a("s_branch L_k1_end")
    emit_bucket(a, cfg, SWS)
    if BL:
        a(f"s_add_u32 s2, s2, {NWG + NBK}")
    a.label("L_k1_end")
    if BL:
        a(f"s_sub_u32 s2, s2, {NBK}")
    if cfg.get("k1tl"):
        a("s_memrealtime s[60:61]")
        a("s_waitcnt lgkmcnt(0)")
        a("v_lshrrev_b32 v1, 6, v0")
        a("v_lshlrev_b32 v1, 5, v1")
        a(f"s_lshl_b32 s40, s2, 7")
        a(f"s_add_u32 s40, s40, {TR + 0x40000}")
        for i in range(7):
            a(f"v_mov_b32 v{2 + i}, s{48 + 2 * i}")
        a(f"buffer_store_dwordx4 v[2:5], v1, {ws}, s40 offen")
        a(f"buffer_store_dwordx4 v[6:9], v1, {ws}, s40 offen offset:16")
    if cfg.get("dbg"):
        a("s_waitcnt vmcnt(0)")
    dbg_stamp(a, cfg, 1, 0, s=48, v=100)
    stamp_exit(a, cfg, 32, 0, ws, TR)
    a.label("L_k1_exit")
    a("s_endpgm")
    return dict(name=name, vgpr=240, accum=240, sgpr=64, grid=NWG + NBK, block=256, lds=65536,
                chains=[["k1_a", "k1_b", "k1_qk"], ["k1_b", "k1_c", "k1_v"], ["k1_b", "k1_c", "k1_m"], ["k1_bk"]])
```

```python
from layout import *
from asmlib import stamp_entry, stamp_exit, dbg_stamp

CFG = {}
MF = "v_mfma_f32_16x16x32_bf16"
NWG = 240
NQ = 4
CAP = 72
NGMAX = 15
NSLOT = 24

O, S, NM, P, E_, T, L = 128, 64, 96, 112, 26, 42, 52
VLDS, VL16, VT, VT2, VT3, VOOB = 20, 21, 22, 23, 24, 25
RC, VREM, VSEG, BT = 26, 50, 51, 56
AQ, AK, AV = 0, 64, 96
S_SRD = 4
S_W, S_SRC, S_M0, S_CNT, S_THR, S_SPLIT, S_QT, S_T0, S_T1 = 8, 9, 10, 11, 12, 13, 14, 15, 16
S_LEFT, S_EV, S_NB, S_MODE = 17, 18, 19, 30
S_Q0 = 20
S_PO, S_PL, S_SRC0, S_U = 24, 25, 26, 27
S_K0, S_FV = 28, 29
S_PA = 56
S_V1 = 3
S_OWN = 31
SRD = f"s[{S_SRD}:{S_SRD + 3}]"
SKV = 80
KVS = "s[80:83]"
LDS_FLAG = 131072
ABUF, AAG, AAH, AXV, ADI = 128, 176, 200, 208, 220
GI, GOFF, GLA = 26, 13, 14
SMP = 44
RB = 131072 + 256
LOFF = 384
RSZ = LOFF + CAP * 64 + 384
SENT = 0x7fffff00


def LS():
    return " sc1" if CFG.get("ls") else ""


def vr(b, n):
    return f"v[{b}:{b + n - 1}]"


def ar(b, n):
    return f"a[{b}:{b + n - 1}]"


def qbs(X):
    return [0, 1] if X == "A" else [2, 3]


def St(qb, kb):
    return S + (qb * 2 + kb) * 4


def mfma_qk(qb, kb, s, czero=False):
    d = vr(St(qb, kb), 4)
    c = ("0" if czero else vr(NM + 4 * qb, 4)) if s == 0 else d
    return f"{MF} {d}, {ar(AK + (kb * 4 + s) * 4, 4)}, {ar(AQ + (qb * 4 + s) * 4, 4)}, {c}"


def mfma_pv(qb, db):
    o = vr(O + (qb * 8 + db) * 4, 4)
    return f"{MF} {o}, {ar(AV + 4 * db, 4)}, {vr(P + 4 * qb, 4)}, {o}"


def qk_order(X, nkb=2):
    return [(qb, kb, s) for s in range(4) for kb in range(nkb) for qb in qbs(X)]


def pv_order(X):
    return [(qb, db) for qb in qbs(X) for db in range(8)]


class Op:
    def __init__(self, text, cost, est=0, lst=10 ** 6, deps=(), stream=None):
        self.text, self.cost, self.est, self.lst, self.deps, self.stream = text, cost, est, lst, list(deps), stream
        self.pos = None


def sm_group(X, nkb, tag, chk, rdy, dl):
    ops = []
    idx = 0
    q = qbs(X)
    lastadd = {}
    prev_small = None
    for qb in q:
        d = dl[qb] if not chk else min(dl.values())
        if nkb == 1:
            for k in (2, 3):
                ops.append(Op(f"v_mov_b32 v{P + 4 * qb + k}, 0", 4, rdy["p", qb], d - 1, stream="s" + X))
        for kb in range(nkb):
            for pr in range(2):
                s0 = St(qb, kb) + 2 * pr
                e0, e1 = (E_ + (2 * idx) % 16, E_ + (2 * idx + 1) % 16) if chk else (s0, s0 + 1)
                x0 = Op(f"v_exp_f32 v{e0}, v{s0}", 8, rdy[qb, kb], d - 2, stream="x" + X)
                x1 = Op(f"v_exp_f32 v{e1}, v{s0 + 1}", 8, rdy[qb, kb], d - 2, stream="x" + X)
                ops += [x0, x1]
                acc = (T if chk else L) + qb
                dadd = d - 1 if chk else dl["end"]
                c = Op(f"v_cvt_pk_bf16_f32 v{P + 4 * qb + 2 * kb + pr}, v{e0}, v{e1}", 4, rdy["p", qb], d - 1, [x0, x1], stream="c" + X)
                if chk and qb not in lastadd:
                    a1 = Op(f"v_add_f32 v{acc}, v{e0}, v{e1}", 4, 0, dadd, [x0, x1], stream="a" + X)
                    ops += [a1, c]
                else:
                    a0 = Op(f"v_add_f32 v{acc}, v{acc}, v{e0}", 4, 0, dadd, [x0], stream="a" + X)
                    a1 = Op(f"v_add_f32 v{acc}, v{acc}, v{e1}", 4, 0, dadd, [x1], stream="a" + X)
                    ops += [a0, a1, c]
                lastadd[qb] = a1
                lastc = c
                idx += 1
    if chk:
        d = min(dl.values())
        m = Op(f"v_max_f32 v{VT}, v{T + q[0]}, v{T + q[1]}", 4, 0, d, list(lastadd.values()), stream="a" + X)
        c = Op(f"v_cmp_lt_f32 vcc, s{S_THR}, v{VT}", 4, 0, d, [m], stream="a" + X)
        b = Op(f"s_cbranch_vccnz L_slow_{tag}\nL_back_{tag}:", 0, 0, d, [c, lastc], stream="a" + X)
        ops += [m, c, b]
        for qb in q:
            ops.append(Op(f"v_add_f32 v{L + qb}, v{L + qb}, v{T + qb}", 4, 0, dl["end"], [b], stream="a" + X))
    return ops


def schedule(ops, nm, base=8):
    streams = {}
    for o in ops:
        streams.setdefault(o.stream, []).append(o)
    best = None
    for nextra in range(0, 3 * nm):
        for o in ops:
            o.pos = None
        cap = [base + 4 * ((g + 1) * nextra // nm - g * nextra // nm) for g in range(nm)]
        head = {s: 0 for s in streams}
        out = [[] for _ in range(nm)]
        pos = 0
        ok = True
        for g in range(nm):
            pos += 1
            rem = cap[g]
            while True:
                cand = []
                for s, lst in streams.items():
                    if head[s] >= len(lst):
                        continue
                    o = lst[head[s]]
                    if o.est > g:
                        continue
                    if CFG.get("ds1") and s == "l" and any(t.startswith(("ds_", "buffer")) for t in out[g]) and o.lst > g:
                        continue
                    if any(d.pos is None or pos - d.pos < (CFG.get('xd', 2) if d.cost == 8 else 1) for d in o.deps):
                        continue
                    urg = 10 ** 9
                    acc = 0
                    for o2 in lst[head[s]:]:
                        acc += o2.cost
                        urg = min(urg, (o2.lst - g + 1) * base * o2_share(s) - acc)
                    cand.append((urg, s, o))
                if not cand:
                    break
                cand.sort(key=lambda c: c[0])
                pick = None
                for urg, s, o in cand:
                    if o.cost <= rem or o.lst <= g:
                        pick = (s, o)
                        break
                if pick is None:
                    break
                s, o = pick
                out[g].append(o.text)
                o.pos = pos
                pos += 1
                head[s] += 1
                rem -= o.cost
                if rem <= 0 and not any(streams[t][head[t]].lst <= g or streams[t][head[t]].cost == 0
                                        for t in streams if head[t] < len(streams[t])):
                    break
            if any(head[s] < len(l) and l[head[s]].lst <= g for s, l in streams.items()):
                ok = False
                break
        if ok and all(head[s] == len(l) for s, l in streams.items()):
            cost = {o.text: o.cost for o in ops}
            tot = sum(max(16, 8 + sum(cost[t] for t in out[g])) for g in range(nm))
            if best is None or tot < best[0]:
                best = (tot, out, nextra)
            if nextra > best[2] + 6:
                break
    if best is None:
        raise RuntimeError("cannot schedule")
    return best


def o2_share(s):
    return {"x": 0.5, "a": 0.3, "c": 0.3, "s": 0.3}.get(s[0], 0.3)


def emit_rowmax(a, qb, nkb, dst):
    s = St(qb, 0)
    a(f"v_max3_f32 v{dst}, v{s}, v{s + 1}, v{s + 2}")
    if nkb == 2:
        a(f"v_max3_f32 v{dst}, v{dst}, v{s + 3}, v{s + 4}")
        a(f"v_max3_f32 v{dst}, v{dst}, v{s + 5}, v{s + 6}")
        a(f"v_max_f32 v{dst}, v{dst}, v{s + 7}")
    else:
        a(f"v_max_f32 v{dst}, v{dst}, v{s + 3}")
    for sw in ("v_permlane32_swap_b32", "v_permlane16_swap_b32"):
        a(f"v_mov_b32 v{VT3}, v{dst}")
        a("s_nop 1")
        a(f"{sw} v{dst}, v{VT3}")
        a("s_nop 1")
        a(f"v_max_f32 v{dst}, v{dst}, v{VT3}")


def emit_slow(a, X, nkb, tag):
    a.seg("slow_" + tag)
    a.label(f"L_slow_{tag}")
    a("s_nop 15")
    for qb in qbs(X):
        emit_rowmax(a, qb, nkb, VT)
        a(f"v_max_f32 v{VT}, 0, v{VT}")
        a(f"v_exp_f32 v{VT2}, -v{VT}")
        a("s_nop 0")
        a(f"v_mul_f32 v{L + qb}, v{L + qb}, v{VT2}")
        for i in range(32):
            o = O + qb * 32 + i
            a(f"v_mul_f32 v{o}, v{o}, v{VT2}")
        for i in range(4):
            a(f"v_sub_f32 v{NM + 4 * qb + i}, v{NM + 4 * qb + i}, v{VT}")
        for k in range(2 * nkb):
            s = St(qb, 0) + 2 * k
            a(f"v_sub_f32 v{s}, v{s}, v{VT}")
            a(f"v_sub_f32 v{s + 1}, v{s + 1}, v{VT}")
            a(f"v_exp_f32 v{E_}, v{s}")
            a(f"v_exp_f32 v{E_ + 1}, v{s + 1}")
            a("s_nop 0")
            if k == 0:
                a(f"v_add_f32 v{T + qb}, v{E_}, v{E_ + 1}")
            else:
                a(f"v_add_f32 v{T + qb}, v{T + qb}, v{E_}")
                a(f"v_add_f32 v{T + qb}, v{T + qb}, v{E_ + 1}")
            a(f"v_cvt_pk_bf16_f32 v{P + 4 * qb + k}, v{E_}, v{E_ + 1}")
    a("s_nop 7")
    a(f"s_branch L_back_{tag}")


def emit_body(a, cfg, tag, chk, last=False, nkb=2, gb=None, loop=None):
    PF = cfg["PF"]
    lead = cfg.get("lead", 3)
    mg = cfg.get("mg", 0)
    pvB, qkB, pvA, qkA = pv_order("B"), qk_order("B", nkb), pv_order("A"), qk_order("A")
    mf = [mfma_pv(*x) for x in pvB] + [mfma_qk(*x) for x in qkB]
    pA0 = len(mf)
    mf += [mfma_pv(*x) for x in pvA]
    qA0 = len(mf)
    if not last:
        mf += [mfma_qk(*x) for x in qkA]
    gpos = []
    if gb is not None:
        for k, at in enumerate(cfg.get("gslots", [40, 47, 54, 61])):
            d = ar(AAG + 8 * gb + 4 * (k >> 1), 4)
            mf.insert(at, f"{MF} {d}, {ar(AAH + 4 * (k & 1), 4)}, {ar(ABUF + 16 * gb + 4 * k, 4)}, {d}")
            gpos.append(at)
            if at <= qA0:
                qA0 += 1
    nm = len(mf)
    ops = []
    lds = []
    if gb is not None:
        lds.append(Op(f"ds_read_b128 {vr(GI, 4)}, v{GLA} offset:{gb * RSZ + LOFF}", 4, 2, 7, stream="l"))
        for k, at in enumerate(gpos):
            ad = Op(f"v_add_u32 v{GI + k}, v{GI + k}, v{GOFF}", 4, pA0, at - 1, stream="g")
            ops += [ad, Op(f"buffer_load_dwordx4 {ar(ABUF + 16 * gb + 4 * k, 4)}, v{GI + k}, s[{SMP}:{SMP + 3}], 0 offen offset:{12 - 4 * k}{LS()}",
                           cfg.get("dmacost", 8), at, at, [ad], stream="g")]
        if gb == 2:
            ops.append(Op(f"v_add_u32 v{GLA}, 256, v{GLA}", 4, 10, nm - 1, stream="y"))
    for db in range(8):
        lds.append(Op(f"ds_read_b128 {ar(AV + 4 * db, 4)}, v{VLDS} offset:{8192 + 1024 * db}", 4, 8 + db, pA0 - 6, stream="l"))
    if not last:
        kf = sorted(range(8), key=lambda f: max(i for i, x in enumerate(qkB) if x[1] * 4 + x[2] == f))
        for n, f in enumerate(kf):
            g = 16 + max(i for i, x in enumerate(qkB) if x[1] * 4 + x[2] == f)
            lds.append(Op(f"ds_read_b128 {ar(AK + 4 * f, 4)}, v{VLDS} offset:{1024 * f}", 4, g, qA0 - 6, stream="l"))
        adv = Op(f"v_add_u32 v{VLDS}, 0x4000, v{VLDS}", 4, 0, nm - 1, [lds[-1]], stream="z")
        ops += [adv, Op(f"v_and_b32 v{VLDS}, 0x1ffff, v{VLDS}", 4, 0, nm - 1, [adv], stream="z")]
        dg = cfg.get("dgaps", [0, 1, 33, 34])
        for k in range(4):
            ops.append(Op(f"buffer_load_dwordx4 v{VL16}, {KVS}, s{S_SRC} offen offset:{1024 * k}{LS()} lds", cfg.get("dmacost", 8),
                          dg[k], dg[k], stream="d"))
    ops += lds
    finA = {}
    for i, (qb, kb, s_) in enumerate(qkA):
        finA[qb, kb] = i
    rdy = {t: max(0, finA[t] - len(qkA) + 1 + lead) for t in finA}
    rdy["p", 0] = rdy["p", 1] = 0
    ops += sm_group("A", nkb, tag + "A", chk, rdy, {0: pA0 - 1 - mg, 1: pA0 + 7 - mg, "end": qA0 - 2})
    finB = {}
    for i, (qb, kb, s_) in enumerate(qkB):
        finB[qb, kb] = i
    rdy = {t: 16 + finB[t] + 1 + lead for t in finB}
    rdy["p", 2], rdy["p", 3] = 8, 16
    ops += sm_group("B", nkb, tag + "B", chk, rdy, {2: nm - 1 - mg, 3: nm - 1, "end": nm - 1})
    tot, gaps, nx = schedule(ops, nm)
    if cfg.get("verbose"):
        print("body", tag, "model cycles", tot, "extra", nx)
    if cfg.get("memfirst"):
        for g in range(nm):
            gaps[g].sort(key=lambda t: 0 if t.startswith(("ds_", "buffer")) else 1)
    if cfg.get("explast"):
        for g in range(nm):
            if not any("L_back" in t for t in gaps[g]):
                gaps[g].sort(key=lambda t: 1 if t.startswith("v_exp") else 0)
    order = [t for g in range(nm) for t in gaps[g]]

    def nlds_after(g_end, first_k):
        n = 0
        for g in range(g_end):
            n += sum(1 for t in gaps[g] if t.startswith("ds_read") and f"offset:{0}" is not None and "a[" in t and int(t.split("a[")[1].split(":")[0]) < AV)
        return n

    gaps[pA0 - 1].append(f"s_waitcnt lgkmcnt({nlds_after(pA0, 0)})")
    if not last:
        gaps[qA0 - 1].append("s_waitcnt lgkmcnt(0)")
        lastd = max(dg)
        gaps[lastd + 2].insert(0, f"s_add_u32 s{S_M0}, s{S_M0}, 0x4000")
        gaps[lastd + 3].insert(0, f"s_and_b32 m0, s{S_M0}, 0x1ffff")
        gaps[lastd + 4].insert(0, f"s_add_u32 s{S_SRC}, s{S_SRC}, 0x2000")
        if gb is None or gb == 2:
            gaps[lastd + 5].insert(0, f"s_sub_u32 s{S_CNT}, s{S_CNT}, 1")
            gaps[nm - 2].insert(0, f"s_cmp_lg_u32 s{S_CNT}, 0")
            gaps[nm - 1].append(f"s_cbranch_scc1 L_body_{loop or tag}")
        for at in gpos:
            gaps[at - 1].append("s_waitcnt vmcnt(23)")
    a.seg("body_" + tag)
    a.label(f"L_body_{tag}")
    a(f"s_waitcnt vmcnt({4 * (PF - 1) if gb is None else 24})")
    a("s_barrier")
    for g in range(nm):
        a(mf[g])
        for t in gaps[g]:
            a(t)
    if last:
        fill = []
        for qb in range(2):
            for p in range(4):
                t = 26 + 4 * (p % 2)
                for d in range(4):
                    src = O + (qb * 8 + 2 * p) * 4 + 2 * d
                    fill.append(f"v_cvt_pk_bf16_f32 v{t + d}, v{src}, v{src + 1}")
                fill.append(f"buffer_store_dwordx4 {vr(t, 4)}, v{VL16}, {SRD}, s{S_PA + qb} offen offset:{1024 * p} sc1")
        a("s_nop 1")
        for n, x in enumerate(pvB):
            a(mfma_pv(*x))
            for t in fill[(5 * n) // 2:(5 * (n + 1)) // 2]:
                a(t)


SX, SDG, SOUT = 32, 36, 40
S_REC, S_CAP, S_MAXC, S_N, S_I, S_MASK, S_FLG, S_NOWN = 48, 49, 50, 51, 52, 53, 54, 55
SMK = 64
VX = 15
VDC = 16
VVL = 18
VRB, VDUM, VDREC = 17, 18, 19


def emit_region_reset(a):
    a(f"""
    v_and_b32 v2, 63, v0
    v_and_b32 v3, 15, v0
    v_lshl_add_u32 v3, v3, 2, v{VRB}
    v_mov_b32 v4, 0
    v_lshl_add_u32 v5, v2, 4, v{VRB}
    ds_write_b32 v3, v4
    v_mov_b32 v4, 0x40000000
    ds_write_b32 v{VDC}, v4
    v_mov_b32 v6, {SENT}
    v_mov_b32 v7, {SENT}
    v_mov_b32 v8, {SENT}
    v_mov_b32 v9, {SENT}
    v_lshl_add_u32 v3, v2, 3, v{VRB}
    """)
    for k in range(4):
        a(f"ds_write_b128 v5, v[6:9] offset:{LOFF + 1024 * k}")
    a(f"ds_write_b64 v3, v[6:7] offset:{LOFF + 4096}")


def emit_careful(a, tag, ret):
    a.seg("careful_" + tag)
    a.label(f"L_car_{tag}")
    a("s_nop 7")
    emit_region_reset(a)
    a(f"""
    v_mov_b32 v10, 1
    s_mov_b64 s[{SMK + 2}:{SMK + 3}], -1
    s_waitcnt lgkmcnt(0)
    """)
    a.label(f"L_car_loop_{tag}")
    a(f"""
    buffer_load_dwordx4 {vr(RC, 4)}, v{VSEG}, {SRD}, s{S_REC} offen{LS()}
    s_waitcnt vmcnt(0)
    """)
    for k in range(4):
        r = RC + k
        a(f"""
        v_cmp_lt_u32 vcc, 0, v{VREM}
        v_and_or_b32 v{BT}, v{r}, 60, v{VRB}
        s_nop 0
        s_and_b64 vcc, vcc, s[{SMK + 2}:{SMK + 3}]
        s_nop 0
        v_cndmask_b32 v{BT}, v{VDC}, v{BT}, vcc
        ds_add_rtn_u32 v{BT + 1}, v{BT}, v10
        s_waitcnt lgkmcnt(0)
        v_cmp_gt_u32 s[{SMK + 2}:{SMK + 3}], s{S_CAP}, v{BT + 1}
        v_min_u32 v{BT + 1}, s{S_CAP}, v{BT + 1}
        v_lshl_add_u32 v{BT}, v{BT + 1}, 6, v{BT}
        ds_write_b32 v{BT}, v{r} offset:{LOFF}
        v_cndmask_b32 v{BT + 1}, 0, v10, s[{SMK + 2}:{SMK + 3}]
        v_sub_u32 v{VREM}, v{VREM}, v{BT + 1}
        v_lshl_add_u32 v{VSEG}, v{BT + 1}, 2, v{VSEG}
        """)
    a(f"""
    s_cmp_lg_u64 s[{SMK + 2}:{SMK + 3}], 0
    s_cbranch_scc1 L_car_loop_{tag}
    s_waitcnt lgkmcnt(0)
    s_branch {ret}
    """)


def emit_k2(a, cfg):
    PF = cfg["PF"]
    NB0 = cfg.get("NB0", 3)
    NBR = cfg.get("NBR", 2)
    OSC = {0: "", 1: " sc1", 2: " nt", 3: " sc0 sc1"}[cfg.get("osc", 0)]
    CFG.clear()
    CFG.update(cfg)
    LIM = cfg.get("lim", NWG)
    name = "k2_attn_kernel"
    if cfg.get("map", 0) == 0:
        mapping = f"""s_and_b32 s{S_T0}, s2, 7
    s_mul_i32 s{S_T0}, s{S_T0}, {NWG // 8}
    s_lshr_b32 s{S_T1}, s2, 3
    s_add_u32 s{S_T0}, s{S_T0}, s{S_T1}          ; g
    s_mul_i32 s{S_SPLIT}, s{S_T0}, 1639
    s_lshr_b32 s{S_SPLIT}, s{S_SPLIT}, 16        ; split = g / 40
    s_mul_i32 s{S_T1}, s{S_SPLIT}, 40
    s_sub_u32 s{S_QT}, s{S_T0}, s{S_T1}          ; q tile"""
    elif cfg.get("map") == 2:
        mapping = f"""s_and_b32 s{S_T0}, s2, 7
    s_lshr_b32 s{S_T1}, s2, 3
    s_mul_i32 s{S_QT}, s{S_T0}, 29
    s_add_u32 s{S_QT}, s{S_QT}, s{S_T1}
    s_cmp_eq_u32 s{S_T0}, 7
    s_addc_u32 s{S_QT}, s{S_QT}, 0
    s_add_u32 s{S_SPLIT}, s{S_T0}, 234
    s_cmp_lt_u32 s{S_T0}, 6
    s_cselect_b32 s{S_MODE}, 29, 99
    s_cmp_eq_u32 s{S_T1}, s{S_MODE}
    s_cselect_b32 s{S_T0}, s{S_SPLIT}, s{S_QT}
    s_mul_i32 s{S_QT}, s{S_T0}, 10923
    s_lshr_b32 s{S_QT}, s{S_QT}, 16
    s_mul_i32 s{S_SPLIT}, s{S_QT}, 6
    s_sub_u32 s{S_SPLIT}, s{S_T0}, s{S_SPLIT}"""
    else:
        mapping = f"""s_and_b32 s{S_T0}, s2, 7
    s_mul_i32 s{S_T0}, s{S_T0}, 5
    s_lshr_b32 s{S_T1}, s2, 3
    s_mul_i32 s{S_QT}, s{S_T1}, 43
    s_lshr_b32 s{S_QT}, s{S_QT}, 8               ; j / 6
    s_mul_i32 s{S_SPLIT}, s{S_QT}, 6
    s_sub_u32 s{S_SPLIT}, s{S_T1}, s{S_SPLIT}
    s_add_u32 s{S_QT}, s{S_QT}, s{S_T0}"""
    a.raw(".text")
    a.raw(f".globl {name}\n.p2align 8\n.type {name},@function")
    a.label(name)
    a.seg("k2_pro0")
    a(f"""
    s_cmp_ge_u32 s2, {LIM}
    s_cbranch_scc1 L_k2_end
    """)
    if cfg.get("dbg"):
        a("s_cmp_gt_u32 s2, 7")
        a("s_cbranch_scc1 L_k2_nod")
        dbg_stamp(a, cfg, 2, 512, inv=True, s=88, v=100)
        a.label("L_k2_nod")
    if cfg.get("tl") or cfg.get("stamp"):
        a("s_memrealtime s[84:85]")
    if cfg.get("spf"):
        a(f"""
        s_getpc_b64 s[92:93]
        L_k2_pc:
        s_sub_u32 s92, s92, L_k2_pc - k2_attn_kernel
        s_subb_u32 s93, s93, 0
        s_lshr_b32 s94, s2, 3
        s_lshl_b32 s94, s94, 10
        s_min_u32 s94, s94, L_k2_last - k2_attn_kernel - 1024
        v_lshl_add_u32 v60, v0, 2, s94
        global_load_dword v61, v60, s[92:93]
        """)
    a(f"""
    s_load_dwordx2 s[{S_SRD}:{S_SRD + 1}], s[0:1], 88
    s_load_dwordx2 s[{SX}:{SX + 1}], s[0:1], 0
    s_load_dwordx2 s[{SDG}:{SDG + 1}], s[0:1], 24
    s_load_dwordx2 s[{SOUT}:{SOUT + 1}], s[0:1], 72
    v_lshrrev_b32 v1, 6, v0
    v_and_b32 v2, 63, v0
    v_readfirstlane_b32 s{S_W}, v1
    v_lshlrev_b32 v{VL16}, 4, v2
    v_lshlrev_b32 v12, 2, v2
    {mapping}
    s_mov_b32 s{S_SRD + 2}, 0x10000000
    s_mov_b32 s{S_SRD + 3}, 0x00020000
    s_mov_b32 s{SX + 2}, {N * 256}
    s_mov_b32 s{SX + 3}, 0x00020000
    s_mov_b32 s{SDG + 2}, {N * 2}
    s_mov_b32 s{SDG + 3}, 0x00020000
    s_mov_b32 s{SOUT + 2}, {N * 256}
    s_mov_b32 s{SOUT + 3}, 0x00020000
    s_mov_b32 s{SMP + 2}, {N * 256}
    s_mov_b32 s{SMP + 3}, 0x00020000
    s_mov_b32 s{S_THR}, 0x4b800000               ; 2^24
    s_lshl_b32 s{S_T0}, s{S_W}, 12
    s_mul_i32 s{S_SRC0}, s{S_SPLIT}, {52 * 8192}
    s_add_u32 s{S_SRC0}, s{S_SRC0}, s{S_T0}
    s_mov_b32 s{S_T1}, {KF}
    s_cmp_lt_u32 s{S_W}, 2
    s_cselect_b32 s{S_T1}, s{S_T1}, {VF - 8192 - 8192}
    s_add_u32 s{S_SRC0}, s{S_SRC0}, s{S_T1}
    s_lshl_b32 s{S_Q0}, s{S_QT}, 16
    s_lshl_b32 s{S_T1}, s{S_W}, 14
    s_add_u32 s{S_Q0}, s{S_Q0}, s{S_T1}
    s_add_u32 s{S_Q0}, s{S_Q0}, {QF}
    s_add_u32 s{S_Q0 + 1}, s{S_Q0}, 0x1000
    s_add_u32 s{S_Q0 + 2}, s{S_Q0}, 0x2000
    s_add_u32 s{S_Q0 + 3}, s{S_Q0}, 0x3000
    s_mul_i32 s{S_T1}, s{S_QT}, 6
    s_add_u32 s{S_T1}, s{S_T1}, s{S_SPLIT}
    s_lshl_b32 s{S_PO}, s{S_T1}, 16
    s_lshl_b32 s{S_T0}, s{S_W}, 14
    s_add_u32 s{S_PO}, s{S_PO}, s{S_T0}
    s_add_u32 s{S_PO}, s{S_PO}, {PO}
    s_lshl_b32 s{S_PL}, s{S_T1}, 11
    s_lshl_b32 s{S_T0}, s{S_W}, 9
    s_add_u32 s{S_PL}, s{S_PL}, s{S_T0}
    s_add_u32 s{S_PL}, s{S_PL}, {PL}
    s_lshl_b32 s{S_T0}, s{S_W}, 2
    s_lshl_b32 s{S_OWN}, {1 | 1 << 6 | 1 << 12}, s{S_SPLIT}
    s_lshr_b32 s{S_OWN}, s{S_OWN}, s{S_T0}
    s_add_u32 s{S_T0}, s{S_PO}, 0
    s_bitcmp1_b32 s{S_OWN}, 0
    s_cselect_b32 s{S_PA + 0}, 0x7fff0000, s{S_T0}
    s_add_u32 s{S_T0}, s{S_PO}, 4096
    s_bitcmp1_b32 s{S_OWN}, 1
    s_cselect_b32 s{S_PA + 1}, 0x7fff0000, s{S_T0}
    s_add_u32 s{S_T0}, s{S_PO}, 8192
    s_bitcmp1_b32 s{S_OWN}, 2
    s_cselect_b32 s{S_PA + 2}, 0x7fff0000, s{S_T0}
    s_add_u32 s{S_T0}, s{S_PO}, 12288
    s_bitcmp1_b32 s{S_OWN}, 3
    s_cselect_b32 s{S_PA + 3}, 0x7fff0000, s{S_T0}
    v_mov_b32 v{VX}, 0x7fff0000
    v_mov_b32 v{VSEG}, 0
    s_cmp_lt_u32 s{S_SPLIT}, 2
    s_cselect_b32 s{S_T0}, 0, 0x7fff0000
    v_add_u32 v{VVL}, s{S_T0}, v{VL16}
    s_mov_b32 s{S_U}, 51
    s_mov_b32 s{S_MODE}, 0
    s_add_u32 s{S_T0}, s{S_U}, 1
    s_cmp_lt_u32 s{S_W}, 2
    s_cselect_b32 s{S_T1}, 0, 1
    s_add_u32 s{S_T0}, s{S_T0}, s{S_T1}
    s_lshl_b32 s{S_T0}, s{S_T0}, 13
    s_add_u32 s{SKV + 2}, s{S_SRC0}, s{S_T0}
    s_sub_u32 s{SKV + 2}, s{SKV + 2}, 4096
    s_mov_b32 s{SKV + 3}, 0x00020000
    s_mov_b32 s{S_REC}, {REC}
    s_mov_b32 s{S_K0}, {KF + 312 * 8192}
    s_mov_b32 s{S_FV}, {VF + 312 * 8192}
    s_add_u32 s{S_V1}, s{S_FV}, 4096
    s_mov_b32 s{S_CAP}, {CAP}
    s_lshl_b32 s{S_FLG}, s{S_QT}, 7
    s_add_u32 s{S_FLG}, s{S_FLG}, {FLG}
    s_mul_i32 s{S_T0}, s{S_W}, 6
    s_add_u32 s{S_T0}, s{S_T0}, s{S_SPLIT}
    s_lshl_b32 s{S_T1}, s{S_QT}, 4
    s_add_u32 s{S_T1}, s{S_T1}, s{S_T0}
    s_cmp_lt_u32 s{S_T0}, 16
    s_cselect_b32 s{S_MASK}, -1, 0
    s_cmp_lt_u32 s{S_T1}, {N // 16}
    s_cselect_b32 s{S_MASK}, s{S_MASK}, 0
    s_lshl_b32 s{S_I}, s{S_T1}, 8
    s_add_u32 s{S_I}, s{S_I}, {TAB}
    s_mul_i32 s{S_T0}, s{S_W}, {RSZ}
    s_add_u32 s{S_T0}, s{S_T0}, {RB}
    v_mov_b32 v{VRB}, s{S_T0}
    s_add_u32 s{S_T0}, s{S_T0}, 64
    v_add_u32 v{VDC}, s{S_T0}, v12
    v_mov_b32 v{VOOB}, 0x7fffffff
    v_mov_b32 v4, 0
    v_mov_b32 v5, {LDS_FLAG}
    ds_write_b32 v5, v4
    """)
    emit_region_reset(a)
    a(f"""
    s_waitcnt lgkmcnt(0)
    s_and_b32 s{S_SRD + 1}, s{S_SRD + 1}, 0xffff
    s_and_b32 s{SX + 1}, s{SX + 1}, 0xffff
    s_and_b32 s{SDG + 1}, s{SDG + 1}, 0xffff
    s_and_b32 s{SOUT + 1}, s{SOUT + 1}, 0xffff
    s_mov_b32 s{SKV}, s{S_SRD}
    s_mov_b32 s{SKV + 1}, s{S_SRD + 1}
    s_add_u32 s{SMP}, s{S_SRD}, {MP}
    s_addc_u32 s{SMP + 1}, s{S_SRD + 1}, 0
    buffer_load_dword v{VREM}, v12, {SRD}, s{S_I} offen{LS()}
    """)
    def lane_setup():
        a(f"""
        v_bfe_u32 v2, v0, 2, 2
        v_and_b32 v3, 3, v0
        v_bfe_u32 v4, v0, 4, 2
        s_lshl_b32 s{S_T0}, s{S_W}, 6
        s_sub_u32 s{S_T1}, s{S_T0}, 12
        v_lshlrev_b32 v{GOFF}, 4, v3
        v_add_u32 v{GOFF}, s{S_T1}, v{GOFF}
        v_lshlrev_b32 v5, 4, v2
        v_sub_u32 v{GOFF}, v{GOFF}, v5               ; 64w + 16q - 16n' - 12
        v_lshlrev_b32 v{GLA}, 4, v2
        v_lshl_add_u32 v{GLA}, v4, 6, v{GLA}
        v_add_u32 v{GLA}, {RB}, v{GLA}
        """)

    def maxc():
        a(f"""
        v_and_b32 v6, 15, v0
        v_bfe_u32 v7, v0, 4, 2
        v_mul_u32_u24 v7, {RSZ}, v7
        v_lshl_add_u32 v7, v6, 2, v7
        v_add_u32 v7, {RB}, v7
        ds_read_b32 v9, v7
        s_waitcnt lgkmcnt(0)
        """)
        for sh in ("row_shr:1", "row_shr:2", "row_shr:4", "row_shr:8"):
            a(f"v_max_u32_dpp v9, v9, v9 {sh} row_mask:0xf bank_mask:0xf")
            a("s_nop 1")
        a("v_max_u32_dpp v9, v9, v9 row_bcast:15 row_mask:0xa bank_mask:0xf")
        a("s_nop 1")
        a("v_max_u32_dpp v9, v9, v9 row_bcast:31 row_mask:0xc bank_mask:0xf")
        a("s_nop 1")
        a(f"v_readlane_b32 s{S_MAXC}, v9, 63")
        a("s_nop 3")
        a(f"s_min_u32 s{S_N}, s{S_MAXC}, {CAP}")
        a(f"s_add_u32 s{S_N}, s{S_N}, 3")
        a(f"s_lshr_b32 s{S_N}, s{S_N}, 2")

    if cfg.get("ptl"):
        a("s_memrealtime s[98:99]")
    a.label("L_k2_restart")
    a.seg("k2_pro")
    a(f"s_mov_b32 s{S_SRC}, s{S_SRC0}")
    a(f"s_lshl_b32 s{S_M0}, s{S_W}, 12")
    a(f"s_mov_b32 m0, s{S_M0}")
    a(f"s_mov_b32 s{S_LEFT}, s{S_U}")

    def dma_stage():
        for k in range(4):
            a(f"buffer_load_dwordx4 v{VL16}, {KVS}, s{S_SRC} offen offset:{1024 * k}{LS()} lds")

    def dma_adv():
        a(f"s_add_u32 s{S_M0}, s{S_M0}, 0x4000")
        a(f"s_and_b32 m0, s{S_M0}, 0x1ffff")
        a(f"s_add_u32 s{S_SRC}, s{S_SRC}, 0x2000")

    for i in range(8):
        a(f"v_mov_b32 v{P + 8 + i}, 0")
    zq = [f"v_mfma_f32_32x32x16_bf16 {vr(O + 16 * i, 16)}, {vr(P + 8, 4)}, {vr(P + 8, 4)}, 0" for i in range(8)]
    for s_ in range(4):
        a(f"buffer_load_dwordx4 {ar(AK + 16 + 4 * s_, 4)}, v{VL16}, {SRD}, s{S_K0} offen offset:{1024 * s_}{LS()}")
    for i in range(16):
        a(f"buffer_load_dwordx4 {ar(4 * i, 4)}, v{VL16}, {SRD}, s{S_Q0 + (i >> 2)} offen offset:{1024 * (i & 3)}{LS()}")
        if i % 2 == 1:
            a(zq.pop())
    dma_stage()
    dma_adv()
    for j in range(8):
        a(f"buffer_load_dwordx4 {ar(AV + 4 * j, 4)}, v{VVL}, {SRD}, s{S_FV if j < 4 else S_V1} offen offset:{1024 * (j & 3)}{LS()}")
    dma_stage()
    dma_adv()
    assert not zq
    a(f"s_cmp_lg_u32 s{S_MODE}, 0")
    a("s_cbranch_scc1 L_k2_nosetup")
    lane_setup()
    a(f"""
    v_and_b32 v6, 15, v0
    v_and_b32 v7, 1, v6
    v_lshlrev_b32 v7, 4, v7
    v_mov_b32 v8, 0x3f80
    v_lshlrev_b32 v7, v7, v8                     ; value
    v_lshrrev_b32 v6, 1, v6                      ; 0..7 = (h, dword)
    """)
    for k in range(8):
        a(f"v_cmp_eq_u32 s[{SMK + 2 * k}:{SMK + 2 * k + 1}], {k}, v6")
    for k in range(8):
        a(f"v_cndmask_b32 v{BT + k}, 0, v7, s[{SMK + 2 * k}:{SMK + 2 * k + 1}]")
    for k in range(8):
        a(f"v_accvgpr_write_b32 a{AAH + k}, v{BT + k}")
    Z = vr(P + 8, 4)
    for i in range(4):
        a(f"v_mfma_f32_32x32x16_bf16 {ar(ABUF + 16 * i, 16)}, {Z}, {Z}, 0")
    for i in range(2):
        a(f"{MF} {ar(ABUF + 64 + 4 * i, 4)}, {Z}, {Z}, 0")
    a.label("L_k2_nosetup")
    a.seg("k2_pro2")
    for qb in range(NQ):
        a(f"v_mov_b32 v{L + qb}, 0")
    a(f"v_add_u32 v{VLDS}, 0x4000, v{VL16}")
    if cfg.get("ptl"):
        a("s_memrealtime s[62:63]")
    a("s_waitcnt vmcnt(16)")
    if cfg.get("ptl"):
        a("s_memrealtime s[60:61]")
    dq = []
    for st in range(PF - 1):
        dq += [[f"buffer_load_dwordx4 v{VL16}, {KVS}, s{S_SRC} offen offset:{1024 * k}{LS()} lds"] for k in range(4)]
        dq[-1] += [f"s_add_u32 s{S_M0}, s{S_M0}, 0x4000", f"s_and_b32 m0, s{S_M0}, 0x1ffff", f"s_add_u32 s{S_SRC}, s{S_SRC}, 0x2000"]
    n = 0
    for s_ in range(4):
        for qb in range(4):
            d = vr(St(qb, 1), 4)
            a(f"{MF} {d}, {ar(AK + 16 + 4 * s_, 4)}, {ar(AQ + (qb * 4 + s_) * 4, 4)}, {'0' if s_ == 0 else d}")
            if n % 4 == 1:
                for t in dq.pop(0):
                    a(t)
            n += 1
    a("s_waitcnt vmcnt(16)")
    a("s_barrier")
    if cfg.get("ptl"):
        a("s_memrealtime s[88:89]")
    for s in range(8):
        a(f"ds_read_b128 {ar(AK + 4 * s, 4)}, v{VL16} offset:{1024 * s}")
    a("s_nop 1")
    MX = 26
    for qb in range(4):
        s0 = St(qb, 1)
        a(f"v_max3_f32 v{MX + qb}, v{s0}, v{s0 + 1}, v{s0 + 2}")
    for qb in range(4):
        a(f"v_max_f32 v{MX + qb}, v{MX + qb}, v{St(qb, 1) + 3}")
    for sw in ("v_permlane32_swap_b32", "v_permlane16_swap_b32"):
        for qb in range(4):
            a(f"v_mov_b32 v{MX + 4 + qb}, v{MX + qb}")
        a("s_nop 0")
        for qb in range(4):
            a(f"{sw} v{MX + qb}, v{MX + 4 + qb}")
        a("s_nop 0")
        for qb in range(4):
            a(f"v_max_f32 v{MX + qb}, v{MX + qb}, v{MX + 4 + qb}")
    for qb in range(4):
        for i in range(4):
            a(f"v_sub_f32 v{NM + 4 * qb + i}, 0, v{MX + qb}")
    a(f"s_cmp_lt_u32 s{S_SPLIT}, 2")
    a("s_cbranch_scc1 L_lo")
    a.label("L_lo_ret")
    a.seg("k2_pro3")
    a("s_waitcnt lgkmcnt(0)")
    for n, x in enumerate(qk_order("A")):
        a(mfma_qk(*x))
        if n % 2 == 0 and dq:
            for t in dq.pop(0):
                a(t)
    assert not dq
    if cfg.get("stamp"):
        a("s_memtime s[90:91]")
        a("s_memrealtime s[92:93]")
        a("s_waitcnt lgkmcnt(0)")
    a(f"s_cmp_lg_u32 s{S_MODE}, 0")
    a("s_cbranch_scc1 L_safe")
    if cfg.get("ptl"):
        a("s_memrealtime s[86:87]")
        a("s_waitcnt lgkmcnt(0)")
    a(f"s_mov_b32 s{S_CNT}, {NBR}")
    a(f"s_mov_b32 s{S_EV}, 0")
    a.raw(".p2align 6")
    emit_body(a, cfg, "m", False)
    a.seg("k2_mid")
    a(f"s_add_u32 s{S_EV}, s{S_EV}, 1")
    a(f"s_cmp_eq_u32 s{S_EV}, 4")
    a("s_cbranch_scc1 L_loop_done")
    a(f"s_cmp_eq_u32 s{S_EV}, 3")
    a("s_cbranch_scc1 L_ev_g")
    a(f"s_cmp_eq_u32 s{S_EV}, 2")
    a("s_cbranch_scc1 L_ev_b")
    a.seg("k2_evr")
    dbg_stamp(a, cfg, 3, 512, s=88, v=2)
    a(f"""
    v_and_b32 v{VREM}, s{S_MASK}, v{VREM}
    v_and_b32 v2, 63, v0
    v_mul_u32_u24 v2, {RECS}, v2
    v_and_b32 v3, 0xffff, v{VREM}
    v_lshl_add_u32 v{VSEG}, v3, 2, v2
    v_lshrrev_b32 v{VREM}, 16, v{VREM}
    """)
    for k in range(NSLOT // 4):
        a(f"buffer_load_dwordx4 {vr(RC + 4 * k, 4)}, v{VSEG}, {SRD}, s{S_REC} offen offset:{16 * k}{LS()}")
    a(f"s_mov_b32 s{S_CNT}, {NB0}")
    a("s_branch L_body_m")
    a.label("L_ev_b")
    a.seg("k2_ev")
    if cfg.get("ptl"):
        a("s_memrealtime s[100:101]")
        a("s_waitcnt lgkmcnt(0)")
    a(f"s_waitcnt vmcnt({4 * NB0})")
    a("v_mov_b32 v12, 1")
    RK = 4
    for grp in range(NSLOT // 8):
        for k in range(8):
            a(f"v_cmp_lt_u32 s[{SMK + 2 * k}:{SMK + 2 * k + 1}], {8 * grp + k}, v{VREM}")
        for k in range(8):
            a(f"v_and_or_b32 v{BT + k}, v{RC + 8 * grp + k}, 60, v{VRB}")
        if grp:
            a(f"s_cmp_eq_u64 s[{SMK}:{SMK + 1}], 0")
            a("s_cbranch_scc1 L_ev_built")
        for k in range(8):
            a(f"v_cndmask_b32 v{BT + k}, v{VDC}, v{BT + k}, s[{SMK + 2 * k}:{SMK + 2 * k + 1}]")
            a(f"ds_add_rtn_u32 v{RK + k}, v{BT + k}, v12")
        for k in range(8):
            a(f"s_waitcnt lgkmcnt(7)")
            a(f"v_min_u32 v{RK + k}, s{S_CAP}, v{RK + k}")
            a(f"v_lshl_add_u32 v{BT + k}, v{RK + k}, 6, v{BT + k}")
            a(f"ds_write_b32 v{BT + k}, v{RC + 8 * grp + k} offset:{LOFF}")
    a.label("L_ev_built")
    a(f"""
    v_and_b32 v2, 15, v0
    v_lshl_add_u32 v2, v2, 2, v{VRB}
    ds_read_b32 v3, v2
    v_cmp_lt_u32 s[{SMK}:{SMK + 1}], {NSLOT}, v{VREM}
    s_waitcnt lgkmcnt(0)
    v_cmp_lt_u32 vcc, s{S_CAP}, v3
    s_nop 3
    s_or_b64 vcc, vcc, s[{SMK}:{SMK + 1}]
    s_cbranch_vccnz L_car_e
    v_mov_b32 v{VREM}, 0
    """)
    a.label("L_ev_ret")

    a(f"s_mov_b32 s{S_CNT}, 1")
    a("s_branch L_body_m")
    a.label("L_ev_g")
    a.seg("k2_evg")
    maxc()
    a(f"""
    s_min_u32 s{S_CNT}, s{S_N}, {NGMAX}
    s_max_u32 s{S_CNT}, s{S_CNT}, 1
    s_sub_u32 s{S_N}, s{S_N}, s{S_CNT}
    s_mul_i32 s{S_T0}, s{S_CNT}, 3
    s_sub_u32 s{S_LEFT}, s{S_LEFT}, s{S_T0}
    s_sub_u32 s{S_LEFT}, s{S_LEFT}, {NBR + NB0 + 1}
    v_bfe_u32 v2, v0, 2, 2
    v_and_b32 v3, 3, v0
    v_bfe_u32 v4, v0, 4, 2
    s_lshl_b32 s{S_T0}, s{S_W}, 6
    s_lshl_b32 s{S_T1}, s{S_QT}, 4
    s_add_u32 s{S_T1}, s{S_T1}, s{S_SPLIT}
    s_lshl_b32 s{S_I}, s{S_T1}, 12
    s_add_u32 s{S_I}, s{S_I}, s{S_T0}
    v_lshrrev_b32 v5, 1, v4
    v_lshl_add_u32 v5, v5, 2, v2
    v_and_b32 v6, 1, v4
    v_lshlrev_b32 v{VX}, 8, v5
    v_lshl_add_u32 v{VX}, v6, 5, v{VX}
    v_lshl_add_u32 v{VX}, v3, 3, v{VX}
    v_add_u32 v{VX}, s{S_I}, v{VX}
    v_add_u32 v10, {6 * 4096}, v{VX}
    v_add_u32 v11, {12 * 4096}, v{VX}
    s_lshl_b32 s{S_I}, s{S_T1}, 5
    v_lshlrev_b32 v5, 1, v5
    v_add_u32 v5, s{S_I}, v5
    s_waitcnt vmcnt(0)
    """)
    for b in range(3):
        for m in range(2):
            a(f"buffer_load_dwordx2 {ar(AXV + 4 * b + 2 * m, 2)}, v{[VX, 10, 11][b]}, s[{SX}:{SX + 3}], 0 offen offset:{2048 * m}")
            a(f"buffer_load_ushort a{ADI + 2 * b + m}, v5, s[{SDG}:{SDG + 3}], 0 offen offset:{192 * b + 16 * m}")
    if cfg.get("touch"):
        a(f"buffer_load_dword a226, v{VL16}, {SRD}, s{S_PO} offen")
        a(f"buffer_load_dword a227, v{VL16}, {SRD}, s{S_PL} offen")
        a(f"buffer_load_dword a228, v{VL16}, {SRD}, s{S_FLG} offen")
        a(f"buffer_load_dword a229, v{VX}, s[{SOUT}:{SOUT + 3}], 0 offen")
    a.raw(".p2align 6")
    for gb in range(3):
        emit_body(a, cfg, f"g{gb}", False, gb=gb, loop="g0")
    a.seg("k2_gx")
    a(f"s_mov_b32 s{S_CNT}, s{S_LEFT}")
    a(f"s_cmp_lg_u32 s{S_LEFT}, 0")
    a("s_cbranch_scc1 L_body_m")
    a.label("L_loop_done")
    a.seg("k2_mid2")
    if cfg.get("stamp"):
        a("s_memtime s[94:95]")
        a("s_memrealtime s[96:97]")
        a(f"s_load_dwordx2 s[64:65], s[0:1], 80")
        a("s_waitcnt lgkmcnt(0)")
        a("s_sub_u32 s94, s94, s90")
        a("s_sub_u32 s96, s96, s92")
        a("v_mov_b32 v2, s94")
        a("v_mov_b32 v3, s96")
        a("s_and_b32 s65, s65, 0xffff")
        a("s_mov_b32 s66, 256")
        a("s_mov_b32 s67, 0x00020000")
        a("s_lshr_b32 s72, s2, 3")
        a("s_lshl_b32 s72, s72, 3")
        a("v_mov_b32 v4, s72")
        a("s_and_b32 s73, s2, 7")
        a(f"s_or_b32 s73, s73, s{S_W}")
        a("s_cmp_lg_u32 s73, 0")
        a("s_cbranch_scc1 L_nostamp")
        a("buffer_store_dwordx2 v[2:3], v4, s[64:67], 0 offen")
        a.label("L_nostamp")
    emit_body(a, cfg, "lf", False, last=True, nkb=2)
    a("s_branch L_k2_chk")
    a.label("L_safe")
    a.seg("k2_safe0")
    a(f"s_mov_b32 s{S_CNT}, s{S_LEFT}")
    emit_body(a, cfg, "s", True)
    a.seg("k2_smid")
    emit_body(a, cfg, "sf", True, last=True, nkb=2)
    a.label("L_k2_chk")
    a.seg("k2_chk")
    if cfg.get("tl") and not cfg.get("ptl"):
        a("s_memrealtime s[98:99]")
    VPLA = 8
    smp = f"s[{SMP}:{SMP + 3}]"

    def consume_all():
        for b in range(3):
            for k in range(4):
                d = ar(AAG + 8 * b + 4 * (k >> 1), 4)
                a(f"{MF} {d}, {ar(AAH + 4 * (k & 1), 4)}, {ar(ABUF + 16 * b + 4 * k, 4)}, {d}")

    def pub(qb):
        for p in range(4):
            t = 26 + 4 * (p % 2)
            for d in range(4):
                src = O + (qb * 8 + 2 * p) * 4 + 2 * d
                a(f"v_cvt_pk_bf16_f32 v{t + d}, v{src}, v{src + 1}")
            a(f"buffer_store_dwordx4 {vr(t, 4)}, v{VL16}, {SRD}, s{S_PA + qb} offen offset:{1024 * p} sc1")

    pub(2)
    pub(3)
    a(f"""
    v_max3_f32 v4, v{L}, v{L + 1}, v{L + 2}
    v_max_f32 v4, v4, v{L + 3}
    v_add_f32 v6, v{L}, v{L + 1}
    v_add_f32 v7, v{L + 2}, v{L + 3}
    v_add_f32 v6, v6, v7
    s_mov_b32 s{S_T0}, 0x53800000
    v_cmp_ngt_f32 vcc, s{S_T0}, v4
    v_cmp_u_f32 s[{SMK}:{SMK + 1}], v6, v6
    v_mov_b32 v5, {LDS_FLAG}
    v_mov_b32 v4, 1
    s_or_b64 vcc, vcc, s[{SMK}:{SMK + 1}]
    s_cbranch_vccz L_k2_chk2
    ds_write_b32 v5, v4
    """)
    a.label("L_k2_chk2")
    a(f"v_and_b32 v{VPLA}, 15, v0")
    a(f"v_lshlrev_b32 v{VPLA}, 3, v{VPLA}")
    for sw in ("v_permlane32_swap_b32", "v_permlane16_swap_b32"):
        for qb in range(NQ):
            a(f"v_mov_b32 v{T + qb}, v{L + qb}")
        a("s_nop 0")
        for qb in range(NQ):
            a(f"{sw} v{L + qb}, v{T + qb}")
        a("s_nop 0")
        for qb in range(NQ):
            a(f"v_add_f32 v{57 + 2 * qb if sw[10] == '1' else L + qb}, v{L + qb}, v{T + qb}")
    for qb in range(NQ):
        a(f"v_sub_f32 v{56 + 2 * qb}, 0, v{NM + 4 * qb}")
    a("s_mov_b64 exec, 0xffff")
    for qb in range(NQ):
        a(f"buffer_store_dwordx2 v[{56 + 2 * qb}:{57 + 2 * qb}], v{VPLA}, {SRD}, s{S_PL} offen offset:{128 * qb} sc1")
    a("s_mov_b64 exec, -1")
    if cfg.get("tl") and not cfg.get("ptl"):
        a("s_memrealtime s[62:63]")
    a("s_waitcnt vmcnt(20) lgkmcnt(0)")
    a("s_barrier")
    a("ds_read_b32 v4, v5")
    a(f"s_and_b32 s{S_T0}, s{S_OWN}, 15")
    a("s_cbranch_scc1 L_own")
    a.label("L_ownr")
    a.seg("k2_epi")
    a(f"""
    s_waitcnt lgkmcnt(0)
    v_readfirstlane_b32 s{S_T0}, v4
    s_nop 3
    s_cmp_gt_u32 s{S_T0}, s{S_MODE}
    s_cbranch_scc1 L_redo
    """)
    if cfg.get("tl") and not cfg.get("ptl"):
        a("s_memrealtime s[60:61]")
    consume_all()
    a("s_waitcnt vmcnt(0) lgkmcnt(0)")
    if cfg.get("tl") and not cfg.get("ptl"):
        a("s_memrealtime s[88:89]")
    a("s_barrier")
    a(f"""
    s_cmp_lg_u32 s{S_W}, 0
    s_cbranch_scc1 L_nosig
    s_lshl_b32 s{S_T0}, s{S_SPLIT}, 2
    v_mov_b32 v10, s{S_T0}
    s_add_u32 s{S_T1}, s{S_MODE}, 1
    v_mov_b32 v11, s{S_T1}
    s_mov_b64 exec, 1
    buffer_store_dword v11, v10, {SRD}, s{S_FLG} offen sc1
    s_mov_b64 exec, -1
    """)
    a.label("L_nosig")
    a(f"s_cmp_gt_i32 s{S_N}, 0")
    a("s_cbranch_scc1 L_left")
    a.label("L_gdone")
    a.seg("k2_fin")
    if cfg.get("tl") and not cfg.get("ptl"):
        a("s_memrealtime s[86:87]")
    POV, PLV = 128, 200
    ACC, BP, AI, XA, VXB = 26, 64, 34, 96, 5
    a(f"""
    v_and_b32 v{VPLA}, 15, v0
    v_and_b32 v9, 63, v0
    v_min_u32 v9, 5, v9
    v_lshlrev_b32 v9, 2, v9
    buffer_load_dword v10, v9, {SRD}, s{S_FLG} offen sc1
    s_mul_i32 s{S_T0}, s{S_QT}, {6 * 65536}
    s_lshl_b32 s{S_T1}, s{S_SPLIT}, 12
    s_add_u32 s{S_T0}, s{S_T0}, s{S_T1}
    s_lshl_b32 s{S_T1}, s{S_W}, 10
    s_add_u32 s{S_T0}, s{S_T0}, s{S_T1}
    s_add_u32 s{S_PO}, s{S_T0}, {PO}
    s_mul_i32 s{S_T0}, s{S_QT}, {6 * 2048}
    s_lshl_b32 s{S_T1}, s{S_SPLIT}, 7
    s_add_u32 s{S_T0}, s{S_T0}, s{S_T1}
    s_add_u32 s{S_PL}, s{S_T0}, {PL}
    v_mov_b32 v{VXB}, v{VX}
    v_add_u32 v{VXB + 1}, {6 * 4096}, v{VX}
    v_add_u32 v{VXB + 2}, {12 * 4096}, v{VX}
    v_bfe_u32 v2, v0, 2, 2
    v_and_b32 v3, 3, v0
    v_bfe_u32 v4, v0, 5, 1
    v_lshl_add_u32 v2, v4, 2, v2
    v_lshl_add_u32 v2, v3, 4, v2
    v_lshlrev_b32 v14, 2, v2
    v_add_u32 v15, 32, v14                       ; m = 1
    v_and_b32 v4, 16, v0
    v_cmp_ne_u32 s[{SMK}:{SMK + 1}], 0, v4
    v_and_b32 v2, 1, v{VPLA}
    v_lshlrev_b32 v2, 4, v2
    v_mov_b32 v3, 0x3f80
    v_lshlrev_b32 v2, v2, v3
    v_bfe_u32 v3, v{VPLA}, 1, 1
    v_lshrrev_b32 v4, 2, v{VPLA}
    v_bfe_u32 v11, v0, 4, 2
    v_xor_b32 v4, v4, v11
    v_lshl_add_u32 v3, v4, 1, v3
    v_cmp_eq_u32 s[{SMK + 2}:{SMK + 3}], 0, v3
    v_cmp_eq_u32 s[{SMK + 4}:{SMK + 5}], 1, v3
    v_lshlrev_b32 v{VPLA}, 3, v{VPLA}
    """)
    for k in (2, 3, 4, 5):
        a(f"v_mov_b32 v{AI + k}, 0")
    for k in range(2):
        a(f"v_cndmask_b32 v{AI + k}, 0, v2, s[{SMK + 2 + 2 * k}:{SMK + 3 + 2 * k}]")
        a(f"v_cndmask_b32 v{AI + 6 + k}, 0, v2, s[{SMK + 2 + 2 * k}:{SMK + 3 + 2 * k}]")
    for b in range(3):
        for m in range(2):
            a(f"v_accvgpr_read_b32 v2, a{ADI + 2 * b + m}")
            for d in range(2):
                a(f"v_accvgpr_read_b32 v{3 + d}, a{AXV + 4 * b + 2 * m + d}")
            for r in range(4):
                a(f"v_accvgpr_read_b32 v{80 + r}, a{AAG + 8 * b + 4 * m + r}")
            a("v_lshlrev_b32 v2, 16, v2")
            xa = XA + 8 * b + 4 * m
            for d in range(2):
                a(f"v_lshlrev_b32 v{xa + 2 * d}, 16, v{3 + d}")
                a(f"v_and_b32 v{xa + 2 * d + 1}, 0xffff0000, v{3 + d}")
            for r in range(4):
                a(f"v_fmac_f32 v{xa + r}, v{80 + r}, v2")
    a(f"s_mov_b32 s{S_T1}, s{S_SPLIT}")
    for s in range(6):
        a(f"s_lshl_b32 s{S_T0}, s{S_T1}, 11")
        a(f"s_add_u32 s{SMK + 8 + s}, s{S_PL}, s{S_T0}")
        if s:
            a(f"s_lshl_b32 s{S_T0}, s{S_T1}, 16")
            a(f"s_add_u32 s{SMK + 14 + s}, s{S_PO}, s{S_T0}")
        a(f"s_add_u32 s{S_T1}, s{S_T1}, 1")
        a(f"s_cmp_eq_u32 s{S_T1}, 6")
        a(f"s_cselect_b32 s{S_T1}, 0, s{S_T1}")
    a(f"s_lshl_b32 s{S_T0}, s{S_W}, 10")
    a(f"v_add_u32 v2, s{S_T0}, v{VL16}")
    for b in range(3):
        a(f"ds_read_b128 {vr(POV + 24 * b, 4)}, v2 offset:{4096 * b}")
    a("s_waitcnt lgkmcnt(0)")
    a(f"s_mov_b32 s{S_I}, 0")
    a.label("L_poll")
    a(f"""
    buffer_load_dword v11, v9, {SRD}, s{S_FLG} offen sc1
    s_waitcnt vmcnt(1)
    v_cmp_eq_u32 vcc, 0, v10
    s_cbranch_vccz L_poll_done
    s_add_u32 s{S_I}, s{S_I}, 1
    s_cmp_gt_u32 s{S_I}, 0x1000000
    s_cbranch_scc1 L_k2_end
    buffer_load_dword v10, v9, {SRD}, s{S_FLG} offen sc1
    s_waitcnt vmcnt(1)
    v_cmp_eq_u32 vcc, 0, v11
    s_cbranch_vccnz L_poll
    v_mov_b32 v12, v11
    s_branch L_poll_d2
    """)
    a.label("L_poll_done")
    a("v_mov_b32 v12, v10")
    a.label("L_poll_d2")
    if cfg.get("tl") and not cfg.get("ptl"):
        a("s_memrealtime s[100:101]")
        a("s_waitcnt lgkmcnt(0)")
    a("v_cmp_ne_u32 vcc, 1, v12")
    for b in range(3):
        if b == 2:
            a(f"s_cmp_gt_u32 s{S_SPLIT}, 3")
            a("s_cbranch_scc1 L_no3")
        for s in range(6):
            a(f"buffer_load_dwordx2 {vr(PLV + 12 * b + 2 * s, 2)}, v{VPLA}, {SRD}, s{SMK + 8 + s} offen offset:{768 * b} sc1")
        for s in range(1, 6):
            a(f"s_add_u32 s{S_T0}, s{SMK + 14 + s}, {b * 6 * 4096}")
            a(f"buffer_load_dwordx4 {vr(POV + 24 * b + 4 * s, 4)}, v{VL16}, {SRD}, s{S_T0} offen sc1")
    a.label("L_ld_done")
    a("s_cbranch_vccnz L_general")

    def finish(b, rcp):
        for m in range(2):
            if rcp:
                a(f"ds_bpermute_b32 v{80 + m}, v{14 + m}, v{rcp}")
            for j in range(8):
                a(f"ds_bpermute_b32 v{BP + 8 * m + j}, v{14 + m}, v{ACC + j}")
        ob = 56 + 4 * (b & 1)
        for m in range(2):
            a(f"s_waitcnt lgkmcnt({(9 if rcp else 8) * (1 - m)})")
            xa = XA + 8 * b + 4 * m
            for r in range(4):
                a(f"v_cndmask_b32 v{BP + 8 * m + r}, v{BP + 8 * m + r}, v{BP + 8 * m + 4 + r}, s[{SMK}:{SMK + 1}]")
                if rcp:
                    a(f"v_fmac_f32 v{xa + r}, v{BP + 8 * m + r}, v{80 + m}")
                else:
                    a(f"v_add_f32 v{xa + r}, v{xa + r}, v{BP + 8 * m + r}")
            for d in range(2):
                a(f"v_cvt_pk_bf16_f32 v{ob + 2 * m + d}, v{xa + 2 * d}, v{xa + 2 * d + 1}")
            a(f"buffer_store_dwordx2 {vr(ob + 2 * m, 2)}, v{VXB + b}, s[{SOUT}:{SOUT + 3}], 0 offen offset:{2048 * m}{OSC}")

    AC3, BP3, RC3 = 26, 64, 124
    acc = [26, 236, 244]
    bp = [64, 80, 0]
    bp[2] = POV
    rb = [120, 122, 252]
    rc = [42, 43, 44]

    def M(b, nb):
        pl, po = PLV + 12 * b, POV + 24 * b
        for s in range(6):
            if s:
                a(f"s_waitcnt vmcnt({5 - s + 11 * (nb - 1 - b)})")
            for h in range(2):
                d = vr(acc[b] + 4 * h, 4)
                a(f"{MF} {d}, {vr(AI + 4 * h, 4)}, {vr(po + 4 * s, 4)}, {'0' if s == 0 else d}")
            if s == 1:
                a(f"v_add_f32 v{rc[b]}, v{pl + 1}, v{pl + 3}")
            elif s > 1:
                a(f"v_add_f32 v{rc[b]}, v{rc[b]}, v{pl + 2 * s + 1}")
        a(f"v_rcp_f32 v{rc[b]}, v{rc[b]}")

    def B(b):
        for m in range(2):
            a(f"ds_bpermute_b32 v{rb[b] + m}, v{14 + m}, v{rc[b]}")
            for j in range(8):
                a(f"ds_bpermute_b32 v{bp[b] + 8 * m + j}, v{14 + m}, v{acc[b] + j}")

    def F(b, younger):
        ob = 56 + 4 * (b & 1) if b < 2 else 46
        for m in range(2):
            a(f"s_waitcnt lgkmcnt({min(15, younger + 9 * (1 - m))})")
            xa = XA + 8 * b + 4 * m
            q = bp[b] + 8 * m
            for r in range(4):
                a(f"v_cndmask_b32 v{q + r}, v{q + r}, v{q + 4 + r}, s[{SMK}:{SMK + 1}]")
                a(f"v_fmac_f32 v{xa + r}, v{q + r}, v{rb[b] + m}")
            for d in range(2):
                a(f"v_cvt_pk_bf16_f32 v{ob + 2 * m + d}, v{xa + 2 * d}, v{xa + 2 * d + 1}")
            a(f"buffer_store_dwordx2 {vr(ob + 2 * m, 2)}, v{VXB + b}, s[{SOUT}:{SOUT + 3}], 0 offen offset:{2048 * m}{OSC}")

    M(0, 3)
    M(1, 3)
    B(0)
    M(2, 3)
    B(1)
    F(0, 18)
    B(2)
    F(1, 18)
    F(2, 0)
    a("s_branch L_k2_done")
    a.label("L_no3")
    a("s_cbranch_vccnz L_no3g")
    a.seg("k2_no3")
    M(0, 2)
    M(1, 2)
    B(0)
    a("s_nop 0")
    B(1)
    F(0, 18)
    F(1, 0)
    a("s_branch L_k2_done")
    a.label("L_no3g")
    a("s_waitcnt vmcnt(0)")
    a.label("L_general")
    a.seg("k2_gen")
    for b in range(3):
        pl, po = PLV + 12 * b, POV + 24 * b
        if b == 2:
            a(f"s_cmp_gt_u32 s{S_SPLIT}, 3")
            a("s_cbranch_scc1 L_k2_done")
        a(f"s_waitcnt vmcnt({11 * (2 - b) + 2 * b})")
        a(f"v_max3_f32 v44, v{pl}, v{pl + 2}, v{pl + 4}")
        a(f"v_max3_f32 v44, v44, v{pl + 6}, v{pl + 8}")
        a(f"v_max_f32 v44, v44, v{pl + 10}")
        for s in range(6):
            a(f"v_sub_f32 v{pl + 2 * s}, v{pl + 2 * s}, v44")
        for s in range(6):
            a(f"v_exp_f32 v{pl + 2 * s}, v{pl + 2 * s}")
        a("s_nop 0")
        a(f"v_mul_f32 v45, v{pl}, v{pl + 1}")
        for s in range(1, 6):
            a(f"v_fmac_f32 v45, v{pl + 2 * s}, v{pl + 2 * s + 1}")
        a("v_rcp_f32 v45, v45")
        a("s_nop 0")
        for s in range(6):
            a(f"v_mul_f32 v{pl + 2 * s}, v{pl + 2 * s}, v45")
        for s in range(6):
            for d in range(4):
                r = po + 4 * s + d
                a(f"v_lshlrev_b32 v42, 16, v{r}")
                a(f"v_and_b32 v43, 0xffff0000, v{r}")
                op = "v_mul_f32" if s == 0 else "v_fmac_f32"
                a(f"{op} v{ACC + 2 * d}, v42, v{pl + 2 * s}")
                a(f"{op} v{ACC + 2 * d + 1}, v43, v{pl + 2 * s}")
        finish(b, None)
    a.label("L_k2_done")
    a("s_waitcnt vmcnt(0)")
    if cfg.get("tl"):
        a("s_waitcnt lgkmcnt(0)")
        a("s_mov_b64 exec, 1")
        a("v_lshrrev_b32 v1, 6, v0")
        a("v_lshlrev_b32 v1, 5, v1")
        a(f"s_lshl_b32 s90, s2, 7")
        a(f"s_add_u32 s90, s90, {TR + 3 * 0x40000}")
        for i, sr in enumerate((98, 62, 60, 88, 86, 100)):
            a(f"v_mov_b32 v{2 + i}, s{sr}")
        a(f"buffer_store_dwordx4 v[2:5], v1, {SRD}, s90 offen")
        a(f"buffer_store_dwordx2 v[6:7], v1, {SRD}, s90 offen offset:16")
    dbg_stamp(a, cfg, 5, 512, s=88, v=2)
    stamp_exit(a, cfg, 84, 2, SRD, TR)
    a.label("L_k2_end")
    a("s_endpgm")
    a.label("L_left")
    a.seg("k2_left0")
    lane_setup()
    a(f"v_add_u32 v{GLA}, {NGMAX * 256}, v{GLA}")
    a.label("L_left_loop")
    a.seg("k2_left")
    for b in range(3):
        a(f"ds_read_b128 {vr(64 + 4 * b, 4)}, v{GLA} offset:{b * RSZ + LOFF}")
    a(f"v_add_u32 v{GLA}, 256, v{GLA}")
    a("s_waitcnt lgkmcnt(0)")
    for b in range(3):
        for k in range(4):
            a(f"v_add_u32 v{64 + 4 * b + k}, v{64 + 4 * b + k}, v{GOFF}")
            a(f"buffer_load_dwordx4 {ar(ABUF + 16 * b + 4 * k, 4)}, v{64 + 4 * b + k}, {smp}, 0 offen offset:{12 - 4 * k}{LS()}")
    a("s_waitcnt vmcnt(0)")
    consume_all()
    a(f"""
    s_sub_u32 s{S_N}, s{S_N}, 1
    s_cmp_gt_i32 s{S_N}, 0
    s_cbranch_scc1 L_left_loop
    s_nop 7
    s_cmp_le_u32 s{S_MAXC}, {CAP}
    s_cbranch_scc1 L_gdone
    s_barrier
    s_branch L_car_t
    """)
    a.label("L_more2")
    a.seg("k2_more2")
    a("s_barrier")
    maxc()
    lane_setup()
    a("s_branch L_left_loop")
    a.label("L_redo")
    a.seg("k2_redo")
    a("s_waitcnt vmcnt(0)")
    a("s_barrier")
    a(f"s_mov_b32 s{S_MODE}, 1")
    a("s_branch L_k2_restart")
    a.label("L_own")
    a.seg("k2_ownx")
    a(f"s_ff1_i32_b32 s{S_T1}, s{S_T0}")
    a(f"s_lshl_b32 s{S_I}, s{S_W}, 2")
    a(f"s_add_u32 s{S_I}, s{S_I}, s{S_T1}")
    a(f"s_sub_u32 s{S_I}, s{S_I}, s{S_SPLIT}")
    a(f"s_mul_i32 s{S_I}, s{S_I}, 683")
    a(f"s_and_b32 s{S_I}, s{S_I}, 0x3000")
    a(f"v_add_u32 v42, s{S_I}, v{VL16}")
    for qb in range(1, NQ):
        a(f"s_cmp_eq_u32 s{S_T1}, {qb}")
        a(f"s_cbranch_scc1 L_own{qb}")
    for qb in range(NQ):
        a.label(f"L_own{qb}")
        a.seg(f"k2_own{qb}")
        for p in range(4):
            t = 26 + 4 * p
            for d in range(4):
                src = O + (qb * 8 + 2 * p) * 4 + 2 * d
                a(f"v_cvt_pk_bf16_f32 v{t + d}, v{src}, v{src + 1}")
            a(f"ds_write_b128 v42, {vr(t, 4)} offset:{1024 * p}")
        a("s_branch L_ownr")
    a.label("L_lo")
    a.seg("k2_lo")
    a(f"s_cmp_eq_u32 s{S_SPLIT}, 1")
    a("s_cbranch_scc1 L_lo1")

    def lo_softmax(qs):
        for qb in qs:
            for i in range(4):
                a(f"v_sub_f32 v{St(qb, 1) + i}, v{St(qb, 1) + i}, v{26 + qb}")
        for qb in qs:
            for i in range(4):
                a(f"v_exp_f32 v{St(qb, 1) + i}, v{St(qb, 1) + i}")
        for qb in qs:
            s0 = St(qb, 1)
            a(f"v_add_f32 v{L + qb}, v{s0}, v{s0 + 1}")
            a(f"v_cvt_pk_bf16_f32 v{P + 4 * qb}, v{s0}, v{s0 + 1}")
            a(f"v_add_f32 v{L + qb}, v{L + qb}, v{s0 + 2}")
            a(f"v_cvt_pk_bf16_f32 v{P + 4 * qb + 1}, v{s0 + 2}, v{s0 + 3}")
            a(f"v_add_f32 v{L + qb}, v{L + qb}, v{s0 + 3}")

    lo_softmax((2, 3))
    a("s_branch L_lo_ret")
    a.label("L_lo1")
    a.seg("k2_lo1")
    for qb in range(2):
        a(f"v_mov_b32 v{P + 4 * qb + 2}, 0")
        a(f"v_mov_b32 v{P + 4 * qb + 3}, 0")
    lo_softmax((0, 1))
    a("s_waitcnt vmcnt(8)")
    for x in pv_order("A"):
        a(mfma_pv(*x))
    a("s_branch L_lo_ret")
    emit_careful(a, "e", "L_ev_ret")
    emit_careful(a, "t", "L_more2")
    for tag, nkb in (("s", 2), ("sf", 2)):
        for X in "AB":
            emit_slow(a, X, nkb, tag + X)
    a.label("L_k2_last")
    return dict(name=name, vgpr=512, accum=256, sgpr=102, grid=NWG, block=256, lds=RB + 4 * RSZ,
                chains=[["k2_pro0", "k2_pro", "k2_pro2", "k2_pro3", "body_m", "body_m", "k2_mid", "k2_mid2", "body_lf", "k2_chk", "k2_epi", "k2_fin"],
                        ["body_m", "k2_mid", "k2_ev", "body_m"], ["body_m", "k2_mid", "k2_evr", "body_m"], ["body_g2", "k2_gx", "k2_mid2", "body_lf"], ["k2_ev", "careful_e", "body_m"],
                        ["body_m", "k2_mid", "k2_evg", "body_g0", "body_g1", "body_g2", "body_g0", "body_g1", "body_g2", "k2_gx", "body_m"],
                        ["body_lf", "k2_chk", "k2_epi", "k2_redo", "k2_pro"], ["k2_pro2", "k2_lo", "k2_pro3", "body_m"], ["k2_pro2", "k2_lo1", "k2_pro3", "body_m"],
                        ["k2_pro", "k2_pro2", "k2_pro3", "k2_safe0", "body_s", "body_s", "k2_smid", "body_sf", "k2_chk", "k2_epi"],
                        ["k2_fin", "k2_gen"], ["k2_fin", "k2_no3"], ["k2_chk", "k2_ownx", "k2_own0", "k2_own1", "k2_own2", "k2_own3", "k2_epi"], ["k2_epi", "k2_left0", "k2_left", "k2_left", "k2_fin"], ["k2_left", "careful_t", "k2_more2", "k2_left"]] +
                       [["slow_" + t + X] for t in ("s", "sf") for X in "AB"])
```

```python
from layout import *
from asmlib import stamp_entry, stamp_exit, dbg_stamp
from k1 import emit_bucket, f2u, vr

MF = "v_mfma_f32_32x32x16_bf16"


def emit_k1(a, cfg):
    name = "k1_proj_kernel"
    NT = 80
    NWG = 2 * NT + 1
    NBK = GB
    SC1 = {0: '', 1: ' sc1', 2: ' nt', 3: ' sc0 sc1'}[cfg.get('k1sc', 0)]
    a.raw(".text")
    a.raw(f".globl {name}\n.p2align 8\n.type {name},@function")
    a.label(name)
    a.seg("k1_a")
    SX, SW1, SW2, SWS = 4, 8, 12, 16
    S_JOB, S_BLK, S_W, S_T0, S_T1, S_SC = 20, 21, 22, 23, 24, 26
    S_O1, S_O2 = 28, 29
    XR = 64
    XF = 96
    H = 32
    D = 160
    VA = 8
    ws = f"s[{SWS}:{SWS + 3}]"

    def st(k):
        if cfg.get("k1tl"):
            a(f"s_memrealtime s[{48 + 2 * k}:{49 + 2 * k}]")

    a(f"""
    s_cmp_ge_u32 s2, {NWG + NBK}
    s_cbranch_scc1 L_k1_exit
    """)
    stamp_entry(a, cfg, 32)
    if cfg.get("dbg"):
        a("s_cmp_gt_u32 s2, 7")
        a("s_cbranch_scc1 L_k1_nod")
        dbg_stamp(a, cfg, 0, 0, inv=True, s=48, v=100)
        a.label("L_k1_nod")
    if cfg.get("spf"):
        a(f"""
        s_getpc_b64 s[36:37]
        L_k1_pc2:
        s_sub_u32 s36, s36, L_k1_pc2 - k1_proj_kernel
        s_subb_u32 s37, s37, 0
        s_lshr_b32 s34, s2, 3
        s_and_b32 s34, s34, 15
        s_lshl_b32 s34, s34, 10
        v_lshl_add_u32 v236, v0, 2, s34
        global_load_dword v237, v236, s[36:37]
        """)
    BL = cfg.get("blast", 0)
    if BL:
        a(f"s_sub_u32 s2, s2, {NWG}")
    a(f"s_cmp_lt_u32 s2, {NBK}")
    a("s_cbranch_scc1 L_k1_bucket")
    if BL:
        a(f"s_add_u32 s2, s2, {NWG + NBK}")
    if cfg.get("prio"):
        a("s_setprio 3")
    a(f"""
    s_sub_u32 s25, s2, {NBK}
    s_mul_i32 s{S_T0}, s25, 820
    s_lshr_b32 s{S_T0}, s{S_T0}, 16            ; wg / 80
    s_mul_i32 s3, s{S_T0}, 80
    s_sub_u32 s3, s25, s3                      ; tile
    s_xor_b32 s{S_JOB}, s{S_T0}, 1             ; 0..79: V' (1), 80..159: QK (0), 160: 3 -> 2
    s_min_u32 s{S_JOB}, s{S_JOB}, 2
    s_mov_b32 s{S_T0}, 40
    s_cmp_eq_u32 s{S_JOB}, 1
    s_cselect_b32 s{S_T0}, 56, s{S_T0}
    s_cmp_eq_u32 s{S_JOB}, 2
    s_cselect_b32 s{S_T0}, 64, s{S_T0}
    s_cselect_b32 s35, 32, 0
    s_mov_b32 s{SX + 2}, {N * 256}
    s_cselect_b32 s{SX + 2}, 32768, s{SX + 2}
    s_cmp_eq_u32 s{S_JOB}, 0
    s_cselect_b32 s{S_T1}, 48, 64
    s_load_dwordx2 s[{SX}:{SX + 1}], s[0:1], s35
    s_load_dwordx2 s[{SW1}:{SW1 + 1}], s[0:1], s{S_T0}
    s_load_dwordx2 s[{SW2}:{SW2 + 1}], s[0:1], s{S_T1}
    s_load_dwordx2 s[{SWS}:{SWS + 1}], s[0:1], 88
    v_lshrrev_b32 v1, 6, v0
    v_and_b32 v2, 63, v0                      ; lane
    v_readfirstlane_b32 s{S_W}, v1
    s_mov_b32 s{SX + 3}, 0x00020000
    s_mov_b32 s{SW1 + 2}, 32768
    s_mov_b32 s{SW1 + 3}, 0x00020000
    s_mov_b32 s{SW2 + 2}, 32768
    s_mov_b32 s{SW2 + 3}, 0x00020000
    s_mov_b32 s{SWS + 2}, 0x10000000
    s_mov_b32 s{SWS + 3}, 0x00020000
    s_lshl_b32 s{S_BLK}, s3, 2
    s_add_u32 s{S_BLK}, s{S_BLK}, s{S_W}
    s_lshl_b32 s{S_BLK}, s{S_BLK}, 13          ; *8192 bytes
    s_add_u32 s{S_O2}, s{S_BLK}, 4096
    v_and_b32 v3, 31, v2                       ; n
    v_lshrrev_b32 v4, 5, v2                    ; h
    v_lshrrev_b32 v6, 4, v2                    ; g
    v_and_b32 v7, 15, v2                       ; t
    v_lshlrev_b32 v16, 2, v6
    v_xor_b32 v16, v16, v7
    v_lshlrev_b32 v16, 4, v16
    v_lshl_add_u32 v16, v6, 8, v16
    v_xor_b32 v17, v6, v7
    v_lshlrev_b32 v17, 4, v17
    v_lshl_add_u32 v17, v6, 8, v17
    v_xor_b32 v18, 64, v17
    v_xor_b32 v19, 128, v17
    v_xor_b32 v20, 192, v17
    s_lshl_b32 s{S_T0}, s{S_W}, 13             ; w*8192
    s_add_u32 s{S_T1}, s{S_T0}, 4096
    s_add_u32 m0, s{S_T0}, 0x10000
    s_waitcnt lgkmcnt(0)
    s_and_b32 s{SX + 1}, s{SX + 1}, 0xffff
    s_and_b32 s{SW1 + 1}, s{SW1 + 1}, 0xffff
    s_and_b32 s{SW2 + 1}, s{SW2 + 1}, 0xffff
    s_and_b32 s{SWS + 1}, s{SWS + 1}, 0xffff
    """)
    st(0)
    for k in range(4):
        a(f"buffer_load_dwordx4 v{17 + k}, s[{SX}:{SX + 3}], s{S_BLK} offen offset:{1024 * k} lds")
    a(f"s_add_u32 m0, s{S_T1}, 0x10000")
    a("s_nop 0")
    for k in range(4):
        a(f"buffer_load_dwordx4 v{17 + k}, s[{SX}:{SX + 3}], s{S_O2} offen offset:{1024 * k} lds")

    def wdma(srd, base):
        for half, so in ((0, S_T0), (1, S_T1)):
            a(f"s_add_u32 m0, s{so}, {base}")
            a("s_nop 0")
            for k in range(4):
                a(f"buffer_load_dwordx4 v16, s[{srd}:{srd + 3}], s{so} offen offset:{1024 * k} lds")

    wdma(SW1, 0)
    a(f"""
    v_mov_b32 v21, 0
    v_lshlrev_b32 v22, 2, v0
    s_lshl_b32 s{S_O1}, s25, 7
    s_add_u32 s{S_O1}, s{S_O1}, {FLG}
    v_cmp_gt_u32 vcc, 32, v0
    s_and_saveexec_b64 s[30:31], vcc
    s_cbranch_execz L_k1_nz
    buffer_store_dword v21, v22, {ws}, s{S_O1} offen
    """)
    a.label("L_k1_nz")
    a(f"""
    s_mov_b64 exec, s[30:31]
    v_and_b32 v21, 15, v3
    v_xor_b32 v21, v21, v4
    v_lshlrev_b32 v21, 4, v21
    v_lshl_add_u32 v21, v3, 8, v21
    v_add_u32 v21, s{S_T0}, v21
    v_add_u32 v21, 0x10000, v21
    v_lshrrev_b32 v17, 2, v7                   ; r = t>>2
    v_lshrrev_b32 v18, 1, v6                   ; hh = g>>1
    v_and_b32 v19, 1, v6                       ; g&1
    v_lshlrev_b32 v20, 6, v17                  ; r*64
    v_lshl_add_u32 v20, v19, 5, v20            ; + (g&1)*32
    v_and_b32 v22, 3, v7
    v_lshl_add_u32 v20, v22, 3, v20            ; + (t&3)*8
    v_lshl_add_u32 v20, v17, 8, v20            ; + r*256
    v_lshl_add_u32 v{VA}, v18, 11, v20
    v_lshl_add_u32 v{VA + 4}, v18, 10, v20
    """)
    for i in range(1, 4):
        a(f"v_xor_b32 v{VA + i}, {i << 6}, v{VA}")
        a(f"v_xor_b32 v{VA + 4 + i}, {i << 6}, v{VA + 4}")
    for s in range(1, 8):
        a(f"v_xor_b32 v{224 + s}, {s << 5}, v21")
    a(f"""
    s_add_u32 s{S_O1}, s{S_BLK}, {MP}
    s_add_u32 s{S_O2}, s{S_O1}, 4096
    v_xor_b32 v17, v6, v7
    v_lshlrev_b32 v17, 4, v17
    v_lshl_add_u32 v17, v6, 8, v17
    v_add_u32 v17, s{S_T0}, v17
    v_add_u32 v17, 0x10000, v17
    v_xor_b32 v18, 64, v17
    v_xor_b32 v19, 128, v17
    v_xor_b32 v20, 192, v17
    v_lshlrev_b32 v30, 4, v2
    """)
    a("s_waitcnt vmcnt(8)")
    st(1)
    for s in range(8):
        a(f"ds_read_b128 {vr(XR + 4 * s, 4)}, v{21 if s == 0 else 224 + s}")
    a(f"s_cmp_eq_u32 s{S_JOB}, 2")
    a("s_cbranch_scc1 L_k1_w")
    wdma(SW2, 0x8000)
    a("s_waitcnt lgkmcnt(0)")
    a.seg("k1_b")
    for i in range(32):
        a(f"v_lshlrev_b32 v{XF + 2 * i}, 16, v{XR + i}")
        a(f"v_and_b32 v{XF + 2 * i + 1}, 0xffff0000, v{XR + i}")
    AC = 22
    a(f"v_pk_add_f32 {vr(AC, 2)}, {vr(XF, 2)}, {vr(XF + 2, 2)}")
    a(f"v_pk_add_f32 {vr(AC + 2, 2)}, {vr(XF + 4, 2)}, {vr(XF + 6, 2)}")
    for i in range(4, 32):
        t = AC + 2 * (i & 1)
        a(f"v_pk_add_f32 {vr(t, 2)}, {vr(t, 2)}, {vr(XF + 2 * i, 2)}")
    a(f"v_pk_add_f32 {vr(AC, 2)}, {vr(AC, 2)}, {vr(AC + 2, 2)}")
    a(f"v_add_f32 v{AC}, v{AC}, v{AC + 1}")

    def xhalf_sum(r, t):
        a(f"v_mov_b32 v{t}, v{r}")
        a("s_nop 1")
        a(f"v_permlane32_swap_b32 v{r}, v{t}")
        a("s_nop 1")
        a(f"v_add_f32 v{r}, v{r}, v{t}")

    xhalf_sum(AC, AC + 1)
    a(f"v_mul_f32 v26, {hex(f2u(-1.0 / 128))}, v{AC}")
    a("v_mov_b32 v27, v26")
    for i in range(32):
        a(f"v_pk_add_f32 {vr(XF + 2 * i, 2)}, {vr(XF + 2 * i, 2)}, v[26:27]")
    a(f"v_pk_mul_f32 {vr(AC, 2)}, {vr(XF, 2)}, {vr(XF, 2)}")
    a(f"v_pk_mul_f32 {vr(AC + 2, 2)}, {vr(XF + 2, 2)}, {vr(XF + 2, 2)}")
    for i in range(2, 32):
        t = AC + 2 * (i & 1)
        a(f"v_pk_fma_f32 {vr(t, 2)}, {vr(XF + 2 * i, 2)}, {vr(XF + 2 * i, 2)}, {vr(t, 2)}")
    a(f"v_pk_add_f32 {vr(AC, 2)}, {vr(AC, 2)}, {vr(AC + 2, 2)}")
    a(f"v_add_f32 v{AC}, v{AC}, v{AC + 1}")
    xhalf_sum(AC, AC + 1)

    def rnd(r):
        a(f"v_cvt_pk_bf16_f32 v{r}, v{r}, v{r}")
        a(f"v_lshlrev_b32 v{r}, 16, v{r}")

    a(f"v_mul_f32 v{AC}, {hex(f2u(1.0 / 128))}, v{AC}")
    rnd(AC)
    a(f"v_add_f32 v{AC}, {hex(f2u(1e-5))}, v{AC}")
    rnd(AC)
    a(f"v_sqrt_f32 v{AC}, v{AC}")
    a(f"v_cvt_pk_bf16_f32 v24, v26, v26")
    rnd(AC)
    a(f"v_rcp_f32 v28, v{AC}")
    a(f"v_lshlrev_b32 v24, 16, v24")
    a(f"v_sub_f32 v24, v24, v26")
    a(f"v_mov_b32 v29, v28")
    a(f"v_mul_f32 v24, v24, v28")
    a(f"v_mov_b32 v25, v24")
    for i in range(32):
        a(f"v_pk_fma_f32 {vr(XF + 2 * i, 2)}, {vr(XF + 2 * i, 2)}, v[28:29], v[24:25]")
        if i:
            a(f"v_cvt_pk_bf16_f32 v{H + i - 1}, v{XF + 2 * i - 2}, v{XF + 2 * i - 1}")
        if i % 4 == 1 and i > 4:
            s_ = i // 4 - 1
            a(f"ds_write_b128 v{21 if s_ == 0 else 224 + s_}, {vr(H + 4 * s_, 4)}")
    a(f"v_cvt_pk_bf16_f32 v{H + 31}, v{XF + 62}, v{XF + 63}")
    a(f"ds_write_b128 v231, {vr(H + 28, 4)}")
    c = 1.4426950408889634 / 128 ** 0.5
    a(f"s_mov_b32 s{S_SC}, {hex(f2u(c))}")

    st(2)
    a(f"""
    s_cmp_eq_u32 s{S_JOB}, 0
    s_cbranch_scc1 L_k1_noh
    s_waitcnt vmcnt(8) lgkmcnt(0)
    s_barrier
    """)
    for k in range(8):
        a(f"ds_read_b128 {vr(D + 32 + 4 * k, 4)}, v{17 + (k & 3)} offset:{1024 * k}")
    hst = [f"buffer_store_dwordx4 {vr(D + 32 + 4 * k, 4)}, v30, {ws}, s{S_O1 if k < 4 else S_O2} offen offset:{1024 * (k & 3)}{SC1}" for k in range(8)]
    st(3)
    WB = [XF, XF + 32]

    def reads(i, buf, addr, base, second):
        for s in range(8):
            a(f"ds_read_b64_tr_b16 {vr(buf + 4 * s, 2)}, v{addr + i} offset:{base + 4096 * s}")
            a(f"ds_read_b64_tr_b16 {vr(buf + 4 * s + 2, 2)}, v{addr + i} offset:{base + 4096 * s + second}")

    def rd(i, s, buf, addr, base, second):
        return [f"ds_read_b64_tr_b16 {vr(buf + 4 * s, 2)}, v{addr + i} offset:{base + 4096 * s}",
                f"ds_read_b64_tr_b16 {vr(buf + 4 * s + 2, 2)}, v{addr + i} offset:{base + 4096 * s + second}"]

    def gemm(addr, base, second, other, w_is_a, first_issued=False, fill=None):
        if not first_issued:
            reads(0, WB[0], addr, base, second)
        for i in range(4):
            fl = list(fill[i]) if fill else []
            per = -(-len(fl) // 6)
            fl = [None] * (2 * per) + fl
            for s in range(8):
                young = 2 * (7 - s) + (2 * s if i < 3 else 0)
                a(f"s_waitcnt lgkmcnt({min(young, 15)})")
                w = vr(WB[i & 1] + 4 * s, 4)
                o = vr(other + 4 * s, 4)
                A, B = (w, o) if w_is_a else (o, w)
                d = vr(D + 16 * i, 16)
                a(f"{MF} {d}, {A}, {B}, {'0' if s == 0 else d}")
                if i < 3:
                    for t in rd(i + 1, s, WB[(i + 1) & 1], addr, base, second):
                        a(t)
                for t in fl[per * s:per * (s + 1)]:
                    if t:
                        a(t)

    G1 = XR

    def pack1(i, scale):
        out = []
        for k in range(8):
            b = D + 16 * i + 2 * k
            if scale:
                out.append(f"v_mul_f32 v{b}, s{S_SC}, v{b}")
                out.append(f"v_mul_f32 v{b + 1}, s{S_SC}, v{b + 1}")
            out.append(f"v_cvt_pk_bf16_f32 v{G1 + 8 * i + k}, v{b}, v{b + 1}")
        return out

    gemm(VA, 0, 1024, H, True, fill=[hst] + [pack1(i, False) for i in range(3)])
    st(4)
    a("s_branch L_k1_second")
    a.label("L_k1_noh")
    a.seg("k1_qk")
    a("s_waitcnt vmcnt(8) lgkmcnt(0)")
    a("s_barrier")
    gemm(VA, 0, 1024, H, True, fill=[[]] + [pack1(i, True) for i in range(3)])
    st(4)
    a("s_waitcnt vmcnt(0)")
    a("s_barrier")
    a(f"""
    v_lshrrev_b32 v17, 4, v3
    v_lshlrev_b32 v17, 12, v17
    v_and_b32 v18, 15, v3
    v_lshl_add_u32 v17, v18, 4, v17
    v_lshl_add_u32 v17, v4, 8, v17
    s_add_u32 s{S_O1}, s{S_BLK}, {QF}
    s_add_u32 s{S_O2}, s{S_BLK}, {KF}
    """)
    reads(0, WB[0], VA, 32768, 1024)

    def qkst(i, so):
        return [f"buffer_store_dwordx4 {vr(G1 + 8 * i + 4 * k, 4)}, v17, {ws}, s{so} offen offset:{1024 * i + 512 * k}{SC1}" for k in range(2)]

    for i in range(3):
        for t in qkst(i, S_O1):
            a(t)
    for t in pack1(3, True) + qkst(3, S_O1):
        a(t)
    gemm(VA, 32768, 1024, H, True, first_issued=True, fill=[[]] + [pack1(i, False) + qkst(i, S_O2) for i in range(3)])
    a("s_nop 7")
    a("s_nop 3")
    st(5)
    for t in pack1(3, False) + qkst(3, S_O2):
        a(t)
    a("s_branch L_k1_end")
    a.label("L_k1_second")
    a.seg("k1_c")
    a("s_waitcnt vmcnt(8)")
    a("s_barrier")
    reads(0, WB[0], VA + 4, 32768, 2048)
    for t in pack1(3, False):
        a(t)

    def pack2(i, st_):
        out = []
        for kk in range(2):
            t = H + 4 * (2 * i + kk)
            b = D + 16 * i + 4 * kk
            for d, src in enumerate([b, b + 2, b + 8, b + 10]):
                out.append(f"v_cvt_pk_bf16_f32 v{t + d}, v{src}, v{src + 1}")
            out.append(st_(i, kk, t))
        return out

    a.seg("k1_v")
    a(f"""
    v_lshrrev_b32 v17, 4, v3
    v_lshlrev_b32 v17, 10, v17
    v_and_b32 v18, 15, v3
    v_lshl_add_u32 v17, v18, 4, v17
    v_lshl_add_u32 v17, v4, 8, v17
    s_add_u32 s{S_O1}, s{S_BLK}, {VF}
    s_add_u32 s{S_O2}, s{S_O1}, 4096
    """)
    vst = lambda i, kk, t: f"buffer_store_dwordx4 {vr(t, 4)}, v17, {ws}, s{S_O1 if i < 2 else S_O2} offen offset:{(i & 1) * 2048 + kk * 512}{SC1}"
    gemm(VA + 4, 32768, 2048, G1, False, first_issued=True, fill=[[]] + [pack2(i, vst) for i in range(3)])
    a("s_nop 7")
    a("s_nop 3")
    st(5)
    for t in pack2(3, vst):
        a(t)
    a("s_branch L_k1_end")
    a.label("L_k1_w")
    a.seg("k1_w")
    a(f"""
    v_lshrrev_b32 v17, 4, v3
    v_lshlrev_b32 v17, 12, v17
    v_and_b32 v18, 15, v3
    v_lshl_add_u32 v17, v18, 4, v17
    v_lshl_add_u32 v17, v4, 8, v17
    s_lshl_b32 s{S_O1}, s{S_W}, 10
    s_add_u32 s{S_O1}, s{S_O1}, {WMO}
    s_waitcnt vmcnt(0) lgkmcnt(0)
    s_barrier
    """)
    gemm(VA, 0, 1024, XR, False)
    a("s_nop 7")
    a("s_nop 3")
    for i in range(4):
        for pc in range(2):
            t = H + 4 * (2 * i + pc)
            for d in range(4):
                b = D + 16 * i + 8 * pc + 2 * d
                a(f"v_cvt_pk_bf16_f32 v{t + d}, v{b}, v{b + 1}")
            a(f"buffer_store_dwordx4 {vr(t, 4)}, v17, {ws}, s{S_O1} offen offset:{512 * pc}{SC1}")
        a(f"s_add_u32 s{S_O1}, s{S_O1}, 8192")
    a("s_branch L_k1_end")
    emit_bucket(a, cfg, SWS)
    if BL:
        a(f"s_add_u32 s2, s2, {NWG + NBK}")
    a.label("L_k1_end")
    if BL:
        a(f"s_sub_u32 s2, s2, {NBK}")
    if cfg.get("k1tl"):
        a("s_memrealtime s[60:61]")
        a("s_waitcnt lgkmcnt(0)")
        a("v_lshrrev_b32 v1, 6, v0")
        a("v_lshlrev_b32 v1, 5, v1")
        a(f"s_lshl_b32 s40, s2, 7")
        a(f"s_add_u32 s40, s40, {TR + 0x40000}")
        for i in range(7):
            a(f"v_mov_b32 v{2 + i}, s{48 + 2 * i}")
        a(f"buffer_store_dwordx4 v[2:5], v1, {ws}, s40 offen")
        a(f"buffer_store_dwordx4 v[6:9], v1, {ws}, s40 offen offset:16")
    if cfg.get("dbg"):
        a("s_waitcnt vmcnt(0)")
    dbg_stamp(a, cfg, 1, 0, s=48, v=100)
    stamp_exit(a, cfg, 32, 0, ws, TR)
    a.label("L_k1_exit")
    a("s_endpgm")
    return dict(name=name, vgpr=240, accum=240, sgpr=64, grid=NWG + NBK, block=256, lds=98304,
                chains=[["k1_a", "k1_b", "k1_qk"], ["k1_b", "k1_c", "k1_v"], ["k1_a", "k1_w"], ["k1_bk"]])
```

```python
from layout import *
from asmlib import stamp_entry, stamp_exit, dbg_stamp
from k1 import emit_bucket, f2u, vr

MF = "v_mfma_f32_32x32x16_bf16"


def emit_k1(a, cfg):
    name = "k1_proj_kernel"
    NT = 80
    NH = 27
    NWG = 2 * NT + 1 + NH
    NBK = GB
    SC1 = {0: '', 1: ' sc1', 2: ' nt', 3: ' sc0 sc1'}[cfg.get('k1sc', 0)]
    a.raw(".text")
    a.raw(f".globl {name}\n.p2align 8\n.type {name},@function")
    a.label(name)
    a.seg("k1_a")
    SX, SW1, SW2, SWS = 4, 8, 12, 16
    S_JOB, S_BLK, S_W, S_T0, S_T1, S_SC = 20, 21, 22, 23, 24, 26
    S_O1, S_O2 = 28, 29
    XR = 64
    XF = 96
    H = 32
    D = 160
    VA = 8
    ws = f"s[{SWS}:{SWS + 3}]"

    def st(k):
        if cfg.get("k1tl"):
            a(f"s_memrealtime s[{48 + 2 * k}:{49 + 2 * k}]")

    a(f"""
    s_cmp_ge_u32 s2, {NWG + NBK}
    s_cbranch_scc1 L_k1_exit
    """)
    stamp_entry(a, cfg, 32)
    if cfg.get("dbg"):
        a("s_cmp_gt_u32 s2, 7")
        a("s_cbranch_scc1 L_k1_nod")
        dbg_stamp(a, cfg, 0, 0, inv=True, s=48, v=100)
        a.label("L_k1_nod")
    if cfg.get("spf"):
        a(f"""
        s_getpc_b64 s[36:37]
        L_k1_pc2:
        s_sub_u32 s36, s36, L_k1_pc2 - k1_proj_kernel
        s_subb_u32 s37, s37, 0
        s_lshr_b32 s34, s2, 3
        s_and_b32 s34, s34, 15
        s_lshl_b32 s34, s34, 10
        v_lshl_add_u32 v236, v0, 2, s34
        global_load_dword v237, v236, s[36:37]
        """)
    BL = cfg.get("blast", 0)
    if BL:
        a(f"s_sub_u32 s2, s2, {NWG}")
    a(f"s_cmp_lt_u32 s2, {NBK}")
    a("s_cbranch_scc1 L_k1_bucket")
    if BL:
        a(f"s_add_u32 s2, s2, {NWG + NBK}")
    if cfg.get("prio"):
        a("s_setprio 3")
    a(f"""
    s_sub_u32 s25, s2, {NBK}
    s_mul_i32 s{S_T0}, s25, 820
    s_lshr_b32 s{S_T0}, s{S_T0}, 16            ; wg / 80
    s_mul_i32 s3, s{S_T0}, 80
    s_sub_u32 s3, s25, s3                      ; tile
    s_xor_b32 s{S_JOB}, s{S_T0}, 1             ; 0..79: V' (1), 80..159: QK (0), 160: 3 -> 2
    s_min_u32 s{S_JOB}, s{S_JOB}, 2
    s_cmp_gt_u32 s25, 160
    s_cselect_b32 s{S_JOB}, 3, s{S_JOB}
    s_cbranch_scc0 L_k1_dec
    s_mul_i32 s3, s3, 3
    s_sub_u32 s3, s3, 3
    L_k1_dec:
    s_mov_b32 s{S_T0}, 40
    s_cmp_eq_u32 s{S_JOB}, 1
    s_cselect_b32 s{S_T0}, 56, s{S_T0}
    s_cmp_eq_u32 s{S_JOB}, 2
    s_cselect_b32 s{S_T0}, 64, s{S_T0}
    s_cselect_b32 s35, 32, 0
    s_mov_b32 s{SX + 2}, {N * 256}
    s_cselect_b32 s{SX + 2}, 32768, s{SX + 2}
    s_cmp_eq_u32 s{S_JOB}, 0
    s_cselect_b32 s{S_T1}, 48, 64
    s_load_dwordx2 s[{SX}:{SX + 1}], s[0:1], s35
    s_load_dwordx2 s[{SW1}:{SW1 + 1}], s[0:1], s{S_T0}
    s_load_dwordx2 s[{SW2}:{SW2 + 1}], s[0:1], s{S_T1}
    s_load_dwordx2 s[{SWS}:{SWS + 1}], s[0:1], 88
    v_lshrrev_b32 v1, 6, v0
    v_and_b32 v2, 63, v0                      ; lane
    v_readfirstlane_b32 s{S_W}, v1
    s_mov_b32 s{SX + 3}, 0x00020000
    s_mov_b32 s{SW1 + 2}, 32768
    s_mov_b32 s{SW1 + 3}, 0x00020000
    s_mov_b32 s{SW2 + 2}, 32768
    s_mov_b32 s{SW2 + 3}, 0x00020000
    s_mov_b32 s{SWS + 2}, 0x10000000
    s_mov_b32 s{SWS + 3}, 0x00020000
    s_lshl_b32 s{S_BLK}, s3, 2
    s_add_u32 s{S_BLK}, s{S_BLK}, s{S_W}
    s_lshl_b32 s{S_BLK}, s{S_BLK}, 13          ; *8192 bytes
    s_add_u32 s{S_O2}, s{S_BLK}, 4096
    v_and_b32 v3, 31, v2                       ; n
    v_lshrrev_b32 v4, 5, v2                    ; h
    v_lshrrev_b32 v6, 4, v2                    ; g
    v_and_b32 v7, 15, v2                       ; t
    v_lshlrev_b32 v16, 2, v6
    v_xor_b32 v16, v16, v7
    v_lshlrev_b32 v16, 4, v16
    v_lshl_add_u32 v16, v6, 8, v16
    v_xor_b32 v17, v6, v7
    v_lshlrev_b32 v17, 4, v17
    v_lshl_add_u32 v17, v6, 8, v17
    v_xor_b32 v18, 64, v17
    v_xor_b32 v19, 128, v17
    v_xor_b32 v20, 192, v17
    s_lshl_b32 s{S_T0}, s{S_W}, 13             ; w*8192
    s_add_u32 s{S_T1}, s{S_T0}, 4096
    s_add_u32 m0, s{S_T0}, 0x10000
    s_waitcnt lgkmcnt(0)
    s_and_b32 s{SX + 1}, s{SX + 1}, 0xffff
    s_and_b32 s{SW1 + 1}, s{SW1 + 1}, 0xffff
    s_and_b32 s{SW2 + 1}, s{SW2 + 1}, 0xffff
    s_and_b32 s{SWS + 1}, s{SWS + 1}, 0xffff
    """)
    st(0)
    for k in range(4):
        a(f"buffer_load_dwordx4 v{17 + k}, s[{SX}:{SX + 3}], s{S_BLK} offen offset:{1024 * k} lds")
    a(f"s_add_u32 m0, s{S_T1}, 0x10000")
    a("s_nop 0")
    for k in range(4):
        a(f"buffer_load_dwordx4 v{17 + k}, s[{SX}:{SX + 3}], s{S_O2} offen offset:{1024 * k} lds")

    def wdma(srd, base):
        for half, so in ((0, S_T0), (1, S_T1)):
            a(f"s_add_u32 m0, s{so}, {base}")
            a("s_nop 0")
            for k in range(4):
                a(f"buffer_load_dwordx4 v16, s[{srd}:{srd + 3}], s{so} offen offset:{1024 * k} lds")

    a(f"s_cmp_eq_u32 s{S_JOB}, 3")
    a("s_cbranch_scc1 L_k1_h0")
    wdma(SW1, 0)
    a.label("L_k1_h0r")
    a(f"""
    v_mov_b32 v21, 0
    v_lshlrev_b32 v22, 2, v0
    s_lshl_b32 s{S_O1}, s25, 7
    s_add_u32 s{S_O1}, s{S_O1}, {FLG}
    v_cmp_gt_u32 vcc, 32, v0
    s_and_saveexec_b64 s[30:31], vcc
    s_cbranch_execz L_k1_nz
    buffer_store_dword v21, v22, {ws}, s{S_O1} offen
    """)
    a.label("L_k1_nz")
    a(f"""
    s_mov_b64 exec, s[30:31]
    v_and_b32 v21, 15, v3
    v_xor_b32 v21, v21, v4
    v_lshlrev_b32 v21, 4, v21
    v_lshl_add_u32 v21, v3, 8, v21
    v_add_u32 v21, s{S_T0}, v21
    v_add_u32 v21, 0x10000, v21
    v_lshrrev_b32 v17, 2, v7                   ; r = t>>2
    v_lshrrev_b32 v18, 1, v6                   ; hh = g>>1
    v_and_b32 v19, 1, v6                       ; g&1
    v_lshlrev_b32 v20, 6, v17                  ; r*64
    v_lshl_add_u32 v20, v19, 5, v20            ; + (g&1)*32
    v_and_b32 v22, 3, v7
    v_lshl_add_u32 v20, v22, 3, v20            ; + (t&3)*8
    v_lshl_add_u32 v20, v17, 8, v20            ; + r*256
    v_lshl_add_u32 v{VA}, v18, 11, v20
    v_lshl_add_u32 v{VA + 4}, v18, 10, v20
    """)
    for i in range(1, 4):
        a(f"v_xor_b32 v{VA + i}, {i << 6}, v{VA}")
        a(f"v_xor_b32 v{VA + 4 + i}, {i << 6}, v{VA + 4}")
    for s in range(1, 8):
        a(f"v_xor_b32 v{224 + s}, {s << 5}, v21")
    a(f"s_cmp_eq_u32 s{S_JOB}, 3")
    a("s_cbranch_scc1 L_k1_hw")
    a("s_waitcnt vmcnt(8)")
    a.label("L_k1_xr")
    st(1)
    for s in range(8):
        a(f"ds_read_b128 {vr(XR + 4 * s, 4)}, v{21 if s == 0 else 224 + s}")
    a(f"s_cmp_eq_u32 s{S_JOB}, 2")
    a("s_cbranch_scc1 L_k1_w")
    a(f"s_cmp_eq_u32 s{S_JOB}, 3")
    a("s_cbranch_scc1 L_k1_now2")
    wdma(SW2, 0x8000)
    a.label("L_k1_now2")
    a("s_waitcnt lgkmcnt(0)")
    a.seg("k1_b")
    for i in range(32):
        a(f"v_lshlrev_b32 v{XF + 2 * i}, 16, v{XR + i}")
        a(f"v_and_b32 v{XF + 2 * i + 1}, 0xffff0000, v{XR + i}")
    AC = 22
    a(f"v_pk_add_f32 {vr(AC, 2)}, {vr(XF, 2)}, {vr(XF + 2, 2)}")
    a(f"v_pk_add_f32 {vr(AC + 2, 2)}, {vr(XF + 4, 2)}, {vr(XF + 6, 2)}")
    for i in range(4, 32):
        t = AC + 2 * (i & 1)
        a(f"v_pk_add_f32 {vr(t, 2)}, {vr(t, 2)}, {vr(XF + 2 * i, 2)}")
    a(f"v_pk_add_f32 {vr(AC, 2)}, {vr(AC, 2)}, {vr(AC + 2, 2)}")
    a(f"v_add_f32 v{AC}, v{AC}, v{AC + 1}")

    def xhalf_sum(r, t):
        a(f"v_mov_b32 v{t}, v{r}")
        a("s_nop 1")
        a(f"v_permlane32_swap_b32 v{r}, v{t}")
        a("s_nop 1")
        a(f"v_add_f32 v{r}, v{r}, v{t}")

    xhalf_sum(AC, AC + 1)
    a(f"v_mul_f32 v26, {hex(f2u(-1.0 / 128))}, v{AC}")
    a("v_mov_b32 v27, v26")
    for i in range(32):
        a(f"v_pk_add_f32 {vr(XF + 2 * i, 2)}, {vr(XF + 2 * i, 2)}, v[26:27]")
    a(f"v_pk_mul_f32 {vr(AC, 2)}, {vr(XF, 2)}, {vr(XF, 2)}")
    a(f"v_pk_mul_f32 {vr(AC + 2, 2)}, {vr(XF + 2, 2)}, {vr(XF + 2, 2)}")
    for i in range(2, 32):
        t = AC + 2 * (i & 1)
        a(f"v_pk_fma_f32 {vr(t, 2)}, {vr(XF + 2 * i, 2)}, {vr(XF + 2 * i, 2)}, {vr(t, 2)}")
    a(f"v_pk_add_f32 {vr(AC, 2)}, {vr(AC, 2)}, {vr(AC + 2, 2)}")
    a(f"v_add_f32 v{AC}, v{AC}, v{AC + 1}")
    xhalf_sum(AC, AC + 1)

    def rnd(r):
        a(f"v_cvt_pk_bf16_f32 v{r}, v{r}, v{r}")
        a(f"v_lshlrev_b32 v{r}, 16, v{r}")

    a(f"v_mul_f32 v{AC}, {hex(f2u(1.0 / 128))}, v{AC}")
    rnd(AC)
    a(f"v_add_f32 v{AC}, {hex(f2u(1e-5))}, v{AC}")
    rnd(AC)
    a(f"v_sqrt_f32 v{AC}, v{AC}")
    a(f"v_cvt_pk_bf16_f32 v24, v26, v26")
    rnd(AC)
    a(f"v_rcp_f32 v28, v{AC}")
    a(f"v_lshlrev_b32 v24, 16, v24")
    a(f"v_sub_f32 v24, v24, v26")
    a(f"v_mov_b32 v29, v28")
    a(f"v_mul_f32 v24, v24, v28")
    a(f"v_mov_b32 v25, v24")
    for i in range(32):
        a(f"v_pk_fma_f32 {vr(XF + 2 * i, 2)}, {vr(XF + 2 * i, 2)}, v[28:29], v[24:25]")
    for i in range(32):
        a(f"v_cvt_pk_bf16_f32 v{H + i}, v{XF + 2 * i}, v{XF + 2 * i + 1}")
    c = 1.4426950408889634 / 128 ** 0.5
    a(f"s_mov_b32 s{S_SC}, {hex(f2u(c))}")
    a(f"s_cmp_eq_u32 s{S_JOB}, 0")
    a(f"s_cselect_b32 s{S_SC}, s{S_SC}, 1.0")
    st(2)
    a(f"s_cmp_eq_u32 s{S_JOB}, 3")
    a("s_cbranch_scc1 L_k1_hst")
    a("s_waitcnt vmcnt(8)")
    a("s_barrier")
    st(3)
    WB = [XF, XF + 32]

    def reads(i, buf, addr, base, second):
        for s in range(8):
            a(f"ds_read_b64_tr_b16 {vr(buf + 4 * s, 2)}, v{addr + i} offset:{base + 4096 * s}")
            a(f"ds_read_b64_tr_b16 {vr(buf + 4 * s + 2, 2)}, v{addr + i} offset:{base + 4096 * s + second}")

    def rd(i, s, buf, addr, base, second):
        return [f"ds_read_b64_tr_b16 {vr(buf + 4 * s, 2)}, v{addr + i} offset:{base + 4096 * s}",
                f"ds_read_b64_tr_b16 {vr(buf + 4 * s + 2, 2)}, v{addr + i} offset:{base + 4096 * s + second}"]

    def gemm(addr, base, second, other, w_is_a, first_issued=False, fill=None):
        if not first_issued:
            reads(0, WB[0], addr, base, second)
        for i in range(4):
            fl = list(fill[i]) if fill else []
            per = -(-len(fl) // 6)
            fl = [None] * (2 * per) + fl
            for s in range(8):
                young = 2 * (7 - s) + (2 * s if i < 3 else 0)
                a(f"s_waitcnt lgkmcnt({min(young, 15)})")
                w = vr(WB[i & 1] + 4 * s, 4)
                o = vr(other + 4 * s, 4)
                A, B = (w, o) if w_is_a else (o, w)
                d = vr(D + 16 * i, 16)
                a(f"{MF} {d}, {A}, {B}, {'0' if s == 0 else d}")
                if i < 3:
                    for t in rd(i + 1, s, WB[(i + 1) & 1], addr, base, second):
                        a(t)
                for t in fl[per * s:per * (s + 1)]:
                    if t:
                        a(t)

    G1 = XR

    def pack1(i, scale):
        out = []
        for k in range(8):
            b = D + 16 * i + 2 * k
            if scale:
                out.append(f"v_mul_f32 v{b}, s{S_SC}, v{b}")
                out.append(f"v_mul_f32 v{b + 1}, s{S_SC}, v{b + 1}")
            out.append(f"v_cvt_pk_bf16_f32 v{G1 + 8 * i + k}, v{b}, v{b + 1}")
        return out

    gemm(VA, 0, 1024, H, True, fill=[[]] + [pack1(i, True) for i in range(3)])
    st(4)
    a(f"s_cmp_lg_u32 s{S_JOB}, 0")
    a("s_cbranch_scc1 L_k1_second")
    a.seg("k1_qk")
    a("s_waitcnt vmcnt(0)")
    a("s_barrier")
    a(f"""
    v_lshrrev_b32 v17, 4, v3
    v_lshlrev_b32 v17, 12, v17
    v_and_b32 v18, 15, v3
    v_lshl_add_u32 v17, v18, 4, v17
    v_lshl_add_u32 v17, v4, 8, v17
    s_add_u32 s{S_O1}, s{S_BLK}, {QF}
    s_add_u32 s{S_O2}, s{S_BLK}, {KF}
    """)
    reads(0, WB[0], VA, 32768, 1024)

    def qkst(i, so):
        return [f"buffer_store_dwordx4 {vr(G1 + 8 * i + 4 * k, 4)}, v17, {ws}, s{so} offen offset:{1024 * i + 512 * k}{SC1}" for k in range(2)]

    for i in range(3):
        for t in qkst(i, S_O1):
            a(t)
    for t in pack1(3, True) + qkst(3, S_O1):
        a(t)
    gemm(VA, 32768, 1024, H, True, first_issued=True, fill=[[]] + [pack1(i, False) + qkst(i, S_O2) for i in range(3)])
    a("s_nop 7")
    a("s_nop 3")
    st(5)
    for t in pack1(3, False) + qkst(3, S_O2):
        a(t)
    a("s_branch L_k1_end")
    a.label("L_k1_second")
    a.seg("k1_c")
    a("s_waitcnt vmcnt(0)")
    a("s_barrier")
    reads(0, WB[0], VA + 4, 32768, 2048)
    for t in pack1(3, False):
        a(t)

    def pack2(i, st_):
        out = []
        for kk in range(2):
            t = H + 4 * (2 * i + kk)
            b = D + 16 * i + 4 * kk
            for d, src in enumerate([b, b + 2, b + 8, b + 10]):
                out.append(f"v_cvt_pk_bf16_f32 v{t + d}, v{src}, v{src + 1}")
            out.append(st_(i, kk, t))
        return out

    a.seg("k1_v")
    a(f"""
    v_lshrrev_b32 v17, 4, v3
    v_lshlrev_b32 v17, 10, v17
    v_and_b32 v18, 15, v3
    v_lshl_add_u32 v17, v18, 4, v17
    v_lshl_add_u32 v17, v4, 8, v17
    s_add_u32 s{S_O1}, s{S_BLK}, {VF}
    s_add_u32 s{S_O2}, s{S_O1}, 4096
    """)
    vst = lambda i, kk, t: f"buffer_store_dwordx4 {vr(t, 4)}, v17, {ws}, s{S_O1 if i < 2 else S_O2} offen offset:{(i & 1) * 2048 + kk * 512}{SC1}"
    gemm(VA + 4, 32768, 2048, G1, False, first_issued=True, fill=[[]] + [pack2(i, vst) for i in range(3)])
    a("s_nop 7")
    a("s_nop 3")
    st(5)
    for t in pack2(3, vst):
        a(t)
    a("s_branch L_k1_end")
    a.label("L_k1_h0")
    a.seg("k1_h0")
    for it in (1, 2):
        for half in range(2):
            a(f"s_add_u32 s38, s{S_BLK}, {32768 * it + 4096 * half}")
            a(f"s_add_u32 m0, s{S_T1 if half else S_T0}, {0x10000 - 0x8000 * it}")
            a("s_nop 0")
            for k in range(4):
                a(f"buffer_load_dwordx4 v{17 + k}, s[{SX}:{SX + 3}], s38 offen offset:{1024 * k} lds")
    a("s_mov_b32 s39, 0")
    a("s_branch L_k1_h0r")
    a.label("L_k1_hw")
    a.seg("k1_hw")
    a(f"""
    v_xor_b32 v232, v6, v7
    v_lshlrev_b32 v232, 4, v232
    v_lshl_add_u32 v232, v6, 8, v232
    v_add_u32 v232, s{S_T0}, v232
    v_add_u32 v232, 0x10000, v232
    v_xor_b32 v233, 64, v232
    v_xor_b32 v234, 128, v232
    v_xor_b32 v235, 192, v232
    v_lshlrev_b32 v16, 4, v2
    s_add_u32 s{S_O1}, s{S_BLK}, {MP}
    s_waitcnt vmcnt(16)
    s_branch L_k1_xr
    """)
    a.label("L_k1_hst")
    a.seg("k1_hst")
    for s in range(8):
        a(f"ds_write_b128 v{21 if s == 0 else 224 + s}, {vr(H + 4 * s, 4)}")
    a(f"s_add_u32 s{S_O2}, s{S_O1}, 4096")
    a("s_waitcnt lgkmcnt(0)")
    for k in range(8):
        a(f"ds_read_b128 {vr(D + 4 * k, 4)}, v{232 + (k & 3)} offset:{1024 * k}")
    for r in [21] + list(range(225, 236)):
        a(f"v_subrev_u32 v{r}, 0x8000, v{r}")
    a("s_waitcnt vmcnt(8)")
    for k in range(8):
        a(f"s_waitcnt lgkmcnt({7 - k})")
        a(f"buffer_store_dwordx4 {vr(D + 4 * k, 4)}, v16, {ws}, s{S_O1 if k < 4 else S_O2} offen offset:{1024 * (k & 3)}{SC1}")
    a(f"""
    s_add_u32 s{S_O1}, s{S_O1}, 32768
    s_add_u32 s39, s39, 1
    s_cmp_lt_u32 s39, 3
    s_cbranch_scc1 L_k1_xr
    s_branch L_k1_end
    L_k1_noh:
    """)
    a.label("L_k1_w")
    a.seg("k1_w")
    a(f"""
    v_lshrrev_b32 v17, 4, v3
    v_lshlrev_b32 v17, 12, v17
    v_and_b32 v18, 15, v3
    v_lshl_add_u32 v17, v18, 4, v17
    v_lshl_add_u32 v17, v4, 8, v17
    s_lshl_b32 s{S_O1}, s{S_W}, 10
    s_add_u32 s{S_O1}, s{S_O1}, {WMO}
    s_waitcnt vmcnt(0) lgkmcnt(0)
    s_barrier
    """)
    gemm(VA, 0, 1024, XR, False)
    a("s_nop 7")
    a("s_nop 3")
    for i in range(4):
        for pc in range(2):
            t = H + 4 * (2 * i + pc)
            for d in range(4):
                b = D + 16 * i + 8 * pc + 2 * d
                a(f"v_cvt_pk_bf16_f32 v{t + d}, v{b}, v{b + 1}")
            a(f"buffer_store_dwordx4 {vr(t, 4)}, v17, {ws}, s{S_O1} offen offset:{512 * pc}{SC1}")
        a(f"s_add_u32 s{S_O1}, s{S_O1}, 8192")
    a("s_branch L_k1_end")
    emit_bucket(a, cfg, SWS)
    if BL:
        a(f"s_add_u32 s2, s2, {NWG + NBK}")
    a.label("L_k1_end")
    if BL:
        a(f"s_sub_u32 s2, s2, {NBK}")
    if cfg.get("k1tl"):
        a("s_memrealtime s[60:61]")
        a("s_waitcnt lgkmcnt(0)")
        a("v_lshrrev_b32 v1, 6, v0")
        a("v_lshlrev_b32 v1, 5, v1")
        a(f"s_lshl_b32 s40, s2, 7")
        a(f"s_add_u32 s40, s40, {TR + 0x40000}")
        for i in range(7):
            a(f"v_mov_b32 v{2 + i}, s{48 + 2 * i}")
        a(f"buffer_store_dwordx4 v[2:5], v1, {ws}, s40 offen")
        a(f"buffer_store_dwordx4 v[6:9], v1, {ws}, s40 offen offset:16")
    if cfg.get("dbg"):
        a("s_waitcnt vmcnt(0)")
    dbg_stamp(a, cfg, 1, 0, s=48, v=100)
    stamp_exit(a, cfg, 32, 0, ws, TR)
    a.label("L_k1_exit")
    a("s_endpgm")
    return dict(name=name, vgpr=240, accum=240, sgpr=64, grid=NWG + NBK, block=256, lds=98304,
                chains=[["k1_a", "k1_b", "k1_qk"], ["k1_b", "k1_c", "k1_v"], ["k1_a", "k1_w"], ["k1_a", "k1_h0"], ["k1_a", "k1_hw", "k1_b", "k1_hst", "k1_b"], ["k1_bk"]])
```

```python
from layout import *
from asmlib import stamp_entry, stamp_exit, dbg_stamp

CFG = {}
MF = "v_mfma_f32_16x16x32_bf16"
NWG = 240
NQ = 4
CAP = 72
NGMAX = 15
NSLOT = 24

O, S, NM, P, E_, T, L = 128, 64, 96, 112, 26, 42, 52
VLDS, VL16, VT, VT2, VT3, VOOB = 20, 21, 22, 23, 24, 25
RC, VREM, VSEG, BT = 26, 50, 51, 56
AQ, AK, AV = 0, 64, 96
S_SRD = 4
S_W, S_SRC, S_M0, S_CNT, S_THR, S_SPLIT, S_QT, S_T0, S_T1 = 8, 9, 10, 11, 12, 13, 14, 15, 16
S_LEFT, S_EV, S_NB, S_MODE = 17, 18, 19, 30
S_Q0 = 20
S_PO, S_PL, S_SRC0, S_U = 24, 25, 26, 27
S_K0, S_FV = 28, 29
S_PA = 56
S_V1 = 3
S_OWN = 31
SRD = f"s[{S_SRD}:{S_SRD + 3}]"
SKV = 80
KVS = "s[80:83]"
LDS_FLAG = 131072
ABUF, AAG, AAH, AXV, ADI = 128, 176, 200, 208, 220
GI, GOFF, GLA = 26, 13, 14
SMP = 44
RB = 131072 + 256
LOFF = 384
RSZ = LOFF + CAP * 64 + 384
SENT = 0x7fffff00


def LS():
    return " sc1" if CFG.get("ls") else ""


def vr(b, n):
    return f"v[{b}:{b + n - 1}]"


def ar(b, n):
    return f"a[{b}:{b + n - 1}]"


def qbs(X):
    return [0, 1] if X == "A" else [2, 3]


def St(qb, kb):
    return S + (qb * 2 + kb) * 4


def mfma_qk(qb, kb, s, czero=False):
    d = vr(St(qb, kb), 4)
    c = ("0" if czero else vr(NM + 4 * qb, 4)) if s == 0 else d
    return f"{MF} {d}, {ar(AK + (kb * 4 + s) * 4, 4)}, {ar(AQ + (qb * 4 + s) * 4, 4)}, {c}"


def mfma_pv(qb, db):
    o = vr(O + (qb * 8 + db) * 4, 4)
    return f"{MF} {o}, {ar(AV + 4 * db, 4)}, {vr(P + 4 * qb, 4)}, {o}"


def qk_order(X, nkb=2):
    return [(qb, kb, s) for s in range(4) for kb in range(nkb) for qb in qbs(X)]


def pv_order(X):
    return [(qb, db) for qb in qbs(X) for db in range(8)]


class Op:
    def __init__(self, text, cost, est=0, lst=10 ** 6, deps=(), stream=None):
        self.text, self.cost, self.est, self.lst, self.deps, self.stream = text, cost, est, lst, list(deps), stream
        self.pos = None


def sm_group(X, nkb, tag, chk, rdy, dl):
    ops = []
    idx = 0
    q = qbs(X)
    lastadd = {}
    prev_small = None
    for qb in q:
        d = dl[qb] if not chk else min(dl.values())
        if nkb == 1:
            for k in (2, 3):
                ops.append(Op(f"v_mov_b32 v{P + 4 * qb + k}, 0", 4, rdy["p", qb], d - 1, stream="s" + X))
        for kb in range(nkb):
            for pr in range(2):
                s0 = St(qb, kb) + 2 * pr
                e0, e1 = (E_ + (2 * idx) % 16, E_ + (2 * idx + 1) % 16) if chk else (s0, s0 + 1)
                x0 = Op(f"v_exp_f32 v{e0}, v{s0}", 8, rdy[qb, kb], d - 2, stream="x" + X)
                x1 = Op(f"v_exp_f32 v{e1}, v{s0 + 1}", 8, rdy[qb, kb], d - 2, stream="x" + X)
                ops += [x0, x1]
                acc = (T if chk else L) + qb
                dadd = d - 1 if chk else dl["end"]
                c = Op(f"v_cvt_pk_bf16_f32 v{P + 4 * qb + 2 * kb + pr}, v{e0}, v{e1}", 4, rdy["p", qb], d - 1, [x0, x1], stream="c" + X)
                if chk and qb not in lastadd:
                    a1 = Op(f"v_add_f32 v{acc}, v{e0}, v{e1}", 4, 0, dadd, [x0, x1], stream="a" + X)
                    ops += [a1, c]
                else:
                    a0 = Op(f"v_add_f32 v{acc}, v{acc}, v{e0}", 4, 0, dadd, [x0], stream="a" + X)
                    a1 = Op(f"v_add_f32 v{acc}, v{acc}, v{e1}", 4, 0, dadd, [x1], stream="a" + X)
                    ops += [a0, a1, c]
                lastadd[qb] = a1
                lastc = c
                idx += 1
    if chk:
        d = min(dl.values())
        m = Op(f"v_max_f32 v{VT}, v{T + q[0]}, v{T + q[1]}", 4, 0, d, list(lastadd.values()), stream="a" + X)
        c = Op(f"v_cmp_lt_f32 vcc, s{S_THR}, v{VT}", 4, 0, d, [m], stream="a" + X)
        b = Op(f"s_cbranch_vccnz L_slow_{tag}\nL_back_{tag}:", 0, 0, d, [c, lastc], stream="a" + X)
        ops += [m, c, b]
        for qb in q:
            ops.append(Op(f"v_add_f32 v{L + qb}, v{L + qb}, v{T + qb}", 4, 0, dl["end"], [b], stream="a" + X))
    return ops


def schedule(ops, nm, base=8):
    streams = {}
    for o in ops:
        streams.setdefault(o.stream, []).append(o)
    best = None
    for nextra in range(0, 3 * nm):
        for o in ops:
            o.pos = None
        cap = [base + 4 * ((g + 1) * nextra // nm - g * nextra // nm) for g in range(nm)]
        head = {s: 0 for s in streams}
        out = [[] for _ in range(nm)]
        pos = 0
        ok = True
        for g in range(nm):
            pos += 1
            rem = cap[g]
            while True:
                cand = []
                for s, lst in streams.items():
                    if head[s] >= len(lst):
                        continue
                    o = lst[head[s]]
                    if o.est > g:
                        continue
                    if CFG.get("ds1") and s == "l" and any(t.startswith(("ds_", "buffer")) for t in out[g]) and o.lst > g:
                        continue
                    if any(d.pos is None or pos - d.pos < (CFG.get('xd', 2) if d.cost == 8 else 1) for d in o.deps):
                        continue
                    urg = 10 ** 9
                    acc = 0
                    for o2 in lst[head[s]:]:
                        acc += o2.cost
                        urg = min(urg, (o2.lst - g + 1) * base * o2_share(s) - acc)
                    cand.append((urg, s, o))
                if not cand:
                    break
                cand.sort(key=lambda c: c[0])
                pick = None
                for urg, s, o in cand:
                    if o.cost <= rem or o.lst <= g:
                        pick = (s, o)
                        break
                if pick is None:
                    break
                s, o = pick
                out[g].append(o.text)
                o.pos = pos
                pos += 1
                head[s] += 1
                rem -= o.cost
                if rem <= 0 and not any(streams[t][head[t]].lst <= g or streams[t][head[t]].cost == 0
                                        for t in streams if head[t] < len(streams[t])):
                    break
            if any(head[s] < len(l) and l[head[s]].lst <= g for s, l in streams.items()):
                ok = False
                break
        if ok and all(head[s] == len(l) for s, l in streams.items()):
            cost = {o.text: o.cost for o in ops}
            tot = sum(max(16, 8 + sum(cost[t] for t in out[g])) for g in range(nm))
            if best is None or tot < best[0]:
                best = (tot, out, nextra)
            if nextra > best[2] + 6:
                break
    if best is None:
        raise RuntimeError("cannot schedule")
    return best


def o2_share(s):
    return {"x": 0.5, "a": 0.3, "c": 0.3, "s": 0.3}.get(s[0], 0.3)


def emit_rowmax(a, qb, nkb, dst):
    s = St(qb, 0)
    a(f"v_max3_f32 v{dst}, v{s}, v{s + 1}, v{s + 2}")
    if nkb == 2:
        a(f"v_max3_f32 v{dst}, v{dst}, v{s + 3}, v{s + 4}")
        a(f"v_max3_f32 v{dst}, v{dst}, v{s + 5}, v{s + 6}")
        a(f"v_max_f32 v{dst}, v{dst}, v{s + 7}")
    else:
        a(f"v_max_f32 v{dst}, v{dst}, v{s + 3}")
    for sw in ("v_permlane32_swap_b32", "v_permlane16_swap_b32"):
        a(f"v_mov_b32 v{VT3}, v{dst}")
        a("s_nop 1")
        a(f"{sw} v{dst}, v{VT3}")
        a("s_nop 1")
        a(f"v_max_f32 v{dst}, v{dst}, v{VT3}")


def emit_slow(a, X, nkb, tag):
    a.seg("slow_" + tag)
    a.label(f"L_slow_{tag}")
    a("s_nop 15")
    for qb in qbs(X):
        emit_rowmax(a, qb, nkb, VT)
        a(f"v_max_f32 v{VT}, 0, v{VT}")
        a(f"v_exp_f32 v{VT2}, -v{VT}")
        a("s_nop 0")
        a(f"v_mul_f32 v{L + qb}, v{L + qb}, v{VT2}")
        for i in range(32):
            o = O + qb * 32 + i
            a(f"v_mul_f32 v{o}, v{o}, v{VT2}")
        for i in range(4):
            a(f"v_sub_f32 v{NM + 4 * qb + i}, v{NM + 4 * qb + i}, v{VT}")
        for k in range(2 * nkb):
            s = St(qb, 0) + 2 * k
            a(f"v_sub_f32 v{s}, v{s}, v{VT}")
            a(f"v_sub_f32 v{s + 1}, v{s + 1}, v{VT}")
            a(f"v_exp_f32 v{E_}, v{s}")
            a(f"v_exp_f32 v{E_ + 1}, v{s + 1}")
            a("s_nop 0")
            if k == 0:
                a(f"v_add_f32 v{T + qb}, v{E_}, v{E_ + 1}")
            else:
                a(f"v_add_f32 v{T + qb}, v{T + qb}, v{E_}")
                a(f"v_add_f32 v{T + qb}, v{T + qb}, v{E_ + 1}")
            a(f"v_cvt_pk_bf16_f32 v{P + 4 * qb + k}, v{E_}, v{E_ + 1}")
    a("s_nop 7")
    a(f"s_branch L_back_{tag}")


def emit_body(a, cfg, tag, chk, last=False, nkb=2, gb=None, loop=None):
    PF = cfg["PF"]
    lead = cfg.get("lead", 3)
    mg = cfg.get("mg", 0)
    pvB, qkB, pvA, qkA = pv_order("B"), qk_order("B", nkb), pv_order("A"), qk_order("A")
    mf = [mfma_pv(*x) for x in pvB] + [mfma_qk(*x) for x in qkB]
    pA0 = len(mf)
    mf += [mfma_pv(*x) for x in pvA]
    qA0 = len(mf)
    if not last:
        mf += [mfma_qk(*x) for x in qkA]
    gpos = []
    if gb is not None:
        for k, at in enumerate(cfg.get("gslots", [40, 47, 54, 61])):
            d = ar(AAG + 8 * gb + 4 * (k >> 1), 4)
            mf.insert(at, f"{MF} {d}, {ar(AAH + 4 * (k & 1), 4)}, {ar(ABUF + 16 * gb + 4 * k, 4)}, {d}")
            gpos.append(at)
            if at <= qA0:
                qA0 += 1
    nm = len(mf)
    ops = []
    lds = []
    if gb is not None:
        lds.append(Op(f"ds_read_b128 {vr(GI, 4)}, v{GLA} offset:{gb * RSZ + LOFF}", 4, 2, 7, stream="l"))
        for k, at in enumerate(gpos):
            ad = Op(f"v_add_u32 v{GI + k}, v{GI + k}, v{GOFF}", 4, pA0, at - 1, stream="g")
            ops += [ad, Op(f"buffer_load_dwordx4 {ar(ABUF + 16 * gb + 4 * k, 4)}, v{GI + k}, s[{SMP}:{SMP + 3}], 0 offen offset:{12 - 4 * k}{LS()}",
                           cfg.get("dmacost", 8), at, at, [ad], stream="g")]
        if gb == 2:
            ops.append(Op(f"v_add_u32 v{GLA}, 256, v{GLA}", 4, 10, nm - 1, stream="y"))
    for db in range(8):
        lds.append(Op(f"ds_read_b128 {ar(AV + 4 * db, 4)}, v{VLDS} offset:{8192 + 1024 * db}", 4, 8 + db, pA0 - 6, stream="l"))
    if not last:
        kf = sorted(range(8), key=lambda f: max(i for i, x in enumerate(qkB) if x[1] * 4 + x[2] == f))
        for n, f in enumerate(kf):
            g = 16 + max(i for i, x in enumerate(qkB) if x[1] * 4 + x[2] == f)
            lds.append(Op(f"ds_read_b128 {ar(AK + 4 * f, 4)}, v{VLDS} offset:{1024 * f}", 4, g, qA0 - 6, stream="l"))
        adv = Op(f"v_add_u32 v{VLDS}, 0x4000, v{VLDS}", 4, 0, nm - 1, [lds[-1]], stream="z")
        ops += [adv, Op(f"v_and_b32 v{VLDS}, 0x1ffff, v{VLDS}", 4, 0, nm - 1, [adv], stream="z")]
        dg = cfg.get("dgaps", [0, 1, 33, 34])
        for k in range(4):
            ops.append(Op(f"buffer_load_dwordx4 v{VL16}, {KVS}, s{S_SRC} offen offset:{1024 * k}{LS()} lds", cfg.get("dmacost", 8),
                          dg[k], dg[k], stream="d"))
    ops += lds
    finA = {}
    for i, (qb, kb, s_) in enumerate(qkA):
        finA[qb, kb] = i
    rdy = {t: max(0, finA[t] - len(qkA) + 1 + lead) for t in finA}
    rdy["p", 0] = rdy["p", 1] = 0
    ops += sm_group("A", nkb, tag + "A", chk, rdy, {0: pA0 - 1 - mg, 1: pA0 + 7 - mg, "end": qA0 - 2})
    finB = {}
    for i, (qb, kb, s_) in enumerate(qkB):
        finB[qb, kb] = i
    rdy = {t: 16 + finB[t] + 1 + lead for t in finB}
    rdy["p", 2], rdy["p", 3] = 8, 16
    ops += sm_group("B", nkb, tag + "B", chk, rdy, {2: nm - 1 - mg, 3: nm - 1, "end": nm - 1})
    tot, gaps, nx = schedule(ops, nm)
    if cfg.get("verbose"):
        print("body", tag, "model cycles", tot, "extra", nx)
    if cfg.get("memfirst"):
        for g in range(nm):
            gaps[g].sort(key=lambda t: 0 if t.startswith(("ds_", "buffer")) else 1)
    if cfg.get("explast"):
        for g in range(nm):
            if not any("L_back" in t for t in gaps[g]):
                gaps[g].sort(key=lambda t: 1 if t.startswith("v_exp") else 0)
    order = [t for g in range(nm) for t in gaps[g]]

    def nlds_after(g_end, first_k):
        n = 0
        for g in range(g_end):
            n += sum(1 for t in gaps[g] if t.startswith("ds_read") and f"offset:{0}" is not None and "a[" in t and int(t.split("a[")[1].split(":")[0]) < AV)
        return n

    gaps[pA0 - 1].append(f"s_waitcnt lgkmcnt({nlds_after(pA0, 0)})")
    if not last:
        gaps[qA0 - 1].append("s_waitcnt lgkmcnt(0)")
        lastd = max(dg)
        gaps[lastd + 2].insert(0, f"s_add_u32 s{S_M0}, s{S_M0}, 0x4000")
        gaps[lastd + 3].insert(0, f"s_and_b32 m0, s{S_M0}, 0x1ffff")
        gaps[lastd + 4].insert(0, f"s_add_u32 s{S_SRC}, s{S_SRC}, 0x2000")
        if gb is None or gb == 2:
            gaps[lastd + 5].insert(0, f"s_sub_u32 s{S_CNT}, s{S_CNT}, 1")
            gaps[nm - 2].insert(0, f"s_cmp_lg_u32 s{S_CNT}, 0")
            gaps[nm - 1].append(f"s_cbranch_scc1 L_body_{loop or tag}")
        for at in gpos:
            gaps[at - 1].append("s_waitcnt vmcnt(23)")
    a.seg("body_" + tag)
    a.label(f"L_body_{tag}")
    a(f"s_waitcnt vmcnt({4 * (PF - 1) if gb is None else 24})")
    a("s_barrier")
    for g in range(nm):
        a(mf[g])
        for t in gaps[g]:
            a(t)
    if last:
        fill = []
        for qb in range(2):
            for p in range(4):
                t = 26 + 4 * (p % 2)
                for d in range(4):
                    src = O + (qb * 8 + 2 * p) * 4 + 2 * d
                    fill.append(f"v_cvt_pk_bf16_f32 v{t + d}, v{src}, v{src + 1}")
                fill.append(f"buffer_store_dwordx4 {vr(t, 4)}, v{VL16}, {SRD}, s{S_PA + qb} offen offset:{1024 * p} sc1")
        a("s_nop 1")
        for n, x in enumerate(pvB):
            a(mfma_pv(*x))
            for t in fill[(5 * n) // 2:(5 * (n + 1)) // 2]:
                a(t)


SX, SDG, SOUT = 32, 36, 40
S_REC, S_CAP, S_MAXC, S_N, S_I, S_MASK, S_FLG, S_NOWN = 48, 49, 50, 51, 52, 53, 54, 55
SMK = 64
VX = 15
VDC = 16
VVL = 18
VRB, VDUM, VDREC = 17, 18, 19


def emit_region_reset(a):
    a(f"""
    v_and_b32 v2, 63, v0
    v_and_b32 v3, 15, v0
    v_lshl_add_u32 v3, v3, 2, v{VRB}
    v_mov_b32 v4, 0
    v_lshl_add_u32 v5, v2, 4, v{VRB}
    ds_write_b32 v3, v4
    v_mov_b32 v4, 0x40000000
    ds_write_b32 v{VDC}, v4
    v_mov_b32 v6, {SENT}
    v_mov_b32 v7, {SENT}
    v_mov_b32 v8, {SENT}
    v_mov_b32 v9, {SENT}
    v_lshl_add_u32 v3, v2, 3, v{VRB}
    """)
    for k in range(4):
        a(f"ds_write_b128 v5, v[6:9] offset:{LOFF + 1024 * k}")
    a(f"ds_write_b64 v3, v[6:7] offset:{LOFF + 4096}")


def emit_careful(a, tag, ret):
    a.seg("careful_" + tag)
    a.label(f"L_car_{tag}")
    a("s_nop 7")
    emit_region_reset(a)
    a(f"""
    v_mov_b32 v10, 1
    s_mov_b64 s[{SMK + 2}:{SMK + 3}], -1
    s_waitcnt lgkmcnt(0)
    """)
    a.label(f"L_car_loop_{tag}")
    a(f"""
    buffer_load_dwordx4 {vr(RC, 4)}, v{VSEG}, {SRD}, s{S_REC} offen{LS()}
    s_waitcnt vmcnt(0)
    """)
    for k in range(4):
        r = RC + k
        a(f"""
        v_cmp_lt_u32 vcc, 0, v{VREM}
        v_and_or_b32 v{BT}, v{r}, 60, v{VRB}
        s_nop 0
        s_and_b64 vcc, vcc, s[{SMK + 2}:{SMK + 3}]
        s_nop 0
        v_cndmask_b32 v{BT}, v{VDC}, v{BT}, vcc
        ds_add_rtn_u32 v{BT + 1}, v{BT}, v10
        s_waitcnt lgkmcnt(0)
        v_cmp_gt_u32 s[{SMK + 2}:{SMK + 3}], s{S_CAP}, v{BT + 1}
        v_min_u32 v{BT + 1}, s{S_CAP}, v{BT + 1}
        v_lshl_add_u32 v{BT}, v{BT + 1}, 6, v{BT}
        ds_write_b32 v{BT}, v{r} offset:{LOFF}
        v_cndmask_b32 v{BT + 1}, 0, v10, s[{SMK + 2}:{SMK + 3}]
        v_sub_u32 v{VREM}, v{VREM}, v{BT + 1}
        v_lshl_add_u32 v{VSEG}, v{BT + 1}, 2, v{VSEG}
        """)
    a(f"""
    s_cmp_lg_u64 s[{SMK + 2}:{SMK + 3}], 0
    s_cbranch_scc1 L_car_loop_{tag}
    s_waitcnt lgkmcnt(0)
    s_branch {ret}
    """)


def emit_k2(a, cfg):
    PF = cfg["PF"]
    NB0 = cfg.get("NB0", 3)
    NBR = cfg.get("NBR", 2)
    OSC = {0: "", 1: " sc1", 2: " nt", 3: " sc0 sc1"}[cfg.get("osc", 0)]
    CFG.clear()
    CFG.update(cfg)
    LIM = cfg.get("lim", NWG)
    name = "k2_attn_kernel"
    if cfg.get("map", 0) == 0:
        mapping = f"""s_and_b32 s{S_T0}, s2, 7
    s_mul_i32 s{S_T0}, s{S_T0}, {NWG // 8}
    s_lshr_b32 s{S_T1}, s2, 3
    s_add_u32 s{S_T0}, s{S_T0}, s{S_T1}          ; g
    s_mul_i32 s{S_SPLIT}, s{S_T0}, 1639
    s_lshr_b32 s{S_SPLIT}, s{S_SPLIT}, 16        ; split = g / 40
    s_mul_i32 s{S_T1}, s{S_SPLIT}, 40
    s_sub_u32 s{S_QT}, s{S_T0}, s{S_T1}          ; q tile"""
    elif cfg.get("map") == 2:
        mapping = f"""s_and_b32 s{S_T0}, s2, 7
    s_lshr_b32 s{S_T1}, s2, 3
    s_mul_i32 s{S_QT}, s{S_T0}, 29
    s_add_u32 s{S_QT}, s{S_QT}, s{S_T1}
    s_cmp_eq_u32 s{S_T0}, 7
    s_addc_u32 s{S_QT}, s{S_QT}, 0
    s_add_u32 s{S_SPLIT}, s{S_T0}, 234
    s_cmp_lt_u32 s{S_T0}, 6
    s_cselect_b32 s{S_MODE}, 29, 99
    s_cmp_eq_u32 s{S_T1}, s{S_MODE}
    s_cselect_b32 s{S_T0}, s{S_SPLIT}, s{S_QT}
    s_mul_i32 s{S_QT}, s{S_T0}, 10923
    s_lshr_b32 s{S_QT}, s{S_QT}, 16
    s_mul_i32 s{S_SPLIT}, s{S_QT}, 6
    s_sub_u32 s{S_SPLIT}, s{S_T0}, s{S_SPLIT}"""
    else:
        mapping = f"""s_and_b32 s{S_T0}, s2, 7
    s_mul_i32 s{S_T0}, s{S_T0}, 5
    s_lshr_b32 s{S_T1}, s2, 3
    s_mul_i32 s{S_QT}, s{S_T1}, 43
    s_lshr_b32 s{S_QT}, s{S_QT}, 8               ; j / 6
    s_mul_i32 s{S_SPLIT}, s{S_QT}, 6
    s_sub_u32 s{S_SPLIT}, s{S_T1}, s{S_SPLIT}
    s_add_u32 s{S_QT}, s{S_QT}, s{S_T0}"""
    a.raw(".text")
    a.raw(f".globl {name}\n.p2align 8\n.type {name},@function")
    a.label(name)
    a.seg("k2_pro0")
    a(f"""
    s_cmp_ge_u32 s2, {LIM}
    s_cbranch_scc1 L_k2_end
    """)
    if cfg.get("dbg"):
        a("s_cmp_gt_u32 s2, 7")
        a("s_cbranch_scc1 L_k2_nod")
        dbg_stamp(a, cfg, 2, 512, inv=True, s=88, v=100)
        a.label("L_k2_nod")
    if cfg.get("tl") or cfg.get("stamp"):
        a("s_memrealtime s[84:85]")
    if cfg.get("spf"):
        a(f"""
        s_getpc_b64 s[92:93]
        L_k2_pc:
        s_sub_u32 s92, s92, L_k2_pc - k2_attn_kernel
        s_subb_u32 s93, s93, 0
        s_lshr_b32 s94, s2, 3
        s_lshl_b32 s94, s94, 10
        s_min_u32 s94, s94, L_k2_last - k2_attn_kernel - 1024
        v_lshl_add_u32 v60, v0, 2, s94
        global_load_dword v61, v60, s[92:93]
        """)
    a(f"""
    s_load_dwordx2 s[{S_SRD}:{S_SRD + 1}], s[0:1], 88
    s_load_dwordx2 s[{SX}:{SX + 1}], s[0:1], 0
    s_load_dwordx2 s[{SDG}:{SDG + 1}], s[0:1], 24
    s_load_dwordx2 s[{SOUT}:{SOUT + 1}], s[0:1], 72
    v_lshrrev_b32 v1, 6, v0
    v_and_b32 v2, 63, v0
    v_readfirstlane_b32 s{S_W}, v1
    v_lshlrev_b32 v{VL16}, 4, v2
    v_lshlrev_b32 v12, 2, v2
    {mapping}
    s_mov_b32 s{S_SRD + 2}, 0x10000000
    s_mov_b32 s{S_SRD + 3}, 0x00020000
    s_mov_b32 s{SX + 2}, {N * 256}
    s_mov_b32 s{SX + 3}, 0x00020000
    s_mov_b32 s{SDG + 2}, {N * 2}
    s_mov_b32 s{SDG + 3}, 0x00020000
    s_mov_b32 s{SOUT + 2}, {N * 256}
    s_mov_b32 s{SOUT + 3}, 0x00020000
    s_mov_b32 s{SMP + 2}, {N * 256}
    s_mov_b32 s{SMP + 3}, 0x00020000
    s_mov_b32 s{S_THR}, 0x4b800000               ; 2^24
    s_lshl_b32 s{S_T0}, s{S_W}, 12
    s_mul_i32 s{S_SRC0}, s{S_SPLIT}, {52 * 8192}
    s_add_u32 s{S_SRC0}, s{S_SRC0}, s{S_T0}
    s_mov_b32 s{S_T1}, {KF}
    s_cmp_lt_u32 s{S_W}, 2
    s_cselect_b32 s{S_T1}, s{S_T1}, {VF - 8192 - 8192}
    s_add_u32 s{S_SRC0}, s{S_SRC0}, s{S_T1}
    s_lshl_b32 s{S_Q0}, s{S_QT}, 16
    s_lshl_b32 s{S_T1}, s{S_W}, 14
    s_add_u32 s{S_Q0}, s{S_Q0}, s{S_T1}
    s_add_u32 s{S_Q0}, s{S_Q0}, {QF}
    s_add_u32 s{S_Q0 + 1}, s{S_Q0}, 0x1000
    s_add_u32 s{S_Q0 + 2}, s{S_Q0}, 0x2000
    s_add_u32 s{S_Q0 + 3}, s{S_Q0}, 0x3000
    s_mul_i32 s{S_T1}, s{S_QT}, 6
    s_add_u32 s{S_T1}, s{S_T1}, s{S_SPLIT}
    s_lshl_b32 s{S_PO}, s{S_T1}, 16
    s_lshl_b32 s{S_T0}, s{S_W}, 14
    s_add_u32 s{S_PO}, s{S_PO}, s{S_T0}
    s_add_u32 s{S_PO}, s{S_PO}, {PO}
    s_lshl_b32 s{S_PL}, s{S_T1}, 11
    s_lshl_b32 s{S_T0}, s{S_W}, 9
    s_add_u32 s{S_PL}, s{S_PL}, s{S_T0}
    s_add_u32 s{S_PL}, s{S_PL}, {PL}
    s_lshl_b32 s{S_T0}, s{S_W}, 2
    s_lshl_b32 s{S_OWN}, {1 | 1 << 6 | 1 << 12}, s{S_SPLIT}
    s_lshr_b32 s{S_OWN}, s{S_OWN}, s{S_T0}
    s_add_u32 s{S_T0}, s{S_PO}, 0
    s_bitcmp1_b32 s{S_OWN}, 0
    s_cselect_b32 s{S_PA + 0}, 0x7fff0000, s{S_T0}
    s_add_u32 s{S_T0}, s{S_PO}, 4096
    s_bitcmp1_b32 s{S_OWN}, 1
    s_cselect_b32 s{S_PA + 1}, 0x7fff0000, s{S_T0}
    s_add_u32 s{S_T0}, s{S_PO}, 8192
    s_bitcmp1_b32 s{S_OWN}, 2
    s_cselect_b32 s{S_PA + 2}, 0x7fff0000, s{S_T0}
    s_add_u32 s{S_T0}, s{S_PO}, 12288
    s_bitcmp1_b32 s{S_OWN}, 3
    s_cselect_b32 s{S_PA + 3}, 0x7fff0000, s{S_T0}
    v_mov_b32 v{VX}, 0x7fff0000
    v_mov_b32 v{VSEG}, 0
    s_cmp_lt_u32 s{S_SPLIT}, 2
    s_cselect_b32 s{S_T0}, 0, 0x7fff0000
    v_add_u32 v{VVL}, s{S_T0}, v{VL16}
    s_mov_b32 s{S_U}, 51
    s_mov_b32 s{S_MODE}, 0
    s_add_u32 s{S_T0}, s{S_U}, 1
    s_cmp_lt_u32 s{S_W}, 2
    s_cselect_b32 s{S_T1}, 0, 1
    s_add_u32 s{S_T0}, s{S_T0}, s{S_T1}
    s_lshl_b32 s{S_T0}, s{S_T0}, 13
    s_add_u32 s{SKV + 2}, s{S_SRC0}, s{S_T0}
    s_sub_u32 s{SKV + 2}, s{SKV + 2}, 4096
    s_mov_b32 s{SKV + 3}, 0x00020000
    s_mov_b32 s{S_REC}, {REC}
    s_mov_b32 s{S_K0}, {KF + 312 * 8192}
    s_mov_b32 s{S_FV}, {VF + 312 * 8192}
    s_add_u32 s{S_V1}, s{S_FV}, 4096
    s_mov_b32 s{S_CAP}, {CAP}
    s_lshl_b32 s{S_FLG}, s{S_QT}, 7
    s_add_u32 s{S_FLG}, s{S_FLG}, {FLG}
    s_mul_i32 s{S_T0}, s{S_W}, 6
    s_add_u32 s{S_T0}, s{S_T0}, s{S_SPLIT}
    s_lshl_b32 s{S_T1}, s{S_QT}, 4
    s_add_u32 s{S_T1}, s{S_T1}, s{S_T0}
    s_cmp_lt_u32 s{S_T0}, 16
    s_cselect_b32 s{S_MASK}, -1, 0
    s_cmp_lt_u32 s{S_T1}, {N // 16}
    s_cselect_b32 s{S_MASK}, s{S_MASK}, 0
    s_lshl_b32 s{S_I}, s{S_T1}, 8
    s_add_u32 s{S_I}, s{S_I}, {TAB}
    s_mul_i32 s{S_T0}, s{S_W}, {RSZ}
    s_add_u32 s{S_T0}, s{S_T0}, {RB}
    v_mov_b32 v{VRB}, s{S_T0}
    s_add_u32 s{S_T0}, s{S_T0}, 64
    v_add_u32 v{VDC}, s{S_T0}, v12
    v_mov_b32 v{VOOB}, 0x7fffffff
    v_mov_b32 v4, 0
    v_mov_b32 v5, {LDS_FLAG}
    ds_write_b32 v5, v4
    """)
    emit_region_reset(a)
    a(f"""
    s_waitcnt lgkmcnt(0)
    s_and_b32 s{S_SRD + 1}, s{S_SRD + 1}, 0xffff
    s_and_b32 s{SX + 1}, s{SX + 1}, 0xffff
    s_and_b32 s{SDG + 1}, s{SDG + 1}, 0xffff
    s_and_b32 s{SOUT + 1}, s{SOUT + 1}, 0xffff
    s_mov_b32 s{SKV}, s{S_SRD}
    s_mov_b32 s{SKV + 1}, s{S_SRD + 1}
    s_add_u32 s{SMP}, s{S_SRD}, {MP}
    s_addc_u32 s{SMP + 1}, s{S_SRD + 1}, 0
    buffer_load_dword v{VREM}, v12, {SRD}, s{S_I} offen{LS()}
    """)
    def lane_setup():
        a(f"""
        v_bfe_u32 v2, v0, 2, 2
        v_and_b32 v3, 3, v0
        v_bfe_u32 v4, v0, 4, 2
        s_lshl_b32 s{S_T0}, s{S_W}, 6
        s_sub_u32 s{S_T1}, s{S_T0}, 12
        v_lshlrev_b32 v{GOFF}, 4, v3
        v_add_u32 v{GOFF}, s{S_T1}, v{GOFF}
        v_lshlrev_b32 v5, 4, v2
        v_sub_u32 v{GOFF}, v{GOFF}, v5               ; 64w + 16q - 16n' - 12
        v_lshlrev_b32 v{GLA}, 4, v2
        v_lshl_add_u32 v{GLA}, v4, 6, v{GLA}
        v_add_u32 v{GLA}, {RB}, v{GLA}
        """)

    def maxc():
        a(f"""
        v_and_b32 v6, 15, v0
        v_bfe_u32 v7, v0, 4, 2
        v_mul_u32_u24 v7, {RSZ}, v7
        v_lshl_add_u32 v7, v6, 2, v7
        v_add_u32 v7, {RB}, v7
        ds_read_b32 v9, v7
        s_waitcnt lgkmcnt(0)
        """)
        for sh in ("row_shr:1", "row_shr:2", "row_shr:4", "row_shr:8"):
            a(f"v_max_u32_dpp v9, v9, v9 {sh} row_mask:0xf bank_mask:0xf")
            a("s_nop 1")
        a("v_max_u32_dpp v9, v9, v9 row_bcast:15 row_mask:0xa bank_mask:0xf")
        a("s_nop 1")
        a("v_max_u32_dpp v9, v9, v9 row_bcast:31 row_mask:0xc bank_mask:0xf")
        a("s_nop 1")
        a(f"v_readlane_b32 s{S_MAXC}, v9, 63")
        a("s_nop 3")
        a(f"s_min_u32 s{S_N}, s{S_MAXC}, {CAP}")
        a(f"s_add_u32 s{S_N}, s{S_N}, 3")
        a(f"s_lshr_b32 s{S_N}, s{S_N}, 2")

    if cfg.get("ptl"):
        a("s_memrealtime s[98:99]")
    a.label("L_k2_restart")
    a.seg("k2_pro")
    a(f"s_mov_b32 s{S_SRC}, s{S_SRC0}")
    a(f"s_lshl_b32 s{S_M0}, s{S_W}, 12")
    a(f"s_mov_b32 m0, s{S_M0}")
    a(f"s_mov_b32 s{S_LEFT}, s{S_U}")

    def dma_stage():
        for k in range(4):
            a(f"buffer_load_dwordx4 v{VL16}, {KVS}, s{S_SRC} offen offset:{1024 * k}{LS()} lds")

    def dma_adv():
        a(f"s_add_u32 s{S_M0}, s{S_M0}, 0x4000")
        a(f"s_and_b32 m0, s{S_M0}, 0x1ffff")
        a(f"s_add_u32 s{S_SRC}, s{S_SRC}, 0x2000")

    for i in range(8):
        a(f"v_mov_b32 v{P + 8 + i}, 0")
    zq = [f"v_mfma_f32_32x32x16_bf16 {vr(O + 16 * i, 16)}, {vr(P + 8, 4)}, {vr(P + 8, 4)}, 0" for i in range(8)]
    for s_ in range(4):
        a(f"buffer_load_dwordx4 {ar(AK + 16 + 4 * s_, 4)}, v{VL16}, {SRD}, s{S_K0} offen offset:{1024 * s_}{LS()}")
    for i in range(16):
        a(f"buffer_load_dwordx4 {ar(4 * i, 4)}, v{VL16}, {SRD}, s{S_Q0 + (i >> 2)} offen offset:{1024 * (i & 3)}{LS()}")
        if i % 2 == 1:
            a(zq.pop())
    dma_stage()
    dma_adv()
    for j in range(8):
        a(f"buffer_load_dwordx4 {ar(AV + 4 * j, 4)}, v{VVL}, {SRD}, s{S_FV if j < 4 else S_V1} offen offset:{1024 * (j & 3)}{LS()}")
    dma_stage()
    dma_adv()
    assert not zq
    a(f"s_cmp_lg_u32 s{S_MODE}, 0")
    a("s_cbranch_scc1 L_k2_nosetup")
    lane_setup()
    a(f"""
    v_and_b32 v6, 15, v0
    v_and_b32 v7, 1, v6
    v_lshlrev_b32 v7, 4, v7
    v_mov_b32 v8, 0x3f80
    v_lshlrev_b32 v7, v7, v8                     ; value
    v_lshrrev_b32 v6, 1, v6                      ; 0..7 = (h, dword)
    """)
    for k in range(8):
        a(f"v_cmp_eq_u32 s[{SMK + 2 * k}:{SMK + 2 * k + 1}], {k}, v6")
    for k in range(8):
        a(f"v_cndmask_b32 v{BT + k}, 0, v7, s[{SMK + 2 * k}:{SMK + 2 * k + 1}]")
    for k in range(8):
        a(f"v_accvgpr_write_b32 a{AAH + k}, v{BT + k}")
    Z = vr(P + 8, 4)
    for i in range(4):
        a(f"v_mfma_f32_32x32x16_bf16 {ar(ABUF + 16 * i, 16)}, {Z}, {Z}, 0")
    for i in range(2):
        a(f"{MF} {ar(ABUF + 64 + 4 * i, 4)}, {Z}, {Z}, 0")
    a.label("L_k2_nosetup")
    a.seg("k2_pro2")
    for qb in range(NQ):
        a(f"v_mov_b32 v{L + qb}, 0")
    a(f"v_add_u32 v{VLDS}, 0x4000, v{VL16}")
    if cfg.get("ptl"):
        a("s_memrealtime s[62:63]")
    a("s_waitcnt vmcnt(16)")
    if cfg.get("ptl"):
        a("s_memrealtime s[60:61]")
    dq = []
    for st in range(PF - 1):
        dq += [[f"buffer_load_dwordx4 v{VL16}, {KVS}, s{S_SRC} offen offset:{1024 * k}{LS()} lds"] for k in range(4)]
        dq[-1] += [f"s_add_u32 s{S_M0}, s{S_M0}, 0x4000", f"s_and_b32 m0, s{S_M0}, 0x1ffff", f"s_add_u32 s{S_SRC}, s{S_SRC}, 0x2000"]
    n = 0
    for s_ in range(4):
        for qb in range(4):
            d = vr(St(qb, 1), 4)
            a(f"{MF} {d}, {ar(AK + 16 + 4 * s_, 4)}, {ar(AQ + (qb * 4 + s_) * 4, 4)}, {'0' if s_ == 0 else d}")
            if n % 4 == 1:
                for t in dq.pop(0):
                    a(t)
            n += 1
    a("s_waitcnt vmcnt(16)")
    a("s_barrier")
    if cfg.get("ptl"):
        a("s_memrealtime s[88:89]")
    for s in range(8):
        a(f"ds_read_b128 {ar(AK + 4 * s, 4)}, v{VL16} offset:{1024 * s}")
    a("s_nop 1")
    MX = 26
    for qb in range(4):
        s0 = St(qb, 1)
        a(f"v_max3_f32 v{MX + qb}, v{s0}, v{s0 + 1}, v{s0 + 2}")
    for qb in range(4):
        a(f"v_max_f32 v{MX + qb}, v{MX + qb}, v{St(qb, 1) + 3}")
    for sw in ("v_permlane32_swap_b32", "v_permlane16_swap_b32"):
        for qb in range(4):
            a(f"v_mov_b32 v{MX + 4 + qb}, v{MX + qb}")
        a("s_nop 0")
        for qb in range(4):
            a(f"{sw} v{MX + qb}, v{MX + 4 + qb}")
        a("s_nop 0")
        for qb in range(4):
            a(f"v_max_f32 v{MX + qb}, v{MX + qb}, v{MX + 4 + qb}")
    for qb in range(4):
        for i in range(4):
            a(f"v_sub_f32 v{NM + 4 * qb + i}, 0, v{MX + qb}")
    a(f"s_cmp_lt_u32 s{S_SPLIT}, 2")
    a("s_cbranch_scc1 L_lo")
    a.label("L_lo_ret")
    a.seg("k2_pro3")
    a("s_waitcnt lgkmcnt(0)")
    for n, x in enumerate(qk_order("A")):
        a(mfma_qk(*x))
        if n % 2 == 0 and dq:
            for t in dq.pop(0):
                a(t)
    assert not dq
    if cfg.get("stamp"):
        a("s_memtime s[90:91]")
        a("s_memrealtime s[92:93]")
        a("s_waitcnt lgkmcnt(0)")
    a(f"s_cmp_lg_u32 s{S_MODE}, 0")
    a("s_cbranch_scc1 L_safe")
    if cfg.get("ptl"):
        a("s_memrealtime s[86:87]")
        a("s_waitcnt lgkmcnt(0)")
    a(f"s_mov_b32 s{S_CNT}, {NBR}")
    a(f"s_mov_b32 s{S_EV}, 0")
    a.raw(".p2align 6")
    emit_body(a, cfg, "m", False)
    a.seg("k2_mid")
    a(f"s_add_u32 s{S_EV}, s{S_EV}, 1")
    a(f"s_cmp_eq_u32 s{S_EV}, 4")
    a("s_cbranch_scc1 L_loop_done")
    a(f"s_cmp_eq_u32 s{S_EV}, 3")
    a("s_cbranch_scc1 L_ev_g")
    a(f"s_cmp_eq_u32 s{S_EV}, 2")
    a("s_cbranch_scc1 L_ev_b")
    a.seg("k2_evr")
    dbg_stamp(a, cfg, 3, 512, s=88, v=2)
    a(f"""
    v_and_b32 v{VREM}, s{S_MASK}, v{VREM}
    v_and_b32 v2, 63, v0
    v_mul_u32_u24 v2, {RECS}, v2
    v_and_b32 v3, 0xffff, v{VREM}
    v_lshl_add_u32 v{VSEG}, v3, 2, v2
    v_lshrrev_b32 v{VREM}, 16, v{VREM}
    """)
    for k in range(NSLOT // 4):
        a(f"buffer_load_dwordx4 {vr(RC + 4 * k, 4)}, v{VSEG}, {SRD}, s{S_REC} offen offset:{16 * k}{LS()}")
    a(f"s_mov_b32 s{S_CNT}, {NB0}")
    a("s_branch L_body_m")
    a.label("L_ev_b")
    a.seg("k2_ev")
    if cfg.get("ptl"):
        a("s_memrealtime s[100:101]")
        a("s_waitcnt lgkmcnt(0)")
    a(f"s_waitcnt vmcnt({4 * NB0})")
    a("v_mov_b32 v12, 1")
    RK = 4
    for grp in range(NSLOT // 8):
        for k in range(8):
            a(f"v_cmp_lt_u32 s[{SMK + 2 * k}:{SMK + 2 * k + 1}], {8 * grp + k}, v{VREM}")
        for k in range(8):
            a(f"v_and_or_b32 v{BT + k}, v{RC + 8 * grp + k}, 60, v{VRB}")
        if grp:
            a(f"s_cmp_eq_u64 s[{SMK}:{SMK + 1}], 0")
            a("s_cbranch_scc1 L_ev_built")
        for k in range(8):
            a(f"v_cndmask_b32 v{BT + k}, v{VDC}, v{BT + k}, s[{SMK + 2 * k}:{SMK + 2 * k + 1}]")
            a(f"ds_add_rtn_u32 v{RK + k}, v{BT + k}, v12")
        for k in range(8):
            a(f"s_waitcnt lgkmcnt(7)")
            a(f"v_min_u32 v{RK + k}, s{S_CAP}, v{RK + k}")
            a(f"v_lshl_add_u32 v{BT + k}, v{RK + k}, 6, v{BT + k}")
            a(f"ds_write_b32 v{BT + k}, v{RC + 8 * grp + k} offset:{LOFF}")
    a.label("L_ev_built")
    a(f"""
    v_and_b32 v2, 15, v0
    v_lshl_add_u32 v2, v2, 2, v{VRB}
    ds_read_b32 v3, v2
    v_cmp_lt_u32 s[{SMK}:{SMK + 1}], {NSLOT}, v{VREM}
    s_waitcnt lgkmcnt(0)
    v_cmp_lt_u32 vcc, s{S_CAP}, v3
    s_nop 3
    s_or_b64 vcc, vcc, s[{SMK}:{SMK + 1}]
    s_cbranch_vccnz L_car_e
    v_mov_b32 v{VREM}, 0
    """)
    a.label("L_ev_ret")

    a(f"s_mov_b32 s{S_CNT}, 1")
    a("s_branch L_body_m")
    a.label("L_ev_g")
    a.seg("k2_evg")
    maxc()
    a(f"""
    s_min_u32 s{S_CNT}, s{S_N}, {NGMAX}
    s_max_u32 s{S_CNT}, s{S_CNT}, 1
    s_sub_u32 s{S_N}, s{S_N}, s{S_CNT}
    s_mul_i32 s{S_T0}, s{S_CNT}, 3
    s_sub_u32 s{S_LEFT}, s{S_LEFT}, s{S_T0}
    s_sub_u32 s{S_LEFT}, s{S_LEFT}, {NBR + NB0 + 1}
    v_bfe_u32 v2, v0, 2, 2
    v_and_b32 v3, 3, v0
    v_bfe_u32 v4, v0, 4, 2
    s_lshl_b32 s{S_T0}, s{S_W}, 6
    s_lshl_b32 s{S_T1}, s{S_QT}, 4
    s_add_u32 s{S_T1}, s{S_T1}, s{S_SPLIT}
    s_lshl_b32 s{S_I}, s{S_T1}, 12
    s_add_u32 s{S_I}, s{S_I}, s{S_T0}
    v_lshrrev_b32 v5, 1, v4
    v_lshl_add_u32 v5, v5, 2, v2
    v_and_b32 v6, 1, v4
    v_lshlrev_b32 v{VX}, 8, v5
    v_lshl_add_u32 v{VX}, v6, 5, v{VX}
    v_lshl_add_u32 v{VX}, v3, 3, v{VX}
    v_add_u32 v{VX}, s{S_I}, v{VX}
    v_add_u32 v10, {6 * 4096}, v{VX}
    v_add_u32 v11, {12 * 4096}, v{VX}
    s_lshl_b32 s{S_I}, s{S_T1}, 5
    v_lshlrev_b32 v5, 1, v5
    v_add_u32 v5, s{S_I}, v5
    s_waitcnt vmcnt(0)
    """)
    for b in range(3):
        for m in range(2):
            a(f"buffer_load_dwordx2 {ar(AXV + 4 * b + 2 * m, 2)}, v{[VX, 10, 11][b]}, s[{SX}:{SX + 3}], 0 offen offset:{2048 * m}")
            a(f"buffer_load_ushort a{ADI + 2 * b + m}, v5, s[{SDG}:{SDG + 3}], 0 offen offset:{192 * b + 16 * m}")
    if cfg.get("touch"):
        a(f"buffer_load_dword a226, v{VL16}, {SRD}, s{S_PO} offen")
        a(f"buffer_load_dword a227, v{VL16}, {SRD}, s{S_PL} offen")
        a(f"buffer_load_dword a228, v{VL16}, {SRD}, s{S_FLG} offen")
        a(f"buffer_load_dword a229, v{VX}, s[{SOUT}:{SOUT + 3}], 0 offen")
    a.raw(".p2align 6")
    for gb in range(3):
        emit_body(a, cfg, f"g{gb}", False, gb=gb, loop="g0")
    a.seg("k2_gx")
    if cfg.get("spf2"):
        a(f"""
        s_lshl_b32 s94, s{S_W}, 11
        s_add_u32 s94, s94, L_body_lf - k2_attn_kernel
        v_add_u32 v60, s94, v{VL16}
        global_load_dwordx4 a[232:235], v60, s[92:93]
        global_load_dwordx4 a[236:239], v60, s[92:93] offset:1024
        """)
    a(f"s_mov_b32 s{S_CNT}, s{S_LEFT}")
    a(f"s_cmp_lg_u32 s{S_LEFT}, 0")
    a("s_cbranch_scc1 L_body_m")
    a.label("L_loop_done")
    a.seg("k2_mid2")
    if cfg.get("stamp"):
        a("s_memtime s[94:95]")
        a("s_memrealtime s[96:97]")
        a(f"s_load_dwordx2 s[64:65], s[0:1], 80")
        a("s_waitcnt lgkmcnt(0)")
        a("s_sub_u32 s94, s94, s90")
        a("s_sub_u32 s96, s96, s92")
        a("v_mov_b32 v2, s94")
        a("v_mov_b32 v3, s96")
        a("s_and_b32 s65, s65, 0xffff")
        a("s_mov_b32 s66, 256")
        a("s_mov_b32 s67, 0x00020000")
        a("s_lshr_b32 s72, s2, 3")
        a("s_lshl_b32 s72, s72, 3")
        a("v_mov_b32 v4, s72")
        a("s_and_b32 s73, s2, 7")
        a(f"s_or_b32 s73, s73, s{S_W}")
        a("s_cmp_lg_u32 s73, 0")
        a("s_cbranch_scc1 L_nostamp")
        a("buffer_store_dwordx2 v[2:3], v4, s[64:67], 0 offen")
        a.label("L_nostamp")
    emit_body(a, cfg, "lf", False, last=True, nkb=2)
    a.label("L_k2_chk")
    a.seg("k2_chk")
    if cfg.get("tl") and not cfg.get("ptl"):
        a("s_memrealtime s[98:99]")
    VPLA = 8
    smp = f"s[{SMP}:{SMP + 3}]"

    def consume_all():
        for b in range(3):
            for k in range(4):
                d = ar(AAG + 8 * b + 4 * (k >> 1), 4)
                a(f"{MF} {d}, {ar(AAH + 4 * (k & 1), 4)}, {ar(ABUF + 16 * b + 4 * k, 4)}, {d}")

    def pub(qb):
        for p in range(4):
            t = 26 + 4 * (p % 2)
            for d in range(4):
                src = O + (qb * 8 + 2 * p) * 4 + 2 * d
                a(f"v_cvt_pk_bf16_f32 v{t + d}, v{src}, v{src + 1}")
            a(f"buffer_store_dwordx4 {vr(t, 4)}, v{VL16}, {SRD}, s{S_PA + qb} offen offset:{1024 * p} sc1")

    pub(2)
    pub(3)
    a(f"""
    v_max3_f32 v4, v{L}, v{L + 1}, v{L + 2}
    v_max_f32 v4, v4, v{L + 3}
    v_add_f32 v6, v{L}, v{L + 1}
    v_add_f32 v7, v{L + 2}, v{L + 3}
    v_add_f32 v6, v6, v7
    s_mov_b32 s{S_T0}, 0x53800000
    v_cmp_ngt_f32 vcc, s{S_T0}, v4
    v_cmp_u_f32 s[{SMK}:{SMK + 1}], v6, v6
    v_mov_b32 v5, {LDS_FLAG}
    v_mov_b32 v4, 1
    s_or_b64 vcc, vcc, s[{SMK}:{SMK + 1}]
    s_cbranch_vccz L_k2_chk2
    ds_write_b32 v5, v4
    """)
    a.label("L_k2_chk2")
    a(f"v_and_b32 v{VPLA}, 15, v0")
    a(f"v_lshlrev_b32 v{VPLA}, 3, v{VPLA}")
    for sw in ("v_permlane32_swap_b32", "v_permlane16_swap_b32"):
        for qb in range(NQ):
            a(f"v_mov_b32 v{T + qb}, v{L + qb}")
        a("s_nop 0")
        for qb in range(NQ):
            a(f"{sw} v{L + qb}, v{T + qb}")
        a("s_nop 0")
        for qb in range(NQ):
            a(f"v_add_f32 v{57 + 2 * qb if sw[10] == '1' else L + qb}, v{L + qb}, v{T + qb}")
    for qb in range(NQ):
        a(f"v_sub_f32 v{56 + 2 * qb}, 0, v{NM + 4 * qb}")
    a("s_mov_b64 exec, 0xffff")
    for qb in range(NQ):
        a(f"buffer_store_dwordx2 v[{56 + 2 * qb}:{57 + 2 * qb}], v{VPLA}, {SRD}, s{S_PL} offen offset:{128 * qb} sc1")
    a("s_mov_b64 exec, -1")
    if cfg.get("tl") and not cfg.get("ptl"):
        a("s_memrealtime s[62:63]")
    a("s_waitcnt vmcnt(20) lgkmcnt(0)")
    a("s_barrier")
    a("ds_read_b32 v4, v5")
    a(f"s_and_b32 s{S_T0}, s{S_OWN}, 15")
    a("s_cbranch_scc1 L_own")
    a.label("L_ownr")
    a.seg("k2_epi")
    a(f"""
    s_waitcnt lgkmcnt(0)
    v_readfirstlane_b32 s{S_T0}, v4
    s_nop 3
    s_cmp_gt_u32 s{S_T0}, s{S_MODE}
    s_cbranch_scc1 L_redo
    """)
    if cfg.get("tl") and not cfg.get("ptl"):
        a("s_memrealtime s[60:61]")
    consume_all()
    a("s_waitcnt vmcnt(0) lgkmcnt(0)")
    if cfg.get("tl") and not cfg.get("ptl"):
        a("s_memrealtime s[88:89]")
    a("s_barrier")
    a(f"""
    s_cmp_lg_u32 s{S_W}, 0
    s_cbranch_scc1 L_nosig
    s_lshl_b32 s{S_T0}, s{S_SPLIT}, 2
    v_mov_b32 v10, s{S_T0}
    s_add_u32 s{S_T1}, s{S_MODE}, 1
    v_mov_b32 v11, s{S_T1}
    s_mov_b64 exec, 1
    buffer_store_dword v11, v10, {SRD}, s{S_FLG} offen sc1
    s_mov_b64 exec, -1
    """)
    a.label("L_nosig")
    a(f"s_cmp_gt_i32 s{S_N}, 0")
    a("s_cbranch_scc1 L_left")
    a.label("L_gdone")
    a.seg("k2_fin")
    if cfg.get("tl") and not cfg.get("ptl"):
        a("s_memrealtime s[86:87]")
    POV, PLV = 128, 200
    ACC, BP, AI, XA, VXB = 26, 64, 34, 96, 5
    a(f"""
    v_and_b32 v{VPLA}, 15, v0
    v_and_b32 v9, 63, v0
    v_min_u32 v9, 5, v9
    v_lshlrev_b32 v9, 2, v9
    buffer_load_dword v10, v9, {SRD}, s{S_FLG} offen sc1
    s_mul_i32 s{S_T0}, s{S_QT}, {6 * 65536}
    s_lshl_b32 s{S_T1}, s{S_SPLIT}, 12
    s_add_u32 s{S_T0}, s{S_T0}, s{S_T1}
    s_lshl_b32 s{S_T1}, s{S_W}, 10
    s_add_u32 s{S_T0}, s{S_T0}, s{S_T1}
    s_add_u32 s{S_PO}, s{S_T0}, {PO}
    s_mul_i32 s{S_T0}, s{S_QT}, {6 * 2048}
    s_lshl_b32 s{S_T1}, s{S_SPLIT}, 7
    s_add_u32 s{S_T0}, s{S_T0}, s{S_T1}
    s_add_u32 s{S_PL}, s{S_T0}, {PL}
    v_mov_b32 v{VXB}, v{VX}
    v_add_u32 v{VXB + 1}, {6 * 4096}, v{VX}
    v_add_u32 v{VXB + 2}, {12 * 4096}, v{VX}
    v_bfe_u32 v2, v0, 2, 2
    v_and_b32 v3, 3, v0
    v_bfe_u32 v4, v0, 5, 1
    v_lshl_add_u32 v2, v4, 2, v2
    v_lshl_add_u32 v2, v3, 4, v2
    v_lshlrev_b32 v14, 2, v2
    v_add_u32 v15, 32, v14                       ; m = 1
    v_and_b32 v4, 16, v0
    v_cmp_ne_u32 s[{SMK}:{SMK + 1}], 0, v4
    v_and_b32 v2, 1, v{VPLA}
    v_lshlrev_b32 v2, 4, v2
    v_mov_b32 v3, 0x3f80
    v_lshlrev_b32 v2, v2, v3
    v_bfe_u32 v3, v{VPLA}, 1, 1
    v_lshrrev_b32 v4, 2, v{VPLA}
    v_bfe_u32 v11, v0, 4, 2
    v_xor_b32 v4, v4, v11
    v_lshl_add_u32 v3, v4, 1, v3
    v_cmp_eq_u32 s[{SMK + 2}:{SMK + 3}], 0, v3
    v_cmp_eq_u32 s[{SMK + 4}:{SMK + 5}], 1, v3
    v_lshlrev_b32 v{VPLA}, 3, v{VPLA}
    """)
    for k in (2, 3, 4, 5):
        a(f"v_mov_b32 v{AI + k}, 0")
    for k in range(2):
        a(f"v_cndmask_b32 v{AI + k}, 0, v2, s[{SMK + 2 + 2 * k}:{SMK + 3 + 2 * k}]")
        a(f"v_cndmask_b32 v{AI + 6 + k}, 0, v2, s[{SMK + 2 + 2 * k}:{SMK + 3 + 2 * k}]")
    for b in range(3):
        for m in range(2):
            a(f"v_accvgpr_read_b32 v2, a{ADI + 2 * b + m}")
            for d in range(2):
                a(f"v_accvgpr_read_b32 v{3 + d}, a{AXV + 4 * b + 2 * m + d}")
            for r in range(4):
                a(f"v_accvgpr_read_b32 v{80 + r}, a{AAG + 8 * b + 4 * m + r}")
            a("v_lshlrev_b32 v2, 16, v2")
            xa = XA + 8 * b + 4 * m
            for d in range(2):
                a(f"v_lshlrev_b32 v{xa + 2 * d}, 16, v{3 + d}")
                a(f"v_and_b32 v{xa + 2 * d + 1}, 0xffff0000, v{3 + d}")
            for r in range(4):
                a(f"v_fmac_f32 v{xa + r}, v{80 + r}, v2")
    a(f"s_mov_b32 s{S_T1}, s{S_SPLIT}")
    for s in range(6):
        a(f"s_lshl_b32 s{S_T0}, s{S_T1}, 11")
        a(f"s_add_u32 s{SMK + 8 + s}, s{S_PL}, s{S_T0}")
        if s:
            a(f"s_lshl_b32 s{S_T0}, s{S_T1}, 16")
            a(f"s_add_u32 s{SMK + 14 + s}, s{S_PO}, s{S_T0}")
        a(f"s_add_u32 s{S_T1}, s{S_T1}, 1")
        a(f"s_cmp_eq_u32 s{S_T1}, 6")
        a(f"s_cselect_b32 s{S_T1}, 0, s{S_T1}")
    a(f"s_lshl_b32 s{S_T0}, s{S_W}, 10")
    a(f"v_add_u32 v2, s{S_T0}, v{VL16}")
    for b in range(3):
        a(f"ds_read_b128 {vr(POV + 24 * b, 4)}, v2 offset:{4096 * b}")
    a("s_waitcnt lgkmcnt(0)")
    a(f"s_mov_b32 s{S_I}, 0")
    a.label("L_poll")
    a(f"""
    buffer_load_dword v11, v9, {SRD}, s{S_FLG} offen sc1
    s_waitcnt vmcnt(1)
    v_cmp_eq_u32 vcc, 0, v10
    s_cbranch_vccz L_poll_done
    s_add_u32 s{S_I}, s{S_I}, 1
    s_cmp_gt_u32 s{S_I}, 0x1000000
    s_cbranch_scc1 L_k2_end
    buffer_load_dword v10, v9, {SRD}, s{S_FLG} offen sc1
    s_waitcnt vmcnt(1)
    v_cmp_eq_u32 vcc, 0, v11
    s_cbranch_vccnz L_poll
    v_mov_b32 v12, v11
    s_branch L_poll_d2
    """)
    a.label("L_poll_done")
    a("v_mov_b32 v12, v10")
    a.label("L_poll_d2")
    if cfg.get("tl") and not cfg.get("ptl"):
        a("s_memrealtime s[100:101]")
        a("s_waitcnt lgkmcnt(0)")
    a("v_cmp_ne_u32 vcc, 1, v12")
    for b in range(3):
        if b == 2:
            a(f"s_cmp_gt_u32 s{S_SPLIT}, 3")
            a("s_cbranch_scc1 L_no3")
        for s in range(6):
            a(f"buffer_load_dwordx2 {vr(PLV + 12 * b + 2 * s, 2)}, v{VPLA}, {SRD}, s{SMK + 8 + s} offen offset:{768 * b} sc1")
        for s in range(1, 6):
            a(f"s_add_u32 s{S_T0}, s{SMK + 14 + s}, {b * 6 * 4096}")
            a(f"buffer_load_dwordx4 {vr(POV + 24 * b + 4 * s, 4)}, v{VL16}, {SRD}, s{S_T0} offen sc1")
    a.label("L_ld_done")
    a("s_cbranch_vccnz L_general")

    def finish(b, rcp):
        for m in range(2):
            if rcp:
                a(f"ds_bpermute_b32 v{80 + m}, v{14 + m}, v{rcp}")
            for j in range(8):
                a(f"ds_bpermute_b32 v{BP + 8 * m + j}, v{14 + m}, v{ACC + j}")
        ob = 56 + 4 * (b & 1)
        for m in range(2):
            a(f"s_waitcnt lgkmcnt({(9 if rcp else 8) * (1 - m)})")
            xa = XA + 8 * b + 4 * m
            for r in range(4):
                a(f"v_cndmask_b32 v{BP + 8 * m + r}, v{BP + 8 * m + r}, v{BP + 8 * m + 4 + r}, s[{SMK}:{SMK + 1}]")
                if rcp:
                    a(f"v_fmac_f32 v{xa + r}, v{BP + 8 * m + r}, v{80 + m}")
                else:
                    a(f"v_add_f32 v{xa + r}, v{xa + r}, v{BP + 8 * m + r}")
            for d in range(2):
                a(f"v_cvt_pk_bf16_f32 v{ob + 2 * m + d}, v{xa + 2 * d}, v{xa + 2 * d + 1}")
            a(f"buffer_store_dwordx2 {vr(ob + 2 * m, 2)}, v{VXB + b}, s[{SOUT}:{SOUT + 3}], 0 offen offset:{2048 * m}{OSC}")

    AC3, BP3, RC3 = 26, 64, 124
    acc = [26, 236, 244]
    bp = [64, 80, 0]
    bp[2] = POV
    rb = [120, 122, 252]
    rc = [42, 43, 44]

    def M(b, nb):
        pl, po = PLV + 12 * b, POV + 24 * b
        for s in range(6):
            if s:
                a(f"s_waitcnt vmcnt({5 - s + 11 * (nb - 1 - b)})")
            for h in range(2):
                d = vr(acc[b] + 4 * h, 4)
                a(f"{MF} {d}, {vr(AI + 4 * h, 4)}, {vr(po + 4 * s, 4)}, {'0' if s == 0 else d}")
            if s == 1:
                a(f"v_add_f32 v{rc[b]}, v{pl + 1}, v{pl + 3}")
            elif s > 1:
                a(f"v_add_f32 v{rc[b]}, v{rc[b]}, v{pl + 2 * s + 1}")
        a(f"v_rcp_f32 v{rc[b]}, v{rc[b]}")

    def B(b):
        for m in range(2):
            a(f"ds_bpermute_b32 v{rb[b] + m}, v{14 + m}, v{rc[b]}")
            for j in range(8):
                a(f"ds_bpermute_b32 v{bp[b] + 8 * m + j}, v{14 + m}, v{acc[b] + j}")

    def F(b, younger):
        ob = 56 + 4 * (b & 1) if b < 2 else 46
        for m in range(2):
            a(f"s_waitcnt lgkmcnt({min(15, younger + 9 * (1 - m))})")
            xa = XA + 8 * b + 4 * m
            q = bp[b] + 8 * m
            for r in range(4):
                a(f"v_cndmask_b32 v{q + r}, v{q + r}, v{q + 4 + r}, s[{SMK}:{SMK + 1}]")
                a(f"v_fmac_f32 v{xa + r}, v{q + r}, v{rb[b] + m}")
            for d in range(2):
                a(f"v_cvt_pk_bf16_f32 v{ob + 2 * m + d}, v{xa + 2 * d}, v{xa + 2 * d + 1}")
            a(f"buffer_store_dwordx2 {vr(ob + 2 * m, 2)}, v{VXB + b}, s[{SOUT}:{SOUT + 3}], 0 offen offset:{2048 * m}{OSC}")

    M(0, 3)
    M(1, 3)
    B(0)
    M(2, 3)
    B(1)
    F(0, 18)
    B(2)
    F(1, 18)
    F(2, 0)
    a("s_branch L_k2_done")
    a.label("L_no3")
    a("s_cbranch_vccnz L_no3g")
    a.seg("k2_no3")
    M(0, 2)
    M(1, 2)
    B(0)
    a("s_nop 0")
    B(1)
    F(0, 18)
    F(1, 0)
    a("s_branch L_k2_done")
    a.label("L_no3g")
    a("s_waitcnt vmcnt(0)")
    a.label("L_general")
    a.seg("k2_gen")
    for b in range(3):
        pl, po = PLV + 12 * b, POV + 24 * b
        if b == 2:
            a(f"s_cmp_gt_u32 s{S_SPLIT}, 3")
            a("s_cbranch_scc1 L_k2_done")
        a(f"s_waitcnt vmcnt({11 * (2 - b) + 2 * b})")
        a(f"v_max3_f32 v44, v{pl}, v{pl + 2}, v{pl + 4}")
        a(f"v_max3_f32 v44, v44, v{pl + 6}, v{pl + 8}")
        a(f"v_max_f32 v44, v44, v{pl + 10}")
        for s in range(6):
            a(f"v_sub_f32 v{pl + 2 * s}, v{pl + 2 * s}, v44")
        for s in range(6):
            a(f"v_exp_f32 v{pl + 2 * s}, v{pl + 2 * s}")
        a("s_nop 0")
        a(f"v_mul_f32 v45, v{pl}, v{pl + 1}")
        for s in range(1, 6):
            a(f"v_fmac_f32 v45, v{pl + 2 * s}, v{pl + 2 * s + 1}")
        a("v_rcp_f32 v45, v45")
        a("s_nop 0")
        for s in range(6):
            a(f"v_mul_f32 v{pl + 2 * s}, v{pl + 2 * s}, v45")
        for s in range(6):
            for d in range(4):
                r = po + 4 * s + d
                a(f"v_lshlrev_b32 v42, 16, v{r}")
                a(f"v_and_b32 v43, 0xffff0000, v{r}")
                op = "v_mul_f32" if s == 0 else "v_fmac_f32"
                a(f"{op} v{ACC + 2 * d}, v42, v{pl + 2 * s}")
                a(f"{op} v{ACC + 2 * d + 1}, v43, v{pl + 2 * s}")
        finish(b, None)
    a.label("L_k2_done")
    a("s_waitcnt vmcnt(0)")
    if cfg.get("tl"):
        a("s_waitcnt lgkmcnt(0)")
        a("s_mov_b64 exec, 1")
        a("v_lshrrev_b32 v1, 6, v0")
        a("v_lshlrev_b32 v1, 5, v1")
        a(f"s_lshl_b32 s90, s2, 7")
        a(f"s_add_u32 s90, s90, {TR + 3 * 0x40000}")
        for i, sr in enumerate((98, 62, 60, 88, 86, 100)):
            a(f"v_mov_b32 v{2 + i}, s{sr}")
        a(f"buffer_store_dwordx4 v[2:5], v1, {SRD}, s90 offen")
        a(f"buffer_store_dwordx2 v[6:7], v1, {SRD}, s90 offen offset:16")
    dbg_stamp(a, cfg, 5, 512, s=88, v=2)
    stamp_exit(a, cfg, 84, 2, SRD, TR)
    a.label("L_k2_end")
    a("s_endpgm")
    a.label("L_left")
    a.seg("k2_left0")
    lane_setup()
    a(f"v_add_u32 v{GLA}, {NGMAX * 256}, v{GLA}")
    a.label("L_left_loop")
    a.seg("k2_left")
    for b in range(3):
        a(f"ds_read_b128 {vr(64 + 4 * b, 4)}, v{GLA} offset:{b * RSZ + LOFF}")
    a(f"v_add_u32 v{GLA}, 256, v{GLA}")
    a("s_waitcnt lgkmcnt(0)")
    for b in range(3):
        for k in range(4):
            a(f"v_add_u32 v{64 + 4 * b + k}, v{64 + 4 * b + k}, v{GOFF}")
            a(f"buffer_load_dwordx4 {ar(ABUF + 16 * b + 4 * k, 4)}, v{64 + 4 * b + k}, {smp}, 0 offen offset:{12 - 4 * k}{LS()}")
    a("s_waitcnt vmcnt(0)")
    consume_all()
    a(f"""
    s_sub_u32 s{S_N}, s{S_N}, 1
    s_cmp_gt_i32 s{S_N}, 0
    s_cbranch_scc1 L_left_loop
    s_nop 7
    s_cmp_le_u32 s{S_MAXC}, {CAP}
    s_cbranch_scc1 L_gdone
    s_barrier
    s_branch L_car_t
    """)
    a.label("L_more2")
    a.seg("k2_more2")
    a("s_barrier")
    maxc()
    lane_setup()
    a("s_branch L_left_loop")
    a.label("L_safe")
    a.seg("k2_safe0")
    a(f"s_mov_b32 s{S_CNT}, s{S_LEFT}")
    emit_body(a, cfg, "s", True)
    a.seg("k2_smid")
    emit_body(a, cfg, "sf", True, last=True, nkb=2)
    a("s_branch L_k2_chk")
    a.label("L_redo")
    a.seg("k2_redo")
    a("s_waitcnt vmcnt(0)")
    a("s_barrier")
    a(f"s_mov_b32 s{S_MODE}, 1")
    a("s_branch L_k2_restart")
    a.label("L_own")
    a.seg("k2_ownx")
    a(f"s_ff1_i32_b32 s{S_T1}, s{S_T0}")
    a(f"s_lshl_b32 s{S_I}, s{S_W}, 2")
    a(f"s_add_u32 s{S_I}, s{S_I}, s{S_T1}")
    a(f"s_sub_u32 s{S_I}, s{S_I}, s{S_SPLIT}")
    a(f"s_mul_i32 s{S_I}, s{S_I}, 683")
    a(f"s_and_b32 s{S_I}, s{S_I}, 0x3000")
    a(f"v_add_u32 v42, s{S_I}, v{VL16}")
    for qb in range(1, NQ):
        a(f"s_cmp_eq_u32 s{S_T1}, {qb}")
        a(f"s_cbranch_scc1 L_own{qb}")
    for qb in range(NQ):
        a.label(f"L_own{qb}")
        a.seg(f"k2_own{qb}")
        for p in range(4):
            t = 26 + 4 * p
            for d in range(4):
                src = O + (qb * 8 + 2 * p) * 4 + 2 * d
                a(f"v_cvt_pk_bf16_f32 v{t + d}, v{src}, v{src + 1}")
            a(f"ds_write_b128 v42, {vr(t, 4)} offset:{1024 * p}")
        a("s_branch L_ownr")
    a.label("L_lo")
    a.seg("k2_lo")
    a(f"s_cmp_eq_u32 s{S_SPLIT}, 1")
    a("s_cbranch_scc1 L_lo1")

    def lo_softmax(qs):
        for qb in qs:
            for i in range(4):
                a(f"v_sub_f32 v{St(qb, 1) + i}, v{St(qb, 1) + i}, v{26 + qb}")
        for qb in qs:
            for i in range(4):
                a(f"v_exp_f32 v{St(qb, 1) + i}, v{St(qb, 1) + i}")
        for qb in qs:
            s0 = St(qb, 1)
            a(f"v_add_f32 v{L + qb}, v{s0}, v{s0 + 1}")
            a(f"v_cvt_pk_bf16_f32 v{P + 4 * qb}, v{s0}, v{s0 + 1}")
            a(f"v_add_f32 v{L + qb}, v{L + qb}, v{s0 + 2}")
            a(f"v_cvt_pk_bf16_f32 v{P + 4 * qb + 1}, v{s0 + 2}, v{s0 + 3}")
            a(f"v_add_f32 v{L + qb}, v{L + qb}, v{s0 + 3}")

    lo_softmax((2, 3))
    a("s_branch L_lo_ret")
    a.label("L_lo1")
    a.seg("k2_lo1")
    for qb in range(2):
        a(f"v_mov_b32 v{P + 4 * qb + 2}, 0")
        a(f"v_mov_b32 v{P + 4 * qb + 3}, 0")
    lo_softmax((0, 1))
    a("s_waitcnt vmcnt(8)")
    for x in pv_order("A"):
        a(mfma_pv(*x))
    a("s_branch L_lo_ret")
    emit_careful(a, "e", "L_ev_ret")
    emit_careful(a, "t", "L_more2")
    for tag, nkb in (("s", 2), ("sf", 2)):
        for X in "AB":
            emit_slow(a, X, nkb, tag + X)
    a.label("L_k2_last")
    return dict(name=name, vgpr=512, accum=256, sgpr=102, grid=NWG, block=256, lds=RB + 4 * RSZ,
                chains=[["k2_pro0", "k2_pro", "k2_pro2", "k2_pro3", "body_m", "body_m", "k2_mid", "k2_mid2", "body_lf", "k2_chk", "k2_epi", "k2_fin"],
                        ["body_m", "k2_mid", "k2_ev", "body_m"], ["body_m", "k2_mid", "k2_evr", "body_m"], ["body_g2", "k2_gx", "k2_mid2", "body_lf"], ["k2_ev", "careful_e", "body_m"],
                        ["body_m", "k2_mid", "k2_evg", "body_g0", "body_g1", "body_g2", "body_g0", "body_g1", "body_g2", "k2_gx", "body_m"],
                        ["body_lf", "k2_chk", "k2_epi", "k2_redo", "k2_pro"], ["k2_pro2", "k2_lo", "k2_pro3", "body_m"], ["k2_pro2", "k2_lo1", "k2_pro3", "body_m"],
                        ["k2_pro", "k2_pro2", "k2_pro3", "k2_safe0", "body_s", "body_s", "k2_smid", "body_sf", "k2_chk", "k2_epi"],
                        ["k2_fin", "k2_gen"], ["k2_fin", "k2_no3"], ["k2_chk", "k2_ownx", "k2_own0", "k2_own1", "k2_own2", "k2_own3", "k2_epi"], ["k2_epi", "k2_left0", "k2_left", "k2_left", "k2_fin"], ["k2_left", "careful_t", "k2_more2", "k2_left"]] +
                       [["slow_" + t + X] for t in ("s", "sf") for X in "AB"])
```

```python
from layout import *
from asmlib import stamp_entry, stamp_exit, dbg_stamp

CFG = {}
MF = "v_mfma_f32_16x16x32_bf16"
NWG = 240
NQ = 4
CAP = 72
NGMAX = 15
NSLOT = 24

O, S, NM, P, E_, T, L = 128, 64, 96, 112, 26, 42, 52
VLDS, VL16, VT, VT2, VT3, VOOB = 20, 21, 22, 23, 24, 25
RC, VREM, VSEG, BT = 26, 50, 51, 56
AQ, AK, AV = 0, 64, 96
S_SRD = 4
S_W, S_SRC, S_M0, S_CNT, S_THR, S_SPLIT, S_QT, S_T0, S_T1 = 8, 9, 10, 11, 12, 13, 14, 15, 16
S_LEFT, S_EV, S_NB, S_MODE = 17, 18, 19, 30
S_Q0 = 20
S_PO, S_PL, S_SRC0, S_U = 24, 25, 26, 27
S_K0, S_FV = 28, 29
S_PA = 56
S_V1 = 3
S_OWN = 31
SRD = f"s[{S_SRD}:{S_SRD + 3}]"
SKV = 80
KVS = "s[80:83]"
LDS_FLAG = 131072
ABUF, AAG, AAH, AXV, ADI = 128, 176, 200, 208, 220
GI, GOFF, GLA = 26, 13, 14
AL, AONE = 232, 248
SMP = 44
RB = 131072 + 256
LOFF = 384
RSZ = LOFF + CAP * 64 + 384
SENT = 0x7fffff00


def LS():
    return " sc1" if CFG.get("ls") else ""


def vr(b, n):
    return f"v[{b}:{b + n - 1}]"


def ar(b, n):
    return f"a[{b}:{b + n - 1}]"


def qbs(X):
    return [0, 1] if X == "A" else [2, 3]


def St(qb, kb):
    return S + (qb * 2 + kb) * 4


def mfma_qk(qb, kb, s, czero=False):
    d = vr(St(qb, kb), 4)
    c = ("0" if czero else vr(NM + 4 * qb, 4)) if s == 0 else d
    return f"{MF} {d}, {ar(AK + (kb * 4 + s) * 4, 4)}, {ar(AQ + (qb * 4 + s) * 4, 4)}, {c}"


def mfma_pv(qb, db):
    o = vr(O + (qb * 8 + db) * 4, 4)
    return f"{MF} {o}, {ar(AV + 4 * db, 4)}, {vr(P + 4 * qb, 4)}, {o}"


def qk_order(X, nkb=2):
    return [(qb, kb, s) for s in range(4) for kb in range(nkb) for qb in qbs(X)]


def mfma_sum(qb):
    d = ar(AL + 4 * qb, 4)
    return f"{MF} {d}, {ar(AONE, 4)}, {vr(P + 4 * qb, 4)}, {d}"


def pv_order(X):
    return [(qb, db) for qb in qbs(X) for db in range(8)]


class Op:
    def __init__(self, text, cost, est=0, lst=10 ** 6, deps=(), stream=None):
        self.text, self.cost, self.est, self.lst, self.deps, self.stream = text, cost, est, lst, list(deps), stream
        self.pos = None


def sm_group(X, nkb, tag, chk, rdy, dl):
    ops = []
    idx = 0
    q = qbs(X)
    lastadd = {}
    prev_small = None
    for qb in q:
        d = dl[qb] if not chk else min(dl.values())
        if nkb == 1:
            for k in (2, 3):
                ops.append(Op(f"v_mov_b32 v{P + 4 * qb + k}, 0", 4, rdy["p", qb], d - 1, stream="s" + X))
        for kb in range(nkb):
            for pr in range(2):
                s0 = St(qb, kb) + 2 * pr
                e0, e1 = (E_ + (2 * idx) % 16, E_ + (2 * idx + 1) % 16) if chk else (s0, s0 + 1)
                x0 = Op(f"v_exp_f32 v{e0}, v{s0}", 8, rdy[qb, kb], d - 2, stream="x" + X)
                x1 = Op(f"v_exp_f32 v{e1}, v{s0 + 1}", 8, rdy[qb, kb], d - 2, stream="x" + X)
                ops += [x0, x1]
                acc = (T if chk else L) + qb
                dadd = d - 1 if chk else dl["end"]
                c = Op(f"v_cvt_pk_bf16_f32 v{P + 4 * qb + 2 * kb + pr}, v{e0}, v{e1}", 4, rdy["p", qb], d - 1, [x0, x1], stream="c" + X)
                if chk and qb not in lastadd:
                    a1 = Op(f"v_add_f32 v{acc}, v{e0}, v{e1}", 4, 0, dadd, [x0, x1], stream="a" + X)
                    ops += [a1, c]
                else:
                    a0 = Op(f"v_add_f32 v{acc}, v{acc}, v{e0}", 4, 0, dadd, [x0], stream="a" + X)
                    a1 = Op(f"v_add_f32 v{acc}, v{acc}, v{e1}", 4, 0, dadd, [x1], stream="a" + X)
                    ops += [a0, a1, c] if chk else [c]
                lastadd[qb] = a1
                lastc = c
                idx += 1
    if chk:
        d = min(dl.values())
        m = Op(f"v_max_f32 v{VT}, v{T + q[0]}, v{T + q[1]}", 4, 0, d, list(lastadd.values()), stream="a" + X)
        c = Op(f"v_cmp_lt_f32 vcc, s{S_THR}, v{VT}", 4, 0, d, [m], stream="a" + X)
        b = Op(f"s_cbranch_vccnz L_slow_{tag}\nL_back_{tag}:", 0, 0, d, [c, lastc], stream="a" + X)
        ops += [m, c, b]
        for qb in q:
            ops.append(Op(f"v_add_f32 v{L + qb}, v{L + qb}, v{T + qb}", 4, 0, dl["end"], [b], stream="a" + X))
    return ops


def schedule(ops, nm, base=8):
    streams = {}
    for o in ops:
        streams.setdefault(o.stream, []).append(o)
    best = None
    for nextra in range(0, 3 * nm):
        for o in ops:
            o.pos = None
        cap = [base + 4 * ((g + 1) * nextra // nm - g * nextra // nm) for g in range(nm)]
        head = {s: 0 for s in streams}
        out = [[] for _ in range(nm)]
        pos = 0
        ok = True
        for g in range(nm):
            pos += 1
            rem = cap[g]
            while True:
                cand = []
                for s, lst in streams.items():
                    if head[s] >= len(lst):
                        continue
                    o = lst[head[s]]
                    if o.est > g:
                        continue
                    if CFG.get("ds1") and s == "l" and any(t.startswith(("ds_", "buffer")) for t in out[g]) and o.lst > g:
                        continue
                    if any(d.pos is None or pos - d.pos < (CFG.get('xd', 2) if d.cost == 8 else 1) for d in o.deps):
                        continue
                    urg = 10 ** 9
                    acc = 0
                    for o2 in lst[head[s]:]:
                        acc += o2.cost
                        urg = min(urg, (o2.lst - g + 1) * base * o2_share(s) - acc)
                    cand.append((urg, s, o))
                if not cand:
                    break
                cand.sort(key=lambda c: c[0])
                pick = None
                for urg, s, o in cand:
                    if o.cost <= rem or o.lst <= g:
                        pick = (s, o)
                        break
                if pick is None:
                    break
                s, o = pick
                out[g].append(o.text)
                o.pos = pos
                pos += 1
                head[s] += 1
                rem -= o.cost
                if rem <= 0 and not any(streams[t][head[t]].lst <= g or streams[t][head[t]].cost == 0
                                        for t in streams if head[t] < len(streams[t])):
                    break
            if any(head[s] < len(l) and l[head[s]].lst <= g for s, l in streams.items()):
                ok = False
                break
        if ok and all(head[s] == len(l) for s, l in streams.items()):
            cost = {o.text: o.cost for o in ops}
            tot = sum(max(16, 8 + sum(cost[t] for t in out[g])) for g in range(nm))
            if best is None or tot < best[0]:
                best = (tot, out, nextra)
            if nextra > best[2] + 6:
                break
    if best is None:
        raise RuntimeError("cannot schedule")
    return best


def o2_share(s):
    return {"x": 0.5, "a": 0.3, "c": 0.3, "s": 0.3}.get(s[0], 0.3)


def emit_rowmax(a, qb, nkb, dst):
    s = St(qb, 0)
    a(f"v_max3_f32 v{dst}, v{s}, v{s + 1}, v{s + 2}")
    if nkb == 2:
        a(f"v_max3_f32 v{dst}, v{dst}, v{s + 3}, v{s + 4}")
        a(f"v_max3_f32 v{dst}, v{dst}, v{s + 5}, v{s + 6}")
        a(f"v_max_f32 v{dst}, v{dst}, v{s + 7}")
    else:
        a(f"v_max_f32 v{dst}, v{dst}, v{s + 3}")
    for sw in ("v_permlane32_swap_b32", "v_permlane16_swap_b32"):
        a(f"v_mov_b32 v{VT3}, v{dst}")
        a("s_nop 1")
        a(f"{sw} v{dst}, v{VT3}")
        a("s_nop 1")
        a(f"v_max_f32 v{dst}, v{dst}, v{VT3}")


def emit_slow(a, X, nkb, tag):
    a.seg("slow_" + tag)
    a.label(f"L_slow_{tag}")
    a("s_nop 15")
    for qb in qbs(X):
        emit_rowmax(a, qb, nkb, VT)
        a(f"v_max_f32 v{VT}, 0, v{VT}")
        a(f"v_exp_f32 v{VT2}, -v{VT}")
        a("s_nop 0")
        a(f"v_mul_f32 v{L + qb}, v{L + qb}, v{VT2}")
        for i in range(32):
            o = O + qb * 32 + i
            a(f"v_mul_f32 v{o}, v{o}, v{VT2}")
        for i in range(4):
            a(f"v_sub_f32 v{NM + 4 * qb + i}, v{NM + 4 * qb + i}, v{VT}")
        for k in range(2 * nkb):
            s = St(qb, 0) + 2 * k
            a(f"v_sub_f32 v{s}, v{s}, v{VT}")
            a(f"v_sub_f32 v{s + 1}, v{s + 1}, v{VT}")
            a(f"v_exp_f32 v{E_}, v{s}")
            a(f"v_exp_f32 v{E_ + 1}, v{s + 1}")
            a("s_nop 0")
            if k == 0:
                a(f"v_add_f32 v{T + qb}, v{E_}, v{E_ + 1}")
            else:
                a(f"v_add_f32 v{T + qb}, v{T + qb}, v{E_}")
                a(f"v_add_f32 v{T + qb}, v{T + qb}, v{E_ + 1}")
            a(f"v_cvt_pk_bf16_f32 v{P + 4 * qb + k}, v{E_}, v{E_ + 1}")
    a("s_nop 7")
    a(f"s_branch L_back_{tag}")


def emit_body(a, cfg, tag, chk, last=False, nkb=2, gb=None, loop=None):
    PF = cfg["PF"]
    lead = cfg.get("lead", 3)
    mg = cfg.get("mg", 0)
    pvB, qkB, pvA, qkA = pv_order("B"), qk_order("B", nkb), pv_order("A"), qk_order("A")
    def pvl(order):
        out = []
        for n, x in enumerate(order):
            out.append(mfma_pv(*x))
            if not chk and n % 8 == 7:
                out.append(mfma_sum(x[0]))
        return out

    X1 = 0 if chk else 1
    mf = pvl(pvB)
    qB0 = len(mf)
    mf += [mfma_qk(*x) for x in qkB]
    pA0 = len(mf)
    mf += pvl(pvA)
    qA0 = len(mf)
    if not last:
        mf += [mfma_qk(*x) for x in qkA]
    gpos = []
    if gb is not None:
        for k, at in enumerate(cfg.get("gslots", [43, 50, 57, 64])):
            d = ar(AAG + 8 * gb + 4 * (k >> 1), 4)
            mf.insert(at, f"{MF} {d}, {ar(AAH + 4 * (k & 1), 4)}, {ar(ABUF + 16 * gb + 4 * k, 4)}, {d}")
            gpos.append(at)
            if at <= qA0:
                qA0 += 1
    nm = len(mf)
    ops = []
    lds = []
    if gb is not None:
        lds.append(Op(f"ds_read_b128 {vr(GI, 4)}, v{GLA} offset:{gb * RSZ + LOFF}", 4, 2, 7, stream="l"))
        for k, at in enumerate(gpos):
            ad = Op(f"v_add_u32 v{GI + k}, v{GI + k}, v{GOFF}", 4, pA0, at - 1, stream="g")
            ops += [ad, Op(f"buffer_load_dwordx4 {ar(ABUF + 16 * gb + 4 * k, 4)}, v{GI + k}, s[{SMP}:{SMP + 3}], 0 offen offset:{12 - 4 * k}{LS()}",
                           cfg.get("dmacost", 8), at, at, [ad], stream="g")]
        if gb == 2:
            ops.append(Op(f"v_add_u32 v{GLA}, 256, v{GLA}", 4, 10, nm - 1, stream="y"))
    for db in range(8):
        lds.append(Op(f"ds_read_b128 {ar(AV + 4 * db, 4)}, v{VLDS} offset:{8192 + 1024 * db}", 4, 8 + X1 + db, pA0 - 6, stream="l"))
    if not last:
        kf = sorted(range(8), key=lambda f: max(i for i, x in enumerate(qkB) if x[1] * 4 + x[2] == f))
        for n, f in enumerate(kf):
            g = qB0 + max(i for i, x in enumerate(qkB) if x[1] * 4 + x[2] == f)
            lds.append(Op(f"ds_read_b128 {ar(AK + 4 * f, 4)}, v{VLDS} offset:{1024 * f}", 4, g, qA0 - 6, stream="l"))
        adv = Op(f"v_add_u32 v{VLDS}, 0x4000, v{VLDS}", 4, 0, nm - 1, [lds[-1]], stream="z")
        ops += [adv, Op(f"v_and_b32 v{VLDS}, 0x1ffff, v{VLDS}", 4, 0, nm - 1, [adv], stream="z")]
        dg = cfg.get("dgaps", [0, 1, 33, 34]) if chk else [1, 3, 36, 38]
        for k in range(4):
            ops.append(Op(f"buffer_load_dwordx4 v{VL16}, {KVS}, s{S_SRC} offen offset:{1024 * k}{LS()} lds", cfg.get("dmacost", 8),
                          dg[k], dg[k], stream="d"))
    ops += lds
    finA = {}
    for i, (qb, kb, s_) in enumerate(qkA):
        finA[qb, kb] = i
    rdy = {t: max(0, finA[t] - len(qkA) + 1 + lead) for t in finA}
    rdy["p", 0] = rdy["p", 1] = 0
    ops += sm_group("A", nkb, tag + "A", chk, rdy, {0: pA0 - 1 - mg, 1: pA0 + 7 + X1 - mg, "end": qA0 - 2})
    finB = {}
    for i, (qb, kb, s_) in enumerate(qkB):
        finB[qb, kb] = i
    rdy = {t: qB0 + finB[t] + 1 + lead for t in finB}
    rdy["p", 2], rdy["p", 3] = 8 + X1, qB0
    ops += sm_group("B", nkb, tag + "B", chk, rdy, {2: nm - 1 - mg, 3: nm - 1, "end": nm - 1})
    tot, gaps, nx = schedule(ops, nm)
    if cfg.get("verbose"):
        print("body", tag, "model cycles", tot, "extra", nx)
    if cfg.get("memfirst"):
        for g in range(nm):
            gaps[g].sort(key=lambda t: 0 if t.startswith(("ds_", "buffer")) else 1)
    if cfg.get("explast"):
        for g in range(nm):
            if not any("L_back" in t for t in gaps[g]):
                gaps[g].sort(key=lambda t: 1 if t.startswith("v_exp") else 0)
    order = [t for g in range(nm) for t in gaps[g]]

    def nlds_after(g_end, first_k):
        n = 0
        for g in range(g_end):
            n += sum(1 for t in gaps[g] if t.startswith("ds_read") and f"offset:{0}" is not None and "a[" in t and int(t.split("a[")[1].split(":")[0]) < AV)
        return n

    gaps[pA0 - 1].append(f"s_waitcnt lgkmcnt({nlds_after(pA0, 0)})")
    if not last:
        gaps[qA0 - 1].append("s_waitcnt lgkmcnt(0)")
        lastd = max(dg)
        gaps[lastd + 2].insert(0, f"s_add_u32 s{S_M0}, s{S_M0}, 0x4000")
        gaps[lastd + 3].insert(0, f"s_and_b32 m0, s{S_M0}, 0x1ffff")
        gaps[lastd + 4].insert(0, f"s_add_u32 s{S_SRC}, s{S_SRC}, 0x2000")
        if gb is None or gb == 2:
            gaps[lastd + 5].insert(0, f"s_sub_u32 s{S_CNT}, s{S_CNT}, 1")
            gaps[nm - 2].insert(0, f"s_cmp_lg_u32 s{S_CNT}, 0")
            gaps[nm - 1].append(f"s_cbranch_scc1 L_body_{loop or tag}")
        for at in gpos:
            gaps[at - 1].append("s_waitcnt vmcnt(23)")
    a.seg("body_" + tag)
    a.label(f"L_body_{tag}")
    a(f"s_waitcnt vmcnt({4 * (PF - 1) if gb is None else 24})")
    a("s_barrier")
    for g in range(nm):
        a(mf[g])
        for t in gaps[g]:
            a(t)
    if last:
        fill = []
        for qb in range(2):
            for p in range(4):
                t = 26 + 4 * (p % 2)
                for d in range(4):
                    src = O + (qb * 8 + 2 * p) * 4 + 2 * d
                    fill.append(f"v_cvt_pk_bf16_f32 v{t + d}, v{src}, v{src + 1}")
                fill.append(f"buffer_store_dwordx4 {vr(t, 4)}, v{VL16}, {SRD}, s{S_PA + qb} offen offset:{1024 * p} sc1")
        a("s_nop 1")
        for n, x in enumerate(pvB):
            a(mfma_pv(*x))
            if not chk and n % 8 == 7:
                a(mfma_sum(x[0]))
            for t in fill[(5 * n) // 2:(5 * (n + 1)) // 2]:
                a(t)


SX, SDG, SOUT = 32, 36, 40
S_REC, S_CAP, S_MAXC, S_N, S_I, S_MASK, S_FLG, S_NOWN = 48, 49, 50, 51, 52, 53, 54, 55
SMK = 64
VX = 15
VDC = 16
VVL = 18
VRB, VDUM, VDREC = 17, 18, 19


def emit_region_reset(a):
    a(f"""
    v_and_b32 v2, 63, v0
    v_and_b32 v3, 15, v0
    v_lshl_add_u32 v3, v3, 2, v{VRB}
    v_mov_b32 v4, 0
    v_lshl_add_u32 v5, v2, 4, v{VRB}
    ds_write_b32 v3, v4
    v_mov_b32 v4, 0x40000000
    ds_write_b32 v{VDC}, v4
    v_mov_b32 v6, {SENT}
    v_mov_b32 v7, {SENT}
    v_mov_b32 v8, {SENT}
    v_mov_b32 v9, {SENT}
    v_lshl_add_u32 v3, v2, 3, v{VRB}
    """)
    for k in range(4):
        a(f"ds_write_b128 v5, v[6:9] offset:{LOFF + 1024 * k}")
    a(f"ds_write_b64 v3, v[6:7] offset:{LOFF + 4096}")


def emit_careful(a, tag, ret):
    a.seg("careful_" + tag)
    a.label(f"L_car_{tag}")
    a("s_nop 7")
    emit_region_reset(a)
    a(f"""
    v_mov_b32 v10, 1
    s_mov_b64 s[{SMK + 2}:{SMK + 3}], -1
    s_waitcnt lgkmcnt(0)
    """)
    a.label(f"L_car_loop_{tag}")
    a(f"""
    buffer_load_dwordx4 {vr(RC, 4)}, v{VSEG}, {SRD}, s{S_REC} offen{LS()}
    s_waitcnt vmcnt(0)
    """)
    for k in range(4):
        r = RC + k
        a(f"""
        v_cmp_lt_u32 vcc, 0, v{VREM}
        v_and_or_b32 v{BT}, v{r}, 60, v{VRB}
        s_nop 0
        s_and_b64 vcc, vcc, s[{SMK + 2}:{SMK + 3}]
        s_nop 0
        v_cndmask_b32 v{BT}, v{VDC}, v{BT}, vcc
        ds_add_rtn_u32 v{BT + 1}, v{BT}, v10
        s_waitcnt lgkmcnt(0)
        v_cmp_gt_u32 s[{SMK + 2}:{SMK + 3}], s{S_CAP}, v{BT + 1}
        v_min_u32 v{BT + 1}, s{S_CAP}, v{BT + 1}
        v_lshl_add_u32 v{BT}, v{BT + 1}, 6, v{BT}
        ds_write_b32 v{BT}, v{r} offset:{LOFF}
        v_cndmask_b32 v{BT + 1}, 0, v10, s[{SMK + 2}:{SMK + 3}]
        v_sub_u32 v{VREM}, v{VREM}, v{BT + 1}
        v_lshl_add_u32 v{VSEG}, v{BT + 1}, 2, v{VSEG}
        """)
    a(f"""
    s_cmp_lg_u64 s[{SMK + 2}:{SMK + 3}], 0
    s_cbranch_scc1 L_car_loop_{tag}
    s_waitcnt lgkmcnt(0)
    s_branch {ret}
    """)


def emit_k2(a, cfg):
    PF = cfg["PF"]
    NB0 = cfg.get("NB0", 3)
    NBR = cfg.get("NBR", 2)
    OSC = {0: "", 1: " sc1", 2: " nt", 3: " sc0 sc1"}[cfg.get("osc", 0)]
    CFG.clear()
    CFG.update(cfg)
    LIM = cfg.get("lim", NWG)
    name = "k2_attn_kernel"
    if cfg.get("map", 0) == 0:
        mapping = f"""s_and_b32 s{S_T0}, s2, 7
    s_mul_i32 s{S_T0}, s{S_T0}, {NWG // 8}
    s_lshr_b32 s{S_T1}, s2, 3
    s_add_u32 s{S_T0}, s{S_T0}, s{S_T1}          ; g
    s_mul_i32 s{S_SPLIT}, s{S_T0}, 1639
    s_lshr_b32 s{S_SPLIT}, s{S_SPLIT}, 16        ; split = g / 40
    s_mul_i32 s{S_T1}, s{S_SPLIT}, 40
    s_sub_u32 s{S_QT}, s{S_T0}, s{S_T1}          ; q tile"""
    elif cfg.get("map") == 2:
        mapping = f"""s_and_b32 s{S_T0}, s2, 7
    s_lshr_b32 s{S_T1}, s2, 3
    s_mul_i32 s{S_QT}, s{S_T0}, 29
    s_add_u32 s{S_QT}, s{S_QT}, s{S_T1}
    s_cmp_eq_u32 s{S_T0}, 7
    s_addc_u32 s{S_QT}, s{S_QT}, 0
    s_add_u32 s{S_SPLIT}, s{S_T0}, 234
    s_cmp_lt_u32 s{S_T0}, 6
    s_cselect_b32 s{S_MODE}, 29, 99
    s_cmp_eq_u32 s{S_T1}, s{S_MODE}
    s_cselect_b32 s{S_T0}, s{S_SPLIT}, s{S_QT}
    s_mul_i32 s{S_QT}, s{S_T0}, 10923
    s_lshr_b32 s{S_QT}, s{S_QT}, 16
    s_mul_i32 s{S_SPLIT}, s{S_QT}, 6
    s_sub_u32 s{S_SPLIT}, s{S_T0}, s{S_SPLIT}"""
    else:
        mapping = f"""s_and_b32 s{S_T0}, s2, 7
    s_mul_i32 s{S_T0}, s{S_T0}, 5
    s_lshr_b32 s{S_T1}, s2, 3
    s_mul_i32 s{S_QT}, s{S_T1}, 43
    s_lshr_b32 s{S_QT}, s{S_QT}, 8               ; j / 6
    s_mul_i32 s{S_SPLIT}, s{S_QT}, 6
    s_sub_u32 s{S_SPLIT}, s{S_T1}, s{S_SPLIT}
    s_add_u32 s{S_QT}, s{S_QT}, s{S_T0}"""
    a.raw(".text")
    a.raw(f".globl {name}\n.p2align 8\n.type {name},@function")
    a.label(name)
    a.seg("k2_pro0")
    a(f"""
    s_cmp_ge_u32 s2, {LIM}
    s_cbranch_scc1 L_k2_end
    """)
    if cfg.get("dbg"):
        a("s_cmp_gt_u32 s2, 7")
        a("s_cbranch_scc1 L_k2_nod")
        dbg_stamp(a, cfg, 2, 512, inv=True, s=88, v=100)
        a.label("L_k2_nod")
    if cfg.get("tl") or cfg.get("stamp"):
        a("s_memrealtime s[84:85]")
    if cfg.get("spf"):
        a(f"""
        s_getpc_b64 s[92:93]
        L_k2_pc:
        s_sub_u32 s92, s92, L_k2_pc - k2_attn_kernel
        s_subb_u32 s93, s93, 0
        s_lshr_b32 s94, s2, 3
        s_lshl_b32 s94, s94, 10
        s_min_u32 s94, s94, L_k2_last - k2_attn_kernel - 1024
        v_lshl_add_u32 v60, v0, 2, s94
        global_load_dword v61, v60, s[92:93]
        """)
    a(f"""
    s_load_dwordx2 s[{S_SRD}:{S_SRD + 1}], s[0:1], 88
    s_load_dwordx2 s[{SX}:{SX + 1}], s[0:1], 0
    s_load_dwordx2 s[{SDG}:{SDG + 1}], s[0:1], 24
    s_load_dwordx2 s[{SOUT}:{SOUT + 1}], s[0:1], 72
    v_lshrrev_b32 v1, 6, v0
    v_and_b32 v2, 63, v0
    v_readfirstlane_b32 s{S_W}, v1
    v_lshlrev_b32 v{VL16}, 4, v2
    v_lshlrev_b32 v12, 2, v2
    {mapping}
    s_mov_b32 s{S_SRD + 2}, 0x10000000
    s_mov_b32 s{S_SRD + 3}, 0x00020000
    s_mov_b32 s{SX + 2}, {N * 256}
    s_mov_b32 s{SX + 3}, 0x00020000
    s_mov_b32 s{SDG + 2}, {N * 2}
    s_mov_b32 s{SDG + 3}, 0x00020000
    s_mov_b32 s{SOUT + 2}, {N * 256}
    s_mov_b32 s{SOUT + 3}, 0x00020000
    s_mov_b32 s{SMP + 2}, {N * 256}
    s_mov_b32 s{SMP + 3}, 0x00020000
    s_mov_b32 s{S_THR}, 0x4b800000               ; 2^24
    s_lshl_b32 s{S_T0}, s{S_W}, 12
    s_mul_i32 s{S_SRC0}, s{S_SPLIT}, {52 * 8192}
    s_add_u32 s{S_SRC0}, s{S_SRC0}, s{S_T0}
    s_mov_b32 s{S_T1}, {KF}
    s_cmp_lt_u32 s{S_W}, 2
    s_cselect_b32 s{S_T1}, s{S_T1}, {VF - 8192 - 8192}
    s_add_u32 s{S_SRC0}, s{S_SRC0}, s{S_T1}
    s_lshl_b32 s{S_Q0}, s{S_QT}, 16
    s_lshl_b32 s{S_T1}, s{S_W}, 14
    s_add_u32 s{S_Q0}, s{S_Q0}, s{S_T1}
    s_add_u32 s{S_Q0}, s{S_Q0}, {QF}
    s_add_u32 s{S_Q0 + 1}, s{S_Q0}, 0x1000
    s_add_u32 s{S_Q0 + 2}, s{S_Q0}, 0x2000
    s_add_u32 s{S_Q0 + 3}, s{S_Q0}, 0x3000
    s_mul_i32 s{S_T1}, s{S_QT}, 6
    s_add_u32 s{S_T1}, s{S_T1}, s{S_SPLIT}
    s_lshl_b32 s{S_PO}, s{S_T1}, 16
    s_lshl_b32 s{S_T0}, s{S_W}, 14
    s_add_u32 s{S_PO}, s{S_PO}, s{S_T0}
    s_add_u32 s{S_PO}, s{S_PO}, {PO}
    s_lshl_b32 s{S_PL}, s{S_T1}, 11
    s_lshl_b32 s{S_T0}, s{S_W}, 9
    s_add_u32 s{S_PL}, s{S_PL}, s{S_T0}
    s_add_u32 s{S_PL}, s{S_PL}, {PL}
    s_lshl_b32 s{S_T0}, s{S_W}, 2
    s_lshl_b32 s{S_OWN}, {1 | 1 << 6 | 1 << 12}, s{S_SPLIT}
    s_lshr_b32 s{S_OWN}, s{S_OWN}, s{S_T0}
    s_add_u32 s{S_T0}, s{S_PO}, 0
    s_bitcmp1_b32 s{S_OWN}, 0
    s_cselect_b32 s{S_PA + 0}, 0x7fff0000, s{S_T0}
    s_add_u32 s{S_T0}, s{S_PO}, 4096
    s_bitcmp1_b32 s{S_OWN}, 1
    s_cselect_b32 s{S_PA + 1}, 0x7fff0000, s{S_T0}
    s_add_u32 s{S_T0}, s{S_PO}, 8192
    s_bitcmp1_b32 s{S_OWN}, 2
    s_cselect_b32 s{S_PA + 2}, 0x7fff0000, s{S_T0}
    s_add_u32 s{S_T0}, s{S_PO}, 12288
    s_bitcmp1_b32 s{S_OWN}, 3
    s_cselect_b32 s{S_PA + 3}, 0x7fff0000, s{S_T0}
    v_mov_b32 v{VX}, 0x7fff0000
    v_mov_b32 v{VSEG}, 0
    s_cmp_lt_u32 s{S_SPLIT}, 2
    s_cselect_b32 s{S_T0}, 0, 0x7fff0000
    v_add_u32 v{VVL}, s{S_T0}, v{VL16}
    s_mov_b32 s{S_U}, 51
    s_mov_b32 s{S_MODE}, 0
    s_add_u32 s{S_T0}, s{S_U}, 1
    s_cmp_lt_u32 s{S_W}, 2
    s_cselect_b32 s{S_T1}, 0, 1
    s_add_u32 s{S_T0}, s{S_T0}, s{S_T1}
    s_lshl_b32 s{S_T0}, s{S_T0}, 13
    s_add_u32 s{SKV + 2}, s{S_SRC0}, s{S_T0}
    s_sub_u32 s{SKV + 2}, s{SKV + 2}, 4096
    s_mov_b32 s{SKV + 3}, 0x00020000
    s_mov_b32 s{S_REC}, {REC}
    s_mov_b32 s{S_K0}, {KF + 312 * 8192}
    s_mov_b32 s{S_FV}, {VF + 312 * 8192}
    s_add_u32 s{S_V1}, s{S_FV}, 4096
    s_mov_b32 s{S_CAP}, {CAP}
    s_lshl_b32 s{S_FLG}, s{S_QT}, 7
    s_add_u32 s{S_FLG}, s{S_FLG}, {FLG}
    s_mul_i32 s{S_T0}, s{S_W}, 6
    s_add_u32 s{S_T0}, s{S_T0}, s{S_SPLIT}
    s_lshl_b32 s{S_T1}, s{S_QT}, 4
    s_add_u32 s{S_T1}, s{S_T1}, s{S_T0}
    s_cmp_lt_u32 s{S_T0}, 16
    s_cselect_b32 s{S_MASK}, -1, 0
    s_cmp_lt_u32 s{S_T1}, {N // 16}
    s_cselect_b32 s{S_MASK}, s{S_MASK}, 0
    s_lshl_b32 s{S_I}, s{S_T1}, 8
    s_add_u32 s{S_I}, s{S_I}, {TAB}
    s_mul_i32 s{S_T0}, s{S_W}, {RSZ}
    s_add_u32 s{S_T0}, s{S_T0}, {RB}
    v_mov_b32 v{VRB}, s{S_T0}
    s_add_u32 s{S_T0}, s{S_T0}, 64
    v_add_u32 v{VDC}, s{S_T0}, v12
    v_mov_b32 v{VOOB}, 0x7fffffff
    v_mov_b32 v4, 0
    v_mov_b32 v5, {LDS_FLAG}
    ds_write_b32 v5, v4
    """)
    emit_region_reset(a)
    a(f"""
    s_waitcnt lgkmcnt(0)
    s_and_b32 s{S_SRD + 1}, s{S_SRD + 1}, 0xffff
    s_and_b32 s{SX + 1}, s{SX + 1}, 0xffff
    s_and_b32 s{SDG + 1}, s{SDG + 1}, 0xffff
    s_and_b32 s{SOUT + 1}, s{SOUT + 1}, 0xffff
    s_mov_b32 s{SKV}, s{S_SRD}
    s_mov_b32 s{SKV + 1}, s{S_SRD + 1}
    s_add_u32 s{SMP}, s{S_SRD}, {MP}
    s_addc_u32 s{SMP + 1}, s{S_SRD + 1}, 0
    buffer_load_dword v{VREM}, v12, {SRD}, s{S_I} offen{LS()}
    """)
    def lane_setup():
        a(f"""
        v_bfe_u32 v2, v0, 2, 2
        v_and_b32 v3, 3, v0
        v_bfe_u32 v4, v0, 4, 2
        s_lshl_b32 s{S_T0}, s{S_W}, 6
        s_sub_u32 s{S_T1}, s{S_T0}, 12
        v_lshlrev_b32 v{GOFF}, 4, v3
        v_add_u32 v{GOFF}, s{S_T1}, v{GOFF}
        v_lshlrev_b32 v5, 4, v2
        v_sub_u32 v{GOFF}, v{GOFF}, v5               ; 64w + 16q - 16n' - 12
        v_lshlrev_b32 v{GLA}, 4, v2
        v_lshl_add_u32 v{GLA}, v4, 6, v{GLA}
        v_add_u32 v{GLA}, {RB}, v{GLA}
        """)

    def maxc():
        a(f"""
        v_and_b32 v6, 15, v0
        v_bfe_u32 v7, v0, 4, 2
        v_mul_u32_u24 v7, {RSZ}, v7
        v_lshl_add_u32 v7, v6, 2, v7
        v_add_u32 v7, {RB}, v7
        ds_read_b32 v9, v7
        s_waitcnt lgkmcnt(0)
        """)
        for sh in ("row_shr:1", "row_shr:2", "row_shr:4", "row_shr:8"):
            a(f"v_max_u32_dpp v9, v9, v9 {sh} row_mask:0xf bank_mask:0xf")
            a("s_nop 1")
        a("v_max_u32_dpp v9, v9, v9 row_bcast:15 row_mask:0xa bank_mask:0xf")
        a("s_nop 1")
        a("v_max_u32_dpp v9, v9, v9 row_bcast:31 row_mask:0xc bank_mask:0xf")
        a("s_nop 1")
        a(f"v_readlane_b32 s{S_MAXC}, v9, 63")
        a("s_nop 3")
        a(f"s_min_u32 s{S_N}, s{S_MAXC}, {CAP}")
        a(f"s_add_u32 s{S_N}, s{S_N}, 3")
        a(f"s_lshr_b32 s{S_N}, s{S_N}, 2")

    if cfg.get("ptl"):
        a("s_memrealtime s[98:99]")
    a.label("L_k2_restart")
    a.seg("k2_pro")
    a(f"s_mov_b32 s{S_SRC}, s{S_SRC0}")
    a(f"s_lshl_b32 s{S_M0}, s{S_W}, 12")
    a(f"s_mov_b32 m0, s{S_M0}")
    a(f"s_mov_b32 s{S_LEFT}, s{S_U}")

    def dma_stage():
        for k in range(4):
            a(f"buffer_load_dwordx4 v{VL16}, {KVS}, s{S_SRC} offen offset:{1024 * k}{LS()} lds")

    def dma_adv():
        a(f"s_add_u32 s{S_M0}, s{S_M0}, 0x4000")
        a(f"s_and_b32 m0, s{S_M0}, 0x1ffff")
        a(f"s_add_u32 s{S_SRC}, s{S_SRC}, 0x2000")

    for i in range(8):
        a(f"v_mov_b32 v{P + 8 + i}, 0")
    zq = [f"v_mfma_f32_32x32x16_bf16 {vr(O + 16 * i, 16)}, {vr(P + 8, 4)}, {vr(P + 8, 4)}, 0" for i in range(8)]
    for s_ in range(4):
        a(f"buffer_load_dwordx4 {ar(AK + 16 + 4 * s_, 4)}, v{VL16}, {SRD}, s{S_K0} offen offset:{1024 * s_}{LS()}")
    for i in range(16):
        a(f"buffer_load_dwordx4 {ar(4 * i, 4)}, v{VL16}, {SRD}, s{S_Q0 + (i >> 2)} offen offset:{1024 * (i & 3)}{LS()}")
        if i % 2 == 1:
            a(zq.pop())
    dma_stage()
    dma_adv()
    for j in range(8):
        a(f"buffer_load_dwordx4 {ar(AV + 4 * j, 4)}, v{VVL}, {SRD}, s{S_FV if j < 4 else S_V1} offen offset:{1024 * (j & 3)}{LS()}")
    dma_stage()
    dma_adv()
    assert not zq
    a(f"s_cmp_lg_u32 s{S_MODE}, 0")
    a("s_cbranch_scc1 L_k2_nosetup")
    lane_setup()
    a(f"""
    v_and_b32 v6, 15, v0
    v_and_b32 v7, 1, v6
    v_lshlrev_b32 v7, 4, v7
    v_mov_b32 v8, 0x3f80
    v_lshlrev_b32 v7, v7, v8                     ; value
    v_lshrrev_b32 v6, 1, v6                      ; 0..7 = (h, dword)
    """)
    for k in range(8):
        a(f"v_cmp_eq_u32 s[{SMK + 2 * k}:{SMK + 2 * k + 1}], {k}, v6")
    for k in range(8):
        a(f"v_cndmask_b32 v{BT + k}, 0, v7, s[{SMK + 2 * k}:{SMK + 2 * k + 1}]")
    for k in range(8):
        a(f"v_accvgpr_write_b32 a{AAH + k}, v{BT + k}")
    Z = vr(P + 8, 4)
    for i in range(4):
        a(f"v_mfma_f32_32x32x16_bf16 {ar(ABUF + 16 * i, 16)}, {Z}, {Z}, 0")
    for i in range(2):
        a(f"{MF} {ar(ABUF + 64 + 4 * i, 4)}, {Z}, {Z}, 0")
    a.label("L_k2_nosetup")
    a.seg("k2_pro2")
    for qb in range(NQ):
        a(f"v_mov_b32 v{L + qb}, 0")
    a("v_mov_b32 v2, 0x3f803f80")
    for i in range(4):
        a(f"v_accvgpr_write_b32 a{AONE + i}, v2")
    a(f"v_mfma_f32_32x32x16_bf16 {ar(AL - 8, 16)}, {vr(P + 12, 4)}, {vr(P + 12, 4)}, 0".replace("a[224:239]", "a[232:247]"))
    a(f"v_add_u32 v{VLDS}, 0x4000, v{VL16}")
    if cfg.get("ptl"):
        a("s_memrealtime s[62:63]")
    a("s_waitcnt vmcnt(16)")
    if cfg.get("ptl"):
        a("s_memrealtime s[60:61]")
    dq = []
    for st in range(PF - 1):
        dq += [[f"buffer_load_dwordx4 v{VL16}, {KVS}, s{S_SRC} offen offset:{1024 * k}{LS()} lds"] for k in range(4)]
        dq[-1] += [f"s_add_u32 s{S_M0}, s{S_M0}, 0x4000", f"s_and_b32 m0, s{S_M0}, 0x1ffff", f"s_add_u32 s{S_SRC}, s{S_SRC}, 0x2000"]
    n = 0
    for s_ in range(4):
        for qb in range(4):
            d = vr(St(qb, 1), 4)
            a(f"{MF} {d}, {ar(AK + 16 + 4 * s_, 4)}, {ar(AQ + (qb * 4 + s_) * 4, 4)}, {'0' if s_ == 0 else d}")
            if n % 4 == 1:
                for t in dq.pop(0):
                    a(t)
            n += 1
    a("s_waitcnt vmcnt(16)")
    a("s_barrier")
    if cfg.get("ptl"):
        a("s_memrealtime s[88:89]")
    for s in range(8):
        a(f"ds_read_b128 {ar(AK + 4 * s, 4)}, v{VL16} offset:{1024 * s}")
    a("s_nop 1")
    MX = 26
    for qb in range(4):
        s0 = St(qb, 1)
        a(f"v_max3_f32 v{MX + qb}, v{s0}, v{s0 + 1}, v{s0 + 2}")
    for qb in range(4):
        a(f"v_max_f32 v{MX + qb}, v{MX + qb}, v{St(qb, 1) + 3}")
    for sw in ("v_permlane32_swap_b32", "v_permlane16_swap_b32"):
        for qb in range(4):
            a(f"v_mov_b32 v{MX + 4 + qb}, v{MX + qb}")
        a("s_nop 0")
        for qb in range(4):
            a(f"{sw} v{MX + qb}, v{MX + 4 + qb}")
        a("s_nop 0")
        for qb in range(4):
            a(f"v_max_f32 v{MX + qb}, v{MX + qb}, v{MX + 4 + qb}")
    for qb in range(4):
        for i in range(4):
            a(f"v_sub_f32 v{NM + 4 * qb + i}, 0, v{MX + qb}")
    a(f"s_cmp_lt_u32 s{S_SPLIT}, 2")
    a("s_cbranch_scc1 L_lo")
    a.label("L_lo_ret")
    a.seg("k2_pro3")
    a("s_waitcnt lgkmcnt(0)")
    for n, x in enumerate(qk_order("A")):
        a(mfma_qk(*x))
        if n % 2 == 0 and dq:
            for t in dq.pop(0):
                a(t)
    assert not dq
    if cfg.get("stamp"):
        a("s_memtime s[90:91]")
        a("s_memrealtime s[92:93]")
        a("s_waitcnt lgkmcnt(0)")
    a(f"s_cmp_lg_u32 s{S_MODE}, 0")
    a("s_cbranch_scc1 L_safe")
    if cfg.get("ptl"):
        a("s_memrealtime s[86:87]")
        a("s_waitcnt lgkmcnt(0)")
    a(f"s_mov_b32 s{S_CNT}, {NBR}")
    a(f"s_mov_b32 s{S_EV}, 0")
    a.raw(".p2align 6")
    emit_body(a, cfg, "m", False)
    a.seg("k2_mid")
    a(f"s_add_u32 s{S_EV}, s{S_EV}, 1")
    a(f"s_cmp_eq_u32 s{S_EV}, 4")
    a("s_cbranch_scc1 L_loop_done")
    a(f"s_cmp_eq_u32 s{S_EV}, 3")
    a("s_cbranch_scc1 L_ev_g")
    a(f"s_cmp_eq_u32 s{S_EV}, 2")
    a("s_cbranch_scc1 L_ev_b")
    a.seg("k2_evr")
    dbg_stamp(a, cfg, 3, 512, s=88, v=2)
    a(f"""
    v_and_b32 v{VREM}, s{S_MASK}, v{VREM}
    v_and_b32 v2, 63, v0
    v_mul_u32_u24 v2, {RECS}, v2
    v_and_b32 v3, 0xffff, v{VREM}
    v_lshl_add_u32 v{VSEG}, v3, 2, v2
    v_lshrrev_b32 v{VREM}, 16, v{VREM}
    """)
    for k in range(NSLOT // 4):
        a(f"buffer_load_dwordx4 {vr(RC + 4 * k, 4)}, v{VSEG}, {SRD}, s{S_REC} offen offset:{16 * k}{LS()}")
    a(f"s_mov_b32 s{S_CNT}, {NB0}")
    a("s_branch L_body_m")
    a.label("L_ev_b")
    a.seg("k2_ev")
    if cfg.get("ptl"):
        a("s_memrealtime s[100:101]")
        a("s_waitcnt lgkmcnt(0)")
    a(f"s_waitcnt vmcnt({4 * NB0})")
    a("v_mov_b32 v12, 1")
    RK = 4
    for grp in range(NSLOT // 8):
        for k in range(8):
            a(f"v_cmp_lt_u32 s[{SMK + 2 * k}:{SMK + 2 * k + 1}], {8 * grp + k}, v{VREM}")
        for k in range(8):
            a(f"v_and_or_b32 v{BT + k}, v{RC + 8 * grp + k}, 60, v{VRB}")
        if grp:
            a(f"s_cmp_eq_u64 s[{SMK}:{SMK + 1}], 0")
            a("s_cbranch_scc1 L_ev_built")
        for k in range(8):
            a(f"v_cndmask_b32 v{BT + k}, v{VDC}, v{BT + k}, s[{SMK + 2 * k}:{SMK + 2 * k + 1}]")
            a(f"ds_add_rtn_u32 v{RK + k}, v{BT + k}, v12")
        for k in range(8):
            a(f"s_waitcnt lgkmcnt(7)")
            a(f"v_min_u32 v{RK + k}, s{S_CAP}, v{RK + k}")
            a(f"v_lshl_add_u32 v{BT + k}, v{RK + k}, 6, v{BT + k}")
            a(f"ds_write_b32 v{BT + k}, v{RC + 8 * grp + k} offset:{LOFF}")
    a.label("L_ev_built")
    a(f"""
    v_and_b32 v2, 15, v0
    v_lshl_add_u32 v2, v2, 2, v{VRB}
    ds_read_b32 v3, v2
    v_cmp_lt_u32 s[{SMK}:{SMK + 1}], {NSLOT}, v{VREM}
    s_waitcnt lgkmcnt(0)
    v_cmp_lt_u32 vcc, s{S_CAP}, v3
    s_nop 3
    s_or_b64 vcc, vcc, s[{SMK}:{SMK + 1}]
    s_cbranch_vccnz L_car_e
    v_mov_b32 v{VREM}, 0
    """)
    a.label("L_ev_ret")

    a(f"s_mov_b32 s{S_CNT}, 1")
    a("s_branch L_body_m")
    a.label("L_ev_g")
    a.seg("k2_evg")
    maxc()
    a(f"""
    s_min_u32 s{S_CNT}, s{S_N}, {NGMAX}
    s_max_u32 s{S_CNT}, s{S_CNT}, 1
    s_sub_u32 s{S_N}, s{S_N}, s{S_CNT}
    s_mul_i32 s{S_T0}, s{S_CNT}, 3
    s_sub_u32 s{S_LEFT}, s{S_LEFT}, s{S_T0}
    s_sub_u32 s{S_LEFT}, s{S_LEFT}, {NBR + NB0 + 1}
    v_bfe_u32 v2, v0, 2, 2
    v_and_b32 v3, 3, v0
    v_bfe_u32 v4, v0, 4, 2
    s_lshl_b32 s{S_T0}, s{S_W}, 6
    s_lshl_b32 s{S_T1}, s{S_QT}, 4
    s_add_u32 s{S_T1}, s{S_T1}, s{S_SPLIT}
    s_lshl_b32 s{S_I}, s{S_T1}, 12
    s_add_u32 s{S_I}, s{S_I}, s{S_T0}
    v_lshrrev_b32 v5, 1, v4
    v_lshl_add_u32 v5, v5, 2, v2
    v_and_b32 v6, 1, v4
    v_lshlrev_b32 v{VX}, 8, v5
    v_lshl_add_u32 v{VX}, v6, 5, v{VX}
    v_lshl_add_u32 v{VX}, v3, 3, v{VX}
    v_add_u32 v{VX}, s{S_I}, v{VX}
    v_add_u32 v10, {6 * 4096}, v{VX}
    v_add_u32 v11, {12 * 4096}, v{VX}
    s_lshl_b32 s{S_I}, s{S_T1}, 5
    v_lshlrev_b32 v5, 1, v5
    v_add_u32 v5, s{S_I}, v5
    s_waitcnt vmcnt(0)
    """)
    for b in range(3):
        for m in range(2):
            a(f"buffer_load_dwordx2 {ar(AXV + 4 * b + 2 * m, 2)}, v{[VX, 10, 11][b]}, s[{SX}:{SX + 3}], 0 offen offset:{2048 * m}")
            a(f"buffer_load_ushort a{ADI + 2 * b + m}, v5, s[{SDG}:{SDG + 3}], 0 offen offset:{192 * b + 16 * m}")
    if cfg.get("touch"):
        a(f"buffer_load_dword a226, v{VL16}, {SRD}, s{S_PO} offen")
        a(f"buffer_load_dword a227, v{VL16}, {SRD}, s{S_PL} offen")
        a(f"buffer_load_dword a228, v{VL16}, {SRD}, s{S_FLG} offen")
        a(f"buffer_load_dword a229, v{VX}, s[{SOUT}:{SOUT + 3}], 0 offen")
    a.raw(".p2align 6")
    for gb in range(3):
        emit_body(a, cfg, f"g{gb}", False, gb=gb, loop="g0")
    a.seg("k2_gx")
    if cfg.get("spf2"):
        a(f"""
        s_lshl_b32 s94, s{S_W}, 11
        s_add_u32 s94, s94, L_body_lf - k2_attn_kernel
        v_add_u32 v60, s94, v{VL16}
        global_load_dwordx4 a[232:235], v60, s[92:93]
        global_load_dwordx4 a[236:239], v60, s[92:93] offset:1024
        """)
    a(f"s_mov_b32 s{S_CNT}, s{S_LEFT}")
    a(f"s_cmp_lg_u32 s{S_LEFT}, 0")
    a("s_cbranch_scc1 L_body_m")
    a.label("L_loop_done")
    a.seg("k2_mid2")
    if cfg.get("stamp"):
        a("s_memtime s[94:95]")
        a("s_memrealtime s[96:97]")
        a(f"s_load_dwordx2 s[64:65], s[0:1], 80")
        a("s_waitcnt lgkmcnt(0)")
        a("s_sub_u32 s94, s94, s90")
        a("s_sub_u32 s96, s96, s92")
        a("v_mov_b32 v2, s94")
        a("v_mov_b32 v3, s96")
        a("s_and_b32 s65, s65, 0xffff")
        a("s_mov_b32 s66, 256")
        a("s_mov_b32 s67, 0x00020000")
        a("s_lshr_b32 s72, s2, 3")
        a("s_lshl_b32 s72, s72, 3")
        a("v_mov_b32 v4, s72")
        a("s_and_b32 s73, s2, 7")
        a(f"s_or_b32 s73, s73, s{S_W}")
        a("s_cmp_lg_u32 s73, 0")
        a("s_cbranch_scc1 L_nostamp")
        a("buffer_store_dwordx2 v[2:3], v4, s[64:67], 0 offen")
        a.label("L_nostamp")
    emit_body(a, cfg, "lf", False, last=True, nkb=2)
    a("s_nop 7")
    for qb in range(NQ):
        a(f"v_accvgpr_read_b32 v{L + qb}, a{AL + 4 * qb}")
    for qb in range(NQ):
        a(f"v_mul_f32 v{L + qb}, 0.25, v{L + qb}")
    a.label("L_k2_chk")
    a.seg("k2_chk")
    if cfg.get("tl") and not cfg.get("ptl"):
        a("s_memrealtime s[98:99]")
    VPLA = 8
    smp = f"s[{SMP}:{SMP + 3}]"

    def consume_all():
        for b in range(3):
            for k in range(4):
                d = ar(AAG + 8 * b + 4 * (k >> 1), 4)
                a(f"{MF} {d}, {ar(AAH + 4 * (k & 1), 4)}, {ar(ABUF + 16 * b + 4 * k, 4)}, {d}")

    def pub(qb):
        for p in range(4):
            t = 26 + 4 * (p % 2)
            for d in range(4):
                src = O + (qb * 8 + 2 * p) * 4 + 2 * d
                a(f"v_cvt_pk_bf16_f32 v{t + d}, v{src}, v{src + 1}")
            a(f"buffer_store_dwordx4 {vr(t, 4)}, v{VL16}, {SRD}, s{S_PA + qb} offen offset:{1024 * p} sc1")

    pub(2)
    pub(3)
    a(f"""
    v_max3_f32 v4, v{L}, v{L + 1}, v{L + 2}
    v_max_f32 v4, v4, v{L + 3}
    v_add_f32 v6, v{L}, v{L + 1}
    v_add_f32 v7, v{L + 2}, v{L + 3}
    v_add_f32 v6, v6, v7
    s_mov_b32 s{S_T0}, 0x53800000
    v_cmp_ngt_f32 vcc, s{S_T0}, v4
    v_cmp_u_f32 s[{SMK}:{SMK + 1}], v6, v6
    v_mov_b32 v5, {LDS_FLAG}
    v_mov_b32 v4, 1
    s_or_b64 vcc, vcc, s[{SMK}:{SMK + 1}]
    s_cbranch_vccz L_k2_chk2
    ds_write_b32 v5, v4
    """)
    a.label("L_k2_chk2")
    a(f"v_and_b32 v{VPLA}, 15, v0")
    a(f"v_lshlrev_b32 v{VPLA}, 3, v{VPLA}")
    for sw in ("v_permlane32_swap_b32", "v_permlane16_swap_b32"):
        for qb in range(NQ):
            a(f"v_mov_b32 v{T + qb}, v{L + qb}")
        a("s_nop 0")
        for qb in range(NQ):
            a(f"{sw} v{L + qb}, v{T + qb}")
        a("s_nop 0")
        for qb in range(NQ):
            a(f"v_add_f32 v{57 + 2 * qb if sw[10] == '1' else L + qb}, v{L + qb}, v{T + qb}")
    for qb in range(NQ):
        a(f"v_sub_f32 v{56 + 2 * qb}, 0, v{NM + 4 * qb}")
    a("s_mov_b64 exec, 0xffff")
    for qb in range(NQ):
        a(f"buffer_store_dwordx2 v[{56 + 2 * qb}:{57 + 2 * qb}], v{VPLA}, {SRD}, s{S_PL} offen offset:{128 * qb} sc1")
    a("s_mov_b64 exec, -1")
    if cfg.get("tl") and not cfg.get("ptl"):
        a("s_memrealtime s[62:63]")
    a("s_waitcnt vmcnt(20) lgkmcnt(0)")
    a("s_barrier")
    a("ds_read_b32 v4, v5")
    a(f"s_and_b32 s{S_T0}, s{S_OWN}, 15")
    a("s_cbranch_scc1 L_own")
    a.label("L_ownr")
    a.seg("k2_epi")
    a(f"""
    s_waitcnt lgkmcnt(0)
    v_readfirstlane_b32 s{S_T0}, v4
    s_nop 3
    s_cmp_gt_u32 s{S_T0}, s{S_MODE}
    s_cbranch_scc1 L_redo
    """)
    if cfg.get("tl") and not cfg.get("ptl"):
        a("s_memrealtime s[60:61]")
    consume_all()
    a("s_waitcnt vmcnt(0) lgkmcnt(0)")
    if cfg.get("tl") and not cfg.get("ptl"):
        a("s_memrealtime s[88:89]")
    a("s_barrier")
    a(f"""
    s_cmp_lg_u32 s{S_W}, 0
    s_cbranch_scc1 L_nosig
    s_lshl_b32 s{S_T0}, s{S_SPLIT}, 2
    v_mov_b32 v10, s{S_T0}
    s_add_u32 s{S_T1}, s{S_MODE}, 1
    v_mov_b32 v11, s{S_T1}
    s_mov_b64 exec, 1
    buffer_store_dword v11, v10, {SRD}, s{S_FLG} offen sc1
    s_mov_b64 exec, -1
    """)
    a.label("L_nosig")
    a(f"s_cmp_gt_i32 s{S_N}, 0")
    a("s_cbranch_scc1 L_left")
    a.label("L_gdone")
    a.seg("k2_fin")
    if cfg.get("tl") and not cfg.get("ptl"):
        a("s_memrealtime s[86:87]")
    POV, PLV = 128, 200
    ACC, BP, AI, XA, VXB = 26, 64, 34, 96, 5
    a(f"""
    v_and_b32 v{VPLA}, 15, v0
    v_and_b32 v9, 63, v0
    v_min_u32 v9, 5, v9
    v_lshlrev_b32 v9, 2, v9
    buffer_load_dword v10, v9, {SRD}, s{S_FLG} offen sc1
    s_mul_i32 s{S_T0}, s{S_QT}, {6 * 65536}
    s_lshl_b32 s{S_T1}, s{S_SPLIT}, 12
    s_add_u32 s{S_T0}, s{S_T0}, s{S_T1}
    s_lshl_b32 s{S_T1}, s{S_W}, 10
    s_add_u32 s{S_T0}, s{S_T0}, s{S_T1}
    s_add_u32 s{S_PO}, s{S_T0}, {PO}
    s_mul_i32 s{S_T0}, s{S_QT}, {6 * 2048}
    s_lshl_b32 s{S_T1}, s{S_SPLIT}, 7
    s_add_u32 s{S_T0}, s{S_T0}, s{S_T1}
    s_add_u32 s{S_PL}, s{S_T0}, {PL}
    v_mov_b32 v{VXB}, v{VX}
    v_add_u32 v{VXB + 1}, {6 * 4096}, v{VX}
    v_add_u32 v{VXB + 2}, {12 * 4096}, v{VX}
    v_bfe_u32 v2, v0, 2, 2
    v_and_b32 v3, 3, v0
    v_bfe_u32 v4, v0, 5, 1
    v_lshl_add_u32 v2, v4, 2, v2
    v_lshl_add_u32 v2, v3, 4, v2
    v_lshlrev_b32 v14, 2, v2
    v_add_u32 v15, 32, v14                       ; m = 1
    v_and_b32 v4, 16, v0
    v_cmp_ne_u32 s[{SMK}:{SMK + 1}], 0, v4
    v_and_b32 v2, 1, v{VPLA}
    v_lshlrev_b32 v2, 4, v2
    v_mov_b32 v3, 0x3f80
    v_lshlrev_b32 v2, v2, v3
    v_bfe_u32 v3, v{VPLA}, 1, 1
    v_lshrrev_b32 v4, 2, v{VPLA}
    v_bfe_u32 v11, v0, 4, 2
    v_xor_b32 v4, v4, v11
    v_lshl_add_u32 v3, v4, 1, v3
    v_cmp_eq_u32 s[{SMK + 2}:{SMK + 3}], 0, v3
    v_cmp_eq_u32 s[{SMK + 4}:{SMK + 5}], 1, v3
    v_lshlrev_b32 v{VPLA}, 3, v{VPLA}
    """)
    for k in (2, 3, 4, 5):
        a(f"v_mov_b32 v{AI + k}, 0")
    for k in range(2):
        a(f"v_cndmask_b32 v{AI + k}, 0, v2, s[{SMK + 2 + 2 * k}:{SMK + 3 + 2 * k}]")
        a(f"v_cndmask_b32 v{AI + 6 + k}, 0, v2, s[{SMK + 2 + 2 * k}:{SMK + 3 + 2 * k}]")
    for b in range(3):
        for m in range(2):
            a(f"v_accvgpr_read_b32 v2, a{ADI + 2 * b + m}")
            for d in range(2):
                a(f"v_accvgpr_read_b32 v{3 + d}, a{AXV + 4 * b + 2 * m + d}")
            for r in range(4):
                a(f"v_accvgpr_read_b32 v{80 + r}, a{AAG + 8 * b + 4 * m + r}")
            a("v_lshlrev_b32 v2, 16, v2")
            xa = XA + 8 * b + 4 * m
            for d in range(2):
                a(f"v_lshlrev_b32 v{xa + 2 * d}, 16, v{3 + d}")
                a(f"v_and_b32 v{xa + 2 * d + 1}, 0xffff0000, v{3 + d}")
            for r in range(4):
                a(f"v_fmac_f32 v{xa + r}, v{80 + r}, v2")
    a(f"s_mov_b32 s{S_T1}, s{S_SPLIT}")
    for s in range(6):
        a(f"s_lshl_b32 s{S_T0}, s{S_T1}, 11")
        a(f"s_add_u32 s{SMK + 8 + s}, s{S_PL}, s{S_T0}")
        if s:
            a(f"s_lshl_b32 s{S_T0}, s{S_T1}, 16")
            a(f"s_add_u32 s{SMK + 14 + s}, s{S_PO}, s{S_T0}")
        a(f"s_add_u32 s{S_T1}, s{S_T1}, 1")
        a(f"s_cmp_eq_u32 s{S_T1}, 6")
        a(f"s_cselect_b32 s{S_T1}, 0, s{S_T1}")
    a(f"s_lshl_b32 s{S_T0}, s{S_W}, 10")
    a(f"v_add_u32 v2, s{S_T0}, v{VL16}")
    for b in range(3):
        a(f"ds_read_b128 {vr(POV + 24 * b, 4)}, v2 offset:{4096 * b}")
    a("s_waitcnt lgkmcnt(0)")
    a(f"s_mov_b32 s{S_I}, 0")
    a.label("L_poll")
    a(f"""
    buffer_load_dword v11, v9, {SRD}, s{S_FLG} offen sc1
    s_waitcnt vmcnt(1)
    v_cmp_eq_u32 vcc, 0, v10
    s_cbranch_vccz L_poll_done
    s_add_u32 s{S_I}, s{S_I}, 1
    s_cmp_gt_u32 s{S_I}, 0x1000000
    s_cbranch_scc1 L_k2_end
    buffer_load_dword v10, v9, {SRD}, s{S_FLG} offen sc1
    s_waitcnt vmcnt(1)
    v_cmp_eq_u32 vcc, 0, v11
    s_cbranch_vccnz L_poll
    v_mov_b32 v12, v11
    s_branch L_poll_d2
    """)
    a.label("L_poll_done")
    a("v_mov_b32 v12, v10")
    a.label("L_poll_d2")
    if cfg.get("tl") and not cfg.get("ptl"):
        a("s_memrealtime s[100:101]")
        a("s_waitcnt lgkmcnt(0)")
    a("v_cmp_ne_u32 vcc, 1, v12")
    for b in range(3):
        if b == 2:
            a(f"s_cmp_gt_u32 s{S_SPLIT}, 3")
            a("s_cbranch_scc1 L_no3")
        for s in range(6):
            a(f"buffer_load_dwordx2 {vr(PLV + 12 * b + 2 * s, 2)}, v{VPLA}, {SRD}, s{SMK + 8 + s} offen offset:{768 * b} sc1")
        for s in range(1, 6):
            a(f"s_add_u32 s{S_T0}, s{SMK + 14 + s}, {b * 6 * 4096}")
            a(f"buffer_load_dwordx4 {vr(POV + 24 * b + 4 * s, 4)}, v{VL16}, {SRD}, s{S_T0} offen sc1")
    a.label("L_ld_done")
    a("s_cbranch_vccnz L_general")

    def finish(b, rcp):
        for m in range(2):
            if rcp:
                a(f"ds_bpermute_b32 v{80 + m}, v{14 + m}, v{rcp}")
            for j in range(8):
                a(f"ds_bpermute_b32 v{BP + 8 * m + j}, v{14 + m}, v{ACC + j}")
        ob = 56 + 4 * (b & 1)
        for m in range(2):
            a(f"s_waitcnt lgkmcnt({(9 if rcp else 8) * (1 - m)})")
            xa = XA + 8 * b + 4 * m
            for r in range(4):
                a(f"v_cndmask_b32 v{BP + 8 * m + r}, v{BP + 8 * m + r}, v{BP + 8 * m + 4 + r}, s[{SMK}:{SMK + 1}]")
                if rcp:
                    a(f"v_fmac_f32 v{xa + r}, v{BP + 8 * m + r}, v{80 + m}")
                else:
                    a(f"v_add_f32 v{xa + r}, v{xa + r}, v{BP + 8 * m + r}")
            for d in range(2):
                a(f"v_cvt_pk_bf16_f32 v{ob + 2 * m + d}, v{xa + 2 * d}, v{xa + 2 * d + 1}")
            a(f"buffer_store_dwordx2 {vr(ob + 2 * m, 2)}, v{VXB + b}, s[{SOUT}:{SOUT + 3}], 0 offen offset:{2048 * m}{OSC}")

    AC3, BP3, RC3 = 26, 64, 124
    acc = [26, 236, 244]
    bp = [64, 80, 0]
    bp[2] = POV
    rb = [120, 122, 252]
    rc = [42, 43, 44]

    def M(b, nb):
        pl, po = PLV + 12 * b, POV + 24 * b
        for s in range(6):
            if s:
                a(f"s_waitcnt vmcnt({5 - s + 11 * (nb - 1 - b)})")
            for h in range(2):
                d = vr(acc[b] + 4 * h, 4)
                a(f"{MF} {d}, {vr(AI + 4 * h, 4)}, {vr(po + 4 * s, 4)}, {'0' if s == 0 else d}")
            if s == 1:
                a(f"v_add_f32 v{rc[b]}, v{pl + 1}, v{pl + 3}")
            elif s > 1:
                a(f"v_add_f32 v{rc[b]}, v{rc[b]}, v{pl + 2 * s + 1}")
        a(f"v_rcp_f32 v{rc[b]}, v{rc[b]}")

    def B(b):
        for m in range(2):
            a(f"ds_bpermute_b32 v{rb[b] + m}, v{14 + m}, v{rc[b]}")
            for j in range(8):
                a(f"ds_bpermute_b32 v{bp[b] + 8 * m + j}, v{14 + m}, v{acc[b] + j}")

    def F(b, younger):
        ob = 56 + 4 * (b & 1) if b < 2 else 46
        for m in range(2):
            a(f"s_waitcnt lgkmcnt({min(15, younger + 9 * (1 - m))})")
            xa = XA + 8 * b + 4 * m
            q = bp[b] + 8 * m
            for r in range(4):
                a(f"v_cndmask_b32 v{q + r}, v{q + r}, v{q + 4 + r}, s[{SMK}:{SMK + 1}]")
                a(f"v_fmac_f32 v{xa + r}, v{q + r}, v{rb[b] + m}")
            for d in range(2):
                a(f"v_cvt_pk_bf16_f32 v{ob + 2 * m + d}, v{xa + 2 * d}, v{xa + 2 * d + 1}")
            a(f"buffer_store_dwordx2 {vr(ob + 2 * m, 2)}, v{VXB + b}, s[{SOUT}:{SOUT + 3}], 0 offen offset:{2048 * m}{OSC}")

    M(0, 3)
    M(1, 3)
    B(0)
    M(2, 3)
    B(1)
    F(0, 18)
    B(2)
    F(1, 18)
    F(2, 0)
    a("s_branch L_k2_done")
    a.label("L_no3")
    a("s_cbranch_vccnz L_no3g")
    a.seg("k2_no3")
    M(0, 2)
    M(1, 2)
    B(0)
    a("s_nop 0")
    B(1)
    F(0, 18)
    F(1, 0)
    a("s_branch L_k2_done")
    a.label("L_no3g")
    a("s_waitcnt vmcnt(0)")
    a.label("L_general")
    a.seg("k2_gen")
    for b in range(3):
        pl, po = PLV + 12 * b, POV + 24 * b
        if b == 2:
            a(f"s_cmp_gt_u32 s{S_SPLIT}, 3")
            a("s_cbranch_scc1 L_k2_done")
        a(f"s_waitcnt vmcnt({11 * (2 - b) + 2 * b})")
        a(f"v_max3_f32 v44, v{pl}, v{pl + 2}, v{pl + 4}")
        a(f"v_max3_f32 v44, v44, v{pl + 6}, v{pl + 8}")
        a(f"v_max_f32 v44, v44, v{pl + 10}")
        for s in range(6):
            a(f"v_sub_f32 v{pl + 2 * s}, v{pl + 2 * s}, v44")
        for s in range(6):
            a(f"v_exp_f32 v{pl + 2 * s}, v{pl + 2 * s}")
        a("s_nop 0")
        a(f"v_mul_f32 v45, v{pl}, v{pl + 1}")
        for s in range(1, 6):
            a(f"v_fmac_f32 v45, v{pl + 2 * s}, v{pl + 2 * s + 1}")
        a("v_rcp_f32 v45, v45")
        a("s_nop 0")
        for s in range(6):
            a(f"v_mul_f32 v{pl + 2 * s}, v{pl + 2 * s}, v45")
        for s in range(6):
            for d in range(4):
                r = po + 4 * s + d
                a(f"v_lshlrev_b32 v42, 16, v{r}")
                a(f"v_and_b32 v43, 0xffff0000, v{r}")
                op = "v_mul_f32" if s == 0 else "v_fmac_f32"
                a(f"{op} v{ACC + 2 * d}, v42, v{pl + 2 * s}")
                a(f"{op} v{ACC + 2 * d + 1}, v43, v{pl + 2 * s}")
        finish(b, None)
    a.label("L_k2_done")
    a("s_waitcnt vmcnt(0)")
    if cfg.get("tl"):
        a("s_waitcnt lgkmcnt(0)")
        a("s_mov_b64 exec, 1")
        a("v_lshrrev_b32 v1, 6, v0")
        a("v_lshlrev_b32 v1, 5, v1")
        a(f"s_lshl_b32 s90, s2, 7")
        a(f"s_add_u32 s90, s90, {TR + 3 * 0x40000}")
        for i, sr in enumerate((98, 62, 60, 88, 86, 100)):
            a(f"v_mov_b32 v{2 + i}, s{sr}")
        a(f"buffer_store_dwordx4 v[2:5], v1, {SRD}, s90 offen")
        a(f"buffer_store_dwordx2 v[6:7], v1, {SRD}, s90 offen offset:16")
    dbg_stamp(a, cfg, 5, 512, s=88, v=2)
    stamp_exit(a, cfg, 84, 2, SRD, TR)
    a.label("L_k2_end")
    a("s_endpgm")
    a.label("L_left")
    a.seg("k2_left0")
    lane_setup()
    a(f"v_add_u32 v{GLA}, {NGMAX * 256}, v{GLA}")
    a.label("L_left_loop")
    a.seg("k2_left")
    for b in range(3):
        a(f"ds_read_b128 {vr(64 + 4 * b, 4)}, v{GLA} offset:{b * RSZ + LOFF}")
    a(f"v_add_u32 v{GLA}, 256, v{GLA}")
    a("s_waitcnt lgkmcnt(0)")
    for b in range(3):
        for k in range(4):
            a(f"v_add_u32 v{64 + 4 * b + k}, v{64 + 4 * b + k}, v{GOFF}")
            a(f"buffer_load_dwordx4 {ar(ABUF + 16 * b + 4 * k, 4)}, v{64 + 4 * b + k}, {smp}, 0 offen offset:{12 - 4 * k}{LS()}")
    a("s_waitcnt vmcnt(0)")
    consume_all()
    a(f"""
    s_sub_u32 s{S_N}, s{S_N}, 1
    s_cmp_gt_i32 s{S_N}, 0
    s_cbranch_scc1 L_left_loop
    s_nop 7
    s_cmp_le_u32 s{S_MAXC}, {CAP}
    s_cbranch_scc1 L_gdone
    s_barrier
    s_branch L_car_t
    """)
    a.label("L_more2")
    a.seg("k2_more2")
    a("s_barrier")
    maxc()
    lane_setup()
    a("s_branch L_left_loop")
    a.label("L_safe")
    a.seg("k2_safe0")
    a(f"s_mov_b32 s{S_CNT}, s{S_LEFT}")
    emit_body(a, cfg, "s", True)
    a.seg("k2_smid")
    emit_body(a, cfg, "sf", True, last=True, nkb=2)
    a("s_branch L_k2_chk")
    a.label("L_redo")
    a.seg("k2_redo")
    a("s_waitcnt vmcnt(0)")
    a("s_barrier")
    a(f"s_mov_b32 s{S_MODE}, 1")
    a("s_branch L_k2_restart")
    a.label("L_own")
    a.seg("k2_ownx")
    a(f"s_ff1_i32_b32 s{S_T1}, s{S_T0}")
    a(f"s_lshl_b32 s{S_I}, s{S_W}, 2")
    a(f"s_add_u32 s{S_I}, s{S_I}, s{S_T1}")
    a(f"s_sub_u32 s{S_I}, s{S_I}, s{S_SPLIT}")
    a(f"s_mul_i32 s{S_I}, s{S_I}, 683")
    a(f"s_and_b32 s{S_I}, s{S_I}, 0x3000")
    a(f"v_add_u32 v42, s{S_I}, v{VL16}")
    for qb in range(1, NQ):
        a(f"s_cmp_eq_u32 s{S_T1}, {qb}")
        a(f"s_cbranch_scc1 L_own{qb}")
    for qb in range(NQ):
        a.label(f"L_own{qb}")
        a.seg(f"k2_own{qb}")
        for p in range(4):
            t = 26 + 4 * p
            for d in range(4):
                src = O + (qb * 8 + 2 * p) * 4 + 2 * d
                a(f"v_cvt_pk_bf16_f32 v{t + d}, v{src}, v{src + 1}")
            a(f"ds_write_b128 v42, {vr(t, 4)} offset:{1024 * p}")
        a("s_branch L_ownr")
    a.label("L_lo")
    a.seg("k2_lo")
    a(f"s_cmp_eq_u32 s{S_SPLIT}, 1")
    a("s_cbranch_scc1 L_lo1")

    def lo_softmax(qs):
        for qb in qs:
            for i in range(4):
                a(f"v_sub_f32 v{St(qb, 1) + i}, v{St(qb, 1) + i}, v{26 + qb}")
        for qb in qs:
            for i in range(4):
                a(f"v_exp_f32 v{St(qb, 1) + i}, v{St(qb, 1) + i}")
        for qb in qs:
            s0 = St(qb, 1)
            a(f"v_add_f32 v{L + qb}, v{s0}, v{s0 + 1}")
            a(f"v_cvt_pk_bf16_f32 v{P + 4 * qb}, v{s0}, v{s0 + 1}")
            a(f"v_add_f32 v{L + qb}, v{L + qb}, v{s0 + 2}")
            a(f"v_cvt_pk_bf16_f32 v{P + 4 * qb + 1}, v{s0 + 2}, v{s0 + 3}")
            a(f"v_add_f32 v{L + qb}, v{L + qb}, v{s0 + 3}")

    lo_softmax((2, 3))
    a("s_branch L_lo_ret")
    a.label("L_lo1")
    a.seg("k2_lo1")
    for qb in range(2):
        a(f"v_mov_b32 v{P + 4 * qb + 2}, 0")
        a(f"v_mov_b32 v{P + 4 * qb + 3}, 0")
    lo_softmax((0, 1))
    a("s_waitcnt vmcnt(8)")
    for x in pv_order("A"):
        a(mfma_pv(*x))
    a(mfma_sum(0))
    a(mfma_sum(1))
    a("s_branch L_lo_ret")
    emit_careful(a, "e", "L_ev_ret")
    emit_careful(a, "t", "L_more2")
    for tag, nkb in (("s", 2), ("sf", 2)):
        for X in "AB":
            emit_slow(a, X, nkb, tag + X)
    a.label("L_k2_last")
    return dict(name=name, vgpr=512, accum=256, sgpr=102, grid=NWG, block=256, lds=RB + 4 * RSZ,
                chains=[["k2_pro0", "k2_pro", "k2_pro2", "k2_pro3", "body_m", "body_m", "k2_mid", "k2_mid2", "body_lf", "k2_chk", "k2_epi", "k2_fin"],
                        ["body_m", "k2_mid", "k2_ev", "body_m"], ["body_m", "k2_mid", "k2_evr", "body_m"], ["body_g2", "k2_gx", "k2_mid2", "body_lf"], ["k2_ev", "careful_e", "body_m"],
                        ["body_m", "k2_mid", "k2_evg", "body_g0", "body_g1", "body_g2", "body_g0", "body_g1", "body_g2", "k2_gx", "body_m"],
                        ["body_lf", "k2_chk", "k2_epi", "k2_redo", "k2_pro"], ["k2_pro2", "k2_lo", "k2_pro3", "body_m"], ["k2_pro2", "k2_lo1", "k2_pro3", "body_m"],
                        ["k2_pro", "k2_pro2", "k2_pro3", "k2_safe0", "body_s", "body_s", "k2_smid", "body_sf", "k2_chk", "k2_epi"],
                        ["k2_fin", "k2_gen"], ["k2_fin", "k2_no3"], ["k2_chk", "k2_ownx", "k2_own0", "k2_own1", "k2_own2", "k2_own3", "k2_epi"], ["k2_epi", "k2_left0", "k2_left", "k2_left", "k2_fin"], ["k2_left", "careful_t", "k2_more2", "k2_left"]] +
                       [["slow_" + t + X] for t in ("s", "sf") for X in "AB"])
```

```python
from layout import *
from asmlib import stamp_entry, stamp_exit, dbg_stamp

CFG = {}
MF = "v_mfma_f32_16x16x32_bf16"
NWG = 240
NQ = 4
CAP = 72
NGMAX = 15
NSLOT = 24

O, S, NM, P, E_, T, L = 128, 64, 96, 112, 26, 42, 52
VLDS, VL16, VT, VT2, VT3, VOOB = 20, 21, 22, 23, 24, 25
RC, VREM, VSEG, BT = 26, 50, 51, 56
AQ, AK, AV = 0, 64, 96
S_SRD = 4
S_W, S_SRC, S_M0, S_CNT, S_THR, S_SPLIT, S_QT, S_T0, S_T1 = 8, 9, 10, 11, 12, 13, 14, 15, 16
S_LEFT, S_EV, S_NB, S_MODE = 17, 18, 19, 30
S_Q0 = 20
S_PO, S_PL, S_SRC0, S_U = 24, 25, 26, 27
S_K0, S_FV = 28, 29
S_PA = 56
S_V1 = 3
S_OWN = 31
SRD = f"s[{S_SRD}:{S_SRD + 3}]"
SKV = 80
KVS = "s[80:83]"
LDS_FLAG = 131072
AGL, AGS = 16384, 272
AWM = 224
ABUF, AAG, AAH, AXV, ADI = 128, 176, 200, 208, 220
GI, GOFF, GLA = 26, 13, 14
SMP = 44
RB = 131072 + 256
LOFF = 384
RSZ = LOFF + CAP * 64 + 384
SENT = 0x7fffff00


def LS():
    return " sc1" if CFG.get("ls") else ""


def vr(b, n):
    return f"v[{b}:{b + n - 1}]"


def ar(b, n):
    return f"a[{b}:{b + n - 1}]"


def qbs(X):
    return [0, 1] if X == "A" else [2, 3]


def St(qb, kb):
    return S + (qb * 2 + kb) * 4


def mfma_qk(qb, kb, s, czero=False):
    d = vr(St(qb, kb), 4)
    c = ("0" if czero else vr(NM + 4 * qb, 4)) if s == 0 else d
    return f"{MF} {d}, {ar(AK + (kb * 4 + s) * 4, 4)}, {ar(AQ + (qb * 4 + s) * 4, 4)}, {c}"


def mfma_pv(qb, db):
    o = vr(O + (qb * 8 + db) * 4, 4)
    return f"{MF} {o}, {ar(AV + 4 * db, 4)}, {vr(P + 4 * qb, 4)}, {o}"


def qk_order(X, nkb=2):
    return [(qb, kb, s) for s in range(4) for kb in range(nkb) for qb in qbs(X)]


def pv_order(X):
    return [(qb, db) for qb in qbs(X) for db in range(8)]


class Op:
    def __init__(self, text, cost, est=0, lst=10 ** 6, deps=(), stream=None):
        self.text, self.cost, self.est, self.lst, self.deps, self.stream = text, cost, est, lst, list(deps), stream
        self.pos = None


def sm_group(X, nkb, tag, chk, rdy, dl):
    ops = []
    idx = 0
    q = qbs(X)
    lastadd = {}
    prev_small = None
    for qb in q:
        d = dl[qb] if not chk else min(dl.values())
        if nkb == 1:
            for k in (2, 3):
                ops.append(Op(f"v_mov_b32 v{P + 4 * qb + k}, 0", 4, rdy["p", qb], d - 1, stream="s" + X))
        for kb in range(nkb):
            for pr in range(2):
                s0 = St(qb, kb) + 2 * pr
                e0, e1 = (E_ + (2 * idx) % 16, E_ + (2 * idx + 1) % 16) if chk else (s0, s0 + 1)
                x0 = Op(f"v_exp_f32 v{e0}, v{s0}", 8, rdy[qb, kb], d - 2, stream="x" + X)
                x1 = Op(f"v_exp_f32 v{e1}, v{s0 + 1}", 8, rdy[qb, kb], d - 2, stream="x" + X)
                ops += [x0, x1]
                acc = (T if chk else L) + qb
                dadd = d - 1 if chk else dl["end"]
                c = Op(f"v_cvt_pk_bf16_f32 v{P + 4 * qb + 2 * kb + pr}, v{e0}, v{e1}", 4, rdy["p", qb], d - 1, [x0, x1], stream="c" + X)
                if chk and qb not in lastadd:
                    a1 = Op(f"v_add_f32 v{acc}, v{e0}, v{e1}", 4, 0, dadd, [x0, x1], stream="a" + X)
                    ops += [a1, c]
                else:
                    a0 = Op(f"v_add_f32 v{acc}, v{acc}, v{e0}", 4, 0, dadd, [x0], stream="a" + X)
                    a1 = Op(f"v_add_f32 v{acc}, v{acc}, v{e1}", 4, 0, dadd, [x1], stream="a" + X)
                    ops += [a0, a1, c]
                lastadd[qb] = a1
                lastc = c
                idx += 1
    if chk:
        d = min(dl.values())
        m = Op(f"v_max_f32 v{VT}, v{T + q[0]}, v{T + q[1]}", 4, 0, d, list(lastadd.values()), stream="a" + X)
        c = Op(f"v_cmp_lt_f32 vcc, s{S_THR}, v{VT}", 4, 0, d, [m], stream="a" + X)
        b = Op(f"s_cbranch_vccnz L_slow_{tag}\nL_back_{tag}:", 0, 0, d, [c, lastc], stream="a" + X)
        ops += [m, c, b]
        for qb in q:
            ops.append(Op(f"v_add_f32 v{L + qb}, v{L + qb}, v{T + qb}", 4, 0, dl["end"], [b], stream="a" + X))
    return ops


def schedule(ops, nm, base=8):
    streams = {}
    for o in ops:
        streams.setdefault(o.stream, []).append(o)
    best = None
    for nextra in range(0, 3 * nm):
        for o in ops:
            o.pos = None
        cap = [base + 4 * ((g + 1) * nextra // nm - g * nextra // nm) for g in range(nm)]
        head = {s: 0 for s in streams}
        out = [[] for _ in range(nm)]
        pos = 0
        ok = True
        for g in range(nm):
            pos += 1
            rem = cap[g]
            while True:
                cand = []
                for s, lst in streams.items():
                    if head[s] >= len(lst):
                        continue
                    o = lst[head[s]]
                    if o.est > g:
                        continue
                    if CFG.get("ds1") and s == "l" and any(t.startswith(("ds_", "buffer")) for t in out[g]) and o.lst > g:
                        continue
                    if any(d.pos is None or pos - d.pos < (CFG.get('xd', 2) if d.cost == 8 else 1) for d in o.deps):
                        continue
                    urg = 10 ** 9
                    acc = 0
                    for o2 in lst[head[s]:]:
                        acc += o2.cost
                        urg = min(urg, (o2.lst - g + 1) * base * o2_share(s) - acc)
                    cand.append((urg, s, o))
                if not cand:
                    break
                cand.sort(key=lambda c: c[0])
                pick = None
                for urg, s, o in cand:
                    if o.cost <= rem or o.lst <= g:
                        pick = (s, o)
                        break
                if pick is None:
                    break
                s, o = pick
                out[g].append(o.text)
                o.pos = pos
                pos += 1
                head[s] += 1
                rem -= o.cost
                if rem <= 0 and not any(streams[t][head[t]].lst <= g or streams[t][head[t]].cost == 0
                                        for t in streams if head[t] < len(streams[t])):
                    break
            if any(head[s] < len(l) and l[head[s]].lst <= g for s, l in streams.items()):
                ok = False
                break
        if ok and all(head[s] == len(l) for s, l in streams.items()):
            cost = {o.text: o.cost for o in ops}
            tot = sum(max(16, 8 + sum(cost[t] for t in out[g])) for g in range(nm))
            if best is None or tot < best[0]:
                best = (tot, out, nextra)
            if nextra > best[2] + 6:
                break
    if best is None:
        raise RuntimeError("cannot schedule")
    return best


def o2_share(s):
    return {"x": 0.5, "a": 0.3, "c": 0.3, "s": 0.3}.get(s[0], 0.3)


def emit_rowmax(a, qb, nkb, dst):
    s = St(qb, 0)
    a(f"v_max3_f32 v{dst}, v{s}, v{s + 1}, v{s + 2}")
    if nkb == 2:
        a(f"v_max3_f32 v{dst}, v{dst}, v{s + 3}, v{s + 4}")
        a(f"v_max3_f32 v{dst}, v{dst}, v{s + 5}, v{s + 6}")
        a(f"v_max_f32 v{dst}, v{dst}, v{s + 7}")
    else:
        a(f"v_max_f32 v{dst}, v{dst}, v{s + 3}")
    for sw in ("v_permlane32_swap_b32", "v_permlane16_swap_b32"):
        a(f"v_mov_b32 v{VT3}, v{dst}")
        a("s_nop 1")
        a(f"{sw} v{dst}, v{VT3}")
        a("s_nop 1")
        a(f"v_max_f32 v{dst}, v{dst}, v{VT3}")


def emit_slow(a, X, nkb, tag):
    a.seg("slow_" + tag)
    a.label(f"L_slow_{tag}")
    a("s_nop 15")
    for qb in qbs(X):
        emit_rowmax(a, qb, nkb, VT)
        a(f"v_max_f32 v{VT}, 0, v{VT}")
        a(f"v_exp_f32 v{VT2}, -v{VT}")
        a("s_nop 0")
        a(f"v_mul_f32 v{L + qb}, v{L + qb}, v{VT2}")
        for i in range(32):
            o = O + qb * 32 + i
            a(f"v_mul_f32 v{o}, v{o}, v{VT2}")
        for i in range(4):
            a(f"v_sub_f32 v{NM + 4 * qb + i}, v{NM + 4 * qb + i}, v{VT}")
        for k in range(2 * nkb):
            s = St(qb, 0) + 2 * k
            a(f"v_sub_f32 v{s}, v{s}, v{VT}")
            a(f"v_sub_f32 v{s + 1}, v{s + 1}, v{VT}")
            a(f"v_exp_f32 v{E_}, v{s}")
            a(f"v_exp_f32 v{E_ + 1}, v{s + 1}")
            a("s_nop 0")
            if k == 0:
                a(f"v_add_f32 v{T + qb}, v{E_}, v{E_ + 1}")
            else:
                a(f"v_add_f32 v{T + qb}, v{T + qb}, v{E_}")
                a(f"v_add_f32 v{T + qb}, v{T + qb}, v{E_ + 1}")
            a(f"v_cvt_pk_bf16_f32 v{P + 4 * qb + k}, v{E_}, v{E_ + 1}")
    a("s_nop 7")
    a(f"s_branch L_back_{tag}")


def emit_body(a, cfg, tag, chk, last=False, nkb=2, gb=None, loop=None):
    PF = cfg["PF"]
    lead = cfg.get("lead", 3)
    mg = cfg.get("mg", 0)
    pvB, qkB, pvA, qkA = pv_order("B"), qk_order("B", nkb), pv_order("A"), qk_order("A")
    mf = [mfma_pv(*x) for x in pvB] + [mfma_qk(*x) for x in qkB]
    pA0 = len(mf)
    mf += [mfma_pv(*x) for x in pvA]
    qA0 = len(mf)
    if not last:
        mf += [mfma_qk(*x) for x in qkA]
    gpos = []
    if gb is not None:
        for k, at in enumerate(cfg.get("gslots", [40, 47, 54, 61])):
            d = ar(AAG + 8 * gb + 4 * (k >> 1), 4)
            mf.insert(at, f"{MF} {d}, {ar(AAH + 4 * (k & 1), 4)}, {ar(ABUF + 16 * gb + 4 * k, 4)}, {d}")
            gpos.append(at)
            if at <= qA0:
                qA0 += 1
    nm = len(mf)
    ops = []
    lds = []
    if gb is not None:
        lds.append(Op(f"ds_read_b128 {vr(GI, 4)}, v{GLA} offset:{gb * RSZ + LOFF}", 4, 2, 7, stream="l"))
        for k, at in enumerate(gpos):
            ad = Op(f"v_add_u32 v{GI + k}, v{GI + k}, v{GOFF}", 4, pA0, at - 1, stream="g")
            ops += [ad, Op(f"buffer_load_dwordx4 {ar(ABUF + 16 * gb + 4 * k, 4)}, v{GI + k}, s[{SMP}:{SMP + 3}], 0 offen offset:{12 - 4 * k}{LS()}",
                           cfg.get("dmacost", 8), at, at, [ad], stream="g")]
        if gb == 2:
            ops.append(Op(f"v_add_u32 v{GLA}, 256, v{GLA}", 4, 10, nm - 1, stream="y"))
    for db in range(8):
        lds.append(Op(f"ds_read_b128 {ar(AV + 4 * db, 4)}, v{VLDS} offset:{8192 + 1024 * db}", 4, 8 + db, pA0 - 6, stream="l"))
    if not last:
        kf = sorted(range(8), key=lambda f: max(i for i, x in enumerate(qkB) if x[1] * 4 + x[2] == f))
        for n, f in enumerate(kf):
            g = 16 + max(i for i, x in enumerate(qkB) if x[1] * 4 + x[2] == f)
            lds.append(Op(f"ds_read_b128 {ar(AK + 4 * f, 4)}, v{VLDS} offset:{1024 * f}", 4, g, qA0 - 6, stream="l"))
        adv = Op(f"v_add_u32 v{VLDS}, 0x4000, v{VLDS}", 4, 0, nm - 1, [lds[-1]], stream="z")
        ops += [adv, Op(f"v_and_b32 v{VLDS}, 0x1ffff, v{VLDS}", 4, 0, nm - 1, [adv], stream="z")]
        dg = cfg.get("dgaps", [0, 1, 33, 34])
        for k in range(4):
            ops.append(Op(f"buffer_load_dwordx4 v{VL16}, {KVS}, s{S_SRC} offen offset:{1024 * k}{LS()} lds", cfg.get("dmacost", 8),
                          dg[k], dg[k], stream="d"))
    ops += lds
    finA = {}
    for i, (qb, kb, s_) in enumerate(qkA):
        finA[qb, kb] = i
    rdy = {t: max(0, finA[t] - len(qkA) + 1 + lead) for t in finA}
    rdy["p", 0] = rdy["p", 1] = 0
    ops += sm_group("A", nkb, tag + "A", chk, rdy, {0: pA0 - 1 - mg, 1: pA0 + 7 - mg, "end": qA0 - 2})
    finB = {}
    for i, (qb, kb, s_) in enumerate(qkB):
        finB[qb, kb] = i
    rdy = {t: 16 + finB[t] + 1 + lead for t in finB}
    rdy["p", 2], rdy["p", 3] = 8, 16
    ops += sm_group("B", nkb, tag + "B", chk, rdy, {2: nm - 1 - mg, 3: nm - 1, "end": nm - 1})
    tot, gaps, nx = schedule(ops, nm)
    if cfg.get("verbose"):
        print("body", tag, "model cycles", tot, "extra", nx)
    if cfg.get("memfirst"):
        for g in range(nm):
            gaps[g].sort(key=lambda t: 0 if t.startswith(("ds_", "buffer")) else 1)
    if cfg.get("explast"):
        for g in range(nm):
            if not any("L_back" in t for t in gaps[g]):
                gaps[g].sort(key=lambda t: 1 if t.startswith("v_exp") else 0)
    order = [t for g in range(nm) for t in gaps[g]]

    def nlds_after(g_end, first_k):
        n = 0
        for g in range(g_end):
            n += sum(1 for t in gaps[g] if t.startswith("ds_read") and f"offset:{0}" is not None and "a[" in t and int(t.split("a[")[1].split(":")[0]) < AV)
        return n

    gaps[pA0 - 1].append(f"s_waitcnt lgkmcnt({nlds_after(pA0, 0)})")
    if not last:
        gaps[qA0 - 1].append("s_waitcnt lgkmcnt(0)")
        lastd = max(dg)
        gaps[lastd + 2].insert(0, f"s_add_u32 s{S_M0}, s{S_M0}, 0x4000")
        gaps[lastd + 3].insert(0, f"s_and_b32 m0, s{S_M0}, 0x1ffff")
        gaps[lastd + 4].insert(0, f"s_add_u32 s{S_SRC}, s{S_SRC}, 0x2000")
        if gb is None or gb == 2:
            gaps[lastd + 5].insert(0, f"s_sub_u32 s{S_CNT}, s{S_CNT}, 1")
            gaps[nm - 2].insert(0, f"s_cmp_lg_u32 s{S_CNT}, 0")
            gaps[nm - 1].append(f"s_cbranch_scc1 L_body_{loop or tag}")
        for at in gpos:
            gaps[at - 1].append("s_waitcnt vmcnt(23)")
    a.seg("body_" + tag)
    a.label(f"L_body_{tag}")
    a(f"s_waitcnt vmcnt({4 * (PF - 1) if gb is None else 24})")
    a("s_barrier")
    for g in range(nm):
        a(mf[g])
        for t in gaps[g]:
            a(t)
    if last:
        fill = []
        for qb in range(2):
            for p in range(4):
                t = 26 + 4 * (p % 2)
                for d in range(4):
                    src = O + (qb * 8 + 2 * p) * 4 + 2 * d
                    fill.append(f"v_cvt_pk_bf16_f32 v{t + d}, v{src}, v{src + 1}")
                fill.append(f"buffer_store_dwordx4 {vr(t, 4)}, v{VL16}, {SRD}, s{S_PA + qb} offen offset:{1024 * p} sc1")
        a("s_nop 1")
        for n, x in enumerate(pvB):
            a(mfma_pv(*x))
            for t in fill[(5 * n) // 2:(5 * (n + 1)) // 2]:
                a(t)


SX, SDG, SOUT = 32, 36, 40
S_REC, S_CAP, S_MAXC, S_N, S_I, S_MASK, S_FLG, S_NOWN = 48, 49, 50, 51, 52, 53, 54, 55
SMK = 64
VX = 15
VDC = 16
VVL = 18
VRB, VDUM, VDREC = 17, 18, 19


def emit_region_reset(a):
    a(f"""
    v_and_b32 v2, 63, v0
    v_and_b32 v3, 15, v0
    v_lshl_add_u32 v3, v3, 2, v{VRB}
    v_mov_b32 v4, 0
    v_lshl_add_u32 v5, v2, 4, v{VRB}
    ds_write_b32 v3, v4
    v_mov_b32 v4, 0x40000000
    ds_write_b32 v{VDC}, v4
    v_mov_b32 v6, {SENT}
    v_mov_b32 v7, {SENT}
    v_mov_b32 v8, {SENT}
    v_mov_b32 v9, {SENT}
    v_lshl_add_u32 v3, v2, 3, v{VRB}
    """)
    for k in range(4):
        a(f"ds_write_b128 v5, v[6:9] offset:{LOFF + 1024 * k}")
    a(f"ds_write_b64 v3, v[6:7] offset:{LOFF + 4096}")


def emit_careful(a, tag, ret):
    a.seg("careful_" + tag)
    a.label(f"L_car_{tag}")
    a("s_nop 7")
    emit_region_reset(a)
    a(f"""
    v_mov_b32 v10, 1
    s_mov_b64 s[{SMK + 2}:{SMK + 3}], -1
    s_waitcnt lgkmcnt(0)
    """)
    a.label(f"L_car_loop_{tag}")
    a(f"""
    buffer_load_dwordx4 {vr(RC, 4)}, v{VSEG}, {SRD}, s{S_REC} offen{LS()}
    s_waitcnt vmcnt(0)
    """)
    for k in range(4):
        r = RC + k
        a(f"""
        v_cmp_lt_u32 vcc, 0, v{VREM}
        v_and_or_b32 v{BT}, v{r}, 60, v{VRB}
        s_nop 0
        s_and_b64 vcc, vcc, s[{SMK + 2}:{SMK + 3}]
        s_nop 0
        v_cndmask_b32 v{BT}, v{VDC}, v{BT}, vcc
        ds_add_rtn_u32 v{BT + 1}, v{BT}, v10
        s_waitcnt lgkmcnt(0)
        v_cmp_gt_u32 s[{SMK + 2}:{SMK + 3}], s{S_CAP}, v{BT + 1}
        v_min_u32 v{BT + 1}, s{S_CAP}, v{BT + 1}
        v_lshl_add_u32 v{BT}, v{BT + 1}, 6, v{BT}
        ds_write_b32 v{BT}, v{r} offset:{LOFF}
        v_cndmask_b32 v{BT + 1}, 0, v10, s[{SMK + 2}:{SMK + 3}]
        v_sub_u32 v{VREM}, v{VREM}, v{BT + 1}
        v_lshl_add_u32 v{VSEG}, v{BT + 1}, 2, v{VSEG}
        """)
    a(f"""
    s_cmp_lg_u64 s[{SMK + 2}:{SMK + 3}], 0
    s_cbranch_scc1 L_car_loop_{tag}
    s_waitcnt lgkmcnt(0)
    s_branch {ret}
    """)


def emit_k2(a, cfg):
    PF = cfg["PF"]
    NB0 = cfg.get("NB0", 3)
    NBR = cfg.get("NBR", 2)
    OSC = {0: "", 1: " sc1", 2: " nt", 3: " sc0 sc1"}[cfg.get("osc", 0)]
    CFG.clear()
    CFG.update(cfg)
    LIM = cfg.get("lim", NWG)
    name = "k2_attn_kernel"
    if cfg.get("map", 0) == 0:
        mapping = f"""s_and_b32 s{S_T0}, s2, 7
    s_mul_i32 s{S_T0}, s{S_T0}, {NWG // 8}
    s_lshr_b32 s{S_T1}, s2, 3
    s_add_u32 s{S_T0}, s{S_T0}, s{S_T1}          ; g
    s_mul_i32 s{S_SPLIT}, s{S_T0}, 1639
    s_lshr_b32 s{S_SPLIT}, s{S_SPLIT}, 16        ; split = g / 40
    s_mul_i32 s{S_T1}, s{S_SPLIT}, 40
    s_sub_u32 s{S_QT}, s{S_T0}, s{S_T1}          ; q tile"""
    elif cfg.get("map") == 2:
        mapping = f"""s_and_b32 s{S_T0}, s2, 7
    s_lshr_b32 s{S_T1}, s2, 3
    s_mul_i32 s{S_QT}, s{S_T0}, 29
    s_add_u32 s{S_QT}, s{S_QT}, s{S_T1}
    s_cmp_eq_u32 s{S_T0}, 7
    s_addc_u32 s{S_QT}, s{S_QT}, 0
    s_add_u32 s{S_SPLIT}, s{S_T0}, 234
    s_cmp_lt_u32 s{S_T0}, 6
    s_cselect_b32 s{S_MODE}, 29, 99
    s_cmp_eq_u32 s{S_T1}, s{S_MODE}
    s_cselect_b32 s{S_T0}, s{S_SPLIT}, s{S_QT}
    s_mul_i32 s{S_QT}, s{S_T0}, 10923
    s_lshr_b32 s{S_QT}, s{S_QT}, 16
    s_mul_i32 s{S_SPLIT}, s{S_QT}, 6
    s_sub_u32 s{S_SPLIT}, s{S_T0}, s{S_SPLIT}"""
    else:
        mapping = f"""s_and_b32 s{S_T0}, s2, 7
    s_mul_i32 s{S_T0}, s{S_T0}, 5
    s_lshr_b32 s{S_T1}, s2, 3
    s_mul_i32 s{S_QT}, s{S_T1}, 43
    s_lshr_b32 s{S_QT}, s{S_QT}, 8               ; j / 6
    s_mul_i32 s{S_SPLIT}, s{S_QT}, 6
    s_sub_u32 s{S_SPLIT}, s{S_T1}, s{S_SPLIT}
    s_add_u32 s{S_QT}, s{S_QT}, s{S_T0}"""
    a.raw(".text")
    a.raw(f".globl {name}\n.p2align 8\n.type {name},@function")
    a.label(name)
    a.seg("k2_pro0")
    a(f"""
    s_cmp_ge_u32 s2, {LIM}
    s_cbranch_scc1 L_k2_end
    """)
    if cfg.get("dbg"):
        a("s_cmp_gt_u32 s2, 7")
        a("s_cbranch_scc1 L_k2_nod")
        dbg_stamp(a, cfg, 2, 512, inv=True, s=88, v=100)
        a.label("L_k2_nod")
    if cfg.get("tl") or cfg.get("stamp"):
        a("s_memrealtime s[84:85]")
    if cfg.get("spf"):
        a(f"""
        s_getpc_b64 s[92:93]
        L_k2_pc:
        s_sub_u32 s92, s92, L_k2_pc - k2_attn_kernel
        s_subb_u32 s93, s93, 0
        s_lshr_b32 s94, s2, 3
        s_lshl_b32 s94, s94, 10
        s_min_u32 s94, s94, L_k2_last - k2_attn_kernel - 1024
        v_lshl_add_u32 v60, v0, 2, s94
        global_load_dword v61, v60, s[92:93]
        """)
    a(f"""
    s_load_dwordx2 s[{S_SRD}:{S_SRD + 1}], s[0:1], 88
    s_load_dwordx2 s[{SX}:{SX + 1}], s[0:1], 0
    s_load_dwordx2 s[{SDG}:{SDG + 1}], s[0:1], 24
    s_load_dwordx2 s[{SOUT}:{SOUT + 1}], s[0:1], 72
    v_lshrrev_b32 v1, 6, v0
    v_and_b32 v2, 63, v0
    v_readfirstlane_b32 s{S_W}, v1
    v_lshlrev_b32 v{VL16}, 4, v2
    v_lshlrev_b32 v12, 2, v2
    {mapping}
    s_mov_b32 s{S_SRD + 2}, 0x10000000
    s_mov_b32 s{S_SRD + 3}, 0x00020000
    s_mov_b32 s{SX + 2}, {N * 256}
    s_mov_b32 s{SX + 3}, 0x00020000
    s_mov_b32 s{SDG + 2}, {N * 2}
    s_mov_b32 s{SDG + 3}, 0x00020000
    s_mov_b32 s{SOUT + 2}, {N * 256}
    s_mov_b32 s{SOUT + 3}, 0x00020000
    s_mov_b32 s{SMP + 2}, {N * 256}
    s_mov_b32 s{SMP + 3}, 0x00020000
    s_mov_b32 s{S_THR}, 0x4b800000               ; 2^24
    s_lshl_b32 s{S_T0}, s{S_W}, 12
    s_mul_i32 s{S_SRC0}, s{S_SPLIT}, {52 * 8192}
    s_add_u32 s{S_SRC0}, s{S_SRC0}, s{S_T0}
    s_mov_b32 s{S_T1}, {KF}
    s_cmp_lt_u32 s{S_W}, 2
    s_cselect_b32 s{S_T1}, s{S_T1}, {VF - 8192 - 8192}
    s_add_u32 s{S_SRC0}, s{S_SRC0}, s{S_T1}
    s_lshl_b32 s{S_Q0}, s{S_QT}, 16
    s_lshl_b32 s{S_T1}, s{S_W}, 14
    s_add_u32 s{S_Q0}, s{S_Q0}, s{S_T1}
    s_add_u32 s{S_Q0}, s{S_Q0}, {QF}
    s_add_u32 s{S_Q0 + 1}, s{S_Q0}, 0x1000
    s_add_u32 s{S_Q0 + 2}, s{S_Q0}, 0x2000
    s_add_u32 s{S_Q0 + 3}, s{S_Q0}, 0x3000
    s_mul_i32 s{S_T1}, s{S_QT}, 6
    s_add_u32 s{S_T1}, s{S_T1}, s{S_SPLIT}
    s_lshl_b32 s{S_PO}, s{S_T1}, 16
    s_lshl_b32 s{S_T0}, s{S_W}, 14
    s_add_u32 s{S_PO}, s{S_PO}, s{S_T0}
    s_add_u32 s{S_PO}, s{S_PO}, {PO}
    s_lshl_b32 s{S_PL}, s{S_T1}, 11
    s_lshl_b32 s{S_T0}, s{S_W}, 9
    s_add_u32 s{S_PL}, s{S_PL}, s{S_T0}
    s_add_u32 s{S_PL}, s{S_PL}, {PL}
    s_lshl_b32 s{S_T0}, s{S_W}, 2
    s_lshl_b32 s{S_OWN}, {1 | 1 << 6 | 1 << 12}, s{S_SPLIT}
    s_lshr_b32 s{S_OWN}, s{S_OWN}, s{S_T0}
    s_add_u32 s{S_T0}, s{S_PO}, 0
    s_bitcmp1_b32 s{S_OWN}, 0
    s_cselect_b32 s{S_PA + 0}, 0x7fff0000, s{S_T0}
    s_add_u32 s{S_T0}, s{S_PO}, 4096
    s_bitcmp1_b32 s{S_OWN}, 1
    s_cselect_b32 s{S_PA + 1}, 0x7fff0000, s{S_T0}
    s_add_u32 s{S_T0}, s{S_PO}, 8192
    s_bitcmp1_b32 s{S_OWN}, 2
    s_cselect_b32 s{S_PA + 2}, 0x7fff0000, s{S_T0}
    s_add_u32 s{S_T0}, s{S_PO}, 12288
    s_bitcmp1_b32 s{S_OWN}, 3
    s_cselect_b32 s{S_PA + 3}, 0x7fff0000, s{S_T0}
    v_mov_b32 v{VX}, 0x7fff0000
    v_mov_b32 v{VSEG}, 0
    s_cmp_lt_u32 s{S_SPLIT}, 2
    s_cselect_b32 s{S_T0}, 0, 0x7fff0000
    v_add_u32 v{VVL}, s{S_T0}, v{VL16}
    s_mov_b32 s{S_U}, 51
    s_mov_b32 s{S_MODE}, 0
    s_add_u32 s{S_T0}, s{S_U}, 1
    s_cmp_lt_u32 s{S_W}, 2
    s_cselect_b32 s{S_T1}, 0, 1
    s_add_u32 s{S_T0}, s{S_T0}, s{S_T1}
    s_lshl_b32 s{S_T0}, s{S_T0}, 13
    s_add_u32 s{SKV + 2}, s{S_SRC0}, s{S_T0}
    s_sub_u32 s{SKV + 2}, s{SKV + 2}, 4096
    s_mov_b32 s{SKV + 3}, 0x00020000
    s_mov_b32 s{S_REC}, {REC}
    s_mov_b32 s{S_K0}, {KF + 312 * 8192}
    s_mov_b32 s{S_FV}, {VF + 312 * 8192}
    s_add_u32 s{S_V1}, s{S_FV}, 4096
    s_mov_b32 s{S_CAP}, {CAP}
    s_lshl_b32 s{S_FLG}, s{S_QT}, 7
    s_add_u32 s{S_FLG}, s{S_FLG}, {FLG}
    s_mul_i32 s{S_T0}, s{S_W}, 6
    s_add_u32 s{S_T0}, s{S_T0}, s{S_SPLIT}
    s_lshl_b32 s{S_T1}, s{S_QT}, 4
    s_add_u32 s{S_T1}, s{S_T1}, s{S_T0}
    s_cmp_lt_u32 s{S_T0}, 16
    s_cselect_b32 s{S_MASK}, -1, 0
    s_cmp_lt_u32 s{S_T1}, {N // 16}
    s_cselect_b32 s{S_MASK}, s{S_MASK}, 0
    s_lshl_b32 s{S_I}, s{S_T1}, 8
    s_add_u32 s{S_I}, s{S_I}, {TAB}
    s_mul_i32 s{S_T0}, s{S_W}, {RSZ}
    s_add_u32 s{S_T0}, s{S_T0}, {RB}
    v_mov_b32 v{VRB}, s{S_T0}
    s_add_u32 s{S_T0}, s{S_T0}, 64
    v_add_u32 v{VDC}, s{S_T0}, v12
    v_mov_b32 v{VOOB}, 0x7fffffff
    v_mov_b32 v4, 0
    v_mov_b32 v5, {LDS_FLAG}
    ds_write_b32 v5, v4
    """)
    emit_region_reset(a)
    a(f"""
    s_waitcnt lgkmcnt(0)
    s_and_b32 s{S_SRD + 1}, s{S_SRD + 1}, 0xffff
    s_and_b32 s{SX + 1}, s{SX + 1}, 0xffff
    s_and_b32 s{SDG + 1}, s{SDG + 1}, 0xffff
    s_and_b32 s{SOUT + 1}, s{SOUT + 1}, 0xffff
    s_mov_b32 s{SKV}, s{S_SRD}
    s_mov_b32 s{SKV + 1}, s{S_SRD + 1}
    s_add_u32 s{SMP}, s{S_SRD}, {MP}
    s_addc_u32 s{SMP + 1}, s{S_SRD + 1}, 0
    buffer_load_dword v{VREM}, v12, {SRD}, s{S_I} offen{LS()}
    """)
    def lane_setup():
        a(f"""
        v_bfe_u32 v2, v0, 2, 2
        v_and_b32 v3, 3, v0
        v_bfe_u32 v4, v0, 4, 2
        s_lshl_b32 s{S_T0}, s{S_W}, 6
        s_sub_u32 s{S_T1}, s{S_T0}, 12
        v_lshlrev_b32 v{GOFF}, 4, v3
        v_add_u32 v{GOFF}, s{S_T1}, v{GOFF}
        v_lshlrev_b32 v5, 4, v2
        v_sub_u32 v{GOFF}, v{GOFF}, v5               ; 64w + 16q - 16n' - 12
        v_lshlrev_b32 v{GLA}, 4, v2
        v_lshl_add_u32 v{GLA}, v4, 6, v{GLA}
        v_add_u32 v{GLA}, {RB}, v{GLA}
        """)

    def maxc():
        a(f"""
        v_and_b32 v6, 15, v0
        v_bfe_u32 v7, v0, 4, 2
        v_mul_u32_u24 v7, {RSZ}, v7
        v_lshl_add_u32 v7, v6, 2, v7
        v_add_u32 v7, {RB}, v7
        ds_read_b32 v9, v7
        s_waitcnt lgkmcnt(0)
        """)
        for sh in ("row_shr:1", "row_shr:2", "row_shr:4", "row_shr:8"):
            a(f"v_max_u32_dpp v9, v9, v9 {sh} row_mask:0xf bank_mask:0xf")
            a("s_nop 1")
        a("v_max_u32_dpp v9, v9, v9 row_bcast:15 row_mask:0xa bank_mask:0xf")
        a("s_nop 1")
        a("v_max_u32_dpp v9, v9, v9 row_bcast:31 row_mask:0xc bank_mask:0xf")
        a("s_nop 1")
        a(f"v_readlane_b32 s{S_MAXC}, v9, 63")
        a("s_nop 3")
        a(f"s_min_u32 s{S_N}, s{S_MAXC}, {CAP}")
        a(f"s_add_u32 s{S_N}, s{S_N}, 3")
        a(f"s_lshr_b32 s{S_N}, s{S_N}, 2")

    if cfg.get("ptl"):
        a("s_memrealtime s[98:99]")
    a.label("L_k2_restart")
    a.seg("k2_pro")
    a(f"s_mov_b32 s{S_SRC}, s{S_SRC0}")
    a(f"s_lshl_b32 s{S_M0}, s{S_W}, 12")
    a(f"s_mov_b32 m0, s{S_M0}")
    a(f"s_mov_b32 s{S_LEFT}, s{S_U}")

    def dma_stage():
        for k in range(4):
            a(f"buffer_load_dwordx4 v{VL16}, {KVS}, s{S_SRC} offen offset:{1024 * k}{LS()} lds")

    def dma_adv():
        a(f"s_add_u32 s{S_M0}, s{S_M0}, 0x4000")
        a(f"s_and_b32 m0, s{S_M0}, 0x1ffff")
        a(f"s_add_u32 s{S_SRC}, s{S_SRC}, 0x2000")

    for i in range(8):
        a(f"v_mov_b32 v{P + 8 + i}, 0")
    zq = [f"v_mfma_f32_32x32x16_bf16 {vr(O + 16 * i, 16)}, {vr(P + 8, 4)}, {vr(P + 8, 4)}, 0" for i in range(8)]
    for s_ in range(4):
        a(f"buffer_load_dwordx4 {ar(AK + 16 + 4 * s_, 4)}, v{VL16}, {SRD}, s{S_K0} offen offset:{1024 * s_}{LS()}")
    for i in range(16):
        a(f"buffer_load_dwordx4 {ar(4 * i, 4)}, v{VL16}, {SRD}, s{S_Q0 + (i >> 2)} offen offset:{1024 * (i & 3)}{LS()}")
        if i % 2 == 1:
            a(zq.pop())
    dma_stage()
    dma_adv()
    for j in range(8):
        a(f"buffer_load_dwordx4 {ar(AV + 4 * j, 4)}, v{VVL}, {SRD}, s{S_FV if j < 4 else S_V1} offen offset:{1024 * (j & 3)}{LS()}")
    dma_stage()
    dma_adv()
    assert not zq
    a(f"s_cmp_lg_u32 s{S_MODE}, 0")
    a("s_cbranch_scc1 L_k2_nosetup")
    lane_setup()
    a(f"""
    v_and_b32 v6, 15, v0
    v_and_b32 v7, 1, v6
    v_lshlrev_b32 v7, 4, v7
    v_mov_b32 v8, 0x3f80
    v_lshlrev_b32 v7, v7, v8                     ; value
    v_lshrrev_b32 v6, 1, v6                      ; 0..7 = (h, dword)
    """)
    for k in range(8):
        a(f"v_cmp_eq_u32 s[{SMK + 2 * k}:{SMK + 2 * k + 1}], {k}, v6")
    for k in range(8):
        a(f"v_cndmask_b32 v{BT + k}, 0, v7, s[{SMK + 2 * k}:{SMK + 2 * k + 1}]")
    for k in range(8):
        a(f"v_accvgpr_write_b32 a{AAH + k}, v{BT + k}")
    Z = vr(P + 8, 4)
    for i in range(4):
        a(f"v_mfma_f32_32x32x16_bf16 {ar(ABUF + 16 * i, 16)}, {Z}, {Z}, 0")
    for i in range(2):
        a(f"{MF} {ar(ABUF + 64 + 4 * i, 4)}, {Z}, {Z}, 0")
    a.label("L_k2_nosetup")
    a.seg("k2_pro2")
    for qb in range(NQ):
        a(f"v_mov_b32 v{L + qb}, 0")
    a(f"v_add_u32 v{VLDS}, 0x4000, v{VL16}")
    if cfg.get("ptl"):
        a("s_memrealtime s[62:63]")
    a("s_waitcnt vmcnt(16)")
    if cfg.get("ptl"):
        a("s_memrealtime s[60:61]")
    dq = []
    for st in range(PF - 1):
        dq += [[f"buffer_load_dwordx4 v{VL16}, {KVS}, s{S_SRC} offen offset:{1024 * k}{LS()} lds"] for k in range(4)]
        dq[-1] += [f"s_add_u32 s{S_M0}, s{S_M0}, 0x4000", f"s_and_b32 m0, s{S_M0}, 0x1ffff", f"s_add_u32 s{S_SRC}, s{S_SRC}, 0x2000"]
    n = 0
    for s_ in range(4):
        for qb in range(4):
            d = vr(St(qb, 1), 4)
            a(f"{MF} {d}, {ar(AK + 16 + 4 * s_, 4)}, {ar(AQ + (qb * 4 + s_) * 4, 4)}, {'0' if s_ == 0 else d}")
            if n % 4 == 1:
                for t in dq.pop(0):
                    a(t)
            n += 1
    a("s_waitcnt vmcnt(16)")
    a("s_barrier")
    if cfg.get("ptl"):
        a("s_memrealtime s[88:89]")
    for s in range(8):
        a(f"ds_read_b128 {ar(AK + 4 * s, 4)}, v{VL16} offset:{1024 * s}")
    a("s_nop 1")
    MX = 26
    for qb in range(4):
        s0 = St(qb, 1)
        a(f"v_max3_f32 v{MX + qb}, v{s0}, v{s0 + 1}, v{s0 + 2}")
    for qb in range(4):
        a(f"v_max_f32 v{MX + qb}, v{MX + qb}, v{St(qb, 1) + 3}")
    for sw in ("v_permlane32_swap_b32", "v_permlane16_swap_b32"):
        for qb in range(4):
            a(f"v_mov_b32 v{MX + 4 + qb}, v{MX + qb}")
        a("s_nop 0")
        for qb in range(4):
            a(f"{sw} v{MX + qb}, v{MX + 4 + qb}")
        a("s_nop 0")
        for qb in range(4):
            a(f"v_max_f32 v{MX + qb}, v{MX + qb}, v{MX + 4 + qb}")
    for qb in range(4):
        for i in range(4):
            a(f"v_sub_f32 v{NM + 4 * qb + i}, 0, v{MX + qb}")
    a(f"s_cmp_lt_u32 s{S_SPLIT}, 2")
    a("s_cbranch_scc1 L_lo")
    a.label("L_lo_ret")
    a.seg("k2_pro3")
    a("s_waitcnt lgkmcnt(0)")
    for n, x in enumerate(qk_order("A")):
        a(mfma_qk(*x))
        if n % 2 == 0 and dq:
            for t in dq.pop(0):
                a(t)
    assert not dq
    if cfg.get("stamp"):
        a("s_memtime s[90:91]")
        a("s_memrealtime s[92:93]")
        a("s_waitcnt lgkmcnt(0)")
    a(f"s_cmp_lg_u32 s{S_MODE}, 0")
    a("s_cbranch_scc1 L_safe")
    if cfg.get("ptl"):
        a("s_memrealtime s[86:87]")
        a("s_waitcnt lgkmcnt(0)")
    a(f"s_mov_b32 s{S_CNT}, {NBR}")
    a(f"s_mov_b32 s{S_EV}, 0")
    a.raw(".p2align 6")
    emit_body(a, cfg, "m", False)
    a.seg("k2_mid")
    a(f"s_add_u32 s{S_EV}, s{S_EV}, 1")
    a(f"s_cmp_eq_u32 s{S_EV}, 4")
    a("s_cbranch_scc1 L_loop_done")
    a(f"s_cmp_eq_u32 s{S_EV}, 3")
    a("s_cbranch_scc1 L_ev_g")
    a(f"s_cmp_eq_u32 s{S_EV}, 2")
    a("s_cbranch_scc1 L_ev_b")
    a.seg("k2_evr")
    dbg_stamp(a, cfg, 3, 512, s=88, v=2)
    a(f"""
    v_and_b32 v{VREM}, s{S_MASK}, v{VREM}
    v_and_b32 v2, 63, v0
    v_mul_u32_u24 v2, {RECS}, v2
    v_and_b32 v3, 0xffff, v{VREM}
    v_lshl_add_u32 v{VSEG}, v3, 2, v2
    v_lshrrev_b32 v{VREM}, 16, v{VREM}
    """)
    for k in range(NSLOT // 4):
        a(f"buffer_load_dwordx4 {vr(RC + 4 * k, 4)}, v{VSEG}, {SRD}, s{S_REC} offen offset:{16 * k}{LS()}")
    a(f"s_mov_b32 s{S_CNT}, {NB0}")
    a("s_branch L_body_m")
    a.label("L_ev_b")
    a.seg("k2_ev")
    if cfg.get("ptl"):
        a("s_memrealtime s[100:101]")
        a("s_waitcnt lgkmcnt(0)")
    a(f"s_waitcnt vmcnt({4 * NB0})")
    a("v_mov_b32 v12, 1")
    RK = 4
    for grp in range(NSLOT // 8):
        for k in range(8):
            a(f"v_cmp_lt_u32 s[{SMK + 2 * k}:{SMK + 2 * k + 1}], {8 * grp + k}, v{VREM}")
        for k in range(8):
            a(f"v_and_or_b32 v{BT + k}, v{RC + 8 * grp + k}, 60, v{VRB}")
        if grp:
            a(f"s_cmp_eq_u64 s[{SMK}:{SMK + 1}], 0")
            a("s_cbranch_scc1 L_ev_built")
        for k in range(8):
            a(f"v_cndmask_b32 v{BT + k}, v{VDC}, v{BT + k}, s[{SMK + 2 * k}:{SMK + 2 * k + 1}]")
            a(f"ds_add_rtn_u32 v{RK + k}, v{BT + k}, v12")
        for k in range(8):
            a(f"s_waitcnt lgkmcnt(7)")
            a(f"v_min_u32 v{RK + k}, s{S_CAP}, v{RK + k}")
            a(f"v_lshl_add_u32 v{BT + k}, v{RK + k}, 6, v{BT + k}")
            a(f"ds_write_b32 v{BT + k}, v{RC + 8 * grp + k} offset:{LOFF}")
    a.label("L_ev_built")
    a(f"""
    v_and_b32 v2, 15, v0
    v_lshl_add_u32 v2, v2, 2, v{VRB}
    ds_read_b32 v3, v2
    v_cmp_lt_u32 s[{SMK}:{SMK + 1}], {NSLOT}, v{VREM}
    s_waitcnt lgkmcnt(0)
    v_cmp_lt_u32 vcc, s{S_CAP}, v3
    s_nop 3
    s_or_b64 vcc, vcc, s[{SMK}:{SMK + 1}]
    s_cbranch_vccnz L_car_e
    v_mov_b32 v{VREM}, 0
    """)
    a.label("L_ev_ret")

    a(f"s_mov_b32 s{S_CNT}, 1")
    a("s_branch L_body_m")
    a.label("L_ev_g")
    a.seg("k2_evg")
    maxc()
    a(f"""
    s_min_u32 s{S_CNT}, s{S_N}, {NGMAX}
    s_max_u32 s{S_CNT}, s{S_CNT}, 1
    s_sub_u32 s{S_N}, s{S_N}, s{S_CNT}
    s_mul_i32 s{S_T0}, s{S_CNT}, 3
    s_sub_u32 s{S_LEFT}, s{S_LEFT}, s{S_T0}
    s_sub_u32 s{S_LEFT}, s{S_LEFT}, {NBR + NB0 + 1}
    v_bfe_u32 v2, v0, 2, 2
    v_and_b32 v3, 3, v0
    v_bfe_u32 v4, v0, 4, 2
    s_lshl_b32 s{S_T0}, s{S_W}, 6
    s_lshl_b32 s{S_T1}, s{S_QT}, 4
    s_add_u32 s{S_T1}, s{S_T1}, s{S_SPLIT}
    s_lshl_b32 s{S_I}, s{S_T1}, 12
    s_add_u32 s{S_I}, s{S_I}, s{S_T0}
    v_lshrrev_b32 v5, 1, v4
    v_lshl_add_u32 v5, v5, 2, v2
    v_and_b32 v6, 1, v4
    v_lshlrev_b32 v{VX}, 8, v5
    v_lshl_add_u32 v{VX}, v6, 5, v{VX}
    v_lshl_add_u32 v{VX}, v3, 3, v{VX}
    v_add_u32 v{VX}, s{S_I}, v{VX}
    v_add_u32 v10, {6 * 4096}, v{VX}
    v_add_u32 v11, {12 * 4096}, v{VX}
    s_lshl_b32 s{S_I}, s{S_T1}, 5
    v_and_b32 v5, 15, v0
    v_lshlrev_b32 v5, 1, v5
    v_add_u32 v5, s{S_I}, v5
    s_lshl_b32 s{S_I}, s{S_W}, 13
    s_add_u32 s{S_I}, s{S_I}, {WMO}
    s_add_u32 s{S_T1}, s{S_I}, 4096
    s_waitcnt vmcnt(0)
    """)
    for b in range(3):
        for m in range(2):
            a(f"buffer_load_dwordx2 {ar(AXV + 4 * b + 2 * m, 2)}, v{[VX, 10, 11][b]}, s[{SX}:{SX + 3}], 0 offen offset:{2048 * m}")
        a(f"buffer_load_ushort a{ADI + b}, v5, s[{SDG}:{SDG + 3}], 0 offen offset:{192 * b}")
    for j in range(8):
        a(f"buffer_load_dwordx4 {ar(AWM + 4 * j, 4)}, v{VL16}, {SRD}, s{S_I if j < 4 else S_T1} offen offset:{1024 * (j & 3)}")
    if cfg.get("touch"):
        a(f"buffer_load_dword a226, v{VL16}, {SRD}, s{S_PO} offen")
        a(f"buffer_load_dword a227, v{VL16}, {SRD}, s{S_PL} offen")
        a(f"buffer_load_dword a228, v{VL16}, {SRD}, s{S_FLG} offen")
        a(f"buffer_load_dword a229, v{VX}, s[{SOUT}:{SOUT + 3}], 0 offen")
    a.raw(".p2align 6")
    for gb in range(3):
        emit_body(a, cfg, f"g{gb}", False, gb=gb, loop="g0")
    a.seg("k2_gx")
    if cfg.get("spf2"):
        a(f"""
        s_lshl_b32 s94, s{S_W}, 11
        s_add_u32 s94, s94, L_body_lf - k2_attn_kernel
        v_add_u32 v60, s94, v{VL16}
        global_load_dwordx4 a[232:235], v60, s[92:93]
        global_load_dwordx4 a[236:239], v60, s[92:93] offset:1024
        """)
    a(f"s_mov_b32 s{S_CNT}, s{S_LEFT}")
    a(f"s_cmp_lg_u32 s{S_LEFT}, 0")
    a("s_cbranch_scc1 L_body_m")
    a.label("L_loop_done")
    a.seg("k2_mid2")
    if cfg.get("stamp"):
        a("s_memtime s[94:95]")
        a("s_memrealtime s[96:97]")
        a(f"s_load_dwordx2 s[64:65], s[0:1], 80")
        a("s_waitcnt lgkmcnt(0)")
        a("s_sub_u32 s94, s94, s90")
        a("s_sub_u32 s96, s96, s92")
        a("v_mov_b32 v2, s94")
        a("v_mov_b32 v3, s96")
        a("s_and_b32 s65, s65, 0xffff")
        a("s_mov_b32 s66, 256")
        a("s_mov_b32 s67, 0x00020000")
        a("s_lshr_b32 s72, s2, 3")
        a("s_lshl_b32 s72, s72, 3")
        a("v_mov_b32 v4, s72")
        a("s_and_b32 s73, s2, 7")
        a(f"s_or_b32 s73, s73, s{S_W}")
        a("s_cmp_lg_u32 s73, 0")
        a("s_cbranch_scc1 L_nostamp")
        a("buffer_store_dwordx2 v[2:3], v4, s[64:67], 0 offen")
        a.label("L_nostamp")
    emit_body(a, cfg, "lf", False, last=True, nkb=2)
    a.label("L_k2_chk")
    a.seg("k2_chk")
    if cfg.get("tl") and not cfg.get("ptl"):
        a("s_memrealtime s[98:99]")
    VPLA = 8
    smp = f"s[{SMP}:{SMP + 3}]"

    def consume_all():
        for b in range(3):
            for k in range(4):
                d = ar(AAG + 8 * b + 4 * (k >> 1), 4)
                a(f"{MF} {d}, {ar(AAH + 4 * (k & 1), 4)}, {ar(ABUF + 16 * b + 4 * k, 4)}, {d}")

    def pub(qb):
        for p in range(4):
            t = 26 + 4 * (p % 2)
            for d in range(4):
                src = O + (qb * 8 + 2 * p) * 4 + 2 * d
                a(f"v_cvt_pk_bf16_f32 v{t + d}, v{src}, v{src + 1}")
            a(f"buffer_store_dwordx4 {vr(t, 4)}, v{VL16}, {SRD}, s{S_PA + qb} offen offset:{1024 * p} sc1")

    pub(2)
    pub(3)
    a(f"""
    v_max3_f32 v4, v{L}, v{L + 1}, v{L + 2}
    v_max_f32 v4, v4, v{L + 3}
    v_add_f32 v6, v{L}, v{L + 1}
    v_add_f32 v7, v{L + 2}, v{L + 3}
    v_add_f32 v6, v6, v7
    s_mov_b32 s{S_T0}, 0x53800000
    v_cmp_ngt_f32 vcc, s{S_T0}, v4
    v_cmp_u_f32 s[{SMK}:{SMK + 1}], v6, v6
    v_mov_b32 v5, {LDS_FLAG}
    v_mov_b32 v4, 1
    s_or_b64 vcc, vcc, s[{SMK}:{SMK + 1}]
    s_cbranch_vccz L_k2_chk2
    ds_write_b32 v5, v4
    """)
    a.label("L_k2_chk2")
    a(f"v_and_b32 v{VPLA}, 15, v0")
    a(f"v_lshlrev_b32 v{VPLA}, 3, v{VPLA}")
    for sw in ("v_permlane32_swap_b32", "v_permlane16_swap_b32"):
        for qb in range(NQ):
            a(f"v_mov_b32 v{T + qb}, v{L + qb}")
        a("s_nop 0")
        for qb in range(NQ):
            a(f"{sw} v{L + qb}, v{T + qb}")
        a("s_nop 0")
        for qb in range(NQ):
            a(f"v_add_f32 v{57 + 2 * qb if sw[10] == '1' else L + qb}, v{L + qb}, v{T + qb}")
    for qb in range(NQ):
        a(f"v_sub_f32 v{56 + 2 * qb}, 0, v{NM + 4 * qb}")
    a("s_mov_b64 exec, 0xffff")
    for qb in range(NQ):
        a(f"buffer_store_dwordx2 v[{56 + 2 * qb}:{57 + 2 * qb}], v{VPLA}, {SRD}, s{S_PL} offen offset:{128 * qb} sc1")
    a("s_mov_b64 exec, -1")
    if cfg.get("tl") and not cfg.get("ptl"):
        a("s_memrealtime s[62:63]")
    a("s_waitcnt vmcnt(20) lgkmcnt(0)")
    a("s_barrier")
    a("ds_read_b32 v4, v5")
    a(f"s_and_b32 s{S_T0}, s{S_OWN}, 15")
    a("s_cbranch_scc1 L_own")
    a.label("L_ownr")
    a.seg("k2_epi")
    a(f"""
    s_waitcnt lgkmcnt(0)
    v_readfirstlane_b32 s{S_T0}, v4
    s_nop 3
    s_cmp_gt_u32 s{S_T0}, s{S_MODE}
    s_cbranch_scc1 L_redo
    """)
    if cfg.get("tl") and not cfg.get("ptl"):
        a("s_memrealtime s[60:61]")
    def agg_to_lds():
        a(f"""
        v_bfe_u32 v2, v0, 2, 2
        v_bfe_u32 v3, v0, 5, 1
        v_lshl_add_u32 v2, v3, 2, v2
        v_mul_u32_u24 v2, {AGS}, v2
        v_bfe_u32 v3, v0, 1, 1
        v_lshl_add_u32 v2, v3, 5, v2
        v_bfe_u32 v3, v0, 4, 1
        v_lshl_add_u32 v2, v3, 4, v2
        v_and_b32 v3, 1, v0
        v_lshl_add_u32 v2, v3, 3, v2
        s_lshl_b32 s{S_T0}, s{S_W}, 6
        v_add_u32 v2, s{S_T0}, v2
        """)
        for i in range(24):
            a(f"v_accvgpr_read_b32 v{64 + i}, a{AAG + i}")
        for i in range(12):
            a(f"v_cvt_pk_bf16_f32 v{64 + i}, v{64 + 2 * i}, v{65 + 2 * i}")
        for b in range(3):
            for m in range(2):
                a(f"ds_write_b64 v2, {vr(64 + 4 * b + 2 * m, 2)} offset:{AGL + (16 * b + 8 * m) * AGS}")

    consume_all()
    agg_to_lds()
    a("s_waitcnt vmcnt(0) lgkmcnt(0)")
    if cfg.get("tl") and not cfg.get("ptl"):
        a("s_memrealtime s[88:89]")
    a("s_barrier")
    a(f"""
    s_cmp_lg_u32 s{S_W}, 0
    s_cbranch_scc1 L_nosig
    s_lshl_b32 s{S_T0}, s{S_SPLIT}, 2
    v_mov_b32 v10, s{S_T0}
    s_add_u32 s{S_T1}, s{S_MODE}, 1
    v_mov_b32 v11, s{S_T1}
    s_mov_b64 exec, 1
    buffer_store_dword v11, v10, {SRD}, s{S_FLG} offen sc1
    s_mov_b64 exec, -1
    """)
    a.label("L_nosig")
    a(f"s_cmp_gt_i32 s{S_N}, 0")
    a("s_cbranch_scc1 L_left")
    a.label("L_gdone")
    a.seg("k2_fin")
    if cfg.get("tl") and not cfg.get("ptl"):
        a("s_memrealtime s[86:87]")
    POV, PLV = 128, 200
    ACC, BP, AI, XA, VXB = 26, 64, 34, 96, 5
    a(f"""
    v_and_b32 v{VPLA}, 15, v0
    v_and_b32 v9, 63, v0
    v_min_u32 v9, 5, v9
    v_lshlrev_b32 v9, 2, v9
    buffer_load_dword v10, v9, {SRD}, s{S_FLG} offen sc1
    s_mul_i32 s{S_T0}, s{S_QT}, {6 * 65536}
    s_lshl_b32 s{S_T1}, s{S_SPLIT}, 12
    s_add_u32 s{S_T0}, s{S_T0}, s{S_T1}
    s_lshl_b32 s{S_T1}, s{S_W}, 10
    s_add_u32 s{S_T0}, s{S_T0}, s{S_T1}
    s_add_u32 s{S_PO}, s{S_T0}, {PO}
    s_mul_i32 s{S_T0}, s{S_QT}, {6 * 2048}
    s_lshl_b32 s{S_T1}, s{S_SPLIT}, 7
    s_add_u32 s{S_T0}, s{S_T0}, s{S_T1}
    s_add_u32 s{S_PL}, s{S_T0}, {PL}
    v_mov_b32 v{VXB}, v{VX}
    v_add_u32 v{VXB + 1}, {6 * 4096}, v{VX}
    v_add_u32 v{VXB + 2}, {12 * 4096}, v{VX}
    v_bfe_u32 v2, v0, 2, 2
    v_and_b32 v3, 3, v0
    v_bfe_u32 v4, v0, 5, 1
    v_lshl_add_u32 v2, v4, 2, v2
    v_lshl_add_u32 v2, v3, 4, v2
    v_lshlrev_b32 v14, 2, v2
    v_add_u32 v15, 32, v14                       ; m = 1
    v_and_b32 v4, 16, v0
    v_cmp_ne_u32 s[{SMK}:{SMK + 1}], 0, v4
    v_and_b32 v2, 1, v{VPLA}
    v_lshlrev_b32 v2, 4, v2
    v_mov_b32 v3, 0x3f80
    v_lshlrev_b32 v2, v2, v3
    v_bfe_u32 v3, v{VPLA}, 1, 1
    v_lshrrev_b32 v4, 2, v{VPLA}
    v_bfe_u32 v11, v0, 4, 2
    v_xor_b32 v4, v4, v11
    v_lshl_add_u32 v3, v4, 1, v3
    v_cmp_eq_u32 s[{SMK + 2}:{SMK + 3}], 0, v3
    v_cmp_eq_u32 s[{SMK + 4}:{SMK + 5}], 1, v3
    v_lshlrev_b32 v{VPLA}, 3, v{VPLA}
    """)
    for k in (2, 3, 4, 5):
        a(f"v_mov_b32 v{AI + k}, 0")
    for k in range(2):
        a(f"v_cndmask_b32 v{AI + k}, 0, v2, s[{SMK + 2 + 2 * k}:{SMK + 3 + 2 * k}]")
        a(f"v_cndmask_b32 v{AI + 6 + k}, 0, v2, s[{SMK + 2 + 2 * k}:{SMK + 3 + 2 * k}]")
    YL, BF = 176, 128
    a(f"""
    v_and_b32 v2, 15, v0
    v_mul_u32_u24 v2, {AGS}, v2
    v_bfe_u32 v3, v0, 4, 2
    v_lshl_add_u32 v2, v3, 4, v2
    """)
    for b in range(3):
        for ks in range(4):
            a(f"ds_read_b128 {vr(BF + 16 * b + 4 * ks, 4)}, v2 offset:{AGL + 16 * b * AGS + 64 * ks}")
    for b in range(3):
        for m in range(2):
            for d in range(2):
                a(f"v_accvgpr_read_b32 v{3 + d}, a{AXV + 4 * b + 2 * m + d}")
            xa = XA + 8 * b + 4 * m
            for d in range(2):
                a(f"v_lshlrev_b32 v{xa + 2 * d}, 16, v{3 + d}")
                a(f"v_and_b32 v{xa + 2 * d + 1}, 0xffff0000, v{3 + d}")
        a(f"v_accvgpr_read_b32 v{80 + b}, a{ADI + b}")
    for b in range(3):
        a(f"s_waitcnt lgkmcnt({8 - 4 * b})")
        for ks in range(4):
            for h in range(2):
                d = vr(YL + 8 * b + 4 * h, 4)
                a(f"{MF} {d}, {ar(AWM + 16 * h + 4 * ks, 4)}, {vr(BF + 16 * b + 4 * ks, 4)}, {'0' if ks == 0 else d}")
        a(f"v_lshlrev_b32 v{80 + b}, 16, v{80 + b}")
    a(f"s_mov_b32 s{S_T1}, s{S_SPLIT}")
    for s in range(6):
        a(f"s_lshl_b32 s{S_T0}, s{S_T1}, 11")
        a(f"s_add_u32 s{SMK + 8 + s}, s{S_PL}, s{S_T0}")
        if s:
            a(f"s_lshl_b32 s{S_T0}, s{S_T1}, 16")
            a(f"s_add_u32 s{SMK + 14 + s}, s{S_PO}, s{S_T0}")
        a(f"s_add_u32 s{S_T1}, s{S_T1}, 1")
        a(f"s_cmp_eq_u32 s{S_T1}, 6")
        a(f"s_cselect_b32 s{S_T1}, 0, s{S_T1}")
    YD = 232 + 0
    for b in range(3):
        for j in range(8):
            a(f"v_mul_f32 v{[26, 236, 244][b] + j}, v{YL + 8 * b + j}, v{80 + b}")
    a(f"s_lshl_b32 s{S_T0}, s{S_W}, 10")
    a(f"v_add_u32 v2, s{S_T0}, v{VL16}")
    for b in range(3):
        a(f"ds_read_b128 {vr(POV + 24 * b, 4)}, v2 offset:{4096 * b}")
    a("s_waitcnt lgkmcnt(0)")
    a(f"s_mov_b32 s{S_I}, 0")
    a.label("L_poll")
    a(f"""
    buffer_load_dword v11, v9, {SRD}, s{S_FLG} offen sc1
    s_waitcnt vmcnt(1)
    v_cmp_eq_u32 vcc, 0, v10
    s_cbranch_vccz L_poll_done
    s_add_u32 s{S_I}, s{S_I}, 1
    s_cmp_gt_u32 s{S_I}, 0x1000000
    s_cbranch_scc1 L_k2_end
    buffer_load_dword v10, v9, {SRD}, s{S_FLG} offen sc1
    s_waitcnt vmcnt(1)
    v_cmp_eq_u32 vcc, 0, v11
    s_cbranch_vccnz L_poll
    v_mov_b32 v12, v11
    s_branch L_poll_d2
    """)
    a.label("L_poll_done")
    a("v_mov_b32 v12, v10")
    a.label("L_poll_d2")
    if cfg.get("tl") and not cfg.get("ptl"):
        a("s_memrealtime s[100:101]")
        a("s_waitcnt lgkmcnt(0)")
    a("v_cmp_ne_u32 vcc, 1, v12")
    for b in range(3):
        if b == 2:
            a(f"s_cmp_gt_u32 s{S_SPLIT}, 3")
            a("s_cbranch_scc1 L_no3")
        for s in range(6):
            a(f"buffer_load_dwordx2 {vr(PLV + 12 * b + 2 * s, 2)}, v{VPLA}, {SRD}, s{SMK + 8 + s} offen offset:{768 * b} sc1")
        for s in range(1, 6):
            a(f"s_add_u32 s{S_T0}, s{SMK + 14 + s}, {b * 6 * 4096}")
            a(f"buffer_load_dwordx4 {vr(POV + 24 * b + 4 * s, 4)}, v{VL16}, {SRD}, s{S_T0} offen sc1")
    a.label("L_ld_done")
    a("s_cbranch_vccnz L_general")

    def finish(b, rcp):
        for m in range(2):
            if rcp:
                a(f"ds_bpermute_b32 v{80 + m}, v{14 + m}, v{rcp}")
            for j in range(8):
                a(f"ds_bpermute_b32 v{BP + 8 * m + j}, v{14 + m}, v{ACC + j}")
        ob = 56 + 4 * (b & 1)
        for m in range(2):
            a(f"s_waitcnt lgkmcnt({(9 if rcp else 8) * (1 - m)})")
            xa = XA + 8 * b + 4 * m
            for r in range(4):
                a(f"v_cndmask_b32 v{BP + 8 * m + r}, v{BP + 8 * m + r}, v{BP + 8 * m + 4 + r}, s[{SMK}:{SMK + 1}]")
                if rcp:
                    a(f"v_fmac_f32 v{xa + r}, v{BP + 8 * m + r}, v{80 + m}")
                else:
                    a(f"v_add_f32 v{xa + r}, v{xa + r}, v{BP + 8 * m + r}")
            for d in range(2):
                a(f"v_cvt_pk_bf16_f32 v{ob + 2 * m + d}, v{xa + 2 * d}, v{xa + 2 * d + 1}")
            a(f"buffer_store_dwordx2 {vr(ob + 2 * m, 2)}, v{VXB + b}, s[{SOUT}:{SOUT + 3}], 0 offen offset:{2048 * m}{OSC}")

    yd = [26, 236, 244]
    acc = [84, 120, 46 + 0]
    acc = [80, 88, 120]
    bp = [64, POV, POV + 24]
    rc = [42, 43, 44]

    def M(b, nb):
        pl, po = PLV + 12 * b, POV + 24 * b
        for s in range(6):
            if s:
                a(f"s_waitcnt vmcnt({5 - s + 11 * (nb - 1 - b)})")
            for h in range(2):
                d = vr(acc[b] + 4 * h, 4)
                a(f"{MF} {d}, {vr(AI + 4 * h, 4)}, {vr(po + 4 * s, 4)}, {'0' if s == 0 else d}")
            if s == 1:
                a(f"v_add_f32 v{rc[b]}, v{pl + 1}, v{pl + 3}")
            elif s > 1:
                a(f"v_add_f32 v{rc[b]}, v{rc[b]}, v{pl + 2 * s + 1}")
        a(f"v_rcp_f32 v{rc[b]}, v{rc[b]}")

    def B(b):
        for j in range(8):
            a(f"v_fmac_f32 v{yd[b] + j}, v{acc[b] + j}, v{rc[b]}")
        for m in range(2):
            for j in range(8):
                a(f"ds_bpermute_b32 v{bp[b] + 8 * m + j}, v{14 + m}, v{yd[b] + j}")

    def F(b, younger):
        ob = 56 + 4 * (b & 1) if b < 2 else 46
        for m in range(2):
            a(f"s_waitcnt lgkmcnt({min(15, younger + 8 * (1 - m))})")
            xa = XA + 8 * b + 4 * m
            q = bp[b] + 8 * m
            for r in range(4):
                a(f"v_cndmask_b32 v{q + r}, v{q + r}, v{q + 4 + r}, s[{SMK}:{SMK + 1}]")
                a(f"v_add_f32 v{xa + r}, v{xa + r}, v{q + r}")
            for d in range(2):
                a(f"v_cvt_pk_bf16_f32 v{ob + 2 * m + d}, v{xa + 2 * d}, v{xa + 2 * d + 1}")
            a(f"buffer_store_dwordx2 {vr(ob + 2 * m, 2)}, v{VXB + b}, s[{SOUT}:{SOUT + 3}], 0 offen offset:{2048 * m}{OSC}")

    M(0, 3)
    M(1, 3)
    B(0)
    M(2, 3)
    B(1)
    F(0, 16)
    B(2)
    F(1, 16)
    F(2, 0)
    a("s_branch L_k2_done")
    a.label("L_no3")
    a("s_cbranch_vccnz L_no3g")
    a.seg("k2_no3")
    M(0, 2)
    M(1, 2)
    B(0)
    B(1)
    F(0, 16)
    F(1, 0)
    a("s_branch L_k2_done")
    a.label("L_no3g")
    a("s_waitcnt vmcnt(0)")
    a.label("L_general")
    a.seg("k2_gen")
    for b in range(3):
        pl, po = PLV + 12 * b, POV + 24 * b
        if b == 2:
            a(f"s_cmp_gt_u32 s{S_SPLIT}, 3")
            a("s_cbranch_scc1 L_k2_done")
        a(f"s_waitcnt vmcnt({11 * (2 - b) + 2 * b})")
        a(f"v_max3_f32 v44, v{pl}, v{pl + 2}, v{pl + 4}")
        a(f"v_max3_f32 v44, v44, v{pl + 6}, v{pl + 8}")
        a(f"v_max_f32 v44, v44, v{pl + 10}")
        for s in range(6):
            a(f"v_sub_f32 v{pl + 2 * s}, v{pl + 2 * s}, v44")
        for s in range(6):
            a(f"v_exp_f32 v{pl + 2 * s}, v{pl + 2 * s}")
        a("s_nop 0")
        a(f"v_mul_f32 v45, v{pl}, v{pl + 1}")
        for s in range(1, 6):
            a(f"v_fmac_f32 v45, v{pl + 2 * s}, v{pl + 2 * s + 1}")
        a("v_rcp_f32 v45, v45")
        a("s_nop 0")
        for s in range(6):
            a(f"v_mul_f32 v{pl + 2 * s}, v{pl + 2 * s}, v45")
        for s in range(6):
            for d in range(4):
                r = po + 4 * s + d
                a(f"v_lshlrev_b32 v42, 16, v{r}")
                a(f"v_and_b32 v43, 0xffff0000, v{r}")
                a(f"v_fmac_f32 v{yd[b] + 2 * d}, v42, v{pl + 2 * s}")
                a(f"v_fmac_f32 v{yd[b] + 2 * d + 1}, v43, v{pl + 2 * s}")
        for m in range(2):
            for j in range(8):
                a(f"ds_bpermute_b32 v{bp[b] + 8 * m + j}, v{14 + m}, v{yd[b] + j}")
        F(b, 0)
    a.label("L_k2_done")
    a("s_waitcnt vmcnt(0)")
    if cfg.get("tl"):
        a("s_waitcnt lgkmcnt(0)")
        a("s_mov_b64 exec, 1")
        a("v_lshrrev_b32 v1, 6, v0")
        a("v_lshlrev_b32 v1, 5, v1")
        a(f"s_lshl_b32 s90, s2, 7")
        a(f"s_add_u32 s90, s90, {TR + 3 * 0x40000}")
        for i, sr in enumerate((98, 62, 60, 88, 86, 100)):
            a(f"v_mov_b32 v{2 + i}, s{sr}")
        a(f"buffer_store_dwordx4 v[2:5], v1, {SRD}, s90 offen")
        a(f"buffer_store_dwordx2 v[6:7], v1, {SRD}, s90 offen offset:16")
    dbg_stamp(a, cfg, 5, 512, s=88, v=2)
    stamp_exit(a, cfg, 84, 2, SRD, TR)
    a.label("L_k2_end")
    a("s_endpgm")
    a.label("L_left")
    a.seg("k2_left0")
    lane_setup()
    a(f"v_add_u32 v{GLA}, {NGMAX * 256}, v{GLA}")
    a.label("L_left_loop")
    a.seg("k2_left")
    for b in range(3):
        a(f"ds_read_b128 {vr(64 + 4 * b, 4)}, v{GLA} offset:{b * RSZ + LOFF}")
    a(f"v_add_u32 v{GLA}, 256, v{GLA}")
    a("s_waitcnt lgkmcnt(0)")
    for b in range(3):
        for k in range(4):
            a(f"v_add_u32 v{64 + 4 * b + k}, v{64 + 4 * b + k}, v{GOFF}")
            a(f"buffer_load_dwordx4 {ar(ABUF + 16 * b + 4 * k, 4)}, v{64 + 4 * b + k}, {smp}, 0 offen offset:{12 - 4 * k}{LS()}")
    a("s_waitcnt vmcnt(0)")
    consume_all()
    a(f"""
    s_sub_u32 s{S_N}, s{S_N}, 1
    s_cmp_gt_i32 s{S_N}, 0
    s_cbranch_scc1 L_left_loop
    s_nop 7
    s_cmp_le_u32 s{S_MAXC}, {CAP}
    s_cbranch_scc1 L_left_done
    s_barrier
    s_branch L_car_t
    """)
    a.label("L_left_done")
    a.seg("k2_leftd")
    agg_to_lds()
    a("s_waitcnt lgkmcnt(0)")
    a("s_barrier")
    a("s_branch L_gdone")
    a.label("L_more2")
    a.seg("k2_more2")
    a("s_barrier")
    maxc()
    lane_setup()
    a("s_branch L_left_loop")
    a.label("L_safe")
    a.seg("k2_safe0")
    a(f"s_mov_b32 s{S_CNT}, s{S_LEFT}")
    emit_body(a, cfg, "s", True)
    a.seg("k2_smid")
    emit_body(a, cfg, "sf", True, last=True, nkb=2)
    a("s_branch L_k2_chk")
    a.label("L_redo")
    a.seg("k2_redo")
    a("s_waitcnt vmcnt(0)")
    a("s_barrier")
    a(f"s_mov_b32 s{S_MODE}, 1")
    a("s_branch L_k2_restart")
    a.label("L_own")
    a.seg("k2_ownx")
    a(f"s_ff1_i32_b32 s{S_T1}, s{S_T0}")
    a(f"s_lshl_b32 s{S_I}, s{S_W}, 2")
    a(f"s_add_u32 s{S_I}, s{S_I}, s{S_T1}")
    a(f"s_sub_u32 s{S_I}, s{S_I}, s{S_SPLIT}")
    a(f"s_mul_i32 s{S_I}, s{S_I}, 683")
    a(f"s_and_b32 s{S_I}, s{S_I}, 0x3000")
    a(f"v_add_u32 v42, s{S_I}, v{VL16}")
    for qb in range(1, NQ):
        a(f"s_cmp_eq_u32 s{S_T1}, {qb}")
        a(f"s_cbranch_scc1 L_own{qb}")
    for qb in range(NQ):
        a.label(f"L_own{qb}")
        a.seg(f"k2_own{qb}")
        for p in range(4):
            t = 26 + 4 * p
            for d in range(4):
                src = O + (qb * 8 + 2 * p) * 4 + 2 * d
                a(f"v_cvt_pk_bf16_f32 v{t + d}, v{src}, v{src + 1}")
            a(f"ds_write_b128 v42, {vr(t, 4)} offset:{1024 * p}")
        a("s_branch L_ownr")
    a.label("L_lo")
    a.seg("k2_lo")
    a(f"s_cmp_eq_u32 s{S_SPLIT}, 1")
    a("s_cbranch_scc1 L_lo1")

    def lo_softmax(qs):
        for qb in qs:
            for i in range(4):
                a(f"v_sub_f32 v{St(qb, 1) + i}, v{St(qb, 1) + i}, v{26 + qb}")
        for qb in qs:
            for i in range(4):
                a(f"v_exp_f32 v{St(qb, 1) + i}, v{St(qb, 1) + i}")
        for qb in qs:
            s0 = St(qb, 1)
            a(f"v_add_f32 v{L + qb}, v{s0}, v{s0 + 1}")
            a(f"v_cvt_pk_bf16_f32 v{P + 4 * qb}, v{s0}, v{s0 + 1}")
            a(f"v_add_f32 v{L + qb}, v{L + qb}, v{s0 + 2}")
            a(f"v_cvt_pk_bf16_f32 v{P + 4 * qb + 1}, v{s0 + 2}, v{s0 + 3}")
            a(f"v_add_f32 v{L + qb}, v{L + qb}, v{s0 + 3}")

    lo_softmax((2, 3))
    a("s_branch L_lo_ret")
    a.label("L_lo1")
    a.seg("k2_lo1")
    for qb in range(2):
        a(f"v_mov_b32 v{P + 4 * qb + 2}, 0")
        a(f"v_mov_b32 v{P + 4 * qb + 3}, 0")
    lo_softmax((0, 1))
    a("s_waitcnt vmcnt(8)")
    for x in pv_order("A"):
        a(mfma_pv(*x))
    a("s_branch L_lo_ret")
    emit_careful(a, "e", "L_ev_ret")
    emit_careful(a, "t", "L_more2")
    for tag, nkb in (("s", 2), ("sf", 2)):
        for X in "AB":
            emit_slow(a, X, nkb, tag + X)
    a.label("L_k2_last")
    return dict(name=name, vgpr=512, accum=256, sgpr=102, grid=NWG, block=256, lds=RB + 4 * RSZ,
                chains=[["k2_pro0", "k2_pro", "k2_pro2", "k2_pro3", "body_m", "body_m", "k2_mid", "k2_mid2", "body_lf", "k2_chk", "k2_epi", "k2_fin"],
                        ["body_m", "k2_mid", "k2_ev", "body_m"], ["body_m", "k2_mid", "k2_evr", "body_m"], ["body_g2", "k2_gx", "k2_mid2", "body_lf"], ["k2_ev", "careful_e", "body_m"],
                        ["body_m", "k2_mid", "k2_evg", "body_g0", "body_g1", "body_g2", "body_g0", "body_g1", "body_g2", "k2_gx", "body_m"],
                        ["body_lf", "k2_chk", "k2_epi", "k2_redo", "k2_pro"], ["k2_pro2", "k2_lo", "k2_pro3", "body_m"], ["k2_pro2", "k2_lo1", "k2_pro3", "body_m"],
                        ["k2_pro", "k2_pro2", "k2_pro3", "k2_safe0", "body_s", "body_s", "k2_smid", "body_sf", "k2_chk", "k2_epi"],
                        ["k2_fin", "k2_gen"], ["k2_fin", "k2_no3"], ["k2_chk", "k2_ownx", "k2_own0", "k2_own1", "k2_own2", "k2_own3", "k2_epi"], ["k2_epi", "k2_left0", "k2_left", "k2_left", "k2_leftd", "k2_fin"], ["k2_left", "careful_t", "k2_more2", "k2_left"]] +
                       [["slow_" + t + X] for t in ("s", "sf") for X in "AB"])
```

```python
import sys, json, os
sys.path.insert(0, os.path.dirname(__file__))
from asmlib import Asm
import k2, k2b, k2c, k2d, k2e, k2f, k2g, k2h, k2i, k2j

HEADER = open(os.path.join(os.path.dirname(__file__), "..", "cdna_kernels",
              "standalone__hybrid_graph_tf_graphgps__graph.s.ref")).read().split("; Override launch")[0]

DOC = """;
"""


def build(cfg, kernels):
    a = Asm()
    infos = []
    order = []
    done = {}
    for k in kernels:
        if k not in done:
            done[k] = k(a, cfg)
            infos.append(done[k])
        order.append(done[k])
    probs = []
    for inf in infos:
        probs += a.check(inf["chains"])
    out = [HEADER.rstrip("\n")]
    for inf in order:
        out.append(f"; @launch kernel={inf['name']} grid=({inf['grid']},1,1) block=({inf['block']},1,1) lds={inf['lds']}")
    out.append(DOC.rstrip("\n"))
    out.append('.amdgcn_target "amdgcn-amd-amdhsa--gfx950"')
    out.append(a.text())
    out.append('.section .rodata,"a"')
    for inf in infos:
        out.append(f""".p2align 6
.amdhsa_kernel {inf['name']}
  .amdhsa_next_free_vgpr {inf['vgpr']}
  .amdhsa_next_free_sgpr {inf['sgpr']}
  .amdhsa_accum_offset {inf['accum']}
  .amdhsa_group_segment_fixed_size 0
  .amdhsa_kernarg_size 96
  .amdhsa_user_sgpr_count 2
  .amdhsa_user_sgpr_kernarg_segment_ptr 1
  .amdhsa_system_sgpr_workgroup_id_x 1
.end_amdhsa_kernel""")
    return "\n".join(out) + "\n", probs

if __name__ == "__main__":
    outp = sys.argv[1]
    cfg = dict(PF=4, ds1=1, memfirst=1, explast=1, dgaps=[1, 3, 34, 36], lead=3, pathA=1, nperm=2, k1sc=1, prio=1, map=2, osc=2, spf=1, bsc=2, wlate=1, tabt=1)
    for kv in sys.argv[2:]:
        k, v = kv.split("=", 1)
        try:
            v = json.loads(v)
        except Exception:
            pass
        cfg[k] = v
    ks = cfg.get("kernels", "2")
    import nop
    table = {"2": k2.emit_k2, "c": k2b.emit_k2, "n": nop.emit_nop, "d": k2c.emit_k2, "e": k2d.emit_k2, "f": k2e.emit_k2, "g": k2f.emit_k2, "h": k2g.emit_k2, "i": k2h.emit_k2, "j": k2i.emit_k2, "k": k2j.emit_k2}
    try:
        import k1, k3
        import k1b, k1c, k1d
        table.update({"a": k1b.emit_k1, "b": k1c.emit_k1, "x": k1d.emit_k1})
        table.update({"1": k1.emit_k1, "3": k3.emit_k3, "z": k3.emit_kb})
    except ImportError:
        pass
    text, probs = build(cfg, [table[c] for c in str(ks)])
    for p in probs:
        print("HAZARD", p)
    open(outp, "w").write(text)
    print("wrote", outp, len(text), "bytes;", len(probs), "hazard problems")
```

```python
from layout import *
from asmlib import stamp_entry, stamp_exit
import struct

MF = "v_mfma_f32_32x32x16_bf16"


def f2u(x):
    return struct.unpack("<I", struct.pack("<f", x))[0]


def vr(b, n):
    return f"v[{b}:{b + n - 1}]"


def emit_k1(a, cfg):
    name = "k1_proj_kernel"
    NT = 80
    NWG = 4 * NT
    NBK = GB if cfg.get('pathA') else 0
    a.raw(".text")
    a.raw(f".globl {name}\n.p2align 8\n.type {name},@function")
    a.label(name)
    a.seg("k1_a")
    SX, SW1, SWO, SWS = 4, 8, 12, 16
    S_JOB, S_BLK, S_W, S_T0, S_T1, S_SC = 20, 21, 22, 23, 24, 26
    S_O1, S_O2 = 28, 29
    XR = 64
    XF = 96
    H = 32
    D = 160
    VA = 8
    a(f"""
    s_cmp_ge_u32 s2, {NWG + NBK}
    s_cbranch_scc1 L_k1_exit
    """)
    stamp_entry(a, cfg, 32)
    if NBK:
        a(f"s_cmp_lt_u32 s2, {NBK}")
        a("s_cbranch_scc1 L_k1_bucket")
    a(f"""
    s_sub_u32 s3, s2, {NBK}
    s_and_b32 s{S_JOB}, s3, 3
    s_add_u32 s{S_T0}, s{S_JOB}, 1
    s_and_b32 s{S_T0}, s{S_T0}, 3
    s_lshl_b32 s{S_T0}, s{S_T0}, 3
    s_add_u32 s{S_T0}, s{S_T0}, 32
    s_load_dwordx2 s[{SX}:{SX + 1}], s[0:1], 0
    s_load_dwordx2 s[{SW1}:{SW1 + 1}], s[0:1], s{S_T0}
    s_load_dwordx2 s[{SWO}:{SWO + 1}], s[0:1], 64
    s_load_dwordx2 s[{SWS}:{SWS + 1}], s[0:1], 88
    v_lshrrev_b32 v1, 6, v0
    v_and_b32 v2, 63, v0                      ; lane
    v_readfirstlane_b32 s{S_W}, v1
    s_mov_b32 s{SX + 2}, {N * 256}
    s_mov_b32 s{SX + 3}, 0x00020000
    s_mov_b32 s{SW1 + 2}, 32768
    s_mov_b32 s{SW1 + 3}, 0x00020000
    s_mov_b32 s{SWO + 2}, 32768
    s_mov_b32 s{SWO + 3}, 0x00020000
    s_mov_b32 s{SWS + 2}, 0x10000000
    s_mov_b32 s{SWS + 3}, 0x00020000
    s_lshr_b32 s{S_BLK}, s3, 2
    s_lshl_b32 s{S_BLK}, s{S_BLK}, 2
    s_add_u32 s{S_BLK}, s{S_BLK}, s{S_W}
    s_lshl_b32 s{S_BLK}, s{S_BLK}, 13          ; *8192 bytes
    ; x address: n*256 + h*16
    v_and_b32 v3, 31, v2
    v_lshrrev_b32 v4, 5, v2                    ; h
    v_lshlrev_b32 v5, 8, v3
    v_lshl_add_u32 v5, v4, 4, v5               ; v5 = n*256 + h*16
    v_lshrrev_b32 v6, 4, v2                    ; g
    v_and_b32 v7, 15, v2                       ; t
    v_lshlrev_b32 v16, 2, v6
    v_xor_b32 v16, v16, v7
    v_lshlrev_b32 v16, 4, v16
    v_lshl_add_u32 v16, v6, 8, v16
    s_lshl_b32 s{S_T0}, s{S_W}, 13             ; w*8192
    s_add_u32 s{S_T1}, s{S_T0}, 4096
    s_mov_b32 m0, s{S_T0}
    s_waitcnt lgkmcnt(0)
    s_and_b32 s{SX + 1}, s{SX + 1}, 0xffff
    s_and_b32 s{SW1 + 1}, s{SW1 + 1}, 0xffff
    s_and_b32 s{SWO + 1}, s{SWO + 1}, 0xffff
    s_and_b32 s{SWS + 1}, s{SWS + 1}, 0xffff
    """)
    if cfg.get("k1tl"):
        a("s_memrealtime s[48:49]")
    for s in range(8):
        a(f"buffer_load_dwordx4 {vr(XR + 4 * s, 4)}, v5, s[{SX}:{SX + 3}], s{S_BLK} offen offset:{32 * s}")
    for k in range(4):
        a(f"buffer_load_dwordx4 v16, s[{SW1}:{SW1 + 3}], s{S_T0} offen offset:{1024 * k} lds")
    a(f"s_mov_b32 m0, s{S_T1}")
    a("s_nop 0")
    for k in range(4):
        a(f"buffer_load_dwordx4 v16, s[{SW1}:{SW1 + 3}], s{S_T1} offen offset:{1024 * k} lds")
    a(f"s_cmp_lt_u32 s{S_JOB}, 2")
    a("s_cbranch_scc1 L_k1_nowo")
    a(f"s_add_u32 m0, s{S_T0}, 0x8000")
    a("s_nop 0")
    for k in range(4):
        a(f"buffer_load_dwordx4 v16, s[{SWO}:{SWO + 3}], s{S_T0} offen offset:{1024 * k} lds")
    a(f"s_add_u32 m0, s{S_T1}, 0x8000")
    a("s_nop 0")
    for k in range(4):
        a(f"buffer_load_dwordx4 v16, s[{SWO}:{SWO + 3}], s{S_T1} offen offset:{1024 * k} lds")
    a("s_waitcnt vmcnt(16)")
    a("s_branch L_k1_ln")
    a.label("L_k1_nowo")
    a("s_waitcnt vmcnt(8)")
    a.label("L_k1_ln")
    a.seg("k1_b")
    if cfg.get("k1tl"):
        a("s_memrealtime s[50:51]")
    if NBK:
        a(f"""
        v_mov_b32 v17, 0
        v_lshlrev_b32 v18, 2, v0
        s_lshl_b32 s{S_T0}, s3, 7
        s_add_u32 s{S_T0}, s{S_T0}, {FLG}
        v_cmp_gt_u32 vcc, 32, v0
        s_and_saveexec_b64 s[30:31], vcc
        s_cbranch_execz L_k1_nz
        buffer_store_dword v17, v18, s[{SWS}:{SWS + 3}], s{S_T0} offen
        """)
    else:
        a(f"""
        v_mov_b32 v17, 0
        v_lshlrev_b32 v18, 6, v0
        s_lshl_b32 s{S_T0}, s3, 11
        s_add_u32 s{S_T0}, s{S_T0}, {CNT}
        v_cmp_gt_u32 vcc, 32, v0
        s_and_saveexec_b64 s[30:31], vcc
        s_cbranch_execz L_k1_nz
        buffer_store_dword v17, v18, s[{SWS}:{SWS + 3}], s{S_T0} offen
        """)
    a.label("L_k1_nz")
    a("s_mov_b64 exec, s[30:31]")
    a(f"""
    v_lshrrev_b32 v17, 2, v7                   ; r = t>>2
    v_lshrrev_b32 v18, 1, v6                   ; hh = g>>1
    v_and_b32 v19, 1, v6                       ; g&1
    v_lshlrev_b32 v20, 6, v17                  ; r*64
    v_lshl_add_u32 v20, v19, 5, v20            ; + (g&1)*32
    v_and_b32 v21, 3, v7
    v_lshl_add_u32 v20, v21, 3, v20            ; + (t&3)*8
    v_lshl_add_u32 v20, v17, 8, v20            ; + r*256
    v_lshl_add_u32 v{VA}, v18, 11, v20
    v_lshl_add_u32 v{VA + 4}, v18, 10, v20
    """)
    for i in range(1, 4):
        a(f"v_xor_b32 v{VA + i}, {i << 6}, v{VA}")
        a(f"v_xor_b32 v{VA + 4 + i}, {i << 6}, v{VA + 4}")
    for i in range(32):
        a(f"v_lshlrev_b32 v{XF + 2 * i}, 16, v{XR + i}")
        a(f"v_and_b32 v{XF + 2 * i + 1}, 0xffff0000, v{XR + i}")
    AC = 22
    a(f"v_pk_add_f32 {vr(AC, 2)}, {vr(XF, 2)}, {vr(XF + 2, 2)}")
    a(f"v_pk_add_f32 {vr(AC + 2, 2)}, {vr(XF + 4, 2)}, {vr(XF + 6, 2)}")
    for i in range(4, 32):
        t = AC + 2 * (i & 1)
        a(f"v_pk_add_f32 {vr(t, 2)}, {vr(t, 2)}, {vr(XF + 2 * i, 2)}")
    a(f"v_pk_add_f32 {vr(AC, 2)}, {vr(AC, 2)}, {vr(AC + 2, 2)}")
    a(f"v_add_f32 v{AC}, v{AC}, v{AC + 1}")

    def xhalf_sum(r, t):
        a(f"v_mov_b32 v{t}, v{r}")
        a("s_nop 1")
        a(f"v_permlane32_swap_b32 v{r}, v{t}")
        a("s_nop 1")
        a(f"v_add_f32 v{r}, v{r}, v{t}")

    xhalf_sum(AC, AC + 1)
    a(f"v_mul_f32 v26, {hex(f2u(-1.0 / 128))}, v{AC}")
    a("v_mov_b32 v27, v26")
    for i in range(32):
        a(f"v_pk_add_f32 {vr(XF + 2 * i, 2)}, {vr(XF + 2 * i, 2)}, v[26:27]")
    a(f"v_pk_mul_f32 {vr(AC, 2)}, {vr(XF, 2)}, {vr(XF, 2)}")
    a(f"v_pk_mul_f32 {vr(AC + 2, 2)}, {vr(XF + 2, 2)}, {vr(XF + 2, 2)}")
    for i in range(2, 32):
        t = AC + 2 * (i & 1)
        a(f"v_pk_fma_f32 {vr(t, 2)}, {vr(XF + 2 * i, 2)}, {vr(XF + 2 * i, 2)}, {vr(t, 2)}")
    a(f"v_pk_add_f32 {vr(AC, 2)}, {vr(AC, 2)}, {vr(AC + 2, 2)}")
    a(f"v_add_f32 v{AC}, v{AC}, v{AC + 1}")
    xhalf_sum(AC, AC + 1)

    def rnd(r):
        a(f"v_cvt_pk_bf16_f32 v{r}, v{r}, v{r}")
        a(f"v_lshlrev_b32 v{r}, 16, v{r}")

    a(f"v_mul_f32 v{AC}, {hex(f2u(1.0 / 128))}, v{AC}")
    rnd(AC)
    a(f"v_add_f32 v{AC}, {hex(f2u(1e-5))}, v{AC}")
    rnd(AC)
    a(f"v_sqrt_f32 v{AC}, v{AC}")
    a(f"v_cvt_pk_bf16_f32 v24, v26, v26")
    rnd(AC)
    a(f"v_rcp_f32 v28, v{AC}")
    a(f"v_lshlrev_b32 v24, 16, v24")
    a(f"v_sub_f32 v24, v24, v26")
    a(f"v_mov_b32 v29, v28")
    a(f"v_mul_f32 v24, v24, v28")
    a(f"v_mov_b32 v25, v24")
    for i in range(32):
        a(f"v_pk_fma_f32 {vr(XF + 2 * i, 2)}, {vr(XF + 2 * i, 2)}, v[28:29], v[24:25]")
    for i in range(32):
        a(f"v_cvt_pk_bf16_f32 v{H + i}, v{XF + 2 * i}, v{XF + 2 * i + 1}")
    c = 1.4426950408889634 / 128 ** 0.5
    a(f"s_mov_b32 s{S_SC}, {hex(f2u(c))}")
    a(f"s_cmp_eq_u32 s{S_JOB}, 0")
    a(f"s_cselect_b32 s{S_SC}, s{S_SC}, 1.0")
    a(f"s_mov_b32 s{S_SC + 1}, s{S_SC}")
    if cfg.get("k1tl"):
        a("s_memrealtime s[52:53]")
    a("s_waitcnt vmcnt(0)")
    a("s_barrier")
    if cfg.get("k1tl"):
        a("s_memrealtime s[54:55]")

    WB = [XF, XF + 32]

    def reads(i, buf, addr, base, second):
        for s in range(8):
            a(f"ds_read_b64_tr_b16 {vr(buf + 4 * s, 2)}, v{addr + i} offset:{base + 4096 * s}")
            a(f"ds_read_b64_tr_b16 {vr(buf + 4 * s + 2, 2)}, v{addr + i} offset:{base + 4096 * s + second}")

    def gemm(addr, base, second, other, w_is_a):
        reads(0, WB[0], addr, base, second)
        for i in range(4):
            a("s_waitcnt lgkmcnt(0)")
            if i < 3:
                reads(i + 1, WB[(i + 1) & 1], addr, base, second)
            for s in range(8):
                w = vr(WB[i & 1] + 4 * s, 4)
                o = vr(other + 4 * s, 4)
                A, B = (w, o) if w_is_a else (o, w)
                d = vr(D + 16 * i, 16)
                a(f"{MF} {d}, {A}, {B}, {'0' if s == 0 else d}")

    gemm(VA, 0, 1024, H, True)
    a("s_nop 7")
    a("s_nop 3")
    if cfg.get("k1tl"):
        a("s_memrealtime s[56:57]")
    G1 = XR
    for i in range(32):
        a(f"v_pk_mul_f32 {vr(D + 2 * i, 2)}, {vr(D + 2 * i, 2)}, s[{S_SC}:{S_SC + 1}]")
    for i in range(32):
        a(f"v_cvt_pk_bf16_f32 v{G1 + i}, v{D + 2 * i}, v{D + 2 * i + 1}")
    a(f"s_cmp_ge_u32 s{S_JOB}, 2")
    a("s_cbranch_scc1 L_k1_second")
    a.seg("k1_qk")
    a(f"""
    v_lshrrev_b32 v17, 4, v3
    v_lshlrev_b32 v17, 12, v17
    v_and_b32 v18, 15, v3
    v_lshl_add_u32 v17, v18, 4, v17
    v_lshl_add_u32 v17, v4, 8, v17
    s_mul_i32 s{S_O1}, s{S_JOB}, {KF - QF}
    s_add_u32 s{S_O1}, s{S_O1}, s{S_BLK}
    s_add_u32 s{S_O1}, s{S_O1}, {QF}
    """)
    for c_ in range(8):
        i, k = c_ >> 1, c_ & 1
        a(f"buffer_store_dwordx4 {vr(G1 + 4 * c_, 4)}, v17, s[{SWS}:{SWS + 3}], s{S_O1} offen offset:{1024 * i + 512 * k}")
    a("s_branch L_k1_end")
    a.label("L_k1_second")
    a.seg("k1_c")
    a(f"s_cmp_eq_u32 s{S_JOB}, 3")
    a("s_cbranch_scc1 L_k1_m")

    def pack_store(addr, soffs, nat=False):
        a("s_nop 7")
        if cfg.get("k1tl"):
            a("s_memrealtime s[58:59]")
        a("s_nop 3")
        n = 0
        for i in range(4):
            for kk in range(2):
                t = H + 4 * n
                n += 1
                if nat:
                    b = D + 16 * i + 8 * kk
                    src = [b, b + 2, b + 4, b + 6]
                else:
                    b = D + 16 * i + 4 * kk
                    src = [b, b + 2, b + 8, b + 10]
                for d in range(4):
                    a(f"v_cvt_pk_bf16_f32 v{t + d}, v{src[d]}, v{src[d] + 1}")
                so, imm = soffs(i, kk)
                a(f"buffer_store_dwordx4 {vr(t, 4)}, v{addr}, s[{SWS}:{SWS + 3}], s{so} offen offset:{imm}")

    a.seg("k1_v")
    a(f"""
    v_lshrrev_b32 v17, 4, v3
    v_lshlrev_b32 v17, 10, v17
    v_and_b32 v18, 15, v3
    v_lshl_add_u32 v17, v18, 4, v17
    v_lshl_add_u32 v17, v4, 8, v17
    s_add_u32 s{S_O1}, s{S_BLK}, {VF}
    s_add_u32 s{S_O2}, s{S_O1}, 4096
    """)
    gemm(VA + 4, 32768, 2048, G1, False)
    pack_store(17, lambda i, kk: (S_O1 if i < 2 else S_O2, (i & 1) * 2048 + kk * 512))
    a("s_branch L_k1_end")
    a.label("L_k1_m")
    a.seg("k1_m")
    a(f"s_add_u32 s{S_O1}, s{S_BLK}, {MP}")
    gemm(VA + 4, 32768, 2048, G1, True)
    pack_store(5, lambda i, kk: (S_O1, i * 64 + kk * 32), nat=False)
    if NBK:
        a("s_branch L_k1_end")
        emit_bucket(a, cfg, SWS)
    a.label("L_k1_end")
    if cfg.get("k1tl"):
        a("s_memrealtime s[60:61]")
        a("s_waitcnt lgkmcnt(0)")
        a("v_lshrrev_b32 v1, 6, v0")
        a("v_lshlrev_b32 v1, 5, v1")
        a(f"s_lshl_b32 s40, s2, 7")
        a(f"s_add_u32 s40, s40, {TR + 0x40000}")
        for i in range(7):
            a(f"v_mov_b32 v{2 + i}, s{48 + 2 * i}")
        a(f"buffer_store_dwordx4 v[2:5], v1, s[{SWS}:{SWS + 3}], s40 offen")
        a(f"buffer_store_dwordx4 v[6:9], v1, s[{SWS}:{SWS + 3}], s40 offen offset:16")
    stamp_exit(a, cfg, 32, 0, f"s[{SWS}:{SWS + 3}]", TR)
    a.label("L_k1_exit")
    a("s_endpgm")
    return dict(name=name, vgpr=224, accum=224, sgpr=64, grid=NWG + NBK, block=256, lds=65536,
                chains=[["k1_a", "k1_b", "k1_qk"], ["k1_b", "k1_c", "k1_v"], ["k1_b", "k1_c", "k1_m"]] + ([["k1_bk"]] if NBK else []))


def emit_bucket(a, cfg, SWS):
    a.label("L_k1_bucket")
    a.seg("k1_bk")
    NE = 4 * NLD
    DS, SR, RK, AD = 32, 32 + NE, 32 + 2 * NE, 32 + 3 * NE
    HIST, BASE, STG = 0, 4096, 16384
    ws = f"s[{SWS}:{SWS + 3}]"
    a(f"""
    s_load_dwordx4 s[20:23], s[0:1], 8
    s_load_dwordx2 s[{SWS}:{SWS + 1}], s[0:1], 88
    s_mov_b32 s6, {E * 4}
    s_mov_b32 s7, 0x00020000
    s_mov_b32 s10, {E * 4}
    s_mov_b32 s11, 0x00020000
    s_mov_b32 s{SWS + 2}, 0x10000000
    s_mov_b32 s{SWS + 3}, 0x00020000
    s_mul_i32 s24, s2, {EPW * 4}
    v_lshlrev_b32 v1, 4, v0                   ; t*16
    v_mov_b32 v4, 0
    v_mov_b32 v5, 0
    v_mov_b32 v6, 0
    v_mov_b32 v7, 0
    ds_write_b128 v1, v[4:7] offset:{HIST}
    v_mov_b32 v8, 1
    s_waitcnt lgkmcnt(0)
    s_mov_b32 s4, s20
    s_and_b32 s5, s21, 0xffff
    s_mov_b32 s8, s22
    s_and_b32 s9, s23, 0xffff
    s_and_b32 s{SWS + 1}, s{SWS + 1}, 0xffff
    """)
    a("s_mov_b32 s25, s24")
    for k in range(NLD):
        a(f"buffer_load_dwordx4 {vr(DS + 4 * k, 4)}, v1, s[8:11], s25 offen")
        a("s_add_u32 s25, s25, 4096")
    for k in range(NLD):
        a(f"buffer_load_dwordx4 {vr(SR + 4 * k, 4)}, v1, s[4:7], s24 offen")
        a("s_add_u32 s24, s24, 4096")
    a("s_barrier")
    a(f"v_cmp_gt_u32 vcc, {(EPW - 1024 * (NLD - 1)) // 4}, v0")
    a("v_mov_b32 v9, 10239")
    for i in range(NE):
        if i % 4 == 0:
            a(f"s_waitcnt vmcnt({2 * NLD - 1 - i // 4})")
        if i >= NE - 4:
            a(f"v_cndmask_b32 v{DS + i}, v9, v{DS + i}, vcc")
        a(f"v_lshrrev_b32 v{AD + i}, 4, v{DS + i}")
        a(f"v_lshlrev_b32 v{AD + i}, 2, v{AD + i}")
        a(f"ds_add_rtn_u32 v{RK + i}, v{AD + i}, v8 offset:{HIST}")
    a("s_waitcnt vmcnt(0)")
    for i in range(NE):
        if cfg.get("nperm"):
            if cfg["nperm"] == 2:
                a(f"v_and_b32 v4, 12, v{DS + i}")
                a(f"v_lshl_or_b32 v{SR + i}, v{SR + i}, 8, v4")
                a(f"v_and_b32 v{DS + i}, 3, v{DS + i}")
                a(f"v_lshl_or_b32 v{SR + i}, v{DS + i}, 4, v{SR + i}")
                continue
            a(f"v_bfe_u32 v4, v{DS + i}, 2, 2")
            a(f"v_lshl_or_b32 v{SR + i}, v{SR + i}, 8, v4")
            a(f"v_and_b32 v{DS + i}, 3, v{DS + i}")
            a(f"v_lshl_or_b32 v{SR + i}, v{DS + i}, 2, v{SR + i}")
        else:
            a(f"v_and_b32 v{DS + i}, 15, v{DS + i}")
            a(f"v_lshl_or_b32 v{SR + i}, v{SR + i}, 8, v{DS + i}")
    a("s_waitcnt lgkmcnt(0)")
    a("s_barrier")
    C = 112 if NE == 20 else 192
    a(f"""
    v_and_b32 v2, 63, v0
    v_mul_u32_u24 v3, 40, v2
    v_lshrrev_b32 v10, 6, v0
    """)
    for k in range(5):
        a(f"ds_read_b64 {vr(C + 2 * k, 2)}, v3 offset:{HIST + 8 * k}")
    a(f"""
    v_readfirstlane_b32 s43, v10
    v_mul_u32_u24 v10, 2560, v10
    v_add_u32 v3, v3, v10
    v_mul_u32_u24 v28, {40 if cfg.get("tabt") else 40 * GB}, v2
    s_mul_i32 s29, s2, {2560 if cfg.get("tabt") else 4}
    s_add_u32 s29, s29, {TAB}
    s_lshl_b32 s43, s43, 4
    s_lshl_b64 s[30:31], 0xffff, s43
    """)
    for i in range(NE):
        a(f"v_add_u32 v{AD + i}, v{AD + i}, v10")
    a("s_waitcnt lgkmcnt(0)")
    B = C + 10
    a(f"v_mov_b32 v{B}, 0")
    for k in range(1, 10):
        a(f"v_add_u32 v{B + k}, v{B + k - 1}, v{C + k - 1}")
    a(f"v_add_u32 v12, v{B + 9}, v{C + 9}")
    a("v_mov_b32 v13, v12")
    for sh, rm in (("row_shr:1", "0xf"), ("row_shr:2", "0xf"), ("row_shr:4", "0xf"), ("row_shr:8", "0xf"), ("row_bcast:15", "0xa"), ("row_bcast:31", "0xc")):
        a("s_nop 1")
        a(f"v_add_u32_dpp v13, v13, v13 {sh} row_mask:{rm} bank_mask:0xf")
    a("v_sub_u32 v13, v13, v12")
    for k in range(10):
        a(f"v_add_u32 v{B + k}, v{B + k}, v13")
    for k in range(5):
        a(f"ds_write_b64 v3, {vr(B + 2 * k, 2)} offset:{BASE + 8 * k}")
    for k in range(10):
        a(f"v_lshl_or_b32 v{C + k}, v{C + k}, 16, v{B + k}")
    a("s_mov_b64 exec, s[30:31]")
    if cfg.get("tabt"):
        for k in range(5):
            a(f"buffer_store_dwordx2 {vr(C + 2 * k, 2)}, v28, {ws}, s29 offen offset:{8 * k} sc1")
    else:
        for k in range(10):
            a(f"buffer_store_dword v{C + k}, v28, {ws}, s29 offen offset:{4 * GB * k}{' sc1' if cfg.get('bsc', 0) > 1 else ''}")
    a("s_mov_b64 exec, -1")
    a("s_waitcnt lgkmcnt(0)")
    for i in range(NE):
        a(f"ds_read_b32 v{AD + i}, v{AD + i} offset:{BASE}")
    for i in range(NE):
        if i == 0:
            a("s_waitcnt lgkmcnt(0)")
        a(f"v_add_lshl_u32 v{AD + i}, v{AD + i}, v{RK + i}, 2")
        a(f"ds_write_b32 v{AD + i}, v{SR + i} offset:{STG}")
    a("s_waitcnt lgkmcnt(0)")
    a("s_barrier")
    for k in range(NLD):
        a(f"ds_read_b128 {vr(DS + 4 * k, 4)}, v1 offset:{STG + 4096 * k}")
    a(f"s_mul_i32 s24, s2, {RECS}")
    a(f"s_add_u32 s24, s24, {REC}")
    for k in range(NLD):
        a(f"s_waitcnt lgkmcnt({NLD - 1 - k})")
        a(f"buffer_store_dwordx4 {vr(DS + 4 * k, 4)}, v1, {ws}, s24 offen{' sc1' if cfg.get('bsc') else ''}")
        a(f"s_add_u32 s24, s24, 4096")
```

```python
from layout import *
from asmlib import stamp_entry, stamp_exit, dbg_stamp

CFG = {}
MF = "v_mfma_f32_16x16x32_bf16"
NWG = 240
NQ = 4
CAP = 72
NGMAX = 15
NSLOT = 24

O, S, NM, P, E_, T, L = 128, 64, 96, 112, 26, 42, 52
VLDS, VL16, VT, VT2, VT3, VOOB = 20, 21, 22, 23, 24, 25
RC, VREM, VSEG, BT = 26, 50, 51, 56
AQ, AK, AV = 0, 64, 96
S_SRD = 4
S_W, S_SRC, S_M0, S_CNT, S_THR, S_SPLIT, S_QT, S_T0, S_T1 = 8, 9, 10, 11, 12, 13, 14, 15, 16
S_LEFT, S_EV, S_NB, S_MODE = 17, 18, 19, 30
S_Q0 = 20
S_PO, S_PL, S_SRC0, S_U = 24, 25, 26, 27
S_K0, S_FV = 28, 29
S_PA = 56
S_V1 = 3
S_OWN = 31
SRD = f"s[{S_SRD}:{S_SRD + 3}]"
SKV = 80
KVS = "s[80:83]"
LDS_FLAG = 131072
AGL, AGS = 16384, 272
AWM = 224
ABUF, AAG, AAH, AXV, ADI = 128, 176, 200, 208, 220
GI, GOFF, GLA = 26, 13, 14
SMP = 44
RB = 131072 + 256
LOFF = 384
RSZ = LOFF + CAP * 64 + 384
SENT = 0x7fffff00


def LS():
    return " sc1" if CFG.get("ls") else ""


def vr(b, n):
    return f"v[{b}:{b + n - 1}]"


def ar(b, n):
    return f"a[{b}:{b + n - 1}]"


def qbs(X):
    return [0, 1] if X == "A" else [2, 3]


def St(qb, kb):
    return S + (qb * 2 + kb) * 4


def mfma_qk(qb, kb, s, czero=False):
    d = vr(St(qb, kb), 4)
    c = ("0" if czero else vr(NM + 4 * qb, 4)) if s == 0 else d
    return f"{MF} {d}, {ar(AK + (kb * 4 + s) * 4, 4)}, {ar(AQ + (qb * 4 + s) * 4, 4)}, {c}"


def mfma_pv(qb, db):
    o = vr(O + (qb * 8 + db) * 4, 4)
    return f"{MF} {o}, {ar(AV + 4 * db, 4)}, {vr(P + 4 * qb, 4)}, {o}"


def qk_order(X, nkb=2):
    return [(qb, kb, s) for s in range(4) for kb in range(nkb) for qb in qbs(X)]


def pv_order(X):
    return [(qb, db) for qb in qbs(X) for db in range(8)]


class Op:
    def __init__(self, text, cost, est=0, lst=10 ** 6, deps=(), stream=None):
        self.text, self.cost, self.est, self.lst, self.deps, self.stream = text, cost, est, lst, list(deps), stream
        self.pos = None


def sm_group(X, nkb, tag, chk, rdy, dl):
    ops = []
    idx = 0
    q = qbs(X)
    lastadd = {}
    prev_small = None
    for qb in q:
        d = dl[qb] if not chk else min(dl.values())
        if nkb == 1:
            for k in (2, 3):
                ops.append(Op(f"v_mov_b32 v{P + 4 * qb + k}, 0", 4, rdy["p", qb], d - 1, stream="s" + X))
        for kb in range(nkb):
            for pr in range(2):
                s0 = St(qb, kb) + 2 * pr
                e0, e1 = (E_ + (2 * idx) % 16, E_ + (2 * idx + 1) % 16) if chk else (s0, s0 + 1)
                x0 = Op(f"v_exp_f32 v{e0}, v{s0}", 8, rdy[qb, kb], d - 2, stream="x" + X)
                x1 = Op(f"v_exp_f32 v{e1}, v{s0 + 1}", 8, rdy[qb, kb], d - 2, stream="x" + X)
                ops += [x0, x1]
                acc = (T if chk else L) + qb
                dadd = d - 1 if chk else dl["end"]
                c = Op(f"v_cvt_pk_bf16_f32 v{P + 4 * qb + 2 * kb + pr}, v{e0}, v{e1}", 4, rdy["p", qb], d - 1, [x0, x1], stream="c" + X)
                if chk and qb not in lastadd:
                    a1 = Op(f"v_add_f32 v{acc}, v{e0}, v{e1}", 4, 0, dadd, [x0, x1], stream="a" + X)
                    ops += [a1, c]
                else:
                    a0 = Op(f"v_add_f32 v{acc}, v{acc}, v{e0}", 4, 0, dadd, [x0], stream="a" + X)
                    a1 = Op(f"v_add_f32 v{acc}, v{acc}, v{e1}", 4, 0, dadd, [x1], stream="a" + X)
                    ops += [a0, a1, c]
                lastadd[qb] = a1
                lastc = c
                idx += 1
    if chk:
        d = min(dl.values())
        m = Op(f"v_max_f32 v{VT}, v{T + q[0]}, v{T + q[1]}", 4, 0, d, list(lastadd.values()), stream="a" + X)
        c = Op(f"v_cmp_lt_f32 vcc, s{S_THR}, v{VT}", 4, 0, d, [m], stream="a" + X)
        b = Op(f"s_cbranch_vccnz L_slow_{tag}\nL_back_{tag}:", 0, 0, d, [c, lastc], stream="a" + X)
        ops += [m, c, b]
        for qb in q:
            ops.append(Op(f"v_add_f32 v{L + qb}, v{L + qb}, v{T + qb}", 4, 0, dl["end"], [b], stream="a" + X))
    return ops


def schedule(ops, nm, base=8):
    streams = {}
    for o in ops:
        streams.setdefault(o.stream, []).append(o)
    best = None
    for nextra in range(0, 3 * nm):
        for o in ops:
            o.pos = None
        cap = [base + 4 * ((g + 1) * nextra // nm - g * nextra // nm) for g in range(nm)]
        head = {s: 0 for s in streams}
        out = [[] for _ in range(nm)]
        pos = 0
        ok = True
        for g in range(nm):
            pos += 1
            rem = cap[g]
            while True:
                cand = []
                for s, lst in streams.items():
                    if head[s] >= len(lst):
                        continue
                    o = lst[head[s]]
                    if o.est > g:
                        continue
                    if CFG.get("ds1") and s == "l" and any(t.startswith(("ds_", "buffer")) for t in out[g]) and o.lst > g:
                        continue
                    if any(d.pos is None or pos - d.pos < (CFG.get('xd', 2) if d.cost == 8 else 1) for d in o.deps):
                        continue
                    urg = 10 ** 9
                    acc = 0
                    for o2 in lst[head[s]:]:
                        acc += o2.cost
                        urg = min(urg, (o2.lst - g + 1) * base * o2_share(s) - acc)
                    cand.append((urg, s, o))
                if not cand:
                    break
                cand.sort(key=lambda c: c[0])
                pick = None
                for urg, s, o in cand:
                    if o.cost <= rem or o.lst <= g:
                        pick = (s, o)
                        break
                if pick is None:
                    break
                s, o = pick
                out[g].append(o.text)
                o.pos = pos
                pos += 1
                head[s] += 1
                rem -= o.cost
                if rem <= 0 and not any(streams[t][head[t]].lst <= g or streams[t][head[t]].cost == 0
                                        for t in streams if head[t] < len(streams[t])):
                    break
            if any(head[s] < len(l) and l[head[s]].lst <= g for s, l in streams.items()):
                ok = False
                break
        if ok and all(head[s] == len(l) for s, l in streams.items()):
            cost = {o.text: o.cost for o in ops}
            tot = sum(max(16, 8 + sum(cost[t] for t in out[g])) for g in range(nm))
            if best is None or tot < best[0]:
                best = (tot, out, nextra)
            if nextra > best[2] + 6:
                break
    if best is None:
        raise RuntimeError("cannot schedule")
    return best


def o2_share(s):
    return {"x": 0.5, "a": 0.3, "c": 0.3, "s": 0.3}.get(s[0], 0.3)


def emit_rowmax(a, qb, nkb, dst):
    s = St(qb, 0)
    a(f"v_max3_f32 v{dst}, v{s}, v{s + 1}, v{s + 2}")
    if nkb == 2:
        a(f"v_max3_f32 v{dst}, v{dst}, v{s + 3}, v{s + 4}")
        a(f"v_max3_f32 v{dst}, v{dst}, v{s + 5}, v{s + 6}")
        a(f"v_max_f32 v{dst}, v{dst}, v{s + 7}")
    else:
        a(f"v_max_f32 v{dst}, v{dst}, v{s + 3}")
    for sw in ("v_permlane32_swap_b32", "v_permlane16_swap_b32"):
        a(f"v_mov_b32 v{VT3}, v{dst}")
        a("s_nop 1")
        a(f"{sw} v{dst}, v{VT3}")
        a("s_nop 1")
        a(f"v_max_f32 v{dst}, v{dst}, v{VT3}")


def emit_slow(a, X, nkb, tag):
    a.seg("slow_" + tag)
    a.label(f"L_slow_{tag}")
    a("s_nop 15")
    for qb in qbs(X):
        emit_rowmax(a, qb, nkb, VT)
        a(f"v_max_f32 v{VT}, 0, v{VT}")
        a(f"v_exp_f32 v{VT2}, -v{VT}")
        a("s_nop 0")
        a(f"v_mul_f32 v{L + qb}, v{L + qb}, v{VT2}")
        for i in range(32):
            o = O + qb * 32 + i
            a(f"v_mul_f32 v{o}, v{o}, v{VT2}")
        for i in range(4):
            a(f"v_sub_f32 v{NM + 4 * qb + i}, v{NM + 4 * qb + i}, v{VT}")
        for k in range(2 * nkb):
            s = St(qb, 0) + 2 * k
            a(f"v_sub_f32 v{s}, v{s}, v{VT}")
            a(f"v_sub_f32 v{s + 1}, v{s + 1}, v{VT}")
            a(f"v_exp_f32 v{E_}, v{s}")
            a(f"v_exp_f32 v{E_ + 1}, v{s + 1}")
            a("s_nop 0")
            if k == 0:
                a(f"v_add_f32 v{T + qb}, v{E_}, v{E_ + 1}")
            else:
                a(f"v_add_f32 v{T + qb}, v{T + qb}, v{E_}")
                a(f"v_add_f32 v{T + qb}, v{T + qb}, v{E_ + 1}")
            a(f"v_cvt_pk_bf16_f32 v{P + 4 * qb + k}, v{E_}, v{E_ + 1}")
    a("s_nop 7")
    a(f"s_branch L_back_{tag}")


def emit_body(a, cfg, tag, chk, last=False, nkb=2, gb=None, loop=None):
    PF = cfg["PF"]
    lead = cfg.get("lead", 3)
    mg = cfg.get("mg", 0)
    pvB, qkB, pvA, qkA = pv_order("B"), qk_order("B", nkb), pv_order("A"), qk_order("A")
    mf = [mfma_pv(*x) for x in pvB] + [mfma_qk(*x) for x in qkB]
    pA0 = len(mf)
    mf += [mfma_pv(*x) for x in pvA]
    qA0 = len(mf)
    if not last:
        mf += [mfma_qk(*x) for x in qkA]
    gpos = []
    if gb is not None:
        for k, at in enumerate(cfg.get("gslots", [40, 47, 54, 61])):
            d = ar(AAG + 8 * gb + 4 * (k >> 1), 4)
            mf.insert(at, f"{MF} {d}, {ar(AAH + 4 * (k & 1), 4)}, {ar(ABUF + 16 * gb + 4 * k, 4)}, {d}")
            gpos.append(at)
            if at <= qA0:
                qA0 += 1
    nm = len(mf)
    ops = []
    lds = []
    if gb is not None:
        lds.append(Op(f"ds_read_b128 {vr(GI, 4)}, v{GLA} offset:{gb * RSZ + LOFF}", 4, 2, 7, stream="l"))
        for k, at in enumerate(gpos):
            ad = Op(f"v_add_u32 v{GI + k}, v{GI + k}, v{GOFF}", 4, pA0, at - 1, stream="g")
            ops += [ad, Op(f"buffer_load_dwordx4 {ar(ABUF + 16 * gb + 4 * k, 4)}, v{GI + k}, s[{SMP}:{SMP + 3}], 0 offen offset:{12 - 4 * k}{LS()}",
                           cfg.get("dmacost", 8), at, at, [ad], stream="g")]
        if gb == 2:
            ops.append(Op(f"v_add_u32 v{GLA}, 256, v{GLA}", 4, 10, nm - 1, stream="y"))
    for db in range(8):
        lds.append(Op(f"ds_read_b128 {ar(AV + 4 * db, 4)}, v{VLDS} offset:{8192 + 1024 * db}", 4, 8 + db, pA0 - 6, stream="l"))
    if not last:
        kf = sorted(range(8), key=lambda f: max(i for i, x in enumerate(qkB) if x[1] * 4 + x[2] == f))
        for n, f in enumerate(kf):
            g = 16 + max(i for i, x in enumerate(qkB) if x[1] * 4 + x[2] == f)
            lds.append(Op(f"ds_read_b128 {ar(AK + 4 * f, 4)}, v{VLDS} offset:{1024 * f}", 4, g, qA0 - 6, stream="l"))
        adv = Op(f"v_add_u32 v{VLDS}, 0x4000, v{VLDS}", 4, 0, nm - 1, [lds[-1]], stream="z")
        ops += [adv, Op(f"v_and_b32 v{VLDS}, 0x1ffff, v{VLDS}", 4, 0, nm - 1, [adv], stream="z")]
        dg = cfg.get("dgaps", [0, 1, 33, 34])
        for k in range(4):
            ops.append(Op(f"buffer_load_dwordx4 v{VL16}, {KVS}, s{S_SRC} offen offset:{1024 * k}{LS()} lds", cfg.get("dmacost", 8),
                          dg[k], dg[k], stream="d"))
    ops += lds
    finA = {}
    for i, (qb, kb, s_) in enumerate(qkA):
        finA[qb, kb] = i
    rdy = {t: max(0, finA[t] - len(qkA) + 1 + lead) for t in finA}
    rdy["p", 0] = rdy["p", 1] = 0
    ops += sm_group("A", nkb, tag + "A", chk, rdy, {0: pA0 - 1 - mg, 1: pA0 + 7 - mg, "end": qA0 - 2})
    finB = {}
    for i, (qb, kb, s_) in enumerate(qkB):
        finB[qb, kb] = i
    rdy = {t: 16 + finB[t] + 1 + lead for t in finB}
    rdy["p", 2], rdy["p", 3] = 8, 16
    ops += sm_group("B", nkb, tag + "B", chk, rdy, {2: nm - 1 - mg, 3: nm - 1, "end": nm - 1})
    tot, gaps, nx = schedule(ops, nm)
    if cfg.get("verbose"):
        print("body", tag, "model cycles", tot, "extra", nx)
    if cfg.get("memfirst"):
        for g in range(nm):
            gaps[g].sort(key=lambda t: 0 if t.startswith(("ds_", "buffer")) else 1)
    if cfg.get("explast"):
        for g in range(nm):
            if not any("L_back" in t for t in gaps[g]):
                gaps[g].sort(key=lambda t: 1 if t.startswith("v_exp") else 0)
    order = [t for g in range(nm) for t in gaps[g]]

    def nlds_after(g_end, first_k):
        n = 0
        for g in range(g_end):
            n += sum(1 for t in gaps[g] if t.startswith("ds_read") and f"offset:{0}" is not None and "a[" in t and int(t.split("a[")[1].split(":")[0]) < AV)
        return n

    gaps[pA0 - 1].append(f"s_waitcnt lgkmcnt({nlds_after(pA0, 0)})")
    if not last:
        gaps[qA0 - 1].append("s_waitcnt lgkmcnt(0)")
        lastd = max(dg)
        gaps[lastd + 2].insert(0, f"s_add_u32 s{S_M0}, s{S_M0}, 0x4000")
        gaps[lastd + 3].insert(0, f"s_and_b32 m0, s{S_M0}, 0x1ffff")
        gaps[lastd + 4].insert(0, f"s_add_u32 s{S_SRC}, s{S_SRC}, 0x2000")
        if gb is None or gb == 2:
            gaps[lastd + 5].insert(0, f"s_sub_u32 s{S_CNT}, s{S_CNT}, 1")
            gaps[nm - 2].insert(0, f"s_cmp_lg_u32 s{S_CNT}, 0")
            gaps[nm - 1].append(f"s_cbranch_scc1 L_body_{loop or tag}")
        for at in gpos:
            gaps[at - 1].append("s_waitcnt vmcnt(23)")
    a.seg("body_" + tag)
    a.label(f"L_body_{tag}")
    a(f"s_waitcnt vmcnt({4 * (PF - 1) if gb is None else 24})")
    a("s_barrier")
    for g in range(nm):
        a(mf[g])
        for t in gaps[g]:
            a(t)
    if last:
        fill = []
        for qb in range(2):
            for p in range(4):
                t = 26 + 4 * (p % 2)
                for d in range(4):
                    src = O + (qb * 8 + 2 * p) * 4 + 2 * d
                    fill.append(f"v_cvt_pk_bf16_f32 v{t + d}, v{src}, v{src + 1}")
                fill.append(f"buffer_store_dwordx4 {vr(t, 4)}, v{VL16}, {SRD}, s{S_PA + qb} offen offset:{1024 * p} sc1")
        a("s_nop 1")
        for n, x in enumerate(pvB):
            a(mfma_pv(*x))
            for t in fill[(5 * n) // 2:(5 * (n + 1)) // 2]:
                a(t)


SX, SDG, SOUT = 32, 36, 40
S_REC, S_CAP, S_MAXC, S_N, S_I, S_MASK, S_FLG, S_NOWN = 48, 49, 50, 51, 52, 53, 54, 55
SMK = 64
VX = 15
VDC = 16
VVL = 18
VRB, VDUM, VDREC = 17, 18, 19


def emit_region_reset(a):
    a(f"""
    v_and_b32 v2, 63, v0
    v_and_b32 v3, 15, v0
    v_lshl_add_u32 v3, v3, 2, v{VRB}
    v_mov_b32 v4, 0
    v_lshl_add_u32 v5, v2, 4, v{VRB}
    ds_write_b32 v3, v4
    v_mov_b32 v4, 0x40000000
    ds_write_b32 v{VDC}, v4
    v_mov_b32 v6, {SENT}
    v_mov_b32 v7, {SENT}
    v_mov_b32 v8, {SENT}
    v_mov_b32 v9, {SENT}
    v_lshl_add_u32 v3, v2, 3, v{VRB}
    """)
    for k in range(4):
        a(f"ds_write_b128 v5, v[6:9] offset:{LOFF + 1024 * k}")
    a(f"ds_write_b64 v3, v[6:7] offset:{LOFF + 4096}")


def emit_careful(a, tag, ret):
    a.seg("careful_" + tag)
    a.label(f"L_car_{tag}")
    a("s_nop 7")
    emit_region_reset(a)
    a(f"""
    v_mov_b32 v10, 1
    s_mov_b64 s[{SMK + 2}:{SMK + 3}], -1
    s_waitcnt lgkmcnt(0)
    """)
    a.label(f"L_car_loop_{tag}")
    a(f"""
    buffer_load_dwordx4 {vr(RC, 4)}, v{VSEG}, {SRD}, s{S_REC} offen{LS()}
    s_waitcnt vmcnt(0)
    """)
    for k in range(4):
        r = RC + k
        a(f"""
        v_cmp_lt_u32 vcc, 0, v{VREM}
        v_and_or_b32 v{BT}, v{r}, 60, v{VRB}
        s_nop 0
        s_and_b64 vcc, vcc, s[{SMK + 2}:{SMK + 3}]
        s_nop 0
        v_cndmask_b32 v{BT}, v{VDC}, v{BT}, vcc
        ds_add_rtn_u32 v{BT + 1}, v{BT}, v10
        s_waitcnt lgkmcnt(0)
        v_cmp_gt_u32 s[{SMK + 2}:{SMK + 3}], s{S_CAP}, v{BT + 1}
        v_min_u32 v{BT + 1}, s{S_CAP}, v{BT + 1}
        v_lshl_add_u32 v{BT}, v{BT + 1}, 6, v{BT}
        ds_write_b32 v{BT}, v{r} offset:{LOFF}
        v_cndmask_b32 v{BT + 1}, 0, v10, s[{SMK + 2}:{SMK + 3}]
        v_sub_u32 v{VREM}, v{VREM}, v{BT + 1}
        v_lshl_add_u32 v{VSEG}, v{BT + 1}, 2, v{VSEG}
        """)
    a(f"""
    s_cmp_lg_u64 s[{SMK + 2}:{SMK + 3}], 0
    s_cbranch_scc1 L_car_loop_{tag}
    s_waitcnt lgkmcnt(0)
    s_branch {ret}
    """)


def emit_k2(a, cfg):
    PF = cfg["PF"]
    NB0 = cfg.get("NB0", 3)
    NBR = cfg.get("NBR", 2)
    OSC = {0: "", 1: " sc1", 2: " nt", 3: " sc0 sc1"}[cfg.get("osc", 0)]
    CFG.clear()
    CFG.update(cfg)
    LIM = cfg.get("lim", NWG)
    name = "k2_attn_kernel"
    if cfg.get("map", 0) == 0:
        mapping = f"""s_and_b32 s{S_T0}, s2, 7
    s_mul_i32 s{S_T0}, s{S_T0}, {NWG // 8}
    s_lshr_b32 s{S_T1}, s2, 3
    s_add_u32 s{S_T0}, s{S_T0}, s{S_T1}          ; g
    s_mul_i32 s{S_SPLIT}, s{S_T0}, 1639
    s_lshr_b32 s{S_SPLIT}, s{S_SPLIT}, 16        ; split = g / 40
    s_mul_i32 s{S_T1}, s{S_SPLIT}, 40
    s_sub_u32 s{S_QT}, s{S_T0}, s{S_T1}          ; q tile"""
    elif cfg.get("map") == 2:
        mapping = f"""s_and_b32 s{S_T0}, s2, 7
    s_lshr_b32 s{S_T1}, s2, 3
    s_mul_i32 s{S_QT}, s{S_T0}, 29
    s_add_u32 s{S_QT}, s{S_QT}, s{S_T1}
    s_cmp_eq_u32 s{S_T0}, 7
    s_addc_u32 s{S_QT}, s{S_QT}, 0
    s_add_u32 s{S_SPLIT}, s{S_T0}, 234
    s_cmp_lt_u32 s{S_T0}, 6
    s_cselect_b32 s{S_MODE}, 29, 99
    s_cmp_eq_u32 s{S_T1}, s{S_MODE}
    s_cselect_b32 s{S_T0}, s{S_SPLIT}, s{S_QT}
    s_mul_i32 s{S_QT}, s{S_T0}, 10923
    s_lshr_b32 s{S_QT}, s{S_QT}, 16
    s_mul_i32 s{S_SPLIT}, s{S_QT}, 6
    s_sub_u32 s{S_SPLIT}, s{S_T0}, s{S_SPLIT}"""
    else:
        mapping = f"""s_and_b32 s{S_T0}, s2, 7
    s_mul_i32 s{S_T0}, s{S_T0}, 5
    s_lshr_b32 s{S_T1}, s2, 3
    s_mul_i32 s{S_QT}, s{S_T1}, 43
    s_lshr_b32 s{S_QT}, s{S_QT}, 8               ; j / 6
    s_mul_i32 s{S_SPLIT}, s{S_QT}, 6
    s_sub_u32 s{S_SPLIT}, s{S_T1}, s{S_SPLIT}
    s_add_u32 s{S_QT}, s{S_QT}, s{S_T0}"""
    a.raw(".text")
    a.raw(f".globl {name}\n.p2align 8\n.type {name},@function")
    a.label(name)
    a.seg("k2_pro0")
    a(f"""
    s_cmp_ge_u32 s2, {LIM}
    s_cbranch_scc1 L_k2_end
    """)
    if cfg.get("dbg"):
        a("s_cmp_gt_u32 s2, 7")
        a("s_cbranch_scc1 L_k2_nod")
        dbg_stamp(a, cfg, 2, 512, inv=True, s=88, v=100)
        a.label("L_k2_nod")
    if cfg.get("tl") or cfg.get("stamp"):
        a("s_memrealtime s[84:85]")
    if cfg.get("spf"):
        a(f"""
        s_getpc_b64 s[92:93]
        L_k2_pc:
        s_sub_u32 s92, s92, L_k2_pc - k2_attn_kernel
        s_subb_u32 s93, s93, 0
        s_lshr_b32 s94, s2, 3
        s_lshl_b32 s94, s94, 10
        s_min_u32 s94, s94, L_k2_last - k2_attn_kernel - 1024
        v_lshl_add_u32 v60, v0, 2, s94
        global_load_dword v49, v60, s[92:93]
        """)
    a(f"""
    s_load_dwordx2 s[{S_SRD}:{S_SRD + 1}], s[0:1], 88
    s_load_dwordx2 s[{SX}:{SX + 1}], s[0:1], 0
    s_load_dwordx2 s[{SDG}:{SDG + 1}], s[0:1], 24
    s_load_dwordx2 s[{SOUT}:{SOUT + 1}], s[0:1], 72
    v_lshrrev_b32 v1, 6, v0
    v_and_b32 v2, 63, v0
    v_readfirstlane_b32 s{S_W}, v1
    v_lshlrev_b32 v{VL16}, 4, v2
    v_lshlrev_b32 v12, 2, v2
    {mapping}
    s_mov_b32 s{S_SRD + 2}, 0x10000000
    s_mov_b32 s{S_SRD + 3}, 0x00020000
    s_mov_b32 s{SX + 2}, {N * 256}
    s_mov_b32 s{SX + 3}, 0x00020000
    s_mov_b32 s{SDG + 2}, {N * 2}
    s_mov_b32 s{SDG + 3}, 0x00020000
    s_mov_b32 s{SOUT + 2}, {N * 256}
    s_mov_b32 s{SOUT + 3}, 0x00020000
    s_mov_b32 s{SMP + 2}, {N * 256}
    s_mov_b32 s{SMP + 3}, 0x00020000
    s_mov_b32 s{S_THR}, 0x4b800000               ; 2^24
    s_lshl_b32 s{S_T0}, s{S_W}, 12
    s_mul_i32 s{S_SRC0}, s{S_SPLIT}, {52 * 8192}
    s_add_u32 s{S_SRC0}, s{S_SRC0}, s{S_T0}
    s_mov_b32 s{S_T1}, {KF}
    s_cmp_lt_u32 s{S_W}, 2
    s_cselect_b32 s{S_T1}, s{S_T1}, {VF - 8192 - 8192}
    s_add_u32 s{S_SRC0}, s{S_SRC0}, s{S_T1}
    s_lshl_b32 s{S_Q0}, s{S_QT}, 16
    s_lshl_b32 s{S_T1}, s{S_W}, 14
    s_add_u32 s{S_Q0}, s{S_Q0}, s{S_T1}
    s_add_u32 s{S_Q0}, s{S_Q0}, {QF}
    s_add_u32 s{S_Q0 + 1}, s{S_Q0}, 0x1000
    s_add_u32 s{S_Q0 + 2}, s{S_Q0}, 0x2000
    s_add_u32 s{S_Q0 + 3}, s{S_Q0}, 0x3000
    s_mul_i32 s{S_T1}, s{S_QT}, 6
    s_add_u32 s{S_T1}, s{S_T1}, s{S_SPLIT}
    s_lshl_b32 s{S_PO}, s{S_T1}, 16
    s_lshl_b32 s{S_T0}, s{S_W}, 14
    s_add_u32 s{S_PO}, s{S_PO}, s{S_T0}
    s_add_u32 s{S_PO}, s{S_PO}, {PO}
    s_lshl_b32 s{S_PL}, s{S_T1}, 11
    s_lshl_b32 s{S_T0}, s{S_W}, 9
    s_add_u32 s{S_PL}, s{S_PL}, s{S_T0}
    s_add_u32 s{S_PL}, s{S_PL}, {PL}
    s_lshl_b32 s{S_T0}, s{S_W}, 2
    s_lshl_b32 s{S_OWN}, {1 | 1 << 6 | 1 << 12}, s{S_SPLIT}
    s_lshr_b32 s{S_OWN}, s{S_OWN}, s{S_T0}
    s_add_u32 s{S_T0}, s{S_PO}, 0
    s_bitcmp1_b32 s{S_OWN}, 0
    s_cselect_b32 s{S_PA + 0}, 0x7fff0000, s{S_T0}
    s_add_u32 s{S_T0}, s{S_PO}, 4096
    s_bitcmp1_b32 s{S_OWN}, 1
    s_cselect_b32 s{S_PA + 1}, 0x7fff0000, s{S_T0}
    s_add_u32 s{S_T0}, s{S_PO}, 8192
    s_bitcmp1_b32 s{S_OWN}, 2
    s_cselect_b32 s{S_PA + 2}, 0x7fff0000, s{S_T0}
    s_add_u32 s{S_T0}, s{S_PO}, 12288
    s_bitcmp1_b32 s{S_OWN}, 3
    s_cselect_b32 s{S_PA + 3}, 0x7fff0000, s{S_T0}
    v_mov_b32 v{VX}, 0x7fff0000
    v_mov_b32 v{VSEG}, 0
    s_cmp_lt_u32 s{S_SPLIT}, 2
    s_cselect_b32 s{S_T0}, 0, 0x7fff0000
    v_add_u32 v{VVL}, s{S_T0}, v{VL16}
    s_mov_b32 s{S_U}, 51
    s_mov_b32 s{S_MODE}, 0
    s_add_u32 s{S_T0}, s{S_U}, 1
    s_cmp_lt_u32 s{S_W}, 2
    s_cselect_b32 s{S_T1}, 0, 1
    s_add_u32 s{S_T0}, s{S_T0}, s{S_T1}
    s_lshl_b32 s{S_T0}, s{S_T0}, 13
    s_add_u32 s{SKV + 2}, s{S_SRC0}, s{S_T0}
    s_sub_u32 s{SKV + 2}, s{SKV + 2}, 4096
    s_mov_b32 s{SKV + 3}, 0x00020000
    s_mov_b32 s{S_REC}, {REC}
    s_mov_b32 s{S_K0}, {KF + 312 * 8192}
    s_mov_b32 s{S_FV}, {VF + 312 * 8192}
    s_add_u32 s{S_V1}, s{S_FV}, 4096
    s_mov_b32 s{S_CAP}, {CAP}
    s_lshl_b32 s{S_FLG}, s{S_QT}, 7
    s_add_u32 s{S_FLG}, s{S_FLG}, {FLG}
    s_mul_i32 s{S_T0}, s{S_W}, 6
    s_add_u32 s{S_T0}, s{S_T0}, s{S_SPLIT}
    s_lshl_b32 s{S_T1}, s{S_QT}, 4
    s_add_u32 s{S_T1}, s{S_T1}, s{S_T0}
    s_cmp_lt_u32 s{S_T0}, 16
    s_cselect_b32 s{S_MASK}, -1, 0
    s_cmp_lt_u32 s{S_T1}, {N // 16}
    s_cselect_b32 s{S_MASK}, s{S_MASK}, 0
    s_lshl_b32 s{S_I}, s{S_T1}, {2 if cfg.get('tabt') else 8}
    s_add_u32 s{S_I}, s{S_I}, {TAB}
    s_mul_i32 s{S_T0}, s{S_W}, {RSZ}
    s_add_u32 s{S_T0}, s{S_T0}, {RB}
    v_mov_b32 v{VRB}, s{S_T0}
    s_add_u32 s{S_T0}, s{S_T0}, 64
    v_add_u32 v{VDC}, s{S_T0}, v12
    v_mov_b32 v{VOOB}, 0x7fffffff
    v_mov_b32 v4, 0
    v_mov_b32 v5, {LDS_FLAG}
    ds_write_b32 v5, v4
    """)
    emit_region_reset(a)
    a(f"""
    s_waitcnt lgkmcnt(0)
    s_and_b32 s{S_SRD + 1}, s{S_SRD + 1}, 0xffff
    s_and_b32 s{SX + 1}, s{SX + 1}, 0xffff
    s_and_b32 s{SDG + 1}, s{SDG + 1}, 0xffff
    s_and_b32 s{SOUT + 1}, s{SOUT + 1}, 0xffff
    s_mov_b32 s{SKV}, s{S_SRD}
    s_mov_b32 s{SKV + 1}, s{S_SRD + 1}
    s_add_u32 s{SMP}, s{S_SRD}, {MP}
    s_addc_u32 s{SMP + 1}, s{S_SRD + 1}, 0
    v_mul_u32_u24 v11, {640 if cfg.get('tabt') else 1}, v12
    v_mov_b32 v{VREM}, 0
    """)
    def lane_setup():
        a(f"""
        v_bfe_u32 v2, v0, 2, 2
        v_and_b32 v3, 3, v0
        v_bfe_u32 v4, v0, 4, 2
        s_lshl_b32 s{S_T0}, s{S_W}, 6
        s_sub_u32 s{S_T1}, s{S_T0}, 12
        v_lshlrev_b32 v{GOFF}, 4, v3
        v_add_u32 v{GOFF}, s{S_T1}, v{GOFF}
        v_lshlrev_b32 v5, 4, v2
        v_sub_u32 v{GOFF}, v{GOFF}, v5               ; 64w + 16q - 16n' - 12
        v_lshlrev_b32 v{GLA}, 4, v2
        v_lshl_add_u32 v{GLA}, v4, 6, v{GLA}
        v_add_u32 v{GLA}, {RB}, v{GLA}
        """)

    def maxc():
        a(f"""
        v_and_b32 v6, 15, v0
        v_bfe_u32 v7, v0, 4, 2
        v_mul_u32_u24 v7, {RSZ}, v7
        v_lshl_add_u32 v7, v6, 2, v7
        v_add_u32 v7, {RB}, v7
        ds_read_b32 v9, v7
        s_waitcnt lgkmcnt(0)
        """)
        for sh in ("row_shr:1", "row_shr:2", "row_shr:4", "row_shr:8"):
            a(f"v_max_u32_dpp v9, v9, v9 {sh} row_mask:0xf bank_mask:0xf")
            a("s_nop 1")
        a("v_max_u32_dpp v9, v9, v9 row_bcast:15 row_mask:0xa bank_mask:0xf")
        a("s_nop 1")
        a("v_max_u32_dpp v9, v9, v9 row_bcast:31 row_mask:0xc bank_mask:0xf")
        a("s_nop 1")
        a(f"v_readlane_b32 s{S_MAXC}, v9, 63")
        a("s_nop 3")
        a(f"s_min_u32 s{S_N}, s{S_MAXC}, {CAP}")
        a(f"s_add_u32 s{S_N}, s{S_N}, 3")
        a(f"s_lshr_b32 s{S_N}, s{S_N}, 2")

    if cfg.get("ptl"):
        a("s_memrealtime s[98:99]")
    a.label("L_k2_restart")
    a.seg("k2_pro")
    a(f"s_mov_b32 s{S_SRC}, s{S_SRC0}")
    a(f"s_lshl_b32 s{S_M0}, s{S_W}, 12")
    a(f"s_mov_b32 m0, s{S_M0}")
    a(f"s_mov_b32 s{S_LEFT}, s{S_U}")

    def dma_stage():
        for k in range(4):
            a(f"buffer_load_dwordx4 v{VL16}, {KVS}, s{S_SRC} offen offset:{1024 * k}{LS()} lds")

    def dma_adv():
        a(f"s_add_u32 s{S_M0}, s{S_M0}, 0x4000")
        a(f"s_and_b32 m0, s{S_M0}, 0x1ffff")
        a(f"s_add_u32 s{S_SRC}, s{S_SRC}, 0x2000")

    for i in range(8):
        a(f"v_mov_b32 v{P + 8 + i}, 0")
    zq = [f"v_mfma_f32_32x32x16_bf16 {vr(O + 16 * i, 16)}, {vr(P + 8, 4)}, {vr(P + 8, 4)}, 0" for i in range(8)]
    for s_ in range(4):
        a(f"buffer_load_dwordx4 {ar(AK + 16 + 4 * s_, 4)}, v{VL16}, {SRD}, s{S_K0} offen offset:{1024 * s_}{LS()}")
    for i in range(16):
        a(f"buffer_load_dwordx4 {ar(4 * i, 4)}, v{VL16}, {SRD}, s{S_Q0 + (i >> 2)} offen offset:{1024 * (i & 3)}{LS()}")
        if i % 2 == 1:
            a(zq.pop())
    dma_stage()
    dma_adv()
    for j in range(8):
        a(f"buffer_load_dwordx4 {ar(AV + 4 * j, 4)}, v{VVL}, {SRD}, s{S_FV if j < 4 else S_V1} offen offset:{1024 * (j & 3)}{LS()}")
    dma_stage()
    dma_adv()
    assert not zq
    a(f"s_cmp_lg_u32 s{S_MODE}, 0")
    a("s_cbranch_scc1 L_k2_nosetup")
    lane_setup()
    a(f"""
    v_and_b32 v6, 15, v0
    v_and_b32 v7, 1, v6
    v_lshlrev_b32 v7, 4, v7
    v_mov_b32 v8, 0x3f80
    v_lshlrev_b32 v7, v7, v8                     ; value
    v_lshrrev_b32 v6, 1, v6                      ; 0..7 = (h, dword)
    """)
    for k in range(8):
        a(f"v_cmp_eq_u32 s[{SMK + 2 * k}:{SMK + 2 * k + 1}], {k}, v6")
    for k in range(8):
        a(f"v_cndmask_b32 v{BT + k}, 0, v7, s[{SMK + 2 * k}:{SMK + 2 * k + 1}]")
    for k in range(8):
        a(f"v_accvgpr_write_b32 a{AAH + k}, v{BT + k}")
    Z = vr(P + 8, 4)
    for i in range(4):
        a(f"v_mfma_f32_32x32x16_bf16 {ar(ABUF + 16 * i, 16)}, {Z}, {Z}, 0")
    for i in range(2):
        a(f"{MF} {ar(ABUF + 64 + 4 * i, 4)}, {Z}, {Z}, 0")
    a.label("L_k2_nosetup")
    a.seg("k2_pro2")
    for qb in range(NQ):
        a(f"v_mov_b32 v{L + qb}, 0")
    a(f"v_add_u32 v{VLDS}, 0x4000, v{VL16}")
    if cfg.get("ptl"):
        a("s_memrealtime s[62:63]")
    a("s_waitcnt vmcnt(16)")
    if cfg.get("ptl"):
        a("s_memrealtime s[60:61]")
    dq = []
    for st in range(PF - 1):
        dq += [[f"buffer_load_dwordx4 v{VL16}, {KVS}, s{S_SRC} offen offset:{1024 * k}{LS()} lds"] for k in range(4)]
        dq[-1] += [f"s_add_u32 s{S_M0}, s{S_M0}, 0x4000", f"s_and_b32 m0, s{S_M0}, 0x1ffff", f"s_add_u32 s{S_SRC}, s{S_SRC}, 0x2000"]
    n = 0
    for s_ in range(4):
        for qb in range(4):
            d = vr(St(qb, 1), 4)
            a(f"{MF} {d}, {ar(AK + 16 + 4 * s_, 4)}, {ar(AQ + (qb * 4 + s_) * 4, 4)}, {'0' if s_ == 0 else d}")
            if n % 4 == 1:
                for t in dq.pop(0):
                    a(t)
            n += 1
    a("s_waitcnt vmcnt(16)")
    a("s_barrier")
    if cfg.get("ptl"):
        a("s_memrealtime s[88:89]")
    for s in range(8):
        a(f"ds_read_b128 {ar(AK + 4 * s, 4)}, v{VL16} offset:{1024 * s}")
    a("s_nop 1")
    MX = 26
    for qb in range(4):
        s0 = St(qb, 1)
        a(f"v_max3_f32 v{MX + qb}, v{s0}, v{s0 + 1}, v{s0 + 2}")
    for qb in range(4):
        a(f"v_max_f32 v{MX + qb}, v{MX + qb}, v{St(qb, 1) + 3}")
    for sw in ("v_permlane32_swap_b32", "v_permlane16_swap_b32"):
        for qb in range(4):
            a(f"v_mov_b32 v{MX + 4 + qb}, v{MX + qb}")
        a("s_nop 0")
        for qb in range(4):
            a(f"{sw} v{MX + qb}, v{MX + 4 + qb}")
        a("s_nop 0")
        for qb in range(4):
            a(f"v_max_f32 v{MX + qb}, v{MX + qb}, v{MX + 4 + qb}")
    for qb in range(4):
        for i in range(4):
            a(f"v_sub_f32 v{NM + 4 * qb + i}, 0, v{MX + qb}")
    a(f"s_cmp_lt_u32 s{S_SPLIT}, 2")
    a("s_cbranch_scc1 L_lo")
    a.label("L_lo_ret")
    a.seg("k2_pro3")
    a("s_waitcnt lgkmcnt(0)")
    for n, x in enumerate(qk_order("A")):
        a(mfma_qk(*x))
        if n % 2 == 0 and dq:
            for t in dq.pop(0):
                a(t)
    assert not dq
    if cfg.get("stamp"):
        a("s_memtime s[90:91]")
        a("s_memrealtime s[92:93]")
        a("s_waitcnt lgkmcnt(0)")
    a(f"s_cmp_lg_u32 s{S_MODE}, 0")
    a("s_cbranch_scc1 L_safe")
    if cfg.get("ptl"):
        a("s_memrealtime s[86:87]")
        a("s_waitcnt lgkmcnt(0)")
    a(f"buffer_load_dword v{VREM}, v11, {SRD}, s{S_I} offen{LS()}")
    a(f"s_mov_b32 s{S_CNT}, {NBR}")
    a(f"s_mov_b32 s{S_EV}, 0")
    a.raw(".p2align 6")
    emit_body(a, cfg, "m", False)
    a.seg("k2_mid")
    a(f"s_add_u32 s{S_EV}, s{S_EV}, 1")
    a(f"s_cmp_eq_u32 s{S_EV}, 4")
    a("s_cbranch_scc1 L_loop_done")
    a(f"s_cmp_eq_u32 s{S_EV}, 3")
    a("s_cbranch_scc1 L_ev_g")
    a(f"s_cmp_eq_u32 s{S_EV}, 2")
    a("s_cbranch_scc1 L_ev_b")
    a.seg("k2_evr")
    a(f"s_waitcnt vmcnt({4 * NBR})")
    dbg_stamp(a, cfg, 3, 512, s=88, v=2)
    a(f"""
    v_and_b32 v{VREM}, s{S_MASK}, v{VREM}
    v_and_b32 v2, 63, v0
    v_mul_u32_u24 v2, {RECS}, v2
    v_and_b32 v3, 0xffff, v{VREM}
    v_lshl_add_u32 v{VSEG}, v3, 2, v2
    v_lshrrev_b32 v{VREM}, 16, v{VREM}
    """)
    for k in range(NSLOT // 4):
        a(f"buffer_load_dwordx4 {vr(RC + 4 * k, 4)}, v{VSEG}, {SRD}, s{S_REC} offen offset:{16 * k}{LS()}")
    a(f"s_mov_b32 s{S_CNT}, {NB0}")
    a("s_branch L_body_m")
    a.label("L_ev_b")
    a.seg("k2_ev")
    if cfg.get("ptl"):
        a("s_memrealtime s[100:101]")
        a("s_waitcnt lgkmcnt(0)")
    a(f"s_waitcnt vmcnt({4 * NB0})")
    a("v_mov_b32 v12, 1")
    RK = 4
    for grp in range(NSLOT // 8):
        for k in range(8):
            a(f"v_cmp_lt_u32 s[{SMK + 2 * k}:{SMK + 2 * k + 1}], {8 * grp + k}, v{VREM}")
        for k in range(8):
            a(f"v_and_or_b32 v{BT + k}, v{RC + 8 * grp + k}, 60, v{VRB}")
        if grp:
            a(f"s_cmp_eq_u64 s[{SMK}:{SMK + 1}], 0")
            a("s_cbranch_scc1 L_ev_built")
        for k in range(8):
            a(f"v_cndmask_b32 v{BT + k}, v{VDC}, v{BT + k}, s[{SMK + 2 * k}:{SMK + 2 * k + 1}]")
            a(f"ds_add_rtn_u32 v{RK + k}, v{BT + k}, v12")
        for k in range(8):
            a(f"s_waitcnt lgkmcnt(7)")
            a(f"v_min_u32 v{RK + k}, s{S_CAP}, v{RK + k}")
            a(f"v_lshl_add_u32 v{BT + k}, v{RK + k}, 6, v{BT + k}")
            a(f"ds_write_b32 v{BT + k}, v{RC + 8 * grp + k} offset:{LOFF}")
    a.label("L_ev_built")
    a(f"""
    v_and_b32 v2, 15, v0
    v_lshl_add_u32 v2, v2, 2, v{VRB}
    ds_read_b32 v3, v2
    v_cmp_lt_u32 s[{SMK}:{SMK + 1}], {NSLOT}, v{VREM}
    s_waitcnt lgkmcnt(0)
    v_cmp_lt_u32 vcc, s{S_CAP}, v3
    s_nop 3
    s_or_b64 vcc, vcc, s[{SMK}:{SMK + 1}]
    s_cbranch_vccnz L_car_e
    v_mov_b32 v{VREM}, 0
    """)
    a.label("L_ev_ret")

    a(f"s_mov_b32 s{S_CNT}, 1")
    a("s_branch L_body_m")
    a.label("L_ev_g")
    a.seg("k2_evg")
    maxc()
    a(f"""
    s_min_u32 s{S_CNT}, s{S_N}, {NGMAX}
    s_max_u32 s{S_CNT}, s{S_CNT}, 1
    s_sub_u32 s{S_N}, s{S_N}, s{S_CNT}
    s_mul_i32 s{S_T0}, s{S_CNT}, 3
    s_sub_u32 s{S_LEFT}, s{S_LEFT}, s{S_T0}
    s_sub_u32 s{S_LEFT}, s{S_LEFT}, {NBR + NB0 + 1}
    v_bfe_u32 v2, v0, 2, 2
    v_and_b32 v3, 3, v0
    v_bfe_u32 v4, v0, 4, 2
    s_lshl_b32 s{S_T0}, s{S_W}, 6
    s_lshl_b32 s{S_T1}, s{S_QT}, 4
    s_add_u32 s{S_T1}, s{S_T1}, s{S_SPLIT}
    s_lshl_b32 s{S_I}, s{S_T1}, 12
    s_add_u32 s{S_I}, s{S_I}, s{S_T0}
    v_lshrrev_b32 v5, 1, v4
    v_lshl_add_u32 v5, v5, 2, v2
    v_and_b32 v6, 1, v4
    v_lshlrev_b32 v{VX}, 8, v5
    v_lshl_add_u32 v{VX}, v6, 5, v{VX}
    v_lshl_add_u32 v{VX}, v3, 3, v{VX}
    v_add_u32 v{VX}, s{S_I}, v{VX}
    v_add_u32 v10, {6 * 4096}, v{VX}
    v_add_u32 v11, {12 * 4096}, v{VX}
    s_lshl_b32 s{S_I}, s{S_T1}, 5
    v_and_b32 v5, 15, v0
    v_lshlrev_b32 v5, 1, v5
    v_add_u32 v5, s{S_I}, v5
    s_lshl_b32 s{S_I}, s{S_W}, 13
    s_add_u32 s{S_I}, s{S_I}, {WMO}
    s_add_u32 s{S_T1}, s{S_I}, 4096
    s_waitcnt vmcnt(0)
    """)
    for b in range(3):
        for m in range(2):
            a(f"buffer_load_dwordx2 {ar(AXV + 4 * b + 2 * m, 2)}, v{[VX, 10, 11][b]}, s[{SX}:{SX + 3}], 0 offen offset:{2048 * m}")
        a(f"buffer_load_ushort a{ADI + b}, v5, s[{SDG}:{SDG + 3}], 0 offen offset:{192 * b}")
    if not cfg.get("wlate"):
        for j in range(8):
            a(f"buffer_load_dwordx4 {ar(AWM + 4 * j, 4)}, v{VL16}, {SRD}, s{S_I if j < 4 else S_T1} offen offset:{1024 * (j & 3)}")
    if cfg.get("touch"):
        a(f"buffer_load_dword a226, v{VL16}, {SRD}, s{S_PO} offen")
        a(f"buffer_load_dword a227, v{VL16}, {SRD}, s{S_PL} offen")
        a(f"buffer_load_dword a228, v{VL16}, {SRD}, s{S_FLG} offen")
        a(f"buffer_load_dword a229, v{VX}, s[{SOUT}:{SOUT + 3}], 0 offen")
    a.raw(".p2align 6")
    for gb in range(3):
        emit_body(a, cfg, f"g{gb}", False, gb=gb, loop="g0")
    a.seg("k2_gx")
    if cfg.get("spf2"):
        a(f"""
        s_lshl_b32 s94, s{S_W}, 11
        s_add_u32 s94, s94, L_body_lf - k2_attn_kernel
        v_add_u32 v60, s94, v{VL16}
        global_load_dwordx4 a[232:235], v60, s[92:93]
        global_load_dwordx4 a[236:239], v60, s[92:93] offset:1024
        """)
    a(f"s_mov_b32 s{S_CNT}, s{S_LEFT}")
    a(f"s_cmp_lg_u32 s{S_LEFT}, 0")
    a("s_cbranch_scc1 L_body_m")
    a.label("L_loop_done")
    a.seg("k2_mid2")
    if cfg.get("stamp"):
        a("s_memtime s[94:95]")
        a("s_memrealtime s[96:97]")
        a(f"s_load_dwordx2 s[64:65], s[0:1], 80")
        a("s_waitcnt lgkmcnt(0)")
        a("s_sub_u32 s94, s94, s90")
        a("s_sub_u32 s96, s96, s92")
        a("v_mov_b32 v2, s94")
        a("v_mov_b32 v3, s96")
        a("s_and_b32 s65, s65, 0xffff")
        a("s_mov_b32 s66, 256")
        a("s_mov_b32 s67, 0x00020000")
        a("s_lshr_b32 s72, s2, 3")
        a("s_lshl_b32 s72, s72, 3")
        a("v_mov_b32 v4, s72")
        a("s_and_b32 s73, s2, 7")
        a(f"s_or_b32 s73, s73, s{S_W}")
        a("s_cmp_lg_u32 s73, 0")
        a("s_cbranch_scc1 L_nostamp")
        a("buffer_store_dwordx2 v[2:3], v4, s[64:67], 0 offen")
        a.label("L_nostamp")
    emit_body(a, cfg, "lf", False, last=True, nkb=2)
    a.label("L_k2_chk")
    a.seg("k2_chk")
    if cfg.get("tl") and not cfg.get("ptl"):
        a("s_memrealtime s[98:99]")
    VPLA = 8
    smp = f"s[{SMP}:{SMP + 3}]"

    def consume_all():
        for b in range(3):
            for k in range(4):
                d = ar(AAG + 8 * b + 4 * (k >> 1), 4)
                a(f"{MF} {d}, {ar(AAH + 4 * (k & 1), 4)}, {ar(ABUF + 16 * b + 4 * k, 4)}, {d}")

    def pub(qb):
        for p in range(4):
            t = 26 + 4 * (p % 2)
            for d in range(4):
                src = O + (qb * 8 + 2 * p) * 4 + 2 * d
                a(f"v_cvt_pk_bf16_f32 v{t + d}, v{src}, v{src + 1}")
            a(f"buffer_store_dwordx4 {vr(t, 4)}, v{VL16}, {SRD}, s{S_PA + qb} offen offset:{1024 * p} sc1")

    pub(2)
    pub(3)
    a(f"""
    v_max3_f32 v4, v{L}, v{L + 1}, v{L + 2}
    v_max_f32 v4, v4, v{L + 3}
    v_add_f32 v6, v{L}, v{L + 1}
    v_add_f32 v7, v{L + 2}, v{L + 3}
    v_add_f32 v6, v6, v7
    s_mov_b32 s{S_T0}, 0x53800000
    v_cmp_ngt_f32 vcc, s{S_T0}, v4
    v_cmp_u_f32 s[{SMK}:{SMK + 1}], v6, v6
    v_mov_b32 v5, {LDS_FLAG}
    v_mov_b32 v4, 1
    s_or_b64 vcc, vcc, s[{SMK}:{SMK + 1}]
    s_cbranch_vccz L_k2_chk2
    ds_write_b32 v5, v4
    """)
    a.label("L_k2_chk2")
    a(f"v_and_b32 v{VPLA}, 15, v0")
    a(f"v_lshlrev_b32 v{VPLA}, 3, v{VPLA}")
    for sw in ("v_permlane32_swap_b32", "v_permlane16_swap_b32"):
        for qb in range(NQ):
            a(f"v_mov_b32 v{T + qb}, v{L + qb}")
        a("s_nop 0")
        for qb in range(NQ):
            a(f"{sw} v{L + qb}, v{T + qb}")
        a("s_nop 0")
        for qb in range(NQ):
            a(f"v_add_f32 v{57 + 2 * qb if sw[10] == '1' else L + qb}, v{L + qb}, v{T + qb}")
    for qb in range(NQ):
        a(f"v_sub_f32 v{56 + 2 * qb}, 0, v{NM + 4 * qb}")
    a("s_mov_b64 exec, 0xffff")
    for qb in range(NQ):
        a(f"buffer_store_dwordx2 v[{56 + 2 * qb}:{57 + 2 * qb}], v{VPLA}, {SRD}, s{S_PL} offen offset:{128 * qb} sc1")
    a("s_mov_b64 exec, -1")
    if cfg.get("tl") and not cfg.get("ptl"):
        a("s_memrealtime s[62:63]")
    a("s_waitcnt vmcnt(20) lgkmcnt(0)")
    if cfg.get("wlate"):
        a(f"s_lshl_b32 s{S_I}, s{S_W}, 13")
        a(f"s_add_u32 s{S_I}, s{S_I}, {WMO}")
        a(f"s_add_u32 s{S_T1}, s{S_I}, 4096")
        for j in range(8):
            a(f"buffer_load_dwordx4 {ar(AWM + 4 * j, 4)}, v{VL16}, {SRD}, s{S_I if j < 4 else S_T1} offen offset:{1024 * (j & 3)}")
    a("s_barrier")
    a("ds_read_b32 v4, v5")
    a(f"s_and_b32 s{S_T0}, s{S_OWN}, 15")
    a("s_cbranch_scc1 L_own")
    a.label("L_ownr")
    a.seg("k2_epi")
    a(f"""
    s_waitcnt lgkmcnt(0)
    v_readfirstlane_b32 s{S_T0}, v4
    s_nop 3
    s_cmp_gt_u32 s{S_T0}, s{S_MODE}
    s_cbranch_scc1 L_redo
    """)
    if cfg.get("tl") and not cfg.get("ptl"):
        a("s_memrealtime s[60:61]")
    def agg_to_lds():
        a(f"""
        v_bfe_u32 v2, v0, 2, 2
        v_bfe_u32 v3, v0, 5, 1
        v_lshl_add_u32 v2, v3, 2, v2
        v_mul_u32_u24 v2, {AGS}, v2
        v_bfe_u32 v3, v0, 1, 1
        v_lshl_add_u32 v2, v3, 5, v2
        v_bfe_u32 v3, v0, 4, 1
        v_lshl_add_u32 v2, v3, 4, v2
        v_and_b32 v3, 1, v0
        v_lshl_add_u32 v2, v3, 3, v2
        s_lshl_b32 s{S_T0}, s{S_W}, 6
        v_add_u32 v2, s{S_T0}, v2
        """)
        for i in range(24):
            a(f"v_accvgpr_read_b32 v{64 + i}, a{AAG + i}")
        for i in range(12):
            a(f"v_cvt_pk_bf16_f32 v{64 + i}, v{64 + 2 * i}, v{65 + 2 * i}")
        for b in range(3):
            for m in range(2):
                a(f"ds_write_b64 v2, {vr(64 + 4 * b + 2 * m, 2)} offset:{AGL + (16 * b + 8 * m) * AGS}")

    consume_all()
    agg_to_lds()
    a("s_waitcnt vmcnt(0) lgkmcnt(0)")
    if cfg.get("tl") and not cfg.get("ptl"):
        a("s_memrealtime s[88:89]")
    a("s_barrier")
    a(f"""
    s_cmp_lg_u32 s{S_W}, 0
    s_cbranch_scc1 L_nosig
    s_lshl_b32 s{S_T0}, s{S_SPLIT}, 2
    v_mov_b32 v10, s{S_T0}
    s_add_u32 s{S_T1}, s{S_MODE}, 1
    v_mov_b32 v11, s{S_T1}
    s_mov_b64 exec, 1
    buffer_store_dword v11, v10, {SRD}, s{S_FLG} offen sc1
    s_mov_b64 exec, -1
    """)
    a.label("L_nosig")
    a(f"s_cmp_gt_i32 s{S_N}, 0")
    a("s_cbranch_scc1 L_left")
    a.label("L_gdone")
    a.seg("k2_fin")
    if cfg.get("tl") and not cfg.get("ptl"):
        a("s_memrealtime s[86:87]")
    POV, PLV = 128, 200
    ACC, BP, AI, XA, VXB = 26, 64, 34, 96, 5
    a(f"""
    v_and_b32 v{VPLA}, 15, v0
    v_and_b32 v9, 63, v0
    v_min_u32 v9, 5, v9
    v_lshlrev_b32 v9, 2, v9
    buffer_load_dword v10, v9, {SRD}, s{S_FLG} offen sc1
    s_mul_i32 s{S_T0}, s{S_QT}, {6 * 65536}
    s_lshl_b32 s{S_T1}, s{S_SPLIT}, 12
    s_add_u32 s{S_T0}, s{S_T0}, s{S_T1}
    s_lshl_b32 s{S_T1}, s{S_W}, 10
    s_add_u32 s{S_T0}, s{S_T0}, s{S_T1}
    s_add_u32 s{S_PO}, s{S_T0}, {PO}
    s_mul_i32 s{S_T0}, s{S_QT}, {6 * 2048}
    s_lshl_b32 s{S_T1}, s{S_SPLIT}, 7
    s_add_u32 s{S_T0}, s{S_T0}, s{S_T1}
    s_add_u32 s{S_PL}, s{S_T0}, {PL}
    v_mov_b32 v{VXB}, v{VX}
    v_add_u32 v{VXB + 1}, {6 * 4096}, v{VX}
    v_add_u32 v{VXB + 2}, {12 * 4096}, v{VX}
    v_bfe_u32 v2, v0, 2, 2
    v_and_b32 v3, 3, v0
    v_bfe_u32 v4, v0, 5, 1
    v_lshl_add_u32 v2, v4, 2, v2
    v_lshl_add_u32 v2, v3, 4, v2
    v_lshlrev_b32 v14, 2, v2
    v_add_u32 v15, 32, v14                       ; m = 1
    v_and_b32 v4, 16, v0
    v_cmp_ne_u32 s[{SMK}:{SMK + 1}], 0, v4
    v_and_b32 v2, 1, v{VPLA}
    v_lshlrev_b32 v2, 4, v2
    v_mov_b32 v3, 0x3f80
    v_lshlrev_b32 v2, v2, v3
    v_bfe_u32 v3, v{VPLA}, 1, 1
    v_lshrrev_b32 v4, 2, v{VPLA}
    v_bfe_u32 v11, v0, 4, 2
    v_xor_b32 v4, v4, v11
    v_lshl_add_u32 v3, v4, 1, v3
    v_cmp_eq_u32 s[{SMK + 2}:{SMK + 3}], 0, v3
    v_cmp_eq_u32 s[{SMK + 4}:{SMK + 5}], 1, v3
    v_lshlrev_b32 v{VPLA}, 3, v{VPLA}
    """)
    for k in (2, 3, 4, 5):
        a(f"v_mov_b32 v{AI + k}, 0")
    for k in range(2):
        a(f"v_cndmask_b32 v{AI + k}, 0, v2, s[{SMK + 2 + 2 * k}:{SMK + 3 + 2 * k}]")
        a(f"v_cndmask_b32 v{AI + 6 + k}, 0, v2, s[{SMK + 2 + 2 * k}:{SMK + 3 + 2 * k}]")
    YL, BF = 176, 128
    a(f"""
    v_and_b32 v2, 15, v0
    v_mul_u32_u24 v2, {AGS}, v2
    v_bfe_u32 v3, v0, 4, 2
    v_lshl_add_u32 v2, v3, 4, v2
    """)
    for b in range(3):
        for ks in range(4):
            a(f"ds_read_b128 {vr(BF + 16 * b + 4 * ks, 4)}, v2 offset:{AGL + 16 * b * AGS + 64 * ks}")
    for b in range(3):
        for m in range(2):
            for d in range(2):
                a(f"v_accvgpr_read_b32 v{3 + d}, a{AXV + 4 * b + 2 * m + d}")
            xa = XA + 8 * b + 4 * m
            for d in range(2):
                a(f"v_lshlrev_b32 v{xa + 2 * d}, 16, v{3 + d}")
                a(f"v_and_b32 v{xa + 2 * d + 1}, 0xffff0000, v{3 + d}")
        a(f"v_accvgpr_read_b32 v{80 + b}, a{ADI + b}")
    for b in range(3):
        a(f"s_waitcnt lgkmcnt({8 - 4 * b})")
        for ks in range(4):
            for h in range(2):
                d = vr(YL + 8 * b + 4 * h, 4)
                a(f"{MF} {d}, {ar(AWM + 16 * h + 4 * ks, 4)}, {vr(BF + 16 * b + 4 * ks, 4)}, {'0' if ks == 0 else d}")
        a(f"v_lshlrev_b32 v{80 + b}, 16, v{80 + b}")
    a(f"s_mov_b32 s{S_T1}, s{S_SPLIT}")
    for s in range(6):
        a(f"s_lshl_b32 s{S_T0}, s{S_T1}, 11")
        a(f"s_add_u32 s{SMK + 8 + s}, s{S_PL}, s{S_T0}")
        if s:
            a(f"s_lshl_b32 s{S_T0}, s{S_T1}, 16")
            a(f"s_add_u32 s{SMK + 14 + s}, s{S_PO}, s{S_T0}")
        a(f"s_add_u32 s{S_T1}, s{S_T1}, 1")
        a(f"s_cmp_eq_u32 s{S_T1}, 6")
        a(f"s_cselect_b32 s{S_T1}, 0, s{S_T1}")
    YD = 232 + 0
    for b in range(3):
        for j in range(8):
            a(f"v_mul_f32 v{[26, 236, 244][b] + j}, v{YL + 8 * b + j}, v{80 + b}")
    a(f"s_lshl_b32 s{S_T0}, s{S_W}, 10")
    a(f"v_add_u32 v2, s{S_T0}, v{VL16}")
    for b in range(3):
        a(f"ds_read_b128 {vr(POV + 24 * b, 4)}, v2 offset:{4096 * b}")
    a("s_waitcnt lgkmcnt(0)")
    a(f"s_mov_b32 s{S_I}, 0")
    a.label("L_poll")
    a(f"""
    buffer_load_dword v11, v9, {SRD}, s{S_FLG} offen sc1
    s_waitcnt vmcnt(1)
    v_cmp_eq_u32 vcc, 0, v10
    s_cbranch_vccz L_poll_done
    s_add_u32 s{S_I}, s{S_I}, 1
    s_cmp_gt_u32 s{S_I}, 0x1000000
    s_cbranch_scc1 L_k2_end
    buffer_load_dword v10, v9, {SRD}, s{S_FLG} offen sc1
    s_waitcnt vmcnt(1)
    v_cmp_eq_u32 vcc, 0, v11
    s_cbranch_vccnz L_poll
    v_mov_b32 v12, v11
    s_branch L_poll_d2
    """)
    a.label("L_poll_done")
    a("v_mov_b32 v12, v10")
    a.label("L_poll_d2")
    if cfg.get("tl") and not cfg.get("ptl"):
        a("s_memrealtime s[100:101]")
        a("s_waitcnt lgkmcnt(0)")
    a("v_cmp_ne_u32 vcc, 1, v12")
    for b in range(3):
        if b == 2:
            a(f"s_cmp_gt_u32 s{S_SPLIT}, 3")
            a("s_cbranch_scc1 L_no3")
        for s in range(6):
            a(f"buffer_load_dwordx2 {vr(PLV + 12 * b + 2 * s, 2)}, v{VPLA}, {SRD}, s{SMK + 8 + s} offen offset:{768 * b} sc1")
        for s in range(1, 6):
            a(f"s_add_u32 s{S_T0}, s{SMK + 14 + s}, {b * 6 * 4096}")
            a(f"buffer_load_dwordx4 {vr(POV + 24 * b + 4 * s, 4)}, v{VL16}, {SRD}, s{S_T0} offen sc1")
    a.label("L_ld_done")
    a("s_cbranch_vccnz L_general")

    def finish(b, rcp):
        for m in range(2):
            if rcp:
                a(f"ds_bpermute_b32 v{80 + m}, v{14 + m}, v{rcp}")
            for j in range(8):
                a(f"ds_bpermute_b32 v{BP + 8 * m + j}, v{14 + m}, v{ACC + j}")
        ob = 56 + 4 * (b & 1)
        for m in range(2):
            a(f"s_waitcnt lgkmcnt({(9 if rcp else 8) * (1 - m)})")
            xa = XA + 8 * b + 4 * m
            for r in range(4):
                a(f"v_cndmask_b32 v{BP + 8 * m + r}, v{BP + 8 * m + r}, v{BP + 8 * m + 4 + r}, s[{SMK}:{SMK + 1}]")
                if rcp:
                    a(f"v_fmac_f32 v{xa + r}, v{BP + 8 * m + r}, v{80 + m}")
                else:
                    a(f"v_add_f32 v{xa + r}, v{xa + r}, v{BP + 8 * m + r}")
            for d in range(2):
                a(f"v_cvt_pk_bf16_f32 v{ob + 2 * m + d}, v{xa + 2 * d}, v{xa + 2 * d + 1}")
            a(f"buffer_store_dwordx2 {vr(ob + 2 * m, 2)}, v{VXB + b}, s[{SOUT}:{SOUT + 3}], 0 offen offset:{2048 * m}{OSC}")

    yd = [26, 236, 244]
    acc = [84, 120, 46 + 0]
    acc = [80, 88, 120]
    bp = [64, POV, POV + 24]
    rc = [42, 43, 44]

    def M(b, nb):
        pl, po = PLV + 12 * b, POV + 24 * b
        for s in range(6):
            if s:
                a(f"s_waitcnt vmcnt({5 - s + 11 * (nb - 1 - b)})")
            for h in range(2):
                d = vr(acc[b] + 4 * h, 4)
                a(f"{MF} {d}, {vr(AI + 4 * h, 4)}, {vr(po + 4 * s, 4)}, {'0' if s == 0 else d}")
            if s == 1:
                a(f"v_add_f32 v{rc[b]}, v{pl + 1}, v{pl + 3}")
            elif s > 1:
                a(f"v_add_f32 v{rc[b]}, v{rc[b]}, v{pl + 2 * s + 1}")
        a(f"v_rcp_f32 v{rc[b]}, v{rc[b]}")

    def B(b):
        for j in range(8):
            a(f"v_fmac_f32 v{yd[b] + j}, v{acc[b] + j}, v{rc[b]}")
        for m in range(2):
            for j in range(8):
                a(f"ds_bpermute_b32 v{bp[b] + 8 * m + j}, v{14 + m}, v{yd[b] + j}")

    def F(b, younger):
        ob = 56 + 4 * (b & 1) if b < 2 else 46
        for m in range(2):
            a(f"s_waitcnt lgkmcnt({min(15, younger + 8 * (1 - m))})")
            xa = XA + 8 * b + 4 * m
            q = bp[b] + 8 * m
            for r in range(4):
                a(f"v_cndmask_b32 v{q + r}, v{q + r}, v{q + 4 + r}, s[{SMK}:{SMK + 1}]")
                a(f"v_add_f32 v{xa + r}, v{xa + r}, v{q + r}")
            for d in range(2):
                a(f"v_cvt_pk_bf16_f32 v{ob + 2 * m + d}, v{xa + 2 * d}, v{xa + 2 * d + 1}")
            a(f"buffer_store_dwordx2 {vr(ob + 2 * m, 2)}, v{VXB + b}, s[{SOUT}:{SOUT + 3}], 0 offen offset:{2048 * m}{OSC}")

    M(0, 3)
    M(1, 3)
    B(0)
    M(2, 3)
    B(1)
    F(0, 16)
    B(2)
    F(1, 16)
    F(2, 0)
    a("s_branch L_k2_done")
    a.label("L_no3")
    a("s_cbranch_vccnz L_no3g")
    a.seg("k2_no3")
    M(0, 2)
    M(1, 2)
    B(0)
    B(1)
    F(0, 16)
    F(1, 0)
    a("s_branch L_k2_done")
    a.label("L_no3g")
    a("s_waitcnt vmcnt(0)")
    a.label("L_general")
    a.seg("k2_gen")
    for b in range(3):
        pl, po = PLV + 12 * b, POV + 24 * b
        if b == 2:
            a(f"s_cmp_gt_u32 s{S_SPLIT}, 3")
            a("s_cbranch_scc1 L_k2_done")
        a(f"s_waitcnt vmcnt({11 * (2 - b) + 2 * b})")
        a(f"v_max3_f32 v44, v{pl}, v{pl + 2}, v{pl + 4}")
        a(f"v_max3_f32 v44, v44, v{pl + 6}, v{pl + 8}")
        a(f"v_max_f32 v44, v44, v{pl + 10}")
        for s in range(6):
            a(f"v_sub_f32 v{pl + 2 * s}, v{pl + 2 * s}, v44")
        for s in range(6):
            a(f"v_exp_f32 v{pl + 2 * s}, v{pl + 2 * s}")
        a("s_nop 0")
        a(f"v_mul_f32 v45, v{pl}, v{pl + 1}")
        for s in range(1, 6):
            a(f"v_fmac_f32 v45, v{pl + 2 * s}, v{pl + 2 * s + 1}")
        a("v_rcp_f32 v45, v45")
        a("s_nop 0")
        for s in range(6):
            a(f"v_mul_f32 v{pl + 2 * s}, v{pl + 2 * s}, v45")
        for s in range(6):
            for d in range(4):
                r = po + 4 * s + d
                a(f"v_lshlrev_b32 v42, 16, v{r}")
                a(f"v_and_b32 v43, 0xffff0000, v{r}")
                a(f"v_fmac_f32 v{yd[b] + 2 * d}, v42, v{pl + 2 * s}")
                a(f"v_fmac_f32 v{yd[b] + 2 * d + 1}, v43, v{pl + 2 * s}")
        for m in range(2):
            for j in range(8):
                a(f"ds_bpermute_b32 v{bp[b] + 8 * m + j}, v{14 + m}, v{yd[b] + j}")
        F(b, 0)
    a.label("L_k2_done")
    a("s_waitcnt vmcnt(0)")
    if cfg.get("tl"):
        a("s_waitcnt lgkmcnt(0)")
        a("s_mov_b64 exec, 1")
        a("v_lshrrev_b32 v1, 6, v0")
        a("v_lshlrev_b32 v1, 5, v1")
        a(f"s_lshl_b32 s90, s2, 7")
        a(f"s_add_u32 s90, s90, {TR + 3 * 0x40000}")
        for i, sr in enumerate((98, 62, 60, 88, 86, 100)):
            a(f"v_mov_b32 v{2 + i}, s{sr}")
        a(f"buffer_store_dwordx4 v[2:5], v1, {SRD}, s90 offen")
        a(f"buffer_store_dwordx2 v[6:7], v1, {SRD}, s90 offen offset:16")
    dbg_stamp(a, cfg, 5, 512, s=88, v=2)
    stamp_exit(a, cfg, 84, 2, SRD, TR)
    a.label("L_k2_end")
    a("s_endpgm")
    a.label("L_left")
    a.seg("k2_left0")
    lane_setup()
    a(f"v_add_u32 v{GLA}, {NGMAX * 256}, v{GLA}")
    a.label("L_left_loop")
    a.seg("k2_left")
    for b in range(3):
        a(f"ds_read_b128 {vr(64 + 4 * b, 4)}, v{GLA} offset:{b * RSZ + LOFF}")
    a(f"v_add_u32 v{GLA}, 256, v{GLA}")
    a("s_waitcnt lgkmcnt(0)")
    for b in range(3):
        for k in range(4):
            a(f"v_add_u32 v{64 + 4 * b + k}, v{64 + 4 * b + k}, v{GOFF}")
            a(f"buffer_load_dwordx4 {ar(ABUF + 16 * b + 4 * k, 4)}, v{64 + 4 * b + k}, {smp}, 0 offen offset:{12 - 4 * k}{LS()}")
    a("s_waitcnt vmcnt(0)")
    consume_all()
    a(f"""
    s_sub_u32 s{S_N}, s{S_N}, 1
    s_cmp_gt_i32 s{S_N}, 0
    s_cbranch_scc1 L_left_loop
    s_nop 7
    s_cmp_le_u32 s{S_MAXC}, {CAP}
    s_cbranch_scc1 L_left_done
    s_barrier
    s_branch L_car_t
    """)
    a.label("L_left_done")
    a.seg("k2_leftd")
    agg_to_lds()
    a("s_waitcnt lgkmcnt(0)")
    a("s_barrier")
    a("s_branch L_gdone")
    a.label("L_more2")
    a.seg("k2_more2")
    a("s_barrier")
    maxc()
    lane_setup()
    a("s_branch L_left_loop")
    a.label("L_safe")
    a.seg("k2_safe0")
    a(f"s_mov_b32 s{S_CNT}, s{S_LEFT}")
    emit_body(a, cfg, "s", True)
    a.seg("k2_smid")
    emit_body(a, cfg, "sf", True, last=True, nkb=2)
    a("s_branch L_k2_chk")
    a.label("L_redo")
    a.seg("k2_redo")
    a("s_waitcnt vmcnt(0)")
    a("s_barrier")
    a(f"s_mov_b32 s{S_MODE}, 1")
    a("s_branch L_k2_restart")
    a.label("L_own")
    a.seg("k2_ownx")
    a(f"s_ff1_i32_b32 s{S_T1}, s{S_T0}")
    a(f"s_lshl_b32 s{S_I}, s{S_W}, 2")
    a(f"s_add_u32 s{S_I}, s{S_I}, s{S_T1}")
    a(f"s_sub_u32 s{S_I}, s{S_I}, s{S_SPLIT}")
    a(f"s_mul_i32 s{S_I}, s{S_I}, 683")
    a(f"s_and_b32 s{S_I}, s{S_I}, 0x3000")
    a(f"v_add_u32 v42, s{S_I}, v{VL16}")
    for qb in range(1, NQ):
        a(f"s_cmp_eq_u32 s{S_T1}, {qb}")
        a(f"s_cbranch_scc1 L_own{qb}")
    for qb in range(NQ):
        a.label(f"L_own{qb}")
        a.seg(f"k2_own{qb}")
        for p in range(4):
            t = 26 + 4 * p
            for d in range(4):
                src = O + (qb * 8 + 2 * p) * 4 + 2 * d
                a(f"v_cvt_pk_bf16_f32 v{t + d}, v{src}, v{src + 1}")
            a(f"ds_write_b128 v42, {vr(t, 4)} offset:{1024 * p}")
        a("s_branch L_ownr")
    a.label("L_lo")
    a.seg("k2_lo")
    a(f"s_cmp_eq_u32 s{S_SPLIT}, 1")
    a("s_cbranch_scc1 L_lo1")

    def lo_softmax(qs):
        for qb in qs:
            for i in range(4):
                a(f"v_sub_f32 v{St(qb, 1) + i}, v{St(qb, 1) + i}, v{26 + qb}")
        for qb in qs:
            for i in range(4):
                a(f"v_exp_f32 v{St(qb, 1) + i}, v{St(qb, 1) + i}")
        for qb in qs:
            s0 = St(qb, 1)
            a(f"v_add_f32 v{L + qb}, v{s0}, v{s0 + 1}")
            a(f"v_cvt_pk_bf16_f32 v{P + 4 * qb}, v{s0}, v{s0 + 1}")
            a(f"v_add_f32 v{L + qb}, v{L + qb}, v{s0 + 2}")
            a(f"v_cvt_pk_bf16_f32 v{P + 4 * qb + 1}, v{s0 + 2}, v{s0 + 3}")
            a(f"v_add_f32 v{L + qb}, v{L + qb}, v{s0 + 3}")

    lo_softmax((2, 3))
    a("s_branch L_lo_ret")
    a.label("L_lo1")
    a.seg("k2_lo1")
    for qb in range(2):
        a(f"v_mov_b32 v{P + 4 * qb + 2}, 0")
        a(f"v_mov_b32 v{P + 4 * qb + 3}, 0")
    lo_softmax((0, 1))
    a("s_waitcnt vmcnt(8)")
    for x in pv_order("A"):
        a(mfma_pv(*x))
    a("s_branch L_lo_ret")
    emit_careful(a, "e", "L_ev_ret")
    emit_careful(a, "t", "L_more2")
    for tag, nkb in (("s", 2), ("sf", 2)):
        for X in "AB":
            emit_slow(a, X, nkb, tag + X)
    a.label("L_k2_last")
    return dict(name=name, vgpr=512, accum=256, sgpr=102, grid=NWG, block=256, lds=RB + 4 * RSZ,
                chains=[["k2_pro0", "k2_pro", "k2_pro2", "k2_pro3", "body_m", "body_m", "k2_mid", "k2_mid2", "body_lf", "k2_chk", "k2_epi", "k2_fin"],
                        ["body_m", "k2_mid", "k2_ev", "body_m"], ["body_m", "k2_mid", "k2_evr", "body_m"], ["body_g2", "k2_gx", "k2_mid2", "body_lf"], ["k2_ev", "careful_e", "body_m"],
                        ["body_m", "k2_mid", "k2_evg", "body_g0", "body_g1", "body_g2", "body_g0", "body_g1", "body_g2", "k2_gx", "body_m"],
                        ["body_lf", "k2_chk", "k2_epi", "k2_redo", "k2_pro"], ["k2_pro2", "k2_lo", "k2_pro3", "body_m"], ["k2_pro2", "k2_lo1", "k2_pro3", "body_m"],
                        ["k2_pro", "k2_pro2", "k2_pro3", "k2_safe0", "body_s", "body_s", "k2_smid", "body_sf", "k2_chk", "k2_epi"],
                        ["k2_fin", "k2_gen"], ["k2_fin", "k2_no3"], ["k2_chk", "k2_ownx", "k2_own0", "k2_own1", "k2_own2", "k2_own3", "k2_epi"], ["k2_epi", "k2_left0", "k2_left", "k2_left", "k2_leftd", "k2_fin"], ["k2_left", "careful_t", "k2_more2", "k2_left"]] +
                       [["slow_" + t + X] for t in ("s", "sf") for X in "AB"])
```
